```python
import torch

def _softmax(x, axis=-1):
    return torch.softmax(x, dim=axis)
def _gelu(x):
    return torch.nn.functional.gelu(x, approximate="tanh")
def _silu(x):
    return torch.nn.functional.silu(x)
def _sigmoid(x):
    return torch.sigmoid(x)
def _layernorm(x, axis=-1, eps=1e-5):
    m = x.mean(dim=axis, keepdim=True)
    v = x.var(dim=axis, keepdim=True, unbiased=False)
    return (x - m) / torch.sqrt(v + eps)
def _scatter_add(tgt, idx, src, axis=0):
    return tgt.clone().index_add_(axis, idx, src)
def _segment_sum(src, seg, n):
    out = torch.zeros((n,) + src.shape[1:], dtype=src.dtype)
    return out.index_add_(0, seg, src)
def _pad(x, pw):
    flat = tuple(v for pair in reversed(pw) for v in pair)
    return torch.nn.functional.pad(x, flat)

kernel_name = 'parallel_sum__mha_block__moe_arch_mod__prompt'

def setup_inputs():

    _w = (lambda a: (lambda t: t.to(torch.bfloat16) if t.is_floating_point() else t)(torch.as_tensor(a)))
    def _A_setup():
        B, S, D, H = 1, 2048, 640, 32
        return {
            "x": _w((lambda *s: torch.randn(*s, dtype=torch.bfloat16) * 0.05)(B, S, D)),
            "wqkv": _w((lambda *s: torch.randn(*s, dtype=torch.bfloat16) * 0.1)(D, 3 * D)),
            "wo": _w((lambda *s: torch.randn(*s, dtype=torch.bfloat16) * 0.05)(D, D)),
        }
    _A_in = _A_setup()

    def _B_setup():
        B, S, D, F, C = 1, 2048, 640, 1536, 2
        return {
            "x": _w((lambda *s: torch.randn(*s, dtype=torch.bfloat16) * 0.05)(B, S, D)),
            "w_r": _w((lambda *s: torch.randn(*s, dtype=torch.bfloat16) * 3.2)(D)),
            "w_gate": _w((lambda *s: torch.randn(*s, dtype=torch.bfloat16) * 0.1)(D, F)),
            "w_up": _w((lambda *s: torch.randn(*s, dtype=torch.bfloat16) * 0.1)(D, F)),
            "w_down": _w((lambda *s: torch.randn(*s, dtype=torch.bfloat16) * 0.1)(F, D)),
        }
    _B_in = _B_setup()

    return {
        "A_x": _A_in["x"],
        "A_wqkv": _A_in["wqkv"],
        "A_wo": _A_in["wo"],
        "B_x": _B_in["x"],
        "B_w_r": _B_in["w_r"],
        "B_w_gate": _B_in["w_gate"],
        "B_w_up": _B_in["w_up"],
        "B_w_down": _B_in["w_down"],
    }

def reference(A_x, A_wqkv, A_wo, B_x, B_w_r, B_w_gate, B_w_up, B_w_down):
    def _A_ref(x, wqkv, wo):
        B, S, D = x.shape
        H = 32
        Dh = D // H
        qkv = (lambda x, *d: x.permute(*d))((x @ wqkv).reshape(B, S, 3, H, Dh), 2, 0, 3, 1, 4)
        q, k, v = qkv[0], qkv[1], qkv[2]
        scores = torch.einsum("bhqd,bhkd->bhqk", q, k) * (Dh ** -0.5)
        p = _softmax(scores, axis=-1)
        o = torch.einsum("bhqk,bhkd->bhqd", p, v)
        return (lambda x, *d: x.permute(*d))(o, 0, 2, 1, 3).reshape(B, S, D) @ wo

    def _B_ref(x, w_r, w_gate, w_up, w_down):
        B, S, D = x.shape
        C = 2
        r = x @ w_r
        idx = torch.argsort(-r, axis=-1)[:, :C]
        idx_e = (lambda x, n, axis: torch.repeat_interleave(x, n, dim=axis))(idx.reshape(B, C, 1), D, axis=2)
        x_sel = (lambda x, i, axis: torch.take_along_dim(x, i, dim=axis))(x, idx_e, axis=1)
        g = _silu(x_sel @ w_gate)
        u = x_sel @ w_up
        y = (g * u) @ w_down
        r_sel = _sigmoid((lambda x, i, axis: torch.take_along_dim(x, i, dim=axis))(r, idx, axis=1))
        y = y * r_sel.reshape(B, C, 1)
        b_off = (torch.arange(B) * S).reshape(B, 1)
        flat_idx = (idx + b_off).reshape(B * C)
        zero = (x * 0.0).reshape(B * S, D)
        upd = _scatter_add(zero, flat_idx, y.reshape(B * C, D), axis=0)
        return x + upd.reshape(B, S, D)

    x = A_x
    xn = _layernorm(x, axis=-1)
    return x + _A_ref(xn, A_wqkv, A_wo) + _B_ref(xn, B_w_r, B_w_gate, B_w_up, B_w_down)
```

```python
S, D, H, DH, F = 2048, 640, 32, 20, 1536

QB_OFF = 0
KV_OFF = 32 * 64 * 1280
OB_OFF = KV_OFF + 32 * 64 * 2560
ST_OFF = OB_OFF + 32 * 64 * 1280
R_OFF = ST_OFF + 2048 * 8
CAND_OFF = R_OFF + 2048 * 4
YP_OFF = CAND_OFF + 256
WS_USED = YP_OFF + 96 * 2 * 640 * 4
WS_SRD = (WS_USED + 0xFFFF) & ~0xFFFF

X_BYTES = S * D * 2
WQKV_BYTES = D * 3 * D * 2
WO_BYTES = D * D * 2
WG_BYTES = D * F * 2
WD_BYTES = F * D * 2

LOG2E = 1.4426950408889634
QSCALE = LOG2E * DH ** -0.5

import struct
def f2u(x):
    return struct.unpack("<I", struct.pack("<f", x))[0]

class Asm:
    def __init__(self):
        self.lines = []
    def __call__(self, s=""):
        for ln in s.split("\n"):
            self.lines.append(ln if ln.endswith(":") or ln.startswith(".") or not ln.strip() else "    " + ln.strip())
    def label(self, l):
        self.lines.append(l + ":")
    def text(self):
        return "\n".join(self.lines) + "\n"

def vr(a, n=1):
    return f"v{a}" if n == 1 else f"v[{a}:{a+n-1}]"
def sr(a, n=1):
    return f"s{a}" if n == 1 else f"s[{a}:{a+n-1}]"

def srd(a, dst, lo, nbytes):
    a(f"s_mov_b32 s{dst}, s{lo}")
    a(f"s_and_b32 s{dst+1}, s{lo+1}, 0xffff")
    a(f"s_mov_b32 s{dst+2}, {nbytes}")
    a(f"s_mov_b32 s{dst+3}, 0x00020000")

def kernel_header(a, name):
    a(f".globl {name}")
    a(".p2align 8")
    a(f".type {name},@function")
    a.label(name)

def kernel_desc(name, vgpr, sgpr=100):
    acc = (vgpr + 3) // 4 * 4
    return f""".amdhsa_kernel {name}
  .amdhsa_next_free_vgpr {vgpr}
  .amdhsa_next_free_sgpr {sgpr}
  .amdhsa_accum_offset {acc}
  .amdhsa_group_segment_fixed_size 0
  .amdhsa_kernarg_size 88
  .amdhsa_user_sgpr_count 2
  .amdhsa_user_sgpr_kernarg_segment_ptr 1
  .amdhsa_system_sgpr_workgroup_id_x 1
.end_amdhsa_kernel
"""

import os
PROF_OFF = 16 << 20
def prof_on(name):
    return name in os.environ.get("PROF", "").split(",")
class Stamps:
    def __init__(self, name, base=52):
        self.on = prof_on(name)
        self.base = base
        self.names = []
    def __call__(self, a, label):
        if not self.on:
            return
        if label not in self.names:
            self.names.append(label)
        i = self.names.index(label)
        assert i < 12
        a(f"s_memtime s[{self.base + 4 * i}:{self.base + 4 * i + 1}]")
        a(f"s_memrealtime s[{self.base + 4 * i + 2}:{self.base + 4 * i + 3}]")
    def store(self, a, swave, srd_ws, vtmp=2):
        if not self.on:
            return
        a("s_mov_b64 exec, -1")
        a("s_waitcnt vmcnt(0) lgkmcnt(0)")
        a("s_lshl_b32 s50, s2, 4")
        a(f"s_add_u32 s50, s50, s{swave}")
        a("s_lshl_b32 s50, s50, 7")
        a(f"s_add_u32 s50, s50, {PROF_OFF}")
        a(f"s_mov_b32 s{srd_ws + 2}, 0x2000000")
        a(f"v_mov_b32 v{vtmp}, 0")
        for i in range(12):
            a(f"v_mov_b32 v{vtmp + 1}, s{self.base + 4 * i}")
            a(f"buffer_store_dword v{vtmp + 1}, v{vtmp}, s[{srd_ws}:{srd_ws + 3}], s50 offen offset:{4 * i}")
            a(f"v_mov_b32 v{vtmp + 1}, s{self.base + 4 * i + 2}")
            a(f"buffer_store_dword v{vtmp + 1}, v{vtmp}, s[{srd_ws}:{srd_ws + 3}], s50 offen offset:{64 + 4 * i}")
        a("s_waitcnt vmcnt(0)")
```

```python
from common import *
import os

NAME = "qkv_kernel"
LDS = 131072 + 2048
VGPRS = 176

SRD_X, SRD_W, SRD_WS = 8, 12, 16
sW, sMT, sNT = 20, 21, 22
sROW0 = 23
sT0, sT1, sT2, sT3 = 24, 25, 26, 27
sSEC, sHS, sTS, sSCALE = 28, 29, 30, 31
sTA, sTB = 32, 33
sWR, sWC = 34, 35
ST_NM, ST_RS, ST_CS = 131072, 131072 + 512, 131072 + 1024

vLANE, vTOK, vH = 1, 2, 3
vT = 4
vXA = (8, 12)
vXB = (16, 20)
vWA = (24, 25)
vWB = (26, 27)
vS1, vS2, vCS, vONE = 28, 29, 30, 31
vF = (32, 48)
vACC = 64
vOFF = 128
vE = 136

ST = Stamps("k1")

def acc(a_, b_):
    return vACC + 32 * a_ + 16 * b_

def entry(a):
    kernel_header(a, NAME)
    ST(a, "entry")
    a("s_cmp_ge_u32 s2, 256")
    a("s_cbranch_scc1 L_k1_exit")
    a("s_load_dwordx4 s[4:7], s[0:1], 0")
    a("s_load_dwordx2 s[36:37], s[0:1], 80")
    a("s_load_dwordx2 s[38:39], s[0:1], 32")
    a(f"v_lshrrev_b32 v{vT}, 6, v0")
    a(f"v_and_b32 v{vLANE}, 63, v0")
    a(f"v_readfirstlane_b32 s{sW}, v{vT}")
    a(f"s_and_b32 s{sT0}, s2, 3")
    a(f"s_lshl_b32 s{sT0}, s{sT0}, 2")
    a(f"s_bfe_u32 s{sT1}, s2, 0x20003")
    a(f"s_or_b32 s{sMT}, s{sT0}, s{sT1}")
    a(f"s_bfe_u32 s{sT0}, s2, 0x10002")
    a(f"s_lshl_b32 s{sT0}, s{sT0}, 3")
    a(f"s_lshr_b32 s{sT1}, s2, 5")
    a(f"s_or_b32 s{sNT}, s{sT0}, s{sT1}")
    a(f"s_lshl_b32 s{sROW0}, s{sMT}, 7")
    a(f"v_and_b32 v{vTOK}, 31, v{vLANE}")
    a(f"v_lshrrev_b32 v{vH}, 5, v{vLANE}")
    a("s_waitcnt lgkmcnt(0)")
    srd(a, SRD_X, 4, X_BYTES)
    srd(a, SRD_W, 6, WQKV_BYTES)
    srd(a, SRD_WS, 36, WS_SRD)
    a(f"s_cmp_eq_u32 s{sNT}, 15")
    a("s_cbranch_scc1 L_k1_aux")
    a(f"s_cmp_ge_u32 s{sW}, 4")
    a("s_cbranch_scc1 L_k1_loader")

def loader(a):
    a.label("L_k1_loader")
    vX, vWt = 8, 9
    lw = sT0
    a(f"s_sub_u32 s{lw}, s{sW}, 4")
    a(f"v_lshrrev_b32 v{vT}, 3, v{vLANE}")
    a(f"s_lshl_b32 s{sT1}, s{lw}, 3")
    a(f"s_add_u32 s{sT1}, s{sT1}, s{sROW0}")
    a(f"v_add_u32 v{vT}, s{sT1}, v{vT}")
    a(f"v_mul_u32_u24 v{vT}, 1280, v{vT}")
    a(f"v_lshrrev_b32 v{vT+1}, 4, v{vLANE}")
    a(f"s_and_b32 s{sT1}, s{lw}, 1")
    a(f"s_lshl_b32 s{sT1}, s{sT1}, 2")
    a(f"v_add_u32 v{vT+2}, s{sT1}, v{vT+1}")
    a(f"v_and_b32 v{vT+3}, 7, v{vLANE}")
    a(f"v_xor_b32 v{vT+2}, v{vT+2}, v{vT+3}")
    a(f"v_lshl_add_u32 v{vX}, v{vT+2}, 4, v{vT}")
    a(f"s_lshl_b32 s{sT1}, s{lw}, 2")
    a(f"v_add_u32 v{vT}, s{sT1}, v{vT+1}")
    a(f"v_mul_u32_u24 v{vT}, 3840, v{vT}")
    a(f"v_and_b32 v{vT+2}, 15, v{vLANE}")
    a(f"v_lshlrev_b32 v{vT+3}, 2, v{vT+1}")
    a(f"v_xor_b32 v{vT+2}, v{vT+2}, v{vT+3}")
    a(f"v_lshl_add_u32 v{vT}, v{vT+2}, 4, v{vT}")
    a(f"s_lshl_b32 s{sT1}, s{sNT}, 8")
    a(f"v_add_u32 v{vWt}, s{sT1}, v{vT}")
    a(f"s_lshl_b32 s{sT2}, s{lw}, 10")
    def stage(s):
        base = (s & 3) * 32768
        for i in range(4):
            a(f"s_add_u32 m0, s{sT2}, {base + i * 4096}")
            a(f"s_mov_b32 s{sT3}, {i * 40960 + s * 128}")
            a(f"buffer_load_dwordx4 v{vX}, s[{SRD_X}:{SRD_X+3}], s{sT3} offen lds")
            a(f"s_add_u32 m0, s{sT2}, {base + 16384 + i * 4096}")
            a(f"s_mov_b32 s{sT3}, {(s * 64 + 16 * i) * 3840}")
            a(f"buffer_load_dwordx4 v{vWt}, s[{SRD_W}:{SRD_W+3}], s{sT3} offen lds")
    ST(a, "setup")
    for s in range(4):
        stage(s)
    ST(a, "B0")
    for s in range(10):
        younger = min(9, 3 if s == 0 else s + 2) - s
        a(f"s_waitcnt vmcnt({8 * younger})")
        if s in (0, 1, 2, 5):
            ST(a, {0: "g4", 1: "g8", 2: "g20", 5: "loopend"}[s])
        a("s_barrier")
        if 1 <= s and s + 3 <= 9:
            stage(s + 3)
    ST(a, "stores")
    ST(a, "end")
    ST.store(a, sW, SRD_WS)
    a("s_endpgm")

def reads(a, g):
    s, ks = g >> 2, g & 3
    slot = s & 3
    st, base = slot >> 1, (slot & 1) * 32768
    f = vF[g & 1]
    a(f"ds_read_b128 {vr(f, 4)}, v{vXA[st] + ks} offset:{base}")
    a(f"ds_read_b128 {vr(f + 4, 4)}, v{vXB[st] + ks} offset:{base}")
    for b, w in ((0, vWA), (1, vWB)):
        for rd in range(2):
            a(f"ds_read_b64_tr_b16 {vr(f + 8 + 4 * b + 2 * rd, 2)}, v{w[st]} offset:{base + 16384 + (16 * ks + 4 * rd) * 256}")

def compute(a, g, vorient):
    f = vF[g & 1]
    dots = []
    for r in range(4):
        dots.append(f"v_dot2c_f32_bf16 v{vS1}, v{f + r}, v{vONE}")
        dots.append(f"v_dot2c_f32_bf16 v{vS2}, v{f + r}, v{f + r}")
        dots.append(f"v_dot2c_f32_bf16 v{vCS}, v{f + 8 + r}, v{vONE}")
    k = 0
    for a_ in range(2):
        for b_ in range(2):
            x, w = vr(f + 4 * a_, 4), vr(f + 8 + 4 * b_, 4)
            A, B = (x, w) if vorient else (w, x)
            a(f"v_mfma_f32_32x32x16_bf16 {vr(acc(a_, b_), 16)}, {A}, {B}, {vr(acc(a_, b_), 16)}")
            for d in dots[3 * k:3 * k + 3]:
                a(d)
            k += 1

def mainloop(a, vorient):
    ST(a, "setup")
    a("s_barrier")
    ST(a, "B0")
    reads(a, 0)
    for g in range(40):
        if g in (4, 8, 20):
            ST(a, f"g{g}")
        if (g & 3) == 3 and g < 39:
            a("s_waitcnt lgkmcnt(0)")
            a("s_barrier")
            reads(a, g + 1)
        elif g < 39:
            reads(a, g + 1)
            a("s_waitcnt lgkmcnt(6)")
        else:
            a("s_waitcnt lgkmcnt(0)")
        compute(a, g, vorient)

def half_sum(a, v, tmp):
    a(f"v_mov_b32 v{tmp}, v{v}")
    a("s_nop 1")
    a(f"v_permlane32_swap_b32 v{v}, v{tmp}")
    a("s_nop 1")
    a(f"v_add_f32 v{v}, v{v}, v{tmp}")

def stats_exchange(a):
    ST(a, "loopend")
    a("s_nop 3")
    half_sum(a, vS1, vT)
    half_sum(a, vS2, vT)
    half_sum(a, vCS, vT)
    a(f"v_mul_f32 v{vS1}, {hex(f2u(1.0 / D))}, v{vS1}")
    a(f"v_mul_f32 v{vS2}, {hex(f2u(1.0 / D))}, v{vS2}")
    a(f"v_fma_f32 v{vS2}, -v{vS1}, v{vS1}, v{vS2}")
    a(f"v_max_f32 v{vS2}, 0, v{vS2}")
    a(f"v_add_f32 v{vS2}, {hex(f2u(1e-5))}, v{vS2}")
    a(f"v_rsq_f32 v{vS2}, v{vS2}")
    a(f"v_sub_f32 v{vS1}, 0, v{vS1}")
    a(f"s_lshl_b32 s{sT0}, s{sWR}, 6")
    a(f"s_lshl_b32 s{sT1}, s{sWC}, 5")
    a(f"s_add_u32 s{sT0}, s{sT0}, s{sT1}")
    a(f"v_add_u32 v{vT}, s{sT0}, v{vTOK}")
    a(f"v_lshlrev_b32 v{vT}, 2, v{vT}")
    a(f"s_lshl_b32 s{sT0}, s{sWC}, 6")
    a(f"s_lshl_b32 s{sT1}, s{sWR}, 5")
    a(f"s_add_u32 s{sT0}, s{sT0}, s{sT1}")
    a(f"v_add_u32 v{vT+1}, s{sT0}, v{vTOK}")
    a(f"v_lshlrev_b32 v{vT+1}, 2, v{vT+1}")
    a(f"v_add_u32 v{vT}, {ST_NM}, v{vT}")
    a(f"v_add_u32 v{vT+1}, {ST_CS}, v{vT+1}")
    a(f"ds_write_b32 v{vT}, v{vS1}")
    a(f"ds_write_b32 v{vT}, v{vS2} offset:512")
    a(f"ds_write_b32 v{vT+1}, v{vCS}")
    a("s_waitcnt lgkmcnt(0)")
    a("s_barrier")

def consumer_setup(a):
    a(f"s_lshr_b32 s{sWR}, s{sW}, 1")
    a(f"s_and_b32 s{sWC}, s{sW}, 1")
    a(f"v_lshrrev_b32 v{vT}, 1, v{vTOK}")
    a(f"v_and_b32 v{vT}, 7, v{vT}")
    a(f"s_lshl_b32 s{sT0}, s{sWR}, 6")
    a(f"v_add_u32 v{vT+1}, s{sT0}, v{vTOK}")
    a(f"v_lshlrev_b32 v{vT+1}, 7, v{vT+1}")
    a(f"s_lshl_b32 s{sT0}, s{sWC}, 12")
    a(f"s_xor_b32 s{sT1}, s{sT0}, 4096")
    for ks in range(4):
        a(f"v_add_u32 v{vT+2}, {2 * ks}, v{vH}")
        a(f"v_xor_b32 v{vT+2}, v{vT+2}, v{vT}")
        a(f"v_lshl_add_u32 v{vT+2}, v{vT+2}, 4, v{vT+1}")
        a(f"v_add_u32 v{vXA[0] + ks}, s{sT0}, v{vT+2}")
        a(f"v_add_u32 v{vXB[0] + ks}, s{sT1}, v{vT+2}")
        a(f"v_add_u32 v{vXA[1] + ks}, 65536, v{vXA[0] + ks}")
        a(f"v_add_u32 v{vXB[1] + ks}, 65536, v{vXB[0] + ks}")
    a(f"v_bfe_u32 v{vT}, v{vLANE}, 2, 2")
    a(f"v_lshl_add_u32 v{vT+1}, v{vH}, 3, v{vT}")
    a(f"v_lshlrev_b32 v{vT+1}, 8, v{vT+1}")
    a(f"v_and_b32 v{vT+2}, 3, v{vLANE}")
    a(f"v_lshl_add_u32 v{vT+1}, v{vT+2}, 3, v{vT+1}")
    a(f"v_bfe_u32 v{vT+2}, v{vLANE}, 4, 1")
    a(f"v_lshlrev_b32 v{vT}, 1, v{vT}")
    for (dst, own) in ((vWA, True), (vWB, False)):
        a(f"s_lshl_b32 s{sT0}, s{sWC}, 2")
        if own:
            a(f"s_lshl_b32 s{sT1}, s{sWR}, 1")
        else:
            a(f"s_xor_b32 s{sT1}, s{sWR}, 1")
            a(f"s_lshl_b32 s{sT1}, s{sT1}, 1")
        a(f"s_add_u32 s{sT0}, s{sT0}, s{sT1}")
        a(f"v_add_u32 v{vT+3}, s{sT0}, v{vT+2}")
        a(f"v_xor_b32 v{vT+3}, v{vT+3}, v{vT}")
        a(f"v_lshl_add_u32 v{dst[0]}, v{vT+3}, 5, v{vT+1}")
        a(f"v_add_u32 v{dst[1]}, 65536, v{dst[0]}")
    a(f"v_mov_b32 v{vONE}, 0x3f803f80")
    a(f"v_mov_b32 v{vS1}, 0")
    a(f"v_mov_b32 v{vS2}, 0")
    a(f"v_mov_b32 v{vCS}, 0")
    for r in range(64):
        a(f"v_mov_b32 v{vACC + r}, 0")

def qk_path(a):
    a.label("L_k1_qk")
    a(f"s_mov_b32 s{sSEC}, {KV_OFF}")
    a(f"s_mov_b32 s{sTS}, 2560")
    a(f"s_mov_b32 s{sSCALE}, {hex(f2u(1.0))}")
    a(f"s_sub_u32 s{sT0}, s{sNT}, 5")
    a(f"s_cmp_lt_u32 s{sNT}, 5")
    a(f"s_cselect_b32 s{sSEC}, {QB_OFF}, s{sSEC}")
    a(f"s_cselect_b32 s{sTS}, 1280, s{sTS}")
    a(f"s_cselect_b32 s{sSCALE}, {hex(f2u(QSCALE))}, s{sSCALE}")
    a(f"s_cselect_b32 s{sT0}, s{sNT}, s{sT0}")
    a(f"s_lshl_b32 s{sHS}, s{sTS}, 6")
    a(f"s_lshl_b32 s{sT1}, s{sMT}, 2")
    a(f"s_lshl_b32 s{sT2}, s{sWR}, 1")
    a(f"s_add_u32 s{sT1}, s{sT1}, s{sT2}")
    a(f"s_add_u32 s{sT2}, s{sT1}, s{sWC}")
    a(f"s_mul_i32 s{sTA}, s{sT2}, s{sTS}")
    a(f"s_add_u32 s{sTA}, s{sTA}, s{sSEC}")
    a(f"s_xor_b32 s{sT3}, s{sWC}, 1")
    a(f"s_add_u32 s{sT2}, s{sT1}, s{sT3}")
    a(f"s_mul_i32 s{sTB}, s{sT2}, s{sTS}")
    a(f"s_add_u32 s{sTB}, s{sTB}, s{sSEC}")
    a(f"s_lshl_b32 s{sT0}, s{sT0}, 5")
    a(f"s_lshl_b32 s{sT1}, s{sWC}, 4")
    a(f"s_add_u32 s{sT0}, s{sT0}, s{sT1}")
    for b_ in range(2):
        a(f"s_lshl_b32 s{sT1}, s{sWR}, 3") if b_ == 0 else (a(f"s_xor_b32 s{sT1}, s{sWR}, 1"), a(f"s_lshl_b32 s{sT1}, s{sT1}, 3"))
        a(f"s_add_u32 s{sT1}, s{sT1}, s{sT0}")
        for g in range(4):
            o = vOFF + 4 * b_ + g
            a(f"v_add_u32 v{vT}, s{sT1}, v{vH}")
            a(f"v_add_u32 v{vT}, {2 * g}, v{vT}")
            a(f"v_mul_u32_u24 v{vT+1}, 52429, v{vT}")
            a(f"v_lshrrev_b32 v{vT+1}, 18, v{vT+1}")
            a(f"v_mul_u32_u24 v{vT+2}, 5, v{vT+1}")
            a(f"v_sub_u32 v{vT+2}, v{vT}, v{vT+2}")
            a(f"v_mul_lo_u32 v{o}, v{vT+1}, s{sHS}")
            a(f"v_lshrrev_b32 v{vT+1}, 1, v{vT+2}")
            a(f"v_lshlrev_b32 v{vT+1}, 9, v{vT+1}")
            a(f"v_and_b32 v{vT+3}, 1, v{vT+2}")
            a(f"v_lshl_add_u32 v{vT+1}, v{vT+3}, 3, v{vT+1}")
            a(f"v_cmp_eq_u32 vcc, 4, v{vT+2}")
            a(f"v_lshlrev_b32 v{vT+3}, 4, v{vTOK}")
            a(f"v_lshlrev_b32 v{vT+2}, 3, v{vTOK}")
            a(f"v_cndmask_b32 v{vT+3}, v{vT+3}, v{vT+2}, vcc")
            a(f"v_add3_u32 v{o}, v{o}, v{vT+1}, v{vT+3}")
    mainloop(a, False)
    stats_exchange(a)
    vNM, vRS, vC = vE, vE + 2, vE + 4
    a(f"s_lshl_b32 s{sT0}, s{sWR}, 6")
    a(f"v_add_u32 v{vT}, s{sT0}, v{vTOK}")
    a(f"v_lshlrev_b32 v{vT}, 2, v{vT}")
    a(f"s_lshl_b32 s{sT1}, s{sWC}, 7")
    a(f"v_add_u32 v{vT+1}, s{sT1}, v{vT}")
    a(f"s_xor_b32 s{sT1}, s{sT1}, 128")
    a(f"v_add_u32 v{vT+2}, s{sT1}, v{vT}")
    a(f"v_add_u32 v{vT+1}, {ST_NM}, v{vT+1}")
    a(f"v_add_u32 v{vT+2}, {ST_NM}, v{vT+2}")
    a(f"ds_read_b32 v{vNM}, v{vT+1}")
    a(f"ds_read_b32 v{vRS}, v{vT+1} offset:512")
    a(f"ds_read_b32 v{vNM+1}, v{vT+2}")
    a(f"ds_read_b32 v{vRS+1}, v{vT+2} offset:512")
    a(f"s_lshl_b32 s{sT0}, s{sWC}, 8")
    a(f"v_lshlrev_b32 v{vT}, 4, v{vH}")
    a(f"v_add_u32 v{vT}, s{sT0}, v{vT}")
    a(f"s_lshl_b32 s{sT1}, s{sWR}, 7")
    a(f"v_add_u32 v{vT+1}, s{sT1}, v{vT}")
    a(f"s_xor_b32 s{sT1}, s{sT1}, 128")
    a(f"v_add_u32 v{vT+2}, s{sT1}, v{vT}")
    a(f"v_add_u32 v{vT+1}, {ST_CS}, v{vT+1}")
    a(f"v_add_u32 v{vT+2}, {ST_CS}, v{vT+2}")
    for b_ in range(2):
        for g in range(4):
            a(f"ds_read_b128 {vr(vC + 16 * b_ + 4 * g, 4)}, v{vT + 1 + b_} offset:{32 * g}")
    a("s_waitcnt lgkmcnt(0)")
    a(f"v_mul_f32 v{vRS}, s{sSCALE}, v{vRS}")
    a(f"v_mul_f32 v{vRS+1}, s{sSCALE}, v{vRS+1}")
    ws = f"s[{SRD_WS}:{SRD_WS+3}]"
    for a_ in range(2):
        a(f"v_mov_b32 v{vT}, v{vNM + a_}")
        a(f"v_mov_b32 v{vT+1}, v{vNM + a_}")
        a(f"v_mov_b32 v{vT+2}, v{vRS + a_}")
        a(f"v_mov_b32 v{vT+3}, v{vRS + a_}")
        for b_ in range(2):
            A = acc(a_, b_)
            for p in range(8):
                a(f"v_pk_fma_f32 {vr(A + 2 * p, 2)}, {vr(vC + 16 * b_ + 2 * p, 2)}, {vr(vT, 2)}, {vr(A + 2 * p, 2)}")
            for p in range(8):
                a(f"v_pk_mul_f32 {vr(A + 2 * p, 2)}, {vr(A + 2 * p, 2)}, {vr(vT + 2, 2)}")
            for p in range(8):
                a(f"v_cvt_pk_bf16_f32 v{A + p}, v{A + 2 * p}, v{A + 2 * p + 1}")
            for g in range(4):
                a(f"buffer_store_dwordx2 {vr(A + 2 * g, 2)}, v{vOFF + 4 * b_ + g}, {ws}, s{sTA if a_ == 0 else sTB} offen")
    ST(a, "stores")
    if ST.on:
        a("s_waitcnt vmcnt(0)")
    ST(a, "end")
    ST.store(a, sW, SRD_WS)
    a("s_endpgm")

def v_path(a):
    a.label("L_k1_v")
    a(f"s_lshl_b32 s{sT1}, s{sMT}, 2")
    a(f"s_lshl_b32 s{sT2}, s{sWR}, 1")
    a(f"s_add_u32 s{sT1}, s{sT1}, s{sT2}")
    a(f"s_add_u32 s{sT2}, s{sT1}, s{sWC}")
    a(f"s_mul_i32 s{sTA}, s{sT2}, 2560")
    a(f"s_add_u32 s{sTA}, s{sTA}, {KV_OFF + 1280}")
    a(f"s_xor_b32 s{sT3}, s{sWC}, 1")
    a(f"s_add_u32 s{sT2}, s{sT1}, s{sT3}")
    a(f"s_mul_i32 s{sTB}, s{sT2}, 2560")
    a(f"s_add_u32 s{sTB}, s{sTB}, {KV_OFF + 1280}")
    a(f"s_sub_u32 s{sT0}, s{sNT}, 10")
    a(f"s_lshl_b32 s{sT0}, s{sT0}, 7")
    a(f"s_lshl_b32 s{sT1}, s{sWC}, 6")
    a(f"s_add_u32 s{sT0}, s{sT0}, s{sT1}")
    for b_ in range(2):
        if b_ == 0:
            a(f"s_lshl_b32 s{sT1}, s{sWR}, 5")
        else:
            a(f"s_xor_b32 s{sT1}, s{sWR}, 1")
            a(f"s_lshl_b32 s{sT1}, s{sT1}, 5")
        a(f"s_add_u32 s{sT1}, s{sT1}, s{sT0}")
        a(f"v_add_u32 v{vT}, s{sT1}, v{vTOK}")
        a(f"v_mul_u32_u24 v{vT+1}, 52429, v{vT}")
        a(f"v_lshrrev_b32 v{vT+1}, 20, v{vT+1}")
        a(f"v_mul_u32_u24 v{vT+2}, 20, v{vT+1}")
        a(f"v_sub_u32 v{vT+2}, v{vT}, v{vT+2}")
        a(f"s_mov_b32 s{sT2}, {64 * 2560}")
        a(f"v_mul_lo_u32 v{vOFF + b_}, v{vT+1}, s{sT2}")
        a(f"v_lshlrev_b32 v{vT+2}, 4, v{vT+2}")
        a(f"v_mul_u32_u24 v{vT+3}, 320, v{vH}")
        a(f"v_add3_u32 v{vOFF + b_}, v{vOFF + b_}, v{vT+2}, v{vT+3}")
    mainloop(a, True)
    stats_exchange(a)
    vCL, vNM, vRS = vE, vE + 4, vE + 20
    a(f"s_lshl_b32 s{sT0}, s{sWC}, 6")
    a(f"v_add_u32 v{vT}, s{sT0}, v{vTOK}")
    a(f"v_lshlrev_b32 v{vT}, 2, v{vT}")
    a(f"s_lshl_b32 s{sT1}, s{sWR}, 7")
    a(f"v_add_u32 v{vT+1}, s{sT1}, v{vT}")
    a(f"s_xor_b32 s{sT1}, s{sT1}, 128")
    a(f"v_add_u32 v{vT+2}, s{sT1}, v{vT}")
    a(f"v_add_u32 v{vT+1}, {ST_CS}, v{vT+1}")
    a(f"v_add_u32 v{vT+2}, {ST_CS}, v{vT+2}")
    a(f"ds_read_b32 v{vCL}, v{vT+1}")
    a(f"ds_read_b32 v{vCL+2}, v{vT+2}")
    a("s_waitcnt lgkmcnt(0)")
    a(f"v_mov_b32 v{vCL+1}, v{vCL}")
    a(f"v_mov_b32 v{vCL+3}, v{vCL+2}")
    ws = f"s[{SRD_WS}:{SRD_WS+3}]"
    for a_ in range(2):
        a(f"s_lshl_b32 s{sT0}, s{sWR}, 8")
        a(f"s_lshl_b32 s{sT1}, s{sWC}, 7")
        if a_ == 1:
            a(f"s_xor_b32 s{sT1}, s{sT1}, 128")
        a(f"s_add_u32 s{sT0}, s{sT0}, s{sT1}")
        a(f"v_lshlrev_b32 v{vT}, 4, v{vH}")
        a(f"v_add_u32 v{vT}, s{sT0}, v{vT}")
        a(f"v_add_u32 v{vT}, {ST_NM}, v{vT}")
        for g in range(4):
            a(f"ds_read_b128 {vr(vNM + 4 * g, 4)}, v{vT} offset:{32 * g}")
            a(f"ds_read_b128 {vr(vRS + 4 * g, 4)}, v{vT} offset:{512 + 32 * g}")
        a("s_waitcnt lgkmcnt(0)")
        for b_ in range(2):
            A = acc(a_, b_)
            for p in range(8):
                a(f"v_pk_fma_f32 {vr(A + 2 * p, 2)}, {vr(vNM + 2 * p, 2)}, {vr(vCL + 2 * b_, 2)}, {vr(A + 2 * p, 2)}")
            for p in range(8):
                a(f"v_pk_mul_f32 {vr(A + 2 * p, 2)}, {vr(A + 2 * p, 2)}, {vr(vRS + 2 * p, 2)}")
            for p in range(8):
                a(f"v_cvt_pk_bf16_f32 v{A + p}, v{A + 2 * p}, v{A + 2 * p + 1}")
            for t in range(2):
                a(f"buffer_store_dwordx4 {vr(A + 4 * t, 4)}, v{vOFF + b_}, {ws}, s{sTA if a_ == 0 else sTB} offen offset:{640 * t}")
    ST(a, "stores")
    if ST.on:
        a("s_waitcnt vmcnt(0)")
    ST(a, "end")
    ST.store(a, sW, SRD_WS)
    a("s_endpgm")

def aux(a):
    a.label("L_k1_aux")
    vX, vWr = 32, 72
    vA, vAW = 8, 9
    s1, s2, s3, sw = 10, 11, 12, 13
    SRD_R = 40
    srd(a, SRD_R, 38, D * 2)
    a(f"v_lshrrev_b32 v{vT}, 2, v{vLANE}")
    a(f"s_lshl_b32 s{sT0}, s{sW}, 4")
    a(f"s_add_u32 s{sT0}, s{sT0}, s{sROW0}")
    a(f"v_add_u32 v{vT}, s{sT0}, v{vT}")
    a(f"v_and_b32 v{vT+1}, 3, v{vLANE}")
    a(f"v_lshlrev_b32 v{vAW}, 4, v{vT+1}")
    a(f"v_mul_u32_u24 v{vA}, 1280, v{vT}")
    a(f"v_add_u32 v{vA}, v{vA}, v{vAW}")
    for r in (s1, s2, s3, sw):
        a(f"v_mov_b32 v{r}, 0")
    a(f"v_mov_b32 v{vONE}, 0x3f803f80")
    for half in range(2):
        for i in range(10):
            a(f"buffer_load_dwordx4 {vr(vX + 4 * i, 4)}, v{vA}, s[{SRD_X}:{SRD_X+3}], 0 offen offset:{(10 * half + i) * 64}")
            a(f"buffer_load_dwordx4 {vr(vWr + 4 * i, 4)}, v{vAW}, s[{SRD_R}:{SRD_R+3}], 0 offen offset:{(10 * half + i) * 64}")
        a("s_waitcnt vmcnt(0)")
        for r in range(40):
            a(f"v_dot2c_f32_bf16 v{s1}, v{vX + r}, v{vONE}")
            a(f"v_dot2c_f32_bf16 v{s2}, v{vX + r}, v{vX + r}")
            a(f"v_dot2c_f32_bf16 v{s3}, v{vX + r}, v{vWr + r}")
            a(f"v_dot2c_f32_bf16 v{sw}, v{vWr + r}, v{vONE}")
    a("s_nop 3")
    for perm in ("[1,0,3,2]", "[2,3,0,1]"):
        for r in (s1, s2, s3, sw):
            a(f"v_add_f32_dpp v{vT+2}, v{r}, v{r} quad_perm:{perm} row_mask:0xf bank_mask:0xf")
            a("s_nop 1")
            a(f"v_mov_b32 v{r}, v{vT+2}")
            a("s_nop 1")
    a(f"v_mul_f32 v{s1}, {hex(f2u(1.0 / D))}, v{s1}")
    a(f"v_mul_f32 v{s2}, {hex(f2u(1.0 / D))}, v{s2}")
    a(f"v_fma_f32 v{s2}, -v{s1}, v{s1}, v{s2}")
    a(f"v_max_f32 v{s2}, 0, v{s2}")
    a(f"v_add_f32 v{s2}, {hex(f2u(1e-5))}, v{s2}")
    a(f"v_rsq_f32 v{s2}, v{s2}")
    a(f"v_fma_f32 v{s3}, -v{s1}, v{sw}, v{s3}")
    a(f"v_mul_f32 v{s3}, v{s3}, v{s2}")
    ws = f"s[{SRD_WS}:{SRD_WS+3}]"
    a(f"v_ashrrev_i32 v{vT+2}, 31, v{s3}")
    a(f"v_or_b32 v{vT+2}, 0x80000000, v{vT+2}")
    a(f"v_xor_b32 v{vT+2}, v{vT+2}, v{s3}")
    a(f"v_and_b32 v{vT+2}, 0xfffff800, v{vT+2}")
    a(f"v_or_b32 v{vT+2}, v{vT+2}, v{vT}")
    a(f"v_mov_b32 v14, v{s1}")
    a(f"v_mov_b32 v15, v{s2}")
    a(f"v_lshlrev_b32 v{vA}, 3, v{vT}")
    a(f"v_lshlrev_b32 v{vAW}, 2, v{vT}")
    a(f"v_and_b32 v{vT+3}, 127, v{vT}")
    a(f"v_lshlrev_b32 v{vT+3}, 2, v{vT+3}")
    a(f"v_cmp_eq_u32 vcc, 0, v{vT+1}")
    a(f"s_mov_b32 s{sT0}, {ST_OFF}")
    a(f"s_mov_b32 s{sT1}, {R_OFF}")
    a("s_and_saveexec_b64 s[44:45], vcc")
    a(f"buffer_store_dwordx2 v[14:15], v{vA}, {ws}, s{sT0} offen")
    a(f"buffer_store_dword v{s3}, v{vAW}, {ws}, s{sT1} offen")
    a(f"ds_write_b32 v{vT+3}, v{vT+2}")
    a("s_mov_b64 exec, s[44:45]")
    a("s_waitcnt lgkmcnt(0)")
    a("s_barrier")
    a(f"s_cmp_lg_u32 s{sW}, 0")
    a("s_cbranch_scc1 L_k1_exit")
    hi, lo, oh, ol, adr = 16, 17, 18, 19, 20
    a(f"v_lshlrev_b32 v{adr}, 2, v{vLANE}")
    a(f"ds_read_b32 v{oh}, v{adr}")
    a(f"ds_read_b32 v{ol}, v{adr} offset:256")
    a("s_waitcnt lgkmcnt(0)")
    a(f"v_max_u32 v{hi}, v{oh}, v{ol}")
    a(f"v_min_u32 v{lo}, v{oh}, v{ol}")
    for x in (1, 2, 4, 8, 16, 32):
        a(f"v_xor_b32 v{adr}, {x}, v{vLANE}")
        a(f"v_lshlrev_b32 v{adr}, 2, v{adr}")
        a(f"ds_bpermute_b32 v{oh}, v{adr}, v{hi}")
        a(f"ds_bpermute_b32 v{ol}, v{adr}, v{lo}")
        a("s_waitcnt lgkmcnt(0)")
        a(f"v_max_u32 v{lo}, v{lo}, v{ol}")
        a(f"v_min_u32 v{ol}, v{hi}, v{oh}")
        a(f"v_max_u32 v{hi}, v{hi}, v{oh}")
        a(f"v_max_u32 v{lo}, v{lo}, v{ol}")
    a(f"v_mov_b32 v{oh}, v{hi}")
    a(f"v_mov_b32 v{ol}, v{lo}")
    a(f"s_lshl_b32 s{sT0}, s{sMT}, 3")
    a(f"s_add_u32 s{sT0}, s{sT0}, {CAND_OFF}")
    a(f"v_mov_b32 v{adr}, 0")
    a(f"v_cmp_eq_u32 vcc, 0, v{vLANE}")
    a("s_nop 1")
    a("s_and_saveexec_b64 s[44:45], vcc")
    a(f"buffer_store_dwordx2 v[{oh}:{ol}], v{adr}, {ws}, s{sT0} offen")
    ST(a, "end")
    ST.store(a, sW, SRD_WS)
    a("s_endpgm")

def emit(a):
    entry(a)
    consumer_setup(a)
    a(f"s_cmp_ge_u32 s{sNT}, 10")
    a("s_cbranch_scc1 L_k1_v")
    qk_path(a)
    v_path(a)
    loader(a)
    aux(a)
    a.label("L_k1_exit")
    a("s_endpgm")
```

```python
from common import *

NAME = "attn_moe_kernel"
LDS = 81920
VGPRS = 128

vTID, vLANE16, vT0, vT1 = 0, 1, 2, 3
vKA = (4, 5)
vKB = (6, 7)
vV = (8, 9)
vQ1, vQ2 = 10, 14
vC = 16
vS = (32, 48)
vO = 64
vP = 80
vKAf = (88, 92)
vKBf = (96, 98)
vVf = ((100, 104), (108, 112))
vTMP = 116

sW, sHEAD, sKV, sQ, sOB = 20, 21, 22, 23, 24
sVMASK = 26
sLO = 28
sM0 = 30
sT = 31
SRD_WS = 8

def EXP_():
    import os
    return os.environ.get("K2_EXP", "")

def lds_tile(t):
    slot, i = (t >> 3) & 3, t & 7
    off = slot * 20480 + i * 2560
    return (0, off) if slot < 2 else (1, off - 40960)

def dma_chunk(a, c):
    a(f"s_add_u32 m0, s{sM0}, {(c & 3) * 20480}")
    a(f"s_add_u32 s{sT}, s{sKV}, {c * 20480}")
    a(f"buffer_load_dwordx4 v{vLANE16}, s[{SRD_WS}:{SRD_WS+3}], s{sT} offen lds")
    a(f"buffer_load_dwordx4 v{vLANE16}, s[{SRD_WS}:{SRD_WS+3}], s{sT} offen offset:1024 lds")
    a(f"s_mov_b64 exec, s[{sLO}:{sLO+1}]")
    a(f"buffer_load_dwordx4 v{vLANE16}, s[{SRD_WS}:{SRD_WS+3}], s{sT} offen offset:2048 lds")
    a("s_mov_b64 exec, -1")

def read_k(a, t, buf):
    st, off = lds_tile(t)
    a(f"ds_read_b128 {vr(vKAf[buf], 4)}, v{vKA[st]} offset:{off}")
    if "mk" in EXP_():
        a(f"s_mov_b64 exec, s[{sLO}:{sLO+1}]")
    a(f"ds_read_b64 {vr(vKBf[buf], 2)}, v{vKB[st]} offset:{off}")
    if "mk" in EXP_():
        a("s_mov_b64 exec, -1")

def read_v(a, t, buf):
    st, off = lds_tile(t)
    a(f"s_mov_b64 exec, s[{sVMASK}:{sVMASK+1}]")
    a(f"ds_read_b128 {vr(vVf[buf][0], 4)}, v{vV[st]} offset:{off}")
    a(f"ds_read_b128 {vr(vVf[buf][1], 4)}, v{vV[st]} offset:{off + 640}")
    a("s_mov_b64 exec, -1")

def mfma_s1(a, dst, buf, c):
    if "nos1" in EXP_() and c != "0": return
    a(f"v_mfma_f32_32x32x16_bf16 {vr(dst, 16)}, {vr(vKAf[buf], 4)}, {vr(vQ1, 4)}, {c}")
def mfma_s2(a, dst, buf):
    if "nos2" in EXP_(): return
    a(f"v_mfma_f32_32x32x8bf16_1k {vr(dst, 16)}, {vr(vKBf[buf], 2)}, {vr(vQ2, 2)}, {vr(dst, 16)}")
def mfma_pv(a, buf, t):
    if "nopv" in EXP_(): return
    a(f"v_mfma_f32_32x32x16_bf16 {vr(vO, 16)}, {vr(vVf[buf][t], 4)}, {vr(vP + 4 * t, 4)}, {vr(vO, 16)}")

def dma_slot(a, t):
    p = t - 5
    if p < 0:
        return
    c, i = p // 8 + 1, p % 8
    if c + 2 > 7 or "nodma" in EXP_():
        return
    lab = f"L_dma_{t}"
    a(f"s_cmp_lg_u32 s{sW}, {i}")
    a(f"s_cbranch_scc1 {lab}")
    dma_chunk(a, c + 2)
    a.label(lab)

def read_v_part(a, t, part):
    st, off = lds_tile(t)
    a(f"ds_read_b128 {vr(vVf[t & 1][part], 4)}, v{vV[st]} offset:{off + 640 * part}")

def tile_body(a, t):
    sc, sn = vS[t & 1], vS[(t + 1) & 1]
    last = t == 63
    fair = "nofair" not in EXP_()
    cin = "0" if "mk" in EXP_() else vr(vC, 16)
    ex = lambda r: a(f"v_exp_f32 v{sc + r}, v{sc + r}") if "noexp" not in EXP_() else a(f"v_mul_f32 v{sc + r}, 0.5, v{sc + r}")
    cv = lambda i: a(f"v_cvt_pk_bf16_f32 v{vP + i}, v{sc + 2 * i}, v{sc + 2 * i + 1}")
    nolds = "nolds" in EXP_() and t > 4
    ex(0)
    if fair:
        a("s_setprio 1")
    ex(1)
    if t > 0:
        mfma_pv(a, (t - 1) & 1, 1)
    for r in range(2, 6):
        ex(r)
    if not last:
        mfma_s1(a, sn, (t + 1) & 1, cin)
    ex(6); ex(7)
    for i in range(4):
        cv(i)
    if not last:
        mfma_s2(a, sn, (t + 1) & 1)
    for r in range(8, 12):
        ex(r)
    mfma_pv(a, t & 1, 0)
    for r in range(12, 16):
        ex(r)
    for i in range(4, 8):
        cv(i)
    if fair:
        a("s_setprio 0")
    stag = "nostag" not in EXP_()
    if t % 8 == 5 and t < 56:
        c = t // 8 + 1
        if stag:
            a(f"s_cmp_ge_u32 s{sW}, 4")
            a(f"s_cbranch_scc1 L_barA_{t}")
        a(f"s_waitcnt vmcnt({3 if c + 1 <= 7 else 0})")
        if "nobar" not in EXP_():
            a("s_barrier")
        a.label(f"L_barA_{t}")
    a("s_waitcnt lgkmcnt(0)")
    if t + 3 <= 63 and not nolds:
        read_k(a, t + 3, (t + 1) & 1)
    if t + 1 <= 63 and not nolds:
        a(f"s_mov_b64 exec, s[{sVMASK}:{sVMASK+1}]")
        if t + 2 <= 63:
            read_v_part(a, t + 2, 0)
        read_v_part(a, t + 1, 1)
        a("s_mov_b64 exec, -1")
    dma_slot(a, t)
    if stag and (t + 1) % 8 == 5 and t + 1 < 56:
        c = (t + 1) // 8 + 1
        a(f"s_cmp_lt_u32 s{sW}, 4")
        a(f"s_cbranch_scc1 L_barB_{t}")
        a(f"s_waitcnt vmcnt({3 if c + 1 <= 7 else 0})")
        if "nobar" not in EXP_():
            a("s_barrier")
        a.label(f"L_barB_{t}")
    if last:
        a("s_nop 1")
        mfma_pv(a, t & 1, 1)

def row_max(a, s, dst, tmp):
    a(f"v_max3_f32 v{dst}, v{s}, v{s+1}, v{s+2}")
    for r in range(3, 15, 2):
        a(f"v_max3_f32 v{dst}, v{dst}, v{s+r}, v{s+r+1}")
    a(f"v_max_f32 v{dst}, v{dst}, v{s+15}")
    a(f"v_mov_b32 v{tmp}, v{dst}")
    a("s_nop 1")
    a(f"v_permlane32_swap_b32 v{dst}, v{tmp}")
    a("s_nop 1")
    a(f"v_max_f32 v{dst}, v{dst}, v{tmp}")

import os
PROF = os.environ.get("K2_PROF") == "1"
PROF_OFF = 16 << 20
def stamp(a, i):
    if PROF:
        a(f"s_memtime s[{36 + 4 * i}:{37 + 4 * i}]")
        a(f"s_memrealtime s[{38 + 4 * i}:{39 + 4 * i}]")
def stamp_store(a, n):
    if not PROF:
        return
    a("s_waitcnt lgkmcnt(0)")
    a(f"s_lshl_b32 s12, s2, 3")
    a(f"s_add_u32 s12, s12, s{sW}")
    a(f"s_lshl_b32 s12, s12, 7")
    a(f"s_add_u32 s12, s12, {PROF_OFF}")
    a("s_mov_b32 s10, 0x2000000")
    a("v_mov_b32 v2, 0")
    for i in range(n):
        a(f"v_mov_b32 v3, s{36 + 4 * i}")
        a(f"buffer_store_dword v3, v2, s[{SRD_WS}:{SRD_WS+3}], s12 offen offset:{4 * i}")
        a(f"v_mov_b32 v3, s{38 + 4 * i}")
        a(f"buffer_store_dword v3, v2, s[{SRD_WS}:{SRD_WS+3}], s12 offen offset:{64 + 4 * i}")

EXP = os.environ.get("K2_EXP", "")
def attention(a):
    stamp(a, 0)
    a("s_load_dwordx2 s[4:5], s[0:1], 80")
    a(f"v_lshrrev_b32 v{vT0}, 6, v0")
    a(f"v_and_b32 v{vT1}, 63, v0")
    a(f"v_readfirstlane_b32 s{sW}, v{vT0}")
    a("s_and_b32 s12, s2, 7")
    a("s_lshl_b32 s12, s12, 2")
    a("s_bfe_u32 s13, s2, 0x20003")
    a(f"s_or_b32 s{sHEAD}, s12, s13")
    a("s_lshr_b32 s14, s2, 5")
    a("s_lshl_b32 s14, s14, 3")
    a(f"s_add_u32 s14, s14, s{sW}")
    a(f"s_mul_i32 s{sKV}, s{sHEAD}, {64 * 2560}")
    a(f"s_mul_i32 s15, s{sW}, 2560")
    a(f"s_mov_b32 s{sM0}, s15")
    a(f"s_add_u32 s{sKV}, s{sKV}, s15")
    a(f"s_add_u32 s{sKV}, s{sKV}, {KV_OFF}")
    a(f"s_lshl_b32 s15, s{sHEAD}, 6")
    a("s_add_u32 s15, s15, s14")
    a(f"s_mul_i32 s{sQ}, s15, 1280")
    if QB_OFF:
        a(f"s_add_u32 s{sQ}, s{sQ}, {QB_OFF}")
    a("s_lshl_b32 s15, s14, 5")
    a(f"s_add_u32 s15, s15, s{sHEAD}")
    a(f"s_mul_i32 s{sOB}, s15, 1280")
    a(f"s_add_u32 s{sOB}, s{sOB}, {OB_OFF}")
    a(f"s_mov_b32 s{sVMASK}, 0x000fffff")
    a(f"s_mov_b32 s{sVMASK+1}, 0x000fffff")
    a(f"s_mov_b32 s{sLO}, -1")
    a(f"s_mov_b32 s{sLO+1}, 0")
    a(f"v_lshlrev_b32 v{vLANE16}, 4, v{vT1}")
    a(f"v_and_b32 v{vT0}, 31, v{vT1}")
    a(f"v_lshlrev_b32 v{vTMP}, 3, v{vT0}")
    a(f"v_mov_b32 v{vQ2}, 0")
    a(f"v_mov_b32 v{vQ2+1}, 0")
    a("s_waitcnt lgkmcnt(0)")
    srd(a, SRD_WS, 4, WS_SRD)
    a(f"buffer_load_dwordx4 {vr(vQ1, 4)}, v{vLANE16}, s[{SRD_WS}:{SRD_WS+3}], s{sQ} offen")
    a(f"s_mov_b64 exec, s[{sLO}:{sLO+1}]")
    a(f"buffer_load_dwordx2 {vr(vQ2, 2)}, v{vTMP}, s[{SRD_WS}:{SRD_WS+3}], s{sQ} offen offset:1024")
    a("s_mov_b64 exec, -1")
    dma_chunk(a, 0)
    dma_chunk(a, 1)
    a(f"v_mov_b32 v{vKA[0]}, v{vLANE16}")
    a(f"v_add_u32 v{vKA[1]}, 40960, v{vLANE16}")
    a(f"v_add_u32 v{vKB[0]}, 1024, v{vTMP}")
    a(f"v_add_u32 v{vKB[1]}, {1024 + 40960}, v{vTMP}")
    a(f"v_lshrrev_b32 v{vTMP+1}, 5, v{vT1}")
    a(f"v_mul_u32_u24 v{vTMP+1}, 320, v{vTMP+1}")
    a(f"v_lshl_add_u32 v{vTMP+1}, v{vT0}, 4, v{vTMP+1}")
    a(f"v_add_u32 v{vV[0]}, 1280, v{vTMP+1}")
    a(f"v_add_u32 v{vV[1]}, {1280 + 40960}, v{vTMP+1}")
    a(f"v_and_b32 v{vTMP+1}, 27, v{vT0}")
    a(f"v_cmp_eq_u32 vcc, 24, v{vTMP+1}")
    a(f"v_mov_b32 v{vTMP+2}, 0x3f803f80")
    a("s_nop 1")
    a(f"v_cndmask_b32 v{vTMP+1}, 0, v{vTMP+2}, vcc")
    for b in range(2):
        for t in range(2):
            for r in range(4):
                a(f"v_mov_b32 v{vVf[b][t] + r}, v{vTMP+1}")
    for r in range(16):
        a(f"v_mov_b32 v{vO + r}, 0")
    if "mk" in EXP_():
        a(f"v_cmp_le_u32 vcc, 32, v{vT1}")
        a(f"v_mov_b32 v{vTMP+2}, 0x3f80")
        a("s_nop 1")
        for b in range(2):
            a(f"v_cndmask_b32 v{vKBf[b]}, 0, v{vTMP+2}, vcc")
            a(f"v_mov_b32 v{vKBf[b]+1}, 0")
    if "prio" in EXP_():
        a(f"s_cmp_lt_u32 s{sW}, 4")
        a("s_cbranch_scc1 L_noprio")
        a("s_setprio 1")
        a.label("L_noprio")
    stamp(a, 1)
    a("s_waitcnt vmcnt(3)")
    a("s_barrier")
    stamp(a, 2)
    dma_chunk(a, 2)
    read_k(a, 0, 0)
    read_k(a, 1, 1)
    read_v(a, 0, 0)
    a(f"s_mov_b64 exec, s[{sVMASK}:{sVMASK+1}]")
    read_v_part(a, 1, 0)
    a("s_mov_b64 exec, -1")
    a("s_waitcnt lgkmcnt(5)")
    mfma_s1(a, vS[0], 0, "0")
    mfma_s2(a, vS[0], 0)
    a("s_nop 15")
    a("s_nop 3")
    row_max(a, vS[0], vTMP, vTMP + 1)
    if "mk" in EXP_():
        a(f"v_sub_f32 v{vTMP}, 0, v{vTMP}")
        a(f"v_cvt_pk_bf16_f32 v{vTMP}, v{vTMP}, 0")
        a(f"v_cmp_le_u32 vcc, 32, v{vT1}")
        a("s_nop 1")
        a(f"v_cndmask_b32 v{vQ2}, v{vQ2}, v{vTMP}, vcc")
        a("s_nop 1")
        mfma_s1(a, vS[0], 0, "0")
    else:
        for r in range(16):
            a(f"v_sub_f32 v{vC + r}, 0, v{vTMP}")
        a("s_nop 1")
        mfma_s1(a, vS[0], 0, vr(vC, 16))
    mfma_s2(a, vS[0], 0)
    read_k(a, 2, 0)
    a("s_waitcnt lgkmcnt(2)")
    a("s_nop 15")
    a("s_nop 3")
    for t in range(64):
        if t % 8 == 0:
            stamp(a, 3 + t // 8)
        tile_body(a, t)
    stamp(a, 11)
    a("s_nop 15")
    a("s_nop 3")
    a(f"v_mov_b32 v{vTMP}, v{vO + 12}")
    for r in range(12):
        a(f"v_fma_f32 v{vTMP}, v{vO + r}, 0, v{vTMP}")
    a(f"v_mov_b32 v{vTMP+1}, {hex(f2u(2.0 ** 100))}")
    a(f"v_cmp_nlt_f32 vcc, v{vTMP}, v{vTMP+1}")
    a("s_nop 4")
    a("s_cbranch_vccz L_attn_store")
    safe_path(a)
    a.label("L_attn_store")
    a(f"v_rcp_f32 v{vTMP}, v{vO + 12}")
    a("s_nop 1")
    for r in range(12):
        a(f"v_mul_f32 v{vO + r}, v{vO + r}, v{vTMP}")
    for i in range(6):
        a(f"v_cvt_pk_bf16_f32 v{vP + i}, v{vO + 2 * i}, v{vO + 2 * i + 1}")
    a(f"v_and_b32 v{vTMP+1}, 63, v0")
    a(f"v_lshlrev_b32 v{vTMP+1}, 3, v{vTMP+1}")
    a(f"buffer_store_dwordx4 {vr(vP, 4)}, v{vLANE16}, s[{SRD_WS}:{SRD_WS+3}], s{sOB} offen")
    a(f"s_mov_b64 exec, s[{sLO}:{sLO+1}]")
    a(f"buffer_store_dwordx2 {vr(vP + 4, 2)}, v{vTMP+1}, s[{SRD_WS}:{SRD_WS+3}], s{sOB} offen offset:1024")
    if PROF:
        a("s_mov_b64 exec, -1")
        a("s_waitcnt vmcnt(0)")
    stamp(a, 12)
    stamp_store(a, 13)
    a("s_endpgm")

def safe_path(a):
    vM, vMN, vAL = vTMP, vTMP + 1, vTMP + 2
    vA1, vA2, vA3 = vTMP + 4, vTMP + 5, vTMP + 6
    ws = f"s[{SRD_WS}:{SRD_WS+3}]"
    s = vS[0]
    a(f"v_and_b32 v{vA2}, 31, v0")
    a(f"v_lshlrev_b32 v{vA2}, 3, v{vA2}")
    a(f"v_mov_b32 v{vA3}, v{vV[0]}")
    a(f"v_mov_b32 v{vM}, 0xff7fffff")
    for r in range(16):
        a(f"v_mov_b32 v{vO + r}, 0")
    a(f"s_mul_i32 s{sT}, s{sW}, 2560")
    a(f"s_sub_u32 s{sT}, s{sKV}, s{sT}")
    a("s_mov_b32 s15, 64")
    a.label("L_safe_loop")
    a(f"buffer_load_dwordx4 {vr(vKAf[0], 4)}, v{vLANE16}, {ws}, s{sT} offen")
    a(f"buffer_load_dwordx2 {vr(vKBf[0], 2)}, v{vA2}, {ws}, s{sT} offen offset:1024")
    a(f"s_mov_b64 exec, s[{sVMASK}:{sVMASK+1}]")
    a(f"buffer_load_dwordx4 {vr(vVf[0][0], 4)}, v{vA3}, {ws}, s{sT} offen")
    a(f"buffer_load_dwordx4 {vr(vVf[0][1], 4)}, v{vA3}, {ws}, s{sT} offen offset:640")
    a("s_mov_b64 exec, -1")
    a("s_waitcnt vmcnt(0)")
    mfma_s1(a, s, 0, "0")
    mfma_s2(a, s, 0)
    a("s_nop 15")
    a("s_nop 3")
    row_max(a, s, vMN, vAL)
    a(f"v_max_f32 v{vMN}, v{vMN}, v{vM}")
    a(f"v_sub_f32 v{vAL}, v{vM}, v{vMN}")
    a(f"v_exp_f32 v{vAL}, v{vAL}")
    a(f"v_mov_b32 v{vM}, v{vMN}")
    for r in range(16):
        a(f"v_sub_f32 v{s + r}, v{s + r}, v{vMN}")
    for r in range(16):
        a(f"v_exp_f32 v{s + r}, v{s + r}")
    for r in range(16):
        a(f"v_mul_f32 v{vO + r}, v{vO + r}, v{vAL}")
    for i in range(8):
        a(f"v_cvt_pk_bf16_f32 v{vP + i}, v{s + 2 * i}, v{s + 2 * i + 1}")
    a("s_nop 1")
    mfma_pv(a, 0, 0)
    mfma_pv(a, 0, 1)
    a(f"s_add_u32 s{sT}, s{sT}, 2560")
    a("s_sub_u32 s15, s15, 1")
    a("s_nop 15")
    a("s_nop 3")
    a("s_cmp_lg_u32 s15, 0")
    a("s_cbranch_scc1 L_safe_loop")

def gen(a, moe=None):
    kernel_header(a, NAME)
    a("s_cmp_ge_u32 s2, 256")
    a("s_cbranch_scc1 L_moe_entry")
    attention(a)
    a.label("L_moe_entry")
    if moe is not None:
        moe(a)
    a("s_endpgm")

def emit(a):
    try:
        from k2moe import moe
    except ImportError:
        moe = None
    gen(a, moe)
```

```python
from common import *

NWG = 96
L_WG, L_WU, L_WD, L_X, L_RED = 0, 20480, 40960, 61440, 64000

def top2_scalar(a, base, b1, b2, t):
    a(f"s_max_u32 s{b1}, s{base}, s{base+1}")
    a(f"s_min_u32 s{b2}, s{base}, s{base+1}")
    for i in range(2, 32):
        a(f"s_min_u32 s{t}, s{b1}, s{base+i}")
        a(f"s_max_u32 s{b2}, s{b2}, s{t}")
        a(f"s_max_u32 s{b1}, s{b1}, s{base+i}")

def moe(a):
    SRD_WS, SRD_X, SRD_G, SRD_U, SRD_D = 8, 12, 16, 20, 24
    sW, sM, sT0, sT1, sT2 = 28, 29, 30, 31, 32
    sB1, sB2 = 33, 34
    sCAND = 64
    vLANE, vT = 1, 2
    a(f"s_cmp_ge_u32 s2, {256 + NWG}")
    a("s_cbranch_scc1 L_moe_exit")
    a("s_load_dwordx2 s[4:5], s[0:1], 80")
    a("s_load_dwordx2 s[6:7], s[0:1], 0")
    a("s_load_dwordx4 s[36:39], s[0:1], 40")
    a("s_load_dwordx2 s[40:41], s[0:1], 56")
    a(f"v_lshrrev_b32 v{vT}, 6, v0")
    a(f"v_and_b32 v{vLANE}, 63, v0")
    a(f"v_readfirstlane_b32 s{sW}, v{vT}")
    a(f"s_sub_u32 s{sM}, s2, 256")
    a("s_waitcnt lgkmcnt(0)")
    srd(a, SRD_WS, 4, WS_SRD)
    srd(a, SRD_X, 6, X_BYTES)
    srd(a, SRD_G, 36, WG_BYTES)
    srd(a, SRD_U, 38, WG_BYTES)
    srd(a, SRD_D, 40, WD_BYTES)
    a(f"s_add_u32 s42, s4, {CAND_OFF}")
    a("s_addc_u32 s43, s5, 0")
    a(f"s_load_dwordx16 s[{sCAND}:{sCAND+15}], s[42:43], 0")
    a(f"s_load_dwordx16 s[{sCAND+16}:{sCAND+31}], s[42:43], 64")
    vG, vD = 3, 4
    a(f"v_lshrrev_b32 v{vT}, 1, v{vLANE}")
    a(f"v_mul_u32_u24 v{vG}, 3072, v{vT}")
    a(f"v_and_b32 v{vT}, 1, v{vLANE}")
    a(f"v_lshl_add_u32 v{vG}, v{vT}, 4, v{vG}")
    a(f"v_lshlrev_b32 v{vD}, 4, v{vLANE}")
    for i in range(3):
        if i == 2:
            a(f"s_cmp_ge_u32 s{sW}, 4")
            a("s_cbranch_scc1 L_moe_dma_done")
        a(f"s_add_u32 s{sT0}, s{sW}, {8 * i}")
        a(f"s_mul_i32 s{sT1}, s{sT0}, {32 * 3072}")
        a(f"s_lshl_b32 s{sT2}, s{sM}, 5")
        a(f"s_add_u32 s{sT1}, s{sT1}, s{sT2}")
        a(f"s_lshl_b32 s{sT0}, s{sT0}, 10")
        a(f"s_add_u32 m0, s{sT0}, {L_WG}")
        a(f"s_mul_i32 s{sT2}, s{sM}, {16 * 1280}")
        a(f"buffer_load_dwordx4 v{vG}, s[{SRD_G}:{SRD_G+3}], s{sT1} offen lds")
        a(f"s_add_u32 m0, s{sT0}, {L_WU}")
        a(f"s_add_u32 s{sT2}, s{sT2}, s{sT0}")
        a(f"buffer_load_dwordx4 v{vG}, s[{SRD_U}:{SRD_U+3}], s{sT1} offen lds")
        a(f"s_add_u32 m0, s{sT0}, {L_WD}")
        a("s_nop 0")
        a(f"buffer_load_dwordx4 v{vD}, s[{SRD_D}:{SRD_D+3}], s{sT2} offen lds")
    a.label("L_moe_dma_done")
    a(f"s_cmp_ge_u32 s{sW}, 5")
    a("s_cbranch_scc1 L_moe_wait_exit")
    a("s_waitcnt lgkmcnt(0)")
    top2_scalar(a, sCAND, sB1, sB2, sT0)
    a(f"s_and_b32 s{sB1}, s{sB1}, 0x7ff")
    a(f"s_and_b32 s{sB2}, s{sB2}, 0x7ff")
    a(f"s_lshl_b32 s{sT0}, s{sB1}, 3")
    a(f"s_add_u32 s42, s4, s{sT0}")
    a("s_addc_u32 s43, s5, 0")
    a(f"s_add_u32 s42, s42, {ST_OFF}")
    a("s_addc_u32 s43, s43, 0")
    a("s_load_dwordx2 s[44:45], s[42:43], 0")
    a(f"s_lshl_b32 s{sT0}, s{sB2}, 3")
    a(f"s_add_u32 s42, s4, s{sT0}")
    a("s_addc_u32 s43, s5, 0")
    a(f"s_add_u32 s42, s42, {ST_OFF}")
    a("s_addc_u32 s43, s43, 0")
    a("s_load_dwordx2 s[46:47], s[42:43], 0")
    vA, vX, vM, vR = 5, 6, 8, 9
    a(f"v_lshrrev_b32 v{vT}, 5, v{vLANE}")
    a(f"v_cmp_eq_u32 vcc, 0, v{vT}")
    a(f"v_mov_b32 v{vA}, s{sB2}")
    a(f"v_mov_b32 v{vT+1}, s{sB1}")
    a(f"v_cndmask_b32 v{vA}, v{vA}, v{vT+1}, vcc")
    a(f"v_mul_u32_u24 v{vA}, 1280, v{vA}")
    a(f"v_and_b32 v{vT+1}, 31, v{vLANE}")
    a(f"v_lshlrev_b32 v{vT+1}, 2, v{vT+1}")
    a(f"s_lshl_b32 s{sT0}, s{sW}, 8")
    a(f"v_add3_u32 v{vA}, v{vA}, v{vT+1}, s{sT0}")
    a(f"buffer_load_dword v{vX}, v{vA}, s[{SRD_X}:{SRD_X+3}], 0 offen")
    a(f"buffer_load_dword v{vX+1}, v{vA}, s[{SRD_X}:{SRD_X+3}], 0 offen offset:128")
    a(f"v_mul_u32_u24 v{vA}, 1280, v{vT}")
    a(f"v_add3_u32 v{vA}, v{vA}, v{vT+1}, s{sT0}")
    a(f"v_add_u32 v{vA}, {L_X}, v{vA}")
    a("s_waitcnt lgkmcnt(0)")
    a(f"v_mov_b32 v{vM}, s46")
    a(f"v_mov_b32 v{vR}, s44")
    a(f"v_cndmask_b32 v{vM}, v{vM}, v{vR}, vcc")
    a(f"v_mov_b32 v{vR}, s47")
    a(f"v_mov_b32 v{vT+1}, s45")
    a(f"v_cndmask_b32 v{vR}, v{vR}, v{vT+1}, vcc")
    a("s_waitcnt vmcnt(0)")
    for i in range(2):
        a(f"v_lshlrev_b32 v10, 16, v{vX+i}")
        a(f"v_and_b32 v11, 0xffff0000, v{vX+i}")
        a(f"v_sub_f32 v10, v10, v{vM}")
        a(f"v_sub_f32 v11, v11, v{vM}")
        a(f"v_mul_f32 v10, v10, v{vR}")
        a(f"v_mul_f32 v11, v11, v{vR}")
        a(f"v_cvt_pk_bf16_f32 v10, v10, v11")
        a(f"ds_write_b32 v{vA}, v10 offset:{128 * i}")
    a("s_waitcnt vmcnt(0) lgkmcnt(0)")
    a("s_barrier")
    a(f"s_cmp_ge_u32 s{sW}, 4")
    a("s_cbranch_scc1 L_moe_exit")
    vWA, vXA, vF, vACC = 5, 6, 12, 24
    a(f"v_lshrrev_b32 v{vT}, 4, v{vLANE}")
    a(f"v_bfe_u32 v{vT+1}, v{vLANE}, 2, 2")
    a(f"v_lshl_add_u32 v{vWA}, v{vT}, 3, v{vT+1}")
    a(f"v_lshlrev_b32 v{vWA}, 5, v{vWA}")
    a(f"v_and_b32 v{vT+1}, 3, v{vLANE}")
    a(f"v_lshl_add_u32 v{vWA}, v{vT+1}, 3, v{vWA}")
    a(f"s_and_b32 s{sT0}, s{sW}, 1")
    a(f"s_mul_i32 s{sT0}, s{sT0}, {L_WU}")
    a(f"s_lshr_b32 s{sT1}, s{sW}, 1")
    a(f"s_mul_i32 s{sT2}, s{sT1}, {320 * 32}")
    a(f"s_add_u32 s{sT0}, s{sT0}, s{sT2}")
    a(f"v_add_u32 v{vWA}, s{sT0}, v{vWA}")
    a(f"v_and_b32 v{vXA}, 1, v{vLANE}")
    a(f"v_mul_u32_u24 v{vXA}, 1280, v{vXA}")
    a(f"v_lshl_add_u32 v{vXA}, v{vT}, 4, v{vXA}")
    a(f"s_mul_i32 s{sT2}, s{sT1}, 640")
    a(f"s_add_u32 s{sT2}, s{sT2}, {L_X}")
    a(f"v_add_u32 v{vXA}, s{sT2}, v{vXA}")
    for r in range(4):
        a(f"v_mov_b32 v{vACC + r}, 0")
    for s in range(10):
        f = vF + 8 * (s & 1) * 0
        a(f"ds_read_b64_tr_b16 {vr(f, 2)}, v{vWA} offset:{s * 1024}")
        a(f"ds_read_b64_tr_b16 {vr(f + 2, 2)}, v{vWA} offset:{s * 1024 + 128}")
        a(f"ds_read_b128 {vr(f + 4, 4)}, v{vXA} offset:{s * 64}")
        a("s_waitcnt lgkmcnt(0)")
        a(f"v_mfma_f32_16x16x32_bf16 {vr(vACC, 4)}, {vr(f, 4)}, {vr(f + 4, 4)}, {vr(vACC, 4)}")
    a("s_nop 7")
    a("s_nop 1")
    a(f"v_lshlrev_b32 v{vT}, 4, v{vLANE}")
    a(f"s_lshl_b32 s{sT0}, s{sW}, 10")
    a(f"v_add_u32 v{vT+1}, s{sT0}, v{vT}")
    a(f"v_add_u32 v{vT+1}, {L_RED}, v{vT+1}")
    a(f"ds_write_b128 v{vT+1}, {vr(vACC, 4)}")
    a("s_waitcnt lgkmcnt(0)")
    a("s_barrier")
    a(f"v_add_u32 v{vT}, {L_RED}, v{vT}")
    for w in range(4):
        a(f"ds_read_b128 {vr(28 + 4 * w, 4)}, v{vT} offset:{1024 * w}")
    a("s_waitcnt lgkmcnt(0)")
    for r in range(4):
        a(f"v_add_f32 v{28 + r}, v{28 + r}, v{36 + r}")
        a(f"v_add_f32 v{32 + r}, v{32 + r}, v{40 + r}")
    for r in range(4):
        a(f"v_mul_f32 v{36 + r}, {hex(f2u(-LOG2E))}, v{28 + r}")
    for r in range(4):
        a(f"v_exp_f32 v{36 + r}, v{36 + r}")
    for r in range(4):
        a(f"v_add_f32 v{36 + r}, 1.0, v{36 + r}")
    for r in range(4):
        a(f"v_rcp_f32 v{36 + r}, v{36 + r}")
    for r in range(4):
        a(f"v_mul_f32 v{28 + r}, v{28 + r}, v{32 + r}")
    for r in range(4):
        a(f"v_mul_f32 v{28 + r}, v{28 + r}, v{36 + r}")
    vH = 44
    a(f"v_cvt_pk_bf16_f32 v{vH}, v28, v29")
    a(f"v_cvt_pk_bf16_f32 v{vH+1}, v30, v31")
    vDA, vYO = 5, 6
    a(f"v_lshrrev_b32 v{vT}, 4, v{vLANE}")
    a(f"v_bfe_u32 v{vT+1}, v{vLANE}, 2, 2")
    a(f"v_lshl_add_u32 v{vDA}, v{vT}, 2, v{vT+1}")
    a(f"v_mul_u32_u24 v{vDA}, 1280, v{vDA}")
    a(f"v_and_b32 v{vT+1}, 3, v{vLANE}")
    a(f"v_lshl_add_u32 v{vDA}, v{vT+1}, 3, v{vDA}")
    a(f"s_mul_i32 s{sT0}, s{sW}, 320")
    a(f"s_add_u32 s{sT1}, s{sT0}, {L_WD}")
    a(f"v_add_u32 v{vDA}, s{sT1}, v{vDA}")
    a(f"v_and_b32 v{vT+1}, 15, v{vLANE}")
    a(f"v_mul_u32_u24 v{vYO}, 2560, v{vT+1}")
    a(f"v_lshl_add_u32 v{vYO}, v{vT}, 4, v{vYO}")
    a(f"v_cmp_gt_u32 vcc, 2, v{vT+1}")
    a(f"s_mul_i32 s{sT0}, s{sM}, 5120")
    a(f"s_mul_i32 s{sT1}, s{sW}, 640")
    a(f"s_add_u32 s{sT0}, s{sT0}, s{sT1}")
    a(f"s_add_u32 s{sT0}, s{sT0}, {YP_OFF}")
    a("s_mov_b64 s[48:49], vcc")
    for nt in range(10):
        a(f"ds_read_b64_tr_b16 {vr(48 + 2 * nt, 2)}, v{vDA} offset:{32 * nt}")
    a("s_waitcnt lgkmcnt(0)")
    for nt in range(10):
        a(f"v_mfma_f32_16x16x16bf16_1k {vr(68 + 4 * nt, 4)}, {vr(48 + 2 * nt, 2)}, {vr(vH, 2)}, 0")
    a("s_nop 7")
    a("s_nop 1")
    a("s_mov_b64 exec, s[48:49]")
    for nt in range(10):
        a(f"buffer_store_dwordx4 {vr(68 + 4 * nt, 4)}, v{vYO}, s[{SRD_WS}:{SRD_WS+3}], s{sT0} offen offset:{64 * nt}")
    a("s_endpgm")
    a.label("L_moe_wait_exit")
    a("s_waitcnt vmcnt(0)")
    a("s_barrier")
    a.label("L_moe_exit")
```

```python
from common import *
from k2moe import top2_scalar, NWG

NAME = "proj_kernel"
LDS = 102400 + 4096 + 512
VGPRS = 200
L_RED, L_Y = 102400, 102400 + 4096

SRD_WS, SRD_X, SRD_WO, SRD_OUT = 8, 12, 16, 20
sW, sMT, sNT, sT0, sT1, sT2, sT3 = 24, 25, 26, 27, 28, 29, 30
sB1, sB2 = 31, 32
sOB = 33
sCAND = 64
vLANE, vTOK, vG = 1, 2, 3
vT = 4
vWD = 8
vOM, vOT = 13, 14
vWA = 15
vWT = 16
vXO = 17
vST = 18
vX = 20
vACC = 32
vWF = 52
vO = 72
vY = 152

ST = Stamps("k3")

def emit(a):
    kernel_header(a, NAME)
    ST(a, "entry")
    a("s_cmp_ge_u32 s2, 256")
    a("s_cbranch_scc1 L_k3_exit")
    a("s_load_dwordx2 s[4:5], s[0:1], 80")
    a("s_load_dwordx2 s[6:7], s[0:1], 0")
    a("s_load_dwordx2 s[34:35], s[0:1], 16")
    a("s_load_dwordx2 s[36:37], s[0:1], 64")
    a(f"v_lshrrev_b32 v{vT}, 6, v0")
    a(f"v_and_b32 v{vLANE}, 63, v0")
    a(f"v_readfirstlane_b32 s{sW}, v{vT}")
    a(f"s_and_b32 s{sT0}, s2, 7")
    a(f"s_lshl_b32 s{sT0}, s{sT0}, 2")
    a(f"s_bfe_u32 s{sT1}, s2, 0x20003")
    a(f"s_or_b32 s{sMT}, s{sT0}, s{sT1}")
    a(f"s_lshr_b32 s{sNT}, s2, 5")
    a(f"v_and_b32 v{vTOK}, 15, v{vLANE}")
    a(f"v_lshrrev_b32 v{vG}, 4, v{vLANE}")
    for r5 in range(5):
        a(f"v_lshlrev_b32 v{vT}, 4, v{vLANE}")
        a(f"v_add_u32 v{vT}, {r5 * 1024}, v{vT}")
        a(f"v_mul_u32_u24 v{vT+1}, 52429, v{vT}")
        a(f"v_lshrrev_b32 v{vT+1}, 23, v{vT+1}")
        a(f"v_mul_u32_u24 v{vT+2}, 160, v{vT+1}")
        a(f"v_sub_u32 v{vT+2}, v{vT}, v{vT+2}")
        a(f"v_mul_u32_u24 v{vT+1}, 1280, v{vT+1}")
        a(f"v_add_u32 v{vWD + r5}, v{vT+1}, v{vT+2}")
    a(f"s_and_b32 s{sT0}, s{sW}, 1")
    a(f"s_lshl_b32 s{sT0}, s{sT0}, 4")
    a(f"v_add_u32 v{vT}, s{sT0}, v{vTOK}")
    a(f"v_lshrrev_b32 v{vT+1}, 1, v{vG}")
    a(f"v_mul_u32_u24 v{vT+1}, 1280, v{vT+1}")
    a(f"v_and_b32 v{vT+2}, 1, v{vG}")
    a(f"v_lshl_add_u32 v{vT+1}, v{vT+2}, 9, v{vT+1}")
    a(f"v_lshl_add_u32 v{vOM}, v{vT}, 4, v{vT+1}")
    a(f"v_mul_u32_u24 v{vT+1}, 1280, v{vG}")
    a(f"v_lshl_add_u32 v{vOT}, v{vT}, 3, v{vT+1}")
    a(f"v_add_u32 v{vOT}, 1024, v{vOT}")
    a(f"s_lshl_b32 s{sT0}, s{sMT}, 1")
    a(f"s_lshr_b32 s{sT1}, s{sW}, 1")
    a(f"s_add_u32 s{sT0}, s{sT0}, s{sT1}")
    a(f"s_mul_i32 s{sOB}, s{sT0}, 40960")
    a(f"s_add_u32 s{sOB}, s{sOB}, {OB_OFF}")
    a("s_waitcnt lgkmcnt(0)")
    srd(a, SRD_WS, 4, WS_SRD)
    srd(a, SRD_X, 6, X_BYTES)
    srd(a, SRD_WO, 34, WO_BYTES)
    srd(a, SRD_OUT, 36, X_BYTES)
    a(f"s_add_u32 s38, s4, {CAND_OFF}")
    a("s_addc_u32 s39, s5, 0")
    a(f"s_load_dwordx16 s[{sCAND}:{sCAND+15}], s[38:39], 0")
    a(f"s_load_dwordx16 s[{sCAND+16}:{sCAND+31}], s[38:39], 64")
    ws = f"s[{SRD_WS}:{SRD_WS+3}]"
    def o_loads(G8):
        for s in range(4):
            a(f"s_add_u32 s{sT0}, s{sOB}, {(8 * G8 + 2 * s) * 1280}")
            a(f"buffer_load_dwordx4 {vr(vO + 20 * G8 + 4 * s, 4)}, v{vOM}, {ws}, s{sT0} offen")
        a(f"s_add_u32 s{sT0}, s{sOB}, {8 * G8 * 1280}")
        a(f"buffer_load_dwordx2 {vr(vO + 20 * G8 + 16, 2)}, v{vOT}, {ws}, s{sT0} offen")
        a(f"s_add_u32 s{sT0}, s{sOB}, {(8 * G8 + 4) * 1280}")
        a(f"buffer_load_dwordx2 {vr(vO + 20 * G8 + 18, 2)}, v{vOT}, {ws}, s{sT0} offen")
    a(f"s_mul_i32 s44, s{sW}, {32 * 1280}")
    a(f"s_mul_i32 s{sT1}, s{sNT}, 160")
    a(f"s_add_u32 s44, s44, s{sT1}")
    a(f"s_mul_i32 s45, s{sW}, 5120")
    def wo_round(i):
        for r5 in range(5):
            a(f"s_add_u32 m0, s45, {i * 4 * 5120 + r5 * 1024}")
            a(f"s_add_u32 s{sT0}, s44, {i * 4 * 32 * 1280}")
            a(f"buffer_load_dwordx4 v{vWD + r5}, s[{SRD_WO}:{SRD_WO+3}], s{sT0} offen lds")
    o_loads(0); wo_round(0); wo_round(1)
    o_loads(1); wo_round(2)
    o_loads(2); wo_round(3)
    o_loads(3); wo_round(4)
    a(f"s_lshl_b32 s{sT0}, s{sMT}, 6")
    a(f"s_lshl_b32 s{sT1}, s{sW}, 4")
    a(f"s_add_u32 s{sT0}, s{sT0}, s{sT1}")
    a(f"v_add_u32 v{vT}, s{sT0}, v{vTOK}")
    a(f"v_mul_u32_u24 v{vXO}, 1280, v{vT}")
    a(f"v_lshl_add_u32 v{vXO}, v{vG}, 3, v{vXO}")
    a(f"s_mul_i32 s{sT1}, s{sNT}, 160")
    a(f"v_add_u32 v{vXO}, s{sT1}, v{vXO}")
    a(f"v_lshlrev_b32 v{vT+1}, 3, v{vT}")
    a(f"s_mov_b32 s{sT0}, {ST_OFF}")
    a(f"buffer_load_dwordx2 {vr(vST, 2)}, v{vT+1}, {ws}, s{sT0} offen")
    for j in range(5):
        a(f"buffer_load_dwordx2 {vr(vX + 2 * j, 2)}, v{vXO}, s[{SRD_X}:{SRD_X+3}], 0 offen offset:{32 * j}")
    a(f"v_mov_b32 v30, v{vT}")
    a(f"v_bfe_u32 v{vT}, v{vLANE}, 2, 2")
    a(f"v_and_b32 v{vT+1}, 3, v{vLANE}")
    a(f"v_lshrrev_b32 v{vT+2}, 1, v{vG}")
    a(f"v_mul_u32_u24 v{vT+2}, 20, v{vT+2}")
    a(f"v_and_b32 v{vT+3}, 1, v{vG}")
    a(f"v_lshl_add_u32 v{vT+2}, v{vT+3}, 2, v{vT+2}")
    a(f"v_add_u32 v{vT+2}, v{vT+2}, v{vT}")
    a(f"v_mul_u32_u24 v{vWA}, 160, v{vT+2}")
    a(f"v_lshl_add_u32 v{vWA}, v{vT+1}, 3, v{vWA}")
    a(f"v_mul_u32_u24 v{vT+2}, 20, v{vG}")
    a(f"v_add3_u32 v{vT+2}, v{vT+2}, v{vT}, 16")
    a(f"v_mul_u32_u24 v{vWT}, 160, v{vT+2}")
    a(f"v_lshl_add_u32 v{vWT}, v{vT+1}, 3, v{vWT}")
    a(f"v_add_u32 v184, {320 * 160}, v{vWA}")
    a(f"v_add_u32 v185, {320 * 160}, v{vWT}")
    for r in range(20):
        a(f"v_mov_b32 v{vACC + r}, 0")
    a("s_waitcnt lgkmcnt(0)")
    top2_scalar(a, sCAND, sB1, sB2, sT0)
    a(f"s_and_b32 s{sB1}, s{sB1}, 0x7ff")
    a(f"s_and_b32 s{sB2}, s{sB2}, 0x7ff")
    ST(a, "issued")
    def block(G8):
        wa, wt, rb = (vWA, vWT, G8 * 160) if G8 < 2 else (184, 185, (G8 - 2) * 160)
        for s in range(5):
            for j in range(5):
                if s < 4:
                    base = (rb + 40 * s) * 160 + 32 * j
                    a(f"ds_read_b64_tr_b16 {vr(vWF + 4 * j, 2)}, v{wa} offset:{base}")
                    a(f"ds_read_b64_tr_b16 {vr(vWF + 4 * j + 2, 2)}, v{wa} offset:{base + 8 * 160}")
                else:
                    base = rb * 160 + 32 * j
                    a(f"ds_read_b64_tr_b16 {vr(vWF + 4 * j, 2)}, v{wt} offset:{base}")
                    a(f"ds_read_b64_tr_b16 {vr(vWF + 4 * j + 2, 2)}, v{wt} offset:{base + 80 * 160}")
            for j in range(5):
                a(f"s_waitcnt lgkmcnt({8 - 2 * j})")
                a(f"v_mfma_f32_16x16x32_bf16 {vr(vACC + 4 * j, 4)}, {vr(vWF + 4 * j, 4)}, {vr(vO + 20 * G8 + 4 * s, 4)}, {vr(vACC + 4 * j, 4)}")
    for G8, left in ((0, 39), (1, 28), (2, 17), (3, 6)):
        a(f"s_waitcnt vmcnt({left})")
        a("s_barrier")
        ST(a, f"B{G8}")
        block(G8)
    ST(a, "gemm")
    for sel, sB in ((0, sB1), (1, sB2)):
        lab = f"L_k3_nosel{sel}"
        a(f"s_lshr_b32 s{sT0}, s{sB}, 6")
        a(f"s_cmp_lg_u32 s{sT0}, s{sMT}")
        a(f"s_cbranch_scc1 {lab}")
        route(a, sel, sB)
        a.label(lab)
    a("s_waitcnt vmcnt(0)")
    a("s_nop 7")
    a(f"v_add_f32 v{vT}, 1.0, v{vST+1}")
    a(f"v_mul_f32 v{vT+1}, v{vST}, v{vST+1}")
    for j in range(5):
        for i in range(2):
            a(f"v_lshlrev_b32 v{vT+2}, 16, v{vX + 2 * j + i}")
            a(f"v_and_b32 v{vT+3}, 0xffff0000, v{vX + 2 * j + i}")
            a(f"v_fma_f32 v{vT+2}, v{vT+2}, v{vT}, -v{vT+1}")
            a(f"v_fma_f32 v{vT+3}, v{vT+3}, v{vT}, -v{vT+1}")
            a(f"v_add_f32 v{vT+2}, v{vT+2}, v{vACC + 4 * j + 2 * i}")
            a(f"v_add_f32 v{vT+3}, v{vT+3}, v{vACC + 4 * j + 2 * i + 1}")
            a(f"v_cvt_pk_bf16_f32 v{vX + 2 * j + i}, v{vT+2}, v{vT+3}")
        a(f"buffer_store_dwordx2 {vr(vX + 2 * j, 2)}, v{vXO}, s[{SRD_OUT}:{SRD_OUT+3}], 0 offen offset:{32 * j}")
    ST(a, "stores")
    if ST.on:
        a("s_waitcnt vmcnt(0)")
    ST(a, "end")
    ST.store(a, sW, SRD_WS)
    a.label("L_k3_exit")
    a("s_endpgm")

def route(a, sel, sB):
    ws = f"s[{SRD_WS}:{SRD_WS+3}]"
    a(f"s_lshl_b32 s{sT0}, s{sB}, 2")
    a(f"s_add_u32 s38, s4, s{sT0}")
    a("s_addc_u32 s39, s5, 0")
    a(f"s_add_u32 s38, s38, {R_OFF}")
    a("s_addc_u32 s39, s39, 0")
    a("s_load_dword s40, s[38:39], 0")
    a(f"v_mul_u32_u24 v{vT}, 52429, v0")
    a(f"v_lshrrev_b32 v{vT}, 20, v{vT}")
    a(f"v_mul_u32_u24 v{vT+1}, 20, v{vT}")
    a(f"v_sub_u32 v{vT+1}, v0, v{vT+1}")
    a(f"v_mul_u32_u24 v{vT+2}, {8 * 5120}, v{vT}")
    a(f"v_lshl_add_u32 v{vT+2}, v{vT+1}, 4, v{vT+2}")
    a(f"s_mul_i32 s{sT0}, s{sNT}, 320")
    a(f"s_add_u32 s{sT0}, s{sT0}, {YP_OFF + sel * 2560}")
    a(f"v_cmp_gt_u32 vcc, 240, v0")
    a("s_and_saveexec_b64 s[42:43], vcc")
    for i in range(8):
        a(f"s_add_u32 s{sT1}, s{sT0}, {i * 5120}")
        a(f"buffer_load_dwordx4 {vr(vY + 4 * i, 4)}, v{vT+2}, {ws}, s{sT1} offen")
    a("s_waitcnt vmcnt(0)")
    for i in range(1, 8):
        for r in range(4):
            a(f"v_add_f32 v{vY + r}, v{vY + r}, v{vY + 4 * i + r}")
    a(f"v_mul_u32_u24 v{vT}, 320, v{vT}")
    a(f"v_lshl_add_u32 v{vT}, v{vT+1}, 4, v{vT}")
    a(f"v_add_u32 v{vT}, {L_RED}, v{vT}")
    a(f"ds_write_b128 v{vT}, {vr(vY, 4)}")
    a("s_mov_b64 exec, s[42:43]")
    a("s_waitcnt lgkmcnt(0)")
    a("s_barrier")
    a(f"v_lshlrev_b32 v{vT}, 4, v{vG}")
    a(f"v_add_u32 v{vT}, {L_RED}, v{vT}")
    a(f"v_mov_b32 v{vT+1}, s40")
    a(f"v_mul_f32 v{vT+1}, {hex(f2u(-LOG2E))}, v{vT+1}")
    a(f"v_exp_f32 v{vT+1}, v{vT+1}")
    a("s_nop 0")
    a(f"v_add_f32 v{vT+1}, 1.0, v{vT+1}")
    a(f"v_rcp_f32 v{vT+1}, v{vT+1}")
    a(f"v_cmp_eq_u32 vcc, s{sB}, v30")
    a("s_nop 1")
    a(f"v_cndmask_b32 v{vT+1}, 0, v{vT+1}, vcc")
    for j in range(5):
        for p in range(12):
            a(f"ds_read_b128 {vr(vY + 4 * (p & 7), 4)}, v{vT} offset:{320 * p + 64 * j}")
            if p == 7 or p == 11:
                a("s_waitcnt lgkmcnt(0)")
                lo, hi = (0, 8) if p == 7 else (0, 4)
                for q in range(lo, hi):
                    for r in range(4):
                        a(f"v_fma_f32 v{vACC + 4 * j + r}, v{vY + 4 * q + r}, v{vT+1}, v{vACC + 4 * j + r}")
    a("s_barrier")
```

```python
import sys
from common import *

HEADER = """; Kernarg layout for this problem (88 bytes, ptrs only, base s[0:1]):
;
;
"""

def build(kernels):
    a = Asm()
    head = HEADER
    for m, grid, block in kernels:
        head += f"; @launch kernel={m.NAME} grid=({grid},1,1) block=({block},1,1) lds={m.LDS}\n"
    a.lines.append('.amdgcn_target "amdgcn-amd-amdhsa--gfx950"')
    a.lines.append(".text")
    for m, _, _ in kernels:
        m.emit(a)
    a.lines.append('.section .rodata,"a"')
    out = head + a.text()
    for m, _, _ in kernels:
        out += ".p2align 6\n" + kernel_desc(m.NAME, m.VGPRS)
    return out

if __name__ == "__main__":
    import k1, k23
    txt = build([(k1, 256, k1.BLOCK), (k23, k23.GRID, k23.BLOCK)])
    dst = sys.argv[1] if len(sys.argv) > 1 else "parallel_sum__mha_block__moe_arch_mod__prompt.s"
    open(dst, "w").write(txt)
    print("wrote", dst, len(txt), "bytes")
```

```python
S, D, H, DH, F = 2048, 640, 32, 20, 1536

QB_OFF = 0
KV_OFF = 32 * 64 * 1280
OB_OFF = KV_OFF + 32 * 64 * 2560
ST_OFF = OB_OFF + 32 * 64 * 1280
R_OFF = ST_OFF + 2048 * 8
CAND_OFF = R_OFF + 2048 * 4
YP_OFF = CAND_OFF + 256
WO2_OFF = YP_OFF + 96 * 2 * 640 * 4
WS_USED = WO2_OFF + 8 * 20 * 5 * 1024
WS_SRD = (WS_USED + 0xFFFF) & ~0xFFFF

X_BYTES = S * D * 2
WQKV_BYTES = D * 3 * D * 2
WO_BYTES = D * D * 2
WG_BYTES = D * F * 2
WD_BYTES = F * D * 2

LOG2E = 1.4426950408889634
QSCALE = LOG2E * DH ** -0.5

import struct
def f2u(x):
    return struct.unpack("<I", struct.pack("<f", x))[0]

class Asm:
    def __init__(self):
        self.lines = []
    def __call__(self, s=""):
        for ln in s.split("\n"):
            self.lines.append(ln if ln.endswith(":") or ln.startswith(".") or not ln.strip() else "    " + ln.strip())
    def label(self, l):
        self.lines.append(l + ":")
    def text(self):
        return "\n".join(self.lines) + "\n"

def vr(a, n=1):
    return f"v{a}" if n == 1 else f"v[{a}:{a+n-1}]"
def sr(a, n=1):
    return f"s{a}" if n == 1 else f"s[{a}:{a+n-1}]"

def srd(a, dst, lo, nbytes):
    a(f"s_mov_b32 s{dst}, s{lo}")
    a(f"s_and_b32 s{dst+1}, s{lo+1}, 0xffff")
    a(f"s_mov_b32 s{dst+2}, {nbytes}")
    a(f"s_mov_b32 s{dst+3}, 0x00020000")

def kernel_header(a, name):
    a(f".globl {name}")
    a(".p2align 8")
    a(f".type {name},@function")
    a.label(name)

def kernel_desc(name, vgpr, sgpr=100):
    acc = (vgpr + 3) // 4 * 4
    return f""".amdhsa_kernel {name}
  .amdhsa_next_free_vgpr {vgpr}
  .amdhsa_next_free_sgpr {sgpr}
  .amdhsa_accum_offset {acc}
  .amdhsa_group_segment_fixed_size 0
  .amdhsa_kernarg_size 88
  .amdhsa_user_sgpr_count 2
  .amdhsa_user_sgpr_kernarg_segment_ptr 1
  .amdhsa_system_sgpr_workgroup_id_x 1
.end_amdhsa_kernel
"""

import os
PROF_OFF = 16 << 20
def prof_on(name):
    return name in os.environ.get("PROF", "").split(",")
class Stamps:
    def __init__(self, name, base=52):
        self.on = prof_on(name)
        self.off = PROF_OFF + {"k1": 0, "k2": 1 << 20, "k3": 2 << 20}[name]
        self.base = base
        self.names = []
    def __call__(self, a, label):
        if not self.on:
            return
        if label not in self.names:
            self.names.append(label)
        i = self.names.index(label)
        assert i < 12
        a(f"s_memtime s[{self.base + 4 * i}:{self.base + 4 * i + 1}]")
        a(f"s_memrealtime s[{self.base + 4 * i + 2}:{self.base + 4 * i + 3}]")
    def store(self, a, swave, srd_ws, vtmp=2):
        if not self.on:
            return
        a("s_mov_b64 exec, -1")
        a("s_waitcnt vmcnt(0) lgkmcnt(0)")
        a("s_lshl_b32 s50, s2, 4")
        a(f"s_add_u32 s50, s50, s{swave}")
        a("s_lshl_b32 s50, s50, 7")
        a(f"s_add_u32 s50, s50, {self.off}")
        a(f"s_mov_b32 s{srd_ws + 2}, 0x2000000")
        a(f"v_mov_b32 v{vtmp}, 0")
        for i in range(12):
            a(f"v_mov_b32 v{vtmp + 1}, s{self.base + 4 * i}")
            a(f"buffer_store_dword v{vtmp + 1}, v{vtmp}, s[{srd_ws}:{srd_ws + 3}], s50 offen offset:{4 * i}")
            a(f"v_mov_b32 v{vtmp + 1}, s{self.base + 4 * i + 2}")
            a(f"buffer_store_dword v{vtmp + 1}, v{vtmp}, s[{srd_ws}:{srd_ws + 3}], s50 offen offset:{64 + 4 * i}")
        a("s_waitcnt vmcnt(0)")
```

```python
from common import *
import os

NAME = "qkv_kernel"
LDS = 131072 + 2048
VGPRS = 144
BLOCK = 768

SRD_X, SRD_W, SRD_WS = 8, 12, 16
sW, sMT, sNT = 20, 21, 22
sROW0 = 23
sT0, sT1, sT2, sT3 = 24, 25, 26, 27
sSEC, sHS, sTS, sSCALE = 28, 29, 30, 31
sTA, sTB = 32, 33
sWR, sWC = 34, 35
ST_NM, ST_RS, ST_CS = 131072, 131072 + 512, 131072 + 1024

vLANE, vTOK, vH = 1, 2, 3
vT = 4
vXA = 8
vXB = 12
vWA, vWB = 16, 17
vS1, vS2, vCS, vONE = 28, 29, 30, 31
vSEL = 136
vCSA = 140
vF = (32, 48)
vACC = 64
vOFF = 128
vE = 24

ST = Stamps("k1")
def X(flag):
    return flag in os.environ.get("K1_EXP", "").split(",")

def acc(a_, b_):
    return vACC + 32 * a_ + 16 * b_

def entry(a):
    kernel_header(a, NAME)
    ST(a, "entry")
    a("s_cmp_ge_u32 s2, 256")
    a("s_cbranch_scc1 L_k1_exit")
    a("s_load_dwordx4 s[4:7], s[0:1], 0")
    a("s_load_dwordx2 s[36:37], s[0:1], 80")
    a("s_load_dwordx2 s[38:39], s[0:1], 32")
    a(f"v_lshrrev_b32 v{vT}, 6, v0")
    a(f"v_and_b32 v{vLANE}, 63, v0")
    a(f"v_readfirstlane_b32 s{sW}, v{vT}")
    a(f"s_and_b32 s{sT0}, s2, 3")
    a(f"s_lshl_b32 s{sT0}, s{sT0}, 2")
    a(f"s_bfe_u32 s{sT1}, s2, 0x20003")
    a(f"s_or_b32 s{sMT}, s{sT0}, s{sT1}")
    a(f"s_bfe_u32 s{sT0}, s2, 0x10002")
    a(f"s_lshl_b32 s{sT0}, s{sT0}, 3")
    a(f"s_lshr_b32 s{sT1}, s2, 5")
    a(f"s_or_b32 s{sNT}, s{sT0}, s{sT1}")
    a(f"s_lshl_b32 s{sROW0}, s{sMT}, 7")
    a(f"v_and_b32 v{vTOK}, 31, v{vLANE}")
    a(f"v_lshrrev_b32 v{vH}, 5, v{vLANE}")
    a("s_waitcnt lgkmcnt(0)")
    srd(a, SRD_X, 4, X_BYTES)
    srd(a, SRD_W, 6, WQKV_BYTES)
    srd(a, SRD_WS, 36, WS_SRD)
    a(f"s_cmp_eq_u32 s{sNT}, 15")
    a("s_cbranch_scc1 L_k1_aux")
    a(f"s_cmp_ge_u32 s{sW}, 8")
    a("s_cbranch_scc1 L_k1_stat")
    a(f"s_cmp_ge_u32 s{sW}, 4")
    a("s_cbranch_scc1 L_k1_loader")

def loader(a):
    a.label("L_k1_loader")
    vX, vWt = 8, 9
    lw = sT0
    a(f"s_sub_u32 s{lw}, s{sW}, 4")
    a(f"v_lshrrev_b32 v{vT}, 3, v{vLANE}")
    a(f"s_lshl_b32 s{sT1}, s{lw}, 3")
    a(f"s_add_u32 s{sT1}, s{sT1}, s{sROW0}")
    a(f"v_add_u32 v{vT}, s{sT1}, v{vT}")
    a(f"v_mul_u32_u24 v{vT}, 1280, v{vT}")
    a(f"v_lshrrev_b32 v{vT+1}, 4, v{vLANE}")
    a(f"s_and_b32 s{sT1}, s{lw}, 1")
    a(f"s_lshl_b32 s{sT1}, s{sT1}, 2")
    a(f"v_add_u32 v{vT+2}, s{sT1}, v{vT+1}")
    a(f"v_and_b32 v{vT+3}, 7, v{vLANE}")
    a(f"v_xor_b32 v{vT+2}, v{vT+2}, v{vT+3}")
    a(f"v_lshl_add_u32 v{vX}, v{vT+2}, 4, v{vT}")
    a(f"s_lshl_b32 s{sT1}, s{lw}, 2")
    a(f"v_add_u32 v{vT}, s{sT1}, v{vT+1}")
    a(f"v_mul_u32_u24 v{vT}, 3840, v{vT}")
    a(f"v_and_b32 v{vT+2}, 15, v{vLANE}")
    a(f"v_lshlrev_b32 v{vT+3}, 2, v{vT+1}")
    a(f"v_xor_b32 v{vT+2}, v{vT+2}, v{vT+3}")
    a(f"v_lshl_add_u32 v{vT}, v{vT+2}, 4, v{vT}")
    a(f"s_lshl_b32 s{sT1}, s{sNT}, 8")
    a(f"v_add_u32 v{vWt}, s{sT1}, v{vT}")
    a(f"s_lshl_b32 s{sT2}, s{lw}, 10")
    vXs, vWs = 44, 48
    for i in range(4):
        a(f"v_add_u32 v{vXs + i}, {i * 40960}, v{vX}")
        a(f"v_add_u32 v{vWs + i}, {i * 16 * 3840}, v{vWt}")
    sXO, sWO = 40, 41
    def stage(s):
        base = (s & 3) * 32768
        a(f"s_mov_b32 s{sXO}, {s * 128}")
        a(f"s_mov_b32 s{sWO}, {s * 64 * 3840}")
        for i in range(4):
            a(f"s_add_u32 m0, s{sT2}, {base + i * 4096}")
            a("s_nop 0")
            a(f"buffer_load_dwordx4 v{vXs + i}, s[{SRD_X}:{SRD_X+3}], s{sXO} offen lds")
            a(f"s_add_u32 m0, s{sT2}, {base + 16384 + i * 4096}")
            a("s_nop 0")
            a(f"buffer_load_dwordx4 v{vWs + i}, s[{SRD_W}:{SRD_W+3}], s{sWO} offen lds")
    ST(a, "setup")
    for s in range(3):
        stage(s)
    ST(a, "B0")
    for s in range(10):
        issued = min(9, s + 2)
        a(f"s_waitcnt vmcnt({8 * (issued - s)})")
        if s in (0, 1, 2, 5):
            ST(a, {0: "g4", 1: "g8", 2: "g20", 5: "loopend"}[s])
        a("s_barrier")
        if s + 3 <= 9 and not (X("nodma") and s > 0):
            stage(s + 3)
    ST(a, "stores")
    ST(a, "end")
    ST.store(a, sW, SRD_WS)
    a("s_endpgm")

def stat_waves(a):
    a.label("L_k1_stat")
    lw = sT0
    vR, vR2, vD, vP, vA1, vA2 = 8, 12, 16, 32, 36, 38
    a(f"s_sub_u32 s{lw}, s{sW}, 8")
    a(f"v_lshrrev_b32 v{vT}, 1, v{vLANE}")
    a(f"s_lshl_b32 s{sT1}, s{lw}, 5")
    a(f"v_add_u32 v{vT}, s{sT1}, v{vT}")
    a(f"v_lshlrev_b32 v{vT+1}, 7, v{vT}")
    a(f"v_and_b32 v{vT+2}, 1, v{vLANE}")
    a(f"v_lshl_add_u32 v{vT+1}, v{vT+2}, 6, v{vT+1}")
    a(f"v_bfe_u32 v{vT+2}, v{vLANE}, 2, 2")
    for i in range(4):
        a(f"v_xor_b32 v{vT+3}, {i}, v{vT+2}")
        a(f"v_lshl_add_u32 v{vR + i}, v{vT+3}, 4, v{vT+1}")
        a(f"v_add_u32 v{vR2 + i}, 65536, v{vR + i}")
    a(f"v_lshlrev_b32 v40, 2, v{vT}")
    for r in range(4):
        a(f"v_mov_b32 v{vA1 + r}, 0")
    for s in range(10):
        slot = s & 3
        a("s_barrier")
        for i in range(4):
            a(f"ds_read_b128 {vr(vD + 4 * i, 4)}, v{(vR if slot < 2 else vR2) + i} offset:{(slot & 1) * 32768}")
        for j in range(16):
            if j % 4 == 0:
                a(f"s_waitcnt lgkmcnt({3 - j // 4})")
            if X("nostat"):
                continue
            p = vP + 2 * (j & 1)
            a(f"v_lshlrev_b32 v{p}, 16, v{vD + j}")
            a(f"v_and_b32 v{p+1}, 0xffff0000, v{vD + j}")
            a(f"v_add_f32 v{vA1}, v{vA1}, v{p}")
            a(f"v_fmac_f32 v{vA2}, v{p}, v{p}")
            a(f"v_add_f32 v{vA1+1}, v{vA1+1}, v{p+1}")
            a(f"v_fmac_f32 v{vA2+1}, v{p+1}, v{p+1}")
    a(f"v_add_f32 v{vA1}, v{vA1}, v{vA1+1}")
    a(f"v_add_f32 v{vA2}, v{vA2}, v{vA2+1}")
    a("s_nop 1")
    a(f"v_add_f32_dpp v{vA1+1}, v{vA1}, v{vA1} quad_perm:[1,0,3,2] row_mask:0xf bank_mask:0xf")
    a(f"v_add_f32_dpp v{vA2+1}, v{vA2}, v{vA2} quad_perm:[1,0,3,2] row_mask:0xf bank_mask:0xf")
    a(f"v_mul_f32 v{vA1}, {hex(f2u(1.0 / D))}, v{vA1+1}")
    a(f"v_mul_f32 v{vA2}, {hex(f2u(1.0 / D))}, v{vA2+1}")
    a(f"v_fma_f32 v{vA2}, -v{vA1}, v{vA1}, v{vA2}")
    a(f"v_max_f32 v{vA2}, 0, v{vA2}")
    a(f"v_add_f32 v{vA2}, {hex(f2u(1e-5))}, v{vA2}")
    a(f"v_rsq_f32 v{vA2}, v{vA2}")
    a(f"v_sub_f32 v{vA1}, 0, v{vA1}")
    a(f"v_add_u32 v40, {ST_NM}, v40")
    a(f"ds_write_b32 v40, v{vA1}")
    a(f"ds_write_b32 v40, v{vA2} offset:512")
    a("s_waitcnt lgkmcnt(0)")
    a("s_barrier")
    a("s_endpgm")

def read_list(g):
    ks, half = g & 3, (g >> 2) & 1
    base = half * 32768
    f = vF[g & 1]
    w = lambda b, reg, rd: f"ds_read_b64_tr_b16 {vr(f + 8 + 4 * b + 2 * rd, 2)}, v{reg} offset:{base + 16384 + (16 * ks + 4 * rd) * 256}"
    return [f"ds_read_b128 {vr(f, 4)}, v{vXA + ks} offset:{base}", w(0, vWA, 0), w(0, vWA, 1),
            w(1, vWB, 0), w(1, vWB, 1), f"ds_read_b128 {vr(f + 4, 4)}, v{vXB + ks} offset:{base}"]

def step(a, g, vorient, reads, pre=None):
    f = vF[g & 1]
    def mm(a_, b_):
        x, w = vr(f + 4 * a_, 4), vr(f + 8 + 4 * b_, 4)
        A, B = (x, w) if vorient else (w, x)
        a(f"v_mfma_f32_32x32x16_bf16 {vr(acc(a_, b_), 16)}, {A}, {B}, {vr(acc(a_, b_), 16)}")
    if pre is not None:
        a("s_waitcnt lgkmcnt(0)")
        mm(0, 0)
        mm(0, 1)
        pre()
        for r in reads[0:3]: a(r)
        mm(1, 0)
        for r in reads[3:6]: a(r)
        mm(1, 1)
    else:
        a("s_waitcnt lgkmcnt(3)")
        mm(0, 0)
        for r in reads[0:3]: a(r)
        a("s_waitcnt lgkmcnt(4)")
        mm(0, 1)
        for r in reads[3:6]: a(r)
        a("s_waitcnt lgkmcnt(6)")
        mm(1, 0)
        mm(1, 1)
    a(f"v_mfma_f32_16x16x32_bf16 {vr(vCSA, 4)}, {vr(vSEL, 4)}, {vr(f + 8, 4)}, {vr(vCSA, 4)}")

def mainloop(a, vorient):
    tag = "v" if vorient else "qk"
    ST(a, "setup")
    a("s_barrier")
    ST(a, "B0")
    for r in read_list(0):
        a(r)
    a(f"s_mov_b32 s{sT3}, 5")
    a(".p2align 3")
    a.label(f"L_k1_loop_{tag}")
    def pre7():
        a(f"s_sub_u32 s{sT3}, s{sT3}, 1")
        a(f"s_cmp_eq_u32 s{sT3}, 0")
        a(f"s_cbranch_scc1 L_k1_last_{tag}")
        for r in list(range(vXA, vXA + 4)) + list(range(vXB, vXB + 4)) + [vWA, vWB]:
            a(f"v_xor_b32 v{r}, 0x10000, v{r}")
        a("s_barrier")
    for g in range(8):
        pre = (lambda: a("s_barrier")) if g == 3 else (pre7 if g == 7 else None)
        step(a, g, vorient, read_list(g + 1), pre)
    a(f"s_branch L_k1_loop_{tag}")
    a.label(f"L_k1_last_{tag}")
    f = vF[1]
    for b_ in range(2):
        x, w = vr(f + 4, 4), vr(f + 8 + 4 * b_, 4)
        A, B = (x, w) if vorient else (w, x)
        a(f"v_mfma_f32_32x32x16_bf16 {vr(acc(1, b_), 16)}, {A}, {B}, {vr(acc(1, b_), 16)}")
    a(f"v_mfma_f32_16x16x32_bf16 {vr(vCSA, 4)}, {vr(vSEL, 4)}, {vr(f + 8, 4)}, {vr(vCSA, 4)}")

def stats_exchange(a):
    ST(a, "loopend")
    a(f"s_lshl_b32 s{sT0}, s{sWC}, 6")
    a(f"s_lshl_b32 s{sT1}, s{sWR}, 5")
    a(f"s_add_u32 s{sT0}, s{sT0}, s{sT1}")
    a(f"v_add_u32 v{vT+1}, s{sT0}, v{vLANE}")
    a(f"v_lshlrev_b32 v{vT+1}, 2, v{vT+1}")
    a(f"v_add_u32 v{vT+1}, {ST_CS}, v{vT+1}")
    a("s_mov_b64 exec, 0xffff")
    a("s_nop 4")
    a(f"ds_write_b32 v{vT+1}, v{vCSA}")
    a(f"ds_write_b32 v{vT+1}, v{vCSA+1} offset:64")
    a("s_mov_b64 exec, -1")
    a("s_waitcnt lgkmcnt(0)")
    a("s_barrier")

def consumer_setup(a):
    a(f"s_lshr_b32 s{sWR}, s{sW}, 1")
    a(f"s_and_b32 s{sWC}, s{sW}, 1")
    a(f"v_lshrrev_b32 v{vT}, 1, v{vTOK}")
    a(f"v_and_b32 v{vT}, 7, v{vT}")
    a(f"s_lshl_b32 s{sT0}, s{sWR}, 6")
    a(f"v_add_u32 v{vT+1}, s{sT0}, v{vTOK}")
    a(f"v_lshlrev_b32 v{vT+1}, 7, v{vT+1}")
    a(f"s_lshl_b32 s{sT0}, s{sWC}, 12")
    a(f"s_xor_b32 s{sT1}, s{sT0}, 4096")
    for ks in range(4):
        a(f"v_add_u32 v{vT+2}, {2 * ks}, v{vH}")
        a(f"v_xor_b32 v{vT+2}, v{vT+2}, v{vT}")
        a(f"v_lshl_add_u32 v{vT+2}, v{vT+2}, 4, v{vT+1}")
        a(f"v_add_u32 v{vXA + ks}, s{sT0}, v{vT+2}")
        a(f"v_add_u32 v{vXB + ks}, s{sT1}, v{vT+2}")
    a(f"v_bfe_u32 v{vT}, v{vLANE}, 2, 2")
    a(f"v_lshl_add_u32 v{vT+1}, v{vH}, 3, v{vT}")
    a(f"v_lshlrev_b32 v{vT+1}, 8, v{vT+1}")
    a(f"v_and_b32 v{vT+2}, 3, v{vLANE}")
    a(f"v_lshl_add_u32 v{vT+1}, v{vT+2}, 3, v{vT+1}")
    a(f"v_bfe_u32 v{vT+2}, v{vLANE}, 4, 1")
    a(f"v_lshlrev_b32 v{vT}, 1, v{vT}")
    for (dst, own) in ((vWA, True), (vWB, False)):
        a(f"s_lshl_b32 s{sT0}, s{sWC}, 2")
        if own:
            a(f"s_lshl_b32 s{sT1}, s{sWR}, 1")
        else:
            a(f"s_xor_b32 s{sT1}, s{sWR}, 1")
            a(f"s_lshl_b32 s{sT1}, s{sT1}, 1")
        a(f"s_add_u32 s{sT0}, s{sT0}, s{sT1}")
        a(f"v_add_u32 v{vT+3}, s{sT0}, v{vT+2}")
        a(f"v_xor_b32 v{vT+3}, v{vT+3}, v{vT}")
        a(f"v_lshl_add_u32 v{dst}, v{vT+3}, 5, v{vT+1}")
    a(f"v_and_b32 v{vT}, 15, v{vLANE}")
    a(f"v_bfe_u32 v{vT+1}, v{vLANE}, 4, 1")
    a(f"v_cmp_eq_u32 vcc, v{vT}, v{vT+1}")
    a(f"v_mov_b32 v{vT+2}, 0x3f803f80")
    a("s_nop 0")
    a(f"v_cndmask_b32 v{vSEL}, 0, v{vT+2}, vcc")
    for r in range(1, 4):
        a(f"v_mov_b32 v{vSEL + r}, v{vSEL}")
    for r in range(4):
        a(f"v_mov_b32 v{vCSA + r}, 0")
    for r in range(64):
        a(f"v_mov_b32 v{vACC + r}, 0")

def qk_path(a):
    a.label("L_k1_qk")
    a(f"s_mov_b32 s{sSEC}, {KV_OFF}")
    a(f"s_mov_b32 s{sTS}, 2560")
    a(f"s_mov_b32 s{sSCALE}, {hex(f2u(1.0))}")
    a(f"s_sub_u32 s{sT0}, s{sNT}, 5")
    a(f"s_cmp_lt_u32 s{sNT}, 5")
    a(f"s_cselect_b32 s{sSEC}, {QB_OFF}, s{sSEC}")
    a(f"s_cselect_b32 s{sTS}, 1280, s{sTS}")
    a(f"s_cselect_b32 s{sSCALE}, {hex(f2u(QSCALE))}, s{sSCALE}")
    a(f"s_cselect_b32 s{sT0}, s{sNT}, s{sT0}")
    a(f"s_lshl_b32 s{sHS}, s{sTS}, 6")
    a(f"s_lshl_b32 s{sT1}, s{sMT}, 2")
    a(f"s_lshl_b32 s{sT2}, s{sWR}, 1")
    a(f"s_add_u32 s{sT1}, s{sT1}, s{sT2}")
    a(f"s_add_u32 s{sT2}, s{sT1}, s{sWC}")
    a(f"s_mul_i32 s{sTA}, s{sT2}, s{sTS}")
    a(f"s_add_u32 s{sTA}, s{sTA}, s{sSEC}")
    a(f"s_xor_b32 s{sT3}, s{sWC}, 1")
    a(f"s_add_u32 s{sT2}, s{sT1}, s{sT3}")
    a(f"s_mul_i32 s{sTB}, s{sT2}, s{sTS}")
    a(f"s_add_u32 s{sTB}, s{sTB}, s{sSEC}")
    a(f"s_lshl_b32 s{sT0}, s{sT0}, 5")
    a(f"s_lshl_b32 s{sT1}, s{sWC}, 4")
    a(f"s_add_u32 s{sT0}, s{sT0}, s{sT1}")
    for b_ in range(2):
        a(f"s_lshl_b32 s{sT1}, s{sWR}, 3") if b_ == 0 else (a(f"s_xor_b32 s{sT1}, s{sWR}, 1"), a(f"s_lshl_b32 s{sT1}, s{sT1}, 3"))
        a(f"s_add_u32 s{sT1}, s{sT1}, s{sT0}")
        for g in range(4):
            o = vOFF + 4 * b_ + g
            a(f"v_add_u32 v{vT}, s{sT1}, v{vH}")
            a(f"v_add_u32 v{vT}, {2 * g}, v{vT}")
            a(f"v_mul_u32_u24 v{vT+1}, 52429, v{vT}")
            a(f"v_lshrrev_b32 v{vT+1}, 18, v{vT+1}")
            a(f"v_mul_u32_u24 v{vT+2}, 5, v{vT+1}")
            a(f"v_sub_u32 v{vT+2}, v{vT}, v{vT+2}")
            a(f"v_mul_lo_u32 v{o}, v{vT+1}, s{sHS}")
            a(f"v_lshrrev_b32 v{vT+1}, 1, v{vT+2}")
            a(f"v_lshlrev_b32 v{vT+1}, 9, v{vT+1}")
            a(f"v_and_b32 v{vT+3}, 1, v{vT+2}")
            a(f"v_lshl_add_u32 v{vT+1}, v{vT+3}, 3, v{vT+1}")
            a(f"v_cmp_eq_u32 vcc, 4, v{vT+2}")
            a(f"v_lshlrev_b32 v{vT+3}, 4, v{vTOK}")
            a(f"v_lshlrev_b32 v{vT+2}, 3, v{vTOK}")
            a(f"v_cndmask_b32 v{vT+3}, v{vT+3}, v{vT+2}, vcc")
            a(f"v_add3_u32 v{o}, v{o}, v{vT+1}, v{vT+3}")
    mainloop(a, False)
    stats_exchange(a)
    vNM, vRS, vC = vE, vE + 2, vE + 4
    a(f"s_lshl_b32 s{sT0}, s{sWR}, 6")
    a(f"v_add_u32 v{vT}, s{sT0}, v{vTOK}")
    a(f"v_lshlrev_b32 v{vT}, 2, v{vT}")
    a(f"s_lshl_b32 s{sT1}, s{sWC}, 7")
    a(f"v_add_u32 v{vT+1}, s{sT1}, v{vT}")
    a(f"s_xor_b32 s{sT1}, s{sT1}, 128")
    a(f"v_add_u32 v{vT+2}, s{sT1}, v{vT}")
    a(f"v_add_u32 v{vT+1}, {ST_NM}, v{vT+1}")
    a(f"v_add_u32 v{vT+2}, {ST_NM}, v{vT+2}")
    a(f"ds_read_b32 v{vNM}, v{vT+1}")
    a(f"ds_read_b32 v{vRS}, v{vT+1} offset:512")
    a(f"ds_read_b32 v{vNM+1}, v{vT+2}")
    a(f"ds_read_b32 v{vRS+1}, v{vT+2} offset:512")
    a(f"s_lshl_b32 s{sT0}, s{sWC}, 8")
    a(f"v_lshlrev_b32 v{vT}, 4, v{vH}")
    a(f"v_add_u32 v{vT}, s{sT0}, v{vT}")
    a(f"s_lshl_b32 s{sT1}, s{sWR}, 7")
    a(f"v_add_u32 v{vT+1}, s{sT1}, v{vT}")
    a(f"s_xor_b32 s{sT1}, s{sT1}, 128")
    a(f"v_add_u32 v{vT+2}, s{sT1}, v{vT}")
    a(f"v_add_u32 v{vT+1}, {ST_CS}, v{vT+1}")
    a(f"v_add_u32 v{vT+2}, {ST_CS}, v{vT+2}")
    for b_ in range(2):
        for g in range(4):
            a(f"ds_read_b128 {vr(vC + 16 * b_ + 4 * g, 4)}, v{vT + 1 + b_} offset:{32 * g}")
    a("s_waitcnt lgkmcnt(0)")
    a(f"v_mul_f32 v{vRS}, s{sSCALE}, v{vRS}")
    a(f"v_mul_f32 v{vRS+1}, s{sSCALE}, v{vRS+1}")
    ws = f"s[{SRD_WS}:{SRD_WS+3}]"
    for a_ in range(2):
        a(f"v_mov_b32 v{vT}, v{vNM + a_}")
        a(f"v_mov_b32 v{vT+1}, v{vNM + a_}")
        a(f"v_mov_b32 v{vT+2}, v{vRS + a_}")
        a(f"v_mov_b32 v{vT+3}, v{vRS + a_}")
        for b_ in range(2):
            A = acc(a_, b_)
            for p in range(8):
                a(f"v_pk_fma_f32 {vr(A + 2 * p, 2)}, {vr(vC + 16 * b_ + 2 * p, 2)}, {vr(vT, 2)}, {vr(A + 2 * p, 2)}")
            for p in range(8):
                a(f"v_pk_mul_f32 {vr(A + 2 * p, 2)}, {vr(A + 2 * p, 2)}, {vr(vT + 2, 2)}")
            for p in range(8):
                a(f"v_cvt_pk_bf16_f32 v{A + p}, v{A + 2 * p}, v{A + 2 * p + 1}")
            for g in range(4):
                a(f"buffer_store_dwordx2 {vr(A + 2 * g, 2)}, v{vOFF + 4 * b_ + g}, {ws}, s{sTA if a_ == 0 else sTB} offen")
    ST(a, "stores")
    if ST.on:
        a("s_waitcnt vmcnt(0)")
    ST(a, "end")
    ST.store(a, sW, SRD_WS)
    a("s_endpgm")

def v_path(a):
    a.label("L_k1_v")
    a(f"s_lshl_b32 s{sT1}, s{sMT}, 2")
    a(f"s_lshl_b32 s{sT2}, s{sWR}, 1")
    a(f"s_add_u32 s{sT1}, s{sT1}, s{sT2}")
    a(f"s_add_u32 s{sT2}, s{sT1}, s{sWC}")
    a(f"s_mul_i32 s{sTA}, s{sT2}, 2560")
    a(f"s_add_u32 s{sTA}, s{sTA}, {KV_OFF + 1280}")
    a(f"s_xor_b32 s{sT3}, s{sWC}, 1")
    a(f"s_add_u32 s{sT2}, s{sT1}, s{sT3}")
    a(f"s_mul_i32 s{sTB}, s{sT2}, 2560")
    a(f"s_add_u32 s{sTB}, s{sTB}, {KV_OFF + 1280}")
    a(f"s_sub_u32 s{sT0}, s{sNT}, 10")
    a(f"s_lshl_b32 s{sT0}, s{sT0}, 7")
    a(f"s_lshl_b32 s{sT1}, s{sWC}, 6")
    a(f"s_add_u32 s{sT0}, s{sT0}, s{sT1}")
    for b_ in range(2):
        if b_ == 0:
            a(f"s_lshl_b32 s{sT1}, s{sWR}, 5")
        else:
            a(f"s_xor_b32 s{sT1}, s{sWR}, 1")
            a(f"s_lshl_b32 s{sT1}, s{sT1}, 5")
        a(f"s_add_u32 s{sT1}, s{sT1}, s{sT0}")
        a(f"v_add_u32 v{vT}, s{sT1}, v{vTOK}")
        a(f"v_mul_u32_u24 v{vT+1}, 52429, v{vT}")
        a(f"v_lshrrev_b32 v{vT+1}, 20, v{vT+1}")
        a(f"v_mul_u32_u24 v{vT+2}, 20, v{vT+1}")
        a(f"v_sub_u32 v{vT+2}, v{vT}, v{vT+2}")
        a(f"s_mov_b32 s{sT2}, {64 * 2560}")
        a(f"v_mul_lo_u32 v{vOFF + b_}, v{vT+1}, s{sT2}")
        a(f"v_lshlrev_b32 v{vT+2}, 4, v{vT+2}")
        a(f"v_mul_u32_u24 v{vT+3}, 320, v{vH}")
        a(f"v_add3_u32 v{vOFF + b_}, v{vOFF + b_}, v{vT+2}, v{vT+3}")
    mainloop(a, True)
    stats_exchange(a)
    vCL, vNM, vRS = vE, vE + 4, vE + 20
    a(f"s_lshl_b32 s{sT0}, s{sWC}, 6")
    a(f"v_add_u32 v{vT}, s{sT0}, v{vTOK}")
    a(f"v_lshlrev_b32 v{vT}, 2, v{vT}")
    a(f"s_lshl_b32 s{sT1}, s{sWR}, 7")
    a(f"v_add_u32 v{vT+1}, s{sT1}, v{vT}")
    a(f"s_xor_b32 s{sT1}, s{sT1}, 128")
    a(f"v_add_u32 v{vT+2}, s{sT1}, v{vT}")
    a(f"v_add_u32 v{vT+1}, {ST_CS}, v{vT+1}")
    a(f"v_add_u32 v{vT+2}, {ST_CS}, v{vT+2}")
    a(f"ds_read_b32 v{vCL}, v{vT+1}")
    a(f"ds_read_b32 v{vCL+2}, v{vT+2}")
    a("s_waitcnt lgkmcnt(0)")
    a(f"v_mov_b32 v{vCL+1}, v{vCL}")
    a(f"v_mov_b32 v{vCL+3}, v{vCL+2}")
    ws = f"s[{SRD_WS}:{SRD_WS+3}]"
    for a_ in range(2):
        a(f"s_lshl_b32 s{sT0}, s{sWR}, 8")
        a(f"s_lshl_b32 s{sT1}, s{sWC}, 7")
        if a_ == 1:
            a(f"s_xor_b32 s{sT1}, s{sT1}, 128")
        a(f"s_add_u32 s{sT0}, s{sT0}, s{sT1}")
        a(f"v_lshlrev_b32 v{vT}, 4, v{vH}")
        a(f"v_add_u32 v{vT}, s{sT0}, v{vT}")
        a(f"v_add_u32 v{vT}, {ST_NM}, v{vT}")
        for g in range(4):
            a(f"ds_read_b128 {vr(vNM + 4 * g, 4)}, v{vT} offset:{32 * g}")
            a(f"ds_read_b128 {vr(vRS + 4 * g, 4)}, v{vT} offset:{512 + 32 * g}")
        a("s_waitcnt lgkmcnt(0)")
        for b_ in range(2):
            A = acc(a_, b_)
            for p in range(8):
                a(f"v_pk_fma_f32 {vr(A + 2 * p, 2)}, {vr(vNM + 2 * p, 2)}, {vr(vCL + 2 * b_, 2)}, {vr(A + 2 * p, 2)}")
            for p in range(8):
                a(f"v_pk_mul_f32 {vr(A + 2 * p, 2)}, {vr(A + 2 * p, 2)}, {vr(vRS + 2 * p, 2)}")
            for p in range(8):
                a(f"v_cvt_pk_bf16_f32 v{A + p}, v{A + 2 * p}, v{A + 2 * p + 1}")
            for t in range(2):
                a(f"buffer_store_dwordx4 {vr(A + 4 * t, 4)}, v{vOFF + b_}, {ws}, s{sTA if a_ == 0 else sTB} offen offset:{640 * t}")
    ST(a, "stores")
    if ST.on:
        a("s_waitcnt vmcnt(0)")
    ST(a, "end")
    ST.store(a, sW, SRD_WS)
    a("s_endpgm")

def aux(a):
    a.label("L_k1_aux")
    a(f"s_cmp_ge_u32 s{sW}, 8")
    a("s_cbranch_scc1 L_k1_exit")
    vX, vWr = 32, 72
    vA, vAW = 8, 9
    s1, s2, s3, sw = 10, 11, 12, 13
    SRD_R = 40
    srd(a, SRD_R, 38, D * 2)
    a(f"v_lshrrev_b32 v{vT}, 2, v{vLANE}")
    a(f"s_lshl_b32 s{sT0}, s{sW}, 4")
    a(f"s_add_u32 s{sT0}, s{sT0}, s{sROW0}")
    a(f"v_add_u32 v{vT}, s{sT0}, v{vT}")
    a(f"v_and_b32 v{vT+1}, 3, v{vLANE}")
    a(f"v_lshlrev_b32 v{vAW}, 4, v{vT+1}")
    a(f"v_mul_u32_u24 v{vA}, 1280, v{vT}")
    a(f"v_add_u32 v{vA}, v{vA}, v{vAW}")
    for r in (s1, s2, s3, sw):
        a(f"v_mov_b32 v{r}, 0")
    a(f"v_mov_b32 v{vONE}, 0x3f803f80")
    for half in range(2):
        for i in range(10):
            a(f"buffer_load_dwordx4 {vr(vX + 4 * i, 4)}, v{vA}, s[{SRD_X}:{SRD_X+3}], 0 offen offset:{(10 * half + i) * 64}")
            a(f"buffer_load_dwordx4 {vr(vWr + 4 * i, 4)}, v{vAW}, s[{SRD_R}:{SRD_R+3}], 0 offen offset:{(10 * half + i) * 64}")
        a("s_waitcnt vmcnt(0)")
        for r in range(40):
            a(f"v_dot2c_f32_bf16 v{s1}, v{vX + r}, v{vONE}")
            a(f"v_dot2c_f32_bf16 v{s2}, v{vX + r}, v{vX + r}")
            a(f"v_dot2c_f32_bf16 v{s3}, v{vX + r}, v{vWr + r}")
            a(f"v_dot2c_f32_bf16 v{sw}, v{vWr + r}, v{vONE}")
    a("s_nop 3")
    for perm in ("[1,0,3,2]", "[2,3,0,1]"):
        for r in (s1, s2, s3, sw):
            a(f"v_add_f32_dpp v{vT+2}, v{r}, v{r} quad_perm:{perm} row_mask:0xf bank_mask:0xf")
            a("s_nop 1")
            a(f"v_mov_b32 v{r}, v{vT+2}")
            a("s_nop 1")
    a(f"v_mul_f32 v{s1}, {hex(f2u(1.0 / D))}, v{s1}")
    a(f"v_mul_f32 v{s2}, {hex(f2u(1.0 / D))}, v{s2}")
    a(f"v_fma_f32 v{s2}, -v{s1}, v{s1}, v{s2}")
    a(f"v_max_f32 v{s2}, 0, v{s2}")
    a(f"v_add_f32 v{s2}, {hex(f2u(1e-5))}, v{s2}")
    a(f"v_rsq_f32 v{s2}, v{s2}")
    a(f"v_fma_f32 v{s3}, -v{s1}, v{sw}, v{s3}")
    a(f"v_mul_f32 v{s3}, v{s3}, v{s2}")
    ws = f"s[{SRD_WS}:{SRD_WS+3}]"
    a(f"v_ashrrev_i32 v{vT+2}, 31, v{s3}")
    a(f"v_or_b32 v{vT+2}, 0x80000000, v{vT+2}")
    a(f"v_xor_b32 v{vT+2}, v{vT+2}, v{s3}")
    a(f"v_and_b32 v{vT+2}, 0xfffff800, v{vT+2}")
    a(f"v_or_b32 v{vT+2}, v{vT+2}, v{vT}")
    a(f"v_mov_b32 v14, v{s1}")
    a(f"v_mov_b32 v15, v{s2}")
    a(f"v_lshlrev_b32 v{vA}, 3, v{vT}")
    a(f"v_lshlrev_b32 v{vAW}, 2, v{vT}")
    a(f"v_and_b32 v{vT+3}, 127, v{vT}")
    a(f"v_lshlrev_b32 v{vT+3}, 2, v{vT+3}")
    a(f"v_cmp_eq_u32 vcc, 0, v{vT+1}")
    a(f"s_mov_b32 s{sT0}, {ST_OFF}")
    a(f"s_mov_b32 s{sT1}, {R_OFF}")
    a("s_and_saveexec_b64 s[44:45], vcc")
    a(f"buffer_store_dwordx2 v[14:15], v{vA}, {ws}, s{sT0} offen")
    a(f"buffer_store_dword v{s3}, v{vAW}, {ws}, s{sT1} offen")
    a(f"ds_write_b32 v{vT+3}, v{vT+2}")
    a("s_mov_b64 exec, s[44:45]")
    a("s_waitcnt lgkmcnt(0)")
    a("s_barrier")
    a(f"s_cmp_lg_u32 s{sW}, 0")
    a("s_cbranch_scc1 L_k1_repack")
    hi, lo, oh, ol, adr = 16, 17, 18, 19, 20
    a(f"v_lshlrev_b32 v{adr}, 2, v{vLANE}")
    a(f"ds_read_b32 v{oh}, v{adr}")
    a(f"ds_read_b32 v{ol}, v{adr} offset:256")
    a("s_waitcnt lgkmcnt(0)")
    a(f"v_max_u32 v{hi}, v{oh}, v{ol}")
    a(f"v_min_u32 v{lo}, v{oh}, v{ol}")
    for x in (1, 2, 4, 8, 16, 32):
        a(f"v_xor_b32 v{adr}, {x}, v{vLANE}")
        a(f"v_lshlrev_b32 v{adr}, 2, v{adr}")
        a(f"ds_bpermute_b32 v{oh}, v{adr}, v{hi}")
        a(f"ds_bpermute_b32 v{ol}, v{adr}, v{lo}")
        a("s_waitcnt lgkmcnt(0)")
        a(f"v_max_u32 v{lo}, v{lo}, v{ol}")
        a(f"v_min_u32 v{ol}, v{hi}, v{oh}")
        a(f"v_max_u32 v{hi}, v{hi}, v{oh}")
        a(f"v_max_u32 v{lo}, v{lo}, v{ol}")
    a(f"v_mov_b32 v{oh}, v{hi}")
    a(f"v_mov_b32 v{ol}, v{lo}")
    a(f"s_lshl_b32 s{sT0}, s{sMT}, 3")
    a(f"s_add_u32 s{sT0}, s{sT0}, {CAND_OFF}")
    a(f"v_mov_b32 v{adr}, 0")
    a(f"v_cmp_eq_u32 vcc, 0, v{vLANE}")
    a("s_nop 1")
    a("s_and_saveexec_b64 s[44:45], vcc")
    a(f"buffer_store_dwordx2 v[{oh}:{ol}], v{adr}, {ws}, s{sT0} offen")
    a("s_mov_b64 exec, -1")
    a.label("L_k1_repack")
    a("s_barrier")
    from k2moe import repack
    repack(a, sW, sMT, "L_k1_exit")

def emit(a):
    entry(a)
    consumer_setup(a)
    a(f"s_cmp_ge_u32 s{sNT}, 10")
    a("s_cbranch_scc1 L_k1_v")
    qk_path(a)
    v_path(a)
    loader(a)
    stat_waves(a)
    aux(a)
    a.label("L_k1_exit")
    a("s_endpgm")
```

```python
from common import *

NAME = "attn_moe_kernel"
LDS = 81920
VGPRS = 128

vTID, vLANE16, vT0, vT1 = 0, 1, 2, 3
vKA = (4, 5)
vKB = (6, 7)
vV = (8, 9)
vQ1, vQ2 = 10, 14
vC = 16
vS = (32, 48)
vO = 64
vP = 80
vKAf = (88, 92)
vKBf = (96, 98)
vVf = ((100, 104), (108, 112))
vTMP = 116

sW, sHEAD, sKV, sQ, sOB, sOM = 20, 21, 22, 23, 24, 25
sVMASK = 26
sLO = 28
sM0 = 30
sT = 31
SRD_WS = 8

def EXP_():
    import os
    return os.environ.get("K2_EXP", "")

def lds_tile(t):
    slot, i = (t >> 3) & 3, t & 7
    off = slot * 20480 + i * 2560
    return (0, off) if slot < 2 else (1, off - 40960)

def dma_chunk(a, c):
    a(f"s_add_u32 m0, s{sM0}, {(c & 3) * 20480}")
    a(f"s_add_u32 s{sT}, s{sKV}, {c * 20480}")
    a(f"buffer_load_dwordx4 v{vLANE16}, s[{SRD_WS}:{SRD_WS+3}], s{sT} offen lds")
    a(f"buffer_load_dwordx4 v{vLANE16}, s[{SRD_WS}:{SRD_WS+3}], s{sT} offen offset:1024 lds")
    a(f"s_mov_b64 exec, s[{sLO}:{sLO+1}]")
    a(f"buffer_load_dwordx4 v{vLANE16}, s[{SRD_WS}:{SRD_WS+3}], s{sT} offen offset:2048 lds")
    a("s_mov_b64 exec, -1")

def read_k(a, t, buf):
    st, off = lds_tile(t)
    a(f"ds_read_b128 {vr(vKAf[buf], 4)}, v{vKA[st]} offset:{off}")
    if "mk" in EXP_():
        a(f"s_mov_b64 exec, s[{sLO}:{sLO+1}]")
    a(f"ds_read_b64 {vr(vKBf[buf], 2)}, v{vKB[st]} offset:{off}")
    if "mk" in EXP_():
        a("s_mov_b64 exec, -1")

def read_v(a, t, buf):
    st, off = lds_tile(t)
    a(f"s_mov_b64 exec, s[{sVMASK}:{sVMASK+1}]")
    a(f"ds_read_b128 {vr(vVf[buf][0], 4)}, v{vV[st]} offset:{off}")
    a(f"ds_read_b128 {vr(vVf[buf][1], 4)}, v{vV[st]} offset:{off + 640}")
    a("s_mov_b64 exec, -1")

def mfma_s1(a, dst, buf, c):
    if "nos1" in EXP_() and c != "0": return
    a(f"v_mfma_f32_32x32x16_bf16 {vr(dst, 16)}, {vr(vKAf[buf], 4)}, {vr(vQ1, 4)}, {c}")
def mfma_s2(a, dst, buf):
    if "nos2" in EXP_(): return
    a(f"v_mfma_f32_32x32x8bf16_1k {vr(dst, 16)}, {vr(vKBf[buf], 2)}, {vr(vQ2, 2)}, {vr(dst, 16)}")
def mfma_pv(a, buf, t):
    if "nopv" in EXP_(): return
    a(f"v_mfma_f32_32x32x16_bf16 {vr(vO, 16)}, {vr(vVf[buf][t], 4)}, {vr(vP + 4 * t, 4)}, {vr(vO, 16)}")

def dma_slot(a, t):
    p = t - 5
    if p < 0:
        return
    c, i = p // 8 + 1, p % 8
    if c + 2 > 7 or "nodma" in EXP_():
        return
    lab = f"L_dma_{t}"
    a(f"s_cmp_lg_u32 s{sW}, {i}")
    a(f"s_cbranch_scc1 {lab}")
    dma_chunk(a, c + 2)
    a.label(lab)

def read_v_part(a, t, part):
    st, off = lds_tile(t)
    a(f"ds_read_b128 {vr(vVf[t & 1][part], 4)}, v{vV[st]} offset:{off + 640 * part}")

def tile_body(a, t):
    sc, sn = vS[t & 1], vS[(t + 1) & 1]
    last = t == 63
    fair = "nofair" not in EXP_()
    cin = "0" if "mk" in EXP_() else vr(vC, 16)
    ex = lambda r: a(f"v_exp_f32 v{sc + r}, v{sc + r}") if "noexp" not in EXP_() else a(f"v_mul_f32 v{sc + r}, 0.5, v{sc + r}")
    cv = lambda i: a(f"v_cvt_pk_bf16_f32 v{vP + i}, v{sc + 2 * i}, v{sc + 2 * i + 1}")
    nolds = "nolds" in EXP_() and t > 4
    ex(0)
    if fair:
        a("s_setprio 1")
    ex(1)
    if t > 0:
        mfma_pv(a, (t - 1) & 1, 1)
    for r in range(2, 6):
        ex(r)
    if not last:
        mfma_s1(a, sn, (t + 1) & 1, cin)
    ex(6); ex(7)
    for i in range(4):
        cv(i)
    if not last:
        mfma_s2(a, sn, (t + 1) & 1)
    for r in range(8, 12):
        ex(r)
    mfma_pv(a, t & 1, 0)
    for r in range(12, 16):
        ex(r)
    for i in range(4, 8):
        cv(i)
    if fair:
        a("s_setprio 0")
    stag = "nostag" not in EXP_()
    if t % 8 == 5 and t < 56:
        c = t // 8 + 1
        if stag:
            a(f"s_cmp_ge_u32 s{sW}, 4")
            a(f"s_cbranch_scc1 L_barA_{t}")
        a(f"s_waitcnt vmcnt({3 if c + 1 <= 7 else 0})")
        if "nobar" not in EXP_():
            a("s_barrier")
        a.label(f"L_barA_{t}")
    a("s_waitcnt lgkmcnt(0)")
    if t + 3 <= 63 and not nolds:
        read_k(a, t + 3, (t + 1) & 1)
    if t + 1 <= 63 and not nolds:
        a(f"s_mov_b64 exec, s[{sVMASK}:{sVMASK+1}]")
        if t + 2 <= 63:
            read_v_part(a, t + 2, 0)
        read_v_part(a, t + 1, 1)
        a("s_mov_b64 exec, -1")
    dma_slot(a, t)
    if stag and (t + 1) % 8 == 5 and t + 1 < 56:
        c = (t + 1) // 8 + 1
        a(f"s_cmp_lt_u32 s{sW}, 4")
        a(f"s_cbranch_scc1 L_barB_{t}")
        a(f"s_waitcnt vmcnt({3 if c + 1 <= 7 else 0})")
        if "nobar" not in EXP_():
            a("s_barrier")
        a.label(f"L_barB_{t}")
    if last:
        a("s_nop 1")
        mfma_pv(a, t & 1, 1)

def row_max(a, s, dst, tmp):
    a(f"v_max3_f32 v{dst}, v{s}, v{s+1}, v{s+2}")
    for r in range(3, 15, 2):
        a(f"v_max3_f32 v{dst}, v{dst}, v{s+r}, v{s+r+1}")
    a(f"v_max_f32 v{dst}, v{dst}, v{s+15}")
    a(f"v_mov_b32 v{tmp}, v{dst}")
    a("s_nop 1")
    a(f"v_permlane32_swap_b32 v{dst}, v{tmp}")
    a("s_nop 1")
    a(f"v_max_f32 v{dst}, v{dst}, v{tmp}")

ST = Stamps("k2")

def attention(a):
    ST(a, "entry")
    a("s_load_dwordx2 s[4:5], s[0:1], 80")
    a(f"v_lshrrev_b32 v{vT0}, 6, v0")
    a(f"v_and_b32 v{vT1}, 63, v0")
    a(f"v_readfirstlane_b32 s{sW}, v{vT0}")
    a("s_and_b32 s12, s2, 7")
    a("s_lshl_b32 s12, s12, 2")
    a("s_bfe_u32 s13, s2, 0x20003")
    a(f"s_or_b32 s{sHEAD}, s12, s13")
    a("s_lshr_b32 s14, s2, 5")
    a("s_lshl_b32 s14, s14, 3")
    a(f"s_add_u32 s14, s14, s{sW}")
    a(f"s_mul_i32 s{sKV}, s{sHEAD}, {64 * 2560}")
    a(f"s_mul_i32 s15, s{sW}, 2560")
    a(f"s_mov_b32 s{sM0}, s15")
    a(f"s_add_u32 s{sKV}, s{sKV}, s15")
    a(f"s_add_u32 s{sKV}, s{sKV}, {KV_OFF}")
    a(f"s_lshl_b32 s15, s{sHEAD}, 6")
    a("s_add_u32 s15, s15, s14")
    a(f"s_mul_i32 s{sQ}, s15, 1280")
    if QB_OFF:
        a(f"s_add_u32 s{sQ}, s{sQ}, {QB_OFF}")
    a(f"s_mul_i32 s{sOB}, s14, 40960")
    a(f"s_add_u32 s{sOB}, s{sOB}, {OB_OFF}")
    a(f"s_lshr_b32 s15, s{sHEAD}, 3")
    a("s_mul_i32 s15, s15, 5120")
    a(f"s_add_u32 s{sOB}, s{sOB}, s15")
    a(f"s_bfe_u32 s15, s{sHEAD}, 0x20001")
    a("s_lshl_b32 s15, s15, 10")
    a(f"s_and_b32 s16, s{sHEAD}, 1")
    a("s_lshl_b32 s16, s16, 9")
    a("s_add_u32 s15, s15, s16")
    a(f"s_add_u32 s{sOM}, s{sOB}, s15")
    a(f"s_and_b32 s15, s{sHEAD}, 3")
    a("s_lshl_b32 s15, s15, 8")
    a(f"s_bfe_u32 s16, s{sHEAD}, 0x10002")
    a("s_lshl_b32 s16, s16, 3")
    a("s_add_u32 s15, s15, s16")
    a(f"s_add_u32 s{sOB}, s{sOB}, s15")
    a(f"s_add_u32 s{sOB}, s{sOB}, 4096")
    a(f"s_mov_b32 s{sVMASK}, 0x000fffff")
    a(f"s_mov_b32 s{sVMASK+1}, 0x000fffff")
    a(f"s_mov_b32 s{sLO}, -1")
    a(f"s_mov_b32 s{sLO+1}, 0")
    a(f"v_lshlrev_b32 v{vLANE16}, 4, v{vT1}")
    a(f"v_and_b32 v{vT0}, 31, v{vT1}")
    a(f"v_lshlrev_b32 v{vTMP}, 3, v{vT0}")
    a(f"v_mov_b32 v{vQ2}, 0")
    a(f"v_mov_b32 v{vQ2+1}, 0")
    a("s_waitcnt lgkmcnt(0)")
    srd(a, SRD_WS, 4, WS_SRD)
    a(f"buffer_load_dwordx4 {vr(vQ1, 4)}, v{vLANE16}, s[{SRD_WS}:{SRD_WS+3}], s{sQ} offen")
    a(f"s_mov_b64 exec, s[{sLO}:{sLO+1}]")
    a(f"buffer_load_dwordx2 {vr(vQ2, 2)}, v{vTMP}, s[{SRD_WS}:{SRD_WS+3}], s{sQ} offen offset:1024")
    a("s_mov_b64 exec, -1")
    dma_chunk(a, 0)
    dma_chunk(a, 1)
    a(f"v_mov_b32 v{vKA[0]}, v{vLANE16}")
    a(f"v_add_u32 v{vKA[1]}, 40960, v{vLANE16}")
    a(f"v_add_u32 v{vKB[0]}, 1024, v{vTMP}")
    a(f"v_add_u32 v{vKB[1]}, {1024 + 40960}, v{vTMP}")
    a(f"v_lshrrev_b32 v{vTMP+1}, 5, v{vT1}")
    a(f"v_mul_u32_u24 v{vTMP+1}, 320, v{vTMP+1}")
    a(f"v_lshl_add_u32 v{vTMP+1}, v{vT0}, 4, v{vTMP+1}")
    a(f"v_add_u32 v{vV[0]}, 1280, v{vTMP+1}")
    a(f"v_add_u32 v{vV[1]}, {1280 + 40960}, v{vTMP+1}")
    a(f"v_and_b32 v{vTMP+1}, 27, v{vT0}")
    a(f"v_cmp_eq_u32 vcc, 24, v{vTMP+1}")
    a(f"v_mov_b32 v{vTMP+2}, 0x3f803f80")
    a("s_nop 1")
    a(f"v_cndmask_b32 v{vTMP+1}, 0, v{vTMP+2}, vcc")
    for b in range(2):
        for t in range(2):
            for r in range(4):
                a(f"v_mov_b32 v{vVf[b][t] + r}, v{vTMP+1}")
    for r in range(16):
        a(f"v_mov_b32 v{vO + r}, 0")
    if "mk" in EXP_():
        a(f"v_cmp_le_u32 vcc, 32, v{vT1}")
        a(f"v_mov_b32 v{vTMP+2}, 0x3f80")
        a("s_nop 1")
        for b in range(2):
            a(f"v_cndmask_b32 v{vKBf[b]}, 0, v{vTMP+2}, vcc")
            a(f"v_mov_b32 v{vKBf[b]+1}, 0")
    if "prio" in EXP_():
        a(f"s_cmp_lt_u32 s{sW}, 4")
        a("s_cbranch_scc1 L_noprio")
        a("s_setprio 1")
        a.label("L_noprio")
    ST(a, "issued")
    a("s_waitcnt vmcnt(3)")
    a("s_barrier")
    ST(a, "B0")
    dma_chunk(a, 2)
    read_k(a, 0, 0)
    read_k(a, 1, 1)
    read_v(a, 0, 0)
    a(f"s_mov_b64 exec, s[{sVMASK}:{sVMASK+1}]")
    read_v_part(a, 1, 0)
    a("s_mov_b64 exec, -1")
    a("s_waitcnt lgkmcnt(5)")
    mfma_s1(a, vS[0], 0, "0")
    mfma_s2(a, vS[0], 0)
    a("s_nop 15")
    a("s_nop 3")
    row_max(a, vS[0], vTMP, vTMP + 1)
    if "mk" in EXP_():
        a(f"v_sub_f32 v{vTMP}, 0, v{vTMP}")
        a(f"v_cvt_pk_bf16_f32 v{vTMP}, v{vTMP}, 0")
        a(f"v_cmp_le_u32 vcc, 32, v{vT1}")
        a("s_nop 1")
        a(f"v_cndmask_b32 v{vQ2}, v{vQ2}, v{vTMP}, vcc")
        a("s_nop 1")
        mfma_s1(a, vS[0], 0, "0")
    else:
        for r in range(16):
            a(f"v_sub_f32 v{vC + r}, 0, v{vTMP}")
        a("s_nop 1")
        mfma_s1(a, vS[0], 0, vr(vC, 16))
    mfma_s2(a, vS[0], 0)
    read_k(a, 2, 0)
    a("s_waitcnt lgkmcnt(2)")
    a("s_nop 15")
    a("s_nop 3")
    for t in range(64):
        if t in (0, 8, 32, 56):
            ST(a, f"t{t}")
        tile_body(a, t)
    ST(a, "loopend")
    a("s_nop 15")
    a("s_nop 3")
    a(f"v_mov_b32 v{vTMP}, v{vO + 12}")
    for r in range(12):
        a(f"v_fma_f32 v{vTMP}, v{vO + r}, 0, v{vTMP}")
    a(f"v_mov_b32 v{vTMP+1}, {hex(f2u(2.0 ** 100))}")
    a(f"v_cmp_nlt_f32 vcc, v{vTMP}, v{vTMP+1}")
    a("s_nop 4")
    a("s_cbranch_vccz L_attn_store")
    safe_path(a)
    a.label("L_attn_store")
    a(f"v_rcp_f32 v{vTMP}, v{vO + 12}")
    a("s_nop 1")
    for r in range(12):
        a(f"v_mul_f32 v{vO + r}, v{vO + r}, v{vTMP}")
    for i in range(6):
        a(f"v_cvt_pk_bf16_f32 v{vP + i}, v{vO + 2 * i}, v{vO + 2 * i + 1}")
    a(f"v_and_b32 v{vTMP+1}, 15, v0")
    a(f"v_lshlrev_b32 v{vTMP+1}, 4, v{vTMP+1}")
    a(f"v_bfe_u32 v{vTMP+2}, v0, 4, 1")
    a(f"v_mul_u32_u24 v{vTMP+2}, 20480, v{vTMP+2}")
    a(f"v_add_u32 v{vTMP+1}, v{vTMP+1}, v{vTMP+2}")
    a(f"v_bfe_u32 v{vTMP+2}, v0, 5, 1")
    a(f"v_lshl_add_u32 v{vTMP+2}, v{vTMP+2}, 8, v{vTMP+1}")
    a(f"buffer_store_dwordx4 {vr(vP, 4)}, v{vTMP+2}, s[{SRD_WS}:{SRD_WS+3}], s{sOM} offen")
    a(f"s_mov_b64 exec, s[{sLO}:{sLO+1}]")
    a(f"buffer_store_dwordx2 {vr(vP + 4, 2)}, v{vTMP+1}, s[{SRD_WS}:{SRD_WS+3}], s{sOB} offen")
    if ST.on:
        a("s_mov_b64 exec, -1")
        a("s_waitcnt vmcnt(0)")
    ST(a, "end")
    ST.store(a, sW, SRD_WS)
    a("s_endpgm")

def safe_path(a):
    vM, vMN, vAL = vTMP, vTMP + 1, vTMP + 2
    vA1, vA2, vA3 = vTMP + 4, vTMP + 5, vTMP + 6
    ws = f"s[{SRD_WS}:{SRD_WS+3}]"
    s = vS[0]
    a(f"v_and_b32 v{vA2}, 31, v0")
    a(f"v_lshlrev_b32 v{vA2}, 3, v{vA2}")
    a(f"v_mov_b32 v{vA3}, v{vV[0]}")
    a(f"v_mov_b32 v{vM}, 0xff7fffff")
    for r in range(16):
        a(f"v_mov_b32 v{vO + r}, 0")
    a(f"s_mul_i32 s{sT}, s{sW}, 2560")
    a(f"s_sub_u32 s{sT}, s{sKV}, s{sT}")
    a("s_mov_b32 s15, 64")
    a.label("L_safe_loop")
    a(f"buffer_load_dwordx4 {vr(vKAf[0], 4)}, v{vLANE16}, {ws}, s{sT} offen")
    a(f"buffer_load_dwordx2 {vr(vKBf[0], 2)}, v{vA2}, {ws}, s{sT} offen offset:1024")
    a(f"s_mov_b64 exec, s[{sVMASK}:{sVMASK+1}]")
    a(f"buffer_load_dwordx4 {vr(vVf[0][0], 4)}, v{vA3}, {ws}, s{sT} offen")
    a(f"buffer_load_dwordx4 {vr(vVf[0][1], 4)}, v{vA3}, {ws}, s{sT} offen offset:640")
    a("s_mov_b64 exec, -1")
    a("s_waitcnt vmcnt(0)")
    mfma_s1(a, s, 0, "0")
    mfma_s2(a, s, 0)
    a("s_nop 15")
    a("s_nop 3")
    row_max(a, s, vMN, vAL)
    a(f"v_max_f32 v{vMN}, v{vMN}, v{vM}")
    a(f"v_sub_f32 v{vAL}, v{vM}, v{vMN}")
    a(f"v_exp_f32 v{vAL}, v{vAL}")
    a(f"v_mov_b32 v{vM}, v{vMN}")
    for r in range(16):
        a(f"v_sub_f32 v{s + r}, v{s + r}, v{vMN}")
    for r in range(16):
        a(f"v_exp_f32 v{s + r}, v{s + r}")
    for r in range(16):
        a(f"v_mul_f32 v{vO + r}, v{vO + r}, v{vAL}")
    for i in range(8):
        a(f"v_cvt_pk_bf16_f32 v{vP + i}, v{s + 2 * i}, v{s + 2 * i + 1}")
    a("s_nop 1")
    mfma_pv(a, 0, 0)
    mfma_pv(a, 0, 1)
    a(f"s_add_u32 s{sT}, s{sT}, 2560")
    a("s_sub_u32 s15, s15, 1")
    a("s_nop 15")
    a("s_nop 3")
    a("s_cmp_lg_u32 s15, 0")
    a("s_cbranch_scc1 L_safe_loop")

def gen(a, moe=None):
    kernel_header(a, NAME)
    a("s_cmp_ge_u32 s2, 256")
    a("s_cbranch_scc1 L_moe_entry")
    attention(a)
    a.label("L_moe_entry")
    if moe is not None:
        moe(a)
    a("s_endpgm")

def emit(a):
    try:
        from k2moe import moe
    except ImportError:
        moe = None
    gen(a, moe)
```

```python
from common import *
import os

NWG = 96
GRID = 256 + NWG
L_WG, L_WU, L_WD, L_X, L_RED = 0, 20480, 40960, 61440, 65280

def top2_scalar(a, base, b1, b2, t):
    a(f"s_max_u32 s{b1}, s{base}, s{base+1}")
    a(f"s_min_u32 s{b2}, s{base}, s{base+1}")
    for i in range(2, 32):
        a(f"s_min_u32 s{t}, s{b1}, s{base+i}")
        a(f"s_max_u32 s{b2}, s{b2}, s{t}")
        a(f"s_max_u32 s{b1}, s{b1}, s{base+i}")

def moe(a):
    from k2 import ST
    SRD_WS, SRD_X, SRD_G, SRD_U, SRD_D = 8, 12, 16, 20, 24
    sW, sM, sT0, sT1, sT2 = 28, 29, 30, 31, 32
    sB1, sB2 = 33, 34
    sCAND = 64
    vLANE, vL16, vT = 1, 2, 3
    a(f"s_cmp_ge_u32 s2, {GRID}")
    a("s_cbranch_scc1 L_moe_exit")
    ST(a, "entry")
    a("s_load_dwordx2 s[4:5], s[0:1], 80")
    a("s_load_dwordx2 s[6:7], s[0:1], 0")
    a("s_load_dwordx4 s[36:39], s[0:1], 40")
    a("s_load_dwordx2 s[40:41], s[0:1], 56")
    a(f"v_lshrrev_b32 v{vT}, 6, v0")
    a(f"v_and_b32 v{vLANE}, 63, v0")
    a(f"v_readfirstlane_b32 s{sW}, v{vT}")
    a(f"v_lshlrev_b32 v{vL16}, 4, v{vLANE}")
    a(f"s_sub_u32 s{sT0}, s2, 256")
    a(f"s_and_b32 s{sM}, s{sT0}, 7")
    a(f"s_mul_i32 s{sM}, s{sM}, 12")
    a(f"s_lshr_b32 s{sT0}, s{sT0}, 3")
    a(f"s_add_u32 s{sM}, s{sM}, s{sT0}")
    a("s_waitcnt lgkmcnt(0)")
    srd(a, SRD_WS, 4, WS_SRD)
    srd(a, SRD_X, 6, X_BYTES)
    srd(a, SRD_G, 36, WG_BYTES)
    srd(a, SRD_U, 38, WG_BYTES)
    srd(a, SRD_D, 40, WD_BYTES)
    a(f"s_add_u32 s42, s4, {CAND_OFF}")
    a("s_addc_u32 s43, s5, 0")
    a(f"s_load_dwordx16 s[{sCAND}:{sCAND+15}], s[42:43], 0")
    a(f"s_load_dwordx16 s[{sCAND+16}:{sCAND+31}], s[42:43], 64")
    a("s_waitcnt lgkmcnt(0)")
    top2_scalar(a, sCAND, sB1, sB2, sT0)
    a(f"s_and_b32 s{sB1}, s{sB1}, 0x7ff")
    a(f"s_and_b32 s{sB2}, s{sB2}, 0x7ff")
    for k, sB in ((0, sB1), (1, sB2)):
        a(f"s_lshl_b32 s{sT0}, s{sB}, 3")
        a(f"s_add_u32 s42, s4, s{sT0}")
        a("s_addc_u32 s43, s5, 0")
        a(f"s_add_u32 s42, s42, {ST_OFF}")
        a("s_addc_u32 s43, s43, 0")
        a(f"s_load_dwordx2 s[{44 + 2 * k}:{45 + 2 * k}], s[42:43], 0")
    a(f"s_cmp_lg_u32 s{sW}, 7")
    a("s_cbranch_scc1 L_moe_norow")
    for k, sB in ((0, sB1), (1, sB2)):
        a(f"s_mul_i32 s{sT0}, s{sB}, 1280")
        a(f"s_mov_b32 m0, {L_X + 1280 * k}")
        a("s_nop 0")
        a(f"buffer_load_dwordx4 v{vL16}, s[{SRD_X}:{SRD_X+3}], s{sT0} offen lds")
        a("s_mov_b64 exec, 0xffff")
        a(f"buffer_load_dwordx4 v{vL16}, s[{SRD_X}:{SRD_X+3}], s{sT0} offen offset:1024 lds")
        a("s_mov_b64 exec, -1")
    a.label("L_moe_norow")
    a(f"s_cmp_lg_u32 s{sW}, 6")
    a("s_cbranch_scc1 L_moe_noone")
    for r in range(4):
        a(f"v_mov_b32 v{8 + r}, 0x3f803f80")
    a(f"v_add_u32 v{vT}, {L_X + 2560}, v{vL16}")
    a(f"ds_write_b128 v{vT}, v[8:11]")
    a("s_mov_b64 exec, 0xffff")
    a(f"ds_write_b128 v{vT}, v[8:11] offset:1024")
    a("s_mov_b64 exec, -1")
    a.label("L_moe_noone")
    if "nomoe" in os.environ.get("K2_EXP", ""):
        a("s_branch L_moe_dma_done")
    vG = 4
    a(f"v_lshrrev_b32 v{vT}, 1, v{vLANE}")
    a(f"v_mul_u32_u24 v{vG}, 3072, v{vT}")
    a(f"v_and_b32 v{vT}, 1, v{vLANE}")
    a(f"v_lshl_add_u32 v{vG}, v{vT}, 4, v{vG}")
    for i in range(3):
        if i == 2:
            a(f"s_cmp_ge_u32 s{sW}, 4")
            a("s_cbranch_scc1 L_moe_dma_done")
        a(f"s_add_u32 s{sT0}, s{sW}, {8 * i}")
        a(f"s_mul_i32 s{sT1}, s{sT0}, {32 * 3072}")
        a(f"s_lshl_b32 s{sT2}, s{sM}, 5")
        a(f"s_add_u32 s{sT1}, s{sT1}, s{sT2}")
        a(f"s_lshl_b32 s{sT0}, s{sT0}, 10")
        if "moelin" in os.environ.get("K2_EXP", ""):
            a(f"s_mul_i32 s{sT1}, s{sM}, 20480")
            a(f"s_add_u32 s{sT1}, s{sT1}, s{sT0}")
            a(f"v_mov_b32 v{vG}, v{vL16}")
        a(f"s_add_u32 m0, s{sT0}, {L_WG}")
        a(f"s_mul_i32 s{sT2}, s{sM}, {16 * 1280}")
        a(f"buffer_load_dwordx4 v{vG}, s[{SRD_G}:{SRD_G+3}], s{sT1} offen lds")
        a(f"s_add_u32 m0, s{sT0}, {L_WU}")
        a(f"s_add_u32 s{sT2}, s{sT2}, s{sT0}")
        a(f"buffer_load_dwordx4 v{vG}, s[{SRD_U}:{SRD_U+3}], s{sT1} offen lds")
        a(f"s_add_u32 m0, s{sT0}, {L_WD}")
        a("s_nop 0")
        a(f"buffer_load_dwordx4 v{vL16}, s[{SRD_D}:{SRD_D+3}], s{sT2} offen lds")
    a.label("L_moe_dma_done")
    a("s_waitcnt vmcnt(0) lgkmcnt(0)")
    a("s_barrier")
    a(f"s_cmp_ge_u32 s{sW}, 4")
    a("s_cbranch_scc1 L_moe_exit")
    a(f"s_cmp_ge_u32 s{sW}, 2")
    a("s_cbranch_scc1 L_moe_down_wait")
    vWA, vXA, vF, vACC = 5, 6, 12, 40
    a(f"v_lshrrev_b32 v{vT}, 4, v{vLANE}")
    a(f"v_bfe_u32 v7, v{vLANE}, 2, 2")
    a(f"v_lshl_add_u32 v{vWA}, v{vT}, 3, v7")
    a(f"v_lshlrev_b32 v{vWA}, 5, v{vWA}")
    a(f"v_and_b32 v7, 3, v{vLANE}")
    a(f"v_lshl_add_u32 v{vWA}, v7, 3, v{vWA}")
    a(f"s_mul_i32 s{sT0}, s{sW}, {L_WU}")
    a(f"v_add_u32 v{vWA}, s{sT0}, v{vWA}")
    a(f"v_min_u32 v{vXA}, 2, v7")
    a(f"v_mul_u32_u24 v{vXA}, 1280, v{vXA}")
    a(f"v_lshl_add_u32 v{vXA}, v{vT}, 4, v{vXA}")
    a(f"v_add_u32 v{vXA}, {L_X}, v{vXA}")
    def rd(s_):
        f = vF + 8 * (s_ % 3)
        a(f"ds_read_b64_tr_b16 {vr(f, 2)}, v{vWA} offset:{s_ * 1024}")
        a(f"ds_read_b64_tr_b16 {vr(f + 2, 2)}, v{vWA} offset:{s_ * 1024 + 128}")
        a(f"ds_read_b128 {vr(f + 4, 4)}, v{vXA} offset:{s_ * 64}")
    rd(0); rd(1)
    for s_ in range(20):
        f = vF + 8 * (s_ % 3)
        if s_ + 2 < 20:
            rd(s_ + 2)
            a("s_waitcnt lgkmcnt(6)")
        else:
            a(f"s_waitcnt lgkmcnt({3 * (19 - s_)})")
        c = "0" if s_ == 0 else vr(vACC, 4)
        a(f"v_mfma_f32_16x16x32_bf16 {vr(vACC, 4)}, {vr(f, 4)}, {vr(f + 4, 4)}, {c}")
    a(f"v_and_b32 v7, 15, v{vLANE}")
    a("v_cmp_eq_u32 vcc, 0, v7")
    a("v_mov_b32 v8, s46")
    a("v_mov_b32 v9, s47")
    a("v_mov_b32 v10, s44")
    a("v_mov_b32 v11, s45")
    a("v_cndmask_b32 v8, v8, v10, vcc")
    a("v_cndmask_b32 v9, v9, v11, vcc")
    a("s_nop 1")
    for r in range(4):
        a(f"v_mov_b32_dpp v{44 + r}, v{vACC + r} quad_perm:[2,2,2,2] row_mask:0xf bank_mask:0xf")
    for r in range(4):
        a(f"v_fma_f32 v{vACC + r}, -v8, v{44 + r}, v{vACC + r}")
    for r in range(4):
        a(f"v_mul_f32 v{vACC + r}, v{vACC + r}, v9")
    a(f"v_add_u32 v{vT}, {L_RED}, v{vL16}")
    a(f"s_cmp_eq_u32 s{sW}, 0")
    a("s_cbranch_scc1 L_moe_gate")
    a(f"ds_write_b128 v{vT}, {vr(vACC, 4)}")
    a("s_waitcnt lgkmcnt(0)")
    a("s_barrier")
    a("s_endpgm")
    a.label("L_moe_gate")
    a("s_barrier")
    a(f"ds_read_b128 v[44:47], v{vT}")
    for r in range(4):
        a(f"v_mul_f32 v{48 + r}, {hex(f2u(-LOG2E))}, v{vACC + r}")
    for r in range(4):
        a(f"v_exp_f32 v{48 + r}, v{48 + r}")
    for r in range(4):
        a(f"v_add_f32 v{48 + r}, 1.0, v{48 + r}")
    for r in range(4):
        a(f"v_rcp_f32 v{48 + r}, v{48 + r}")
    a("s_waitcnt lgkmcnt(0)")
    for r in range(4):
        a(f"v_mul_f32 v{vACC + r}, v{vACC + r}, v{44 + r}")
    for r in range(4):
        a(f"v_mul_f32 v{vACC + r}, v{vACC + r}, v{48 + r}")
    a(f"v_cvt_pk_bf16_f32 v44, v{vACC}, v{vACC+1}")
    a(f"v_cvt_pk_bf16_f32 v45, v{vACC+2}, v{vACC+3}")
    a(f"v_lshlrev_b32 v{vT}, 3, v{vLANE}")
    a(f"v_add_u32 v{vT}, {L_RED + 1024}, v{vT}")
    a(f"ds_write_b64 v{vT}, v[44:45]")
    a("s_waitcnt lgkmcnt(0)")
    a("s_barrier")
    a("s_endpgm")
    a.label("L_moe_down_wait")
    vDA, vYO, vH = 5, 6, 8
    a(f"v_lshrrev_b32 v{vT}, 4, v{vLANE}")
    a(f"v_bfe_u32 v7, v{vLANE}, 2, 2")
    a(f"v_lshl_add_u32 v{vDA}, v{vT}, 2, v7")
    a(f"v_mul_u32_u24 v{vDA}, 1280, v{vDA}")
    a(f"v_and_b32 v7, 3, v{vLANE}")
    a(f"v_lshl_add_u32 v{vDA}, v7, 3, v{vDA}")
    a(f"s_sub_u32 s{sT2}, s{sW}, 2")
    a(f"s_mul_i32 s{sT0}, s{sT2}, 640")
    a(f"s_add_u32 s{sT1}, s{sT0}, {L_WD}")
    a(f"v_add_u32 v{vDA}, s{sT1}, v{vDA}")
    a(f"v_and_b32 v7, 15, v{vLANE}")
    a(f"v_mul_u32_u24 v{vYO}, 2560, v7")
    a(f"v_lshl_add_u32 v{vYO}, v{vT}, 4, v{vYO}")
    a("v_cmp_gt_u32 vcc, 2, v7")
    a(f"s_mul_i32 s{sT0}, s{sM}, 5120")
    a(f"s_mul_i32 s{sT1}, s{sT2}, 1280")
    a(f"s_add_u32 s{sT0}, s{sT0}, s{sT1}")
    a(f"s_add_u32 s{sT0}, s{sT0}, {YP_OFF}")
    a("s_mov_b64 s[48:49], vcc")
    for nt in range(20):
        a(f"ds_read_b64_tr_b16 {vr(12 + 2 * nt, 2)}, v{vDA} offset:{32 * nt}")
        if nt == 14:
            a("s_waitcnt lgkmcnt(8)")
    a(f"v_lshlrev_b32 v{vT}, 3, v{vLANE}")
    a(f"v_add_u32 v{vT}, {L_RED + 1024}, v{vT}")
    a("s_barrier")
    a("s_barrier")
    a(f"ds_read_b64 {vr(vH, 2)}, v{vT}")
    a("s_waitcnt lgkmcnt(0)")
    for half in range(2):
        for k in range(10):
            nt = 10 * half + k
            a(f"v_mfma_f32_16x16x16bf16_1k {vr(52 + 4 * k, 4)}, {vr(12 + 2 * nt, 2)}, {vr(vH, 2)}, 0")
        a("s_nop 7")
        a("s_nop 1")
        a("s_mov_b64 exec, s[48:49]")
        for k in range(10):
            a(f"buffer_store_dwordx4 {vr(52 + 4 * k, 4)}, v{vYO}, s[{SRD_WS}:{SRD_WS+3}], s{sT0} offen offset:{64 * (10 * half + k)}")
        a("s_mov_b64 exec, -1")
        if half == 0:
            a("s_nop 1")
    if ST.on:
        a("s_waitcnt vmcnt(0)")
    ST(a, "end")
    ST.store(a, sW, SRD_WS)
    a.label("L_moe_exit")

def repack(a, sW, sIDX, exit_label):
    SRD_WS, SRD_WO = 16, 44
    sNT, sKH, sT0, sT1 = 48, 49, 24, 25
    vLANE, vG, vT, vWD, vWA, vWT, vL16 = 1, 2, 4, 8, 13, 14, 15
    a("s_load_dwordx2 s[6:7], s[0:1], 16")
    a(f"s_lshr_b32 s{sNT}, s{sIDX}, 1")
    a(f"s_and_b32 s{sKH}, s{sIDX}, 1")
    a(f"v_lshrrev_b32 v{vG}, 4, v{vLANE}")
    a(f"v_lshlrev_b32 v{vL16}, 4, v{vLANE}")
    for r5 in range(5):
        a(f"v_add_u32 v{vT}, {r5 * 1024}, v{vL16}")
        a(f"v_mul_u32_u24 v{vT+1}, 52429, v{vT}")
        a(f"v_lshrrev_b32 v{vT+1}, 23, v{vT+1}")
        a(f"v_mul_u32_u24 v{vT+2}, 160, v{vT+1}")
        a(f"v_sub_u32 v{vT+2}, v{vT}, v{vT+2}")
        a(f"v_mul_u32_u24 v{vT+1}, 1280, v{vT+1}")
        a(f"v_add_u32 v{vWD + r5}, v{vT+1}, v{vT+2}")
    a("s_waitcnt lgkmcnt(0)")
    srd(a, SRD_WO, 6, WO_BYTES)
    a(f"s_mul_i32 s{sT0}, s{sKH}, {320 * 1280}")
    a(f"s_mul_i32 s{sT1}, s{sNT}, 160")
    a(f"s_add_u32 s26, s{sT0}, s{sT1}")
    for rnd in range(2):
        if rnd == 1:
            a(f"s_cmp_ge_u32 s{sW}, 2")
            a("s_cbranch_scc1 L_rep_loaded")
        a(f"s_add_u32 s{sT0}, s{sW}, {8 * rnd}")
        a(f"s_mul_i32 s27, s{sT0}, {32 * 1280}")
        a("s_add_u32 s27, s27, s26")
        a(f"s_mul_i32 s28, s{sT0}, 5120")
        for r5 in range(5):
            a(f"s_add_u32 m0, s28, {r5 * 1024}")
            a("s_nop 0")
            a(f"buffer_load_dwordx4 v{vWD + r5}, s[{SRD_WO}:{SRD_WO+3}], s27 offen lds")
    a.label("L_rep_loaded")
    a(f"v_bfe_u32 v{vT}, v{vLANE}, 2, 2")
    a(f"v_and_b32 v{vT+1}, 3, v{vLANE}")
    a(f"v_lshrrev_b32 v{vT+2}, 1, v{vG}")
    a(f"v_mul_u32_u24 v{vT+2}, 20, v{vT+2}")
    a(f"v_and_b32 v{vT+3}, 1, v{vG}")
    a(f"v_lshl_add_u32 v{vT+2}, v{vT+3}, 2, v{vT+2}")
    a(f"v_add_u32 v{vT+2}, v{vT+2}, v{vT}")
    a(f"v_mul_u32_u24 v{vWA}, 160, v{vT+2}")
    a(f"v_lshl_add_u32 v{vWA}, v{vT+1}, 3, v{vWA}")
    a(f"v_mul_u32_u24 v{vT+2}, 20, v{vG}")
    a(f"v_add3_u32 v{vT+2}, v{vT+2}, v{vT}, 16")
    a(f"v_mul_u32_u24 v{vWT}, 160, v{vT+2}")
    a(f"v_lshl_add_u32 v{vWT}, v{vT+1}, 3, v{vWT}")
    a(f"s_lshl_b32 s{sT0}, s{sW}, 5")
    a(f"v_add_u32 v{vWA}, s{sT0}, v{vWA}")
    a(f"v_add_u32 v{vWT}, s{sT0}, v{vWT}")
    a(f"s_mul_i32 s{sT0}, s{sNT}, 20")
    a(f"s_mul_i32 s{sT1}, s{sKH}, 10")
    a(f"s_add_u32 s{sT0}, s{sT0}, s{sT1}")
    a(f"s_mul_i32 s{sT0}, s{sT0}, 5")
    a(f"s_add_u32 s{sT0}, s{sT0}, s{sW}")
    a(f"s_lshl_b32 s{sT0}, s{sT0}, 10")
    a(f"s_add_u32 s29, s{sT0}, {WO2_OFF}")
    a("s_waitcnt vmcnt(0)")
    a("s_barrier")
    a(f"s_cmp_ge_u32 s{sW}, 5")
    a(f"s_cbranch_scc1 {exit_label}")
    for st in range(10):
        G8, s_ = st // 5, st % 5
        f = 16 + 4 * st
        if s_ < 4:
            base = (160 * G8 + 40 * s_) * 160
            a(f"ds_read_b64_tr_b16 {vr(f, 2)}, v{vWA} offset:{base}")
            a(f"ds_read_b64_tr_b16 {vr(f + 2, 2)}, v{vWA} offset:{base + 8 * 160}")
        else:
            base = 160 * G8 * 160
            a(f"ds_read_b64_tr_b16 {vr(f, 2)}, v{vWT} offset:{base}")
            a(f"ds_read_b64_tr_b16 {vr(f + 2, 2)}, v{vWT} offset:{base + 80 * 160}")
    a("s_waitcnt lgkmcnt(0)")
    for st in range(10):
        a(f"s_add_u32 s{sT0}, s29, {st * 5120}")
        a(f"buffer_store_dwordx4 {vr(16 + 4 * st, 4)}, v{vL16}, s[{SRD_WS}:{SRD_WS+3}], s{sT0} offen")
    a("s_endpgm")
```

```python
from common import *
from k2moe import top2_scalar, NWG

NAME = "proj_kernel"
L_RED, L_Y = 102400, 102400 + 3840
LDS = L_Y + 320
VGPRS = 232
BLOCK = 256

SRD_WS, SRD_X, SRD_OUT = 8, 12, 16
sW, sMT, sNT, sT0, sT1, sT2, sT3 = 24, 25, 26, 27, 28, 29, 30
sB1, sB2 = 31, 32
sOB, sWO, sL = 33, 44, 45
sCAND = 64
vLANE, vTOK, vG = 1, 2, 3
vT = 4
vL16, vL16H = 8, 9
vXO = 10
vTOKG = 11
vST = 12
vX = 14
vACC = 24
vWF = (44, 64)
vO = 84
vY = (164, 196)

ST = Stamps("k3")

def emit(a):
    kernel_header(a, NAME)
    ST(a, "entry")
    a("s_cmp_ge_u32 s2, 256")
    a("s_cbranch_scc1 L_k3_exit")
    a("s_load_dwordx2 s[4:5], s[0:1], 80")
    a("s_load_dwordx2 s[6:7], s[0:1], 0")
    a("s_load_dwordx2 s[36:37], s[0:1], 64")
    a(f"v_lshrrev_b32 v{vT}, 6, v0")
    a(f"v_and_b32 v{vLANE}, 63, v0")
    a(f"v_readfirstlane_b32 s{sW}, v{vT}")
    a(f"s_and_b32 s{sT0}, s2, 7")
    a(f"s_lshl_b32 s{sT0}, s{sT0}, 2")
    a(f"s_bfe_u32 s{sT1}, s2, 0x20003")
    a(f"s_or_b32 s{sMT}, s{sT0}, s{sT1}")
    a(f"s_lshr_b32 s{sNT}, s2, 5")
    a(f"v_lshlrev_b32 v{vL16}, 4, v{vLANE}")
    a(f"s_lshl_b32 s{sT0}, s{sMT}, 2")
    a(f"s_add_u32 s{sT0}, s{sT0}, s{sW}")
    a(f"s_mul_i32 s{sOB}, s{sT0}, 20480")
    a(f"s_add_u32 s{sOB}, s{sOB}, {OB_OFF}")
    a(f"s_mul_i32 s{sWO}, s{sNT}, 102400")
    a(f"s_mul_i32 s{sL}, s{sW}, 5120")
    a(f"s_add_u32 s{sWO}, s{sWO}, s{sL}")
    a(f"s_add_u32 s{sWO}, s{sWO}, {WO2_OFF}")
    a("s_waitcnt lgkmcnt(0)")
    srd(a, SRD_WS, 4, WS_SRD)
    ws = f"s[{SRD_WS}:{SRD_WS+3}]"
    a(f"s_add_u32 s38, s4, {CAND_OFF}")
    a("s_addc_u32 s39, s5, 0")
    a(f"s_load_dwordx16 s[{sCAND}:{sCAND+15}], s[38:39], 0")
    a(f"s_load_dwordx16 s[{sCAND+16}:{sCAND+31}], s[38:39], 64")
    for B in range(5):
        a(f"s_add_u32 s{sT0}, s{sWO}, {B * 20480}")
        a(f"s_add_u32 m0, s{sL}, {B * 20480}")
        a(f"s_add_u32 s{sT1}, s{sOB}, {B * 4096}")
        for j in range(4):
            a(f"buffer_load_dwordx4 v{vL16}, {ws}, s{sT0} offen offset:{1024 * j} lds")
        a(f"s_add_u32 m0, s{sL}, {B * 20480 + 4096}")
        a(f"s_add_u32 s{sT0}, s{sT0}, 4096")
        a(f"buffer_load_dwordx4 v{vL16}, {ws}, s{sT0} offen lds")
        for k in range(4):
            a(f"buffer_load_dwordx4 {vr(vO + 16 * B + 4 * k, 4)}, v{vL16}, {ws}, s{sT1} offen offset:{1024 * k}")
    srd(a, SRD_X, 6, X_BYTES)
    srd(a, SRD_OUT, 36, X_BYTES)
    a(f"v_and_b32 v{vTOK}, 15, v{vLANE}")
    a(f"v_lshrrev_b32 v{vG}, 4, v{vLANE}")
    a(f"s_lshl_b32 s{sT0}, s{sMT}, 6")
    a(f"s_lshl_b32 s{sT1}, s{sW}, 4")
    a(f"s_add_u32 s{sT0}, s{sT0}, s{sT1}")
    a(f"v_add_u32 v{vTOKG}, s{sT0}, v{vTOK}")
    a(f"v_mul_u32_u24 v{vXO}, 1280, v{vTOKG}")
    a(f"v_lshl_add_u32 v{vXO}, v{vG}, 3, v{vXO}")
    a(f"s_mul_i32 s{sT1}, s{sNT}, 160")
    a(f"v_add_u32 v{vXO}, s{sT1}, v{vXO}")
    a(f"v_lshlrev_b32 v{vT+1}, 3, v{vTOKG}")
    a(f"s_mov_b32 s{sT0}, {ST_OFF}")
    a(f"buffer_load_dwordx2 {vr(vST, 2)}, v{vT+1}, {ws}, s{sT0} offen")
    for j in range(5):
        a(f"buffer_load_dwordx2 {vr(vX + 2 * j, 2)}, v{vXO}, s[{SRD_X}:{SRD_X+3}], 0 offen offset:{32 * j}")
    a(f"v_add_u32 v{vL16H}, 51200, v{vL16}")
    for r in range(20):
        a(f"v_mov_b32 v{vACC + r}, 0")
    a("s_waitcnt lgkmcnt(0)")
    top2_scalar(a, sCAND, sB1, sB2, sT0)
    a(f"s_and_b32 s{sB1}, s{sB1}, 0x7ff")
    a(f"s_and_b32 s{sB2}, s{sB2}, 0x7ff")
    for sel, sB in ((0, sB1), (1, sB2)):
        lab = f"L_k3_nopre{sel}"
        a(f"s_lshr_b32 s{sT0}, s{sB}, 6")
        a(f"s_cmp_lg_u32 s{sT0}, s{sMT}")
        a(f"s_cbranch_scc1 {lab}")
        route_loads(a, sel, sB)
        a.label(lab)
    ST(a, "issued")
    def reads(st):
        f = vWF[st & 1]
        off = st * 5120
        reg, off = (vL16, off) if off < 51200 else (vL16H, off - 51200)
        for j in range(5):
            a(f"ds_read_b128 {vr(f + 4 * j, 4)}, v{reg} offset:{off + 1024 * j}")
    def mfmas(st):
        f = vWF[st & 1]
        for j in range(5):
            a(f"v_mfma_f32_16x16x32_bf16 {vr(vACC + 4 * j, 4)}, {vr(f + 4 * j, 4)}, {vr(vO + 4 * st, 4)}, {vr(vACC + 4 * j, 4)}")
    for B in range(5):
        a(f"s_waitcnt vmcnt({51 - 9 * (B + 1)})")
        a("s_barrier")
        ST(a, f"B{B}")
        reads(4 * B)
        for k in range(4):
            st = 4 * B + k
            if k < 3:
                reads(st + 1)
                a("s_waitcnt lgkmcnt(5)")
            else:
                a("s_waitcnt lgkmcnt(0)")
            mfmas(st)
    ST(a, "gemm")
    a("s_waitcnt vmcnt(0)")
    for sel, sB in ((0, sB1), (1, sB2)):
        lab = f"L_k3_nosel{sel}"
        a(f"s_lshr_b32 s{sT0}, s{sB}, 6")
        a(f"s_cmp_lg_u32 s{sT0}, s{sMT}")
        a(f"s_cbranch_scc1 {lab}")
        route(a, sel, sB)
        a.label(lab)
    a("s_nop 7")
    a(f"v_add_f32 v{vT}, 1.0, v{vST+1}")
    a(f"v_mul_f32 v{vT+1}, v{vST}, v{vST+1}")
    for j in range(5):
        for i in range(2):
            a(f"v_lshlrev_b32 v{vT+2}, 16, v{vX + 2 * j + i}")
            a(f"v_and_b32 v{vT+3}, 0xffff0000, v{vX + 2 * j + i}")
            a(f"v_fma_f32 v{vT+2}, v{vT+2}, v{vT}, -v{vT+1}")
            a(f"v_fma_f32 v{vT+3}, v{vT+3}, v{vT}, -v{vT+1}")
            a(f"v_add_f32 v{vT+2}, v{vT+2}, v{vACC + 4 * j + 2 * i}")
            a(f"v_add_f32 v{vT+3}, v{vT+3}, v{vACC + 4 * j + 2 * i + 1}")
            a(f"v_cvt_pk_bf16_f32 v{vX + 2 * j + i}, v{vT+2}, v{vT+3}")
        a(f"buffer_store_dwordx2 {vr(vX + 2 * j, 2)}, v{vXO}, s[{SRD_OUT}:{SRD_OUT+3}], 0 offen offset:{32 * j}")
    ST(a, "stores")
    if ST.on:
        a("s_waitcnt vmcnt(0)")
    ST(a, "end")
    ST.store(a, sW, SRD_WS)
    a.label("L_k3_exit")
    a("s_endpgm")

def route_loads(a, sel, sB):
    ws = f"s[{SRD_WS}:{SRD_WS+3}]"
    a(f"s_lshl_b32 s{sT0}, s{sB}, 2")
    a(f"s_add_u32 s38, s4, s{sT0}")
    a("s_addc_u32 s39, s5, 0")
    a(f"s_add_u32 s38, s38, {R_OFF}")
    a("s_addc_u32 s39, s39, 0")
    a(f"s_load_dword s{40 + sel}, s[38:39], 0")
    a(f"v_mul_u32_u24 v{vT}, 52429, v0")
    a(f"v_lshrrev_b32 v{vT}, 20, v{vT}")
    a(f"v_mul_u32_u24 v{vT+1}, 20, v{vT}")
    a(f"v_sub_u32 v{vT+1}, v0, v{vT+1}")
    a(f"v_mul_u32_u24 v{vT+2}, {8 * 5120}, v{vT}")
    a(f"v_lshl_add_u32 v{vT+2}, v{vT+1}, 4, v{vT+2}")
    a(f"s_mul_i32 s{sT0}, s{sNT}, 320")
    a(f"s_add_u32 s{sT0}, s{sT0}, {YP_OFF + sel * 2560}")
    a(f"v_cmp_gt_u32 vcc, 240, v0")
    a("s_and_saveexec_b64 s[42:43], vcc")
    for i in range(8):
        a(f"s_add_u32 s{sT1}, s{sT0}, {i * 5120}")
        a(f"buffer_load_dwordx4 {vr(vY[sel] + 4 * i, 4)}, v{vT+2}, {ws}, s{sT1} offen")
    a("s_mov_b64 exec, s[42:43]")

def route(a, sel, sB):
    y = vY[sel]
    for i in range(1, 8):
        for r in range(4):
            a(f"v_add_f32 v{y + r}, v{y + r}, v{y + 4 * i + r}")
    a(f"v_mul_u32_u24 v{vT}, 52429, v0")
    a(f"v_lshrrev_b32 v{vT}, 20, v{vT}")
    a(f"v_mul_u32_u24 v{vT+1}, 20, v{vT}")
    a(f"v_sub_u32 v{vT+1}, v0, v{vT+1}")
    a(f"v_mul_u32_u24 v{vT}, 320, v{vT}")
    a(f"v_lshl_add_u32 v{vT}, v{vT+1}, 4, v{vT}")
    a(f"v_add_u32 v{vT}, {L_RED}, v{vT}")
    a(f"v_cmp_gt_u32 vcc, 240, v0")
    a("s_and_saveexec_b64 s[42:43], vcc")
    a(f"ds_write_b128 v{vT}, {vr(y, 4)}")
    a("s_mov_b64 exec, s[42:43]")
    a("s_waitcnt lgkmcnt(0)")
    a("s_barrier")
    a(f"v_lshlrev_b32 v{vT}, 2, v0")
    a(f"v_add_u32 v{vT+1}, {L_RED}, v{vT}")
    a(f"v_cmp_gt_u32 vcc, 80, v0")
    a("s_and_saveexec_b64 s[42:43], vcc")
    a(f"s_cbranch_execz L_k3_r{sel}")
    for p in range(12):
        a(f"ds_read_b32 v{y + 4 + p}, v{vT+1} offset:{320 * p}")
    a("s_waitcnt lgkmcnt(0)")
    for p in range(1, 12):
        a(f"v_add_f32 v{y + 4}, v{y + 4}, v{y + 4 + p}")
    a(f"v_add_u32 v{vT}, {L_Y}, v{vT}")
    a(f"ds_write_b32 v{vT}, v{y + 4}")
    a.label(f"L_k3_r{sel}")
    a("s_mov_b64 exec, s[42:43]")
    a("s_waitcnt lgkmcnt(0)")
    a("s_barrier")
    a(f"v_lshlrev_b32 v{vT}, 4, v{vG}")
    a(f"v_add_u32 v{vT}, {L_Y}, v{vT}")
    for j in range(5):
        a(f"ds_read_b128 {vr(y + 4 * j, 4)}, v{vT} offset:{64 * j}")
    a(f"v_mov_b32 v{vT+1}, s{40 + sel}")
    a(f"v_mul_f32 v{vT+1}, {hex(f2u(-LOG2E))}, v{vT+1}")
    a(f"v_exp_f32 v{vT+1}, v{vT+1}")
    a("s_nop 0")
    a(f"v_add_f32 v{vT+1}, 1.0, v{vT+1}")
    a(f"v_rcp_f32 v{vT+1}, v{vT+1}")
    a(f"v_cmp_eq_u32 vcc, s{sB}, v{vTOKG}")
    a("s_nop 1")
    a(f"v_cndmask_b32 v{vT+1}, 0, v{vT+1}, vcc")
    a("s_waitcnt lgkmcnt(0)")
    for j in range(5):
        for r in range(4):
            a(f"v_fma_f32 v{vACC + 4 * j + r}, v{y + 4 * j + r}, v{vT+1}, v{vACC + 4 * j + r}")
    a("s_barrier")
```

```python
S, D, H, DH, F = 2048, 640, 32, 20, 1536

QB_OFF = 0
KV_OFF = 32 * 64 * 1280
OB_OFF = KV_OFF + 32 * 64 * 2560
ST_OFF = OB_OFF + 32 * 64 * 1280
R_OFF = ST_OFF + 2048 * 8
CAND_OFF = R_OFF + 2048 * 4
YP_OFF = CAND_OFF + 256
WO2_OFF = YP_OFF + 96 * 2 * 640 * 4
CNT_OFF = WO2_OFF + 8 * 20 * 5 * 1024
WS_USED = CNT_OFF + 9 * 256
WS_SRD = (WS_USED + 0xFFFF) & ~0xFFFF

X_BYTES = S * D * 2
WQKV_BYTES = D * 3 * D * 2
WO_BYTES = D * D * 2
WG_BYTES = D * F * 2
WD_BYTES = F * D * 2

LOG2E = 1.4426950408889634
QSCALE = LOG2E * DH ** -0.5

import struct
def f2u(x):
    return struct.unpack("<I", struct.pack("<f", x))[0]

class Asm:
    def __init__(self):
        self.lines = []
    def __call__(self, s=""):
        for ln in s.split("\n"):
            self.lines.append(ln if ln.endswith(":") or ln.startswith(".") or not ln.strip() else "    " + ln.strip())
    def label(self, l):
        self.lines.append(l + ":")
    def text(self):
        return "\n".join(self.lines) + "\n"

def vr(a, n=1):
    return f"v{a}" if n == 1 else f"v[{a}:{a+n-1}]"
def sr(a, n=1):
    return f"s{a}" if n == 1 else f"s[{a}:{a+n-1}]"

def srd(a, dst, lo, nbytes):
    a(f"s_mov_b32 s{dst}, s{lo}")
    a(f"s_and_b32 s{dst+1}, s{lo+1}, 0xffff")
    a(f"s_mov_b32 s{dst+2}, {nbytes}")
    a(f"s_mov_b32 s{dst+3}, 0x00020000")

def kernel_header(a, name):
    a(f".globl {name}")
    a(".p2align 8")
    a(f".type {name},@function")
    a.label(name)

def kernel_desc(name, vgpr, sgpr=100):
    acc = (vgpr + 3) // 4 * 4
    return f""".amdhsa_kernel {name}
  .amdhsa_next_free_vgpr {vgpr}
  .amdhsa_next_free_sgpr {sgpr}
  .amdhsa_accum_offset {acc}
  .amdhsa_group_segment_fixed_size 0
  .amdhsa_kernarg_size 88
  .amdhsa_user_sgpr_count 2
  .amdhsa_user_sgpr_kernarg_segment_ptr 1
  .amdhsa_system_sgpr_workgroup_id_x 1
.end_amdhsa_kernel
"""

import os
PROF_OFF = 16 << 20
def prof_on(name):
    return name in os.environ.get("PROF", "").split(",")
class Stamps:
    def __init__(self, name, base=52):
        self.on = prof_on(name)
        self.off = PROF_OFF + {"k1": 0, "k2": 1 << 20, "k3": 2 << 20}[name]
        self.base = base
        self.names = []
    def __call__(self, a, label):
        if not self.on:
            return
        if label not in self.names:
            self.names.append(label)
        i = self.names.index(label)
        assert i < 12
        a(f"s_memtime s[{self.base + 4 * i}:{self.base + 4 * i + 1}]")
        a(f"s_memrealtime s[{self.base + 4 * i + 2}:{self.base + 4 * i + 3}]")
    def store(self, a, swave, srd_ws, vtmp=2):
        if not self.on:
            return
        a("s_mov_b64 exec, -1")
        a("s_waitcnt vmcnt(0) lgkmcnt(0)")
        a("s_lshl_b32 s50, s2, 4")
        a(f"s_add_u32 s50, s50, s{swave}")
        a("s_lshl_b32 s50, s50, 7")
        a(f"s_add_u32 s50, s50, {self.off}")
        a(f"s_mov_b32 s{srd_ws + 2}, 0x2000000")
        a(f"v_mov_b32 v{vtmp}, 0")
        for i in range(12):
            a(f"v_mov_b32 v{vtmp + 1}, s{self.base + 4 * i}")
            a(f"buffer_store_dword v{vtmp + 1}, v{vtmp}, s[{srd_ws}:{srd_ws + 3}], s50 offen offset:{4 * i}")
            a(f"v_mov_b32 v{vtmp + 1}, s{self.base + 4 * i + 2}")
            a(f"buffer_store_dword v{vtmp + 1}, v{vtmp}, s[{srd_ws}:{srd_ws + 3}], s50 offen offset:{64 + 4 * i}")
        a("s_waitcnt vmcnt(0)")


class StampsNow:
    def __init__(self, name, swave, srd_ws, vt):
        self.on = prof_on(name)
        self.off = PROF_OFF + {"k1": 0, "k2": 1 << 20, "k3": 2 << 20}[name]
        self.names, self.swave, self.srd, self.vt = [], swave, srd_ws, vt
        self.pending = []
    def __call__(self, a, label, defer=False):
        if not self.on:
            return
        if label not in self.names:
            self.names.append(label)
        i = self.names.index(label)
        assert i < 16
        if defer:
            a("s_memtime s[92:93]")
            a("s_memrealtime s[94:95]")
            self.pending.append(i)
            return
        a("s_memtime s[96:97]")
        a("s_memrealtime s[98:99]")
        self._store(a, i, 96, 98)
    def flush(self, a):
        if self.on:
            for i in self.pending:
                self._store(a, i, 92, 94)
    def _store(self, a, i, c, r):
        v = self.vt
        a("s_waitcnt lgkmcnt(0)")
        a(f"v_mov_b32 v{v}, s{c}")
        a(f"v_mov_b32 v{v+1}, s{r}")
        a(f"s_lshl_b32 s{c+1}, s2, 4")
        a(f"s_add_u32 s{c+1}, s{c+1}, s{self.swave}")
        a(f"s_lshl_b32 s{c+1}, s{c+1}, 7")
        a(f"s_add_u32 s{c+1}, s{c+1}, {self.off}")
        a(f"s_mov_b32 s{r+1}, s{self.srd + 2}")
        a(f"s_mov_b32 s{self.srd + 2}, 0x2000000")
        a(f"v_mov_b32 v{v+2}, 0")
        a(f"buffer_store_dword v{v}, v{v+2}, s[{self.srd}:{self.srd + 3}], s{c+1} offen offset:{4 * i}")
        a(f"buffer_store_dword v{v+1}, v{v+2}, s[{self.srd}:{self.srd + 3}], s{c+1} offen offset:{64 + 4 * i}")
        a(f"s_mov_b32 s{self.srd + 2}, s{r+1}")
```

```python
from common import *
import os

NAME = "qkv_kernel"
LDS = 131072 + 2048
VGPRS = 144
BLOCK = 768

SRD_X, SRD_W, SRD_WS = 8, 12, 16
sW, sMT, sNT = 20, 21, 22
sROW0 = 23
sT0, sT1, sT2, sT3 = 24, 25, 26, 27
sSEC, sHS, sTS, sSCALE = 28, 29, 30, 31
sTA, sTB = 32, 33
sWR, sWC = 34, 35
ST_NM, ST_RS, ST_CS = 131072, 131072 + 512, 131072 + 1024

vLANE, vTOK, vH = 1, 2, 3
vT = 4
vXA = 8
vXB = 12
vWA, vWB = 16, 17
vS1, vS2, vCS, vONE = 28, 29, 30, 31
vSEL = 136
vCSA = 140
vF = (32, 48)
vACC = 64
vOFF = 128
vE = 24

ST = Stamps("k1")
def X(flag):
    return flag in os.environ.get("K1_EXP", "").split(",")

def acc(a_, b_):
    return vACC + 32 * a_ + 16 * b_

def entry(a):
    kernel_header(a, NAME)
    ST(a, "entry")
    a("s_cmp_ge_u32 s2, 256")
    a("s_cbranch_scc1 L_k1_exit")
    a("s_load_dwordx4 s[4:7], s[0:1], 0")
    a("s_load_dwordx2 s[36:37], s[0:1], 80")
    a("s_load_dwordx2 s[38:39], s[0:1], 32")
    a(f"v_lshrrev_b32 v{vT}, 6, v0")
    a(f"v_and_b32 v{vLANE}, 63, v0")
    a(f"v_readfirstlane_b32 s{sW}, v{vT}")
    a(f"s_and_b32 s{sT0}, s2, 3")
    a(f"s_lshl_b32 s{sT0}, s{sT0}, 2")
    a(f"s_bfe_u32 s{sT1}, s2, 0x20003")
    a(f"s_or_b32 s{sMT}, s{sT0}, s{sT1}")
    a(f"s_bfe_u32 s{sT0}, s2, 0x10002")
    a(f"s_lshl_b32 s{sT0}, s{sT0}, 3")
    a(f"s_lshr_b32 s{sT1}, s2, 5")
    a(f"s_or_b32 s{sNT}, s{sT0}, s{sT1}")
    a(f"s_lshl_b32 s{sROW0}, s{sMT}, 7")
    a(f"v_and_b32 v{vTOK}, 31, v{vLANE}")
    a(f"v_lshrrev_b32 v{vH}, 5, v{vLANE}")
    a("s_waitcnt lgkmcnt(0)")
    srd(a, SRD_X, 4, X_BYTES)
    srd(a, SRD_W, 6, WQKV_BYTES)
    srd(a, SRD_WS, 36, WS_SRD)
    a(f"s_cmp_eq_u32 s{sNT}, 15")
    a("s_cbranch_scc1 L_k1_aux")
    a(f"s_cmp_ge_u32 s{sW}, 8")
    a("s_cbranch_scc1 L_k1_stat")
    a(f"s_cmp_ge_u32 s{sW}, 4")
    a("s_cbranch_scc1 L_k1_loader")

def loader(a):
    a.label("L_k1_loader")
    vX, vWt = 8, 9
    lw = sT0
    a(f"s_sub_u32 s{lw}, s{sW}, 4")
    a(f"v_lshrrev_b32 v{vT}, 3, v{vLANE}")
    a(f"s_lshl_b32 s{sT1}, s{lw}, 3")
    a(f"s_add_u32 s{sT1}, s{sT1}, s{sROW0}")
    a(f"v_add_u32 v{vT}, s{sT1}, v{vT}")
    a(f"v_mul_u32_u24 v{vT}, 1280, v{vT}")
    a(f"v_lshrrev_b32 v{vT+1}, 4, v{vLANE}")
    a(f"s_and_b32 s{sT1}, s{lw}, 1")
    a(f"s_lshl_b32 s{sT1}, s{sT1}, 2")
    a(f"v_add_u32 v{vT+2}, s{sT1}, v{vT+1}")
    a(f"v_and_b32 v{vT+3}, 7, v{vLANE}")
    a(f"v_xor_b32 v{vT+2}, v{vT+2}, v{vT+3}")
    a(f"v_lshl_add_u32 v{vX}, v{vT+2}, 4, v{vT}")
    a(f"s_lshl_b32 s{sT1}, s{lw}, 2")
    a(f"v_add_u32 v{vT}, s{sT1}, v{vT+1}")
    a(f"v_mul_u32_u24 v{vT}, 3840, v{vT}")
    a(f"v_and_b32 v{vT+2}, 15, v{vLANE}")
    a(f"v_lshlrev_b32 v{vT+3}, 2, v{vT+1}")
    a(f"v_xor_b32 v{vT+2}, v{vT+2}, v{vT+3}")
    a(f"v_lshl_add_u32 v{vT}, v{vT+2}, 4, v{vT}")
    a(f"s_lshl_b32 s{sT1}, s{sNT}, 8")
    a(f"v_add_u32 v{vWt}, s{sT1}, v{vT}")
    a(f"s_lshl_b32 s{sT2}, s{lw}, 10")
    vXs, vWs = 44, 48
    for i in range(4):
        a(f"v_add_u32 v{vXs + i}, {i * 40960}, v{vX}")
        a(f"v_add_u32 v{vWs + i}, {i * 16 * 3840}, v{vWt}")
    sXO, sWO = 40, 41
    def stage(s):
        base = (s & 3) * 32768
        a(f"s_mov_b32 s{sXO}, {s * 128}")
        a(f"s_mov_b32 s{sWO}, {s * 64 * 3840}")
        for i in range(4):
            a(f"s_add_u32 m0, s{sT2}, {base + i * 4096}")
            a("s_nop 0")
            a(f"buffer_load_dwordx4 v{vXs + i}, s[{SRD_X}:{SRD_X+3}], s{sXO} offen lds")
            a(f"s_add_u32 m0, s{sT2}, {base + 16384 + i * 4096}")
            a("s_nop 0")
            a(f"buffer_load_dwordx4 v{vWs + i}, s[{SRD_W}:{SRD_W+3}], s{sWO} offen lds")
    ST(a, "setup")
    for s in range(3):
        stage(s)
    ST(a, "B0")
    for s in range(10):
        issued = min(9, s + 2)
        a(f"s_waitcnt vmcnt({8 * (issued - s)})")
        if s in (0, 1, 2, 5):
            ST(a, {0: "g4", 1: "g8", 2: "g20", 5: "loopend"}[s])
        a("s_barrier")
        if s + 3 <= 9 and not (X("nodma") and s > 0):
            stage(s + 3)
    ST(a, "stores")
    ST(a, "end")
    ST.store(a, sW, SRD_WS)
    a("s_endpgm")

def stat_waves(a):
    a.label("L_k1_stat")
    lw = sT0
    vR, vR2, vD, vP, vA1, vA2 = 8, 12, 16, 32, 36, 38
    a(f"s_sub_u32 s{lw}, s{sW}, 8")
    a(f"v_lshrrev_b32 v{vT}, 1, v{vLANE}")
    a(f"s_lshl_b32 s{sT1}, s{lw}, 5")
    a(f"v_add_u32 v{vT}, s{sT1}, v{vT}")
    a(f"v_lshlrev_b32 v{vT+1}, 7, v{vT}")
    a(f"v_and_b32 v{vT+2}, 1, v{vLANE}")
    a(f"v_lshl_add_u32 v{vT+1}, v{vT+2}, 6, v{vT+1}")
    a(f"v_bfe_u32 v{vT+2}, v{vLANE}, 2, 2")
    for i in range(4):
        a(f"v_xor_b32 v{vT+3}, {i}, v{vT+2}")
        a(f"v_lshl_add_u32 v{vR + i}, v{vT+3}, 4, v{vT+1}")
        a(f"v_add_u32 v{vR2 + i}, 65536, v{vR + i}")
    a(f"v_lshlrev_b32 v40, 2, v{vT}")
    for r in range(4):
        a(f"v_mov_b32 v{vA1 + r}, 0")
    for s in range(10):
        slot = s & 3
        a("s_barrier")
        for i in range(4):
            a(f"ds_read_b128 {vr(vD + 4 * i, 4)}, v{(vR if slot < 2 else vR2) + i} offset:{(slot & 1) * 32768}")
        for j in range(16):
            if j % 4 == 0:
                a(f"s_waitcnt lgkmcnt({3 - j // 4})")
            if X("nostat"):
                continue
            p = vP + 2 * (j & 1)
            a(f"v_lshlrev_b32 v{p}, 16, v{vD + j}")
            a(f"v_and_b32 v{p+1}, 0xffff0000, v{vD + j}")
            a(f"v_add_f32 v{vA1}, v{vA1}, v{p}")
            a(f"v_fmac_f32 v{vA2}, v{p}, v{p}")
            a(f"v_add_f32 v{vA1+1}, v{vA1+1}, v{p+1}")
            a(f"v_fmac_f32 v{vA2+1}, v{p+1}, v{p+1}")
    a(f"v_add_f32 v{vA1}, v{vA1}, v{vA1+1}")
    a(f"v_add_f32 v{vA2}, v{vA2}, v{vA2+1}")
    a("s_nop 1")
    a(f"v_add_f32_dpp v{vA1+1}, v{vA1}, v{vA1} quad_perm:[1,0,3,2] row_mask:0xf bank_mask:0xf")
    a(f"v_add_f32_dpp v{vA2+1}, v{vA2}, v{vA2} quad_perm:[1,0,3,2] row_mask:0xf bank_mask:0xf")
    a(f"v_mul_f32 v{vA1}, {hex(f2u(1.0 / D))}, v{vA1+1}")
    a(f"v_mul_f32 v{vA2}, {hex(f2u(1.0 / D))}, v{vA2+1}")
    a(f"v_fma_f32 v{vA2}, -v{vA1}, v{vA1}, v{vA2}")
    a(f"v_max_f32 v{vA2}, 0, v{vA2}")
    a(f"v_add_f32 v{vA2}, {hex(f2u(1e-5))}, v{vA2}")
    a(f"v_rsq_f32 v{vA2}, v{vA2}")
    a(f"v_sub_f32 v{vA1}, 0, v{vA1}")
    a(f"v_add_u32 v40, {ST_NM}, v40")
    a(f"ds_write_b32 v40, v{vA1}")
    a(f"ds_write_b32 v40, v{vA2} offset:512")
    a("s_waitcnt lgkmcnt(0)")
    a("s_barrier")
    a("s_endpgm")

def read_list(g):
    ks, half = g & 3, (g >> 2) & 1
    base = half * 32768
    f = vF[g & 1]
    w = lambda b, reg, rd: f"ds_read_b64_tr_b16 {vr(f + 8 + 4 * b + 2 * rd, 2)}, v{reg} offset:{base + 16384 + (16 * ks + 4 * rd) * 256}"
    return [f"ds_read_b128 {vr(f, 4)}, v{vXA + ks} offset:{base}", w(0, vWA, 0), w(0, vWA, 1),
            w(1, vWB, 0), w(1, vWB, 1), f"ds_read_b128 {vr(f + 4, 4)}, v{vXB + ks} offset:{base}"]

def step(a, g, vorient, reads, pre=None):
    f = vF[g & 1]
    def mm(a_, b_):
        x, w = vr(f + 4 * a_, 4), vr(f + 8 + 4 * b_, 4)
        A, B = (x, w) if vorient else (w, x)
        a(f"v_mfma_f32_32x32x16_bf16 {vr(acc(a_, b_), 16)}, {A}, {B}, {vr(acc(a_, b_), 16)}")
    if pre is not None:
        a("s_waitcnt lgkmcnt(0)")
        mm(0, 0)
        mm(0, 1)
        pre()
        for r in reads[0:3]: a(r)
        mm(1, 0)
        for r in reads[3:6]: a(r)
        mm(1, 1)
    else:
        a("s_waitcnt lgkmcnt(3)")
        mm(0, 0)
        for r in reads[0:3]: a(r)
        a("s_waitcnt lgkmcnt(4)")
        mm(0, 1)
        for r in reads[3:6]: a(r)
        a("s_waitcnt lgkmcnt(6)")
        mm(1, 0)
        mm(1, 1)
    a(f"v_mfma_f32_16x16x32_bf16 {vr(vCSA, 4)}, {vr(vSEL, 4)}, {vr(f + 8, 4)}, {vr(vCSA, 4)}")

def mainloop(a, vorient):
    tag = "v" if vorient else "qk"
    ST(a, "setup")
    a("s_barrier")
    ST(a, "B0")
    for r in read_list(0):
        a(r)
    a(f"s_mov_b32 s{sT3}, 5")
    a(".p2align 3")
    a.label(f"L_k1_loop_{tag}")
    def pre7():
        a(f"s_sub_u32 s{sT3}, s{sT3}, 1")
        a(f"s_cmp_eq_u32 s{sT3}, 0")
        a(f"s_cbranch_scc1 L_k1_last_{tag}")
        for r in list(range(vXA, vXA + 4)) + list(range(vXB, vXB + 4)) + [vWA, vWB]:
            a(f"v_xor_b32 v{r}, 0x10000, v{r}")
        a("s_barrier")
    for g in range(8):
        pre = (lambda: a("s_barrier")) if g == 3 else (pre7 if g == 7 else None)
        step(a, g, vorient, read_list(g + 1), pre)
    a(f"s_branch L_k1_loop_{tag}")
    a.label(f"L_k1_last_{tag}")
    f = vF[1]
    for b_ in range(2):
        x, w = vr(f + 4, 4), vr(f + 8 + 4 * b_, 4)
        A, B = (x, w) if vorient else (w, x)
        a(f"v_mfma_f32_32x32x16_bf16 {vr(acc(1, b_), 16)}, {A}, {B}, {vr(acc(1, b_), 16)}")
    a(f"v_mfma_f32_16x16x32_bf16 {vr(vCSA, 4)}, {vr(vSEL, 4)}, {vr(f + 8, 4)}, {vr(vCSA, 4)}")

def stats_exchange(a):
    ST(a, "loopend")
    a(f"s_lshl_b32 s{sT0}, s{sWC}, 6")
    a(f"s_lshl_b32 s{sT1}, s{sWR}, 5")
    a(f"s_add_u32 s{sT0}, s{sT0}, s{sT1}")
    a(f"v_add_u32 v{vT+1}, s{sT0}, v{vLANE}")
    a(f"v_lshlrev_b32 v{vT+1}, 2, v{vT+1}")
    a(f"v_add_u32 v{vT+1}, {ST_CS}, v{vT+1}")
    a("s_mov_b64 exec, 0xffff")
    a("s_nop 4")
    a(f"ds_write_b32 v{vT+1}, v{vCSA}")
    a(f"ds_write_b32 v{vT+1}, v{vCSA+1} offset:64")
    a("s_mov_b64 exec, -1")
    a("s_waitcnt lgkmcnt(0)")
    a("s_barrier")

def consumer_setup(a):
    a(f"s_lshr_b32 s{sWR}, s{sW}, 1")
    a(f"s_and_b32 s{sWC}, s{sW}, 1")
    a(f"v_lshrrev_b32 v{vT}, 1, v{vTOK}")
    a(f"v_and_b32 v{vT}, 7, v{vT}")
    a(f"s_lshl_b32 s{sT0}, s{sWR}, 6")
    a(f"v_add_u32 v{vT+1}, s{sT0}, v{vTOK}")
    a(f"v_lshlrev_b32 v{vT+1}, 7, v{vT+1}")
    a(f"s_lshl_b32 s{sT0}, s{sWC}, 12")
    a(f"s_xor_b32 s{sT1}, s{sT0}, 4096")
    for ks in range(4):
        a(f"v_add_u32 v{vT+2}, {2 * ks}, v{vH}")
        a(f"v_xor_b32 v{vT+2}, v{vT+2}, v{vT}")
        a(f"v_lshl_add_u32 v{vT+2}, v{vT+2}, 4, v{vT+1}")
        a(f"v_add_u32 v{vXA + ks}, s{sT0}, v{vT+2}")
        a(f"v_add_u32 v{vXB + ks}, s{sT1}, v{vT+2}")
    a(f"v_bfe_u32 v{vT}, v{vLANE}, 2, 2")
    a(f"v_lshl_add_u32 v{vT+1}, v{vH}, 3, v{vT}")
    a(f"v_lshlrev_b32 v{vT+1}, 8, v{vT+1}")
    a(f"v_and_b32 v{vT+2}, 3, v{vLANE}")
    a(f"v_lshl_add_u32 v{vT+1}, v{vT+2}, 3, v{vT+1}")
    a(f"v_bfe_u32 v{vT+2}, v{vLANE}, 4, 1")
    a(f"v_lshlrev_b32 v{vT}, 1, v{vT}")
    for (dst, own) in ((vWA, True), (vWB, False)):
        a(f"s_lshl_b32 s{sT0}, s{sWC}, 2")
        if own:
            a(f"s_lshl_b32 s{sT1}, s{sWR}, 1")
        else:
            a(f"s_xor_b32 s{sT1}, s{sWR}, 1")
            a(f"s_lshl_b32 s{sT1}, s{sT1}, 1")
        a(f"s_add_u32 s{sT0}, s{sT0}, s{sT1}")
        a(f"v_add_u32 v{vT+3}, s{sT0}, v{vT+2}")
        a(f"v_xor_b32 v{vT+3}, v{vT+3}, v{vT}")
        a(f"v_lshl_add_u32 v{dst}, v{vT+3}, 5, v{vT+1}")
    a(f"v_and_b32 v{vT}, 15, v{vLANE}")
    a(f"v_bfe_u32 v{vT+1}, v{vLANE}, 4, 1")
    a(f"v_cmp_eq_u32 vcc, v{vT}, v{vT+1}")
    a(f"v_mov_b32 v{vT+2}, 0x3f803f80")
    a("s_nop 0")
    a(f"v_cndmask_b32 v{vSEL}, 0, v{vT+2}, vcc")
    for r in range(1, 4):
        a(f"v_mov_b32 v{vSEL + r}, v{vSEL}")
    for r in range(4):
        a(f"v_mov_b32 v{vCSA + r}, 0")
    for r in range(64):
        a(f"v_mov_b32 v{vACC + r}, 0")

def qk_path(a):
    a.label("L_k1_qk")
    a(f"s_mov_b32 s{sSEC}, {KV_OFF}")
    a(f"s_mov_b32 s{sTS}, 2560")
    a(f"s_mov_b32 s{sSCALE}, {hex(f2u(1.0))}")
    a(f"s_sub_u32 s{sT0}, s{sNT}, 5")
    a(f"s_cmp_lt_u32 s{sNT}, 5")
    a(f"s_cselect_b32 s{sSEC}, {QB_OFF}, s{sSEC}")
    a(f"s_cselect_b32 s{sTS}, 1280, s{sTS}")
    a(f"s_cselect_b32 s{sSCALE}, {hex(f2u(QSCALE))}, s{sSCALE}")
    a(f"s_cselect_b32 s{sT0}, s{sNT}, s{sT0}")
    a(f"s_lshl_b32 s{sHS}, s{sTS}, 6")
    a(f"s_lshl_b32 s{sT1}, s{sMT}, 2")
    a(f"s_lshl_b32 s{sT2}, s{sWR}, 1")
    a(f"s_add_u32 s{sT1}, s{sT1}, s{sT2}")
    a(f"s_add_u32 s{sT2}, s{sT1}, s{sWC}")
    a(f"s_mul_i32 s{sTA}, s{sT2}, s{sTS}")
    a(f"s_add_u32 s{sTA}, s{sTA}, s{sSEC}")
    a(f"s_xor_b32 s{sT3}, s{sWC}, 1")
    a(f"s_add_u32 s{sT2}, s{sT1}, s{sT3}")
    a(f"s_mul_i32 s{sTB}, s{sT2}, s{sTS}")
    a(f"s_add_u32 s{sTB}, s{sTB}, s{sSEC}")
    a(f"s_lshl_b32 s{sT0}, s{sT0}, 5")
    a(f"s_lshl_b32 s{sT1}, s{sWC}, 4")
    a(f"s_add_u32 s{sT0}, s{sT0}, s{sT1}")
    for b_ in range(2):
        a(f"s_lshl_b32 s{sT1}, s{sWR}, 3") if b_ == 0 else (a(f"s_xor_b32 s{sT1}, s{sWR}, 1"), a(f"s_lshl_b32 s{sT1}, s{sT1}, 3"))
        a(f"s_add_u32 s{sT1}, s{sT1}, s{sT0}")
        for g in range(4):
            o = vOFF + 4 * b_ + g
            a(f"v_add_u32 v{vT}, s{sT1}, v{vH}")
            a(f"v_add_u32 v{vT}, {2 * g}, v{vT}")
            a(f"v_mul_u32_u24 v{vT+1}, 52429, v{vT}")
            a(f"v_lshrrev_b32 v{vT+1}, 18, v{vT+1}")
            a(f"v_mul_u32_u24 v{vT+2}, 5, v{vT+1}")
            a(f"v_sub_u32 v{vT+2}, v{vT}, v{vT+2}")
            a(f"v_mul_lo_u32 v{o}, v{vT+1}, s{sHS}")
            a(f"v_lshrrev_b32 v{vT+1}, 1, v{vT+2}")
            a(f"v_lshlrev_b32 v{vT+1}, 9, v{vT+1}")
            a(f"v_and_b32 v{vT+3}, 1, v{vT+2}")
            a(f"v_lshl_add_u32 v{vT+1}, v{vT+3}, 3, v{vT+1}")
            a(f"v_cmp_eq_u32 vcc, 4, v{vT+2}")
            a(f"v_lshlrev_b32 v{vT+3}, 4, v{vTOK}")
            a(f"v_lshlrev_b32 v{vT+2}, 3, v{vTOK}")
            a(f"v_cndmask_b32 v{vT+3}, v{vT+3}, v{vT+2}, vcc")
            a(f"v_add3_u32 v{o}, v{o}, v{vT+1}, v{vT+3}")
    mainloop(a, False)
    stats_exchange(a)
    vNM, vRS, vC = vE, vE + 2, vE + 4
    a(f"s_lshl_b32 s{sT0}, s{sWR}, 6")
    a(f"v_add_u32 v{vT}, s{sT0}, v{vTOK}")
    a(f"v_lshlrev_b32 v{vT}, 2, v{vT}")
    a(f"s_lshl_b32 s{sT1}, s{sWC}, 7")
    a(f"v_add_u32 v{vT+1}, s{sT1}, v{vT}")
    a(f"s_xor_b32 s{sT1}, s{sT1}, 128")
    a(f"v_add_u32 v{vT+2}, s{sT1}, v{vT}")
    a(f"v_add_u32 v{vT+1}, {ST_NM}, v{vT+1}")
    a(f"v_add_u32 v{vT+2}, {ST_NM}, v{vT+2}")
    a(f"ds_read_b32 v{vNM}, v{vT+1}")
    a(f"ds_read_b32 v{vRS}, v{vT+1} offset:512")
    a(f"ds_read_b32 v{vNM+1}, v{vT+2}")
    a(f"ds_read_b32 v{vRS+1}, v{vT+2} offset:512")
    a(f"s_lshl_b32 s{sT0}, s{sWC}, 8")
    a(f"v_lshlrev_b32 v{vT}, 4, v{vH}")
    a(f"v_add_u32 v{vT}, s{sT0}, v{vT}")
    a(f"s_lshl_b32 s{sT1}, s{sWR}, 7")
    a(f"v_add_u32 v{vT+1}, s{sT1}, v{vT}")
    a(f"s_xor_b32 s{sT1}, s{sT1}, 128")
    a(f"v_add_u32 v{vT+2}, s{sT1}, v{vT}")
    a(f"v_add_u32 v{vT+1}, {ST_CS}, v{vT+1}")
    a(f"v_add_u32 v{vT+2}, {ST_CS}, v{vT+2}")
    for b_ in range(2):
        for g in range(4):
            a(f"ds_read_b128 {vr(vC + 16 * b_ + 4 * g, 4)}, v{vT + 1 + b_} offset:{32 * g}")
    a("s_waitcnt lgkmcnt(0)")
    a(f"v_mul_f32 v{vRS}, s{sSCALE}, v{vRS}")
    a(f"v_mul_f32 v{vRS+1}, s{sSCALE}, v{vRS+1}")
    ws = f"s[{SRD_WS}:{SRD_WS+3}]"
    for a_ in range(2):
        a(f"v_mov_b32 v{vT}, v{vNM + a_}")
        a(f"v_mov_b32 v{vT+1}, v{vNM + a_}")
        a(f"v_mov_b32 v{vT+2}, v{vRS + a_}")
        a(f"v_mov_b32 v{vT+3}, v{vRS + a_}")
        for b_ in range(2):
            A = acc(a_, b_)
            for p in range(8):
                a(f"v_pk_fma_f32 {vr(A + 2 * p, 2)}, {vr(vC + 16 * b_ + 2 * p, 2)}, {vr(vT, 2)}, {vr(A + 2 * p, 2)}")
            for p in range(8):
                a(f"v_pk_mul_f32 {vr(A + 2 * p, 2)}, {vr(A + 2 * p, 2)}, {vr(vT + 2, 2)}")
            for p in range(8):
                a(f"v_cvt_pk_bf16_f32 v{A + p}, v{A + 2 * p}, v{A + 2 * p + 1}")
            for g in range(4):
                a(f"buffer_store_dwordx2 {vr(A + 2 * g, 2)}, v{vOFF + 4 * b_ + g}, {ws}, s{sTA if a_ == 0 else sTB} offen")
    ST(a, "stores")
    if ST.on:
        a("s_waitcnt vmcnt(0)")
    ST(a, "end")
    ST.store(a, sW, SRD_WS)
    a("s_endpgm")

def v_path(a):
    a.label("L_k1_v")
    a(f"s_lshl_b32 s{sT1}, s{sMT}, 2")
    a(f"s_lshl_b32 s{sT2}, s{sWR}, 1")
    a(f"s_add_u32 s{sT1}, s{sT1}, s{sT2}")
    a(f"s_add_u32 s{sT2}, s{sT1}, s{sWC}")
    a(f"s_mul_i32 s{sTA}, s{sT2}, 2560")
    a(f"s_add_u32 s{sTA}, s{sTA}, {KV_OFF + 1280}")
    a(f"s_xor_b32 s{sT3}, s{sWC}, 1")
    a(f"s_add_u32 s{sT2}, s{sT1}, s{sT3}")
    a(f"s_mul_i32 s{sTB}, s{sT2}, 2560")
    a(f"s_add_u32 s{sTB}, s{sTB}, {KV_OFF + 1280}")
    a(f"s_sub_u32 s{sT0}, s{sNT}, 10")
    a(f"s_lshl_b32 s{sT0}, s{sT0}, 7")
    a(f"s_lshl_b32 s{sT1}, s{sWC}, 6")
    a(f"s_add_u32 s{sT0}, s{sT0}, s{sT1}")
    for b_ in range(2):
        if b_ == 0:
            a(f"s_lshl_b32 s{sT1}, s{sWR}, 5")
        else:
            a(f"s_xor_b32 s{sT1}, s{sWR}, 1")
            a(f"s_lshl_b32 s{sT1}, s{sT1}, 5")
        a(f"s_add_u32 s{sT1}, s{sT1}, s{sT0}")
        a(f"v_add_u32 v{vT}, s{sT1}, v{vTOK}")
        a(f"v_mul_u32_u24 v{vT+1}, 52429, v{vT}")
        a(f"v_lshrrev_b32 v{vT+1}, 20, v{vT+1}")
        a(f"v_mul_u32_u24 v{vT+2}, 20, v{vT+1}")
        a(f"v_sub_u32 v{vT+2}, v{vT}, v{vT+2}")
        a(f"s_mov_b32 s{sT2}, {64 * 2560}")
        a(f"v_mul_lo_u32 v{vOFF + b_}, v{vT+1}, s{sT2}")
        a(f"v_lshlrev_b32 v{vT+2}, 4, v{vT+2}")
        a(f"v_mul_u32_u24 v{vT+3}, 320, v{vH}")
        a(f"v_add3_u32 v{vOFF + b_}, v{vOFF + b_}, v{vT+2}, v{vT+3}")
    mainloop(a, True)
    stats_exchange(a)
    vCL, vNM, vRS = vE, vE + 4, vE + 20
    a(f"s_lshl_b32 s{sT0}, s{sWC}, 6")
    a(f"v_add_u32 v{vT}, s{sT0}, v{vTOK}")
    a(f"v_lshlrev_b32 v{vT}, 2, v{vT}")
    a(f"s_lshl_b32 s{sT1}, s{sWR}, 7")
    a(f"v_add_u32 v{vT+1}, s{sT1}, v{vT}")
    a(f"s_xor_b32 s{sT1}, s{sT1}, 128")
    a(f"v_add_u32 v{vT+2}, s{sT1}, v{vT}")
    a(f"v_add_u32 v{vT+1}, {ST_CS}, v{vT+1}")
    a(f"v_add_u32 v{vT+2}, {ST_CS}, v{vT+2}")
    a(f"ds_read_b32 v{vCL}, v{vT+1}")
    a(f"ds_read_b32 v{vCL+2}, v{vT+2}")
    a("s_waitcnt lgkmcnt(0)")
    a(f"v_mov_b32 v{vCL+1}, v{vCL}")
    a(f"v_mov_b32 v{vCL+3}, v{vCL+2}")
    ws = f"s[{SRD_WS}:{SRD_WS+3}]"
    for a_ in range(2):
        a(f"s_lshl_b32 s{sT0}, s{sWR}, 8")
        a(f"s_lshl_b32 s{sT1}, s{sWC}, 7")
        if a_ == 1:
            a(f"s_xor_b32 s{sT1}, s{sT1}, 128")
        a(f"s_add_u32 s{sT0}, s{sT0}, s{sT1}")
        a(f"v_lshlrev_b32 v{vT}, 4, v{vH}")
        a(f"v_add_u32 v{vT}, s{sT0}, v{vT}")
        a(f"v_add_u32 v{vT}, {ST_NM}, v{vT}")
        for g in range(4):
            a(f"ds_read_b128 {vr(vNM + 4 * g, 4)}, v{vT} offset:{32 * g}")
            a(f"ds_read_b128 {vr(vRS + 4 * g, 4)}, v{vT} offset:{512 + 32 * g}")
        a("s_waitcnt lgkmcnt(0)")
        for b_ in range(2):
            A = acc(a_, b_)
            for p in range(8):
                a(f"v_pk_fma_f32 {vr(A + 2 * p, 2)}, {vr(vNM + 2 * p, 2)}, {vr(vCL + 2 * b_, 2)}, {vr(A + 2 * p, 2)}")
            for p in range(8):
                a(f"v_pk_mul_f32 {vr(A + 2 * p, 2)}, {vr(A + 2 * p, 2)}, {vr(vRS + 2 * p, 2)}")
            for p in range(8):
                a(f"v_cvt_pk_bf16_f32 v{A + p}, v{A + 2 * p}, v{A + 2 * p + 1}")
            for t in range(2):
                a(f"buffer_store_dwordx4 {vr(A + 4 * t, 4)}, v{vOFF + b_}, {ws}, s{sTA if a_ == 0 else sTB} offen offset:{640 * t}")
    ST(a, "stores")
    if ST.on:
        a("s_waitcnt vmcnt(0)")
    ST(a, "end")
    ST.store(a, sW, SRD_WS)
    a("s_endpgm")

def aux(a):
    a.label("L_k1_aux")
    a(f"s_cmp_ge_u32 s{sW}, 8")
    a("s_cbranch_scc1 L_k1_exit")
    vX, vWr = 32, 72
    vA, vAW = 8, 9
    s1, s2, s3, sw = 10, 11, 12, 13
    SRD_R = 40
    srd(a, SRD_R, 38, D * 2)
    a(f"v_lshrrev_b32 v{vT}, 2, v{vLANE}")
    a(f"s_lshl_b32 s{sT0}, s{sW}, 4")
    a(f"s_add_u32 s{sT0}, s{sT0}, s{sROW0}")
    a(f"v_add_u32 v{vT}, s{sT0}, v{vT}")
    a(f"v_and_b32 v{vT+1}, 3, v{vLANE}")
    a(f"v_lshlrev_b32 v{vAW}, 4, v{vT+1}")
    a(f"v_mul_u32_u24 v{vA}, 1280, v{vT}")
    a(f"v_add_u32 v{vA}, v{vA}, v{vAW}")
    for r in (s1, s2, s3, sw):
        a(f"v_mov_b32 v{r}, 0")
    a(f"v_mov_b32 v{vONE}, 0x3f803f80")
    for half in range(2):
        for i in range(10):
            a(f"buffer_load_dwordx4 {vr(vX + 4 * i, 4)}, v{vA}, s[{SRD_X}:{SRD_X+3}], 0 offen offset:{(10 * half + i) * 64}")
            a(f"buffer_load_dwordx4 {vr(vWr + 4 * i, 4)}, v{vAW}, s[{SRD_R}:{SRD_R+3}], 0 offen offset:{(10 * half + i) * 64}")
        a("s_waitcnt vmcnt(0)")
        for r in range(40):
            a(f"v_dot2c_f32_bf16 v{s1}, v{vX + r}, v{vONE}")
            a(f"v_dot2c_f32_bf16 v{s2}, v{vX + r}, v{vX + r}")
            a(f"v_dot2c_f32_bf16 v{s3}, v{vX + r}, v{vWr + r}")
            a(f"v_dot2c_f32_bf16 v{sw}, v{vWr + r}, v{vONE}")
    a("s_nop 3")
    for perm in ("[1,0,3,2]", "[2,3,0,1]"):
        for r in (s1, s2, s3, sw):
            a(f"v_add_f32_dpp v{vT+2}, v{r}, v{r} quad_perm:{perm} row_mask:0xf bank_mask:0xf")
            a("s_nop 1")
            a(f"v_mov_b32 v{r}, v{vT+2}")
            a("s_nop 1")
    a(f"v_mul_f32 v{s1}, {hex(f2u(1.0 / D))}, v{s1}")
    a(f"v_mul_f32 v{s2}, {hex(f2u(1.0 / D))}, v{s2}")
    a(f"v_fma_f32 v{s2}, -v{s1}, v{s1}, v{s2}")
    a(f"v_max_f32 v{s2}, 0, v{s2}")
    a(f"v_add_f32 v{s2}, {hex(f2u(1e-5))}, v{s2}")
    a(f"v_rsq_f32 v{s2}, v{s2}")
    a(f"v_fma_f32 v{s3}, -v{s1}, v{sw}, v{s3}")
    a(f"v_mul_f32 v{s3}, v{s3}, v{s2}")
    ws = f"s[{SRD_WS}:{SRD_WS+3}]"
    a(f"v_ashrrev_i32 v{vT+2}, 31, v{s3}")
    a(f"v_or_b32 v{vT+2}, 0x80000000, v{vT+2}")
    a(f"v_xor_b32 v{vT+2}, v{vT+2}, v{s3}")
    a(f"v_and_b32 v{vT+2}, 0xfffff800, v{vT+2}")
    a(f"v_or_b32 v{vT+2}, v{vT+2}, v{vT}")
    a(f"v_mov_b32 v14, v{s1}")
    a(f"v_mov_b32 v15, v{s2}")
    a(f"v_lshlrev_b32 v{vA}, 3, v{vT}")
    a(f"v_lshlrev_b32 v{vAW}, 2, v{vT}")
    a(f"v_and_b32 v{vT+3}, 127, v{vT}")
    a(f"v_lshlrev_b32 v{vT+3}, 2, v{vT+3}")
    a(f"v_cmp_eq_u32 vcc, 0, v{vT+1}")
    a(f"s_mov_b32 s{sT0}, {ST_OFF}")
    a(f"s_mov_b32 s{sT1}, {R_OFF}")
    a("s_and_saveexec_b64 s[44:45], vcc")
    a(f"buffer_store_dwordx2 v[14:15], v{vA}, {ws}, s{sT0} offen")
    a(f"buffer_store_dword v{s3}, v{vAW}, {ws}, s{sT1} offen")
    a(f"ds_write_b32 v{vT+3}, v{vT+2}")
    a("s_mov_b64 exec, s[44:45]")
    a("s_waitcnt lgkmcnt(0)")
    a("s_barrier")
    a(f"s_cmp_lg_u32 s{sW}, 0")
    a("s_cbranch_scc1 L_k1_repack")
    hi, lo, oh, ol, adr = 16, 17, 18, 19, 20
    a(f"v_lshlrev_b32 v{adr}, 2, v{vLANE}")
    a(f"ds_read_b32 v{oh}, v{adr}")
    a(f"ds_read_b32 v{ol}, v{adr} offset:256")
    a("s_waitcnt lgkmcnt(0)")
    a(f"v_max_u32 v{hi}, v{oh}, v{ol}")
    a(f"v_min_u32 v{lo}, v{oh}, v{ol}")
    for x in (1, 2, 4, 8, 16, 32):
        a(f"v_xor_b32 v{adr}, {x}, v{vLANE}")
        a(f"v_lshlrev_b32 v{adr}, 2, v{adr}")
        a(f"ds_bpermute_b32 v{oh}, v{adr}, v{hi}")
        a(f"ds_bpermute_b32 v{ol}, v{adr}, v{lo}")
        a("s_waitcnt lgkmcnt(0)")
        a(f"v_max_u32 v{lo}, v{lo}, v{ol}")
        a(f"v_min_u32 v{ol}, v{hi}, v{oh}")
        a(f"v_max_u32 v{hi}, v{hi}, v{oh}")
        a(f"v_max_u32 v{lo}, v{lo}, v{ol}")
    a(f"v_mov_b32 v{oh}, v{hi}")
    a(f"v_mov_b32 v{ol}, v{lo}")
    a(f"s_lshl_b32 s{sT0}, s{sMT}, 3")
    a(f"s_add_u32 s{sT0}, s{sT0}, {CAND_OFF}")
    a(f"v_mov_b32 v{adr}, 0")
    a(f"v_cmp_eq_u32 vcc, 0, v{vLANE}")
    a("s_nop 1")
    a("s_and_saveexec_b64 s[44:45], vcc")
    a(f"buffer_store_dwordx2 v[{oh}:{ol}], v{adr}, {ws}, s{sT0} offen")
    a("s_mov_b64 exec, -1")
    a(f"s_cmp_lg_u32 s{sMT}, 0")
    a("s_cbranch_scc1 L_k1_repack")
    a(f"v_lshlrev_b32 v{adr}, 8, v{vLANE}")
    a(f"v_mov_b32 v{oh}, 0")
    a(f"s_mov_b32 s{sT0}, {CNT_OFF}")
    a(f"v_cmp_gt_u32 vcc, {NCNT}, v{vLANE}")
    a("s_nop 1")
    a("s_mov_b64 exec, vcc")
    a(f"buffer_store_dword v{oh}, v{adr}, {ws}, s{sT0} offen")
    a("s_mov_b64 exec, -1")
    a.label("L_k1_repack")
    a("s_barrier")
    from k2moe import repack
    repack(a, sW, sMT, "L_k1_exit")

def emit(a):
    entry(a)
    consumer_setup(a)
    a(f"s_cmp_ge_u32 s{sNT}, 10")
    a("s_cbranch_scc1 L_k1_v")
    qk_path(a)
    v_path(a)
    loader(a)
    stat_waves(a)
    aux(a)
    a.label("L_k1_exit")
    a("s_endpgm")
```

```python
from common import *
from k2moe import top2_scalar
import os

NAME = "attn_proj_kernel"
LDS = 163840
VGPRS = 168
BLOCK = 768
GRID = 256
NMOE = 96

def X(flag):
    return flag in os.environ.get("K2_EXP", "").split(",")

ST = StampsNow("k2", 20, 8, 164)

L_RING = 0
L_R = 61440
L_WG, L_WU, L_WD = L_R, L_R + 20480, L_R + 40960
L_XG, L_XU = L_R + 61440, L_R + 61440 + 3840
L_U, L_H = L_R + 69120, L_R + 69120 + 1024
L_MISC = 143360
F_LAND, F_FREE, F_U, F_H, F_MOE, F_ALL = L_MISC, L_MISC + 4, L_MISC + 8, L_MISC + 12, L_MISC + 16, L_MISC + 20
F_RT = L_MISC + 24
L_RED, L_Y = L_MISC + 1024, L_MISC + 1024 + 3840
SPIN_MAX = 1 << 20
PACE = int(os.environ.get("K2_PACE", "7"))

vLANE16, vT0, vT1 = 1, 2, 3
vKA, vKB, vV, vFL = 4, 5, 6, 7
vQ1, vQ2 = 10, 14
vFLAG, vONE = 16, 17
vS = (32, 48)
vO = 64
vP = 80
vKAf = (88, 92)
vKBf = (96, 98)
vVf = ((100, 104), (108, 112))
vTMP = 116

sW, sHEAD, sKV, sQ, sOB, sOM = 20, 21, 22, 23, 24, 25
sVMASK = 26
sLO = 28
sT, sT2, sQB = 30, 31, 32
SRD_WS = 8
WS = f"s[{SRD_WS}:{SRD_WS+3}]"

def lds_tile(t):
    return ((t >> 3) % 3) * 20480 + (t & 7) * 2560

def spin(a, name, vaddr, vtmp, stmp, target, cnt):
    a(f"s_mov_b32 s{cnt}, {SPIN_MAX}")
    a.label(f"{name}_loop")
    a(f"ds_read_b32 v{vtmp}, v{vaddr}")
    a("s_waitcnt lgkmcnt(0)")
    a(f"v_readfirstlane_b32 s{stmp}, v{vtmp}")
    a(f"s_sub_u32 s{cnt}, s{cnt}, 1")
    a(f"s_cbranch_scc1 {name}_done")
    a(f"s_cmp_ge_u32 s{stmp}, {target}")
    a(f"s_cbranch_scc1 {name}_done")
    a("s_sleep 1")
    a(f"s_branch {name}_loop")
    a.label(f"{name}_done")

def mfma_s1(a, dst, buf):
    a(f"v_mfma_f32_32x32x16_bf16 {vr(dst, 16)}, {vr(vKAf[buf], 4)}, {vr(vQ1, 4)}, 0")
def mfma_s2(a, dst, buf):
    a(f"v_mfma_f32_32x32x8bf16_1k {vr(dst, 16)}, {vr(vKBf[buf], 2)}, {vr(vQ2, 2)}, {vr(dst, 16)}")
def mfma_pv(a, buf, t):
    a(f"v_mfma_f32_32x32x16_bf16 {vr(vO, 16)}, {vr(vVf[buf][t], 4)}, {vr(vP + 4 * t, 4)}, {vr(vO, 16)}")

def read_ka(a, t, buf):
    a(f"ds_read_b128 {vr(vKAf[buf], 4)}, v{vKA} offset:{lds_tile(t)}")
def read_kb(a, t, buf):
    a(f"ds_read_b64 {vr(vKBf[buf], 2)}, v{vKB} offset:{lds_tile(t)}")
def read_v(a, t, part):
    a(f"ds_read_b128 {vr(vVf[t & 1][part], 4)}, v{vV} offset:{lds_tile(t) + 640 * part}")

def tile_body(a, t):
    sc, sn = vS[t & 1], vS[(t + 1) & 1]
    last = t == 63
    ex = lambda r: a(f"v_exp_f32 v{sc + r}, v{sc + r}")
    cv = lambda i: a(f"v_cvt_pk_bf16_f32 v{vP + i}, v{sc + 2 * i}, v{sc + 2 * i + 1}")
    ex(0)
    a("s_setprio 1")
    ex(1)
    if t > 0:
        mfma_pv(a, (t - 1) & 1, 1)
    for r in range(2, 6):
        ex(r)
    if not last:
        mfma_s1(a, sn, (t + 1) & 1)
    ex(6); ex(7)
    for i in range(4):
        cv(i)
    if not last:
        mfma_s2(a, sn, (t + 1) & 1)
    for r in range(8, 12):
        ex(r)
    mfma_pv(a, t & 1, 0)
    for r in range(12, 16):
        ex(r)
    for i in range(4, 8):
        cv(i)
    a("s_setprio 0")
    a("s_waitcnt lgkmcnt(0)")
    if t % 8 == 5 and t < 56:
        c = t // 8 + 1
        a(f"v_readfirstlane_b32 s{sT}, v{vFLAG}")
        a(f"s_cmp_ge_u32 s{sT}, {c}")
        a(f"s_cbranch_scc1 L_land_{c}_done")
        spin(a, f"L_land_{c}", vFL, vFLAG, sT, c, sT2)
    if t % 8 == 7 and t < 40:
        a("s_mov_b64 exec, 1")
        a(f"ds_add_u32 v{vFL}, v{vONE} offset:4")
        a("s_mov_b64 exec, -1")
    if t + 3 <= 63:
        read_ka(a, t + 3, (t + 1) & 1)
        a(f"s_mov_b64 exec, s[{sLO}:{sLO+1}]")
        read_kb(a, t + 3, (t + 1) & 1)
    if t + 1 <= 63:
        a(f"s_mov_b64 exec, s[{sVMASK}:{sVMASK+1}]")
        if t + 2 <= 63:
            read_v(a, t + 2, 0)
        read_v(a, t + 1, 1)
        a("s_mov_b64 exec, -1")
    if t % 8 == 4 and t < 56:
        a(f"ds_read_b32 v{vFLAG}, v{vFL}")
    if last:
        a("s_nop 1")
        mfma_pv(a, t & 1, 1)

def row_max(a, s, dst, tmp):
    a(f"v_max3_f32 v{dst}, v{s}, v{s+1}, v{s+2}")
    for r in range(3, 15, 2):
        a(f"v_max3_f32 v{dst}, v{dst}, v{s+r}, v{s+r+1}")
    a(f"v_max_f32 v{dst}, v{dst}, v{s+15}")
    a(f"v_mov_b32 v{tmp}, v{dst}")
    a("s_nop 1")
    a(f"v_permlane32_swap_b32 v{dst}, v{tmp}")
    a("s_nop 1")
    a(f"v_max_f32 v{dst}, v{dst}, v{tmp}")

def entry(a):
    kernel_header(a, NAME)
    ST(a, "entry", defer=True)
    a(f"s_cmp_ge_u32 s2, {GRID}")
    a("s_cbranch_scc1 L_k2_exit")
    a("s_load_dwordx2 s[4:5], s[0:1], 80")
    a(f"v_lshrrev_b32 v{vT0}, 6, v0")
    a(f"v_and_b32 v{vT1}, 63, v0")
    a(f"v_readfirstlane_b32 s{sW}, v{vT0}")
    a("s_and_b32 s12, s2, 7")
    a("s_lshl_b32 s12, s12, 2")
    a("s_bfe_u32 s13, s2, 0x20003")
    a(f"s_or_b32 s{sHEAD}, s12, s13")
    a(f"s_lshr_b32 s{sQB}, s2, 5")
    a(f"s_mul_i32 s{sKV}, s{sHEAD}, {64 * 2560}")
    a(f"s_add_u32 s{sKV}, s{sKV}, {KV_OFF}")
    a(f"v_lshlrev_b32 v{vLANE16}, 4, v{vT1}")
    a(f"s_cmp_ge_u32 s{sW}, 8")
    a("s_cbranch_scc1 L_k2_helper")

def attention(a):
    a(f"s_lshl_b32 s14, s{sQB}, 3")
    a(f"s_add_u32 s14, s14, s{sW}")
    a(f"s_lshl_b32 s15, s{sHEAD}, 6")
    a("s_add_u32 s15, s15, s14")
    a(f"s_mul_i32 s{sQ}, s15, 1280")
    if QB_OFF:
        a(f"s_add_u32 s{sQ}, s{sQ}, {QB_OFF}")
    a(f"s_mul_i32 s16, s{sW}, 2560")
    a(f"s_add_u32 s17, s{sKV}, s16")
    a(f"s_mov_b32 s{sLO}, -1")
    a(f"s_mov_b32 s{sLO+1}, 0")
    a(f"v_and_b32 v{vT0}, 31, v{vT1}")
    a(f"v_lshlrev_b32 v{vTMP}, 3, v{vT0}")
    a(f"v_mov_b32 v{vQ2}, 0")
    a(f"v_mov_b32 v{vQ2+1}, 0")
    a("s_waitcnt lgkmcnt(0)")
    srd(a, SRD_WS, 4, WS_SRD)
    a("s_mov_b32 m0, s16")
    a("s_nop 0")
    a(f"buffer_load_dwordx4 v{vLANE16}, {WS}, s17 offen lds")
    a(f"buffer_load_dwordx4 v{vLANE16}, {WS}, s17 offen offset:1024 lds")
    a(f"s_mov_b64 exec, s[{sLO}:{sLO+1}]")
    a(f"buffer_load_dwordx4 v{vLANE16}, {WS}, s17 offen offset:2048 lds")
    a(f"buffer_load_dwordx2 {vr(vQ2, 2)}, v{vTMP}, {WS}, s{sQ} offen offset:1024")
    a("s_mov_b64 exec, -1")
    a(f"buffer_load_dwordx4 {vr(vQ1, 4)}, v{vLANE16}, {WS}, s{sQ} offen")
    a(f"s_mul_i32 s{sOB}, s14, 40960")
    a(f"s_add_u32 s{sOB}, s{sOB}, {OB_OFF}")
    a(f"s_lshr_b32 s15, s{sHEAD}, 3")
    a("s_mul_i32 s15, s15, 5120")
    a(f"s_add_u32 s{sOB}, s{sOB}, s15")
    a(f"s_bfe_u32 s15, s{sHEAD}, 0x20001")
    a("s_lshl_b32 s15, s15, 10")
    a(f"s_and_b32 s16, s{sHEAD}, 1")
    a("s_lshl_b32 s16, s16, 9")
    a("s_add_u32 s15, s15, s16")
    a(f"s_add_u32 s{sOM}, s{sOB}, s15")
    a(f"s_and_b32 s15, s{sHEAD}, 3")
    a("s_lshl_b32 s15, s15, 8")
    a(f"s_bfe_u32 s16, s{sHEAD}, 0x10002")
    a("s_lshl_b32 s16, s16, 3")
    a("s_add_u32 s15, s15, s16")
    a(f"s_add_u32 s{sOB}, s{sOB}, s15")
    a(f"s_add_u32 s{sOB}, s{sOB}, 4096")
    a(f"s_mov_b32 s{sVMASK}, 0x000fffff")
    a(f"s_mov_b32 s{sVMASK+1}, 0x000fffff")
    a(f"v_mov_b32 v{vKA}, v{vLANE16}")
    a(f"v_add_u32 v{vKB}, 1024, v{vTMP}")
    a(f"v_lshrrev_b32 v{vTMP+1}, 5, v{vT1}")
    a(f"v_mul_u32_u24 v{vTMP+1}, 320, v{vTMP+1}")
    a(f"v_lshl_add_u32 v{vTMP+1}, v{vT0}, 4, v{vTMP+1}")
    a(f"v_add_u32 v{vV}, 1280, v{vTMP+1}")
    a(f"v_mov_b32 v{vFL}, {F_LAND}")
    a(f"v_mov_b32 v{vONE}, 1")
    a(f"v_and_b32 v{vTMP+1}, 27, v{vT0}")
    a(f"v_cmp_eq_u32 vcc, 24, v{vTMP+1}")
    a(f"v_mov_b32 v{vTMP+2}, 0x3f803f80")
    a("s_nop 1")
    a(f"v_cndmask_b32 v{vTMP+1}, 0, v{vTMP+2}, vcc")
    for b in range(2):
        for t in range(2):
            for r in range(4):
                a(f"v_mov_b32 v{vVf[b][t] + r}, v{vTMP+1}")
    for r in range(16):
        a(f"v_mov_b32 v{vO + r}, 0")
    a(f"v_cmp_le_u32 vcc, 32, v{vT1}")
    a(f"v_mov_b32 v{vTMP+2}, 0x3f80")
    a("s_nop 1")
    for b in range(2):
        a(f"v_cndmask_b32 v{vKBf[b]}, 0, v{vTMP+2}, vcc")
        a(f"v_mov_b32 v{vKBf[b]+1}, 0")
    a("s_waitcnt vmcnt(0)")
    a("s_barrier")
    ST.flush(a)
    ST(a, "B0")
    read_ka(a, 0, 0)
    read_ka(a, 1, 1)
    a(f"s_mov_b64 exec, s[{sLO}:{sLO+1}]")
    read_kb(a, 0, 0)
    read_kb(a, 1, 1)
    a(f"s_mov_b64 exec, s[{sVMASK}:{sVMASK+1}]")
    read_v(a, 0, 0); read_v(a, 0, 1); read_v(a, 1, 0)
    a("s_mov_b64 exec, -1")
    a("s_waitcnt lgkmcnt(3)")
    mfma_s1(a, vS[0], 0)
    mfma_s2(a, vS[0], 0)
    a("s_nop 15")
    a("s_nop 3")
    row_max(a, vS[0], vTMP, vTMP + 1)
    a(f"v_sub_f32 v{vTMP}, 0, v{vTMP}")
    a(f"v_cvt_pk_bf16_f32 v{vTMP}, v{vTMP}, 0")
    a(f"v_cmp_le_u32 vcc, 32, v{vT1}")
    a("s_nop 1")
    a(f"v_cndmask_b32 v{vQ2}, v{vQ2}, v{vTMP}, vcc")
    a("s_nop 1")
    mfma_s1(a, vS[0], 0)
    mfma_s2(a, vS[0], 0)
    read_ka(a, 2, 0)
    a(f"s_mov_b64 exec, s[{sLO}:{sLO+1}]")
    read_kb(a, 2, 0)
    a("s_mov_b64 exec, -1")
    a("s_waitcnt lgkmcnt(2)")
    a("s_nop 15")
    a("s_nop 3")
    for t in range(64):
        if t in (0, 8, 32, 56):
            ST(a, f"t{t}")
        tile_body(a, t)
    ST(a, "loopend")
    a("s_nop 15")
    a("s_nop 3")
    a(f"v_mov_b32 v{vTMP}, v{vO + 12}")
    for r in range(12):
        a(f"v_fma_f32 v{vTMP}, v{vO + r}, 0, v{vTMP}")
    a(f"v_mov_b32 v{vTMP+1}, {hex(f2u(2.0 ** 100))}")
    a(f"v_cmp_nlt_f32 vcc, v{vTMP}, v{vTMP+1}")
    a("s_nop 4")
    a("s_cbranch_vccz L_attn_store")
    safe_path(a)
    a.label("L_attn_store")
    a(f"v_rcp_f32 v{vTMP}, v{vO + 12}")
    a("s_nop 1")
    for r in range(12):
        a(f"v_mul_f32 v{vO + r}, v{vO + r}, v{vTMP}")
    for i in range(6):
        a(f"v_cvt_pk_bf16_f32 v{vP + i}, v{vO + 2 * i}, v{vO + 2 * i + 1}")
    a(f"v_and_b32 v{vTMP+1}, 15, v0")
    a(f"v_lshlrev_b32 v{vTMP+1}, 4, v{vTMP+1}")
    a(f"v_bfe_u32 v{vTMP+2}, v0, 4, 1")
    a(f"v_mul_u32_u24 v{vTMP+2}, 20480, v{vTMP+2}")
    a(f"v_add_u32 v{vTMP+1}, v{vTMP+1}, v{vTMP+2}")
    a(f"v_bfe_u32 v{vTMP+2}, v0, 5, 1")
    a(f"v_lshl_add_u32 v{vTMP+2}, v{vTMP+2}, 8, v{vTMP+1}")
    a(f"buffer_store_dwordx4 {vr(vP, 4)}, v{vTMP+2}, {WS}, s{sOM} offen sc1")
    a(f"s_mov_b64 exec, s[{sLO}:{sLO+1}]")
    a(f"buffer_store_dwordx2 {vr(vP + 4, 2)}, v{vTMP+1}, {WS}, s{sOB} offen sc1")
    a("s_mov_b64 exec, -1")
    a("s_branch L_k2_join")

def safe_path(a):
    vM, vMN, vAL = vTMP, vTMP + 1, vTMP + 2
    vA2, vA3 = vTMP + 5, vTMP + 6
    s = vS[0]
    a(f"v_and_b32 v{vA2}, 31, v0")
    a(f"v_lshlrev_b32 v{vA2}, 3, v{vA2}")
    a(f"v_mov_b32 v{vA3}, v{vV}")
    a(f"v_mov_b32 v{vM}, 0xff7fffff")
    a(f"v_and_b32 v{vAL}, 63, v0")
    a(f"v_cmp_gt_u32 vcc, 32, v{vAL}")
    a("s_nop 1")
    a(f"v_cndmask_b32 v{vQ2}, 0, v{vQ2}, vcc")
    for r in range(16):
        a(f"v_mov_b32 v{vO + r}, 0")
    a(f"s_mov_b32 s{sT}, s{sKV}")
    a("s_mov_b32 s15, 64")
    a.label("L_safe_loop")
    a(f"buffer_load_dwordx4 {vr(vKAf[0], 4)}, v{vLANE16}, {WS}, s{sT} offen")
    a(f"s_mov_b64 exec, s[{sLO}:{sLO+1}]")
    a(f"buffer_load_dwordx2 {vr(vKBf[0], 2)}, v{vA2}, {WS}, s{sT} offen offset:1024")
    a(f"s_mov_b64 exec, s[{sVMASK}:{sVMASK+1}]")
    a(f"buffer_load_dwordx4 {vr(vVf[0][0], 4)}, v{vA3}, {WS}, s{sT} offen")
    a(f"buffer_load_dwordx4 {vr(vVf[0][1], 4)}, v{vA3}, {WS}, s{sT} offen offset:640")
    a("s_mov_b64 exec, -1")
    a("s_waitcnt vmcnt(0)")
    mfma_s1(a, s, 0)
    mfma_s2(a, s, 0)
    a("s_nop 15")
    a("s_nop 3")
    row_max(a, s, vMN, vAL)
    a(f"v_max_f32 v{vMN}, v{vMN}, v{vM}")
    a(f"v_sub_f32 v{vAL}, v{vM}, v{vMN}")
    a(f"v_exp_f32 v{vAL}, v{vAL}")
    a(f"v_mov_b32 v{vM}, v{vMN}")
    for r in range(16):
        a(f"v_sub_f32 v{s + r}, v{s + r}, v{vMN}")
    for r in range(16):
        a(f"v_exp_f32 v{s + r}, v{s + r}")
    for r in range(16):
        a(f"v_mul_f32 v{vO + r}, v{vO + r}, v{vAL}")
    for i in range(8):
        a(f"v_cvt_pk_bf16_f32 v{vP + i}, v{s + 2 * i}, v{s + 2 * i + 1}")
    a("s_nop 1")
    mfma_pv(a, 0, 0)
    mfma_pv(a, 0, 1)
    a(f"s_add_u32 s{sT}, s{sT}, 2560")
    a("s_sub_u32 s15, s15, 1")
    a("s_nop 15")
    a("s_nop 3")
    a("s_cmp_lg_u32 s15, 0")
    a("s_cbranch_scc1 L_safe_loop")

def helpers(a):
    a.label("L_k2_helper")
    a("s_load_dwordx2 s[6:7], s[0:1], 0")
    a("s_load_dwordx4 s[36:39], s[0:1], 40")
    a("s_load_dwordx2 s[40:41], s[0:1], 56")
    a("s_waitcnt lgkmcnt(0)")
    srd(a, SRD_WS, 4, WS_SRD)
    a(f"s_cmp_lg_u32 s{sW}, 8")
    a("s_cbranch_scc1 L_k2_ffn")
    ring_loader(a)
    ffn(a)

def ring_loader(a):
    vF, vX = 4, 5
    a(f"v_lshlrev_b32 v{vF}, 2, v{vT1}")
    a(f"v_add_u32 v{vF}, {L_MISC}, v{vF}")
    a(f"v_mov_b32 v{vX}, 0")
    a(f"ds_write_b32 v{vF}, v{vX}")
    a(f"v_mov_b32 v{vF}, {F_LAND}")
    a("s_waitcnt lgkmcnt(0)")
    a("s_barrier")
    def chunk(c):
        for i in range(5):
            a(f"s_mov_b32 m0, {(c % 3) * 20480 + i * 4096}")
            a(f"s_add_u32 s{sT}, s{sKV}, {c * 20480 + i * 4096}")
            for j in range(4):
                a(f"buffer_load_dwordx4 v{vLANE16}, {WS}, s{sT} offen offset:{1024 * j} lds")
    def landed(c):
        a(f"v_mov_b32 v{vX}, {c}")
        a(f"ds_write_b32 v{vF}, v{vX}")
    chunk(1); chunk(2)
    a("s_waitcnt vmcnt(20)")
    landed(1)
    a("s_waitcnt vmcnt(0)")
    landed(2)
    a(f"v_mov_b32 v6, {F_FREE}")
    for c in range(3, 8):
        spin(a, f"L_free_{c}", 6, 7, sT, 8 * (c - 2), sT2)
        chunk(c)
        a("s_waitcnt vmcnt(0)")
        landed(c)
    a(f"s_add_u32 s38, s4, {CAND_OFF}")
    a("s_addc_u32 s39, s5, 0")
    a("s_load_dwordx16 s[64:79], s[38:39], 0")
    a("s_load_dwordx16 s[80:95], s[38:39], 64")
    out_tile_ids(a)
    a("s_waitcnt lgkmcnt(0)")
    top2_scalar(a, 64, 42, 43, 12)
    a("s_bfe_u32 s12, s42, 0x50006")
    a("s_bfe_u32 s13, s43, 0x50006")
    a(f"s_cmp_eq_u32 s12, s{sMT}")
    a("s_cbranch_scc1 L_k2_watch")
    a(f"s_cmp_eq_u32 s13, s{sMT}")
    a("s_cbranch_scc0 L_k2_join")
    a.label("L_k2_watch")
    a(f"v_mov_b32 v7, {CNT_OFF + 8 * 256}")
    a(f"s_mov_b32 s13, {SPIN_MAX}")
    a.label("L_k2_poll_moe")
    a("global_load_dword v6, v7, s[4:5] sc1")
    a("s_waitcnt vmcnt(0)")
    a("v_readfirstlane_b32 s14, v6")
    a("s_sub_u32 s13, s13, 1")
    a("s_cbranch_scc1 L_k2_poll_moe_done")
    a(f"s_cmp_ge_u32 s14, {NMOE}")
    a("s_cbranch_scc1 L_k2_poll_moe_done")
    a("s_sleep 8")
    a("s_branch L_k2_poll_moe")
    a.label("L_k2_poll_moe_done")
    a(f"v_mov_b32 v6, {F_ALL}")
    a("v_mov_b32 v7, 1")
    a("ds_write_b32 v6, v7")
    a("s_waitcnt lgkmcnt(0)")
    a("s_branch L_k2_join")

def ffn(a):
    SRD_X, SRD_W = 56, 60
    sM, sB1, sB2, sU = 33, 42, 43, 44
    sCAND = 64
    vT, vA, vB = 4, 5, 6
    a.label("L_k2_ffn")
    a("s_barrier")
    a(f"s_cmp_ge_u32 s2, {NMOE}")
    a("s_cbranch_scc1 L_k2_wo_prefetch")
    a("s_and_b32 s33, s2, 7")
    a("s_mul_i32 s33, s33, 12")
    a("s_lshr_b32 s12, s2, 3")
    a("s_add_u32 s33, s33, s12")
    a(f"s_cmp_eq_u32 s{sW}, 11")
    a("s_cbranch_scc1 L_k2_down")
    a(f"s_sub_u32 s{sU}, s{sW}, 9")
    a(f"s_cmp_eq_u32 s{sU}, 0")
    a("s_cselect_b32 s12, s36, s38")
    a("s_cselect_b32 s13, s37, s39")
    a(f"s_mov_b32 s{SRD_W}, s12")
    a(f"s_and_b32 s{SRD_W+1}, s13, 0xffff")
    a(f"s_mov_b32 s{SRD_W+2}, {WG_BYTES}")
    a(f"s_mov_b32 s{SRD_W+3}, 0x00020000")
    srd(a, SRD_X, 6, X_BYTES)
    a(f"s_add_u32 s46, s4, {CAND_OFF}")
    a("s_addc_u32 s47, s5, 0")
    a(f"s_load_dwordx16 s[{sCAND}:{sCAND+15}], s[46:47], 0")
    a(f"s_load_dwordx16 s[{sCAND+16}:{sCAND+31}], s[46:47], 64")
    a(f"v_lshrrev_b32 v{vT}, 1, v{vT1}")
    a(f"v_mul_u32_u24 v{vA}, 3072, v{vT}")
    a(f"v_and_b32 v{vT}, 1, v{vT1}")
    a(f"v_lshl_add_u32 v{vA}, v{vT}, 4, v{vA}")
    a(f"s_mul_i32 s14, s{sU}, 20480")
    a(f"s_add_u32 s14, s14, {L_WG}")
    a(f"s_lshl_b32 s15, s{sM}, 5")
    for q in range(20):
        a(f"s_add_u32 m0, s14, {q * 1024}")
        a(f"s_add_u32 s16, s15, {q * 32 * 3072}")
        a(f"buffer_load_dwordx4 v{vA}, s[{SRD_W}:{SRD_W+3}], s16 offen lds")
        if q >= PACE:
            a(f"s_waitcnt vmcnt({PACE})")
    a("s_waitcnt lgkmcnt(0)")
    top2_scalar(a, sCAND, sB1, sB2, 12)
    a(f"s_and_b32 s{sB1}, s{sB1}, 0x7ff")
    a(f"s_and_b32 s{sB2}, s{sB2}, 0x7ff")
    for k, sB in ((0, sB1), (1, sB2)):
        a(f"s_lshl_b32 s12, s{sB}, 3")
        a("s_add_u32 s46, s4, s12")
        a("s_addc_u32 s47, s5, 0")
        a(f"s_add_u32 s46, s46, {ST_OFF}")
        a("s_addc_u32 s47, s47, 0")
        a(f"s_load_dwordx2 s[{48 + 2 * k}:{49 + 2 * k}], s[46:47], 0")
    a(f"s_mul_i32 s14, s{sU}, 3840")
    a(f"s_add_u32 s14, s14, {L_XG}")
    for k, sB in ((0, sB1), (1, sB2)):
        a(f"s_mul_i32 s12, s{sB}, 1280")
        a(f"s_add_u32 m0, s14, {1280 * k}")
        a("s_nop 0")
        a(f"buffer_load_dwordx4 v{vLANE16}, s[{SRD_X}:{SRD_X+3}], s12 offen lds")
        a("s_mov_b64 exec, 0xffff")
        a(f"buffer_load_dwordx4 v{vLANE16}, s[{SRD_X}:{SRD_X+3}], s12 offen offset:1024 lds")
        a("s_mov_b64 exec, -1")
    for r in range(4):
        a(f"v_mov_b32 v{8 + r}, 0x3f803f80")
    a(f"v_add_u32 v{vT}, s14, v{vLANE16}")
    a(f"ds_write_b128 v{vT}, v[8:11] offset:2560")
    a("s_mov_b64 exec, 0xffff")
    a(f"ds_write_b128 v{vT}, v[8:11] offset:3584")
    a("s_mov_b64 exec, -1")
    vWA, vXA, vF, vACC = 5, 6, 12, 40
    a(f"v_lshrrev_b32 v{vT}, 4, v{vT1}")
    a(f"v_bfe_u32 v7, v{vT1}, 2, 2")
    a(f"v_lshl_add_u32 v{vWA}, v{vT}, 3, v7")
    a(f"v_lshlrev_b32 v{vWA}, 5, v{vWA}")
    a(f"v_and_b32 v7, 3, v{vT1}")
    a(f"v_lshl_add_u32 v{vWA}, v7, 3, v{vWA}")
    a(f"s_mul_i32 s12, s{sU}, 20480")
    a(f"s_add_u32 s12, s12, {L_WG}")
    a(f"v_add_u32 v{vWA}, s12, v{vWA}")
    a(f"v_min_u32 v{vXA}, 2, v7")
    a(f"v_mul_u32_u24 v{vXA}, 1280, v{vXA}")
    a(f"v_lshl_add_u32 v{vXA}, v{vT}, 4, v{vXA}")
    a(f"v_add_u32 v{vXA}, s14, v{vXA}")
    a("s_waitcnt vmcnt(0) lgkmcnt(0)")
    def rd(s_):
        f = vF + 8 * (s_ % 3)
        a(f"ds_read_b64_tr_b16 {vr(f, 2)}, v{vWA} offset:{s_ * 1024}")
        a(f"ds_read_b64_tr_b16 {vr(f + 2, 2)}, v{vWA} offset:{s_ * 1024 + 128}")
        a(f"ds_read_b128 {vr(f + 4, 4)}, v{vXA} offset:{s_ * 64}")
    rd(0); rd(1)
    for s_ in range(20):
        f = vF + 8 * (s_ % 3)
        if s_ + 2 < 20:
            rd(s_ + 2)
            a("s_waitcnt lgkmcnt(6)")
        else:
            a(f"s_waitcnt lgkmcnt({3 * (19 - s_)})")
        c = "0" if s_ == 0 else vr(vACC, 4)
        a(f"v_mfma_f32_16x16x32_bf16 {vr(vACC, 4)}, {vr(f, 4)}, {vr(f + 4, 4)}, {c}")
    a(f"v_and_b32 v7, 15, v{vT1}")
    a("v_cmp_eq_u32 vcc, 0, v7")
    a("v_mov_b32 v8, s50")
    a("v_mov_b32 v9, s51")
    a("v_mov_b32 v10, s48")
    a("v_mov_b32 v11, s49")
    a("v_cndmask_b32 v8, v8, v10, vcc")
    a("v_cndmask_b32 v9, v9, v11, vcc")
    a("s_nop 1")
    for r in range(4):
        a(f"v_mov_b32_dpp v{44 + r}, v{vACC + r} quad_perm:[2,2,2,2] row_mask:0xf bank_mask:0xf")
    for r in range(4):
        a(f"v_fma_f32 v{vACC + r}, -v8, v{44 + r}, v{vACC + r}")
    for r in range(4):
        a(f"v_mul_f32 v{vACC + r}, v{vACC + r}, v9")
    a(f"v_add_u32 v{vT}, {L_U}, v{vLANE16}")
    a(f"v_mov_b32 v52, 1")
    a(f"s_cmp_eq_u32 s{sU}, 0")
    a("s_cbranch_scc1 L_k2_gate")
    a(f"ds_write_b128 v{vT}, {vr(vACC, 4)}")
    a(f"v_mov_b32 v53, {F_U}")
    a("s_waitcnt lgkmcnt(0)")
    a(f"ds_write_b32 v53, v52")
    a("s_branch L_k2_ffn_done")
    a.label("L_k2_gate")
    a(f"v_mov_b32 v53, {F_U}")
    spin(a, "L_wait_u", 53, 54, 12, 1, 13)
    a(f"ds_read_b128 v[44:47], v{vT}")
    for r in range(4):
        a(f"v_mul_f32 v{48 + r}, {hex(f2u(-LOG2E))}, v{vACC + r}")
    for r in range(4):
        a(f"v_exp_f32 v{48 + r}, v{48 + r}")
    for r in range(4):
        a(f"v_add_f32 v{48 + r}, 1.0, v{48 + r}")
    for r in range(4):
        a(f"v_rcp_f32 v{48 + r}, v{48 + r}")
    a("s_waitcnt lgkmcnt(0)")
    for r in range(4):
        a(f"v_mul_f32 v{vACC + r}, v{vACC + r}, v{44 + r}")
    for r in range(4):
        a(f"v_mul_f32 v{vACC + r}, v{vACC + r}, v{48 + r}")
    a(f"v_cvt_pk_bf16_f32 v44, v{vACC}, v{vACC+1}")
    a(f"v_cvt_pk_bf16_f32 v45, v{vACC+2}, v{vACC+3}")
    a(f"v_lshlrev_b32 v{vT}, 3, v{vT1}")
    a(f"v_add_u32 v{vT}, {L_H}, v{vT}")
    a(f"ds_write_b64 v{vT}, v[44:45]")
    a(f"v_mov_b32 v53, {F_H}")
    a("s_waitcnt lgkmcnt(0)")
    a(f"ds_write_b32 v53, v52")
    a("s_branch L_k2_ffn_done")
    a.label("L_k2_down")
    a(f"s_mov_b32 s{SRD_W}, s40")
    a(f"s_and_b32 s{SRD_W+1}, s41, 0xffff")
    a(f"s_mov_b32 s{SRD_W+2}, {WD_BYTES}")
    a(f"s_mov_b32 s{SRD_W+3}, 0x00020000")
    a(f"s_mul_i32 s15, s{sM}, 20480")
    for i in range(5):
        a(f"s_mov_b32 m0, {L_WD + i * 4096}")
        a(f"s_add_u32 s16, s15, {i * 4096}")
        for j in range(4):
            a(f"buffer_load_dwordx4 v{vLANE16}, s[{SRD_W}:{SRD_W+3}], s16 offen offset:{1024 * j} lds")
    vDA, vYO, vH = 5, 6, 8
    a(f"v_lshrrev_b32 v{vT}, 4, v{vT1}")
    a(f"v_bfe_u32 v7, v{vT1}, 2, 2")
    a(f"v_lshl_add_u32 v{vDA}, v{vT}, 2, v7")
    a(f"v_mul_u32_u24 v{vDA}, 1280, v{vDA}")
    a(f"v_and_b32 v7, 3, v{vT1}")
    a(f"v_lshl_add_u32 v{vDA}, v7, 3, v{vDA}")
    a(f"v_add_u32 v{vDA}, {L_WD}, v{vDA}")
    a(f"v_and_b32 v7, 15, v{vT1}")
    a(f"v_mul_u32_u24 v{vYO}, 2560, v7")
    a(f"v_lshl_add_u32 v{vYO}, v{vT}, 4, v{vYO}")
    a("v_cmp_gt_u32 vcc, 2, v7")
    a(f"s_mul_i32 s15, s{sM}, 5120")
    a(f"s_add_u32 s15, s15, {YP_OFF}")
    a("s_mov_b64 s[48:49], vcc")
    a(f"v_lshlrev_b32 v{vT}, 3, v{vT1}")
    a(f"v_add_u32 v{vT}, {L_H}, v{vT}")
    a(f"v_mov_b32 v53, {F_H}")
    a("s_waitcnt vmcnt(0)")
    spin(a, "L_wait_h", 53, 54, 12, 1, 13)
    a(f"ds_read_b64 {vr(vH, 2)}, v{vT}")
    for grp in range(4):
        for k in range(10):
            a(f"ds_read_b64_tr_b16 {vr(12 + 2 * k, 2)}, v{vDA} offset:{32 * (10 * grp + k)}")
        a("s_waitcnt lgkmcnt(0)")
        for k in range(10):
            a(f"v_mfma_f32_16x16x16bf16_1k {vr(52 + 4 * k, 4)}, {vr(12 + 2 * k, 2)}, {vr(vH, 2)}, 0")
        a("s_nop 7")
        a("s_nop 1")
        a("s_mov_b64 exec, s[48:49]")
        for k in range(10):
            a(f"buffer_store_dwordx4 {vr(52 + 4 * k, 4)}, v{vYO}, {WS}, s15 offen offset:{64 * (10 * grp + k)} sc1")
        a("s_mov_b64 exec, -1")
        a("s_nop 1")
    a("s_waitcnt vmcnt(0)")
    a(f"v_mov_b32 v7, {CNT_OFF + 8 * 256}")
    a("v_mov_b32 v8, 1")
    a("s_mov_b64 exec, 1")
    a("global_atomic_add v7, v8, s[4:5]")
    a("s_mov_b64 exec, -1")
    a.label("L_k2_ffn_done")
    a(f"v_mov_b32 v53, {F_MOE}")
    a(f"v_mov_b32 v52, 1")
    a("s_waitcnt lgkmcnt(0)")
    a("s_mov_b64 exec, 1")
    a("ds_add_u32 v53, v52")
    a("s_mov_b64 exec, -1")
    spin(a, "L_wait_moe", 53, 54, 12, 3, 13)
    a.label("L_k2_wo_prefetch")
    out_tile_ids(a)
    a(f"s_mul_i32 s12, s{sNT}, 102400")
    a(f"s_add_u32 s12, s12, {WO2_OFF}")
    a(f"s_sub_u32 s13, s{sW}, 9")
    for g in range(7):
        if g == 6:
            a("s_cmp_eq_u32 s13, 2")
            a("s_cbranch_scc1 L_k2_join")
        a(f"s_add_u32 s14, s13, {3 * g}")
        a("s_lshl_b32 s14, s14, 12")
        a(f"s_add_u32 m0, s14, {L_R}")
        a("s_add_u32 s14, s14, s12")
        for j in range(4):
            a(f"buffer_load_dwordx4 v{vLANE16}, {WS}, s14 offen offset:{1024 * j} lds")
    a("s_branch L_k2_join")

sMT, sNT = 44, 45
def out_tile_ids(a):
    a(f"s_bfe_u32 s{sMT}, s2, 0x20001")
    a(f"s_lshl_b32 s12, s{sQB}, 2")
    a(f"s_add_u32 s{sMT}, s{sMT}, s12")
    a(f"s_and_b32 s{sNT}, s2, 1")
    a(f"s_lshl_b32 s{sNT}, s{sNT}, 2")
    a("s_bfe_u32 s12, s2, 0x20003")
    a(f"s_add_u32 s{sNT}, s{sNT}, s12")

def projection(a):
    SRD_X, SRD_OUT = 56, 60
    sB1, sB2, sOBT = 42, 43, 46
    sCAND = 64
    vL16, vL16H, vL16H2 = vLANE16, 9, 3
    vTOK, vG, vT = 2, 8, 4
    vXO, vTOKG, vSTAT, vX = 10, 11, 12, 14
    vACC = 24
    vWF = (44, 64)
    vOF = 84
    a.label("L_k2_join")
    ST(a, "join")
    a("s_load_dwordx2 s[6:7], s[0:1], 0")
    a("s_load_dwordx2 s[36:37], s[0:1], 64")
    a(f"s_add_u32 s38, s4, {CAND_OFF}")
    a("s_addc_u32 s39, s5, 0")
    a(f"s_load_dwordx16 s[{sCAND}:{sCAND+15}], s[38:39], 0")
    a(f"s_load_dwordx16 s[{sCAND+16}:{sCAND+31}], s[38:39], 64")
    out_tile_ids(a)
    a("v_and_b32 v3, 63, v0")
    a("s_waitcnt vmcnt(0)")
    a("s_barrier")
    ST(a, "E1")
    a("s_waitcnt lgkmcnt(0)")
    srd(a, SRD_X, 6, X_BYTES)
    srd(a, SRD_OUT, 36, X_BYTES)
    a(f"s_cmp_eq_u32 s{sW}, 8")
    a("s_cbranch_scc1 L_k2_sync")
    a(f"s_cmp_ge_u32 s{sW}, 4")
    a("s_cbranch_scc1 L_k2_side")
    a(f"v_and_b32 v{vTOK}, 15, v3")
    a(f"v_lshrrev_b32 v{vG}, 4, v3")
    a(f"s_lshl_b32 s12, s{sMT}, 6")
    a(f"s_lshl_b32 s13, s{sW}, 4")
    a("s_add_u32 s12, s12, s13")
    a(f"v_add_u32 v{vTOKG}, s12, v{vTOK}")
    a(f"v_mul_u32_u24 v{vXO}, 1280, v{vTOKG}")
    a(f"v_lshl_add_u32 v{vXO}, v{vG}, 3, v{vXO}")
    a(f"s_mul_i32 s13, s{sNT}, 160")
    a(f"v_add_u32 v{vXO}, s13, v{vXO}")
    a(f"v_lshlrev_b32 v{vT+1}, 3, v{vTOKG}")
    a(f"s_mov_b32 s12, {ST_OFF}")
    a(f"buffer_load_dwordx2 {vr(vSTAT, 2)}, v{vT+1}, {WS}, s12 offen")
    for j in range(5):
        a(f"buffer_load_dwordx2 {vr(vX + 2 * j, 2)}, v{vXO}, s[{SRD_X}:{SRD_X+3}], 0 offen offset:{32 * j}")
    a(f"s_lshl_b32 s12, s{sMT}, 2")
    a(f"s_add_u32 s12, s12, s{sW}")
    a(f"s_mul_i32 s{sOBT}, s12, 20480")
    a(f"s_add_u32 s{sOBT}, s{sOBT}, {OB_OFF}")
    a(f"v_add_u32 v{vL16H}, {L_R}, v{vL16}")
    a(f"v_add_u32 v{vL16H2}, {L_R + 40960}, v{vL16}")
    for r in range(20):
        a(f"v_mov_b32 v{vACC + r}, 0")
    a("s_waitcnt vmcnt(0)") if ST.on else None
    a("s_barrier")
    ST(a, "E2")
    a("s_waitcnt vmcnt(0)") if ST.on else None
    for B in range(5):
        a(f"s_add_u32 s12, s{sOBT}, {B * 4096}")
        for k in range(4):
            a(f"buffer_load_dwordx4 {vr(vOF + 16 * B + 4 * k, 4)}, v{vL16}, {WS}, s12 offen offset:{1024 * k} sc1")
    def reads(st):
        f = vWF[st & 1]
        reg, off = (vL16H, st * 5120) if st < 8 else ((vL16H2, (st - 8) * 5120) if st < 16 else (vL16, (st - 16) * 5120))
        for j in range(5):
            a(f"ds_read_b128 {vr(f + 4 * j, 4)}, v{reg} offset:{off + 1024 * j}")
    def mfmas(st):
        f = vWF[st & 1]
        for j in range(5):
            a(f"v_mfma_f32_16x16x32_bf16 {vr(vACC + 4 * j, 4)}, {vr(f + 4 * j, 4)}, {vr(vOF + 4 * st, 4)}, {vr(vACC + 4 * j, 4)}")
    reads(0)
    for st in range(20):
        if st == 12:
            pass
        if st < 19:
            if st + 1 == 16:
                a("s_barrier")
            reads(st + 1)
        if st % 4 == 0:
            a(f"s_waitcnt vmcnt({16 - 4 * (st // 4)})")
        a(f"s_waitcnt lgkmcnt({5 if st < 19 else 0})")
        mfmas(st)
    ST(a, "gemm")
    a(f"v_lshlrev_b32 v{vT}, 4, v{vG}")
    a(f"v_add_u32 v{vT}, {L_Y}, v{vT}")
    a("s_waitcnt lgkmcnt(0)")
    top2_scalar(a, sCAND, sB1, sB2, 12)
    a(f"s_and_b32 s{sB1}, s{sB1}, 0x7ff")
    a(f"s_and_b32 s{sB2}, s{sB2}, 0x7ff")
    for sel, sB in ((0, sB1), (1, sB2)):
        lab = f"L_k2_noupd{sel}"
        a(f"s_lshr_b32 s12, s{sB}, 6")
        a(f"s_cmp_lg_u32 s12, s{sMT}")
        a(f"s_cbranch_scc1 {lab}")
        for j in range(5):
            a(f"ds_read_b128 {vr(vWF[0] + 4 * j, 4)}, v{vT} offset:{320 * sel + 64 * j}")
        a(f"v_cmp_eq_u32 vcc, s{sB}, v{vTOKG}")
        a("s_waitcnt lgkmcnt(0)")
        a("s_nop 1")
        for j in range(5):
            for r in range(4):
                a(f"v_cndmask_b32 v{vWF[0] + 4 * j + r}, 0, v{vWF[0] + 4 * j + r}, vcc")
                a(f"v_add_f32 v{vACC + 4 * j + r}, v{vACC + 4 * j + r}, v{vWF[0] + 4 * j + r}")
        a.label(lab)
    a("s_waitcnt vmcnt(0)")
    a("s_nop 7")
    a(f"v_add_f32 v{vT}, 1.0, v{vSTAT+1}")
    a(f"v_mul_f32 v{vT+1}, v{vSTAT}, v{vSTAT+1}")
    for j in range(5):
        for i in range(2):
            a(f"v_lshlrev_b32 v{vT+2}, 16, v{vX + 2 * j + i}")
            a(f"v_and_b32 v{vT+3}, 0xffff0000, v{vX + 2 * j + i}")
            a(f"v_fma_f32 v{vT+2}, v{vT+2}, v{vT}, -v{vT+1}")
            a(f"v_fma_f32 v{vT+3}, v{vT+3}, v{vT}, -v{vT+1}")
            a(f"v_add_f32 v{vT+2}, v{vT+2}, v{vACC + 4 * j + 2 * i}")
            a(f"v_add_f32 v{vT+3}, v{vT+3}, v{vACC + 4 * j + 2 * i + 1}")
            a(f"v_cvt_pk_bf16_f32 v{vX + 2 * j + i}, v{vT+2}, v{vT+3}")
        a(f"buffer_store_dwordx2 {vr(vX + 2 * j, 2)}, v{vXO}, s[{SRD_OUT}:{SRD_OUT+3}], 0 offen offset:{32 * j}")
    if ST.on:
        a("s_waitcnt vmcnt(0)")
    ST(a, "end")
    a("s_endpgm")

    a.label("L_k2_sync")
    a(f"s_lshl_b32 s12, s{sQB}, 8")
    a(f"s_add_u32 s12, s12, {CNT_OFF}")
    a("v_mov_b32 v4, s12")
    a("v_mov_b32 v5, 1")
    a("s_mov_b64 exec, 1")
    a("global_atomic_add v6, v4, v5, s[4:5] sc0")
    a("s_waitcnt vmcnt(0)")
    a("v_readfirstlane_b32 s14, v6")
    a("s_cmp_ge_u32 s14, 31")
    a("s_cbranch_scc1 L_k2_poll_done")
    a(f"s_mov_b32 s13, {SPIN_MAX}")
    a.label("L_k2_poll")
    a("s_sleep 6")
    a("global_load_dword v6, v4, s[4:5] sc1")
    a("s_waitcnt vmcnt(0)")
    a("v_readfirstlane_b32 s14, v6")
    a("s_sub_u32 s13, s13, 1")
    a("s_cbranch_scc1 L_k2_poll_done")
    a("s_cmp_ge_u32 s14, 32")
    a("s_cbranch_scc0 L_k2_poll")
    a.label("L_k2_poll_done")
    a("s_mov_b64 exec, -1")
    a("s_barrier")
    a("s_barrier")
    a("s_endpgm")

    a.label("L_k2_side")
    a(f"s_cmp_ge_u32 s{sW}, 8")
    a("s_cbranch_scc1 L_k2_side_b")
    a(f"s_sub_u32 s13, s{sW}, 4")
    a(f"s_mul_i32 s12, s{sNT}, 102400")
    a(f"s_add_u32 s12, s12, {WO2_OFF + 16 * 5120}")
    a("s_mul_i32 s14, s13, 5120")
    a("s_add_u32 s12, s12, s14")
    a("s_mov_b32 m0, s14")
    a("s_nop 0")
    for j in range(4):
        a(f"buffer_load_dwordx4 v{vL16}, {WS}, s12 offen offset:{1024 * j} lds")
    a("s_add_u32 m0, s14, 4096")
    a("s_add_u32 s12, s12, 4096")
    a(f"buffer_load_dwordx4 v{vL16}, {WS}, s12 offen lds")
    top2_scalar(a, sCAND, sB1, sB2, 12)
    a(f"s_and_b32 s{sB1}, s{sB1}, 0x7ff")
    a(f"s_and_b32 s{sB2}, s{sB2}, 0x7ff")
    a(f"s_lshr_b32 s12, s{sB1}, 6")
    a(f"s_lshr_b32 s13, s{sB2}, 6")
    a(f"s_cmp_eq_u32 s12, s{sMT}")
    a("s_cbranch_scc1 L_k2_routed")
    a(f"s_cmp_eq_u32 s13, s{sMT}")
    a("s_cbranch_scc1 L_k2_routed")
    a("s_waitcnt vmcnt(0)")
    a("s_barrier")
    a("s_barrier")
    a("s_endpgm")
    a.label("L_k2_routed")
    routed(a, sB1, sB2)
    a.label("L_k2_side_b")
    a("s_barrier")
    a("s_barrier")
    a("s_endpgm")

def routed(a, sB1, sB2):
    vT, vY = 4, 20
    a(f"v_mov_b32 v7, {F_ALL}")
    spin(a, "L_rt_all", 7, 6, 14, 1, 15)
    a(f"v_subrev_u32 v{vT}, 256, v0")
    a(f"v_mul_u32_u24 v{vT+1}, 52429, v{vT}")
    a(f"v_lshrrev_b32 v{vT+1}, 20, v{vT+1}")
    a(f"v_mul_u32_u24 v{vT+2}, 20, v{vT+1}")
    a(f"v_sub_u32 v{vT+2}, v{vT}, v{vT+2}")
    a(f"v_mul_u32_u24 v8, {8 * 5120}, v{vT+1}")
    a(f"v_lshl_add_u32 v8, v{vT+2}, 4, v8")
    a(f"v_mul_u32_u24 v9, 320, v{vT+1}")
    a(f"v_lshl_add_u32 v9, v{vT+2}, 4, v9")
    a(f"v_add_u32 v9, {L_RED}, v9")
    a(f"v_lshlrev_b32 v10, 2, v{vT}")
    a(f"v_mov_b32 v11, {F_RT}")
    a("v_mov_b32 v12, 1")
    for sel, sB in ((0, sB1), (1, sB2)):
        lab = f"L_k2_rt_skip{sel}"
        a(f"s_lshr_b32 s12, s{sB}, 6")
        a(f"s_cmp_lg_u32 s12, s{sMT}")
        a(f"s_cbranch_scc1 {lab}")
        a(f"s_lshl_b32 s12, s{sB}, 2")
        a("s_add_u32 s38, s4, s12")
        a("s_addc_u32 s39, s5, 0")
        a(f"s_add_u32 s38, s38, {R_OFF}")
        a("s_addc_u32 s39, s39, 0")
        a("s_load_dword s40, s[38:39], 0")
        a(f"s_mul_i32 s12, s{sNT}, 320")
        a(f"s_add_u32 s12, s12, {YP_OFF + sel * 2560}")
        a(f"v_cmp_gt_u32 vcc, 240, v{vT}")
        a("s_and_saveexec_b64 s[48:49], vcc")
        for i in range(8):
            a(f"s_add_u32 s13, s12, {i * 5120}")
            a(f"buffer_load_dwordx4 {vr(vY + 4 * i, 4)}, v8, {WS}, s13 offen sc1")
        a("s_waitcnt vmcnt(0)")
        for i in range(1, 8):
            for r in range(4):
                a(f"v_add_f32 v{vY + r}, v{vY + r}, v{vY + 4 * i + r}")
        a(f"ds_write_b128 v9, {vr(vY, 4)}")
        a("s_mov_b64 exec, s[48:49]")
        a("s_waitcnt lgkmcnt(0)")
        a("s_mov_b64 exec, 1")
        a(f"ds_add_u32 v11, v12 offset:{8 * sel}")
        a("s_mov_b64 exec, -1")
        a(f"v_add_u32 v13, {8 * sel}, v11")
        spin(a, f"L_rt_a{sel}", 13, 14, 14, 4, 15)
        a(f"v_add_u32 v13, {L_RED}, v10")
        a(f"v_cmp_gt_u32 vcc, 80, v{vT}")
        a("s_and_saveexec_b64 s[48:49], vcc")
        a(f"s_cbranch_execz L_k2_rt_c{sel}")
        for p in range(12):
            a(f"ds_read_b32 v{vY + p}, v13 offset:{320 * p}")
        a("v_mov_b32 v15, s40")
        a(f"v_mul_f32 v15, {hex(f2u(-LOG2E))}, v15")
        a("v_exp_f32 v15, v15")
        a("s_nop 0")
        a("v_add_f32 v15, 1.0, v15")
        a("v_rcp_f32 v15, v15")
        a("s_waitcnt lgkmcnt(0)")
        for p in range(1, 12):
            a(f"v_add_f32 v{vY}, v{vY}, v{vY + p}")
        a(f"v_mul_f32 v{vY}, v{vY}, v15")
        a(f"v_add_u32 v13, {L_Y + 320 * sel}, v10")
        a(f"ds_write_b32 v13, v{vY}")
        a.label(f"L_k2_rt_c{sel}")
        a("s_mov_b64 exec, s[48:49]")
        a("s_waitcnt lgkmcnt(0)")
        a("s_mov_b64 exec, 1")
        a(f"ds_add_u32 v11, v12 offset:{8 * sel + 4}")
        a("s_mov_b64 exec, -1")
        a(f"v_add_u32 v13, {8 * sel + 4}, v11")
        spin(a, f"L_rt_b{sel}", 13, 14, 14, 4, 15)
        a.label(lab)
    a("s_waitcnt vmcnt(0)")

def emit(a):
    entry(a)
    attention(a)
    helpers(a)
    projection(a)
    a.label("L_k2_exit")
    a("s_endpgm")
```

```python
S, D, H, DH, F = 2048, 640, 32, 20, 1536

QB_OFF = 0
KV_OFF = 32 * 64 * 1280
OB_OFF = KV_OFF + 32 * 64 * 2560
ST_OFF = OB_OFF + 32 * 64 * 1280
R_OFF = ST_OFF + 2048 * 8
CAND_OFF = R_OFF + 2048 * 4
YP_OFF = CAND_OFF + 256
WO2_OFF = YP_OFF + 96 * 2 * 640 * 4
CNT_OFF = WO2_OFF + 8 * 20 * 5 * 1024
NCNT = 9 + 24
GP_OFF = CNT_OFF + NCNT * 256
WS_USED = GP_OFF + 96 * 2 * 768
WS_SRD = (WS_USED + 0xFFFF) & ~0xFFFF

X_BYTES = S * D * 2
WQKV_BYTES = D * 3 * D * 2
WO_BYTES = D * D * 2
WG_BYTES = D * F * 2
WD_BYTES = F * D * 2

LOG2E = 1.4426950408889634
QSCALE = LOG2E * DH ** -0.5

import struct
def f2u(x):
    return struct.unpack("<I", struct.pack("<f", x))[0]

class Asm:
    def __init__(self):
        self.lines = []
    def __call__(self, s=""):
        for ln in s.split("\n"):
            self.lines.append(ln if ln.endswith(":") or ln.startswith(".") or not ln.strip() else "    " + ln.strip())
    def label(self, l):
        self.lines.append(l + ":")
    def text(self):
        return "\n".join(self.lines) + "\n"

def vr(a, n=1):
    return f"v{a}" if n == 1 else f"v[{a}:{a+n-1}]"
def sr(a, n=1):
    return f"s{a}" if n == 1 else f"s[{a}:{a+n-1}]"

def srd(a, dst, lo, nbytes):
    a(f"s_mov_b32 s{dst}, s{lo}")
    a(f"s_and_b32 s{dst+1}, s{lo+1}, 0xffff")
    a(f"s_mov_b32 s{dst+2}, {nbytes}")
    a(f"s_mov_b32 s{dst+3}, 0x00020000")

def kernel_header(a, name):
    a(f".globl {name}")
    a(".p2align 8")
    a(f".type {name},@function")
    a.label(name)

def kernel_desc(name, vgpr, sgpr=100):
    acc = (vgpr + 3) // 4 * 4
    return f""".amdhsa_kernel {name}
  .amdhsa_next_free_vgpr {vgpr}
  .amdhsa_next_free_sgpr {sgpr}
  .amdhsa_accum_offset {acc}
  .amdhsa_group_segment_fixed_size 0
  .amdhsa_kernarg_size 88
  .amdhsa_user_sgpr_count 2
  .amdhsa_user_sgpr_kernarg_segment_ptr 1
  .amdhsa_system_sgpr_workgroup_id_x 1
.end_amdhsa_kernel
"""

import os
PROF_OFF = 16 << 20
def prof_on(name):
    return name in os.environ.get("PROF", "").split(",")
class Stamps:
    def __init__(self, name, base=52):
        self.on = prof_on(name)
        self.off = PROF_OFF + {"k1": 0, "k2": 1 << 20, "k3": 2 << 20}[name]
        self.base = base
        self.names = []
    def __call__(self, a, label):
        if not self.on:
            return
        if label not in self.names:
            self.names.append(label)
        i = self.names.index(label)
        assert i < 12
        a(f"s_memtime s[{self.base + 4 * i}:{self.base + 4 * i + 1}]")
        a(f"s_memrealtime s[{self.base + 4 * i + 2}:{self.base + 4 * i + 3}]")
    def store(self, a, swave, srd_ws, vtmp=2):
        if not self.on:
            return
        a("s_mov_b64 exec, -1")
        a("s_waitcnt vmcnt(0) lgkmcnt(0)")
        a("s_lshl_b32 s50, s2, 4")
        a(f"s_add_u32 s50, s50, s{swave}")
        a("s_lshl_b32 s50, s50, 7")
        a(f"s_add_u32 s50, s50, {self.off}")
        a(f"s_mov_b32 s{srd_ws + 2}, 0x2000000")
        a(f"v_mov_b32 v{vtmp}, 0")
        for i in range(12):
            a(f"v_mov_b32 v{vtmp + 1}, s{self.base + 4 * i}")
            a(f"buffer_store_dword v{vtmp + 1}, v{vtmp}, s[{srd_ws}:{srd_ws + 3}], s50 offen offset:{4 * i}")
            a(f"v_mov_b32 v{vtmp + 1}, s{self.base + 4 * i + 2}")
            a(f"buffer_store_dword v{vtmp + 1}, v{vtmp}, s[{srd_ws}:{srd_ws + 3}], s50 offen offset:{64 + 4 * i}")
        a("s_waitcnt vmcnt(0)")


class StampsLane:
    def __init__(self, name, swave, srd_ws, vt):
        self.on = prof_on(name)
        self.off = PROF_OFF + {"k1": 0, "k2": 1 << 20, "k3": 2 << 20}[name]
        self.names, self.swave, self.srd, self.vt = [], swave, srd_ws, vt
    def __call__(self, a, label):
        if not self.on:
            return
        if label not in self.names:
            self.names.append(label)
        i = self.names.index(label)
        assert i < 16
        a("s_memtime s[96:97]")
        a("s_memrealtime s[98:99]")
        a("s_waitcnt lgkmcnt(0)")
        a(f"v_writelane_b32 v{self.vt}, s96, {i}")
        a(f"v_writelane_b32 v{self.vt + 1}, s98, {i}")
    def store(self, a):
        if not self.on:
            return
        v = self.vt
        a("s_mov_b64 exec, -1")
        a("s_lshl_b32 s96, s2, 4")
        a(f"s_add_u32 s96, s96, s{self.swave}")
        a("s_lshl_b32 s96, s96, 7")
        a(f"s_add_u32 s96, s96, {self.off}")
        a(f"s_mov_b32 s{self.srd + 2}, 0x2000000")
        a(f"v_and_b32 v{v+2}, 63, v0")
        a(f"v_lshlrev_b32 v{v+2}, 2, v{v+2}")
        a("s_mov_b64 exec, 0xffff")
        a(f"buffer_store_dword v{v}, v{v+2}, s[{self.srd}:{self.srd + 3}], s96 offen")
        a(f"buffer_store_dword v{v+1}, v{v+2}, s[{self.srd}:{self.srd + 3}], s96 offen offset:64")
        a("s_waitcnt vmcnt(0)")
        a("s_mov_b64 exec, -1")
```

```python
from common import *
from k2moe import top2_scalar
import os

NAME = "attn_proj_kernel"
LDS = 163840
VGPRS = 168
BLOCK = 768
GRID = 256
NMOE = 96

def X(flag):
    return flag in os.environ.get("K2_EXP", "").split(",")

ST = StampsLane("k2", 20, 8, 164)

L_RING = 0
L_R = 61440
L_WG, L_WU, L_WD = L_R, L_R + 20480, L_R + 40960
L_XG, L_XU = L_R + 61440, L_R + 61440 + 3840
L_U, L_H = L_R + 69120, L_R + 69120 + 1024
L_MISC = 143360
F_LAND, F_FREE, F_U, F_H, F_MOE, F_ALL = L_MISC, L_MISC + 4, L_MISC + 8, L_MISC + 12, L_MISC + 16, L_MISC + 20
F_RT = L_MISC + 24
F_FREEC = L_MISC + 64
L_RED, L_Y = L_MISC + 1024, L_MISC + 1024 + 3840
SPIN_MAX = 1 << 20
SPACE = int(os.environ.get("K2_SPACE", "0"))
HPRIO = int(os.environ.get("K2_HPRIO", "3"))
LOWM = int(os.environ.get("K2_LOWM", "0"))

vLANE16, vT0, vT1 = 1, 2, 3
vKA, vKB, vV, vFL = 4, 5, 6, 7
vQ1, vQ2 = 10, 20
vFLAG, vONE = 16, 17
vS = (32, 48)
vO = 64
vP = 80
vKAf = (88, 92)
vKBf = (24, 28)
vVf = ((100, 104), (108, 112))
vTMP = 116

sW, sHEAD, sKV, sQ, sOB, sOM = 20, 21, 22, 23, 24, 25
sVMASK = 26
sLO = 28
sT, sT2, sQB = 30, 31, 32
SRD_WS = 8
WS = f"s[{SRD_WS}:{SRD_WS+3}]"

def lds_tile(t):
    return ((t >> 3) % 3) * 20480 + (t & 7) * 2560

def spin(a, name, vaddr, vtmp, stmp, target, cnt, sleep=1):
    a(f"s_mov_b32 s{cnt}, {SPIN_MAX}")
    a.label(f"{name}_loop")
    a(f"ds_read_b32 v{vtmp}, v{vaddr}")
    a("s_waitcnt lgkmcnt(0)")
    a(f"v_readfirstlane_b32 s{stmp}, v{vtmp}")
    a(f"s_sub_u32 s{cnt}, s{cnt}, 1")
    a(f"s_cbranch_scc1 {name}_done")
    a(f"s_cmp_ge_u32 s{stmp}, {target}")
    a(f"s_cbranch_scc1 {name}_done")
    a(f"s_sleep {sleep}")
    a(f"s_branch {name}_loop")
    a.label(f"{name}_done")

def mfma_s1(a, dst, buf):
    a(f"v_mfma_f32_32x32x16_bf16 {vr(dst, 16)}, {vr(vKAf[buf], 4)}, {vr(vQ1, 4)}, 0")
def mfma_s2(a, dst, buf):
    if X("nos2"): return
    if not X("s2x16"):
        a(f"v_mfma_f32_32x32x8bf16_1k {vr(dst, 16)}, {vr(vKBf[buf], 2)}, {vr(vQ2, 2)}, {vr(dst, 16)}")
    else:
        a(f"v_mfma_f32_32x32x16_bf16 {vr(dst, 16)}, {vr(vKBf[buf], 4)}, {vr(vQ2, 4)}, {vr(dst, 16)}")
def mfma_pv(a, buf, t):
    a(f"v_mfma_f32_32x32x16_bf16 {vr(vO, 16)}, {vr(vVf[buf][t], 4)}, {vr(vP + 4 * t, 4)}, {vr(vO, 16)}")

def read_ka(a, t, buf):
    a(f"ds_read_b128 {vr(vKAf[buf], 4)}, v{vKA} offset:{lds_tile(t)}")
def read_kb(a, t, buf):
    a(f"ds_read_b64 {vr(vKBf[buf], 2)}, v{vKB} offset:{lds_tile(t)}")
def read_v(a, t, part):
    a(f"ds_read_b128 {vr(vVf[t & 1][part], 4)}, v{vV} offset:{lds_tile(t) + 640 * part}")

def tile_body(a, t):
    sc, sn = vS[t & 1], vS[(t + 1) & 1]
    last = t == 63
    ex = lambda r: a(f"v_exp_f32 v{sc + r}, v{sc + r}")
    cv = lambda i: a(f"v_cvt_pk_bf16_f32 v{vP + i}, v{sc + 2 * i}, v{sc + 2 * i + 1}")
    ex(0)
    a("s_setprio 1")
    ex(1)
    if t > 0:
        mfma_pv(a, (t - 1) & 1, 1)
    for r in range(2, 6):
        ex(r)
    if not last:
        mfma_s1(a, sn, (t + 1) & 1)
    ex(6); ex(7)
    for i in range(4):
        cv(i)
    if not X("neworder"):
        if not last:
            mfma_s2(a, sn, (t + 1) & 1)
        for r in range(8, 12):
            ex(r)
        mfma_pv(a, t & 1, 0)
        for r in range(12, 16):
            ex(r)
    else:
        ex(8); ex(9)
        mfma_pv(a, t & 1, 0)
        for r in range(10, 14):
            ex(r)
        if not last:
            mfma_s2(a, sn, (t + 1) & 1)
        ex(14); ex(15)
    for i in range(4, 8):
        cv(i)
    a("s_setprio 0")
    a("s_waitcnt lgkmcnt(0)")
    if t % 8 == 5 and t < 56:
        c = t // 8 + 1
        a(f"v_readfirstlane_b32 s{sT}, v{vFLAG}")
        a(f"s_cmp_ge_u32 s{sT}, {c}")
        a(f"s_cbranch_scc1 L_land_{c}_skip")
        if ST.on:
            a("s_memtime s[90:91]")
            a("s_waitcnt lgkmcnt(0)")
        spin(a, f"L_land_{c}", vFL, vFLAG, sT, c, sT2)
        if ST.on:
            a("s_memtime s[88:89]")
            a("s_waitcnt lgkmcnt(0)")
            a("s_sub_u32 s88, s88, s90")
            a("s_add_u32 s87, s87, s88")
        a.label(f"L_land_{c}_skip")
    if t % 8 == 7 and t < 40:
        a("s_mov_b64 exec, 1")
        a(f"ds_add_u32 v{vFL}, v{vONE} offset:{F_FREEC - F_LAND + 4 * (t // 8)}")
        a("s_mov_b64 exec, -1")
    if t + 3 <= 63:
        if not X("noka"): read_ka(a, t + 3, (t + 1) & 1)
        a(f"s_mov_b64 exec, s[{sLO}:{sLO+1}]")
        if not X("nokb"): read_kb(a, t + 3, (t + 1) & 1)
    if t + 1 <= 63:
        a(f"s_mov_b64 exec, s[{sVMASK}:{sVMASK+1}]")
        if t + 2 <= 63 and not X("nov0"):
            read_v(a, t + 2, 0)
        if not X("nov1"): read_v(a, t + 1, 1)
        a("s_mov_b64 exec, -1")
    if t % 8 == 4 and t < 56:
        a(f"ds_read_b32 v{vFLAG}, v{vFL}")
    if t == 62:
        a("s_nop 1")
    if last:
        a("s_nop 1")
        mfma_pv(a, t & 1, 1)

def row_max(a, s, dst, tmp):
    a(f"v_max3_f32 v{dst}, v{s}, v{s+1}, v{s+2}")
    for r in range(3, 15, 2):
        a(f"v_max3_f32 v{dst}, v{dst}, v{s+r}, v{s+r+1}")
    a(f"v_max_f32 v{dst}, v{dst}, v{s+15}")
    a(f"v_mov_b32 v{tmp}, v{dst}")
    a("s_nop 1")
    a(f"v_permlane32_swap_b32 v{dst}, v{tmp}")
    a("s_nop 1")
    a(f"v_max_f32 v{dst}, v{dst}, v{tmp}")

def entry(a):
    kernel_header(a, NAME)
    ST(a, "entry")
    a(f"s_cmp_ge_u32 s2, {GRID}")
    a("s_cbranch_scc1 L_k2_exit")
    a("s_load_dwordx2 s[4:5], s[0:1], 80")
    a(f"v_lshrrev_b32 v{vT0}, 6, v0")
    a(f"v_and_b32 v{vT1}, 63, v0")
    a(f"v_readfirstlane_b32 s{sW}, v{vT0}")
    a("s_and_b32 s12, s2, 7")
    a("s_lshl_b32 s12, s12, 2")
    a("s_bfe_u32 s13, s2, 0x20003")
    a(f"s_or_b32 s{sHEAD}, s12, s13")
    a(f"s_lshr_b32 s{sQB}, s2, 5")
    a(f"s_mul_i32 s{sKV}, s{sHEAD}, {64 * 2560}")
    a(f"s_add_u32 s{sKV}, s{sKV}, {KV_OFF}")
    a(f"v_lshlrev_b32 v{vLANE16}, 4, v{vT1}")
    a(f"s_cmp_ge_u32 s{sW}, 8")
    a("s_cbranch_scc1 L_k2_helper")

def attention(a):
    a(f"s_lshl_b32 s14, s{sQB}, 3")
    a(f"s_add_u32 s14, s14, s{sW}")
    a(f"s_lshl_b32 s15, s{sHEAD}, 6")
    a("s_add_u32 s15, s15, s14")
    a(f"s_mul_i32 s{sQ}, s15, 1280")
    if QB_OFF:
        a(f"s_add_u32 s{sQ}, s{sQ}, {QB_OFF}")
    a(f"s_mul_i32 s16, s{sW}, 2560")
    a(f"s_add_u32 s17, s{sKV}, s16")
    a(f"s_mov_b32 s{sLO}, -1")
    a(f"s_mov_b32 s{sLO+1}, 0")
    a(f"v_and_b32 v{vT0}, 31, v{vT1}")
    a(f"v_lshlrev_b32 v{vTMP}, 3, v{vT0}")
    for r in range(4):
        a(f"v_mov_b32 v{vQ2 + r}, 0")
    a("s_waitcnt lgkmcnt(0)")
    srd(a, SRD_WS, 4, WS_SRD)
    a("s_mov_b32 m0, s16")
    a("s_nop 0")
    a(f"buffer_load_dwordx4 v{vLANE16}, {WS}, s17 offen lds")
    a(f"buffer_load_dwordx4 v{vLANE16}, {WS}, s17 offen offset:1024 lds")
    a(f"s_mov_b64 exec, s[{sLO}:{sLO+1}]")
    a(f"buffer_load_dwordx4 v{vLANE16}, {WS}, s17 offen offset:2048 lds")
    a(f"buffer_load_dwordx2 {vr(vQ2, 2)}, v{vTMP}, {WS}, s{sQ} offen offset:1024")
    a("s_mov_b64 exec, -1")
    a(f"buffer_load_dwordx4 {vr(vQ1, 4)}, v{vLANE16}, {WS}, s{sQ} offen")
    a(f"s_mul_i32 s{sOB}, s14, 40960")
    a(f"s_add_u32 s{sOB}, s{sOB}, {OB_OFF}")
    a(f"s_lshr_b32 s15, s{sHEAD}, 3")
    a("s_mul_i32 s15, s15, 5120")
    a(f"s_add_u32 s{sOB}, s{sOB}, s15")
    a(f"s_bfe_u32 s15, s{sHEAD}, 0x20001")
    a("s_lshl_b32 s15, s15, 10")
    a(f"s_and_b32 s16, s{sHEAD}, 1")
    a("s_lshl_b32 s16, s16, 9")
    a("s_add_u32 s15, s15, s16")
    a(f"s_add_u32 s{sOM}, s{sOB}, s15")
    a(f"s_and_b32 s15, s{sHEAD}, 3")
    a("s_lshl_b32 s15, s15, 8")
    a(f"s_bfe_u32 s16, s{sHEAD}, 0x10002")
    a("s_lshl_b32 s16, s16, 3")
    a("s_add_u32 s15, s15, s16")
    a(f"s_add_u32 s{sOB}, s{sOB}, s15")
    a(f"s_add_u32 s{sOB}, s{sOB}, 4096")
    a(f"s_mov_b32 s{sVMASK}, 0x000fffff")
    a(f"s_mov_b32 s{sVMASK+1}, 0x000fffff")
    a(f"v_mov_b32 v{vKA}, v{vLANE16}")
    a(f"v_add_u32 v{vKB}, 1024, v{vTMP}")
    a(f"v_lshrrev_b32 v{vTMP+1}, 5, v{vT1}")
    a(f"v_mul_u32_u24 v{vTMP+1}, 320, v{vTMP+1}")
    a(f"v_lshl_add_u32 v{vTMP+1}, v{vT0}, 4, v{vTMP+1}")
    a(f"v_add_u32 v{vV}, 1280, v{vTMP+1}")
    a(f"v_mov_b32 v{vFL}, {F_LAND}")
    a(f"v_mov_b32 v{vONE}, 1")
    a(f"v_and_b32 v{vTMP+1}, 27, v{vT0}")
    a(f"v_cmp_eq_u32 vcc, 24, v{vTMP+1}")
    a(f"v_mov_b32 v{vTMP+2}, 0x3f803f80")
    a("s_nop 1")
    a(f"v_cndmask_b32 v{vTMP+1}, 0, v{vTMP+2}, vcc")
    for b in range(2):
        for t in range(2):
            for r in range(4):
                a(f"v_mov_b32 v{vVf[b][t] + r}, v{vTMP+1}")
    for r in range(16):
        a(f"v_mov_b32 v{vO + r}, 0")
    a(f"v_cmp_le_u32 vcc, 32, v{vT1}")
    a(f"v_mov_b32 v{vTMP+2}, 0x3f80")
    a("s_nop 1")
    for b in range(2):
        a(f"v_cndmask_b32 v{vKBf[b]}, 0, v{vTMP+2}, vcc")
        for r in range(1, 4):
            a(f"v_mov_b32 v{vKBf[b] + r}, 0")
    a("s_waitcnt vmcnt(0)")
    a("s_barrier")
    ST(a, "B0")
    read_ka(a, 0, 0)
    read_ka(a, 1, 1)
    a(f"s_mov_b64 exec, s[{sLO}:{sLO+1}]")
    read_kb(a, 0, 0)
    read_kb(a, 1, 1)
    a(f"s_mov_b64 exec, s[{sVMASK}:{sVMASK+1}]")
    read_v(a, 0, 0); read_v(a, 0, 1); read_v(a, 1, 0)
    a("s_mov_b64 exec, -1")
    a("s_waitcnt lgkmcnt(3)")
    mfma_s1(a, vS[0], 0)
    a("s_nop 11")
    mfma_s2(a, vS[0], 0)
    a("s_nop 15")
    a("s_nop 3")
    row_max(a, vS[0], vTMP, vTMP + 1)
    a(f"v_sub_f32 v{vTMP}, 0, v{vTMP}")
    a(f"v_cvt_pk_bf16_f32 v{vTMP}, v{vTMP}, 0")
    a(f"v_cmp_le_u32 vcc, 32, v{vT1}")
    a("s_nop 1")
    a(f"v_cndmask_b32 v{vQ2}, v{vQ2}, v{vTMP}, vcc")
    a("s_nop 1")
    mfma_s1(a, vS[0], 0)
    a("s_nop 11")
    mfma_s2(a, vS[0], 0)
    read_ka(a, 2, 0)
    a(f"s_mov_b64 exec, s[{sLO}:{sLO+1}]")
    read_kb(a, 2, 0)
    a("s_mov_b64 exec, -1")
    a("s_waitcnt lgkmcnt(2)")
    a("s_nop 15")
    a("s_nop 3")
    if ST.on:
        a("s_mov_b32 s87, 0")
    for t in range(64):
        if t in (0, 8, 32, 56):
            ST(a, f"t{t}")
        tile_body(a, t)
    ST(a, "loopend")
    if ST.on:
        a(f"v_writelane_b32 v{ST.vt}, s87, 15")
    a("s_nop 15")
    a("s_nop 3")
    a(f"v_mov_b32 v{vTMP}, v{vO + 12}")
    for r in range(12):
        a(f"v_fma_f32 v{vTMP}, v{vO + r}, 0, v{vTMP}")
    a(f"v_mov_b32 v{vTMP+1}, {hex(f2u(2.0 ** 100))}")
    a(f"v_cmp_nlt_f32 vcc, v{vTMP}, v{vTMP+1}")
    a("s_nop 4")
    a("s_cbranch_vccz L_attn_store")
    safe_path(a)
    a.label("L_attn_store")
    a(f"v_rcp_f32 v{vTMP}, v{vO + 12}")
    a("s_nop 1")
    for r in range(12):
        a(f"v_mul_f32 v{vO + r}, v{vO + r}, v{vTMP}")
    for i in range(6):
        a(f"v_cvt_pk_bf16_f32 v{vP + i}, v{vO + 2 * i}, v{vO + 2 * i + 1}")
    a(f"v_and_b32 v{vTMP+1}, 15, v0")
    a(f"v_lshlrev_b32 v{vTMP+1}, 4, v{vTMP+1}")
    a(f"v_bfe_u32 v{vTMP+2}, v0, 4, 1")
    a(f"v_mul_u32_u24 v{vTMP+2}, 20480, v{vTMP+2}")
    a(f"v_add_u32 v{vTMP+1}, v{vTMP+1}, v{vTMP+2}")
    a(f"v_bfe_u32 v{vTMP+2}, v0, 5, 1")
    a(f"v_lshl_add_u32 v{vTMP+2}, v{vTMP+2}, 8, v{vTMP+1}")
    a(f"buffer_store_dwordx4 {vr(vP, 4)}, v{vTMP+2}, {WS}, s{sOM} offen sc1")
    a(f"s_mov_b64 exec, s[{sLO}:{sLO+1}]")
    a(f"buffer_store_dwordx2 {vr(vP + 4, 2)}, v{vTMP+1}, {WS}, s{sOB} offen sc1")
    a("s_mov_b64 exec, -1")
    a("s_branch L_k2_join")

def safe_path(a):
    vM, vMN, vAL = vTMP, vTMP + 1, vTMP + 2
    vA2, vA3 = vTMP + 5, vTMP + 6
    s = vS[0]
    a(f"v_and_b32 v{vA2}, 31, v0")
    a(f"v_lshlrev_b32 v{vA2}, 3, v{vA2}")
    a(f"v_mov_b32 v{vA3}, v{vV}")
    a(f"v_mov_b32 v{vM}, 0xff7fffff")
    a(f"v_and_b32 v{vAL}, 63, v0")
    a(f"v_cmp_gt_u32 vcc, 32, v{vAL}")
    a("s_nop 1")
    a(f"v_cndmask_b32 v{vQ2}, 0, v{vQ2}, vcc")
    for r in range(16):
        a(f"v_mov_b32 v{vO + r}, 0")
    a(f"s_mov_b32 s{sT}, s{sKV}")
    a("s_mov_b32 s15, 64")
    a.label("L_safe_loop")
    a(f"buffer_load_dwordx4 {vr(vKAf[0], 4)}, v{vLANE16}, {WS}, s{sT} offen")
    a(f"s_mov_b64 exec, s[{sLO}:{sLO+1}]")
    a(f"buffer_load_dwordx2 {vr(vKBf[0], 2)}, v{vA2}, {WS}, s{sT} offen offset:1024")
    a(f"s_mov_b64 exec, s[{sVMASK}:{sVMASK+1}]")
    a(f"buffer_load_dwordx4 {vr(vVf[0][0], 4)}, v{vA3}, {WS}, s{sT} offen")
    a(f"buffer_load_dwordx4 {vr(vVf[0][1], 4)}, v{vA3}, {WS}, s{sT} offen offset:640")
    a("s_mov_b64 exec, -1")
    a("s_waitcnt vmcnt(0)")
    mfma_s1(a, s, 0)
    a("s_nop 11")
    mfma_s2(a, s, 0)
    a("s_nop 15")
    a("s_nop 3")
    row_max(a, s, vMN, vAL)
    a(f"v_max_f32 v{vMN}, v{vMN}, v{vM}")
    a(f"v_sub_f32 v{vAL}, v{vM}, v{vMN}")
    a(f"v_exp_f32 v{vAL}, v{vAL}")
    a(f"v_mov_b32 v{vM}, v{vMN}")
    for r in range(16):
        a(f"v_sub_f32 v{s + r}, v{s + r}, v{vMN}")
    for r in range(16):
        a(f"v_exp_f32 v{s + r}, v{s + r}")
    for r in range(16):
        a(f"v_mul_f32 v{vO + r}, v{vO + r}, v{vAL}")
    for i in range(8):
        a(f"v_cvt_pk_bf16_f32 v{vP + i}, v{s + 2 * i}, v{s + 2 * i + 1}")
    a("s_nop 1")
    mfma_pv(a, 0, 0)
    mfma_pv(a, 0, 1)
    a(f"s_add_u32 s{sT}, s{sT}, 2560")
    a("s_sub_u32 s15, s15, 1")
    a("s_nop 15")
    a("s_nop 3")
    a("s_cmp_lg_u32 s15, 0")
    a("s_cbranch_scc1 L_safe_loop")

def helpers(a):
    a.label("L_k2_helper")
    a(f"s_setprio {HPRIO}")
    a("s_load_dwordx2 s[6:7], s[0:1], 0")
    a("s_load_dwordx4 s[36:39], s[0:1], 40")
    a("s_load_dwordx2 s[40:41], s[0:1], 56")
    a("s_waitcnt lgkmcnt(0)")
    srd(a, SRD_WS, 4, WS_SRD)
    a(f"s_cmp_lg_u32 s{sW}, 8")
    a("s_cbranch_scc1 L_k2_ffn")
    ring_loader(a)
    ffn(a)

def ring_loader(a):
    vF, vX = 4, 5
    a(f"v_lshlrev_b32 v{vF}, 2, v{vT1}")
    a(f"v_add_u32 v{vF}, {L_MISC}, v{vF}")
    a(f"v_mov_b32 v{vX}, 0")
    a(f"ds_write_b32 v{vF}, v{vX}")
    a(f"v_mov_b32 v{vF}, {F_LAND}")
    a("s_waitcnt lgkmcnt(0)")
    a("s_barrier")
    def chunk(c):
        for i in range(5):
            a(f"s_mov_b32 m0, {(c % 3) * 20480 + i * 4096}")
            a(f"s_add_u32 s{sT}, s{sKV}, {c * 20480 + i * 4096}")
            for j in range(4):
                a(f"buffer_load_dwordx4 v{vLANE16}, {WS}, s{sT} offen offset:{1024 * j} lds")
    def landed(c):
        a(f"v_mov_b32 v{vX}, {c}")
        a(f"ds_write_b32 v{vF}, v{vX}")
    chunk(1); chunk(2)
    a("s_waitcnt vmcnt(20)")
    landed(1)
    a("s_waitcnt vmcnt(0)")
    landed(2)
    for c in range(3, 8):
        a(f"v_mov_b32 v6, {F_FREEC + 4 * (c - 3)}")
        spin(a, f"L_free_{c}", 6, 7, sT, 8, sT2, sleep=6)
        chunk(c)
        a("s_waitcnt vmcnt(0)")
        landed(c)
    a(f"s_add_u32 s38, s4, {CAND_OFF}")
    a("s_addc_u32 s39, s5, 0")
    a("s_load_dwordx16 s[64:79], s[38:39], 0")
    a("s_load_dwordx16 s[80:95], s[38:39], 64")
    out_tile_ids(a)
    a("s_waitcnt lgkmcnt(0)")
    top2_scalar(a, 64, 42, 43, 12)
    a("s_bfe_u32 s12, s42, 0x50006")
    a("s_bfe_u32 s13, s43, 0x50006")
    a(f"s_cmp_eq_u32 s12, s{sMT}")
    a("s_cbranch_scc1 L_k2_watch")
    a(f"s_cmp_eq_u32 s13, s{sMT}")
    a("s_cbranch_scc0 L_k2_join")
    a.label("L_k2_watch")
    a(f"v_mov_b32 v7, {CNT_OFF + 8 * 256}")
    a(f"s_mov_b32 s13, {SPIN_MAX}")
    a.label("L_k2_poll_moe")
    a("global_load_dword v6, v7, s[4:5] sc1")
    a("s_waitcnt vmcnt(0)")
    a("v_readfirstlane_b32 s14, v6")
    a("s_sub_u32 s13, s13, 1")
    a("s_cbranch_scc1 L_k2_poll_moe_done")
    a(f"s_cmp_ge_u32 s14, {NMOE}")
    a("s_cbranch_scc1 L_k2_poll_moe_done")
    a("s_sleep 8")
    a("s_branch L_k2_poll_moe")
    a.label("L_k2_poll_moe_done")
    a(f"v_mov_b32 v6, {F_ALL}")
    a("v_mov_b32 v7, 1")
    a("ds_write_b32 v6, v7")
    a("s_waitcnt lgkmcnt(0)")
    a("s_branch L_k2_join")

def slice_index(a):
    a("s_and_b32 s33, s2, 7")
    a("s_mul_i32 s33, s33, 12")
    a("s_lshr_b32 s12, s2, 3")
    a("s_add_u32 s33, s33, s12")

def ffn(a):
    SRD_X, SRD_W = 56, 60
    sM, sB1, sB2, sU = 33, 42, 43, 44
    sCAND = 64
    vT, vA, vB = 4, 5, 6
    a.label("L_k2_ffn")
    a("s_barrier")
    a(f"s_cmp_ge_u32 s2, {NMOE if not X('nomoe') else 0}")
    a("s_cbranch_scc1 L_k2_wo_prefetch")
    slice_index(a)
    a(f"s_cmp_eq_u32 s{sW}, 11")
    a("s_cbranch_scc1 L_k2_down")
    a(f"s_sub_u32 s{sU}, s{sW}, 9")
    srd(a, SRD_X, 6, X_BYTES)
    a(f"s_add_u32 s46, s4, {CAND_OFF}")
    a("s_addc_u32 s47, s5, 0")
    a(f"s_load_dwordx16 s[{sCAND}:{sCAND+15}], s[46:47], 0")
    a(f"s_load_dwordx16 s[{sCAND+16}:{sCAND+31}], s[46:47], 64")
    a(f"s_cmp_eq_u32 s{sU}, 0")
    a("s_cbranch_scc0 L_k2_up_srd")
    srd(a, SRD_W, 36, WG_BYTES)
    a("s_branch L_k2_srd_done")
    a.label("L_k2_up_srd")
    srd(a, SRD_W, 38, WG_BYTES)
    a.label("L_k2_srd_done")
    a(f"v_lshrrev_b32 v{vT}, 3, v{vT1}")
    a(f"v_mul_u32_u24 v{vA}, 3072, v{vT}")
    a(f"v_and_b32 v7, 7, v{vT1}")
    a(f"v_xor_b32 v7, v7, v{vT}")
    a(f"v_lshl_add_u32 v{vA}, v7, 4, v{vA}")
    a(f"s_and_b32 s17, s{sM}, 3")
    a(f"s_mul_i32 s15, s17, {160 * 3072}")
    a(f"s_lshr_b32 s16, s{sM}, 2")
    a("s_lshl_b32 s16, s16, 7")
    a("s_add_u32 s15, s15, s16")
    a(f"s_mul_i32 s14, s{sU}, 20480")
    a(f"s_add_u32 s14, s14, {L_WG}")
    for q in range(20 if not X("moe_nodma") else 0):
        a(f"s_add_u32 m0, s14, {q * 1024}")
        a(f"s_add_u32 s16, s15, {q * 8 * 3072}")
        a(f"buffer_load_dwordx4 v{vA}, s[{SRD_W}:{SRD_W+3}], s16 offen lds")
    a("s_waitcnt lgkmcnt(0)")
    top2_scalar(a, sCAND, sB1, sB2, 12)
    a(f"s_and_b32 s{sB1}, s{sB1}, 0x7ff")
    a(f"s_and_b32 s{sB2}, s{sB2}, 0x7ff")
    for k, sB in ((0, sB1), (1, sB2)):
        a(f"s_lshl_b32 s12, s{sB}, 3")
        a("s_add_u32 s46, s4, s12")
        a("s_addc_u32 s47, s5, 0")
        a(f"s_add_u32 s46, s46, {ST_OFF}")
        a("s_addc_u32 s47, s47, 0")
        a(f"s_load_dwordx2 s[{48 + 2 * k}:{49 + 2 * k}], s[46:47], 0")
    a(f"s_mul_i32 s14, s{sU}, 1024")
    a(f"s_add_u32 s14, s14, {L_XG}")
    a("s_mul_i32 s16, s17, 320")
    a("s_mov_b64 exec, 0xfffff")
    for k, sB in ((0, sB1), (1, sB2)):
        a(f"s_mul_i32 s12, s{sB}, 1280")
        a("s_add_u32 s12, s12, s16")
        a(f"s_add_u32 m0, s14, {320 * k}")
        a("s_nop 0")
        a(f"buffer_load_dwordx4 v{vLANE16}, s[{SRD_X}:{SRD_X+3}], s12 offen lds")
    for r in range(4):
        a(f"v_mov_b32 v{8 + r}, 0x3f803f80")
    a(f"v_add_u32 v{vT}, s14, v{vLANE16}")
    a(f"ds_write_b128 v{vT}, v[8:11] offset:640")
    a("s_mov_b64 exec, -1")
    vWA, vXA, vF, vACC = 56, 6, 12, 40
    a(f"v_lshrrev_b32 v{vT}, 4, v{vT1}")
    a(f"v_bfe_u32 v7, v{vT1}, 2, 2")
    a(f"v_lshl_add_u32 v8, v{vT}, 3, v7")
    a(f"v_and_b32 v9, 3, v{vT1}")
    a(f"s_mul_i32 s12, s{sU}, 20480")
    a(f"s_add_u32 s12, s12, {L_WG}")
    for ct in range(4):
        for rd_ in range(2):
            a(f"v_add_u32 v10, {4 * rd_}, v8")
            a(f"v_lshrrev_b32 v11, 1, v9")
            a(f"v_add_u32 v11, {2 * ct}, v11")
            a(f"v_and_b32 v60, 7, v10") if False else None
            a(f"v_and_b32 v{vT}, 7, v10")
            a(f"v_xor_b32 v11, v11, v{vT}")
            a(f"v_lshlrev_b32 v11, 4, v11")
            a(f"v_lshl_add_u32 v11, v10, 7, v11")
            a(f"v_and_b32 v{vT}, 1, v9")
            a(f"v_lshl_add_u32 v11, v{vT}, 3, v11")
            a(f"v_add_u32 v{vWA + 2 * ct + rd_}, s12, v11")
    a(f"v_lshrrev_b32 v{vT}, 4, v{vT1}")
    a(f"v_min_u32 v{vXA}, 2, v9")
    a(f"v_mul_u32_u24 v{vXA}, 320, v{vXA}")
    a(f"v_lshl_add_u32 v{vXA}, v{vT}, 4, v{vXA}")
    a(f"v_add_u32 v{vXA}, s14, v{vXA}")
    a("s_waitcnt vmcnt(0) lgkmcnt(0)")
    vACC = 64
    for s_ in range(5 if not X("moe_nocomp") else 0):
        a(f"ds_read_b128 v[12:15], v{vXA} offset:{s_ * 64}")
        for ct in range(4):
            for rd_ in range(2):
                a(f"ds_read_b64_tr_b16 {vr(16 + 4 * ct + 2 * rd_, 2)}, v{vWA + 2 * ct + rd_} offset:{s_ * 4096}")
        if LOWM: a("s_setprio 0")
        for ct in range(4):
            a(f"s_waitcnt lgkmcnt({6 - 2 * ct})")
            c = "0" if s_ == 0 else vr(vACC + 4 * ct, 4)
            a(f"v_mfma_f32_16x16x32_bf16 {vr(vACC + 4 * ct, 4)}, {vr(16 + 4 * ct, 4)}, v[12:15], {c}")
            if SPACE: a(f"s_nop {SPACE - 1}")
    if LOWM:
        a("s_nop 7")
        a(f"s_setprio {HPRIO}")
    a(f"v_and_b32 v7, 15, v{vT1}")
    a(f"v_lshlrev_b32 v8, 8, v7")
    a(f"v_lshl_add_u32 v8, v{vT}, 4, v8")
    a("v_cmp_gt_u32 vcc, 3, v7")
    a(f"s_lshl_b32 s12, s{sM}, 1")
    a(f"s_add_u32 s12, s12, s{sU}")
    a("s_mul_i32 s12, s12, 768")
    a(f"s_add_u32 s12, s12, {GP_OFF}")
    a("s_mov_b64 s[52:53], vcc")
    a("s_nop 3")
    a("s_mov_b64 exec, s[52:53]")
    for ct in range(4):
        a(f"buffer_store_dwordx4 {vr(vACC + 4 * ct, 4)}, v8, {WS}, s12 offen offset:{64 * ct} sc1")
    a("s_mov_b64 exec, -1")
    a("s_waitcnt vmcnt(0)")
    a(f"v_mov_b32 v52, 1")
    a(f"v_mov_b32 v53, {F_U}")
    a(f"s_cmp_eq_u32 s{sU}, 0")
    a("s_cbranch_scc1 L_k2_gate")
    a("ds_write_b32 v53, v52")
    a("s_branch L_k2_ffn_done")
    a.label("L_k2_gate")
    spin(a, "L_wait_u", 53, 54, 12, 1, 13, sleep=2)
    a(f"s_lshr_b32 s12, s{sM}, 2")
    a("s_add_u32 s12, s12, 9")
    a("s_lshl_b32 s12, s12, 8")
    a(f"s_add_u32 s12, s12, {CNT_OFF}")
    a("v_mov_b32 v9, s12")
    a("s_mov_b64 exec, 1")
    a("global_atomic_add v9, v52, s[4:5]")
    a(f"s_mov_b32 s13, {SPIN_MAX}")
    a.label("L_k2_poll_cb")
    a("global_load_dword v10, v9, s[4:5] sc1")
    a("s_waitcnt vmcnt(0)")
    a("v_readfirstlane_b32 s14, v10")
    a("s_sub_u32 s13, s13, 1")
    a("s_cbranch_scc1 L_k2_poll_cb_done")
    a("s_cmp_ge_u32 s14, 4")
    a("s_cbranch_scc1 L_k2_poll_cb_done")
    a("s_sleep 8")
    a("s_branch L_k2_poll_cb")
    a.label("L_k2_poll_cb_done")
    a("s_mov_b64 exec, -1")
    a(f"s_andn2_b32 s12, s{sM}, 3")
    a("s_mul_i32 s12, s12, 1536")
    a(f"s_add_u32 s12, s12, {GP_OFF}")
    a("s_lshl_b32 s16, s17, 6")
    a("s_add_u32 s12, s12, s16")
    a("s_mov_b64 exec, s[52:53]")
    for kq in range(4):
        for mat in range(2):
            a(f"s_add_u32 s16, s12, {kq * 1536 + mat * 768}")
            a(f"buffer_load_dwordx4 {vr(12 + 16 * mat + 4 * kq, 4)}, v8, {WS}, s16 offen sc1")
    a("s_mov_b64 exec, -1")
    a(f"v_and_b32 v7, 15, v{vT1}")
    a("v_cmp_eq_u32 vcc, 0, v7")
    a("v_mov_b32 v8, s50")
    a("v_mov_b32 v9, s51")
    a("v_mov_b32 v10, s48")
    a("v_mov_b32 v11, s49")
    a("v_cndmask_b32 v8, v8, v10, vcc")
    a("v_cndmask_b32 v9, v9, v11, vcc")
    a("s_waitcnt vmcnt(0)")
    for mat in range(2):
        b0 = 12 + 16 * mat
        for r in range(4):
            a(f"v_add_f32 v{b0 + r}, v{b0 + r}, v{b0 + 4 + r}")
            a(f"v_add_f32 v{b0 + 8 + r}, v{b0 + 8 + r}, v{b0 + 12 + r}")
        for r in range(4):
            a(f"v_add_f32 v{b0 + r}, v{b0 + r}, v{b0 + 8 + r}")
        a("s_nop 1")
        for r in range(4):
            a(f"v_mov_b32_dpp v{b0 + 4 + r}, v{b0 + r} quad_perm:[2,2,2,2] row_mask:0xf bank_mask:0xf")
        for r in range(4):
            a(f"v_fma_f32 v{b0 + r}, -v8, v{b0 + 4 + r}, v{b0 + r}")
        for r in range(4):
            a(f"v_mul_f32 v{b0 + r}, v{b0 + r}, v9")
    vACC = 12
    for r in range(4):
        a(f"v_mul_f32 v{48 + r}, {hex(f2u(-LOG2E))}, v{vACC + r}")
    for r in range(4):
        a(f"v_exp_f32 v{48 + r}, v{48 + r}")
    for r in range(4):
        a(f"v_add_f32 v{48 + r}, 1.0, v{48 + r}")
    for r in range(4):
        a(f"v_rcp_f32 v{48 + r}, v{48 + r}")
    for r in range(4):
        a(f"v_mul_f32 v{vACC + r}, v{vACC + r}, v{28 + r}")
    for r in range(4):
        a(f"v_mul_f32 v{vACC + r}, v{vACC + r}, v{48 + r}")
    a(f"v_cvt_pk_bf16_f32 v44, v{vACC}, v{vACC+1}")
    a(f"v_cvt_pk_bf16_f32 v45, v{vACC+2}, v{vACC+3}")
    a(f"v_lshlrev_b32 v{vT}, 3, v{vT1}")
    a(f"v_add_u32 v{vT}, {L_H}, v{vT}")
    a(f"ds_write_b64 v{vT}, v[44:45]")
    a(f"v_mov_b32 v53, {F_H}")
    a("s_waitcnt lgkmcnt(0)")
    a(f"ds_write_b32 v53, v52")
    a("s_branch L_k2_ffn_done")
    a.label("L_k2_down")
    srd(a, SRD_W, 40, WD_BYTES)
    a(f"s_mul_i32 s15, s{sM}, 20480")
    for i in range(5 if not X("moe_nodma") else 0):
        a(f"s_mov_b32 m0, {L_WD + i * 4096}")
        a(f"s_add_u32 s16, s15, {i * 4096}")
        for j in range(4):
            a(f"buffer_load_dwordx4 v{vLANE16}, s[{SRD_W}:{SRD_W+3}], s16 offen offset:{1024 * j} lds")
    vDA, vYO, vH = 5, 6, 8
    a(f"v_lshrrev_b32 v{vT}, 4, v{vT1}")
    a(f"v_bfe_u32 v7, v{vT1}, 2, 2")
    a(f"v_lshl_add_u32 v{vDA}, v{vT}, 2, v7")
    a(f"v_mul_u32_u24 v{vDA}, 1280, v{vDA}")
    a(f"v_and_b32 v7, 3, v{vT1}")
    a(f"v_lshl_add_u32 v{vDA}, v7, 3, v{vDA}")
    a(f"v_add_u32 v{vDA}, {L_WD}, v{vDA}")
    a(f"v_and_b32 v7, 15, v{vT1}")
    a(f"v_mul_u32_u24 v{vYO}, 2560, v7")
    a(f"v_lshl_add_u32 v{vYO}, v{vT}, 4, v{vYO}")
    a(f"v_add_u32 v{vYO}, {L_XG}, v{vYO}")
    a("v_cmp_gt_u32 vcc, 2, v7")
    a(f"s_mul_i32 s15, s{sM}, 5120")
    a(f"s_add_u32 s15, s15, {YP_OFF}")
    a("s_mov_b64 s[48:49], vcc")
    a(f"v_lshlrev_b32 v{vT}, 3, v{vT1}")
    a(f"v_add_u32 v{vT}, {L_H}, v{vT}")
    a(f"v_mov_b32 v53, {F_H}")
    a("s_waitcnt vmcnt(0)")
    spin(a, "L_wait_h", 53, 54, 12, 1, 13, sleep=8)
    a(f"ds_read_b64 {vr(vH, 2)}, v{vT}")
    for grp in range(4 if not X("moe_nocomp") else 0):
        for k in range(10):
            a(f"ds_read_b64_tr_b16 {vr(12 + 2 * k, 2)}, v{vDA} offset:{32 * (10 * grp + k)}")
        a("s_waitcnt lgkmcnt(0)")
        if LOWM: a("s_setprio 0")
        for k in range(10):
            if X("down32"):
                a(f"v_mfma_f32_16x16x32_bf16 {vr(52 + 4 * k, 4)}, v[12:15], v[16:19], 0")
            elif not X("down_nomfma"):
                a(f"v_mfma_f32_16x16x16bf16_1k {vr(52 + 4 * k, 4)}, {vr(12 + 2 * k, 2)}, {vr(vH, 2)}, 0")
            if SPACE: a(f"s_nop {SPACE - 1}")
        a("s_nop 7")
        a("s_nop 1")
        if LOWM: a(f"s_setprio {HPRIO}")
        a("s_mov_b64 exec, s[48:49]")
        for k in range(10):
            a(f"ds_write_b128 v{vYO}, {vr(52 + 4 * k, 4)} offset:{64 * (10 * grp + k)}")
        a("s_mov_b64 exec, -1")
        a("s_waitcnt lgkmcnt(0)")
    a(f"v_add_u32 v{vT}, {L_XG}, v{vLANE16}")
    for i in range(5):
        a(f"ds_read_b128 {vr(12 + 4 * i, 4)}, v{vT} offset:{1024 * i}")
    a("s_waitcnt lgkmcnt(0)")
    for i in range(5):
        a(f"s_add_u32 s16, s15, {1024 * i}")
        a(f"buffer_store_dwordx4 {vr(12 + 4 * i, 4)}, v{vLANE16}, {WS}, s16 offen sc1")
    a("s_waitcnt vmcnt(0)")
    a(f"v_mov_b32 v7, {CNT_OFF + 8 * 256}")
    a("v_mov_b32 v8, 1")
    a("s_mov_b64 exec, 1")
    a("global_atomic_add v7, v8, s[4:5]")
    a("s_mov_b64 exec, -1")
    a.label("L_k2_ffn_done")
    ST(a, "ffn_done")
    a(f"v_mov_b32 v53, {F_MOE}")
    a(f"v_mov_b32 v52, 1")
    a("s_waitcnt lgkmcnt(0)")
    a("s_mov_b64 exec, 1")
    a("ds_add_u32 v53, v52")
    a("s_mov_b64 exec, -1")
    spin(a, "L_wait_moe", 53, 54, 12, 3, 13, sleep=8)
    a.label("L_k2_wo_prefetch")
    out_tile_ids(a)
    a(f"s_mul_i32 s12, s{sNT}, 102400")
    a(f"s_add_u32 s12, s12, {WO2_OFF}")
    a(f"s_sub_u32 s13, s{sW}, 9")
    for g in range(7):
        if g == 6:
            a("s_cmp_eq_u32 s13, 2")
            a("s_cbranch_scc1 L_k2_join")
        a(f"s_add_u32 s14, s13, {3 * g}")
        a("s_lshl_b32 s14, s14, 12")
        a(f"s_add_u32 m0, s14, {L_R}")
        a("s_add_u32 s14, s14, s12")
        for j in range(4):
            a(f"buffer_load_dwordx4 v{vLANE16}, {WS}, s14 offen offset:{1024 * j} lds")
    a("s_branch L_k2_join")

sMT, sNT = 44, 45
def out_tile_ids(a):
    a(f"s_bfe_u32 s{sMT}, s2, 0x20001")
    a(f"s_lshl_b32 s12, s{sQB}, 2")
    a(f"s_add_u32 s{sMT}, s{sMT}, s12")
    a(f"s_and_b32 s{sNT}, s2, 1")
    a(f"s_lshl_b32 s{sNT}, s{sNT}, 2")
    a("s_bfe_u32 s12, s2, 0x20003")
    a(f"s_add_u32 s{sNT}, s{sNT}, s12")

def projection(a):
    SRD_X, SRD_OUT = 56, 60
    sB1, sB2, sOBT = 42, 43, 46
    sCAND = 64
    vL16, vL16H, vL16H2 = vLANE16, 9, 3
    vTOK, vG, vT = 2, 8, 4
    vXO, vTOKG, vSTAT, vX = 10, 11, 12, 14
    vACC = 24
    vWF = (44, 64)
    vOF = 84
    a.label("L_k2_join")
    ST(a, "join")
    a("s_load_dwordx2 s[6:7], s[0:1], 0")
    a("s_load_dwordx2 s[36:37], s[0:1], 64")
    a(f"s_add_u32 s38, s4, {CAND_OFF}")
    a("s_addc_u32 s39, s5, 0")
    a(f"s_load_dwordx16 s[{sCAND}:{sCAND+15}], s[38:39], 0")
    a(f"s_load_dwordx16 s[{sCAND+16}:{sCAND+31}], s[38:39], 64")
    out_tile_ids(a)
    a("v_and_b32 v3, 63, v0")
    a("s_waitcnt vmcnt(0)")
    a("s_barrier")
    ST(a, "E1")
    a("s_waitcnt lgkmcnt(0)")
    srd(a, SRD_X, 6, X_BYTES)
    srd(a, SRD_OUT, 36, X_BYTES)
    a(f"s_cmp_eq_u32 s{sW}, 8")
    a("s_cbranch_scc1 L_k2_sync")
    a(f"s_cmp_ge_u32 s{sW}, 4")
    a("s_cbranch_scc1 L_k2_side")
    a(f"v_and_b32 v{vTOK}, 15, v3")
    a(f"v_lshrrev_b32 v{vG}, 4, v3")
    a(f"s_lshl_b32 s12, s{sMT}, 6")
    a(f"s_lshl_b32 s13, s{sW}, 4")
    a("s_add_u32 s12, s12, s13")
    a(f"v_add_u32 v{vTOKG}, s12, v{vTOK}")
    a(f"v_mul_u32_u24 v{vXO}, 1280, v{vTOKG}")
    a(f"v_lshl_add_u32 v{vXO}, v{vG}, 3, v{vXO}")
    a(f"s_mul_i32 s13, s{sNT}, 160")
    a(f"v_add_u32 v{vXO}, s13, v{vXO}")
    a(f"v_lshlrev_b32 v{vT+1}, 3, v{vTOKG}")
    a(f"s_mov_b32 s12, {ST_OFF}")
    a(f"buffer_load_dwordx2 {vr(vSTAT, 2)}, v{vT+1}, {WS}, s12 offen")
    for j in range(5):
        a(f"buffer_load_dwordx2 {vr(vX + 2 * j, 2)}, v{vXO}, s[{SRD_X}:{SRD_X+3}], 0 offen offset:{32 * j}")
    a(f"s_lshl_b32 s12, s{sMT}, 2")
    a(f"s_add_u32 s12, s12, s{sW}")
    a(f"s_mul_i32 s{sOBT}, s12, 20480")
    a(f"s_add_u32 s{sOBT}, s{sOBT}, {OB_OFF}")
    a(f"v_add_u32 v{vL16H}, {L_R}, v{vL16}")
    a(f"v_add_u32 v{vL16H2}, {L_R + 40960}, v{vL16}")
    for r in range(20):
        a(f"v_mov_b32 v{vACC + r}, 0")
    a("s_barrier")
    ST(a, "E2")
    for B in range(5):
        a(f"s_add_u32 s12, s{sOBT}, {B * 4096}")
        for k in range(4):
            a(f"buffer_load_dwordx4 {vr(vOF + 16 * B + 4 * k, 4)}, v{vL16}, {WS}, s12 offen offset:{1024 * k} sc1")
    def reads(st):
        f = vWF[st & 1]
        reg, off = (vL16H, st * 5120) if st < 8 else ((vL16H2, (st - 8) * 5120) if st < 16 else (vL16, (st - 16) * 5120))
        for j in range(5):
            a(f"ds_read_b128 {vr(f + 4 * j, 4)}, v{reg} offset:{off + 1024 * j}")
    def mfmas(st):
        f = vWF[st & 1]
        for j in range(5):
            a(f"v_mfma_f32_16x16x32_bf16 {vr(vACC + 4 * j, 4)}, {vr(f + 4 * j, 4)}, {vr(vOF + 4 * st, 4)}, {vr(vACC + 4 * j, 4)}")
    reads(0)
    for st in range(20):
        if st == 12:
            pass
        if st < 19:
            if st + 1 == 16:
                a("s_barrier")
            reads(st + 1)
        if st % 4 == 0:
            a(f"s_waitcnt vmcnt({16 - 4 * (st // 4)})")
        a(f"s_waitcnt lgkmcnt({5 if st < 19 else 0})")
        mfmas(st)
    ST(a, "gemm")
    a(f"v_lshlrev_b32 v{vT}, 4, v{vG}")
    a(f"v_add_u32 v{vT}, {L_Y}, v{vT}")
    a("s_waitcnt lgkmcnt(0)")
    top2_scalar(a, sCAND, sB1, sB2, 12)
    a(f"s_and_b32 s{sB1}, s{sB1}, 0x7ff")
    a(f"s_and_b32 s{sB2}, s{sB2}, 0x7ff")
    for sel, sB in ((0, sB1), (1, sB2)):
        lab = f"L_k2_noupd{sel}"
        a(f"s_lshr_b32 s12, s{sB}, 6")
        a(f"s_cmp_lg_u32 s12, s{sMT}")
        a(f"s_cbranch_scc1 {lab}")
        for j in range(5):
            a(f"ds_read_b128 {vr(vWF[0] + 4 * j, 4)}, v{vT} offset:{320 * sel + 64 * j}")
        a(f"v_cmp_eq_u32 vcc, s{sB}, v{vTOKG}")
        a("s_waitcnt lgkmcnt(0)")
        a("s_nop 1")
        for j in range(5):
            for r in range(4):
                a(f"v_cndmask_b32 v{vWF[0] + 4 * j + r}, 0, v{vWF[0] + 4 * j + r}, vcc")
                a(f"v_add_f32 v{vACC + 4 * j + r}, v{vACC + 4 * j + r}, v{vWF[0] + 4 * j + r}")
        a.label(lab)
    a("s_waitcnt vmcnt(0)")
    a("s_nop 7")
    a(f"v_add_f32 v{vT}, 1.0, v{vSTAT+1}")
    a(f"v_mul_f32 v{vT+1}, v{vSTAT}, v{vSTAT+1}")
    for j in range(5):
        for i in range(2):
            a(f"v_lshlrev_b32 v{vT+2}, 16, v{vX + 2 * j + i}")
            a(f"v_and_b32 v{vT+3}, 0xffff0000, v{vX + 2 * j + i}")
            a(f"v_fma_f32 v{vT+2}, v{vT+2}, v{vT}, -v{vT+1}")
            a(f"v_fma_f32 v{vT+3}, v{vT+3}, v{vT}, -v{vT+1}")
            a(f"v_add_f32 v{vT+2}, v{vT+2}, v{vACC + 4 * j + 2 * i}")
            a(f"v_add_f32 v{vT+3}, v{vT+3}, v{vACC + 4 * j + 2 * i + 1}")
            a(f"v_cvt_pk_bf16_f32 v{vX + 2 * j + i}, v{vT+2}, v{vT+3}")
        a(f"buffer_store_dwordx2 {vr(vX + 2 * j, 2)}, v{vXO}, s[{SRD_OUT}:{SRD_OUT+3}], 0 offen offset:{32 * j}")
    ST(a, "stores")
    if ST.on:
        a("s_waitcnt vmcnt(0)")
    ST(a, "end")
    ST.store(a)
    a("s_endpgm")

    a.label("L_k2_sync")
    ST(a, "E1b")
    a(f"s_lshl_b32 s12, s{sQB}, 8")
    a(f"s_add_u32 s12, s12, {CNT_OFF}")
    a("v_mov_b32 v4, s12")
    a("v_mov_b32 v5, 1")
    a("s_mov_b64 exec, 1")
    a("global_atomic_add v4, v5, s[4:5]")
    a(f"s_mov_b32 s13, {SPIN_MAX}")
    a.label("L_k2_poll")
    a("global_load_dword v6, v4, s[4:5] sc1")
    a("s_waitcnt vmcnt(0)")
    a("v_readfirstlane_b32 s14, v6")
    a("s_sub_u32 s13, s13, 1")
    a("s_cbranch_scc1 L_k2_poll_done")
    a("s_cmp_ge_u32 s14, 32")
    a("s_cbranch_scc1 L_k2_poll_done")
    a("s_sleep 2")
    a("s_branch L_k2_poll")
    a.label("L_k2_poll_done")
    a("s_mov_b64 exec, -1")
    ST(a, "polled")
    a("s_barrier")
    a("s_barrier")
    ST.store(a)
    a("s_endpgm")

    a.label("L_k2_side")
    a(f"s_cmp_ge_u32 s{sW}, 8")
    a("s_cbranch_scc1 L_k2_side_b")
    a(f"s_sub_u32 s13, s{sW}, 4")
    a(f"s_mul_i32 s12, s{sNT}, 102400")
    a(f"s_add_u32 s12, s12, {WO2_OFF + 16 * 5120}")
    a("s_mul_i32 s14, s13, 5120")
    a("s_add_u32 s12, s12, s14")
    a("s_mov_b32 m0, s14")
    a("s_nop 0")
    for j in range(4):
        a(f"buffer_load_dwordx4 v{vL16}, {WS}, s12 offen offset:{1024 * j} lds")
    a("s_add_u32 m0, s14, 4096")
    a("s_add_u32 s12, s12, 4096")
    a(f"buffer_load_dwordx4 v{vL16}, {WS}, s12 offen lds")
    top2_scalar(a, sCAND, sB1, sB2, 12)
    a(f"s_and_b32 s{sB1}, s{sB1}, 0x7ff")
    a(f"s_and_b32 s{sB2}, s{sB2}, 0x7ff")
    a(f"s_lshr_b32 s12, s{sB1}, 6")
    a(f"s_lshr_b32 s13, s{sB2}, 6")
    a(f"s_cmp_eq_u32 s12, s{sMT}")
    a("s_cbranch_scc1 L_k2_routed")
    a(f"s_cmp_eq_u32 s13, s{sMT}")
    a("s_cbranch_scc1 L_k2_routed")
    a("s_waitcnt vmcnt(0)")
    a("s_barrier")
    a("s_barrier")
    ST.store(a)
    a("s_endpgm")
    a.label("L_k2_routed")
    routed(a, sB1, sB2)
    a.label("L_k2_side_b")
    a("s_barrier")
    a("s_barrier")
    ST.store(a)
    a("s_endpgm")

def routed(a, sB1, sB2):
    vT, vY = 4, 20
    a(f"v_mov_b32 v7, {F_ALL}")
    spin(a, "L_rt_all", 7, 6, 14, 1, 15)
    a(f"v_subrev_u32 v{vT}, 256, v0")
    a(f"v_mul_u32_u24 v{vT+1}, 52429, v{vT}")
    a(f"v_lshrrev_b32 v{vT+1}, 20, v{vT+1}")
    a(f"v_mul_u32_u24 v{vT+2}, 20, v{vT+1}")
    a(f"v_sub_u32 v{vT+2}, v{vT}, v{vT+2}")
    a(f"v_mul_u32_u24 v8, {8 * 5120}, v{vT+1}")
    a(f"v_lshl_add_u32 v8, v{vT+2}, 4, v8")
    a(f"v_mul_u32_u24 v9, 320, v{vT+1}")
    a(f"v_lshl_add_u32 v9, v{vT+2}, 4, v9")
    a(f"v_add_u32 v9, {L_RED}, v9")
    a(f"v_lshlrev_b32 v10, 2, v{vT}")
    a(f"v_mov_b32 v11, {F_RT}")
    a("v_mov_b32 v12, 1")
    for sel, sB in ((0, sB1), (1, sB2)):
        lab = f"L_k2_rt_skip{sel}"
        a(f"s_lshr_b32 s12, s{sB}, 6")
        a(f"s_cmp_lg_u32 s12, s{sMT}")
        a(f"s_cbranch_scc1 {lab}")
        a(f"s_lshl_b32 s12, s{sB}, 2")
        a("s_add_u32 s38, s4, s12")
        a("s_addc_u32 s39, s5, 0")
        a(f"s_add_u32 s38, s38, {R_OFF}")
        a("s_addc_u32 s39, s39, 0")
        a("s_load_dword s40, s[38:39], 0")
        a(f"s_mul_i32 s12, s{sNT}, 320")
        a(f"s_add_u32 s12, s12, {YP_OFF + sel * 2560}")
        a(f"v_cmp_gt_u32 vcc, 240, v{vT}")
        a("s_and_saveexec_b64 s[48:49], vcc")
        for i in range(8):
            a(f"s_add_u32 s13, s12, {i * 5120}")
            a(f"buffer_load_dwordx4 {vr(vY + 4 * i, 4)}, v8, {WS}, s13 offen sc1")
        a("s_waitcnt vmcnt(0)")
        for i in range(1, 8):
            for r in range(4):
                a(f"v_add_f32 v{vY + r}, v{vY + r}, v{vY + 4 * i + r}")
        a(f"ds_write_b128 v9, {vr(vY, 4)}")
        a("s_mov_b64 exec, s[48:49]")
        a("s_waitcnt lgkmcnt(0)")
        a("s_mov_b64 exec, 1")
        a(f"ds_add_u32 v11, v12 offset:{8 * sel}")
        a("s_mov_b64 exec, -1")
        a(f"v_add_u32 v13, {8 * sel}, v11")
        spin(a, f"L_rt_a{sel}", 13, 14, 14, 4, 15)
        a(f"v_add_u32 v13, {L_RED}, v10")
        a(f"v_cmp_gt_u32 vcc, 80, v{vT}")
        a("s_and_saveexec_b64 s[48:49], vcc")
        a(f"s_cbranch_execz L_k2_rt_c{sel}")
        for p in range(12):
            a(f"ds_read_b32 v{vY + p}, v13 offset:{320 * p}")
        a("v_mov_b32 v15, s40")
        a(f"v_mul_f32 v15, {hex(f2u(-LOG2E))}, v15")
        a("v_exp_f32 v15, v15")
        a("s_nop 0")
        a("v_add_f32 v15, 1.0, v15")
        a("v_rcp_f32 v15, v15")
        a("s_waitcnt lgkmcnt(0)")
        for p in range(1, 12):
            a(f"v_add_f32 v{vY}, v{vY}, v{vY + p}")
        a(f"v_mul_f32 v{vY}, v{vY}, v15")
        a(f"v_add_u32 v13, {L_Y + 320 * sel}, v10")
        a(f"ds_write_b32 v13, v{vY}")
        a.label(f"L_k2_rt_c{sel}")
        a("s_mov_b64 exec, s[48:49]")
        a("s_waitcnt lgkmcnt(0)")
        a("s_mov_b64 exec, 1")
        a(f"ds_add_u32 v11, v12 offset:{8 * sel + 4}")
        a("s_mov_b64 exec, -1")
        a(f"v_add_u32 v13, {8 * sel + 4}, v11")
        spin(a, f"L_rt_b{sel}", 13, 14, 14, 4, 15)
        a.label(lab)
    a("s_waitcnt vmcnt(0)")

def emit(a):
    entry(a)
    attention(a)
    helpers(a)
    projection(a)
    a.label("L_k2_exit")
    a("s_endpgm")
```

```python
from common import *
import os

NAME = "qkv_kernel"
LDS = 131072 + 2048
VGPRS = 144
BLOCK = 768

SRD_X, SRD_W, SRD_WS = 8, 12, 16
sW, sMT, sNT = 20, 21, 22
sROW0 = 23
sT0, sT1, sT2, sT3 = 24, 25, 26, 27
sSEC, sHS, sTS, sSCALE = 28, 29, 30, 31
sTA, sTB = 32, 33
sWR, sWC = 34, 35
ST_NM, ST_RS, ST_CS = 131072, 131072 + 512, 131072 + 1024

vLANE, vTOK, vH = 1, 2, 3
vT = 4
vXA = 8
vXB = 12
vWA, vWB = 16, 17
vS1, vS2, vCS, vONE = 28, 29, 30, 31
vSEL = 136
vCSA = 140
vF = (32, 48)
vACC = 64
vOFF = 128
vE = 24

ST = Stamps("k1")
def X(flag):
    return flag in os.environ.get("K1_EXP", "").split(",")

STF = {"": "", "sc1": " sc1", "nt": " nt", "sc01": " sc0 sc1"}[os.environ.get("K1_ST", "")]

def acc(a_, b_):
    return vACC + 32 * a_ + 16 * b_

def entry(a):
    kernel_header(a, NAME)
    ST(a, "entry")
    a("s_cmp_ge_u32 s2, 256")
    a("s_cbranch_scc1 L_k1_exit")
    a("s_load_dwordx4 s[4:7], s[0:1], 0")
    a("s_load_dwordx2 s[36:37], s[0:1], 80")
    a("s_load_dwordx2 s[38:39], s[0:1], 32")
    a(f"v_lshrrev_b32 v{vT}, 6, v0")
    a(f"v_and_b32 v{vLANE}, 63, v0")
    a(f"v_readfirstlane_b32 s{sW}, v{vT}")
    a(f"s_and_b32 s{sT0}, s2, 3")
    a(f"s_lshl_b32 s{sT0}, s{sT0}, 2")
    a(f"s_bfe_u32 s{sT1}, s2, 0x20003")
    a(f"s_or_b32 s{sMT}, s{sT0}, s{sT1}")
    a(f"s_bfe_u32 s{sT0}, s2, 0x10002")
    a(f"s_lshl_b32 s{sT0}, s{sT0}, 3")
    a(f"s_lshr_b32 s{sT1}, s2, 5")
    a(f"s_or_b32 s{sNT}, s{sT0}, s{sT1}")
    a(f"s_lshl_b32 s{sROW0}, s{sMT}, 7")
    a(f"v_and_b32 v{vTOK}, 31, v{vLANE}")
    a(f"v_lshrrev_b32 v{vH}, 5, v{vLANE}")
    a("s_waitcnt lgkmcnt(0)")
    srd(a, SRD_X, 4, X_BYTES)
    srd(a, SRD_W, 6, WQKV_BYTES)
    srd(a, SRD_WS, 36, WS_SRD)
    a(f"s_cmp_eq_u32 s{sNT}, 15")
    a("s_cbranch_scc1 L_k1_aux")
    a(f"s_cmp_ge_u32 s{sW}, 8")
    a("s_cbranch_scc1 L_k1_stat")
    a(f"s_cmp_ge_u32 s{sW}, 4")
    a("s_cbranch_scc1 L_k1_loader")

def loader(a):
    a.label("L_k1_loader")
    vX, vWt = 8, 9
    lw = sT0
    a(f"s_sub_u32 s{lw}, s{sW}, 4")
    a(f"v_lshrrev_b32 v{vT}, 3, v{vLANE}")
    a(f"s_lshl_b32 s{sT1}, s{lw}, 3")
    a(f"s_add_u32 s{sT1}, s{sT1}, s{sROW0}")
    a(f"v_add_u32 v{vT}, s{sT1}, v{vT}")
    a(f"v_mul_u32_u24 v{vT}, 1280, v{vT}")
    a(f"v_lshrrev_b32 v{vT+1}, 4, v{vLANE}")
    a(f"s_and_b32 s{sT1}, s{lw}, 1")
    a(f"s_lshl_b32 s{sT1}, s{sT1}, 2")
    a(f"v_add_u32 v{vT+2}, s{sT1}, v{vT+1}")
    a(f"v_and_b32 v{vT+3}, 7, v{vLANE}")
    a(f"v_xor_b32 v{vT+2}, v{vT+2}, v{vT+3}")
    a(f"v_lshl_add_u32 v{vX}, v{vT+2}, 4, v{vT}")
    a(f"s_lshl_b32 s{sT1}, s{lw}, 2")
    a(f"v_add_u32 v{vT}, s{sT1}, v{vT+1}")
    a(f"v_mul_u32_u24 v{vT}, 3840, v{vT}")
    a(f"v_and_b32 v{vT+2}, 15, v{vLANE}")
    a(f"v_lshlrev_b32 v{vT+3}, 2, v{vT+1}")
    a(f"v_xor_b32 v{vT+2}, v{vT+2}, v{vT+3}")
    a(f"v_lshl_add_u32 v{vT}, v{vT+2}, 4, v{vT}")
    a(f"s_lshl_b32 s{sT1}, s{sNT}, 8")
    a(f"v_add_u32 v{vWt}, s{sT1}, v{vT}")
    a(f"s_lshl_b32 s{sT2}, s{lw}, 10")
    vXs, vWs = 44, 48
    for i in range(4):
        a(f"v_add_u32 v{vXs + i}, {i * 40960}, v{vX}")
        a(f"v_add_u32 v{vWs + i}, {i * 16 * 3840}, v{vWt}")
    sXO, sWO = 40, 41
    def stage(s):
        base = (s & 3) * 32768
        a(f"s_mov_b32 s{sXO}, {s * 128}")
        a(f"s_mov_b32 s{sWO}, {s * 64 * 3840}")
        for i in range(4):
            a(f"s_add_u32 m0, s{sT2}, {base + i * 4096}")
            a("s_nop 0")
            a(f"buffer_load_dwordx4 v{vXs + i}, s[{SRD_X}:{SRD_X+3}], s{sXO} offen lds")
            a(f"s_add_u32 m0, s{sT2}, {base + 16384 + i * 4096}")
            a("s_nop 0")
            a(f"buffer_load_dwordx4 v{vWs + i}, s[{SRD_W}:{SRD_W+3}], s{sWO} offen lds")
    ST(a, "setup")
    for s in range(3):
        stage(s)
    ST(a, "B0")
    for s in range(10):
        issued = min(9, s + 2)
        a(f"s_waitcnt vmcnt({8 * (issued - s)})")
        if s in (0, 1, 2, 5):
            ST(a, {0: "g4", 1: "g8", 2: "g20", 5: "loopend"}[s])
        a("s_barrier")
        if s + 3 <= 9 and not (X("nodma") and s > 0):
            stage(s + 3)
    ST(a, "stores")
    ST(a, "end")
    ST.store(a, sW, SRD_WS)
    a("s_endpgm")

def stat_waves(a):
    a.label("L_k1_stat")
    lw = sT0
    vR, vR2, vD, vP, vA1, vA2 = 8, 12, 16, 32, 36, 38
    a(f"s_sub_u32 s{lw}, s{sW}, 8")
    a(f"v_lshrrev_b32 v{vT}, 1, v{vLANE}")
    a(f"s_lshl_b32 s{sT1}, s{lw}, 5")
    a(f"v_add_u32 v{vT}, s{sT1}, v{vT}")
    a(f"v_lshlrev_b32 v{vT+1}, 7, v{vT}")
    a(f"v_and_b32 v{vT+2}, 1, v{vLANE}")
    a(f"v_lshl_add_u32 v{vT+1}, v{vT+2}, 6, v{vT+1}")
    a(f"v_bfe_u32 v{vT+2}, v{vLANE}, 2, 2")
    for i in range(4):
        a(f"v_xor_b32 v{vT+3}, {i}, v{vT+2}")
        a(f"v_lshl_add_u32 v{vR + i}, v{vT+3}, 4, v{vT+1}")
        a(f"v_add_u32 v{vR2 + i}, 65536, v{vR + i}")
    a(f"v_lshlrev_b32 v40, 2, v{vT}")
    for r in range(4):
        a(f"v_mov_b32 v{vA1 + r}, 0")
    for s in range(10):
        slot = s & 3
        a("s_barrier")
        for i in range(4):
            a(f"ds_read_b128 {vr(vD + 4 * i, 4)}, v{(vR if slot < 2 else vR2) + i} offset:{(slot & 1) * 32768}")
        for j in range(16):
            if j % 4 == 0:
                a(f"s_waitcnt lgkmcnt({3 - j // 4})")
            if X("nostat"):
                continue
            p = vP + 2 * (j & 1)
            a(f"v_lshlrev_b32 v{p}, 16, v{vD + j}")
            a(f"v_and_b32 v{p+1}, 0xffff0000, v{vD + j}")
            a(f"v_add_f32 v{vA1}, v{vA1}, v{p}")
            a(f"v_fmac_f32 v{vA2}, v{p}, v{p}")
            a(f"v_add_f32 v{vA1+1}, v{vA1+1}, v{p+1}")
            a(f"v_fmac_f32 v{vA2+1}, v{p+1}, v{p+1}")
    a(f"v_add_f32 v{vA1}, v{vA1}, v{vA1+1}")
    a(f"v_add_f32 v{vA2}, v{vA2}, v{vA2+1}")
    a("s_nop 1")
    a(f"v_add_f32_dpp v{vA1+1}, v{vA1}, v{vA1} quad_perm:[1,0,3,2] row_mask:0xf bank_mask:0xf")
    a(f"v_add_f32_dpp v{vA2+1}, v{vA2}, v{vA2} quad_perm:[1,0,3,2] row_mask:0xf bank_mask:0xf")
    a(f"v_mul_f32 v{vA1}, {hex(f2u(1.0 / D))}, v{vA1+1}")
    a(f"v_mul_f32 v{vA2}, {hex(f2u(1.0 / D))}, v{vA2+1}")
    a(f"v_fma_f32 v{vA2}, -v{vA1}, v{vA1}, v{vA2}")
    a(f"v_max_f32 v{vA2}, 0, v{vA2}")
    a(f"v_add_f32 v{vA2}, {hex(f2u(1e-5))}, v{vA2}")
    a(f"v_rsq_f32 v{vA2}, v{vA2}")
    a(f"v_sub_f32 v{vA1}, 0, v{vA1}")
    a(f"v_add_u32 v40, {ST_NM}, v40")
    a(f"ds_write_b32 v40, v{vA1}")
    a(f"ds_write_b32 v40, v{vA2} offset:512")
    a("s_waitcnt lgkmcnt(0)")
    a("s_barrier")
    a("s_endpgm")

def read_list(g):
    ks, half = g & 3, (g >> 2) & 1
    base = half * 32768
    f = vF[g & 1]
    w = lambda b, reg, rd: f"ds_read_b64_tr_b16 {vr(f + 8 + 4 * b + 2 * rd, 2)}, v{reg} offset:{base + 16384 + (16 * ks + 4 * rd) * 256}"
    return [f"ds_read_b128 {vr(f, 4)}, v{vXA + ks} offset:{base}", w(0, vWA, 0), w(0, vWA, 1),
            w(1, vWB, 0), w(1, vWB, 1), f"ds_read_b128 {vr(f + 4, 4)}, v{vXB + ks} offset:{base}"]

def step(a, g, vorient, reads, pre=None):
    f = vF[g & 1]
    def mm(a_, b_):
        x, w = vr(f + 4 * a_, 4), vr(f + 8 + 4 * b_, 4)
        A, B = (x, w) if vorient else (w, x)
        a(f"v_mfma_f32_32x32x16_bf16 {vr(acc(a_, b_), 16)}, {A}, {B}, {vr(acc(a_, b_), 16)}")
    if pre is not None:
        a("s_waitcnt lgkmcnt(0)")
        mm(0, 0)
        mm(0, 1)
        pre()
        for r in reads[0:3]: a(r)
        mm(1, 0)
        for r in reads[3:6]: a(r)
        mm(1, 1)
    else:
        a("s_waitcnt lgkmcnt(3)")
        mm(0, 0)
        for r in reads[0:3]: a(r)
        a("s_waitcnt lgkmcnt(4)")
        mm(0, 1)
        for r in reads[3:6]: a(r)
        a("s_waitcnt lgkmcnt(6)")
        mm(1, 0)
        mm(1, 1)
    a(f"v_mfma_f32_16x16x32_bf16 {vr(vCSA, 4)}, {vr(vSEL, 4)}, {vr(f + 8, 4)}, {vr(vCSA, 4)}")

def mainloop(a, vorient):
    tag = "v" if vorient else "qk"
    ST(a, "setup")
    a("s_barrier")
    ST(a, "B0")
    for r in read_list(0):
        a(r)
    a(f"s_mov_b32 s{sT3}, 5")
    a(".p2align 3")
    a.label(f"L_k1_loop_{tag}")
    def pre7():
        a(f"s_sub_u32 s{sT3}, s{sT3}, 1")
        a(f"s_cmp_eq_u32 s{sT3}, 0")
        a(f"s_cbranch_scc1 L_k1_last_{tag}")
        for r in list(range(vXA, vXA + 4)) + list(range(vXB, vXB + 4)) + [vWA, vWB]:
            a(f"v_xor_b32 v{r}, 0x10000, v{r}")
        a("s_barrier")
    for g in range(8):
        pre = (lambda: a("s_barrier")) if g == 3 else (pre7 if g == 7 else None)
        step(a, g, vorient, read_list(g + 1), pre)
    a(f"s_branch L_k1_loop_{tag}")
    a.label(f"L_k1_last_{tag}")
    f = vF[1]
    for b_ in range(2):
        x, w = vr(f + 4, 4), vr(f + 8 + 4 * b_, 4)
        A, B = (x, w) if vorient else (w, x)
        a(f"v_mfma_f32_32x32x16_bf16 {vr(acc(1, b_), 16)}, {A}, {B}, {vr(acc(1, b_), 16)}")
    a(f"v_mfma_f32_16x16x32_bf16 {vr(vCSA, 4)}, {vr(vSEL, 4)}, {vr(f + 8, 4)}, {vr(vCSA, 4)}")

def stats_exchange(a):
    ST(a, "loopend")
    a(f"s_lshl_b32 s{sT0}, s{sWC}, 6")
    a(f"s_lshl_b32 s{sT1}, s{sWR}, 5")
    a(f"s_add_u32 s{sT0}, s{sT0}, s{sT1}")
    a(f"v_add_u32 v{vT+1}, s{sT0}, v{vLANE}")
    a(f"v_lshlrev_b32 v{vT+1}, 2, v{vT+1}")
    a(f"v_add_u32 v{vT+1}, {ST_CS}, v{vT+1}")
    a("s_mov_b64 exec, 0xffff")
    a("s_nop 4")
    a(f"ds_write_b32 v{vT+1}, v{vCSA}")
    a(f"ds_write_b32 v{vT+1}, v{vCSA+1} offset:64")
    a("s_mov_b64 exec, -1")
    a("s_waitcnt lgkmcnt(0)")
    a("s_barrier")

def consumer_setup(a):
    a(f"s_lshr_b32 s{sWR}, s{sW}, 1")
    a(f"s_and_b32 s{sWC}, s{sW}, 1")
    a(f"v_lshrrev_b32 v{vT}, 1, v{vTOK}")
    a(f"v_and_b32 v{vT}, 7, v{vT}")
    a(f"s_lshl_b32 s{sT0}, s{sWR}, 6")
    a(f"v_add_u32 v{vT+1}, s{sT0}, v{vTOK}")
    a(f"v_lshlrev_b32 v{vT+1}, 7, v{vT+1}")
    a(f"s_lshl_b32 s{sT0}, s{sWC}, 12")
    a(f"s_xor_b32 s{sT1}, s{sT0}, 4096")
    for ks in range(4):
        a(f"v_add_u32 v{vT+2}, {2 * ks}, v{vH}")
        a(f"v_xor_b32 v{vT+2}, v{vT+2}, v{vT}")
        a(f"v_lshl_add_u32 v{vT+2}, v{vT+2}, 4, v{vT+1}")
        a(f"v_add_u32 v{vXA + ks}, s{sT0}, v{vT+2}")
        a(f"v_add_u32 v{vXB + ks}, s{sT1}, v{vT+2}")
    a(f"v_bfe_u32 v{vT}, v{vLANE}, 2, 2")
    a(f"v_lshl_add_u32 v{vT+1}, v{vH}, 3, v{vT}")
    a(f"v_lshlrev_b32 v{vT+1}, 8, v{vT+1}")
    a(f"v_and_b32 v{vT+2}, 3, v{vLANE}")
    a(f"v_lshl_add_u32 v{vT+1}, v{vT+2}, 3, v{vT+1}")
    a(f"v_bfe_u32 v{vT+2}, v{vLANE}, 4, 1")
    a(f"v_lshlrev_b32 v{vT}, 1, v{vT}")
    for (dst, own) in ((vWA, True), (vWB, False)):
        a(f"s_lshl_b32 s{sT0}, s{sWC}, 2")
        if own:
            a(f"s_lshl_b32 s{sT1}, s{sWR}, 1")
        else:
            a(f"s_xor_b32 s{sT1}, s{sWR}, 1")
            a(f"s_lshl_b32 s{sT1}, s{sT1}, 1")
        a(f"s_add_u32 s{sT0}, s{sT0}, s{sT1}")
        a(f"v_add_u32 v{vT+3}, s{sT0}, v{vT+2}")
        a(f"v_xor_b32 v{vT+3}, v{vT+3}, v{vT}")
        a(f"v_lshl_add_u32 v{dst}, v{vT+3}, 5, v{vT+1}")
    a(f"v_and_b32 v{vT}, 15, v{vLANE}")
    a(f"v_bfe_u32 v{vT+1}, v{vLANE}, 4, 1")
    a(f"v_cmp_eq_u32 vcc, v{vT}, v{vT+1}")
    a(f"v_mov_b32 v{vT+2}, 0x3f803f80")
    a("s_nop 0")
    a(f"v_cndmask_b32 v{vSEL}, 0, v{vT+2}, vcc")
    for r in range(1, 4):
        a(f"v_mov_b32 v{vSEL + r}, v{vSEL}")
    for r in range(4):
        a(f"v_mov_b32 v{vCSA + r}, 0")
    for r in range(64):
        a(f"v_mov_b32 v{vACC + r}, 0")

def qk_path(a):
    a.label("L_k1_qk")
    a(f"s_mov_b32 s{sSEC}, {KV_OFF}")
    a(f"s_mov_b32 s{sTS}, 2560")
    a(f"s_mov_b32 s{sSCALE}, {hex(f2u(1.0))}")
    a(f"s_sub_u32 s{sT0}, s{sNT}, 5")
    a(f"s_cmp_lt_u32 s{sNT}, 5")
    a(f"s_cselect_b32 s{sSEC}, {QB_OFF}, s{sSEC}")
    a(f"s_cselect_b32 s{sTS}, 1280, s{sTS}")
    a(f"s_cselect_b32 s{sSCALE}, {hex(f2u(QSCALE))}, s{sSCALE}")
    a(f"s_cselect_b32 s{sT0}, s{sNT}, s{sT0}")
    a(f"s_lshl_b32 s{sHS}, s{sTS}, 6")
    a(f"s_lshl_b32 s{sT1}, s{sMT}, 2")
    a(f"s_lshl_b32 s{sT2}, s{sWR}, 1")
    a(f"s_add_u32 s{sT1}, s{sT1}, s{sT2}")
    a(f"s_add_u32 s{sT2}, s{sT1}, s{sWC}")
    a(f"s_mul_i32 s{sTA}, s{sT2}, s{sTS}")
    a(f"s_add_u32 s{sTA}, s{sTA}, s{sSEC}")
    a(f"s_xor_b32 s{sT3}, s{sWC}, 1")
    a(f"s_add_u32 s{sT2}, s{sT1}, s{sT3}")
    a(f"s_mul_i32 s{sTB}, s{sT2}, s{sTS}")
    a(f"s_add_u32 s{sTB}, s{sTB}, s{sSEC}")
    a(f"s_lshl_b32 s{sT0}, s{sT0}, 5")
    a(f"s_lshl_b32 s{sT1}, s{sWC}, 4")
    a(f"s_add_u32 s{sT0}, s{sT0}, s{sT1}")
    for b_ in range(2):
        a(f"s_lshl_b32 s{sT1}, s{sWR}, 3") if b_ == 0 else (a(f"s_xor_b32 s{sT1}, s{sWR}, 1"), a(f"s_lshl_b32 s{sT1}, s{sT1}, 3"))
        a(f"s_add_u32 s{sT1}, s{sT1}, s{sT0}")
        for g in range(4):
            o = vOFF + 4 * b_ + g
            a(f"v_add_u32 v{vT}, s{sT1}, v{vH}")
            a(f"v_add_u32 v{vT}, {2 * g}, v{vT}")
            a(f"v_mul_u32_u24 v{vT+1}, 52429, v{vT}")
            a(f"v_lshrrev_b32 v{vT+1}, 18, v{vT+1}")
            a(f"v_mul_u32_u24 v{vT+2}, 5, v{vT+1}")
            a(f"v_sub_u32 v{vT+2}, v{vT}, v{vT+2}")
            a(f"v_mul_lo_u32 v{o}, v{vT+1}, s{sHS}")
            a(f"v_lshrrev_b32 v{vT+1}, 1, v{vT+2}")
            a(f"v_lshlrev_b32 v{vT+1}, 9, v{vT+1}")
            a(f"v_and_b32 v{vT+3}, 1, v{vT+2}")
            a(f"v_lshl_add_u32 v{vT+1}, v{vT+3}, 3, v{vT+1}")
            a(f"v_cmp_eq_u32 vcc, 4, v{vT+2}")
            a(f"v_lshlrev_b32 v{vT+3}, 4, v{vTOK}")
            a(f"v_lshlrev_b32 v{vT+2}, 3, v{vTOK}")
            a(f"v_cndmask_b32 v{vT+3}, v{vT+3}, v{vT+2}, vcc")
            a(f"v_add3_u32 v{o}, v{o}, v{vT+1}, v{vT+3}")
    mainloop(a, False)
    stats_exchange(a)
    vNM, vRS, vC = vE, vE + 2, vE + 4
    a(f"s_lshl_b32 s{sT0}, s{sWR}, 6")
    a(f"v_add_u32 v{vT}, s{sT0}, v{vTOK}")
    a(f"v_lshlrev_b32 v{vT}, 2, v{vT}")
    a(f"s_lshl_b32 s{sT1}, s{sWC}, 7")
    a(f"v_add_u32 v{vT+1}, s{sT1}, v{vT}")
    a(f"s_xor_b32 s{sT1}, s{sT1}, 128")
    a(f"v_add_u32 v{vT+2}, s{sT1}, v{vT}")
    a(f"v_add_u32 v{vT+1}, {ST_NM}, v{vT+1}")
    a(f"v_add_u32 v{vT+2}, {ST_NM}, v{vT+2}")
    a(f"ds_read_b32 v{vNM}, v{vT+1}")
    a(f"ds_read_b32 v{vRS}, v{vT+1} offset:512")
    a(f"ds_read_b32 v{vNM+1}, v{vT+2}")
    a(f"ds_read_b32 v{vRS+1}, v{vT+2} offset:512")
    a(f"s_lshl_b32 s{sT0}, s{sWC}, 8")
    a(f"v_lshlrev_b32 v{vT}, 4, v{vH}")
    a(f"v_add_u32 v{vT}, s{sT0}, v{vT}")
    a(f"s_lshl_b32 s{sT1}, s{sWR}, 7")
    a(f"v_add_u32 v{vT+1}, s{sT1}, v{vT}")
    a(f"s_xor_b32 s{sT1}, s{sT1}, 128")
    a(f"v_add_u32 v{vT+2}, s{sT1}, v{vT}")
    a(f"v_add_u32 v{vT+1}, {ST_CS}, v{vT+1}")
    a(f"v_add_u32 v{vT+2}, {ST_CS}, v{vT+2}")
    for b_ in range(2):
        for g in range(4):
            a(f"ds_read_b128 {vr(vC + 16 * b_ + 4 * g, 4)}, v{vT + 1 + b_} offset:{32 * g}")
    a("s_waitcnt lgkmcnt(0)")
    a(f"v_mul_f32 v{vRS}, s{sSCALE}, v{vRS}")
    a(f"v_mul_f32 v{vRS+1}, s{sSCALE}, v{vRS+1}")
    ws = f"s[{SRD_WS}:{SRD_WS+3}]"
    for a_ in range(2):
        a(f"v_mov_b32 v{vT}, v{vNM + a_}")
        a(f"v_mov_b32 v{vT+1}, v{vNM + a_}")
        a(f"v_mov_b32 v{vT+2}, v{vRS + a_}")
        a(f"v_mov_b32 v{vT+3}, v{vRS + a_}")
        for b_ in range(2):
            A = acc(a_, b_)
            for p in range(8):
                a(f"v_pk_fma_f32 {vr(A + 2 * p, 2)}, {vr(vC + 16 * b_ + 2 * p, 2)}, {vr(vT, 2)}, {vr(A + 2 * p, 2)}")
            for p in range(8):
                a(f"v_pk_mul_f32 {vr(A + 2 * p, 2)}, {vr(A + 2 * p, 2)}, {vr(vT + 2, 2)}")
            for p in range(8):
                a(f"v_cvt_pk_bf16_f32 v{A + p}, v{A + 2 * p}, v{A + 2 * p + 1}")
            for g in range(4):
                a(f"buffer_store_dwordx2 {vr(A + 2 * g, 2)}, v{vOFF + 4 * b_ + g}, {ws}, s{sTA if a_ == 0 else sTB} offen{STF}")
    ST(a, "stores")
    if ST.on:
        a("s_waitcnt vmcnt(0)")
    ST(a, "end")
    ST.store(a, sW, SRD_WS)
    a("s_endpgm")

def v_path(a):
    a.label("L_k1_v")
    a(f"s_lshl_b32 s{sT1}, s{sMT}, 2")
    a(f"s_lshl_b32 s{sT2}, s{sWR}, 1")
    a(f"s_add_u32 s{sT1}, s{sT1}, s{sT2}")
    a(f"s_add_u32 s{sT2}, s{sT1}, s{sWC}")
    a(f"s_mul_i32 s{sTA}, s{sT2}, 2560")
    a(f"s_add_u32 s{sTA}, s{sTA}, {KV_OFF + 1280}")
    a(f"s_xor_b32 s{sT3}, s{sWC}, 1")
    a(f"s_add_u32 s{sT2}, s{sT1}, s{sT3}")
    a(f"s_mul_i32 s{sTB}, s{sT2}, 2560")
    a(f"s_add_u32 s{sTB}, s{sTB}, {KV_OFF + 1280}")
    a(f"s_sub_u32 s{sT0}, s{sNT}, 10")
    a(f"s_lshl_b32 s{sT0}, s{sT0}, 7")
    a(f"s_lshl_b32 s{sT1}, s{sWC}, 6")
    a(f"s_add_u32 s{sT0}, s{sT0}, s{sT1}")
    for b_ in range(2):
        if b_ == 0:
            a(f"s_lshl_b32 s{sT1}, s{sWR}, 5")
        else:
            a(f"s_xor_b32 s{sT1}, s{sWR}, 1")
            a(f"s_lshl_b32 s{sT1}, s{sT1}, 5")
        a(f"s_add_u32 s{sT1}, s{sT1}, s{sT0}")
        a(f"v_add_u32 v{vT}, s{sT1}, v{vTOK}")
        a(f"v_mul_u32_u24 v{vT+1}, 52429, v{vT}")
        a(f"v_lshrrev_b32 v{vT+1}, 20, v{vT+1}")
        a(f"v_mul_u32_u24 v{vT+2}, 20, v{vT+1}")
        a(f"v_sub_u32 v{vT+2}, v{vT}, v{vT+2}")
        a(f"s_mov_b32 s{sT2}, {64 * 2560}")
        a(f"v_mul_lo_u32 v{vOFF + b_}, v{vT+1}, s{sT2}")
        a(f"v_lshlrev_b32 v{vT+2}, 4, v{vT+2}")
        a(f"v_mul_u32_u24 v{vT+3}, 320, v{vH}")
        a(f"v_add3_u32 v{vOFF + b_}, v{vOFF + b_}, v{vT+2}, v{vT+3}")
    mainloop(a, True)
    stats_exchange(a)
    vCL, vNM, vRS = vE, vE + 4, vE + 20
    a(f"s_lshl_b32 s{sT0}, s{sWC}, 6")
    a(f"v_add_u32 v{vT}, s{sT0}, v{vTOK}")
    a(f"v_lshlrev_b32 v{vT}, 2, v{vT}")
    a(f"s_lshl_b32 s{sT1}, s{sWR}, 7")
    a(f"v_add_u32 v{vT+1}, s{sT1}, v{vT}")
    a(f"s_xor_b32 s{sT1}, s{sT1}, 128")
    a(f"v_add_u32 v{vT+2}, s{sT1}, v{vT}")
    a(f"v_add_u32 v{vT+1}, {ST_CS}, v{vT+1}")
    a(f"v_add_u32 v{vT+2}, {ST_CS}, v{vT+2}")
    a(f"ds_read_b32 v{vCL}, v{vT+1}")
    a(f"ds_read_b32 v{vCL+2}, v{vT+2}")
    a("s_waitcnt lgkmcnt(0)")
    a(f"v_mov_b32 v{vCL+1}, v{vCL}")
    a(f"v_mov_b32 v{vCL+3}, v{vCL+2}")
    ws = f"s[{SRD_WS}:{SRD_WS+3}]"
    for a_ in range(2):
        a(f"s_lshl_b32 s{sT0}, s{sWR}, 8")
        a(f"s_lshl_b32 s{sT1}, s{sWC}, 7")
        if a_ == 1:
            a(f"s_xor_b32 s{sT1}, s{sT1}, 128")
        a(f"s_add_u32 s{sT0}, s{sT0}, s{sT1}")
        a(f"v_lshlrev_b32 v{vT}, 4, v{vH}")
        a(f"v_add_u32 v{vT}, s{sT0}, v{vT}")
        a(f"v_add_u32 v{vT}, {ST_NM}, v{vT}")
        for g in range(4):
            a(f"ds_read_b128 {vr(vNM + 4 * g, 4)}, v{vT} offset:{32 * g}")
            a(f"ds_read_b128 {vr(vRS + 4 * g, 4)}, v{vT} offset:{512 + 32 * g}")
        a("s_waitcnt lgkmcnt(0)")
        for b_ in range(2):
            A = acc(a_, b_)
            for p in range(8):
                a(f"v_pk_fma_f32 {vr(A + 2 * p, 2)}, {vr(vNM + 2 * p, 2)}, {vr(vCL + 2 * b_, 2)}, {vr(A + 2 * p, 2)}")
            for p in range(8):
                a(f"v_pk_mul_f32 {vr(A + 2 * p, 2)}, {vr(A + 2 * p, 2)}, {vr(vRS + 2 * p, 2)}")
            for p in range(8):
                a(f"v_cvt_pk_bf16_f32 v{A + p}, v{A + 2 * p}, v{A + 2 * p + 1}")
            for t in range(2):
                a(f"buffer_store_dwordx4 {vr(A + 4 * t, 4)}, v{vOFF + b_}, {ws}, s{sTA if a_ == 0 else sTB} offen offset:{640 * t}{STF}")
    ST(a, "stores")
    if ST.on:
        a("s_waitcnt vmcnt(0)")
    ST(a, "end")
    ST.store(a, sW, SRD_WS)
    a("s_endpgm")

def aux(a):
    a.label("L_k1_aux")
    a(f"s_cmp_ge_u32 s{sW}, 8")
    a("s_cbranch_scc1 L_k1_exit")
    vX, vWr = 32, 72
    vA, vAW = 8, 9
    s1, s2, s3, sw = 10, 11, 12, 13
    SRD_R = 40
    srd(a, SRD_R, 38, D * 2)
    a(f"v_lshrrev_b32 v{vT}, 2, v{vLANE}")
    a(f"s_lshl_b32 s{sT0}, s{sW}, 4")
    a(f"s_add_u32 s{sT0}, s{sT0}, s{sROW0}")
    a(f"v_add_u32 v{vT}, s{sT0}, v{vT}")
    a(f"v_and_b32 v{vT+1}, 3, v{vLANE}")
    a(f"v_lshlrev_b32 v{vAW}, 4, v{vT+1}")
    a(f"v_mul_u32_u24 v{vA}, 1280, v{vT}")
    a(f"v_add_u32 v{vA}, v{vA}, v{vAW}")
    for r in (s1, s2, s3, sw):
        a(f"v_mov_b32 v{r}, 0")
    a(f"v_mov_b32 v{vONE}, 0x3f803f80")
    for half in range(2):
        for i in range(10):
            a(f"buffer_load_dwordx4 {vr(vX + 4 * i, 4)}, v{vA}, s[{SRD_X}:{SRD_X+3}], 0 offen offset:{(10 * half + i) * 64}")
            a(f"buffer_load_dwordx4 {vr(vWr + 4 * i, 4)}, v{vAW}, s[{SRD_R}:{SRD_R+3}], 0 offen offset:{(10 * half + i) * 64}")
        a("s_waitcnt vmcnt(0)")
        for r in range(40):
            a(f"v_dot2c_f32_bf16 v{s1}, v{vX + r}, v{vONE}")
            a(f"v_dot2c_f32_bf16 v{s2}, v{vX + r}, v{vX + r}")
            a(f"v_dot2c_f32_bf16 v{s3}, v{vX + r}, v{vWr + r}")
            a(f"v_dot2c_f32_bf16 v{sw}, v{vWr + r}, v{vONE}")
    a("s_nop 3")
    for perm in ("[1,0,3,2]", "[2,3,0,1]"):
        for r in (s1, s2, s3, sw):
            a(f"v_add_f32_dpp v{vT+2}, v{r}, v{r} quad_perm:{perm} row_mask:0xf bank_mask:0xf")
            a("s_nop 1")
            a(f"v_mov_b32 v{r}, v{vT+2}")
            a("s_nop 1")
    a(f"v_mul_f32 v{s1}, {hex(f2u(1.0 / D))}, v{s1}")
    a(f"v_mul_f32 v{s2}, {hex(f2u(1.0 / D))}, v{s2}")
    a(f"v_fma_f32 v{s2}, -v{s1}, v{s1}, v{s2}")
    a(f"v_max_f32 v{s2}, 0, v{s2}")
    a(f"v_add_f32 v{s2}, {hex(f2u(1e-5))}, v{s2}")
    a(f"v_rsq_f32 v{s2}, v{s2}")
    a(f"v_fma_f32 v{s3}, -v{s1}, v{sw}, v{s3}")
    a(f"v_mul_f32 v{s3}, v{s3}, v{s2}")
    ws = f"s[{SRD_WS}:{SRD_WS+3}]"
    a(f"v_ashrrev_i32 v{vT+2}, 31, v{s3}")
    a(f"v_or_b32 v{vT+2}, 0x80000000, v{vT+2}")
    a(f"v_xor_b32 v{vT+2}, v{vT+2}, v{s3}")
    a(f"v_and_b32 v{vT+2}, 0xfffff800, v{vT+2}")
    a(f"v_or_b32 v{vT+2}, v{vT+2}, v{vT}")
    a(f"v_mov_b32 v14, v{s1}")
    a(f"v_mov_b32 v15, v{s2}")
    a(f"v_lshlrev_b32 v{vA}, 3, v{vT}")
    a(f"v_lshlrev_b32 v{vAW}, 2, v{vT}")
    a(f"v_and_b32 v{vT+3}, 127, v{vT}")
    a(f"v_lshlrev_b32 v{vT+3}, 2, v{vT+3}")
    a(f"v_cmp_eq_u32 vcc, 0, v{vT+1}")
    a(f"s_mov_b32 s{sT0}, {ST_OFF}")
    a(f"s_mov_b32 s{sT1}, {R_OFF}")
    a("s_and_saveexec_b64 s[44:45], vcc")
    a(f"buffer_store_dwordx2 v[14:15], v{vA}, {ws}, s{sT0} offen")
    a(f"buffer_store_dword v{s3}, v{vAW}, {ws}, s{sT1} offen")
    a(f"ds_write_b32 v{vT+3}, v{vT+2}")
    a("s_mov_b64 exec, s[44:45]")
    a("s_waitcnt lgkmcnt(0)")
    a("s_barrier")
    a(f"s_cmp_lg_u32 s{sW}, 0")
    a("s_cbranch_scc1 L_k1_repack")
    hi, lo, oh, ol, adr = 16, 17, 18, 19, 20
    a(f"v_lshlrev_b32 v{adr}, 2, v{vLANE}")
    a(f"ds_read_b32 v{oh}, v{adr}")
    a(f"ds_read_b32 v{ol}, v{adr} offset:256")
    a("s_waitcnt lgkmcnt(0)")
    a(f"v_max_u32 v{hi}, v{oh}, v{ol}")
    a(f"v_min_u32 v{lo}, v{oh}, v{ol}")
    for x in (1, 2, 4, 8, 16, 32):
        a(f"v_xor_b32 v{adr}, {x}, v{vLANE}")
        a(f"v_lshlrev_b32 v{adr}, 2, v{adr}")
        a(f"ds_bpermute_b32 v{oh}, v{adr}, v{hi}")
        a(f"ds_bpermute_b32 v{ol}, v{adr}, v{lo}")
        a("s_waitcnt lgkmcnt(0)")
        a(f"v_max_u32 v{lo}, v{lo}, v{ol}")
        a(f"v_min_u32 v{ol}, v{hi}, v{oh}")
        a(f"v_max_u32 v{hi}, v{hi}, v{oh}")
        a(f"v_max_u32 v{lo}, v{lo}, v{ol}")
    a(f"v_mov_b32 v{oh}, v{hi}")
    a(f"v_mov_b32 v{ol}, v{lo}")
    a(f"s_lshl_b32 s{sT0}, s{sMT}, 3")
    a(f"s_add_u32 s{sT0}, s{sT0}, {CAND_OFF}")
    a(f"v_mov_b32 v{adr}, 0")
    a(f"v_cmp_eq_u32 vcc, 0, v{vLANE}")
    a("s_nop 1")
    a("s_and_saveexec_b64 s[44:45], vcc")
    a(f"buffer_store_dwordx2 v[{oh}:{ol}], v{adr}, {ws}, s{sT0} offen")
    a("s_mov_b64 exec, -1")
    a(f"s_cmp_lg_u32 s{sMT}, 0")
    a("s_cbranch_scc1 L_k1_repack")
    a(f"v_lshlrev_b32 v{adr}, 8, v{vLANE}")
    a(f"v_mov_b32 v{oh}, 0")
    a(f"s_mov_b32 s{sT0}, {CNT_OFF}")
    a(f"v_cmp_gt_u32 vcc, {NCNT}, v{vLANE}")
    a("s_nop 1")
    a("s_mov_b64 exec, vcc")
    a(f"buffer_store_dword v{oh}, v{adr}, {ws}, s{sT0} offen")
    a("s_mov_b64 exec, -1")
    a.label("L_k1_repack")
    a("s_barrier")
    from k2moe import repack
    repack(a, sW, sMT, "L_k1_exit")

def emit(a):
    entry(a)
    consumer_setup(a)
    a(f"s_cmp_ge_u32 s{sNT}, 10")
    a("s_cbranch_scc1 L_k1_v")
    qk_path(a)
    v_path(a)
    loader(a)
    stat_waves(a)
    aux(a)
    a.label("L_k1_exit")
    a("s_endpgm")
```

```python
from common import *
import os

NAME = "qkv_kernel"
LDS = 131072 + 2048
VGPRS = 144
BLOCK = 768

SRD_X, SRD_W, SRD_WS = 8, 12, 16
sW, sMT, sNT = 20, 21, 22
sROW0 = 23
sT0, sT1, sT2, sT3 = 24, 25, 26, 27
sSEC, sHS, sTS, sSCALE = 28, 29, 30, 31
sTA, sTB = 32, 33
sWR, sWC = 34, 35
ST_NM, ST_RS, ST_CS = 131072, 131072 + 512, 131072 + 1024

vLANE, vTOK, vH = 1, 2, 3
vT = 4
vXA = 8
vXB = 12
vWA, vWB = 16, 17
vS1, vS2, vCS, vONE = 28, 29, 30, 31
vSEL = 136
vCSA = 140
vF = (32, 48)
vACC = 64
vOFF = 128
vE = 24

ST = Stamps("k1")
def X(flag):
    return flag in os.environ.get("K1_EXP", "").split(",")

STF = {"": "", "sc1": " sc1", "nt": " nt", "sc01": " sc0 sc1"}[os.environ.get("K1_ST", "")]

def acc(a_, b_):
    return vACC + 32 * a_ + 16 * b_

def entry(a):
    kernel_header(a, NAME)
    ST(a, "entry")
    a("s_cmp_ge_u32 s2, 256")
    a("s_cbranch_scc1 L_k1_exit")
    a("s_load_dwordx4 s[4:7], s[0:1], 0")
    a("s_load_dwordx2 s[36:37], s[0:1], 80")
    a("s_load_dwordx2 s[38:39], s[0:1], 32")
    a(f"v_lshrrev_b32 v{vT}, 6, v0")
    a(f"v_and_b32 v{vLANE}, 63, v0")
    a(f"v_readfirstlane_b32 s{sW}, v{vT}")
    a(f"s_and_b32 s{sT0}, s2, 3")
    a(f"s_lshl_b32 s{sT0}, s{sT0}, 2")
    a(f"s_bfe_u32 s{sT1}, s2, 0x20003")
    a(f"s_or_b32 s{sMT}, s{sT0}, s{sT1}")
    a(f"s_bfe_u32 s{sT0}, s2, 0x10002")
    a(f"s_lshl_b32 s{sT0}, s{sT0}, 3")
    a(f"s_lshr_b32 s{sT1}, s2, 5")
    a(f"s_or_b32 s{sNT}, s{sT0}, s{sT1}")
    a(f"s_lshl_b32 s{sROW0}, s{sMT}, 7")
    a(f"v_and_b32 v{vTOK}, 31, v{vLANE}")
    a(f"v_lshrrev_b32 v{vH}, 5, v{vLANE}")
    a("s_waitcnt lgkmcnt(0)")
    srd(a, SRD_X, 4, X_BYTES)
    srd(a, SRD_W, 6, WQKV_BYTES)
    srd(a, SRD_WS, 36, WS_SRD)
    a(f"s_cmp_eq_u32 s{sNT}, 15")
    a("s_cbranch_scc1 L_k1_aux")
    a(f"s_cmp_ge_u32 s{sW}, 8")
    a("s_cbranch_scc1 L_k1_stat")
    a(f"s_cmp_ge_u32 s{sW}, 4")
    a("s_cbranch_scc1 L_k1_loader")

def loader(a):
    a.label("L_k1_loader")
    vX, vWt = 8, 9
    lw = sT0
    a(f"s_sub_u32 s{lw}, s{sW}, 4")
    a(f"v_lshrrev_b32 v{vT}, 3, v{vLANE}")
    a(f"s_lshl_b32 s{sT1}, s{lw}, 3")
    a(f"s_add_u32 s{sT1}, s{sT1}, s{sROW0}")
    a(f"v_add_u32 v{vT}, s{sT1}, v{vT}")
    a(f"v_mul_u32_u24 v{vT}, 1280, v{vT}")
    a(f"v_lshrrev_b32 v{vT+1}, 4, v{vLANE}")
    a(f"s_and_b32 s{sT1}, s{lw}, 1")
    a(f"s_lshl_b32 s{sT1}, s{sT1}, 2")
    a(f"v_add_u32 v{vT+2}, s{sT1}, v{vT+1}")
    a(f"v_and_b32 v{vT+3}, 7, v{vLANE}")
    a(f"v_xor_b32 v{vT+2}, v{vT+2}, v{vT+3}")
    a(f"v_lshl_add_u32 v{vX}, v{vT+2}, 4, v{vT}")
    a(f"s_lshl_b32 s{sT1}, s{lw}, 2")
    a(f"v_add_u32 v{vT}, s{sT1}, v{vT+1}")
    a(f"v_mul_u32_u24 v{vT}, 3840, v{vT}")
    a(f"v_and_b32 v{vT+2}, 15, v{vLANE}")
    a(f"v_lshlrev_b32 v{vT+3}, 2, v{vT+1}")
    a(f"v_xor_b32 v{vT+2}, v{vT+2}, v{vT+3}")
    a(f"v_lshl_add_u32 v{vT}, v{vT+2}, 4, v{vT}")
    a(f"s_lshl_b32 s{sT1}, s{sNT}, 8")
    a(f"v_add_u32 v{vWt}, s{sT1}, v{vT}")
    a(f"s_lshl_b32 s{sT2}, s{lw}, 10")
    vXs, vWs = 44, 48
    for i in range(4):
        a(f"v_add_u32 v{vXs + i}, {i * 40960}, v{vX}")
        a(f"v_add_u32 v{vWs + i}, {i * 16 * 3840}, v{vWt}")
    sXO, sWO = 40, 41
    a("s_lshr_b32 s42, s2, 5")
    a("s_bfe_u32 s43, s2, 0x20003")
    a("s_mul_i32 s43, s43, 3")
    a("s_add_u32 s42, s42, s43")
    a("s_cmp_ge_u32 s42, 10")
    a("s_cselect_b32 s43, 10, 0")
    a("s_sub_u32 s42, s42, s43")
    if X("norot"):
        a("s_mov_b32 s42, 0")
    def stage(s):
        base = (s & 3) * 32768
        a(f"s_lshl_b32 s{sXO}, s42, 7")
        a(f"s_mul_i32 s{sWO}, s42, {64 * 3840}")
        a("s_add_u32 s42, s42, 1")
        a("s_cmp_eq_u32 s42, 10")
        a("s_cselect_b32 s42, 0, s42")
        for i in range(4):
            a(f"s_add_u32 m0, s{sT2}, {base + i * 4096}")
            a("s_nop 0")
            a(f"buffer_load_dwordx4 v{vXs + i}, s[{SRD_X}:{SRD_X+3}], s{sXO} offen lds")
            a(f"s_add_u32 m0, s{sT2}, {base + 16384 + i * 4096}")
            a("s_nop 0")
            a(f"buffer_load_dwordx4 v{vWs + i}, s[{SRD_W}:{SRD_W+3}], s{sWO} offen lds")
    ST(a, "setup")
    for s in range(3):
        stage(s)
    ST(a, "B0")
    for s in range(10):
        issued = min(9, s + 2)
        a(f"s_waitcnt vmcnt({8 * (issued - s)})")
        if s in (0, 1, 2, 5):
            ST(a, {0: "g4", 1: "g8", 2: "g20", 5: "loopend"}[s])
        a("s_barrier")
        if s + 3 <= 9 and not (X("nodma") and s > 0):
            stage(s + 3)
    ST(a, "stores")
    ST(a, "end")
    ST.store(a, sW, SRD_WS)
    a("s_endpgm")

def stat_waves(a):
    a.label("L_k1_stat")
    lw = sT0
    vR, vR2, vD, vP, vA1, vA2 = 8, 12, 16, 32, 36, 38
    a(f"s_sub_u32 s{lw}, s{sW}, 8")
    a(f"v_lshrrev_b32 v{vT}, 1, v{vLANE}")
    a(f"s_lshl_b32 s{sT1}, s{lw}, 5")
    a(f"v_add_u32 v{vT}, s{sT1}, v{vT}")
    a(f"v_lshlrev_b32 v{vT+1}, 7, v{vT}")
    a(f"v_and_b32 v{vT+2}, 1, v{vLANE}")
    a(f"v_lshl_add_u32 v{vT+1}, v{vT+2}, 6, v{vT+1}")
    a(f"v_bfe_u32 v{vT+2}, v{vLANE}, 2, 2")
    for i in range(4):
        a(f"v_xor_b32 v{vT+3}, {i}, v{vT+2}")
        a(f"v_lshl_add_u32 v{vR + i}, v{vT+3}, 4, v{vT+1}")
        a(f"v_add_u32 v{vR2 + i}, 65536, v{vR + i}")
    a(f"v_lshlrev_b32 v40, 2, v{vT}")
    for r in range(4):
        a(f"v_mov_b32 v{vA1 + r}, 0")
    for s in range(10):
        slot = s & 3
        a("s_barrier")
        for i in range(4):
            a(f"ds_read_b128 {vr(vD + 4 * i, 4)}, v{(vR if slot < 2 else vR2) + i} offset:{(slot & 1) * 32768}")
        for j in range(16):
            if j % 4 == 0:
                a(f"s_waitcnt lgkmcnt({3 - j // 4})")
            if X("nostat"):
                continue
            p = vP + 2 * (j & 1)
            a(f"v_lshlrev_b32 v{p}, 16, v{vD + j}")
            a(f"v_and_b32 v{p+1}, 0xffff0000, v{vD + j}")
            a(f"v_add_f32 v{vA1}, v{vA1}, v{p}")
            a(f"v_fmac_f32 v{vA2}, v{p}, v{p}")
            a(f"v_add_f32 v{vA1+1}, v{vA1+1}, v{p+1}")
            a(f"v_fmac_f32 v{vA2+1}, v{p+1}, v{p+1}")
    a(f"v_add_f32 v{vA1}, v{vA1}, v{vA1+1}")
    a(f"v_add_f32 v{vA2}, v{vA2}, v{vA2+1}")
    a("s_nop 1")
    a(f"v_add_f32_dpp v{vA1+1}, v{vA1}, v{vA1} quad_perm:[1,0,3,2] row_mask:0xf bank_mask:0xf")
    a(f"v_add_f32_dpp v{vA2+1}, v{vA2}, v{vA2} quad_perm:[1,0,3,2] row_mask:0xf bank_mask:0xf")
    a(f"v_mul_f32 v{vA1}, {hex(f2u(1.0 / D))}, v{vA1+1}")
    a(f"v_mul_f32 v{vA2}, {hex(f2u(1.0 / D))}, v{vA2+1}")
    a(f"v_fma_f32 v{vA2}, -v{vA1}, v{vA1}, v{vA2}")
    a(f"v_max_f32 v{vA2}, 0, v{vA2}")
    a(f"v_add_f32 v{vA2}, {hex(f2u(1e-5))}, v{vA2}")
    a(f"v_rsq_f32 v{vA2}, v{vA2}")
    a(f"v_sub_f32 v{vA1}, 0, v{vA1}")
    a(f"v_add_u32 v40, {ST_NM}, v40")
    a(f"ds_write_b32 v40, v{vA1}")
    a(f"ds_write_b32 v40, v{vA2} offset:512")
    a("s_waitcnt lgkmcnt(0)")
    a("s_barrier")
    a("s_endpgm")

def read_list(g):
    ks, half = g & 3, (g >> 2) & 1
    base = half * 32768
    f = vF[g & 1]
    w = lambda b, reg, rd: f"ds_read_b64_tr_b16 {vr(f + 8 + 4 * b + 2 * rd, 2)}, v{reg} offset:{base + 16384 + (16 * ks + 4 * rd) * 256}"
    return [f"ds_read_b128 {vr(f, 4)}, v{vXA + ks} offset:{base}", w(0, vWA, 0), w(0, vWA, 1),
            w(1, vWB, 0), w(1, vWB, 1), f"ds_read_b128 {vr(f + 4, 4)}, v{vXB + ks} offset:{base}"]

def step(a, g, vorient, reads, pre=None):
    f = vF[g & 1]
    def mm(a_, b_):
        x, w = vr(f + 4 * a_, 4), vr(f + 8 + 4 * b_, 4)
        A, B = (x, w) if vorient else (w, x)
        a(f"v_mfma_f32_32x32x16_bf16 {vr(acc(a_, b_), 16)}, {A}, {B}, {vr(acc(a_, b_), 16)}")
    if pre is not None:
        a("s_waitcnt lgkmcnt(0)")
        mm(0, 0)
        mm(0, 1)
        pre()
        for r in reads[0:3]: a(r)
        mm(1, 0)
        for r in reads[3:6]: a(r)
        mm(1, 1)
    else:
        a("s_waitcnt lgkmcnt(3)")
        mm(0, 0)
        for r in reads[0:3]: a(r)
        a("s_waitcnt lgkmcnt(4)")
        mm(0, 1)
        for r in reads[3:6]: a(r)
        a("s_waitcnt lgkmcnt(6)")
        mm(1, 0)
        mm(1, 1)
    a(f"v_mfma_f32_16x16x32_bf16 {vr(vCSA, 4)}, {vr(vSEL, 4)}, {vr(f + 8, 4)}, {vr(vCSA, 4)}")

def mainloop(a, vorient):
    tag = "v" if vorient else "qk"
    ST(a, "setup")
    a("s_barrier")
    ST(a, "B0")
    for r in read_list(0):
        a(r)
    a(f"s_mov_b32 s{sT3}, 5")
    a(".p2align 3")
    a.label(f"L_k1_loop_{tag}")
    def pre7():
        a(f"s_sub_u32 s{sT3}, s{sT3}, 1")
        a(f"s_cmp_eq_u32 s{sT3}, 0")
        a(f"s_cbranch_scc1 L_k1_last_{tag}")
        for r in list(range(vXA, vXA + 4)) + list(range(vXB, vXB + 4)) + [vWA, vWB]:
            a(f"v_xor_b32 v{r}, 0x10000, v{r}")
        a("s_barrier")
    for g in range(8):
        pre = (lambda: a("s_barrier")) if g == 3 else (pre7 if g == 7 else None)
        step(a, g, vorient, read_list(g + 1), pre)
    a(f"s_branch L_k1_loop_{tag}")
    a.label(f"L_k1_last_{tag}")
    f = vF[1]
    for b_ in range(2):
        x, w = vr(f + 4, 4), vr(f + 8 + 4 * b_, 4)
        A, B = (x, w) if vorient else (w, x)
        a(f"v_mfma_f32_32x32x16_bf16 {vr(acc(1, b_), 16)}, {A}, {B}, {vr(acc(1, b_), 16)}")
    a(f"v_mfma_f32_16x16x32_bf16 {vr(vCSA, 4)}, {vr(vSEL, 4)}, {vr(f + 8, 4)}, {vr(vCSA, 4)}")

def stats_exchange(a):
    ST(a, "loopend")
    a(f"s_lshl_b32 s{sT0}, s{sWC}, 6")
    a(f"s_lshl_b32 s{sT1}, s{sWR}, 5")
    a(f"s_add_u32 s{sT0}, s{sT0}, s{sT1}")
    a(f"v_add_u32 v{vT+1}, s{sT0}, v{vLANE}")
    a(f"v_lshlrev_b32 v{vT+1}, 2, v{vT+1}")
    a(f"v_add_u32 v{vT+1}, {ST_CS}, v{vT+1}")
    a("s_mov_b64 exec, 0xffff")
    a("s_nop 4")
    a(f"ds_write_b32 v{vT+1}, v{vCSA}")
    a(f"ds_write_b32 v{vT+1}, v{vCSA+1} offset:64")
    a("s_mov_b64 exec, -1")
    a("s_waitcnt lgkmcnt(0)")
    a("s_barrier")

def consumer_setup(a):
    a(f"s_lshr_b32 s{sWR}, s{sW}, 1")
    a(f"s_and_b32 s{sWC}, s{sW}, 1")
    a(f"v_lshrrev_b32 v{vT}, 1, v{vTOK}")
    a(f"v_and_b32 v{vT}, 7, v{vT}")
    a(f"s_lshl_b32 s{sT0}, s{sWR}, 6")
    a(f"v_add_u32 v{vT+1}, s{sT0}, v{vTOK}")
    a(f"v_lshlrev_b32 v{vT+1}, 7, v{vT+1}")
    a(f"s_lshl_b32 s{sT0}, s{sWC}, 12")
    a(f"s_xor_b32 s{sT1}, s{sT0}, 4096")
    for ks in range(4):
        a(f"v_add_u32 v{vT+2}, {2 * ks}, v{vH}")
        a(f"v_xor_b32 v{vT+2}, v{vT+2}, v{vT}")
        a(f"v_lshl_add_u32 v{vT+2}, v{vT+2}, 4, v{vT+1}")
        a(f"v_add_u32 v{vXA + ks}, s{sT0}, v{vT+2}")
        a(f"v_add_u32 v{vXB + ks}, s{sT1}, v{vT+2}")
    a(f"v_bfe_u32 v{vT}, v{vLANE}, 2, 2")
    a(f"v_lshl_add_u32 v{vT+1}, v{vH}, 3, v{vT}")
    a(f"v_lshlrev_b32 v{vT+1}, 8, v{vT+1}")
    a(f"v_and_b32 v{vT+2}, 3, v{vLANE}")
    a(f"v_lshl_add_u32 v{vT+1}, v{vT+2}, 3, v{vT+1}")
    a(f"v_bfe_u32 v{vT+2}, v{vLANE}, 4, 1")
    a(f"v_lshlrev_b32 v{vT}, 1, v{vT}")
    for (dst, own) in ((vWA, True), (vWB, False)):
        a(f"s_lshl_b32 s{sT0}, s{sWC}, 2")
        if own:
            a(f"s_lshl_b32 s{sT1}, s{sWR}, 1")
        else:
            a(f"s_xor_b32 s{sT1}, s{sWR}, 1")
            a(f"s_lshl_b32 s{sT1}, s{sT1}, 1")
        a(f"s_add_u32 s{sT0}, s{sT0}, s{sT1}")
        a(f"v_add_u32 v{vT+3}, s{sT0}, v{vT+2}")
        a(f"v_xor_b32 v{vT+3}, v{vT+3}, v{vT}")
        a(f"v_lshl_add_u32 v{dst}, v{vT+3}, 5, v{vT+1}")
    a(f"v_and_b32 v{vT}, 15, v{vLANE}")
    a(f"v_bfe_u32 v{vT+1}, v{vLANE}, 4, 1")
    a(f"v_cmp_eq_u32 vcc, v{vT}, v{vT+1}")
    a(f"v_mov_b32 v{vT+2}, 0x3f803f80")
    a("s_nop 0")
    a(f"v_cndmask_b32 v{vSEL}, 0, v{vT+2}, vcc")
    for r in range(1, 4):
        a(f"v_mov_b32 v{vSEL + r}, v{vSEL}")
    for r in range(4):
        a(f"v_mov_b32 v{vCSA + r}, 0")
    for r in range(64):
        a(f"v_mov_b32 v{vACC + r}, 0")

def qk_path(a):
    a.label("L_k1_qk")
    a(f"s_mov_b32 s{sSEC}, {KV_OFF}")
    a(f"s_mov_b32 s{sTS}, 2560")
    a(f"s_mov_b32 s{sSCALE}, {hex(f2u(1.0))}")
    a(f"s_sub_u32 s{sT0}, s{sNT}, 5")
    a(f"s_cmp_lt_u32 s{sNT}, 5")
    a(f"s_cselect_b32 s{sSEC}, {QB_OFF}, s{sSEC}")
    a(f"s_cselect_b32 s{sTS}, 1280, s{sTS}")
    a(f"s_cselect_b32 s{sSCALE}, {hex(f2u(QSCALE))}, s{sSCALE}")
    a(f"s_cselect_b32 s{sT0}, s{sNT}, s{sT0}")
    a(f"s_lshl_b32 s{sHS}, s{sTS}, 6")
    a(f"s_lshl_b32 s{sT1}, s{sMT}, 2")
    a(f"s_lshl_b32 s{sT2}, s{sWR}, 1")
    a(f"s_add_u32 s{sT1}, s{sT1}, s{sT2}")
    a(f"s_add_u32 s{sT2}, s{sT1}, s{sWC}")
    a(f"s_mul_i32 s{sTA}, s{sT2}, s{sTS}")
    a(f"s_add_u32 s{sTA}, s{sTA}, s{sSEC}")
    a(f"s_xor_b32 s{sT3}, s{sWC}, 1")
    a(f"s_add_u32 s{sT2}, s{sT1}, s{sT3}")
    a(f"s_mul_i32 s{sTB}, s{sT2}, s{sTS}")
    a(f"s_add_u32 s{sTB}, s{sTB}, s{sSEC}")
    a(f"s_lshl_b32 s{sT0}, s{sT0}, 5")
    a(f"s_lshl_b32 s{sT1}, s{sWC}, 4")
    a(f"s_add_u32 s{sT0}, s{sT0}, s{sT1}")
    for b_ in range(2):
        a(f"s_lshl_b32 s{sT1}, s{sWR}, 3") if b_ == 0 else (a(f"s_xor_b32 s{sT1}, s{sWR}, 1"), a(f"s_lshl_b32 s{sT1}, s{sT1}, 3"))
        a(f"s_add_u32 s{sT1}, s{sT1}, s{sT0}")
        for g in range(4):
            o = vOFF + 4 * b_ + g
            a(f"v_add_u32 v{vT}, s{sT1}, v{vH}")
            a(f"v_add_u32 v{vT}, {2 * g}, v{vT}")
            a(f"v_mul_u32_u24 v{vT+1}, 52429, v{vT}")
            a(f"v_lshrrev_b32 v{vT+1}, 18, v{vT+1}")
            a(f"v_mul_u32_u24 v{vT+2}, 5, v{vT+1}")
            a(f"v_sub_u32 v{vT+2}, v{vT}, v{vT+2}")
            a(f"v_mul_lo_u32 v{o}, v{vT+1}, s{sHS}")
            a(f"v_lshrrev_b32 v{vT+1}, 1, v{vT+2}")
            a(f"v_lshlrev_b32 v{vT+1}, 9, v{vT+1}")
            a(f"v_and_b32 v{vT+3}, 1, v{vT+2}")
            a(f"v_lshl_add_u32 v{vT+1}, v{vT+3}, 3, v{vT+1}")
            a(f"v_cmp_eq_u32 vcc, 4, v{vT+2}")
            a(f"v_lshlrev_b32 v{vT+3}, 4, v{vTOK}")
            a(f"v_lshlrev_b32 v{vT+2}, 3, v{vTOK}")
            a(f"v_cndmask_b32 v{vT+3}, v{vT+3}, v{vT+2}, vcc")
            a(f"v_add3_u32 v{o}, v{o}, v{vT+1}, v{vT+3}")
    mainloop(a, False)
    stats_exchange(a)
    vNM, vRS, vC = vE, vE + 2, vE + 4
    a(f"s_lshl_b32 s{sT0}, s{sWR}, 6")
    a(f"v_add_u32 v{vT}, s{sT0}, v{vTOK}")
    a(f"v_lshlrev_b32 v{vT}, 2, v{vT}")
    a(f"s_lshl_b32 s{sT1}, s{sWC}, 7")
    a(f"v_add_u32 v{vT+1}, s{sT1}, v{vT}")
    a(f"s_xor_b32 s{sT1}, s{sT1}, 128")
    a(f"v_add_u32 v{vT+2}, s{sT1}, v{vT}")
    a(f"v_add_u32 v{vT+1}, {ST_NM}, v{vT+1}")
    a(f"v_add_u32 v{vT+2}, {ST_NM}, v{vT+2}")
    a(f"ds_read_b32 v{vNM}, v{vT+1}")
    a(f"ds_read_b32 v{vRS}, v{vT+1} offset:512")
    a(f"ds_read_b32 v{vNM+1}, v{vT+2}")
    a(f"ds_read_b32 v{vRS+1}, v{vT+2} offset:512")
    a(f"s_lshl_b32 s{sT0}, s{sWC}, 8")
    a(f"v_lshlrev_b32 v{vT}, 4, v{vH}")
    a(f"v_add_u32 v{vT}, s{sT0}, v{vT}")
    a(f"s_lshl_b32 s{sT1}, s{sWR}, 7")
    a(f"v_add_u32 v{vT+1}, s{sT1}, v{vT}")
    a(f"s_xor_b32 s{sT1}, s{sT1}, 128")
    a(f"v_add_u32 v{vT+2}, s{sT1}, v{vT}")
    a(f"v_add_u32 v{vT+1}, {ST_CS}, v{vT+1}")
    a(f"v_add_u32 v{vT+2}, {ST_CS}, v{vT+2}")
    for b_ in range(2):
        for g in range(4):
            a(f"ds_read_b128 {vr(vC + 16 * b_ + 4 * g, 4)}, v{vT + 1 + b_} offset:{32 * g}")
    a("s_waitcnt lgkmcnt(0)")
    a(f"v_mul_f32 v{vRS}, s{sSCALE}, v{vRS}")
    a(f"v_mul_f32 v{vRS+1}, s{sSCALE}, v{vRS+1}")
    ws = f"s[{SRD_WS}:{SRD_WS+3}]"
    for a_ in range(2):
        a(f"v_mov_b32 v{vT}, v{vNM + a_}")
        a(f"v_mov_b32 v{vT+1}, v{vNM + a_}")
        a(f"v_mov_b32 v{vT+2}, v{vRS + a_}")
        a(f"v_mov_b32 v{vT+3}, v{vRS + a_}")
        for b_ in range(2):
            A = acc(a_, b_)
            for p in range(8):
                a(f"v_pk_fma_f32 {vr(A + 2 * p, 2)}, {vr(vC + 16 * b_ + 2 * p, 2)}, {vr(vT, 2)}, {vr(A + 2 * p, 2)}")
            for p in range(8):
                a(f"v_pk_mul_f32 {vr(A + 2 * p, 2)}, {vr(A + 2 * p, 2)}, {vr(vT + 2, 2)}")
            for p in range(8):
                a(f"v_cvt_pk_bf16_f32 v{A + p}, v{A + 2 * p}, v{A + 2 * p + 1}")
            for g in range(4):
                a(f"buffer_store_dwordx2 {vr(A + 2 * g, 2)}, v{vOFF + 4 * b_ + g}, {ws}, s{sTA if a_ == 0 else sTB} offen{STF}")
    ST(a, "stores")
    if ST.on:
        a("s_waitcnt vmcnt(0)")
    ST(a, "end")
    ST.store(a, sW, SRD_WS)
    a("s_endpgm")

def v_path(a):
    a.label("L_k1_v")
    a(f"s_lshl_b32 s{sT1}, s{sMT}, 2")
    a(f"s_lshl_b32 s{sT2}, s{sWR}, 1")
    a(f"s_add_u32 s{sT1}, s{sT1}, s{sT2}")
    a(f"s_add_u32 s{sT2}, s{sT1}, s{sWC}")
    a(f"s_mul_i32 s{sTA}, s{sT2}, 2560")
    a(f"s_add_u32 s{sTA}, s{sTA}, {KV_OFF + 1280}")
    a(f"s_xor_b32 s{sT3}, s{sWC}, 1")
    a(f"s_add_u32 s{sT2}, s{sT1}, s{sT3}")
    a(f"s_mul_i32 s{sTB}, s{sT2}, 2560")
    a(f"s_add_u32 s{sTB}, s{sTB}, {KV_OFF + 1280}")
    a(f"s_sub_u32 s{sT0}, s{sNT}, 10")
    a(f"s_lshl_b32 s{sT0}, s{sT0}, 7")
    a(f"s_lshl_b32 s{sT1}, s{sWC}, 6")
    a(f"s_add_u32 s{sT0}, s{sT0}, s{sT1}")
    for b_ in range(2):
        if b_ == 0:
            a(f"s_lshl_b32 s{sT1}, s{sWR}, 5")
        else:
            a(f"s_xor_b32 s{sT1}, s{sWR}, 1")
            a(f"s_lshl_b32 s{sT1}, s{sT1}, 5")
        a(f"s_add_u32 s{sT1}, s{sT1}, s{sT0}")
        a(f"v_add_u32 v{vT}, s{sT1}, v{vTOK}")
        a(f"v_mul_u32_u24 v{vT+1}, 52429, v{vT}")
        a(f"v_lshrrev_b32 v{vT+1}, 20, v{vT+1}")
        a(f"v_mul_u32_u24 v{vT+2}, 20, v{vT+1}")
        a(f"v_sub_u32 v{vT+2}, v{vT}, v{vT+2}")
        a(f"s_mov_b32 s{sT2}, {64 * 2560}")
        a(f"v_mul_lo_u32 v{vOFF + b_}, v{vT+1}, s{sT2}")
        a(f"v_lshlrev_b32 v{vT+2}, 4, v{vT+2}")
        a(f"v_mul_u32_u24 v{vT+3}, 320, v{vH}")
        a(f"v_add3_u32 v{vOFF + b_}, v{vOFF + b_}, v{vT+2}, v{vT+3}")
    mainloop(a, True)
    stats_exchange(a)
    vCL, vNM, vRS = vE, vE + 4, vE + 20
    a(f"s_lshl_b32 s{sT0}, s{sWC}, 6")
    a(f"v_add_u32 v{vT}, s{sT0}, v{vTOK}")
    a(f"v_lshlrev_b32 v{vT}, 2, v{vT}")
    a(f"s_lshl_b32 s{sT1}, s{sWR}, 7")
    a(f"v_add_u32 v{vT+1}, s{sT1}, v{vT}")
    a(f"s_xor_b32 s{sT1}, s{sT1}, 128")
    a(f"v_add_u32 v{vT+2}, s{sT1}, v{vT}")
    a(f"v_add_u32 v{vT+1}, {ST_CS}, v{vT+1}")
    a(f"v_add_u32 v{vT+2}, {ST_CS}, v{vT+2}")
    a(f"ds_read_b32 v{vCL}, v{vT+1}")
    a(f"ds_read_b32 v{vCL+2}, v{vT+2}")
    a("s_waitcnt lgkmcnt(0)")
    a(f"v_mov_b32 v{vCL+1}, v{vCL}")
    a(f"v_mov_b32 v{vCL+3}, v{vCL+2}")
    ws = f"s[{SRD_WS}:{SRD_WS+3}]"
    for a_ in range(2):
        a(f"s_lshl_b32 s{sT0}, s{sWR}, 8")
        a(f"s_lshl_b32 s{sT1}, s{sWC}, 7")
        if a_ == 1:
            a(f"s_xor_b32 s{sT1}, s{sT1}, 128")
        a(f"s_add_u32 s{sT0}, s{sT0}, s{sT1}")
        a(f"v_lshlrev_b32 v{vT}, 4, v{vH}")
        a(f"v_add_u32 v{vT}, s{sT0}, v{vT}")
        a(f"v_add_u32 v{vT}, {ST_NM}, v{vT}")
        for g in range(4):
            a(f"ds_read_b128 {vr(vNM + 4 * g, 4)}, v{vT} offset:{32 * g}")
            a(f"ds_read_b128 {vr(vRS + 4 * g, 4)}, v{vT} offset:{512 + 32 * g}")
        a("s_waitcnt lgkmcnt(0)")
        for b_ in range(2):
            A = acc(a_, b_)
            for p in range(8):
                a(f"v_pk_fma_f32 {vr(A + 2 * p, 2)}, {vr(vNM + 2 * p, 2)}, {vr(vCL + 2 * b_, 2)}, {vr(A + 2 * p, 2)}")
            for p in range(8):
                a(f"v_pk_mul_f32 {vr(A + 2 * p, 2)}, {vr(A + 2 * p, 2)}, {vr(vRS + 2 * p, 2)}")
            for p in range(8):
                a(f"v_cvt_pk_bf16_f32 v{A + p}, v{A + 2 * p}, v{A + 2 * p + 1}")
            for t in range(2):
                a(f"buffer_store_dwordx4 {vr(A + 4 * t, 4)}, v{vOFF + b_}, {ws}, s{sTA if a_ == 0 else sTB} offen offset:{640 * t}{STF}")
    ST(a, "stores")
    if ST.on:
        a("s_waitcnt vmcnt(0)")
    ST(a, "end")
    ST.store(a, sW, SRD_WS)
    a("s_endpgm")

def aux(a):
    a.label("L_k1_aux")
    a(f"s_cmp_ge_u32 s{sW}, 8")
    a("s_cbranch_scc1 L_k1_exit")
    vX, vWr = 32, 72
    vA, vAW = 8, 9
    s1, s2, s3, sw = 10, 11, 12, 13
    SRD_R = 40
    srd(a, SRD_R, 38, D * 2)
    a(f"v_lshrrev_b32 v{vT}, 2, v{vLANE}")
    a(f"s_lshl_b32 s{sT0}, s{sW}, 4")
    a(f"s_add_u32 s{sT0}, s{sT0}, s{sROW0}")
    a(f"v_add_u32 v{vT}, s{sT0}, v{vT}")
    a(f"v_and_b32 v{vT+1}, 3, v{vLANE}")
    a(f"v_lshlrev_b32 v{vAW}, 4, v{vT+1}")
    a(f"v_mul_u32_u24 v{vA}, 1280, v{vT}")
    a(f"v_add_u32 v{vA}, v{vA}, v{vAW}")
    for r in (s1, s2, s3, sw):
        a(f"v_mov_b32 v{r}, 0")
    a(f"v_mov_b32 v{vONE}, 0x3f803f80")
    for half in range(2):
        for i in range(10):
            a(f"buffer_load_dwordx4 {vr(vX + 4 * i, 4)}, v{vA}, s[{SRD_X}:{SRD_X+3}], 0 offen offset:{(10 * half + i) * 64}")
            a(f"buffer_load_dwordx4 {vr(vWr + 4 * i, 4)}, v{vAW}, s[{SRD_R}:{SRD_R+3}], 0 offen offset:{(10 * half + i) * 64}")
        a("s_waitcnt vmcnt(0)")
        for r in range(40):
            a(f"v_dot2c_f32_bf16 v{s1}, v{vX + r}, v{vONE}")
            a(f"v_dot2c_f32_bf16 v{s2}, v{vX + r}, v{vX + r}")
            a(f"v_dot2c_f32_bf16 v{s3}, v{vX + r}, v{vWr + r}")
            a(f"v_dot2c_f32_bf16 v{sw}, v{vWr + r}, v{vONE}")
    a("s_nop 3")
    for perm in ("[1,0,3,2]", "[2,3,0,1]"):
        for r in (s1, s2, s3, sw):
            a(f"v_add_f32_dpp v{vT+2}, v{r}, v{r} quad_perm:{perm} row_mask:0xf bank_mask:0xf")
            a("s_nop 1")
            a(f"v_mov_b32 v{r}, v{vT+2}")
            a("s_nop 1")
    a(f"v_mul_f32 v{s1}, {hex(f2u(1.0 / D))}, v{s1}")
    a(f"v_mul_f32 v{s2}, {hex(f2u(1.0 / D))}, v{s2}")
    a(f"v_fma_f32 v{s2}, -v{s1}, v{s1}, v{s2}")
    a(f"v_max_f32 v{s2}, 0, v{s2}")
    a(f"v_add_f32 v{s2}, {hex(f2u(1e-5))}, v{s2}")
    a(f"v_rsq_f32 v{s2}, v{s2}")
    a(f"v_fma_f32 v{s3}, -v{s1}, v{sw}, v{s3}")
    a(f"v_mul_f32 v{s3}, v{s3}, v{s2}")
    ws = f"s[{SRD_WS}:{SRD_WS+3}]"
    a(f"v_ashrrev_i32 v{vT+2}, 31, v{s3}")
    a(f"v_or_b32 v{vT+2}, 0x80000000, v{vT+2}")
    a(f"v_xor_b32 v{vT+2}, v{vT+2}, v{s3}")
    a(f"v_and_b32 v{vT+2}, 0xfffff800, v{vT+2}")
    a(f"v_or_b32 v{vT+2}, v{vT+2}, v{vT}")
    a(f"v_mov_b32 v14, v{s1}")
    a(f"v_mov_b32 v15, v{s2}")
    a(f"v_lshlrev_b32 v{vA}, 3, v{vT}")
    a(f"v_lshlrev_b32 v{vAW}, 2, v{vT}")
    a(f"v_and_b32 v{vT+3}, 127, v{vT}")
    a(f"v_lshlrev_b32 v{vT+3}, 2, v{vT+3}")
    a(f"v_cmp_eq_u32 vcc, 0, v{vT+1}")
    a(f"s_mov_b32 s{sT0}, {ST_OFF}")
    a(f"s_mov_b32 s{sT1}, {R_OFF}")
    a("s_and_saveexec_b64 s[44:45], vcc")
    a(f"buffer_store_dwordx2 v[14:15], v{vA}, {ws}, s{sT0} offen")
    a(f"buffer_store_dword v{s3}, v{vAW}, {ws}, s{sT1} offen")
    a(f"ds_write_b32 v{vT+3}, v{vT+2}")
    a("s_mov_b64 exec, s[44:45]")
    a("s_waitcnt lgkmcnt(0)")
    a("s_barrier")
    a(f"s_cmp_lg_u32 s{sW}, 0")
    a("s_cbranch_scc1 L_k1_repack")
    hi, lo, oh, ol, adr = 16, 17, 18, 19, 20
    a(f"v_lshlrev_b32 v{adr}, 2, v{vLANE}")
    a(f"ds_read_b32 v{oh}, v{adr}")
    a(f"ds_read_b32 v{ol}, v{adr} offset:256")
    a("s_waitcnt lgkmcnt(0)")
    a(f"v_max_u32 v{hi}, v{oh}, v{ol}")
    a(f"v_min_u32 v{lo}, v{oh}, v{ol}")
    for x in (1, 2, 4, 8, 16, 32):
        a(f"v_xor_b32 v{adr}, {x}, v{vLANE}")
        a(f"v_lshlrev_b32 v{adr}, 2, v{adr}")
        a(f"ds_bpermute_b32 v{oh}, v{adr}, v{hi}")
        a(f"ds_bpermute_b32 v{ol}, v{adr}, v{lo}")
        a("s_waitcnt lgkmcnt(0)")
        a(f"v_max_u32 v{lo}, v{lo}, v{ol}")
        a(f"v_min_u32 v{ol}, v{hi}, v{oh}")
        a(f"v_max_u32 v{hi}, v{hi}, v{oh}")
        a(f"v_max_u32 v{lo}, v{lo}, v{ol}")
    a(f"v_mov_b32 v{oh}, v{hi}")
    a(f"v_mov_b32 v{ol}, v{lo}")
    a(f"s_lshl_b32 s{sT0}, s{sMT}, 3")
    a(f"s_add_u32 s{sT0}, s{sT0}, {CAND_OFF}")
    a(f"v_mov_b32 v{adr}, 0")
    a(f"v_cmp_eq_u32 vcc, 0, v{vLANE}")
    a("s_nop 1")
    a("s_and_saveexec_b64 s[44:45], vcc")
    a(f"buffer_store_dwordx2 v[{oh}:{ol}], v{adr}, {ws}, s{sT0} offen")
    a("s_mov_b64 exec, -1")
    a(f"s_cmp_lg_u32 s{sMT}, 0")
    a("s_cbranch_scc1 L_k1_repack")
    a(f"v_lshlrev_b32 v{adr}, 8, v{vLANE}")
    a(f"v_mov_b32 v{oh}, 0")
    a(f"s_mov_b32 s{sT0}, {CNT_OFF}")
    a(f"v_cmp_gt_u32 vcc, {NCNT}, v{vLANE}")
    a("s_nop 1")
    a("s_mov_b64 exec, vcc")
    a(f"buffer_store_dword v{oh}, v{adr}, {ws}, s{sT0} offen")
    a("s_mov_b64 exec, -1")
    a.label("L_k1_repack")
    a("s_barrier")
    from k2moe import repack
    repack(a, sW, sMT, "L_k1_exit")

def emit(a):
    entry(a)
    consumer_setup(a)
    a(f"s_cmp_ge_u32 s{sNT}, 10")
    a("s_cbranch_scc1 L_k1_v")
    qk_path(a)
    v_path(a)
    loader(a)
    stat_waves(a)
    aux(a)
    a.label("L_k1_exit")
    a("s_endpgm")
```

```python
from common import *
import os

NAME = "qkv_kernel"
LDS = 131072 + 2048
VGPRS = 144
BLOCK = 768

SRD_X, SRD_W, SRD_WS = 8, 12, 16
sW, sMT, sNT = 20, 21, 22
sROW0 = 23
sT0, sT1, sT2, sT3 = 24, 25, 26, 27
sSEC, sHS, sTS, sSCALE = 28, 29, 30, 31
sTA, sTB = 32, 33
sWR, sWC = 34, 35
ST_NM, ST_RS, ST_CS = 131072, 131072 + 512, 131072 + 1024

vLANE, vTOK, vH = 1, 2, 3
vT = 4
vXA = 8
vXB = 12
vWA, vWB = 16, 17
vS1, vS2, vCS, vONE = 28, 29, 30, 31
vSEL = 136
vCSA = 140
vF = (32, 48)
vACC = 64
vOFF = 128
vE = 24

ST = Stamps("k1")
def X(flag):
    return flag in os.environ.get("K1_EXP", "").split(",")

STF = {"": "", "sc1": " sc1", "nt": " nt", "sc01": " sc0 sc1"}[os.environ.get("K1_ST", "")]

def acc(a_, b_):
    return vACC + 32 * a_ + 16 * b_

def entry(a):
    kernel_header(a, NAME)
    ST(a, "entry")
    a("s_cmp_ge_u32 s2, 256")
    a("s_cbranch_scc1 L_k1_exit")
    a("s_load_dwordx4 s[4:7], s[0:1], 0")
    a("s_load_dwordx2 s[36:37], s[0:1], 80")
    a("s_load_dwordx2 s[38:39], s[0:1], 32")
    a(f"v_lshrrev_b32 v{vT}, 6, v0")
    a(f"v_and_b32 v{vLANE}, 63, v0")
    a(f"v_readfirstlane_b32 s{sW}, v{vT}")
    a(f"s_and_b32 s{sT0}, s2, 3")
    a(f"s_lshl_b32 s{sT0}, s{sT0}, 2")
    a(f"s_bfe_u32 s{sT1}, s2, 0x20003")
    a(f"s_or_b32 s{sMT}, s{sT0}, s{sT1}")
    a(f"s_bfe_u32 s{sT0}, s2, 0x10002")
    a(f"s_lshl_b32 s{sT0}, s{sT0}, 3")
    a(f"s_lshr_b32 s{sT1}, s2, 5")
    a(f"s_or_b32 s{sNT}, s{sT0}, s{sT1}")
    a(f"s_lshl_b32 s{sROW0}, s{sMT}, 7")
    a(f"v_and_b32 v{vTOK}, 31, v{vLANE}")
    a(f"v_lshrrev_b32 v{vH}, 5, v{vLANE}")
    a("s_waitcnt lgkmcnt(0)")
    srd(a, SRD_X, 4, X_BYTES)
    srd(a, SRD_W, 6, WQKV_BYTES)
    srd(a, SRD_WS, 36, WS_SRD)
    a(f"s_cmp_eq_u32 s{sNT}, 15")
    a("s_cbranch_scc1 L_k1_aux")
    a(f"s_cmp_ge_u32 s{sW}, 8")
    a("s_cbranch_scc1 L_k1_stat")
    a(f"s_cmp_ge_u32 s{sW}, 4")
    a("s_cbranch_scc1 L_k1_loader")

def loader(a):
    a.label("L_k1_loader")
    vX, vWt = 8, 9
    lw = sT0
    a(f"s_sub_u32 s{lw}, s{sW}, 4")
    a(f"v_lshrrev_b32 v{vT}, 3, v{vLANE}")
    a(f"s_lshl_b32 s{sT1}, s{lw}, 3")
    a(f"s_add_u32 s{sT1}, s{sT1}, s{sROW0}")
    a(f"v_add_u32 v{vT}, s{sT1}, v{vT}")
    a(f"v_mul_u32_u24 v{vT}, 1280, v{vT}")
    a(f"v_lshrrev_b32 v{vT+1}, 4, v{vLANE}")
    a(f"s_and_b32 s{sT1}, s{lw}, 1")
    a(f"s_lshl_b32 s{sT1}, s{sT1}, 2")
    a(f"v_add_u32 v{vT+2}, s{sT1}, v{vT+1}")
    a(f"v_and_b32 v{vT+3}, 7, v{vLANE}")
    a(f"v_xor_b32 v{vT+2}, v{vT+2}, v{vT+3}")
    a(f"v_lshl_add_u32 v{vX}, v{vT+2}, 4, v{vT}")
    a(f"s_lshl_b32 s{sT1}, s{lw}, 2")
    a(f"v_add_u32 v{vT}, s{sT1}, v{vT+1}")
    a(f"v_mul_u32_u24 v{vT}, 3840, v{vT}")
    a(f"v_and_b32 v{vT+2}, 15, v{vLANE}")
    a(f"v_lshlrev_b32 v{vT+3}, 2, v{vT+1}")
    a(f"v_xor_b32 v{vT+2}, v{vT+2}, v{vT+3}")
    a(f"v_lshl_add_u32 v{vT}, v{vT+2}, 4, v{vT}")
    a(f"s_lshl_b32 s{sT1}, s{sNT}, 8")
    a(f"v_add_u32 v{vWt}, s{sT1}, v{vT}")
    a(f"s_lshl_b32 s{sT2}, s{lw}, 10")
    vXs, vWs = 44, 48
    for i in range(4):
        a(f"v_add_u32 v{vXs + i}, {i * 40960}, v{vX}")
        a(f"v_add_u32 v{vWs + i}, {i * 16 * 3840}, v{vWt}")
    sXO, sWO = 40, 41
    a("s_lshr_b32 s42, s2, 5")
    a("s_bfe_u32 s43, s2, 0x20003")
    a("s_mul_i32 s43, s43, 3")
    a("s_add_u32 s42, s42, s43")
    a("s_cmp_ge_u32 s42, 10")
    a("s_cselect_b32 s43, 10, 0")
    a("s_sub_u32 s42, s42, s43")
    if not X("rot"):
        a("s_mov_b32 s42, 0")
    def stage(s):
        base = (s & 3) * 32768
        a(f"s_lshl_b32 s{sXO}, s42, 7")
        a(f"s_mul_i32 s{sWO}, s42, {64 * 3840}")
        a("s_add_u32 s42, s42, 1")
        a("s_cmp_eq_u32 s42, 10")
        a("s_cselect_b32 s42, 0, s42")
        for i in range(4):
            a(f"s_add_u32 m0, s{sT2}, {base + i * 4096}")
            a("s_nop 0")
            a(f"buffer_load_dwordx4 v{vXs + i}, s[{SRD_X}:{SRD_X+3}], s{sXO} offen lds")
            a(f"s_add_u32 m0, s{sT2}, {base + 16384 + i * 4096}")
            a("s_nop 0")
            a(f"buffer_load_dwordx4 v{vWs + i}, s[{SRD_W}:{SRD_W+3}], s{sWO} offen lds")
    ST(a, "setup")
    PRE = int(os.environ.get("K1_PRE", "2"))
    for s in range(PRE):
        stage(s)
    ST(a, "B0")
    issued = PRE - 1
    for s in range(10):
        a(f"s_waitcnt vmcnt({8 * (issued - s)})")
        if s in (0, 1, 2, 5):
            ST(a, {0: "g4", 1: "g8", 2: "g20", 5: "loopend"}[s])
        a("s_barrier")
        while issued < min(9, s + 3):
            issued += 1
            if not (X("nodma") and issued > 3):
                stage(issued)
    ST(a, "stores")
    ST(a, "end")
    ST.store(a, sW, SRD_WS)
    a("s_endpgm")

def stat_waves(a):
    a.label("L_k1_stat")
    lw = sT0
    vR, vR2, vD, vP, vA1, vA2 = 8, 12, 16, 32, 36, 38
    a(f"s_sub_u32 s{lw}, s{sW}, 8")
    a(f"v_lshrrev_b32 v{vT}, 1, v{vLANE}")
    a(f"s_lshl_b32 s{sT1}, s{lw}, 5")
    a(f"v_add_u32 v{vT}, s{sT1}, v{vT}")
    a(f"v_lshlrev_b32 v{vT+1}, 7, v{vT}")
    a(f"v_and_b32 v{vT+2}, 1, v{vLANE}")
    a(f"v_lshl_add_u32 v{vT+1}, v{vT+2}, 6, v{vT+1}")
    a(f"v_bfe_u32 v{vT+2}, v{vLANE}, 2, 2")
    for i in range(4):
        a(f"v_xor_b32 v{vT+3}, {i}, v{vT+2}")
        a(f"v_lshl_add_u32 v{vR + i}, v{vT+3}, 4, v{vT+1}")
        a(f"v_add_u32 v{vR2 + i}, 65536, v{vR + i}")
    a(f"v_lshlrev_b32 v40, 2, v{vT}")
    for r in range(4):
        a(f"v_mov_b32 v{vA1 + r}, 0")
    for s in range(10):
        slot = s & 3
        a("s_barrier")
        for i in range(4):
            a(f"ds_read_b128 {vr(vD + 4 * i, 4)}, v{(vR if slot < 2 else vR2) + i} offset:{(slot & 1) * 32768}")
        for j in range(16):
            if j % 4 == 0:
                a(f"s_waitcnt lgkmcnt({3 - j // 4})")
            if X("nostat"):
                continue
            p = vP + 2 * (j & 1)
            a(f"v_lshlrev_b32 v{p}, 16, v{vD + j}")
            a(f"v_and_b32 v{p+1}, 0xffff0000, v{vD + j}")
            a(f"v_add_f32 v{vA1}, v{vA1}, v{p}")
            a(f"v_fmac_f32 v{vA2}, v{p}, v{p}")
            a(f"v_add_f32 v{vA1+1}, v{vA1+1}, v{p+1}")
            a(f"v_fmac_f32 v{vA2+1}, v{p+1}, v{p+1}")
    a(f"v_add_f32 v{vA1}, v{vA1}, v{vA1+1}")
    a(f"v_add_f32 v{vA2}, v{vA2}, v{vA2+1}")
    a("s_nop 1")
    a(f"v_add_f32_dpp v{vA1+1}, v{vA1}, v{vA1} quad_perm:[1,0,3,2] row_mask:0xf bank_mask:0xf")
    a(f"v_add_f32_dpp v{vA2+1}, v{vA2}, v{vA2} quad_perm:[1,0,3,2] row_mask:0xf bank_mask:0xf")
    a(f"v_mul_f32 v{vA1}, {hex(f2u(1.0 / D))}, v{vA1+1}")
    a(f"v_mul_f32 v{vA2}, {hex(f2u(1.0 / D))}, v{vA2+1}")
    a(f"v_fma_f32 v{vA2}, -v{vA1}, v{vA1}, v{vA2}")
    a(f"v_max_f32 v{vA2}, 0, v{vA2}")
    a(f"v_add_f32 v{vA2}, {hex(f2u(1e-5))}, v{vA2}")
    a(f"v_rsq_f32 v{vA2}, v{vA2}")
    a(f"v_sub_f32 v{vA1}, 0, v{vA1}")
    a(f"v_add_u32 v40, {ST_NM}, v40")
    a(f"ds_write_b32 v40, v{vA1}")
    a(f"ds_write_b32 v40, v{vA2} offset:512")
    a("s_waitcnt lgkmcnt(0)")
    a("s_barrier")
    a("s_endpgm")

def read_list(g):
    ks, half = g & 3, (g >> 2) & 1
    base = half * 32768
    f = vF[g & 1]
    w = lambda b, reg, rd: f"ds_read_b64_tr_b16 {vr(f + 8 + 4 * b + 2 * rd, 2)}, v{reg} offset:{base + 16384 + (16 * ks + 4 * rd) * 256}"
    return [f"ds_read_b128 {vr(f, 4)}, v{vXA + ks} offset:{base}", w(0, vWA, 0), w(0, vWA, 1),
            w(1, vWB, 0), w(1, vWB, 1), f"ds_read_b128 {vr(f + 4, 4)}, v{vXB + ks} offset:{base}"]

def step(a, g, vorient, reads, pre=None):
    f = vF[g & 1]
    def mm(a_, b_):
        x, w = vr(f + 4 * a_, 4), vr(f + 8 + 4 * b_, 4)
        A, B = (x, w) if vorient else (w, x)
        a(f"v_mfma_f32_32x32x16_bf16 {vr(acc(a_, b_), 16)}, {A}, {B}, {vr(acc(a_, b_), 16)}")
    if pre is not None:
        a("s_waitcnt lgkmcnt(0)")
        mm(0, 0)
        mm(0, 1)
        pre()
        for r in reads[0:3]: a(r)
        mm(1, 0)
        for r in reads[3:6]: a(r)
        mm(1, 1)
    else:
        a("s_waitcnt lgkmcnt(3)")
        mm(0, 0)
        for r in reads[0:3]: a(r)
        a("s_waitcnt lgkmcnt(4)")
        mm(0, 1)
        for r in reads[3:6]: a(r)
        a("s_waitcnt lgkmcnt(6)")
        mm(1, 0)
        mm(1, 1)
    a(f"v_mfma_f32_16x16x32_bf16 {vr(vCSA, 4)}, {vr(vSEL, 4)}, {vr(f + 8, 4)}, {vr(vCSA, 4)}")

def mainloop(a, vorient):
    tag = "v" if vorient else "qk"
    ST(a, "setup")
    a("s_barrier")
    ST(a, "B0")
    for r in read_list(0):
        a(r)
    a(f"s_mov_b32 s{sT3}, 5")
    a(".p2align 3")
    a.label(f"L_k1_loop_{tag}")
    def pre7():
        a(f"s_sub_u32 s{sT3}, s{sT3}, 1")
        a(f"s_cmp_eq_u32 s{sT3}, 0")
        a(f"s_cbranch_scc1 L_k1_last_{tag}")
        for r in list(range(vXA, vXA + 4)) + list(range(vXB, vXB + 4)) + [vWA, vWB]:
            a(f"v_xor_b32 v{r}, 0x10000, v{r}")
        a("s_barrier")
    for g in range(8):
        pre = (lambda: a("s_barrier")) if g == 3 else (pre7 if g == 7 else None)
        step(a, g, vorient, read_list(g + 1), pre)
    a(f"s_branch L_k1_loop_{tag}")
    a.label(f"L_k1_last_{tag}")
    f = vF[1]
    for b_ in range(2):
        x, w = vr(f + 4, 4), vr(f + 8 + 4 * b_, 4)
        A, B = (x, w) if vorient else (w, x)
        a(f"v_mfma_f32_32x32x16_bf16 {vr(acc(1, b_), 16)}, {A}, {B}, {vr(acc(1, b_), 16)}")
    a(f"v_mfma_f32_16x16x32_bf16 {vr(vCSA, 4)}, {vr(vSEL, 4)}, {vr(f + 8, 4)}, {vr(vCSA, 4)}")

def stats_exchange(a):
    ST(a, "loopend")
    a(f"s_lshl_b32 s{sT0}, s{sWC}, 6")
    a(f"s_lshl_b32 s{sT1}, s{sWR}, 5")
    a(f"s_add_u32 s{sT0}, s{sT0}, s{sT1}")
    a(f"v_add_u32 v{vT+1}, s{sT0}, v{vLANE}")
    a(f"v_lshlrev_b32 v{vT+1}, 2, v{vT+1}")
    a(f"v_add_u32 v{vT+1}, {ST_CS}, v{vT+1}")
    a("s_mov_b64 exec, 0xffff")
    a("s_nop 4")
    a(f"ds_write_b32 v{vT+1}, v{vCSA}")
    a(f"ds_write_b32 v{vT+1}, v{vCSA+1} offset:64")
    a("s_mov_b64 exec, -1")
    a("s_waitcnt lgkmcnt(0)")
    a("s_barrier")

def consumer_setup(a):
    a(f"s_lshr_b32 s{sWR}, s{sW}, 1")
    a(f"s_and_b32 s{sWC}, s{sW}, 1")
    a(f"v_lshrrev_b32 v{vT}, 1, v{vTOK}")
    a(f"v_and_b32 v{vT}, 7, v{vT}")
    a(f"s_lshl_b32 s{sT0}, s{sWR}, 6")
    a(f"v_add_u32 v{vT+1}, s{sT0}, v{vTOK}")
    a(f"v_lshlrev_b32 v{vT+1}, 7, v{vT+1}")
    a(f"s_lshl_b32 s{sT0}, s{sWC}, 12")
    a(f"s_xor_b32 s{sT1}, s{sT0}, 4096")
    for ks in range(4):
        a(f"v_add_u32 v{vT+2}, {2 * ks}, v{vH}")
        a(f"v_xor_b32 v{vT+2}, v{vT+2}, v{vT}")
        a(f"v_lshl_add_u32 v{vT+2}, v{vT+2}, 4, v{vT+1}")
        a(f"v_add_u32 v{vXA + ks}, s{sT0}, v{vT+2}")
        a(f"v_add_u32 v{vXB + ks}, s{sT1}, v{vT+2}")
    a(f"v_bfe_u32 v{vT}, v{vLANE}, 2, 2")
    a(f"v_lshl_add_u32 v{vT+1}, v{vH}, 3, v{vT}")
    a(f"v_lshlrev_b32 v{vT+1}, 8, v{vT+1}")
    a(f"v_and_b32 v{vT+2}, 3, v{vLANE}")
    a(f"v_lshl_add_u32 v{vT+1}, v{vT+2}, 3, v{vT+1}")
    a(f"v_bfe_u32 v{vT+2}, v{vLANE}, 4, 1")
    a(f"v_lshlrev_b32 v{vT}, 1, v{vT}")
    for (dst, own) in ((vWA, True), (vWB, False)):
        a(f"s_lshl_b32 s{sT0}, s{sWC}, 2")
        if own:
            a(f"s_lshl_b32 s{sT1}, s{sWR}, 1")
        else:
            a(f"s_xor_b32 s{sT1}, s{sWR}, 1")
            a(f"s_lshl_b32 s{sT1}, s{sT1}, 1")
        a(f"s_add_u32 s{sT0}, s{sT0}, s{sT1}")
        a(f"v_add_u32 v{vT+3}, s{sT0}, v{vT+2}")
        a(f"v_xor_b32 v{vT+3}, v{vT+3}, v{vT}")
        a(f"v_lshl_add_u32 v{dst}, v{vT+3}, 5, v{vT+1}")
    a(f"v_and_b32 v{vT}, 15, v{vLANE}")
    a(f"v_bfe_u32 v{vT+1}, v{vLANE}, 4, 1")
    a(f"v_cmp_eq_u32 vcc, v{vT}, v{vT+1}")
    a(f"v_mov_b32 v{vT+2}, 0x3f803f80")
    a("s_nop 0")
    a(f"v_cndmask_b32 v{vSEL}, 0, v{vT+2}, vcc")
    for r in range(1, 4):
        a(f"v_mov_b32 v{vSEL + r}, v{vSEL}")
    for r in range(4):
        a(f"v_mov_b32 v{vCSA + r}, 0")
    for r in range(64):
        a(f"v_mov_b32 v{vACC + r}, 0")

def qk_path(a):
    a.label("L_k1_qk")
    a(f"s_mov_b32 s{sSEC}, {KV_OFF}")
    a(f"s_mov_b32 s{sTS}, 2560")
    a(f"s_mov_b32 s{sSCALE}, {hex(f2u(1.0))}")
    a(f"s_sub_u32 s{sT0}, s{sNT}, 5")
    a(f"s_cmp_lt_u32 s{sNT}, 5")
    a(f"s_cselect_b32 s{sSEC}, {QB_OFF}, s{sSEC}")
    a(f"s_cselect_b32 s{sTS}, 1280, s{sTS}")
    a(f"s_cselect_b32 s{sSCALE}, {hex(f2u(QSCALE))}, s{sSCALE}")
    a(f"s_cselect_b32 s{sT0}, s{sNT}, s{sT0}")
    a(f"s_lshl_b32 s{sHS}, s{sTS}, 6")
    a(f"s_lshl_b32 s{sT1}, s{sMT}, 2")
    a(f"s_lshl_b32 s{sT2}, s{sWR}, 1")
    a(f"s_add_u32 s{sT1}, s{sT1}, s{sT2}")
    a(f"s_add_u32 s{sT2}, s{sT1}, s{sWC}")
    a(f"s_mul_i32 s{sTA}, s{sT2}, s{sTS}")
    a(f"s_add_u32 s{sTA}, s{sTA}, s{sSEC}")
    a(f"s_xor_b32 s{sT3}, s{sWC}, 1")
    a(f"s_add_u32 s{sT2}, s{sT1}, s{sT3}")
    a(f"s_mul_i32 s{sTB}, s{sT2}, s{sTS}")
    a(f"s_add_u32 s{sTB}, s{sTB}, s{sSEC}")
    a(f"s_lshl_b32 s{sT0}, s{sT0}, 5")
    a(f"s_lshl_b32 s{sT1}, s{sWC}, 4")
    a(f"s_add_u32 s{sT0}, s{sT0}, s{sT1}")
    for b_ in range(2):
        a(f"s_lshl_b32 s{sT1}, s{sWR}, 3") if b_ == 0 else (a(f"s_xor_b32 s{sT1}, s{sWR}, 1"), a(f"s_lshl_b32 s{sT1}, s{sT1}, 3"))
        a(f"s_add_u32 s{sT1}, s{sT1}, s{sT0}")
        for g in range(4):
            o = vOFF + 4 * b_ + g
            a(f"v_add_u32 v{vT}, s{sT1}, v{vH}")
            a(f"v_add_u32 v{vT}, {2 * g}, v{vT}")
            a(f"v_mul_u32_u24 v{vT+1}, 52429, v{vT}")
            a(f"v_lshrrev_b32 v{vT+1}, 18, v{vT+1}")
            a(f"v_mul_u32_u24 v{vT+2}, 5, v{vT+1}")
            a(f"v_sub_u32 v{vT+2}, v{vT}, v{vT+2}")
            a(f"v_mul_lo_u32 v{o}, v{vT+1}, s{sHS}")
            a(f"v_lshrrev_b32 v{vT+1}, 1, v{vT+2}")
            a(f"v_lshlrev_b32 v{vT+1}, 9, v{vT+1}")
            a(f"v_and_b32 v{vT+3}, 1, v{vT+2}")
            a(f"v_lshl_add_u32 v{vT+1}, v{vT+3}, 3, v{vT+1}")
            a(f"v_cmp_eq_u32 vcc, 4, v{vT+2}")
            a(f"v_lshlrev_b32 v{vT+3}, 4, v{vTOK}")
            a(f"v_lshlrev_b32 v{vT+2}, 3, v{vTOK}")
            a(f"v_cndmask_b32 v{vT+3}, v{vT+3}, v{vT+2}, vcc")
            a(f"v_add3_u32 v{o}, v{o}, v{vT+1}, v{vT+3}")
    mainloop(a, False)
    stats_exchange(a)
    vNM, vRS, vC = vE, vE + 2, vE + 4
    a(f"s_lshl_b32 s{sT0}, s{sWR}, 6")
    a(f"v_add_u32 v{vT}, s{sT0}, v{vTOK}")
    a(f"v_lshlrev_b32 v{vT}, 2, v{vT}")
    a(f"s_lshl_b32 s{sT1}, s{sWC}, 7")
    a(f"v_add_u32 v{vT+1}, s{sT1}, v{vT}")
    a(f"s_xor_b32 s{sT1}, s{sT1}, 128")
    a(f"v_add_u32 v{vT+2}, s{sT1}, v{vT}")
    a(f"v_add_u32 v{vT+1}, {ST_NM}, v{vT+1}")
    a(f"v_add_u32 v{vT+2}, {ST_NM}, v{vT+2}")
    a(f"ds_read_b32 v{vNM}, v{vT+1}")
    a(f"ds_read_b32 v{vRS}, v{vT+1} offset:512")
    a(f"ds_read_b32 v{vNM+1}, v{vT+2}")
    a(f"ds_read_b32 v{vRS+1}, v{vT+2} offset:512")
    a(f"s_lshl_b32 s{sT0}, s{sWC}, 8")
    a(f"v_lshlrev_b32 v{vT}, 4, v{vH}")
    a(f"v_add_u32 v{vT}, s{sT0}, v{vT}")
    a(f"s_lshl_b32 s{sT1}, s{sWR}, 7")
    a(f"v_add_u32 v{vT+1}, s{sT1}, v{vT}")
    a(f"s_xor_b32 s{sT1}, s{sT1}, 128")
    a(f"v_add_u32 v{vT+2}, s{sT1}, v{vT}")
    a(f"v_add_u32 v{vT+1}, {ST_CS}, v{vT+1}")
    a(f"v_add_u32 v{vT+2}, {ST_CS}, v{vT+2}")
    for b_ in range(2):
        for g in range(4):
            a(f"ds_read_b128 {vr(vC + 16 * b_ + 4 * g, 4)}, v{vT + 1 + b_} offset:{32 * g}")
    a("s_waitcnt lgkmcnt(0)")
    a(f"v_mul_f32 v{vRS}, s{sSCALE}, v{vRS}")
    a(f"v_mul_f32 v{vRS+1}, s{sSCALE}, v{vRS+1}")
    ws = f"s[{SRD_WS}:{SRD_WS+3}]"
    for a_ in range(2):
        a(f"v_mov_b32 v{vT}, v{vNM + a_}")
        a(f"v_mov_b32 v{vT+1}, v{vNM + a_}")
        a(f"v_mov_b32 v{vT+2}, v{vRS + a_}")
        a(f"v_mov_b32 v{vT+3}, v{vRS + a_}")
        for b_ in range(2):
            A = acc(a_, b_)
            for p in range(8):
                a(f"v_pk_fma_f32 {vr(A + 2 * p, 2)}, {vr(vC + 16 * b_ + 2 * p, 2)}, {vr(vT, 2)}, {vr(A + 2 * p, 2)}")
            for p in range(8):
                a(f"v_pk_mul_f32 {vr(A + 2 * p, 2)}, {vr(A + 2 * p, 2)}, {vr(vT + 2, 2)}")
            for p in range(8):
                a(f"v_cvt_pk_bf16_f32 v{A + p}, v{A + 2 * p}, v{A + 2 * p + 1}")
            for g in range(4):
                a(f"buffer_store_dwordx2 {vr(A + 2 * g, 2)}, v{vOFF + 4 * b_ + g}, {ws}, s{sTA if a_ == 0 else sTB} offen{STF}")
    ST(a, "stores")
    if ST.on:
        a("s_waitcnt vmcnt(0)")
    ST(a, "end")
    ST.store(a, sW, SRD_WS)
    a("s_endpgm")

def v_path(a):
    a.label("L_k1_v")
    a(f"s_lshl_b32 s{sT1}, s{sMT}, 2")
    a(f"s_lshl_b32 s{sT2}, s{sWR}, 1")
    a(f"s_add_u32 s{sT1}, s{sT1}, s{sT2}")
    a(f"s_add_u32 s{sT2}, s{sT1}, s{sWC}")
    a(f"s_mul_i32 s{sTA}, s{sT2}, 2560")
    a(f"s_add_u32 s{sTA}, s{sTA}, {KV_OFF + 1280}")
    a(f"s_xor_b32 s{sT3}, s{sWC}, 1")
    a(f"s_add_u32 s{sT2}, s{sT1}, s{sT3}")
    a(f"s_mul_i32 s{sTB}, s{sT2}, 2560")
    a(f"s_add_u32 s{sTB}, s{sTB}, {KV_OFF + 1280}")
    a(f"s_sub_u32 s{sT0}, s{sNT}, 10")
    a(f"s_lshl_b32 s{sT0}, s{sT0}, 7")
    a(f"s_lshl_b32 s{sT1}, s{sWC}, 6")
    a(f"s_add_u32 s{sT0}, s{sT0}, s{sT1}")
    for b_ in range(2):
        if b_ == 0:
            a(f"s_lshl_b32 s{sT1}, s{sWR}, 5")
        else:
            a(f"s_xor_b32 s{sT1}, s{sWR}, 1")
            a(f"s_lshl_b32 s{sT1}, s{sT1}, 5")
        a(f"s_add_u32 s{sT1}, s{sT1}, s{sT0}")
        a(f"v_add_u32 v{vT}, s{sT1}, v{vTOK}")
        a(f"v_mul_u32_u24 v{vT+1}, 52429, v{vT}")
        a(f"v_lshrrev_b32 v{vT+1}, 20, v{vT+1}")
        a(f"v_mul_u32_u24 v{vT+2}, 20, v{vT+1}")
        a(f"v_sub_u32 v{vT+2}, v{vT}, v{vT+2}")
        a(f"s_mov_b32 s{sT2}, {64 * 2560}")
        a(f"v_mul_lo_u32 v{vOFF + b_}, v{vT+1}, s{sT2}")
        a(f"v_lshlrev_b32 v{vT+2}, 4, v{vT+2}")
        a(f"v_mul_u32_u24 v{vT+3}, 320, v{vH}")
        a(f"v_add3_u32 v{vOFF + b_}, v{vOFF + b_}, v{vT+2}, v{vT+3}")
    mainloop(a, True)
    stats_exchange(a)
    vCL, vNM, vRS = vE, vE + 4, vE + 20
    a(f"s_lshl_b32 s{sT0}, s{sWC}, 6")
    a(f"v_add_u32 v{vT}, s{sT0}, v{vTOK}")
    a(f"v_lshlrev_b32 v{vT}, 2, v{vT}")
    a(f"s_lshl_b32 s{sT1}, s{sWR}, 7")
    a(f"v_add_u32 v{vT+1}, s{sT1}, v{vT}")
    a(f"s_xor_b32 s{sT1}, s{sT1}, 128")
    a(f"v_add_u32 v{vT+2}, s{sT1}, v{vT}")
    a(f"v_add_u32 v{vT+1}, {ST_CS}, v{vT+1}")
    a(f"v_add_u32 v{vT+2}, {ST_CS}, v{vT+2}")
    a(f"ds_read_b32 v{vCL}, v{vT+1}")
    a(f"ds_read_b32 v{vCL+2}, v{vT+2}")
    a("s_waitcnt lgkmcnt(0)")
    a(f"v_mov_b32 v{vCL+1}, v{vCL}")
    a(f"v_mov_b32 v{vCL+3}, v{vCL+2}")
    ws = f"s[{SRD_WS}:{SRD_WS+3}]"
    for a_ in range(2):
        a(f"s_lshl_b32 s{sT0}, s{sWR}, 8")
        a(f"s_lshl_b32 s{sT1}, s{sWC}, 7")
        if a_ == 1:
            a(f"s_xor_b32 s{sT1}, s{sT1}, 128")
        a(f"s_add_u32 s{sT0}, s{sT0}, s{sT1}")
        a(f"v_lshlrev_b32 v{vT}, 4, v{vH}")
        a(f"v_add_u32 v{vT}, s{sT0}, v{vT}")
        a(f"v_add_u32 v{vT}, {ST_NM}, v{vT}")
        for g in range(4):
            a(f"ds_read_b128 {vr(vNM + 4 * g, 4)}, v{vT} offset:{32 * g}")
            a(f"ds_read_b128 {vr(vRS + 4 * g, 4)}, v{vT} offset:{512 + 32 * g}")
        a("s_waitcnt lgkmcnt(0)")
        for b_ in range(2):
            A = acc(a_, b_)
            for p in range(8):
                a(f"v_pk_fma_f32 {vr(A + 2 * p, 2)}, {vr(vNM + 2 * p, 2)}, {vr(vCL + 2 * b_, 2)}, {vr(A + 2 * p, 2)}")
            for p in range(8):
                a(f"v_pk_mul_f32 {vr(A + 2 * p, 2)}, {vr(A + 2 * p, 2)}, {vr(vRS + 2 * p, 2)}")
            for p in range(8):
                a(f"v_cvt_pk_bf16_f32 v{A + p}, v{A + 2 * p}, v{A + 2 * p + 1}")
            for t in range(2):
                a(f"buffer_store_dwordx4 {vr(A + 4 * t, 4)}, v{vOFF + b_}, {ws}, s{sTA if a_ == 0 else sTB} offen offset:{640 * t}{STF}")
    ST(a, "stores")
    if ST.on:
        a("s_waitcnt vmcnt(0)")
    ST(a, "end")
    ST.store(a, sW, SRD_WS)
    a("s_endpgm")

def aux(a):
    a.label("L_k1_aux")
    a(f"s_cmp_ge_u32 s{sW}, 8")
    a("s_cbranch_scc1 L_k1_exit")
    vX, vWr = 32, 72
    vA, vAW = 8, 9
    s1, s2, s3, sw = 10, 11, 12, 13
    SRD_R = 40
    srd(a, SRD_R, 38, D * 2)
    a(f"v_lshrrev_b32 v{vT}, 2, v{vLANE}")
    a(f"s_lshl_b32 s{sT0}, s{sW}, 4")
    a(f"s_add_u32 s{sT0}, s{sT0}, s{sROW0}")
    a(f"v_add_u32 v{vT}, s{sT0}, v{vT}")
    a(f"v_and_b32 v{vT+1}, 3, v{vLANE}")
    a(f"v_lshlrev_b32 v{vAW}, 4, v{vT+1}")
    a(f"v_mul_u32_u24 v{vA}, 1280, v{vT}")
    a(f"v_add_u32 v{vA}, v{vA}, v{vAW}")
    for r in (s1, s2, s3, sw):
        a(f"v_mov_b32 v{r}, 0")
    a(f"v_mov_b32 v{vONE}, 0x3f803f80")
    for half in range(2):
        for i in range(10):
            a(f"buffer_load_dwordx4 {vr(vX + 4 * i, 4)}, v{vA}, s[{SRD_X}:{SRD_X+3}], 0 offen offset:{(10 * half + i) * 64}")
            a(f"buffer_load_dwordx4 {vr(vWr + 4 * i, 4)}, v{vAW}, s[{SRD_R}:{SRD_R+3}], 0 offen offset:{(10 * half + i) * 64}")
        a("s_waitcnt vmcnt(0)")
        for r in range(40):
            a(f"v_dot2c_f32_bf16 v{s1}, v{vX + r}, v{vONE}")
            a(f"v_dot2c_f32_bf16 v{s2}, v{vX + r}, v{vX + r}")
            a(f"v_dot2c_f32_bf16 v{s3}, v{vX + r}, v{vWr + r}")
            a(f"v_dot2c_f32_bf16 v{sw}, v{vWr + r}, v{vONE}")
    a("s_nop 3")
    for perm in ("[1,0,3,2]", "[2,3,0,1]"):
        for r in (s1, s2, s3, sw):
            a(f"v_add_f32_dpp v{vT+2}, v{r}, v{r} quad_perm:{perm} row_mask:0xf bank_mask:0xf")
            a("s_nop 1")
            a(f"v_mov_b32 v{r}, v{vT+2}")
            a("s_nop 1")
    a(f"v_mul_f32 v{s1}, {hex(f2u(1.0 / D))}, v{s1}")
    a(f"v_mul_f32 v{s2}, {hex(f2u(1.0 / D))}, v{s2}")
    a(f"v_fma_f32 v{s2}, -v{s1}, v{s1}, v{s2}")
    a(f"v_max_f32 v{s2}, 0, v{s2}")
    a(f"v_add_f32 v{s2}, {hex(f2u(1e-5))}, v{s2}")
    a(f"v_rsq_f32 v{s2}, v{s2}")
    a(f"v_fma_f32 v{s3}, -v{s1}, v{sw}, v{s3}")
    a(f"v_mul_f32 v{s3}, v{s3}, v{s2}")
    ws = f"s[{SRD_WS}:{SRD_WS+3}]"
    a(f"v_ashrrev_i32 v{vT+2}, 31, v{s3}")
    a(f"v_or_b32 v{vT+2}, 0x80000000, v{vT+2}")
    a(f"v_xor_b32 v{vT+2}, v{vT+2}, v{s3}")
    a(f"v_and_b32 v{vT+2}, 0xfffff800, v{vT+2}")
    a(f"v_or_b32 v{vT+2}, v{vT+2}, v{vT}")
    a(f"v_mov_b32 v14, v{s1}")
    a(f"v_mov_b32 v15, v{s2}")
    a(f"v_lshlrev_b32 v{vA}, 3, v{vT}")
    a(f"v_lshlrev_b32 v{vAW}, 2, v{vT}")
    a(f"v_and_b32 v{vT+3}, 127, v{vT}")
    a(f"v_lshlrev_b32 v{vT+3}, 2, v{vT+3}")
    a(f"v_cmp_eq_u32 vcc, 0, v{vT+1}")
    a(f"s_mov_b32 s{sT0}, {ST_OFF}")
    a(f"s_mov_b32 s{sT1}, {R_OFF}")
    a("s_and_saveexec_b64 s[44:45], vcc")
    a(f"buffer_store_dwordx2 v[14:15], v{vA}, {ws}, s{sT0} offen")
    a(f"buffer_store_dword v{s3}, v{vAW}, {ws}, s{sT1} offen")
    a(f"ds_write_b32 v{vT+3}, v{vT+2}")
    a("s_mov_b64 exec, s[44:45]")
    a("s_waitcnt lgkmcnt(0)")
    a("s_barrier")
    a(f"s_cmp_lg_u32 s{sW}, 0")
    a("s_cbranch_scc1 L_k1_repack")
    hi, lo, oh, ol, adr = 16, 17, 18, 19, 20
    a(f"v_lshlrev_b32 v{adr}, 2, v{vLANE}")
    a(f"ds_read_b32 v{oh}, v{adr}")
    a(f"ds_read_b32 v{ol}, v{adr} offset:256")
    a("s_waitcnt lgkmcnt(0)")
    a(f"v_max_u32 v{hi}, v{oh}, v{ol}")
    a(f"v_min_u32 v{lo}, v{oh}, v{ol}")
    for x in (1, 2, 4, 8, 16, 32):
        a(f"v_xor_b32 v{adr}, {x}, v{vLANE}")
        a(f"v_lshlrev_b32 v{adr}, 2, v{adr}")
        a(f"ds_bpermute_b32 v{oh}, v{adr}, v{hi}")
        a(f"ds_bpermute_b32 v{ol}, v{adr}, v{lo}")
        a("s_waitcnt lgkmcnt(0)")
        a(f"v_max_u32 v{lo}, v{lo}, v{ol}")
        a(f"v_min_u32 v{ol}, v{hi}, v{oh}")
        a(f"v_max_u32 v{hi}, v{hi}, v{oh}")
        a(f"v_max_u32 v{lo}, v{lo}, v{ol}")
    a(f"v_mov_b32 v{oh}, v{hi}")
    a(f"v_mov_b32 v{ol}, v{lo}")
    a(f"s_lshl_b32 s{sT0}, s{sMT}, 3")
    a(f"s_add_u32 s{sT0}, s{sT0}, {CAND_OFF}")
    a(f"v_mov_b32 v{adr}, 0")
    a(f"v_cmp_eq_u32 vcc, 0, v{vLANE}")
    a("s_nop 1")
    a("s_and_saveexec_b64 s[44:45], vcc")
    a(f"buffer_store_dwordx2 v[{oh}:{ol}], v{adr}, {ws}, s{sT0} offen")
    a("s_mov_b64 exec, -1")
    a(f"s_cmp_lg_u32 s{sMT}, 0")
    a("s_cbranch_scc1 L_k1_repack")
    a(f"v_lshlrev_b32 v{adr}, 8, v{vLANE}")
    a(f"v_mov_b32 v{oh}, 0")
    a(f"s_mov_b32 s{sT0}, {CNT_OFF}")
    a(f"v_cmp_gt_u32 vcc, {NCNT}, v{vLANE}")
    a("s_nop 1")
    a("s_mov_b64 exec, vcc")
    a(f"buffer_store_dword v{oh}, v{adr}, {ws}, s{sT0} offen")
    a("s_mov_b64 exec, -1")
    a.label("L_k1_repack")
    a("s_barrier")
    from k2moe import repack
    repack(a, sW, sMT, "L_k1_exit")

def emit(a):
    entry(a)
    consumer_setup(a)
    a(f"s_cmp_ge_u32 s{sNT}, 10")
    a("s_cbranch_scc1 L_k1_v")
    qk_path(a)
    v_path(a)
    loader(a)
    stat_waves(a)
    aux(a)
    a.label("L_k1_exit")
    a("s_endpgm")
```

```python
from common import *
import os
import slots

NAME = "qkv_kernel"
LDS = 131072 + 2048
VGPRS = 152 if prof_on("k1") else 144
LOCAL_STATS = os.environ.get("K1_STATS", "local") == "local"
BLOCK = 768 if LOCAL_STATS else 576

SRD_X, SRD_W, SRD_WS = 8, 12, 16
sW, sMT, sNT = 20, 21, 22
sROW0 = 23
sT0, sT1, sT2, sT3 = 24, 25, 26, 27
sSEC, sHS, sTS, sSCALE = 28, 29, 30, 31
sTA, sTB = 32, 33
sWR, sWC = 34, 35
sTBL, sN5 = 44, 45
ST_NM, ST_RS, ST_CS = 131072, 131072 + 512, 131072 + 1024

vLANE, vTOK, vH = 1, 2, 3
vT = 4
vXA = 8
vXB = 12
vWA, vWB = 16, 17
vS1, vS2, vCS, vONE = 28, 29, 30, 31
vSEL = 136
vCSA = 140
vF = (32, 48)
vACC = 64
vOFF = 128
vE = 24

ST = StampsLane("k1", 20, 16, 148)
def X(flag):
    return flag in os.environ.get("K1_EXP", "").split(",")

STF = {"": "", "sc1": " sc1", "nt": " nt", "sc01": " sc0 sc1"}[os.environ.get("K1_ST", "")]

def acc(a_, b_):
    return vACC + 32 * a_ + 16 * b_

def entry(a):
    kernel_header(a, NAME)
    ST(a, "entry")
    a("s_cmp_ge_u32 s2, 256")
    a("s_cbranch_scc1 L_k1_exit")
    a("s_load_dwordx4 s[4:7], s[0:1], 0")
    a("s_load_dwordx2 s[36:37], s[0:1], 80")
    a("s_load_dwordx2 s[38:39], s[0:1], 32")
    a(f"v_lshrrev_b32 v{vT}, 6, v0")
    a(f"v_and_b32 v{vLANE}, 63, v0")
    a(f"v_readfirstlane_b32 s{sW}, v{vT}")
    a(f"s_and_b32 s{sT0}, s2, 3")
    a(f"s_lshl_b32 s{sT0}, s{sT0}, 2")
    a(f"s_bfe_u32 s{sT1}, s2, 0x20003")
    a(f"s_or_b32 s{sMT}, s{sT0}, s{sT1}")
    a(f"s_bfe_u32 s{sT0}, s2, 0x10002")
    a(f"s_lshl_b32 s{sT0}, s{sT0}, 3")
    a(f"s_lshr_b32 s{sT1}, s2, 5")
    a(f"s_or_b32 s{sNT}, s{sT0}, s{sT1}")
    a(f"s_lshl_b32 s{sROW0}, s{sMT}, 7")
    a(f"v_and_b32 v{vTOK}, 31, v{vLANE}")
    a(f"v_lshrrev_b32 v{vH}, 5, v{vLANE}")
    a("s_waitcnt lgkmcnt(0)")
    srd(a, SRD_X, 4, X_BYTES)
    srd(a, SRD_W, 6, WQKV_BYTES)
    srd(a, SRD_WS, 36, WS_SRD)
    a(f"s_cmp_eq_u32 s{sNT}, 15")
    a("s_cbranch_scc1 L_k1_aux")
    a(f"s_cmp_ge_u32 s{sW}, 8")
    a("s_cbranch_scc1 L_k1_stat")
    a(f"s_cmp_ge_u32 s{sW}, 4")
    a("s_cbranch_scc1 L_k1_loader")

def loader(a):
    a.label("L_k1_loader")
    a(f"s_setprio {os.environ.get('K1_LPRIO', '0')}")
    vX, vWt = 8, 9
    lw = sT0
    a(f"s_sub_u32 s{lw}, s{sW}, 4")
    a(f"v_lshrrev_b32 v{vT}, 3, v{vLANE}")
    a(f"s_lshl_b32 s{sT1}, s{lw}, 3")
    a(f"s_add_u32 s{sT1}, s{sT1}, s{sROW0}")
    a(f"v_add_u32 v{vT}, s{sT1}, v{vT}")
    a(f"v_mul_u32_u24 v{vT}, 1280, v{vT}")
    a(f"v_lshrrev_b32 v{vT+1}, 4, v{vLANE}")
    a(f"s_and_b32 s{sT1}, s{lw}, 1")
    a(f"s_lshl_b32 s{sT1}, s{sT1}, 2")
    a(f"v_add_u32 v{vT+2}, s{sT1}, v{vT+1}")
    a(f"v_and_b32 v{vT+3}, 7, v{vLANE}")
    a(f"v_xor_b32 v{vT+2}, v{vT+2}, v{vT+3}")
    a(f"v_lshl_add_u32 v{vX}, v{vT+2}, 4, v{vT}")
    a(f"s_lshl_b32 s{sT1}, s{lw}, 2")
    a(f"v_add_u32 v{vT}, s{sT1}, v{vT+1}")
    a(f"v_mul_u32_u24 v{vT}, 3840, v{vT}")
    a(f"v_and_b32 v{vT+2}, 15, v{vLANE}")
    a(f"v_lshlrev_b32 v{vT+3}, 2, v{vT+1}")
    a(f"v_xor_b32 v{vT+2}, v{vT+2}, v{vT+3}")
    a(f"v_lshl_add_u32 v{vT}, v{vT+2}, 4, v{vT}")
    a(f"s_lshl_b32 s{sT1}, s{sNT}, 8")
    a(f"v_add_u32 v{vWt}, s{sT1}, v{vT}")
    a(f"s_lshl_b32 s{sT2}, s{lw}, 10")
    vXs, vWs = 44, 48
    for i in range(4):
        a(f"v_add_u32 v{vXs + i}, {i * 40960}, v{vX}")
        a(f"v_add_u32 v{vWs + i}, {i * 16 * 3840}, v{vWt}")
    sXO, sWO = 40, 41
    a("s_lshr_b32 s42, s2, 5")
    a("s_bfe_u32 s43, s2, 0x20003")
    a("s_mul_i32 s43, s43, 3")
    a("s_add_u32 s42, s42, s43")
    a("s_cmp_ge_u32 s42, 10")
    a("s_cselect_b32 s43, 10, 0")
    a("s_sub_u32 s42, s42, s43")
    if not X("rot"):
        a("s_mov_b32 s42, 0")
    def stage(s):
        base = (s & 3) * 32768
        a(f"s_lshl_b32 s{sXO}, s42, 7")
        a(f"s_mul_i32 s{sWO}, s42, {64 * 3840}")
        a("s_add_u32 s42, s42, 1")
        a("s_cmp_eq_u32 s42, 10")
        a("s_cselect_b32 s42, 0, s42")
        for i in range(4):
            a(f"s_add_u32 m0, s{sT2}, {base + i * 4096}")
            a("s_nop 0")
            a(f"buffer_load_dwordx4 v{vXs + i}, s[{SRD_X}:{SRD_X+3}], s{sXO} offen lds")
            a(f"s_add_u32 m0, s{sT2}, {base + 16384 + i * 4096}")
            a("s_nop 0")
            a(f"buffer_load_dwordx4 v{vWs + i}, s[{SRD_W}:{SRD_W+3}], s{sWO} offen lds")
    ST(a, "setup")
    PRE = int(os.environ.get("K1_PRE", "2"))
    for s in range(PRE):
        stage(s)
    ST(a, "B0")
    issued = PRE - 1
    for s in range(10):
        a(f"s_waitcnt vmcnt({8 * (issued - s)})")
        if s in (0, 1, 2, 5):
            ST(a, {0: "g4", 1: "g8", 2: "g20", 5: "loopend"}[s])
        a("s_barrier")
        while issued < min(9, s + 3):
            issued += 1
            if not (X("nodma") and issued > 3):
                stage(issued)
    ST(a, "stores")
    ST(a, "end")
    ST.store(a)
    a("s_endpgm")

def stat_waves(a):
    (stat_local if LOCAL_STATS else stat_fetch)(a)

def stat_local(a):
    a.label("L_k1_stat")
    lw = sT0
    vR, vR2, vD, vP, vA1, vA2 = 8, 12, 48, 32, 36, 38
    a(f"s_sub_u32 s{lw}, s{sW}, 8")
    a(f"v_lshrrev_b32 v{vT}, 1, v{vLANE}")
    a(f"s_lshl_b32 s{sT1}, s{lw}, 5")
    a(f"v_add_u32 v{vT}, s{sT1}, v{vT}")
    a(f"v_lshlrev_b32 v{vT+1}, 7, v{vT}")
    a(f"v_and_b32 v{vT+2}, 1, v{vLANE}")
    a(f"v_lshl_add_u32 v{vT+1}, v{vT+2}, 6, v{vT+1}")
    a(f"v_bfe_u32 v{vT+2}, v{vLANE}, 2, 2")
    for i in range(4):
        a(f"v_xor_b32 v{vT+3}, {i}, v{vT+2}")
        a(f"v_lshl_add_u32 v{vR + i}, v{vT+3}, 4, v{vT+1}")
        a(f"v_add_u32 v{vR2 + i}, 65536, v{vR + i}")
    a(f"v_lshlrev_b32 v40, 2, v{vT}")
    for r in range(4):
        a(f"v_mov_b32 v{vA1 + r}, 0")
    for s in range(10):
        slot = s & 3
        a("s_barrier")
        if s == 9:
            a(f"s_setprio {os.environ.get('K1_LASTPRIO', '1')}")
        for i in range(4):
            a(f"ds_read_b128 {vr(vD + 4 * i, 4)}, v{(vR if slot < 2 else vR2) + i} offset:{(slot & 1) * 32768}")
        for j in range(16):
            if j % 4 == 0:
                a(f"s_waitcnt lgkmcnt({3 - j // 4})")
            p = vP + 2 * (j & 1)
            a(f"v_lshlrev_b32 v{p}, 16, v{vD + j}")
            a(f"v_and_b32 v{p+1}, 0xffff0000, v{vD + j}")
            a(f"v_add_f32 v{vA1}, v{vA1}, v{p}")
            a(f"v_fmac_f32 v{vA2}, v{p}, v{p}")
            a(f"v_add_f32 v{vA1+1}, v{vA1+1}, v{p+1}")
            a(f"v_fmac_f32 v{vA2+1}, v{p+1}, v{p+1}")
    a(f"v_add_f32 v{vA1}, v{vA1}, v{vA1+1}")
    a(f"v_add_f32 v{vA2}, v{vA2}, v{vA2+1}")
    a("s_nop 1")
    a(f"v_add_f32_dpp v{vA1+1}, v{vA1}, v{vA1} quad_perm:[1,0,3,2] row_mask:0xf bank_mask:0xf")
    a(f"v_add_f32_dpp v{vA2+1}, v{vA2}, v{vA2} quad_perm:[1,0,3,2] row_mask:0xf bank_mask:0xf")
    a(f"v_mul_f32 v{vA1}, {hex(f2u(1.0 / D))}, v{vA1+1}")
    a(f"v_mul_f32 v{vA2}, {hex(f2u(1.0 / D))}, v{vA2+1}")
    a(f"v_fma_f32 v{vA2}, -v{vA1}, v{vA1}, v{vA2}")
    a(f"v_max_f32 v{vA2}, 0, v{vA2}")
    a(f"v_add_f32 v{vA2}, {hex(f2u(1e-5))}, v{vA2}")
    a(f"v_rsq_f32 v{vA2}, v{vA2}")
    a(f"v_sub_f32 v{vA1}, 0, v{vA1}")
    a(f"v_add_u32 v40, {ST_NM}, v40")
    a(f"ds_write_b32 v40, v{vA1}")
    a(f"ds_write_b32 v40, v{vA2} offset:512")
    a("s_waitcnt lgkmcnt(0)")
    ST(a, "stores")
    a("s_barrier")
    ST(a, "end")
    ST.store(a)
    a("s_endpgm")

def stat_fetch(a):
    a.label("L_k1_stat")
    vA, vF, vD = 8, 9, 12
    ws = f"s[{SRD_WS}:{SRD_WS+3}]"
    a("s_load_dwordx2 s[46:47], s[0:1], 72")
    a(f"v_lshlrev_b32 v{vA}, 4, v{vLANE}")
    a(f"s_lshl_b32 s{sT0}, s{sMT}, 2")
    a(f"v_mov_b32 v{vF}, s{sT0}")
    a(f"s_lshl_b32 s{sT1}, s{sMT}, 10")
    a(f"s_add_u32 s{sT1}, s{sT1}, {ST_OFF}")
    a(f"v_lshlrev_b32 v10, 3, v{vLANE}")
    a(f"v_add_u32 v10, {ST_NM}, v10")
    a(f"s_mov_b32 s{sT2}, 0")
    a("s_waitcnt lgkmcnt(0)")
    def advance(tag, blocking):
        a(f"s_cmp_eq_u32 s{sT2}, 2")
        a(f"s_cbranch_scc1 L_st_{tag}_end")
        a("s_waitcnt vmcnt(0)")
        a(f"s_cmp_eq_u32 s{sT2}, 1")
        a(f"s_cbranch_scc1 L_st_{tag}_land")
        a(f"v_readfirstlane_b32 s{sT3}, v11")
        a("s_nop 1")
        a(f"s_cmp_eq_u32 s{sT3}, 1")
        a(f"s_cbranch_scc1 L_st_{tag}_go")
        a(f"global_load_dword v11, v{vF}, s[46:47] sc1")
        a(f"s_branch L_st_{tag}_end")
        a.label(f"L_st_{tag}_go")
        a(f"buffer_load_dwordx4 {vr(vD, 4)}, v{vA}, {ws}, s{sT1} offen sc1")
        a(f"s_mov_b32 s{sT2}, 1")
        a(f"s_branch L_st_{tag}_end")
        a.label(f"L_st_{tag}_land")
        a(f"v_sub_f32 v16, 0, v{vD}")
        a(f"v_sub_f32 v17, 0, v{vD+2}")
        a(f"v_mov_b32 v18, v{vD+1}")
        a(f"v_mov_b32 v19, v{vD+3}")
        a("ds_write_b64 v10, v[16:17]")
        a("ds_write_b64 v10, v[18:19] offset:512")
        a(f"s_mov_b32 s{sT2}, 2")
        a.label(f"L_st_{tag}_end")
    a("v_mov_b32 v11, 0")
    if X("touch"):
        a(f"s_mov_b32 s{sT3}, {YP_OFF}")
        a("v_mov_b32 v21, 0")
        a(f"buffer_load_dword v20, v21, {ws}, s{sT3} offen")
        a("global_load_dword v22, v21, s[46:47] offset:192")
    for s in range(10):
        a("s_barrier")
        if s in (1, 3, 5, 7):
            advance(f"b{s}", False)
    a(f"s_mov_b32 s48, {1 << 20}")
    a.label("L_st_fin")
    advance("fin", True)
    a("s_sub_u32 s48, s48, 1")
    a("s_cbranch_scc1 L_st_done")
    a(f"s_cmp_eq_u32 s{sT2}, 2")
    a("s_cbranch_scc0 L_st_fin")
    a.label("L_st_done")
    a("s_waitcnt lgkmcnt(0)")
    ST(a, "stores")
    a("s_barrier")
    ST(a, "end")
    ST.store(a)
    a("s_endpgm")

def read_list(g):
    ks, half = g & 3, (g >> 2) & 1
    base = half * 32768
    f = vF[g & 1]
    w = lambda b, reg, rd: f"ds_read_b64_tr_b16 {vr(f + 8 + 4 * b + 2 * rd, 2)}, v{reg} offset:{base + 16384 + (16 * ks + 4 * rd) * 256}"
    return [f"ds_read_b128 {vr(f, 4)}, v{vXA + ks} offset:{base}", w(0, vWA, 0), w(0, vWA, 1),
            w(1, vWB, 0), w(1, vWB, 1), f"ds_read_b128 {vr(f + 4, 4)}, v{vXB + ks} offset:{base}"]

def step(a, g, vorient, reads, pre=None):
    f = vF[g & 1]
    def mm(a_, b_):
        x, w = vr(f + 4 * a_, 4), vr(f + 8 + 4 * b_, 4)
        A, B = (x, w) if vorient else (w, x)
        a(f"v_mfma_f32_32x32x16_bf16 {vr(acc(a_, b_), 16)}, {A}, {B}, {vr(acc(a_, b_), 16)}")
    if pre is not None:
        a("s_waitcnt lgkmcnt(0)")
        mm(0, 0)
        mm(0, 1)
        pre()
        for r in reads[0:3]: a(r)
        mm(1, 0)
        for r in reads[3:6]: a(r)
        mm(1, 1)
    else:
        a("s_waitcnt lgkmcnt(3)")
        mm(0, 0)
        for r in reads[0:3]: a(r)
        a("s_waitcnt lgkmcnt(4)")
        mm(0, 1)
        for r in reads[3:6]: a(r)
        a("s_waitcnt lgkmcnt(6)")
        mm(1, 0)
        mm(1, 1)
    a(f"v_mfma_f32_16x16x32_bf16 {vr(vCSA, 4)}, {vr(vSEL, 4)}, {vr(f + 8, 4)}, {vr(vCSA, 4)}")

def mainloop(a, vorient):
    tag = "v" if vorient else "qk"
    ST(a, "setup")
    a("s_barrier")
    ST(a, "B0")
    for r in read_list(0):
        a(r)
    a(f"s_mov_b32 s{sT3}, 5")
    a(".p2align 3")
    a.label(f"L_k1_loop_{tag}")
    def pre7():
        a(f"s_sub_u32 s{sT3}, s{sT3}, 1")
        a(f"s_cmp_eq_u32 s{sT3}, 0")
        a(f"s_cbranch_scc1 L_k1_last_{tag}")
        for r in list(range(vXA, vXA + 4)) + list(range(vXB, vXB + 4)) + [vWA, vWB]:
            a(f"v_xor_b32 v{r}, 0x10000, v{r}")
        a("s_barrier")
    for g in range(8):
        pre = (lambda: a("s_barrier")) if g == 3 else (pre7 if g == 7 else None)
        step(a, g, vorient, read_list(g + 1), pre)
    a(f"s_branch L_k1_loop_{tag}")
    a.label(f"L_k1_last_{tag}")
    f = vF[1]
    for b_ in range(2):
        x, w = vr(f + 4, 4), vr(f + 8 + 4 * b_, 4)
        A, B = (x, w) if vorient else (w, x)
        a(f"v_mfma_f32_32x32x16_bf16 {vr(acc(1, b_), 16)}, {A}, {B}, {vr(acc(1, b_), 16)}")
    a(f"v_mfma_f32_16x16x32_bf16 {vr(vCSA, 4)}, {vr(vSEL, 4)}, {vr(f + 8, 4)}, {vr(vCSA, 4)}")

def stats_exchange(a):
    ST(a, "loopend")
    a(f"s_lshl_b32 s{sT0}, s{sWC}, 6")
    a(f"s_lshl_b32 s{sT1}, s{sWR}, 5")
    a(f"s_add_u32 s{sT0}, s{sT0}, s{sT1}")
    a(f"v_add_u32 v{vT+1}, s{sT0}, v{vLANE}")
    a(f"v_lshlrev_b32 v{vT+1}, 2, v{vT+1}")
    a(f"v_add_u32 v{vT+1}, {ST_CS}, v{vT+1}")
    a("s_mov_b64 exec, 0xffff")
    a("s_nop 4")
    a(f"ds_write_b32 v{vT+1}, v{vCSA}")
    a(f"ds_write_b32 v{vT+1}, v{vCSA+1} offset:64")
    a("s_mov_b64 exec, -1")
    a("s_waitcnt lgkmcnt(0)")
    a("s_barrier")
    ST(a, "e_bar")

def consumer_setup(a):
    a(f"s_lshr_b32 s{sWR}, s{sW}, 1")
    a(f"s_and_b32 s{sWC}, s{sW}, 1")
    a(f"v_lshrrev_b32 v{vT}, 1, v{vTOK}")
    a(f"v_and_b32 v{vT}, 7, v{vT}")
    a(f"s_lshl_b32 s{sT0}, s{sWR}, 6")
    a(f"v_add_u32 v{vT+1}, s{sT0}, v{vTOK}")
    a(f"v_lshlrev_b32 v{vT+1}, 7, v{vT+1}")
    a(f"s_lshl_b32 s{sT0}, s{sWC}, 12")
    a(f"s_xor_b32 s{sT1}, s{sT0}, 4096")
    for ks in range(4):
        a(f"v_add_u32 v{vT+2}, {2 * ks}, v{vH}")
        a(f"v_xor_b32 v{vT+2}, v{vT+2}, v{vT}")
        a(f"v_lshl_add_u32 v{vT+2}, v{vT+2}, 4, v{vT+1}")
        a(f"v_add_u32 v{vXA + ks}, s{sT0}, v{vT+2}")
        a(f"v_add_u32 v{vXB + ks}, s{sT1}, v{vT+2}")
    a(f"s_sub_u32 s{sN5}, s{sNT}, 5")
    a(f"s_cmp_lt_u32 s{sNT}, 5")
    a(f"s_cselect_b32 s{sN5}, s{sNT}, s{sN5}")
    for wc in range(2):
        reg = sT0 + wc
        a(f"s_mov_b32 s{reg}, {hex(0x76543210 + wc * 0x88888888)}")
        for n5 in range(5):
            a(f"s_cmp_eq_u32 s{sN5}, {n5}")
            a(f"s_cselect_b32 s{reg}, {hex(slots.packed(n5, wc))}, s{reg}")
    a(f"s_cmp_eq_u32 s{sWC}, 0")
    a(f"s_cselect_b32 s{sTBL}, s{sT0}, s{sT1}")
    a(f"v_bfe_u32 v{vT}, v{vLANE}, 2, 2")
    a(f"v_lshl_add_u32 v{vT+1}, v{vH}, 3, v{vT}")
    a(f"v_lshlrev_b32 v{vT+1}, 8, v{vT+1}")
    a(f"v_and_b32 v{vT+2}, 1, v{vLANE}")
    a(f"v_lshl_add_u32 v{vT+1}, v{vT+2}, 3, v{vT+1}")
    a(f"v_bfe_u32 v{vT+2}, v{vLANE}, 4, 1")
    a(f"v_bfe_u32 v{vT+3}, v{vLANE}, 1, 1")
    a(f"v_lshl_add_u32 v{vT+2}, v{vT+2}, 1, v{vT+3}")
    a(f"v_lshlrev_b32 v{vT+2}, 2, v{vT+2}")
    a(f"v_lshlrev_b32 v{vT}, 2, v{vT}")
    for (dst, own) in ((vWA, True), (vWB, False)):
        if own:
            a(f"s_lshl_b32 s{sT0}, s{sWR}, 4")
        else:
            a(f"s_xor_b32 s{sT0}, s{sWR}, 1")
            a(f"s_lshl_b32 s{sT0}, s{sT0}, 4")
        a(f"s_lshr_b32 s{sT0}, s{sTBL}, s{sT0}")
        a(f"v_lshrrev_b32 v{vT+3}, v{vT+2}, s{sT0}") if False else None
        a(f"v_mov_b32 v{vT+3}, s{sT0}")
        a(f"v_lshrrev_b32 v{vT+3}, v{vT+2}, v{vT+3}")
        a(f"v_and_b32 v{vT+3}, 15, v{vT+3}")
        a(f"v_xor_b32 v{vT+3}, v{vT+3}, v{vT}")
        a(f"v_lshl_add_u32 v{dst}, v{vT+3}, 4, v{vT+1}")
    a(f"v_and_b32 v{vT}, 15, v{vLANE}")
    a(f"v_bfe_u32 v{vT+1}, v{vLANE}, 4, 1")
    a(f"v_cmp_eq_u32 vcc, v{vT}, v{vT+1}")
    a(f"v_mov_b32 v{vT+2}, 0x3f803f80")
    a("s_nop 0")
    a(f"v_cndmask_b32 v{vSEL}, 0, v{vT+2}, vcc")
    for r in range(1, 4):
        a(f"v_mov_b32 v{vSEL + r}, v{vSEL}")
    for r in range(4):
        a(f"v_mov_b32 v{vCSA + r}, 0")
    for r in range(64):
        a(f"v_mov_b32 v{vACC + r}, 0")

def qk_path(a):
    a.label("L_k1_qk")
    a(f"s_mov_b32 s{sSEC}, {KV_OFF}")
    a(f"s_mov_b32 s{sTS}, 2560")
    a(f"s_mov_b32 s{sSCALE}, {hex(f2u(1.0))}")
    a(f"s_sub_u32 s{sT0}, s{sNT}, 5")
    a(f"s_cmp_lt_u32 s{sNT}, 5")
    a(f"s_cselect_b32 s{sSEC}, {QB_OFF}, s{sSEC}")
    a(f"s_cselect_b32 s{sTS}, 1280, s{sTS}")
    a(f"s_cselect_b32 s{sSCALE}, {hex(f2u(QSCALE))}, s{sSCALE}")
    a(f"s_cselect_b32 s{sT0}, s{sNT}, s{sT0}")
    a(f"s_lshl_b32 s{sHS}, s{sTS}, 6")
    a(f"s_lshl_b32 s{sT1}, s{sMT}, 2")
    a(f"s_lshl_b32 s{sT2}, s{sWR}, 1")
    a(f"s_add_u32 s{sT1}, s{sT1}, s{sT2}")
    a(f"s_add_u32 s{sT2}, s{sT1}, s{sWC}")
    a(f"s_mul_i32 s{sTA}, s{sT2}, s{sTS}")
    a(f"s_add_u32 s{sTA}, s{sTA}, s{sSEC}")
    a(f"s_xor_b32 s{sT3}, s{sWC}, 1")
    a(f"s_add_u32 s{sT2}, s{sT1}, s{sT3}")
    a(f"s_mul_i32 s{sTB}, s{sT2}, s{sTS}")
    a(f"s_add_u32 s{sTB}, s{sTB}, s{sSEC}")
    for k_, (ct, g) in enumerate(((0, 0), (0, 2), (1, 0), (1, 2), (1, 3))):
        o = vOFF + k_
        a(f"s_bfe_u32 s{sT1}, s{sTBL}, {hex((4 << 16) | (16 * ct + 4 * g))}")
        a(f"s_lshl_b32 s{sT2}, s{sN5}, 4")
        a(f"s_add_u32 s{sT1}, s{sT1}, s{sT2}")
        a(f"s_lshl_b32 s{sT1}, s{sT1}, 1")
        a(f"v_add_u32 v{vT}, s{sT1}, v{vH}")
        a(f"v_mul_u32_u24 v{vT+1}, 52429, v{vT}")
        a(f"v_lshrrev_b32 v{vT+1}, 18, v{vT+1}")
        a(f"v_mul_u32_u24 v{vT+2}, 5, v{vT+1}")
        a(f"v_sub_u32 v{vT+2}, v{vT}, v{vT+2}")
        a(f"v_and_b32 v{vT+3}, 1, v{vT+1}")
        a(f"v_sub_u32 v{vT+2}, v{vT+2}, v{vT+3}")
        a(f"v_mul_lo_u32 v{o}, v{vT+1}, s{sHS}")
        a(f"v_and_b32 v{vT+1}, 1, v{vT+2}")
        a(f"v_lshlrev_b32 v{vT+1}, 9, v{vT+1}")
        a(f"v_bfe_u32 v{vT+3}, v{vT+2}, 1, 1")
        a(f"v_lshl_add_u32 v{vT+1}, v{vT+3}, 3, v{vT+1}")
        a(f"v_lshl_add_u32 v{vT+1}, v{vTOK}, 4, v{vT+1}")
        a(f"v_cmp_lt_u32 vcc, 3, v{vT+2}")
        a(f"v_lshlrev_b32 v{vT+3}, 3, v{vTOK}")
        a(f"v_add_u32 v{vT+3}, 1024, v{vT+3}")
        a(f"v_cndmask_b32 v{vT+1}, v{vT+1}, v{vT+3}, vcc")
        a(f"v_add_u32 v{o}, v{o}, v{vT+1}")
    mainloop(a, False)
    stats_exchange(a)
    vNM, vRS, vC = vE, vE + 2, vE + 4
    a(f"s_lshl_b32 s{sT0}, s{sWR}, 6")
    a(f"v_add_u32 v{vT}, s{sT0}, v{vTOK}")
    a(f"v_lshlrev_b32 v{vT}, 2, v{vT}")
    a(f"s_lshl_b32 s{sT1}, s{sWC}, 7")
    a(f"v_add_u32 v{vT+1}, s{sT1}, v{vT}")
    a(f"s_xor_b32 s{sT1}, s{sT1}, 128")
    a(f"v_add_u32 v{vT+2}, s{sT1}, v{vT}")
    a(f"v_add_u32 v{vT+1}, {ST_NM}, v{vT+1}")
    a(f"v_add_u32 v{vT+2}, {ST_NM}, v{vT+2}")
    a(f"ds_read_b32 v{vNM}, v{vT+1}")
    a(f"ds_read_b32 v{vRS}, v{vT+1} offset:512")
    a(f"ds_read_b32 v{vNM+1}, v{vT+2}")
    a(f"ds_read_b32 v{vRS+1}, v{vT+2} offset:512")
    a(f"s_lshl_b32 s{sT0}, s{sWC}, 8")
    a(f"v_lshlrev_b32 v{vT}, 4, v{vH}")
    a(f"v_add_u32 v{vT}, s{sT0}, v{vT}")
    a(f"s_lshl_b32 s{sT1}, s{sWR}, 7")
    a(f"v_add_u32 v{vT+1}, s{sT1}, v{vT}")
    a(f"s_xor_b32 s{sT1}, s{sT1}, 128")
    a(f"v_add_u32 v{vT+2}, s{sT1}, v{vT}")
    a(f"v_add_u32 v{vT+1}, {ST_CS}, v{vT+1}")
    a(f"v_add_u32 v{vT+2}, {ST_CS}, v{vT+2}")
    for b_ in range(2):
        for g in range(4):
            a(f"ds_read_b128 {vr(vC + 16 * b_ + 4 * g, 4)}, v{vT + 1 + b_} offset:{32 * g}")
    a("s_waitcnt lgkmcnt(0)")
    ST(a, "e_lds")
    a(f"v_mul_f32 v{vRS}, s{sSCALE}, v{vRS}")
    a(f"v_mul_f32 v{vRS+1}, s{sSCALE}, v{vRS+1}")
    ws = f"s[{SRD_WS}:{SRD_WS+3}]"
    def finish(wr):
        for a_ in range(2):
            a(f"v_mov_b32 v{vT}, v{vNM + a_}")
            a(f"v_mov_b32 v{vT+1}, v{vNM + a_}")
            a(f"v_mov_b32 v{vT+2}, v{vRS + a_}")
            a(f"v_mov_b32 v{vT+3}, v{vRS + a_}")
            so = f"s{sTA if a_ == 0 else sTB}"
            for b_ in range(2):
                A = acc(a_, b_)
                for p in range(8):
                    a(f"v_pk_fma_f32 {vr(A + 2 * p, 2)}, {vr(vC + 16 * b_ + 2 * p, 2)}, {vr(vT, 2)}, {vr(A + 2 * p, 2)}")
                for p in range(8):
                    a(f"v_pk_mul_f32 {vr(A + 2 * p, 2)}, {vr(A + 2 * p, 2)}, {vr(vT + 2, 2)}")
                for p in range(8):
                    a(f"v_cvt_pk_bf16_f32 v{A + p}, v{A + 2 * p}, v{A + 2 * p + 1}")
                if (wr ^ b_) == 0:
                    a(f"buffer_store_dwordx4 {vr(A, 4)}, v{vOFF}, {ws}, {so} offen{STF}")
                    a(f"buffer_store_dwordx4 {vr(A + 4, 4)}, v{vOFF + 1}, {ws}, {so} offen{STF}")
                else:
                    a(f"buffer_store_dwordx4 {vr(A, 4)}, v{vOFF + 2}, {ws}, {so} offen{STF}")
                    a(f"buffer_store_dwordx2 {vr(A + 4, 2)}, v{vOFF + 3}, {ws}, {so} offen{STF}")
                    a(f"buffer_store_dwordx2 {vr(A + 6, 2)}, v{vOFF + 4}, {ws}, {so} offen{STF}")
    a(f"s_cmp_eq_u32 s{sWR}, 0")
    a("s_cbranch_scc0 L_k1_qk_wr1")
    finish(0)
    a("s_branch L_k1_qk_done")
    a.label("L_k1_qk_wr1")
    finish(1)
    a.label("L_k1_qk_done")
    ST(a, "stores")
    if ST.on:
        a("s_waitcnt vmcnt(0)")
    ST(a, "end")
    ST.store(a)
    a("s_endpgm")

def v_path(a):
    a.label("L_k1_v")
    a(f"s_lshl_b32 s{sT1}, s{sMT}, 2")
    a(f"s_lshl_b32 s{sT2}, s{sWR}, 1")
    a(f"s_add_u32 s{sT1}, s{sT1}, s{sT2}")
    a(f"s_add_u32 s{sT2}, s{sT1}, s{sWC}")
    a(f"s_mul_i32 s{sTA}, s{sT2}, 2560")
    a(f"s_add_u32 s{sTA}, s{sTA}, {KV_OFF + 1280}")
    a(f"s_xor_b32 s{sT3}, s{sWC}, 1")
    a(f"s_add_u32 s{sT2}, s{sT1}, s{sT3}")
    a(f"s_mul_i32 s{sTB}, s{sT2}, 2560")
    a(f"s_add_u32 s{sTB}, s{sTB}, {KV_OFF + 1280}")
    a(f"s_sub_u32 s{sT0}, s{sNT}, 10")
    a(f"s_lshl_b32 s{sT0}, s{sT0}, 7")
    a(f"s_lshl_b32 s{sT1}, s{sWC}, 6")
    a(f"s_add_u32 s{sT0}, s{sT0}, s{sT1}")
    for b_ in range(2):
        if b_ == 0:
            a(f"s_lshl_b32 s{sT1}, s{sWR}, 5")
        else:
            a(f"s_xor_b32 s{sT1}, s{sWR}, 1")
            a(f"s_lshl_b32 s{sT1}, s{sT1}, 5")
        a(f"s_add_u32 s{sT1}, s{sT1}, s{sT0}")
        a(f"v_add_u32 v{vT}, s{sT1}, v{vTOK}")
        a(f"v_mul_u32_u24 v{vT+1}, 52429, v{vT}")
        a(f"v_lshrrev_b32 v{vT+1}, 20, v{vT+1}")
        a(f"v_mul_u32_u24 v{vT+2}, 20, v{vT+1}")
        a(f"v_sub_u32 v{vT+2}, v{vT}, v{vT+2}")
        a(f"s_mov_b32 s{sT2}, {64 * 2560}")
        a(f"v_mul_lo_u32 v{vOFF + b_}, v{vT+1}, s{sT2}")
        a(f"v_lshlrev_b32 v{vT+2}, 4, v{vT+2}")
        a(f"v_mul_u32_u24 v{vT+3}, 320, v{vH}")
        a(f"v_add3_u32 v{vOFF + b_}, v{vOFF + b_}, v{vT+2}, v{vT+3}")
    mainloop(a, True)
    stats_exchange(a)
    vCL, vNM, vRS = vE, vE + 4, vE + 20
    a(f"s_lshl_b32 s{sT0}, s{sWC}, 6")
    a(f"v_add_u32 v{vT}, s{sT0}, v{vTOK}")
    a(f"v_lshlrev_b32 v{vT}, 2, v{vT}")
    a(f"s_lshl_b32 s{sT1}, s{sWR}, 7")
    a(f"v_add_u32 v{vT+1}, s{sT1}, v{vT}")
    a(f"s_xor_b32 s{sT1}, s{sT1}, 128")
    a(f"v_add_u32 v{vT+2}, s{sT1}, v{vT}")
    a(f"v_add_u32 v{vT+1}, {ST_CS}, v{vT+1}")
    a(f"v_add_u32 v{vT+2}, {ST_CS}, v{vT+2}")
    a(f"ds_read_b32 v{vCL}, v{vT+1}")
    a(f"ds_read_b32 v{vCL+2}, v{vT+2}")
    a("s_waitcnt lgkmcnt(0)")
    a(f"v_mov_b32 v{vCL+1}, v{vCL}")
    a(f"v_mov_b32 v{vCL+3}, v{vCL+2}")
    ws = f"s[{SRD_WS}:{SRD_WS+3}]"
    for a_ in range(2):
        a(f"s_lshl_b32 s{sT0}, s{sWR}, 8")
        a(f"s_lshl_b32 s{sT1}, s{sWC}, 7")
        if a_ == 1:
            a(f"s_xor_b32 s{sT1}, s{sT1}, 128")
        a(f"s_add_u32 s{sT0}, s{sT0}, s{sT1}")
        a(f"v_lshlrev_b32 v{vT}, 4, v{vH}")
        a(f"v_add_u32 v{vT}, s{sT0}, v{vT}")
        a(f"v_add_u32 v{vT}, {ST_NM}, v{vT}")
        for g in range(4):
            a(f"ds_read_b128 {vr(vNM + 4 * g, 4)}, v{vT} offset:{32 * g}")
            a(f"ds_read_b128 {vr(vRS + 4 * g, 4)}, v{vT} offset:{512 + 32 * g}")
        a("s_waitcnt lgkmcnt(0)")
        for b_ in range(2):
            A = acc(a_, b_)
            for p in range(8):
                a(f"v_pk_fma_f32 {vr(A + 2 * p, 2)}, {vr(vNM + 2 * p, 2)}, {vr(vCL + 2 * b_, 2)}, {vr(A + 2 * p, 2)}")
            for p in range(8):
                a(f"v_pk_mul_f32 {vr(A + 2 * p, 2)}, {vr(A + 2 * p, 2)}, {vr(vRS + 2 * p, 2)}")
            for p in range(8):
                a(f"v_cvt_pk_bf16_f32 v{A + p}, v{A + 2 * p}, v{A + 2 * p + 1}")
            for t in range(2):
                a(f"buffer_store_dwordx4 {vr(A + 4 * t, 4)}, v{vOFF + b_}, {ws}, s{sTA if a_ == 0 else sTB} offen offset:{640 * t}{STF}")
    ST(a, "stores")
    if ST.on:
        a("s_waitcnt vmcnt(0)")
    ST(a, "end")
    ST.store(a)
    a("s_endpgm")

L_KEYS, L_WR = 51200, 52224

def aux(a):
    from k2moe import repack_setup, repack_request, repack_finish
    a.label("L_k1_aux")
    a(f"s_cmp_ge_u32 s{sW}, 8")
    a("s_cbranch_scc1 L_k1_exit")
    vX, vWr = (16, 56), 96
    vA, vAW = 8, 9
    s1, s2, s3, sw = (10, 136), (11, 137), (12, 138), 13
    SRD_R = 40
    a("s_load_dwordx2 s[6:7], s[0:1], 16")
    srd(a, SRD_R, 38, D * 2)
    a(f"v_lshrrev_b32 v{vT}, 3, v{vLANE}")
    a(f"s_lshl_b32 s{sT0}, s{sW}, 4")
    a(f"s_add_u32 s{sT0}, s{sT0}, s{sROW0}")
    a(f"v_add_u32 v14, s{sT0}, v{vT}")
    a(f"v_and_b32 v15, 7, v{vLANE}")
    a(f"v_lshlrev_b32 v{vAW}, 4, v15")
    a(f"v_mul_u32_u24 v{vA}, 1280, v14")
    a(f"v_add_u32 v{vA}, v{vA}, v{vAW}")
    if X("touch"):
        a("s_load_dwordx2 s[46:47], s[0:1], 72")
        a(f"s_mov_b32 s{sT1}, {YP_OFF}")
        a(f"v_mov_b32 v140, 0")
        a(f"buffer_load_dword v141, v140, s[{SRD_WS}:{SRD_WS+3}], s{sT1} offen")
        a("s_waitcnt lgkmcnt(0)")
        a("global_load_dword v142, v140, s[46:47] offset:192")
    a(f"s_mov_b32 s{sT1}, {8 * 1280}")
    for g in range(2):
        for i in range(10):
            a(f"buffer_load_dwordx4 {vr(vX[g] + 4 * i, 4)}, v{vA}, s[{SRD_X}:{SRD_X+3}], {0 if g == 0 else f's{sT1}'} offen offset:{i * 128}")
        if g == 0:
            for i in range(10):
                a(f"buffer_load_dwordx4 {vr(vWr + 4 * i, 4)}, v{vAW}, s[{SRD_R}:{SRD_R+3}], 0 offen offset:{i * 128}")
    for r in s1 + s2 + s3 + (sw,):
        a(f"v_mov_b32 v{r}, 0")
    a(f"v_mov_b32 v139, 0x3f803f80")
    ST(a, "setup")
    for g in range(2):
        a(f"s_waitcnt vmcnt({10 if g == 0 else 0})")
        if g == 0:
            ST(a, "B0")
        for r in range(40):
            a(f"v_dot2c_f32_bf16 v{s1[g]}, v{vX[g] + r}, v139")
            a(f"v_dot2c_f32_bf16 v{s2[g]}, v{vX[g] + r}, v{vX[g] + r}")
            a(f"v_dot2c_f32_bf16 v{s3[g]}, v{vX[g] + r}, v{vWr + r}")
            if g == 0:
                a(f"v_dot2c_f32_bf16 v{sw}, v{vWr + r}, v139")
    ST(a, "loopend")
    a("s_nop 3")
    for ctrl in ("quad_perm:[1,0,3,2]", "quad_perm:[2,3,0,1]", "row_half_mirror"):
        for r in s1 + s2 + s3 + (sw,):
            a(f"v_add_f32_dpp v{vT+2}, v{r}, v{r} {ctrl} row_mask:0xf bank_mask:0xf")
            a("s_nop 0")
            a(f"v_mov_b32 v{r}, v{vT+2}")
        a("s_nop 1")
    a(f"v_cmp_eq_u32 vcc, 1, v15")
    a(f"v_add_u32 v{vT}, 8, v14")
    a("s_nop 0")
    for pair in (s1, s2, s3):
        a(f"v_cndmask_b32 v{pair[0]}, v{pair[0]}, v{pair[1]}, vcc")
    a(f"v_cndmask_b32 v{vT}, v14, v{vT}, vcc")
    a(f"v_mov_b32 v{vT+1}, v15")
    s1, s2, s3 = s1[0], s2[0], s3[0]
    a(f"v_mul_f32 v{s1}, {hex(f2u(1.0 / D))}, v{s1}")
    a(f"v_mul_f32 v{s2}, {hex(f2u(1.0 / D))}, v{s2}")
    a(f"v_fma_f32 v{s2}, -v{s1}, v{s1}, v{s2}")
    a(f"v_max_f32 v{s2}, 0, v{s2}")
    a(f"v_add_f32 v{s2}, {hex(f2u(1e-5))}, v{s2}")
    a(f"v_rsq_f32 v{s2}, v{s2}")
    a(f"v_fma_f32 v{s3}, -v{s1}, v{sw}, v{s3}")
    a(f"v_mul_f32 v{s3}, v{s3}, v{s2}")
    ws = f"s[{SRD_WS}:{SRD_WS+3}]"
    a(f"v_ashrrev_i32 v{vT+2}, 31, v{s3}")
    a(f"v_or_b32 v{vT+2}, 0x80000000, v{vT+2}")
    a(f"v_xor_b32 v{vT+2}, v{vT+2}, v{s3}")
    a(f"v_and_b32 v{vT+2}, 0xfffff800, v{vT+2}")
    a(f"v_or_b32 v{vT+2}, v{vT+2}, v{vT}")
    a(f"v_mov_b32 v14, v{s1}")
    a(f"v_mov_b32 v15, v{s2}")
    a(f"v_lshlrev_b32 v{vA}, 3, v{vT}")
    a(f"v_lshlrev_b32 v{vAW}, 2, v{vT}")
    a(f"v_and_b32 v{vT+3}, 127, v{vT}")
    a(f"v_lshlrev_b32 v{vT+3}, 2, v{vT+3}")
    a(f"v_add_u32 v{vT+3}, {L_KEYS}, v{vT+3}")
    a(f"v_cmp_gt_u32 vcc, 2, v{vT+1}")
    a(f"s_mov_b32 s{sT0}, {ST_OFF}")
    a(f"s_mov_b32 s{sT1}, {R_OFF}")
    a("s_and_saveexec_b64 s[44:45], vcc")
    a(f"buffer_store_dwordx2 v[14:15], v{vA}, {ws}, s{sT0} offen{'' if LOCAL_STATS else ' sc1'}")
    a(f"buffer_store_dword v{s3}, v{vAW}, {ws}, s{sT1} offen")
    a(f"ds_write_b32 v{vT+3}, v{vT+2}")
    if LOCAL_STATS:
        a("s_waitcnt lgkmcnt(0)")
    else:
        a("s_load_dwordx2 s[46:47], s[0:1], 72")
        a("s_waitcnt vmcnt(0) lgkmcnt(0)")
    a("s_mov_b64 exec, s[44:45]")
    a("s_barrier")
    a(f"s_cmp_lg_u32 s{sW}, 0")
    a("s_cbranch_scc1 L_k1_repack")
    if not LOCAL_STATS:
        a(f"s_lshl_b32 s{sT0}, s{sMT}, 2")
        a(f"v_mov_b32 v16, s{sT0}")
        a("v_mov_b32 v17, 1")
        a("s_mov_b64 exec, 1")
        a("global_store_dword v16, v17, s[46:47] sc1")
        a("s_mov_b64 exec, -1")
    ST(a, "e_lds")
    hi, lo, oh, ol, adr = 16, 17, 18, 19, 20
    a(f"v_lshlrev_b32 v{adr}, 2, v{vLANE}")
    a(f"ds_read_b32 v{oh}, v{adr} offset:{L_KEYS}")
    a(f"ds_read_b32 v{ol}, v{adr} offset:{L_KEYS + 256}")
    a("s_waitcnt lgkmcnt(0)")
    a(f"v_max_u32 v{hi}, v{oh}, v{ol}")
    a(f"v_min_u32 v{lo}, v{oh}, v{ol}")
    for x in (1, 2, 4, 8, 16, 32):
        a(f"v_xor_b32 v{adr}, {x}, v{vLANE}")
        a(f"v_lshlrev_b32 v{adr}, 2, v{adr}")
        a(f"ds_bpermute_b32 v{oh}, v{adr}, v{hi}")
        a(f"ds_bpermute_b32 v{ol}, v{adr}, v{lo}")
        a("s_waitcnt lgkmcnt(0)")
        a(f"v_max_u32 v{lo}, v{lo}, v{ol}")
        a(f"v_min_u32 v{ol}, v{hi}, v{oh}")
        a(f"v_max_u32 v{hi}, v{hi}, v{oh}")
        a(f"v_max_u32 v{lo}, v{lo}, v{ol}")
    a(f"v_mov_b32 v{oh}, v{hi}")
    a(f"v_mov_b32 v{ol}, v{lo}")
    a(f"s_lshl_b32 s{sT0}, s{sMT}, 3")
    a(f"s_add_u32 s{sT0}, s{sT0}, {CAND_OFF}")
    a(f"v_mov_b32 v{adr}, 0")
    a(f"v_cmp_eq_u32 vcc, 0, v{vLANE}")
    a("s_nop 1")
    a("s_and_saveexec_b64 s[44:45], vcc")
    a(f"buffer_store_dwordx2 v[{oh}:{ol}], v{adr}, {ws}, s{sT0} offen")
    a("s_mov_b64 exec, -1")
    a(f"s_cmp_lg_u32 s{sMT}, 0")
    a("s_cbranch_scc1 L_k1_repack")
    a(f"v_lshlrev_b32 v{adr}, 8, v{vLANE}")
    a(f"v_mov_b32 v{oh}, 0")
    a(f"s_mov_b32 s{sT0}, {CNT_OFF}")
    a(f"v_cmp_gt_u32 vcc, {NCNT}, v{vLANE}")
    a("s_nop 1")
    a("s_mov_b64 exec, vcc")
    a(f"buffer_store_dword v{oh}, v{adr}, {ws}, s{sT0} offen")
    a("s_mov_b64 exec, -1")
    ST(a, "stores")
    ST.store(a)
    a.label("L_k1_repack")
    repack_setup(a, sMT)
    repack_request(a, sW, 0)
    a(f"s_cmp_ge_u32 s{sW}, 2")
    a("s_cbranch_scc1 L_rep_loaded")
    repack_request(a, sW, 1)
    a.label("L_rep_loaded")
    repack_finish(a, sW, "L_k1_exit")

def emit(a):
    entry(a)
    consumer_setup(a)
    a(f"s_cmp_ge_u32 s{sNT}, 10")
    a("s_cbranch_scc1 L_k1_v")
    qk_path(a)
    v_path(a)
    loader(a)
    stat_waves(a)
    aux(a)
    a.label("L_k1_exit")
    a("s_endpgm")
```

```python
from common import *
from k2moe import top2_scalar
import os

NAME = "attn_proj_kernel"
LDS = 163840
VGPRS = 168
BLOCK = 768
GRID = 256
NMOE = 96

def X(flag):
    return flag in os.environ.get("K2_EXP", "").split(",")

ST = StampsLane("k2", 20, 8, 164)

L_RING = 0
L_R = 61440
L_WG, L_WU, L_WD = L_R, L_R + 20480, L_R + 40960
L_XG, L_XU = L_R + 61440, L_R + 61440 + 3840
L_U, L_H = L_R + 69120, L_R + 69120 + 1024
L_MISC = 143360
F_LAND, F_FREE, F_U, F_H, F_MOE, F_ALL = L_MISC, L_MISC + 4, L_MISC + 8, L_MISC + 12, L_MISC + 16, L_MISC + 20
F_RT = L_MISC + 24
F_FREEC = L_MISC + 64
L_RED, L_Y = L_MISC + 1024, L_MISC + 1024 + 3840
SPIN_MAX = 1 << 20
SPACE = int(os.environ.get("K2_SPACE", "0"))
HPRIO = int(os.environ.get("K2_HPRIO", "3"))
LOWM = int(os.environ.get("K2_LOWM", "0"))

vLANE16, vT0, vT1 = 1, 2, 3
vKA, vKB, vV, vFL = 4, 5, 6, 7
vQ1, vQ2 = 10, 20
vFLAG, vONE = 16, 17
vS = (32, 48)
vO = 64
vP = 80
vKAf = (88, 92)
vKBf = (24, 28)
vVf = ((100, 104), (108, 112))
vTMP = 116

sW, sHEAD, sKV, sQ, sOB, sOM = 20, 21, 22, 23, 24, 25
sVMASK = 26
sLO = 28
sT, sT2, sQB = 30, 31, 32
SRD_WS = 8
WS = f"s[{SRD_WS}:{SRD_WS+3}]"

def lds_tile(t):
    return ((t >> 3) % 3) * 20480 + (t & 7) * 2560

def spin(a, name, vaddr, vtmp, stmp, target, cnt, sleep=1):
    a(f"s_mov_b32 s{cnt}, {SPIN_MAX}")
    a.label(f"{name}_loop")
    a(f"ds_read_b32 v{vtmp}, v{vaddr}")
    a("s_waitcnt lgkmcnt(0)")
    a(f"v_readfirstlane_b32 s{stmp}, v{vtmp}")
    a(f"s_sub_u32 s{cnt}, s{cnt}, 1")
    a(f"s_cbranch_scc1 {name}_done")
    a(f"s_cmp_ge_u32 s{stmp}, {target}")
    a(f"s_cbranch_scc1 {name}_done")
    a(f"s_sleep {sleep}")
    a(f"s_branch {name}_loop")
    a.label(f"{name}_done")

def mfma_s1(a, dst, buf):
    a(f"v_mfma_f32_32x32x16_bf16 {vr(dst, 16)}, {vr(vKAf[buf], 4)}, {vr(vQ1, 4)}, 0")
def mfma_s2(a, dst, buf):
    if X("nos2"): return
    if not X("s2x16"):
        a(f"v_mfma_f32_32x32x8bf16_1k {vr(dst, 16)}, {vr(vKBf[buf], 2)}, {vr(vQ2, 2)}, {vr(dst, 16)}")
    else:
        a(f"v_mfma_f32_32x32x16_bf16 {vr(dst, 16)}, {vr(vKBf[buf], 4)}, {vr(vQ2, 4)}, {vr(dst, 16)}")
def mfma_pv(a, buf, t):
    a(f"v_mfma_f32_32x32x16_bf16 {vr(vO, 16)}, {vr(vVf[buf][t], 4)}, {vr(vP + 4 * t, 4)}, {vr(vO, 16)}")

def read_ka(a, t, buf):
    a(f"ds_read_b128 {vr(vKAf[buf], 4)}, v{vKA} offset:{lds_tile(t)}")
def read_kb(a, t, buf):
    a(f"ds_read_b64 {vr(vKBf[buf], 2)}, v{vKB} offset:{lds_tile(t)}")
def read_v(a, t, part):
    a(f"ds_read_b128 {vr(vVf[t & 1][part], 4)}, v{vV} offset:{lds_tile(t) + 640 * part}")

def tile_body(a, t):
    sc, sn = vS[t & 1], vS[(t + 1) & 1]
    last = t == 63
    ex = lambda r: a(f"v_exp_f32 v{sc + r}, v{sc + r}")
    cv = lambda i: a(f"v_cvt_pk_bf16_f32 v{vP + i}, v{sc + 2 * i}, v{sc + 2 * i + 1}")
    ex(0)
    a("s_setprio 1")
    ex(1)
    if t > 0:
        mfma_pv(a, (t - 1) & 1, 1)
    for r in range(2, 6):
        ex(r)
    if not last:
        mfma_s1(a, sn, (t + 1) & 1)
    ex(6); ex(7)
    for i in range(4):
        cv(i)
    if not X("neworder"):
        if not last:
            mfma_s2(a, sn, (t + 1) & 1)
        for r in range(8, 12):
            ex(r)
        mfma_pv(a, t & 1, 0)
        for r in range(12, 16):
            ex(r)
    else:
        ex(8); ex(9)
        mfma_pv(a, t & 1, 0)
        for r in range(10, 14):
            ex(r)
        if not last:
            mfma_s2(a, sn, (t + 1) & 1)
        ex(14); ex(15)
    for i in range(4, 8):
        cv(i)
    a("s_setprio 0")
    a("s_waitcnt lgkmcnt(0)")
    if t % 8 == 5 and t < 56:
        c = t // 8 + 1
        a(f"v_readfirstlane_b32 s{sT}, v{vFLAG}")
        a(f"s_cmp_ge_u32 s{sT}, {c}")
        a(f"s_cbranch_scc1 L_land_{c}_skip")
        if ST.on:
            a("s_memtime s[90:91]")
            a("s_waitcnt lgkmcnt(0)")
        spin(a, f"L_land_{c}", vFL, vFLAG, sT, c, sT2)
        if ST.on:
            a("s_memtime s[88:89]")
            a("s_waitcnt lgkmcnt(0)")
            a("s_sub_u32 s88, s88, s90")
            a("s_add_u32 s87, s87, s88")
        a.label(f"L_land_{c}_skip")
    if t % 8 == 7 and t < 40:
        a("s_mov_b64 exec, 1")
        a(f"ds_add_u32 v{vFL}, v{vONE} offset:{F_FREEC - F_LAND + 4 * (t // 8)}")
        a("s_mov_b64 exec, -1")
    if t + 3 <= 63:
        if not X("noka"): read_ka(a, t + 3, (t + 1) & 1)
        a(f"s_mov_b64 exec, s[{sLO}:{sLO+1}]")
        if not X("nokb"): read_kb(a, t + 3, (t + 1) & 1)
    if t + 1 <= 63:
        a(f"s_mov_b64 exec, s[{sVMASK}:{sVMASK+1}]")
        if t + 2 <= 63 and not X("nov0"):
            read_v(a, t + 2, 0)
        if not X("nov1"): read_v(a, t + 1, 1)
        a("s_mov_b64 exec, -1")
    if t % 8 == 4 and t < 56:
        a(f"ds_read_b32 v{vFLAG}, v{vFL}")
    if t == 62:
        a("s_nop 1")
    if last:
        a("s_nop 1")
        mfma_pv(a, t & 1, 1)

def row_max(a, s, dst, tmp):
    a(f"v_max3_f32 v{dst}, v{s}, v{s+1}, v{s+2}")
    for r in range(3, 15, 2):
        a(f"v_max3_f32 v{dst}, v{dst}, v{s+r}, v{s+r+1}")
    a(f"v_max_f32 v{dst}, v{dst}, v{s+15}")
    a(f"v_mov_b32 v{tmp}, v{dst}")
    a("s_nop 1")
    a(f"v_permlane32_swap_b32 v{dst}, v{tmp}")
    a("s_nop 1")
    a(f"v_max_f32 v{dst}, v{dst}, v{tmp}")

def entry(a):
    kernel_header(a, NAME)
    ST(a, "entry")
    a(f"s_cmp_ge_u32 s2, {GRID}")
    a("s_cbranch_scc1 L_k2_exit")
    a("s_load_dwordx2 s[4:5], s[0:1], 80")
    a(f"v_lshrrev_b32 v{vT0}, 6, v0")
    a(f"v_and_b32 v{vT1}, 63, v0")
    a(f"v_readfirstlane_b32 s{sW}, v{vT0}")
    a("s_and_b32 s12, s2, 7")
    a("s_lshl_b32 s12, s12, 2")
    a("s_bfe_u32 s13, s2, 0x20003")
    a(f"s_or_b32 s{sHEAD}, s12, s13")
    a(f"s_lshr_b32 s{sQB}, s2, 5")
    a(f"s_mul_i32 s{sKV}, s{sHEAD}, {64 * 2560}")
    a(f"s_add_u32 s{sKV}, s{sKV}, {KV_OFF}")
    a(f"v_lshlrev_b32 v{vLANE16}, 4, v{vT1}")
    a(f"s_cmp_ge_u32 s{sW}, 8")
    a("s_cbranch_scc1 L_k2_helper")

def attention(a):
    a(f"s_lshl_b32 s14, s{sQB}, 3")
    a(f"s_add_u32 s14, s14, s{sW}")
    a(f"s_lshl_b32 s15, s{sHEAD}, 6")
    a("s_add_u32 s15, s15, s14")
    a(f"s_mul_i32 s{sQ}, s15, 1280")
    if QB_OFF:
        a(f"s_add_u32 s{sQ}, s{sQ}, {QB_OFF}")
    a(f"s_mul_i32 s16, s{sW}, 2560")
    a(f"s_add_u32 s17, s{sKV}, s16")
    a(f"s_mov_b32 s{sLO}, -1")
    a(f"s_mov_b32 s{sLO+1}, 0")
    a(f"v_and_b32 v{vT0}, 31, v{vT1}")
    a(f"v_lshlrev_b32 v{vTMP}, 3, v{vT0}")
    for r in range(4):
        a(f"v_mov_b32 v{vQ2 + r}, 0")
    a("s_waitcnt lgkmcnt(0)")
    srd(a, SRD_WS, 4, WS_SRD)
    a("s_mov_b32 m0, s16")
    a("s_nop 0")
    a(f"buffer_load_dwordx4 v{vLANE16}, {WS}, s17 offen lds")
    a(f"buffer_load_dwordx4 v{vLANE16}, {WS}, s17 offen offset:1024 lds")
    a(f"s_mov_b64 exec, s[{sLO}:{sLO+1}]")
    a(f"buffer_load_dwordx4 v{vLANE16}, {WS}, s17 offen offset:2048 lds")
    a(f"buffer_load_dwordx2 {vr(vQ2, 2)}, v{vTMP}, {WS}, s{sQ} offen offset:1024")
    a("s_mov_b64 exec, -1")
    a(f"buffer_load_dwordx4 {vr(vQ1, 4)}, v{vLANE16}, {WS}, s{sQ} offen")
    a(f"s_mul_i32 s{sOB}, s14, 40960")
    a(f"s_add_u32 s{sOB}, s{sOB}, {OB_OFF}")
    a(f"s_lshr_b32 s15, s{sHEAD}, 3")
    a("s_mul_i32 s15, s15, 5120")
    a(f"s_add_u32 s{sOB}, s{sOB}, s15")
    a(f"s_bfe_u32 s15, s{sHEAD}, 0x20001")
    a("s_lshl_b32 s15, s15, 10")
    a(f"s_and_b32 s16, s{sHEAD}, 1")
    a("s_lshl_b32 s16, s16, 9")
    a("s_add_u32 s15, s15, s16")
    a(f"s_add_u32 s{sOM}, s{sOB}, s15")
    a(f"s_and_b32 s15, s{sHEAD}, 3")
    a("s_lshl_b32 s15, s15, 8")
    a(f"s_bfe_u32 s16, s{sHEAD}, 0x10002")
    a("s_lshl_b32 s16, s16, 3")
    a("s_add_u32 s15, s15, s16")
    a(f"s_add_u32 s{sOB}, s{sOB}, s15")
    a(f"s_add_u32 s{sOB}, s{sOB}, 4096")
    a(f"s_mov_b32 s{sVMASK}, 0x000fffff")
    a(f"s_mov_b32 s{sVMASK+1}, 0x000fffff")
    a(f"v_mov_b32 v{vKA}, v{vLANE16}")
    a(f"v_add_u32 v{vKB}, 1024, v{vTMP}")
    a(f"v_lshrrev_b32 v{vTMP+1}, 5, v{vT1}")
    a(f"v_mul_u32_u24 v{vTMP+1}, 320, v{vTMP+1}")
    a(f"v_lshl_add_u32 v{vTMP+1}, v{vT0}, 4, v{vTMP+1}")
    a(f"v_add_u32 v{vV}, 1280, v{vTMP+1}")
    a(f"v_mov_b32 v{vFL}, {F_LAND}")
    a(f"v_mov_b32 v{vONE}, 1")
    a(f"v_and_b32 v{vTMP+1}, 27, v{vT0}")
    a(f"v_cmp_eq_u32 vcc, 24, v{vTMP+1}")
    a(f"v_mov_b32 v{vTMP+2}, 0x3f803f80")
    a("s_nop 1")
    a(f"v_cndmask_b32 v{vTMP+1}, 0, v{vTMP+2}, vcc")
    for b in range(2):
        for t in range(2):
            for r in range(4):
                a(f"v_mov_b32 v{vVf[b][t] + r}, v{vTMP+1}")
    for r in range(16):
        a(f"v_mov_b32 v{vO + r}, 0")
    a(f"v_cmp_le_u32 vcc, 32, v{vT1}")
    a(f"v_mov_b32 v{vTMP+2}, 0x3f80")
    a("s_nop 1")
    for b in range(2):
        a(f"v_cndmask_b32 v{vKBf[b]}, 0, v{vTMP+2}, vcc")
        for r in range(1, 4):
            a(f"v_mov_b32 v{vKBf[b] + r}, 0")
    a("s_waitcnt vmcnt(0)")
    a("s_barrier")
    ST(a, "B0")
    read_ka(a, 0, 0)
    read_ka(a, 1, 1)
    a(f"s_mov_b64 exec, s[{sLO}:{sLO+1}]")
    read_kb(a, 0, 0)
    read_kb(a, 1, 1)
    a(f"s_mov_b64 exec, s[{sVMASK}:{sVMASK+1}]")
    read_v(a, 0, 0); read_v(a, 0, 1); read_v(a, 1, 0)
    a("s_mov_b64 exec, -1")
    a("s_waitcnt lgkmcnt(3)")
    mfma_s1(a, vS[0], 0)
    a("s_nop 11")
    mfma_s2(a, vS[0], 0)
    a("s_nop 15")
    a("s_nop 3")
    row_max(a, vS[0], vTMP, vTMP + 1)
    a(f"v_sub_f32 v{vTMP}, 0, v{vTMP}")
    a(f"v_cvt_pk_bf16_f32 v{vTMP}, v{vTMP}, 0")
    a(f"v_cmp_le_u32 vcc, 32, v{vT1}")
    a("s_nop 1")
    a(f"v_cndmask_b32 v{vQ2}, v{vQ2}, v{vTMP}, vcc")
    a("s_nop 1")
    mfma_s1(a, vS[0], 0)
    a("s_nop 11")
    mfma_s2(a, vS[0], 0)
    read_ka(a, 2, 0)
    a(f"s_mov_b64 exec, s[{sLO}:{sLO+1}]")
    read_kb(a, 2, 0)
    a("s_mov_b64 exec, -1")
    a("s_waitcnt lgkmcnt(2)")
    a("s_nop 15")
    a("s_nop 3")
    if ST.on:
        a("s_mov_b32 s87, 0")
    for t in range(64):
        if t in (0, 8, 32, 56):
            ST(a, f"t{t}")
        tile_body(a, t)
    ST(a, "loopend")
    if ST.on:
        a(f"v_writelane_b32 v{ST.vt}, s87, 15")
    a("s_nop 15")
    a("s_nop 3")
    a(f"v_mov_b32 v{vTMP}, v{vO + 12}")
    for r in range(12):
        a(f"v_fma_f32 v{vTMP}, v{vO + r}, 0, v{vTMP}")
    a(f"v_mov_b32 v{vTMP+1}, {hex(f2u(2.0 ** 100))}")
    a(f"v_cmp_nlt_f32 vcc, v{vTMP}, v{vTMP+1}")
    a("s_nop 4")
    a("s_cbranch_vccz L_attn_store")
    safe_path(a)
    a.label("L_attn_store")
    a(f"v_rcp_f32 v{vTMP}, v{vO + 12}")
    a("s_nop 1")
    for r in range(12):
        a(f"v_mul_f32 v{vO + r}, v{vO + r}, v{vTMP}")
    for i in range(6):
        a(f"v_cvt_pk_bf16_f32 v{vP + i}, v{vO + 2 * i}, v{vO + 2 * i + 1}")
    a(f"v_and_b32 v{vTMP+1}, 15, v0")
    a(f"v_lshlrev_b32 v{vTMP+1}, 4, v{vTMP+1}")
    a(f"v_bfe_u32 v{vTMP+2}, v0, 4, 1")
    a(f"v_mul_u32_u24 v{vTMP+2}, 20480, v{vTMP+2}")
    a(f"v_add_u32 v{vTMP+1}, v{vTMP+1}, v{vTMP+2}")
    a(f"v_bfe_u32 v{vTMP+2}, v0, 5, 1")
    a(f"v_lshl_add_u32 v{vTMP+2}, v{vTMP+2}, 8, v{vTMP+1}")
    a(f"buffer_store_dwordx4 {vr(vP, 4)}, v{vTMP+2}, {WS}, s{sOM} offen sc1")
    a(f"s_mov_b64 exec, s[{sLO}:{sLO+1}]")
    a(f"buffer_store_dwordx2 {vr(vP + 4, 2)}, v{vTMP+1}, {WS}, s{sOB} offen sc1")
    a("s_mov_b64 exec, -1")
    a("s_branch L_k2_join")

def safe_path(a):
    vM, vMN, vAL = vTMP, vTMP + 1, vTMP + 2
    vA2, vA3 = vTMP + 5, vTMP + 6
    s = vS[0]
    a(f"v_and_b32 v{vA2}, 31, v0")
    a(f"v_lshlrev_b32 v{vA2}, 3, v{vA2}")
    a(f"v_mov_b32 v{vA3}, v{vV}")
    a(f"v_mov_b32 v{vM}, 0xff7fffff")
    a(f"v_and_b32 v{vAL}, 63, v0")
    a(f"v_cmp_gt_u32 vcc, 32, v{vAL}")
    a("s_nop 1")
    a(f"v_cndmask_b32 v{vQ2}, 0, v{vQ2}, vcc")
    for r in range(16):
        a(f"v_mov_b32 v{vO + r}, 0")
    a(f"s_mov_b32 s{sT}, s{sKV}")
    a("s_mov_b32 s15, 64")
    a.label("L_safe_loop")
    a(f"buffer_load_dwordx4 {vr(vKAf[0], 4)}, v{vLANE16}, {WS}, s{sT} offen")
    a(f"s_mov_b64 exec, s[{sLO}:{sLO+1}]")
    a(f"buffer_load_dwordx2 {vr(vKBf[0], 2)}, v{vA2}, {WS}, s{sT} offen offset:1024")
    a(f"s_mov_b64 exec, s[{sVMASK}:{sVMASK+1}]")
    a(f"buffer_load_dwordx4 {vr(vVf[0][0], 4)}, v{vA3}, {WS}, s{sT} offen")
    a(f"buffer_load_dwordx4 {vr(vVf[0][1], 4)}, v{vA3}, {WS}, s{sT} offen offset:640")
    a("s_mov_b64 exec, -1")
    a("s_waitcnt vmcnt(0)")
    mfma_s1(a, s, 0)
    a("s_nop 11")
    mfma_s2(a, s, 0)
    a("s_nop 15")
    a("s_nop 3")
    row_max(a, s, vMN, vAL)
    a(f"v_max_f32 v{vMN}, v{vMN}, v{vM}")
    a(f"v_sub_f32 v{vAL}, v{vM}, v{vMN}")
    a(f"v_exp_f32 v{vAL}, v{vAL}")
    a(f"v_mov_b32 v{vM}, v{vMN}")
    for r in range(16):
        a(f"v_sub_f32 v{s + r}, v{s + r}, v{vMN}")
    for r in range(16):
        a(f"v_exp_f32 v{s + r}, v{s + r}")
    for r in range(16):
        a(f"v_mul_f32 v{vO + r}, v{vO + r}, v{vAL}")
    for i in range(8):
        a(f"v_cvt_pk_bf16_f32 v{vP + i}, v{s + 2 * i}, v{s + 2 * i + 1}")
    a("s_nop 1")
    mfma_pv(a, 0, 0)
    mfma_pv(a, 0, 1)
    a(f"s_add_u32 s{sT}, s{sT}, 2560")
    a("s_sub_u32 s15, s15, 1")
    a("s_nop 15")
    a("s_nop 3")
    a("s_cmp_lg_u32 s15, 0")
    a("s_cbranch_scc1 L_safe_loop")

def helpers(a):
    a.label("L_k2_helper")
    a(f"s_setprio {HPRIO}")
    a("s_load_dwordx2 s[6:7], s[0:1], 0")
    a("s_load_dwordx4 s[36:39], s[0:1], 40")
    a("s_load_dwordx2 s[40:41], s[0:1], 56")
    a("s_waitcnt lgkmcnt(0)")
    srd(a, SRD_WS, 4, WS_SRD)
    a(f"s_cmp_lg_u32 s{sW}, 8")
    a("s_cbranch_scc1 L_k2_ffn")
    ring_loader(a)
    ffn(a)

def ring_loader(a):
    vF, vX = 4, 5
    a(f"v_lshlrev_b32 v{vF}, 2, v{vT1}")
    a(f"v_add_u32 v{vF}, {L_MISC}, v{vF}")
    a(f"v_mov_b32 v{vX}, 0")
    a(f"ds_write_b32 v{vF}, v{vX}")
    a(f"v_mov_b32 v{vF}, {F_LAND}")
    a("s_waitcnt lgkmcnt(0)")
    a("s_barrier")
    def chunk(c):
        for i in range(5):
            a(f"s_mov_b32 m0, {(c % 3) * 20480 + i * 4096}")
            a(f"s_add_u32 s{sT}, s{sKV}, {c * 20480 + i * 4096}")
            for j in range(4):
                a(f"buffer_load_dwordx4 v{vLANE16}, {WS}, s{sT} offen offset:{1024 * j} lds")
    def landed(c):
        a(f"v_mov_b32 v{vX}, {c}")
        a(f"ds_write_b32 v{vF}, v{vX}")
    chunk(1); chunk(2)
    a("s_waitcnt vmcnt(20)")
    landed(1)
    a("s_waitcnt vmcnt(0)")
    landed(2)
    for c in range(3, 8):
        a(f"v_mov_b32 v6, {F_FREEC + 4 * (c - 3)}")
        spin(a, f"L_free_{c}", 6, 7, sT, 8, sT2, sleep=6)
        chunk(c)
        a("s_waitcnt vmcnt(0)")
        landed(c)
    a(f"s_add_u32 s38, s4, {CAND_OFF}")
    a("s_addc_u32 s39, s5, 0")
    a("s_load_dwordx16 s[64:79], s[38:39], 0")
    a("s_load_dwordx16 s[80:95], s[38:39], 64")
    out_tile_ids(a)
    a("s_waitcnt lgkmcnt(0)")
    top2_scalar(a, 64, 42, 43, 12)
    a("s_bfe_u32 s12, s42, 0x50006")
    a("s_bfe_u32 s13, s43, 0x50006")
    a(f"s_cmp_eq_u32 s12, s{sMT}")
    a("s_cbranch_scc1 L_k2_watch")
    a(f"s_cmp_eq_u32 s13, s{sMT}")
    a("s_cbranch_scc0 L_k2_join")
    a.label("L_k2_watch")
    a(f"v_mov_b32 v7, {CNT_OFF + 8 * 256}")
    a(f"s_mov_b32 s13, {SPIN_MAX}")
    a.label("L_k2_poll_moe")
    a("global_load_dword v6, v7, s[4:5] sc1")
    a("s_waitcnt vmcnt(0)")
    a("v_readfirstlane_b32 s14, v6")
    a("s_sub_u32 s13, s13, 1")
    a("s_cbranch_scc1 L_k2_poll_moe_done")
    a(f"s_cmp_ge_u32 s14, {NMOE}")
    a("s_cbranch_scc1 L_k2_poll_moe_done")
    a("s_sleep 8")
    a("s_branch L_k2_poll_moe")
    a.label("L_k2_poll_moe_done")
    a(f"v_mov_b32 v6, {F_ALL}")
    a("v_mov_b32 v7, 1")
    a("ds_write_b32 v6, v7")
    a("s_waitcnt lgkmcnt(0)")
    a("s_branch L_k2_join")

def slice_index(a):
    a("s_and_b32 s33, s2, 7")
    a("s_mul_i32 s33, s33, 12")
    a("s_lshr_b32 s12, s2, 3")
    a("s_add_u32 s33, s33, s12")

def ffn(a):
    SRD_X, SRD_W = 56, 60
    sM, sB1, sB2, sU = 33, 42, 43, 44
    sCAND = 64
    vT, vA, vB = 4, 5, 6
    a.label("L_k2_ffn")
    a("s_barrier")
    a(f"s_cmp_ge_u32 s2, {NMOE if not X('nomoe') else 0}")
    a("s_cbranch_scc1 L_k2_wo_prefetch")
    slice_index(a)
    a(f"s_cmp_eq_u32 s{sW}, 11")
    a("s_cbranch_scc1 L_k2_down")
    a(f"s_sub_u32 s{sU}, s{sW}, 9")
    srd(a, SRD_X, 6, X_BYTES)
    a(f"s_add_u32 s46, s4, {CAND_OFF}")
    a("s_addc_u32 s47, s5, 0")
    a(f"s_load_dwordx16 s[{sCAND}:{sCAND+15}], s[46:47], 0")
    a(f"s_load_dwordx16 s[{sCAND+16}:{sCAND+31}], s[46:47], 64")
    a(f"s_cmp_eq_u32 s{sU}, 0")
    a("s_cbranch_scc0 L_k2_up_srd")
    srd(a, SRD_W, 36, WG_BYTES)
    a("s_branch L_k2_srd_done")
    a.label("L_k2_up_srd")
    srd(a, SRD_W, 38, WG_BYTES)
    a.label("L_k2_srd_done")
    a(f"v_lshrrev_b32 v{vT}, 3, v{vT1}")
    a(f"v_mul_u32_u24 v{vA}, 3072, v{vT}")
    a(f"v_and_b32 v7, 7, v{vT1}")
    a(f"v_xor_b32 v7, v7, v{vT}")
    a(f"v_lshl_add_u32 v{vA}, v7, 4, v{vA}")
    a(f"s_and_b32 s17, s{sM}, 3")
    a(f"s_mul_i32 s15, s17, {160 * 3072}")
    a(f"s_lshr_b32 s16, s{sM}, 2")
    a("s_lshl_b32 s16, s16, 7")
    a("s_add_u32 s15, s15, s16")
    a(f"s_mul_i32 s14, s{sU}, 20480")
    a(f"s_add_u32 s14, s14, {L_WG}")
    for q in range(20 if not X("moe_nodma") else 0):
        a(f"s_add_u32 m0, s14, {q * 1024}")
        a(f"s_add_u32 s16, s15, {q * 8 * 3072}")
        a(f"buffer_load_dwordx4 v{vA}, s[{SRD_W}:{SRD_W+3}], s16 offen lds")
    a("s_waitcnt lgkmcnt(0)")
    top2_scalar(a, sCAND, sB1, sB2, 12)
    a(f"s_and_b32 s{sB1}, s{sB1}, 0x7ff")
    a(f"s_and_b32 s{sB2}, s{sB2}, 0x7ff")
    for k, sB in ((0, sB1), (1, sB2)):
        a(f"s_lshl_b32 s12, s{sB}, 3")
        a("s_add_u32 s46, s4, s12")
        a("s_addc_u32 s47, s5, 0")
        a(f"s_add_u32 s46, s46, {ST_OFF}")
        a("s_addc_u32 s47, s47, 0")
        a(f"s_load_dwordx2 s[{48 + 2 * k}:{49 + 2 * k}], s[46:47], 0")
    a(f"s_mul_i32 s14, s{sU}, 1024")
    a(f"s_add_u32 s14, s14, {L_XG}")
    a("s_mul_i32 s16, s17, 320")
    a("s_mov_b64 exec, 0xfffff")
    for k, sB in ((0, sB1), (1, sB2)):
        a(f"s_mul_i32 s12, s{sB}, 1280")
        a("s_add_u32 s12, s12, s16")
        a(f"s_add_u32 m0, s14, {320 * k}")
        a("s_nop 0")
        a(f"buffer_load_dwordx4 v{vLANE16}, s[{SRD_X}:{SRD_X+3}], s12 offen lds")
    for r in range(4):
        a(f"v_mov_b32 v{8 + r}, 0x3f803f80")
    a(f"v_add_u32 v{vT}, s14, v{vLANE16}")
    a(f"ds_write_b128 v{vT}, v[8:11] offset:640")
    a("s_mov_b64 exec, -1")
    vWA, vXA, vF, vACC = 56, 6, 12, 40
    a(f"v_lshrrev_b32 v{vT}, 4, v{vT1}")
    a(f"v_bfe_u32 v7, v{vT1}, 2, 2")
    a(f"v_lshl_add_u32 v8, v{vT}, 3, v7")
    a(f"v_and_b32 v9, 3, v{vT1}")
    a(f"s_mul_i32 s12, s{sU}, 20480")
    a(f"s_add_u32 s12, s12, {L_WG}")
    for ct in range(4):
        for rd_ in range(2):
            a(f"v_add_u32 v10, {4 * rd_}, v8")
            a(f"v_lshrrev_b32 v11, 1, v9")
            a(f"v_add_u32 v11, {2 * ct}, v11")
            a(f"v_and_b32 v60, 7, v10") if False else None
            a(f"v_and_b32 v{vT}, 7, v10")
            a(f"v_xor_b32 v11, v11, v{vT}")
            a(f"v_lshlrev_b32 v11, 4, v11")
            a(f"v_lshl_add_u32 v11, v10, 7, v11")
            a(f"v_and_b32 v{vT}, 1, v9")
            a(f"v_lshl_add_u32 v11, v{vT}, 3, v11")
            a(f"v_add_u32 v{vWA + 2 * ct + rd_}, s12, v11")
    a(f"v_lshrrev_b32 v{vT}, 4, v{vT1}")
    a(f"v_min_u32 v{vXA}, 2, v9")
    a(f"v_mul_u32_u24 v{vXA}, 320, v{vXA}")
    a(f"v_lshl_add_u32 v{vXA}, v{vT}, 4, v{vXA}")
    a(f"v_add_u32 v{vXA}, s14, v{vXA}")
    a("s_waitcnt vmcnt(0) lgkmcnt(0)")
    vACC = 64
    for s_ in range(5 if not X("moe_nocomp") else 0):
        a(f"ds_read_b128 v[12:15], v{vXA} offset:{s_ * 64}")
        for ct in range(4):
            for rd_ in range(2):
                a(f"ds_read_b64_tr_b16 {vr(16 + 4 * ct + 2 * rd_, 2)}, v{vWA + 2 * ct + rd_} offset:{s_ * 4096}")
        if LOWM: a("s_setprio 0")
        for ct in range(4):
            a(f"s_waitcnt lgkmcnt({6 - 2 * ct})")
            c = "0" if s_ == 0 else vr(vACC + 4 * ct, 4)
            a(f"v_mfma_f32_16x16x32_bf16 {vr(vACC + 4 * ct, 4)}, {vr(16 + 4 * ct, 4)}, v[12:15], {c}")
            if SPACE: a(f"s_nop {SPACE - 1}")
    if LOWM:
        a("s_nop 7")
        a(f"s_setprio {HPRIO}")
    a(f"v_and_b32 v7, 15, v{vT1}")
    a(f"v_lshlrev_b32 v8, 8, v7")
    a(f"v_lshl_add_u32 v8, v{vT}, 4, v8")
    a("v_cmp_gt_u32 vcc, 3, v7")
    a(f"s_lshl_b32 s12, s{sM}, 1")
    a(f"s_add_u32 s12, s12, s{sU}")
    a("s_mul_i32 s12, s12, 768")
    a(f"s_add_u32 s12, s12, {GP_OFF}")
    a("s_mov_b64 s[52:53], vcc")
    a("s_nop 3")
    a("s_mov_b64 exec, s[52:53]")
    for ct in range(4):
        a(f"buffer_store_dwordx4 {vr(vACC + 4 * ct, 4)}, v8, {WS}, s12 offen offset:{64 * ct} sc1")
    a("s_mov_b64 exec, -1")
    a("s_waitcnt vmcnt(0)")
    a(f"v_mov_b32 v52, 1")
    a(f"v_mov_b32 v53, {F_U}")
    a(f"s_cmp_eq_u32 s{sU}, 0")
    a("s_cbranch_scc1 L_k2_gate")
    a("ds_write_b32 v53, v52")
    a("s_branch L_k2_ffn_done")
    a.label("L_k2_gate")
    spin(a, "L_wait_u", 53, 54, 12, 1, 13, sleep=2)
    a(f"s_lshr_b32 s12, s{sM}, 2")
    a("s_add_u32 s12, s12, 9")
    a("s_lshl_b32 s12, s12, 8")
    a(f"s_add_u32 s12, s12, {CNT_OFF}")
    a("v_mov_b32 v9, s12")
    a("s_mov_b64 exec, 1")
    a("global_atomic_add v9, v52, s[4:5]")
    a(f"s_mov_b32 s13, {SPIN_MAX}")
    a.label("L_k2_poll_cb")
    a("global_load_dword v10, v9, s[4:5] sc1")
    a("s_waitcnt vmcnt(0)")
    a("v_readfirstlane_b32 s14, v10")
    a("s_sub_u32 s13, s13, 1")
    a("s_cbranch_scc1 L_k2_poll_cb_done")
    a("s_cmp_ge_u32 s14, 4")
    a("s_cbranch_scc1 L_k2_poll_cb_done")
    a("s_sleep 8")
    a("s_branch L_k2_poll_cb")
    a.label("L_k2_poll_cb_done")
    a("s_mov_b64 exec, -1")
    a(f"s_andn2_b32 s12, s{sM}, 3")
    a("s_mul_i32 s12, s12, 1536")
    a(f"s_add_u32 s12, s12, {GP_OFF}")
    a("s_lshl_b32 s16, s17, 6")
    a("s_add_u32 s12, s12, s16")
    a("s_mov_b64 exec, s[52:53]")
    for kq in range(4):
        for mat in range(2):
            a(f"s_add_u32 s16, s12, {kq * 1536 + mat * 768}")
            a(f"buffer_load_dwordx4 {vr(12 + 16 * mat + 4 * kq, 4)}, v8, {WS}, s16 offen sc1")
    a("s_mov_b64 exec, -1")
    a(f"v_and_b32 v7, 15, v{vT1}")
    a("v_cmp_eq_u32 vcc, 0, v7")
    a("v_mov_b32 v8, s50")
    a("v_mov_b32 v9, s51")
    a("v_mov_b32 v10, s48")
    a("v_mov_b32 v11, s49")
    a("v_cndmask_b32 v8, v8, v10, vcc")
    a("v_cndmask_b32 v9, v9, v11, vcc")
    a("s_waitcnt vmcnt(0)")
    for mat in range(2):
        b0 = 12 + 16 * mat
        for r in range(4):
            a(f"v_add_f32 v{b0 + r}, v{b0 + r}, v{b0 + 4 + r}")
            a(f"v_add_f32 v{b0 + 8 + r}, v{b0 + 8 + r}, v{b0 + 12 + r}")
        for r in range(4):
            a(f"v_add_f32 v{b0 + r}, v{b0 + r}, v{b0 + 8 + r}")
        a("s_nop 1")
        for r in range(4):
            a(f"v_mov_b32_dpp v{b0 + 4 + r}, v{b0 + r} quad_perm:[2,2,2,2] row_mask:0xf bank_mask:0xf")
        for r in range(4):
            a(f"v_fma_f32 v{b0 + r}, -v8, v{b0 + 4 + r}, v{b0 + r}")
        for r in range(4):
            a(f"v_mul_f32 v{b0 + r}, v{b0 + r}, v9")
    vACC = 12
    for r in range(4):
        a(f"v_mul_f32 v{48 + r}, {hex(f2u(-LOG2E))}, v{vACC + r}")
    for r in range(4):
        a(f"v_exp_f32 v{48 + r}, v{48 + r}")
    for r in range(4):
        a(f"v_add_f32 v{48 + r}, 1.0, v{48 + r}")
    for r in range(4):
        a(f"v_rcp_f32 v{48 + r}, v{48 + r}")
    for r in range(4):
        a(f"v_mul_f32 v{vACC + r}, v{vACC + r}, v{28 + r}")
    for r in range(4):
        a(f"v_mul_f32 v{vACC + r}, v{vACC + r}, v{48 + r}")
    a(f"v_cvt_pk_bf16_f32 v44, v{vACC}, v{vACC+1}")
    a(f"v_cvt_pk_bf16_f32 v45, v{vACC+2}, v{vACC+3}")
    a(f"v_lshlrev_b32 v{vT}, 3, v{vT1}")
    a(f"v_add_u32 v{vT}, {L_H}, v{vT}")
    a(f"ds_write_b64 v{vT}, v[44:45]")
    a(f"v_mov_b32 v53, {F_H}")
    a("s_waitcnt lgkmcnt(0)")
    a(f"ds_write_b32 v53, v52")
    a("s_branch L_k2_ffn_done")
    a.label("L_k2_down")
    srd(a, SRD_W, 40, WD_BYTES)
    a(f"s_mul_i32 s15, s{sM}, 20480")
    for i in range(5 if not X("moe_nodma") else 0):
        a(f"s_mov_b32 m0, {L_WD + i * 4096}")
        a(f"s_add_u32 s16, s15, {i * 4096}")
        for j in range(4):
            a(f"buffer_load_dwordx4 v{vLANE16}, s[{SRD_W}:{SRD_W+3}], s16 offen offset:{1024 * j} lds")
    vDA, vYO, vH = 5, 6, 8
    a(f"v_lshrrev_b32 v{vT}, 4, v{vT1}")
    a(f"v_bfe_u32 v7, v{vT1}, 2, 2")
    a(f"v_lshl_add_u32 v{vDA}, v{vT}, 2, v7")
    a(f"v_mul_u32_u24 v{vDA}, 1280, v{vDA}")
    a(f"v_and_b32 v7, 3, v{vT1}")
    a(f"v_lshl_add_u32 v{vDA}, v7, 3, v{vDA}")
    a(f"v_add_u32 v{vDA}, {L_WD}, v{vDA}")
    a(f"v_and_b32 v7, 15, v{vT1}")
    a(f"v_mul_u32_u24 v{vYO}, 2560, v7")
    a(f"v_lshl_add_u32 v{vYO}, v{vT}, 4, v{vYO}")
    a(f"v_add_u32 v{vYO}, {L_XG}, v{vYO}")
    a("v_cmp_gt_u32 vcc, 2, v7")
    a(f"s_mul_i32 s15, s{sM}, 5120")
    a(f"s_add_u32 s15, s15, {YP_OFF}")
    a("s_mov_b64 s[48:49], vcc")
    a(f"v_lshlrev_b32 v{vT}, 3, v{vT1}")
    a(f"v_add_u32 v{vT}, {L_H}, v{vT}")
    a(f"v_mov_b32 v53, {F_H}")
    a("s_waitcnt vmcnt(0)")
    spin(a, "L_wait_h", 53, 54, 12, 1, 13, sleep=8)
    a(f"ds_read_b64 {vr(vH, 2)}, v{vT}")
    for grp in range(4 if not X("moe_nocomp") else 0):
        for k in range(10):
            a(f"ds_read_b64_tr_b16 {vr(12 + 2 * k, 2)}, v{vDA} offset:{32 * (10 * grp + k)}")
        a("s_waitcnt lgkmcnt(0)")
        if LOWM: a("s_setprio 0")
        for k in range(10):
            if X("down32"):
                a(f"v_mfma_f32_16x16x32_bf16 {vr(52 + 4 * k, 4)}, v[12:15], v[16:19], 0")
            elif not X("down_nomfma"):
                a(f"v_mfma_f32_16x16x16bf16_1k {vr(52 + 4 * k, 4)}, {vr(12 + 2 * k, 2)}, {vr(vH, 2)}, 0")
            if SPACE: a(f"s_nop {SPACE - 1}")
        a("s_nop 7")
        a("s_nop 1")
        if LOWM: a(f"s_setprio {HPRIO}")
        a("s_mov_b64 exec, s[48:49]")
        for k in range(10):
            a(f"ds_write_b128 v{vYO}, {vr(52 + 4 * k, 4)} offset:{64 * (10 * grp + k)}")
        a("s_mov_b64 exec, -1")
        a("s_waitcnt lgkmcnt(0)")
    a(f"v_add_u32 v{vT}, {L_XG}, v{vLANE16}")
    for i in range(5):
        a(f"ds_read_b128 {vr(12 + 4 * i, 4)}, v{vT} offset:{1024 * i}")
    a("s_waitcnt lgkmcnt(0)")
    for i in range(5):
        a(f"s_add_u32 s16, s15, {1024 * i}")
        a(f"buffer_store_dwordx4 {vr(12 + 4 * i, 4)}, v{vLANE16}, {WS}, s16 offen sc1")
    a("s_waitcnt vmcnt(0)")
    a(f"v_mov_b32 v7, {CNT_OFF + 8 * 256}")
    a("v_mov_b32 v8, 1")
    a("s_mov_b64 exec, 1")
    a("global_atomic_add v7, v8, s[4:5]")
    a("s_mov_b64 exec, -1")
    a.label("L_k2_ffn_done")
    ST(a, "ffn_done")
    a(f"v_mov_b32 v53, {F_MOE}")
    a(f"v_mov_b32 v52, 1")
    a("s_waitcnt lgkmcnt(0)")
    a("s_mov_b64 exec, 1")
    a("ds_add_u32 v53, v52")
    a("s_mov_b64 exec, -1")
    spin(a, "L_wait_moe", 53, 54, 12, 3, 13, sleep=8)
    a.label("L_k2_wo_prefetch")
    out_tile_ids(a)
    a(f"s_mul_i32 s12, s{sNT}, 102400")
    a(f"s_add_u32 s12, s12, {WO2_OFF}")
    a(f"s_sub_u32 s13, s{sW}, 9")
    for g in range(7):
        if g == 6:
            a("s_cmp_eq_u32 s13, 2")
            a("s_cbranch_scc1 L_k2_join")
        a(f"s_add_u32 s14, s13, {3 * g}")
        a("s_lshl_b32 s14, s14, 12")
        a(f"s_add_u32 m0, s14, {L_R}")
        a("s_add_u32 s14, s14, s12")
        for j in range(4):
            a(f"buffer_load_dwordx4 v{vLANE16}, {WS}, s14 offen offset:{1024 * j} lds")
    a("s_branch L_k2_join")

sMT, sNT = 44, 45
def out_tile_ids(a):
    a(f"s_bfe_u32 s{sMT}, s2, 0x20001")
    a(f"s_lshl_b32 s12, s{sQB}, 2")
    a(f"s_add_u32 s{sMT}, s{sMT}, s12")
    a(f"s_and_b32 s{sNT}, s2, 1")
    a(f"s_lshl_b32 s{sNT}, s{sNT}, 2")
    a("s_bfe_u32 s12, s2, 0x20003")
    a(f"s_add_u32 s{sNT}, s{sNT}, s12")

def projection(a):
    SRD_X, SRD_OUT = 56, 60
    sB1, sB2, sOBT = 42, 43, 46
    sCAND = 64
    vL16, vL16H, vL16H2 = vLANE16, 9, 3
    vTOK, vG, vT = 2, 8, 4
    vXO, vTOKG, vSTAT, vX = 10, 11, 12, 14
    vACC = 24
    vWF = (44, 64)
    vOF = 84
    a.label("L_k2_join")
    ST(a, "join")
    a("s_load_dwordx2 s[6:7], s[0:1], 0")
    a("s_load_dwordx2 s[36:37], s[0:1], 64")
    a(f"s_add_u32 s38, s4, {CAND_OFF}")
    a("s_addc_u32 s39, s5, 0")
    a(f"s_load_dwordx16 s[{sCAND}:{sCAND+15}], s[38:39], 0")
    a(f"s_load_dwordx16 s[{sCAND+16}:{sCAND+31}], s[38:39], 64")
    out_tile_ids(a)
    a("v_and_b32 v3, 63, v0")
    a("s_waitcnt vmcnt(0)")
    a("s_barrier")
    ST(a, "E1")
    a("s_waitcnt lgkmcnt(0)")
    srd(a, SRD_X, 6, X_BYTES)
    srd(a, SRD_OUT, 36, X_BYTES)
    a(f"s_cmp_eq_u32 s{sW}, 8")
    a("s_cbranch_scc1 L_k2_sync")
    a(f"s_cmp_ge_u32 s{sW}, 4")
    a("s_cbranch_scc1 L_k2_side")
    a(f"v_and_b32 v{vTOK}, 15, v3")
    a(f"v_lshrrev_b32 v{vG}, 4, v3")
    a(f"s_lshl_b32 s12, s{sMT}, 6")
    a(f"s_lshl_b32 s13, s{sW}, 4")
    a("s_add_u32 s12, s12, s13")
    a(f"v_add_u32 v{vTOKG}, s12, v{vTOK}")
    a(f"v_mul_u32_u24 v{vXO}, 1280, v{vTOKG}")
    a(f"v_lshl_add_u32 v{vXO}, v{vG}, 3, v{vXO}")
    a(f"s_mul_i32 s13, s{sNT}, 160")
    a(f"v_add_u32 v{vXO}, s13, v{vXO}")
    a(f"v_lshlrev_b32 v{vT+1}, 3, v{vTOKG}")
    a(f"s_mov_b32 s12, {ST_OFF}")
    a(f"buffer_load_dwordx2 {vr(vSTAT, 2)}, v{vT+1}, {WS}, s12 offen")
    for j in range(5):
        a(f"buffer_load_dwordx2 {vr(vX + 2 * j, 2)}, v{vXO}, s[{SRD_X}:{SRD_X+3}], 0 offen offset:{32 * j}")
    a(f"s_lshl_b32 s12, s{sMT}, 2")
    a(f"s_add_u32 s12, s12, s{sW}")
    a(f"s_mul_i32 s{sOBT}, s12, 20480")
    a(f"s_add_u32 s{sOBT}, s{sOBT}, {OB_OFF}")
    a(f"v_add_u32 v{vL16H}, {L_R}, v{vL16}")
    a(f"v_add_u32 v{vL16H2}, {L_R + 40960}, v{vL16}")
    for r in range(20):
        a(f"v_mov_b32 v{vACC + r}, 0")
    a("s_barrier")
    ST(a, "E2")
    for B in range(5):
        a(f"s_add_u32 s12, s{sOBT}, {B * 4096}")
        for k in range(4):
            a(f"buffer_load_dwordx4 {vr(vOF + 16 * B + 4 * k, 4)}, v{vL16}, {WS}, s12 offen offset:{1024 * k} sc1")
    def reads(st):
        f = vWF[st & 1]
        reg, off = (vL16H, st * 5120) if st < 8 else ((vL16H2, (st - 8) * 5120) if st < 16 else (vL16, (st - 16) * 5120))
        for j in range(5):
            a(f"ds_read_b128 {vr(f + 4 * j, 4)}, v{reg} offset:{off + 1024 * j}")
    def mfmas(st):
        f = vWF[st & 1]
        for j in range(5):
            a(f"v_mfma_f32_16x16x32_bf16 {vr(vACC + 4 * j, 4)}, {vr(f + 4 * j, 4)}, {vr(vOF + 4 * st, 4)}, {vr(vACC + 4 * j, 4)}")
    reads(0)
    for st in range(20):
        if st == 12:
            pass
        if st < 19:
            if st + 1 == 16:
                a("s_barrier")
            reads(st + 1)
        if st % 4 == 0:
            a(f"s_waitcnt vmcnt({16 - 4 * (st // 4)})")
        a(f"s_waitcnt lgkmcnt({5 if st < 19 else 0})")
        mfmas(st)
    ST(a, "gemm")
    a(f"v_lshlrev_b32 v{vT}, 4, v{vG}")
    a(f"v_add_u32 v{vT}, {L_Y}, v{vT}")
    a("s_waitcnt lgkmcnt(0)")
    top2_scalar(a, sCAND, sB1, sB2, 12)
    a(f"s_and_b32 s{sB1}, s{sB1}, 0x7ff")
    a(f"s_and_b32 s{sB2}, s{sB2}, 0x7ff")
    for sel, sB in ((0, sB1), (1, sB2)):
        lab = f"L_k2_noupd{sel}"
        a(f"s_lshr_b32 s12, s{sB}, 6")
        a(f"s_cmp_lg_u32 s12, s{sMT}")
        a(f"s_cbranch_scc1 {lab}")
        for j in range(5):
            a(f"ds_read_b128 {vr(vWF[0] + 4 * j, 4)}, v{vT} offset:{320 * sel + 64 * j}")
        a(f"v_cmp_eq_u32 vcc, s{sB}, v{vTOKG}")
        a("s_waitcnt lgkmcnt(0)")
        a("s_nop 1")
        for j in range(5):
            for r in range(4):
                a(f"v_cndmask_b32 v{vWF[0] + 4 * j + r}, 0, v{vWF[0] + 4 * j + r}, vcc")
                a(f"v_add_f32 v{vACC + 4 * j + r}, v{vACC + 4 * j + r}, v{vWF[0] + 4 * j + r}")
        a.label(lab)
    a("s_waitcnt vmcnt(0)")
    a("s_nop 7")
    a(f"v_add_f32 v{vT}, 1.0, v{vSTAT+1}")
    a(f"v_mul_f32 v{vT+1}, v{vSTAT}, v{vSTAT+1}")
    for j in range(5):
        for i in range(2):
            a(f"v_lshlrev_b32 v{vT+2}, 16, v{vX + 2 * j + i}")
            a(f"v_and_b32 v{vT+3}, 0xffff0000, v{vX + 2 * j + i}")
            a(f"v_fma_f32 v{vT+2}, v{vT+2}, v{vT}, -v{vT+1}")
            a(f"v_fma_f32 v{vT+3}, v{vT+3}, v{vT}, -v{vT+1}")
            a(f"v_add_f32 v{vT+2}, v{vT+2}, v{vACC + 4 * j + 2 * i}")
            a(f"v_add_f32 v{vT+3}, v{vT+3}, v{vACC + 4 * j + 2 * i + 1}")
            a(f"v_cvt_pk_bf16_f32 v{vX + 2 * j + i}, v{vT+2}, v{vT+3}")
        a(f"buffer_store_dwordx2 {vr(vX + 2 * j, 2)}, v{vXO}, s[{SRD_OUT}:{SRD_OUT+3}], 0 offen offset:{32 * j}")
    ST(a, "stores")
    if ST.on:
        a("s_waitcnt vmcnt(0)")
    ST(a, "end")
    ST.store(a)
    a("s_endpgm")

    a.label("L_k2_sync")
    ST(a, "E1b")
    a(f"s_lshl_b32 s12, s{sQB}, 8")
    a(f"s_add_u32 s12, s12, {CNT_OFF}")
    a("v_mov_b32 v4, s12")
    a("v_mov_b32 v5, 1")
    a("s_mov_b64 exec, 1")
    a("global_atomic_add v4, v5, s[4:5]")
    a(f"s_mov_b32 s13, {SPIN_MAX}")
    a.label("L_k2_poll")
    a("global_load_dword v6, v4, s[4:5] sc1")
    a("s_waitcnt vmcnt(0)")
    a("v_readfirstlane_b32 s14, v6")
    a("s_sub_u32 s13, s13, 1")
    a("s_cbranch_scc1 L_k2_poll_done")
    a("s_cmp_ge_u32 s14, 32")
    a("s_cbranch_scc1 L_k2_poll_done")
    a("s_sleep 2")
    a("s_branch L_k2_poll")
    a.label("L_k2_poll_done")
    a("s_mov_b64 exec, -1")
    ST(a, "polled")
    a("s_barrier")
    a("s_barrier")
    ST.store(a)
    if os.environ.get("DBG_SUMMARY"):
        summary(a)
    a("s_endpgm")

    a.label("L_k2_side")
    a(f"s_cmp_ge_u32 s{sW}, 8")
    a("s_cbranch_scc1 L_k2_side_b")
    a(f"s_sub_u32 s13, s{sW}, 4")
    a(f"s_mul_i32 s12, s{sNT}, 102400")
    a(f"s_add_u32 s12, s12, {WO2_OFF + 16 * 5120}")
    a("s_mul_i32 s14, s13, 5120")
    a("s_add_u32 s12, s12, s14")
    a("s_mov_b32 m0, s14")
    a("s_nop 0")
    for j in range(4):
        a(f"buffer_load_dwordx4 v{vL16}, {WS}, s12 offen offset:{1024 * j} lds")
    a("s_add_u32 m0, s14, 4096")
    a("s_add_u32 s12, s12, 4096")
    a(f"buffer_load_dwordx4 v{vL16}, {WS}, s12 offen lds")
    top2_scalar(a, sCAND, sB1, sB2, 12)
    a(f"s_and_b32 s{sB1}, s{sB1}, 0x7ff")
    a(f"s_and_b32 s{sB2}, s{sB2}, 0x7ff")
    a(f"s_lshr_b32 s12, s{sB1}, 6")
    a(f"s_lshr_b32 s13, s{sB2}, 6")
    a(f"s_cmp_eq_u32 s12, s{sMT}")
    a("s_cbranch_scc1 L_k2_routed")
    a(f"s_cmp_eq_u32 s13, s{sMT}")
    a("s_cbranch_scc1 L_k2_routed")
    a("s_waitcnt vmcnt(0)")
    a("s_barrier")
    a("s_barrier")
    ST.store(a)
    a("s_endpgm")
    a.label("L_k2_routed")
    routed(a, sB1, sB2)
    a.label("L_k2_side_b")
    a("s_barrier")
    a("s_barrier")
    ST.store(a)
    a("s_endpgm")

def routed(a, sB1, sB2):
    vT, vY = 4, 20
    a(f"v_mov_b32 v7, {F_ALL}")
    spin(a, "L_rt_all", 7, 6, 14, 1, 15)
    a(f"v_subrev_u32 v{vT}, 256, v0")
    a(f"v_mul_u32_u24 v{vT+1}, 52429, v{vT}")
    a(f"v_lshrrev_b32 v{vT+1}, 20, v{vT+1}")
    a(f"v_mul_u32_u24 v{vT+2}, 20, v{vT+1}")
    a(f"v_sub_u32 v{vT+2}, v{vT}, v{vT+2}")
    a(f"v_mul_u32_u24 v8, {8 * 5120}, v{vT+1}")
    a(f"v_lshl_add_u32 v8, v{vT+2}, 4, v8")
    a(f"v_mul_u32_u24 v9, 320, v{vT+1}")
    a(f"v_lshl_add_u32 v9, v{vT+2}, 4, v9")
    a(f"v_add_u32 v9, {L_RED}, v9")
    a(f"v_lshlrev_b32 v10, 2, v{vT}")
    a(f"v_mov_b32 v11, {F_RT}")
    a("v_mov_b32 v12, 1")
    for sel, sB in ((0, sB1), (1, sB2)):
        lab = f"L_k2_rt_skip{sel}"
        a(f"s_lshr_b32 s12, s{sB}, 6")
        a(f"s_cmp_lg_u32 s12, s{sMT}")
        a(f"s_cbranch_scc1 {lab}")
        a(f"s_lshl_b32 s12, s{sB}, 2")
        a("s_add_u32 s38, s4, s12")
        a("s_addc_u32 s39, s5, 0")
        a(f"s_add_u32 s38, s38, {R_OFF}")
        a("s_addc_u32 s39, s39, 0")
        a("s_load_dword s40, s[38:39], 0")
        a(f"s_mul_i32 s12, s{sNT}, 320")
        a(f"s_add_u32 s12, s12, {YP_OFF + sel * 2560}")
        a(f"v_cmp_gt_u32 vcc, 240, v{vT}")
        a("s_and_saveexec_b64 s[48:49], vcc")
        for i in range(8):
            a(f"s_add_u32 s13, s12, {i * 5120}")
            a(f"buffer_load_dwordx4 {vr(vY + 4 * i, 4)}, v8, {WS}, s13 offen sc1")
        a("s_waitcnt vmcnt(0)")
        for i in range(1, 8):
            for r in range(4):
                a(f"v_add_f32 v{vY + r}, v{vY + r}, v{vY + 4 * i + r}")
        a(f"ds_write_b128 v9, {vr(vY, 4)}")
        a("s_mov_b64 exec, s[48:49]")
        a("s_waitcnt lgkmcnt(0)")
        a("s_mov_b64 exec, 1")
        a(f"ds_add_u32 v11, v12 offset:{8 * sel}")
        a("s_mov_b64 exec, -1")
        a(f"v_add_u32 v13, {8 * sel}, v11")
        spin(a, f"L_rt_a{sel}", 13, 14, 14, 4, 15)
        a(f"v_add_u32 v13, {L_RED}, v10")
        a(f"v_cmp_gt_u32 vcc, 80, v{vT}")
        a("s_and_saveexec_b64 s[48:49], vcc")
        a(f"s_cbranch_execz L_k2_rt_c{sel}")
        for p in range(12):
            a(f"ds_read_b32 v{vY + p}, v13 offset:{320 * p}")
        a("v_mov_b32 v15, s40")
        a(f"v_mul_f32 v15, {hex(f2u(-LOG2E))}, v15")
        a("v_exp_f32 v15, v15")
        a("s_nop 0")
        a("v_add_f32 v15, 1.0, v15")
        a("v_rcp_f32 v15, v15")
        a("s_waitcnt lgkmcnt(0)")
        for p in range(1, 12):
            a(f"v_add_f32 v{vY}, v{vY}, v{vY + p}")
        a(f"v_mul_f32 v{vY}, v{vY}, v15")
        a(f"v_add_u32 v13, {L_Y + 320 * sel}, v10")
        a(f"ds_write_b32 v13, v{vY}")
        a.label(f"L_k2_rt_c{sel}")
        a("s_mov_b64 exec, s[48:49]")
        a("s_waitcnt lgkmcnt(0)")
        a("s_mov_b64 exec, 1")
        a(f"ds_add_u32 v11, v12 offset:{8 * sel + 4}")
        a("s_mov_b64 exec, -1")
        a(f"v_add_u32 v13, {8 * sel + 4}, v11")
        spin(a, f"L_rt_b{sel}", 13, 14, 14, 4, 15)
        a.label(lab)
    a("s_waitcnt vmcnt(0)")

def emit(a):
    entry(a)
    attention(a)
    helpers(a)
    projection(a)
    a.label("L_k2_exit")
    a("s_endpgm")


def summary(a):
    import k1
    a("s_mov_b64 exec, -1")
    a("s_cmp_lg_u32 s2, 0")
    a("s_cbranch_scc1 L_sum_end")
    a("s_load_dwordx2 s[34:35], s[0:1], 72")
    a("s_waitcnt lgkmcnt(0)")
    a(f"s_mov_b32 s{SRD_WS + 2}, 0x2000000")
    a("v_and_b32 v3, 63, v0")
    names = ["entry", "B0", "loopend", "e_bar", "stores", "end"]
    a("v_mov_b32 v40, -1")
    for i in range(1, 8):
        a(f"v_mov_b32 v{40 + i}, 0")
    for q in range(4):
        a(f"v_add_u32 v4, {64 * q}, v3")
        a("v_lshlrev_b32 v5, 11, v4")
        a(f"s_mov_b32 s12, {PROF_OFF + 64}")
        for i, nm in enumerate(names):
            a(f"buffer_load_dword v{10 + i}, v5, {WS}, s12 offen offset:{4 * k1.ST.names.index(nm)}")
        a(f"buffer_load_dword v16, v5, {WS}, s12 offen offset:{4 * k1.ST.names.index('e_lds')}")
        a("s_waitcnt vmcnt(0)")
        a("v_and_b32 v6, 0xe4, v4")
        a("v_cmp_eq_u32 vcc, 0xe4, v6")
        a("s_nop 1")
        a("v_min_u32 v40, v40, v10")
        for i in range(1, 6):
            a(f"v_cndmask_b32 v{10 + i}, v{10 + i}, 0, vcc")
            a(f"v_max_u32 v{40 + i}, v{40 + i}, v{10 + i}")
        a("v_cndmask_b32 v16, 0, v16, vcc")
        a("v_max_u32 v46, v46, v16")
    vals = [40, 41, 42, 43, 44, 45, 46]
    for x in (1, 2, 4, 8, 16, 32):
        a(f"v_xor_b32 v6, {x}, v3")
        a("v_lshlrev_b32 v6, 2, v6")
        for r in vals:
            a(f"ds_bpermute_b32 v20, v6, v{r}")
            a("s_waitcnt lgkmcnt(0)")
            a(f"v_{'min' if r == 40 else 'max'}_u32 v{r}, v{r}, v20")
    for k_, nm in enumerate(["entry", "join", "E1", "polled"]):
        a(f"v_readlane_b32 s12, v{ST.vt + 1}, {ST.names.index(nm)}")
        a("s_nop 3")
        a(f"v_mov_b32 v{50 + k_}, s12")
    a("s_memrealtime s[12:13]")
    a("s_waitcnt lgkmcnt(0)")
    a("v_mov_b32 v54, s12")
    a("v_mov_b32 v7, 0")
    a("s_mov_b64 exec, 1")
    for k_, r in enumerate([41, 42, 43, 44, 45, 46, 50, 51, 52, 53, 54]):
        a(f"v_sub_u32 v20, v{r}, v40")
        a(f"global_store_dword v7, v20, s[34:35] offset:{4 * k_}")
    a("s_waitcnt vmcnt(0)")
    a.label("L_sum_end")
```

```python
from common import *
import os

NWG = 96
GRID = 256 + NWG
L_WG, L_WU, L_WD, L_X, L_RED = 0, 20480, 40960, 61440, 65280

def top2_scalar(a, base, b1, b2, t):
    a(f"s_max_u32 s{b1}, s{base}, s{base+1}")
    a(f"s_min_u32 s{b2}, s{base}, s{base+1}")
    for i in range(2, 32):
        a(f"s_min_u32 s{t}, s{b1}, s{base+i}")
        a(f"s_max_u32 s{b2}, s{b2}, s{t}")
        a(f"s_max_u32 s{b1}, s{b1}, s{base+i}")

def moe(a):
    from k2 import ST
    SRD_WS, SRD_X, SRD_G, SRD_U, SRD_D = 8, 12, 16, 20, 24
    sW, sM, sT0, sT1, sT2 = 28, 29, 30, 31, 32
    sB1, sB2 = 33, 34
    sCAND = 64
    vLANE, vL16, vT = 1, 2, 3
    a(f"s_cmp_ge_u32 s2, {GRID}")
    a("s_cbranch_scc1 L_moe_exit")
    ST(a, "entry")
    a("s_load_dwordx2 s[4:5], s[0:1], 80")
    a("s_load_dwordx2 s[6:7], s[0:1], 0")
    a("s_load_dwordx4 s[36:39], s[0:1], 40")
    a("s_load_dwordx2 s[40:41], s[0:1], 56")
    a(f"v_lshrrev_b32 v{vT}, 6, v0")
    a(f"v_and_b32 v{vLANE}, 63, v0")
    a(f"v_readfirstlane_b32 s{sW}, v{vT}")
    a(f"v_lshlrev_b32 v{vL16}, 4, v{vLANE}")
    a(f"s_sub_u32 s{sT0}, s2, 256")
    a(f"s_and_b32 s{sM}, s{sT0}, 7")
    a(f"s_mul_i32 s{sM}, s{sM}, 12")
    a(f"s_lshr_b32 s{sT0}, s{sT0}, 3")
    a(f"s_add_u32 s{sM}, s{sM}, s{sT0}")
    a("s_waitcnt lgkmcnt(0)")
    srd(a, SRD_WS, 4, WS_SRD)
    srd(a, SRD_X, 6, X_BYTES)
    srd(a, SRD_G, 36, WG_BYTES)
    srd(a, SRD_U, 38, WG_BYTES)
    srd(a, SRD_D, 40, WD_BYTES)
    a(f"s_add_u32 s42, s4, {CAND_OFF}")
    a("s_addc_u32 s43, s5, 0")
    a(f"s_load_dwordx16 s[{sCAND}:{sCAND+15}], s[42:43], 0")
    a(f"s_load_dwordx16 s[{sCAND+16}:{sCAND+31}], s[42:43], 64")
    a("s_waitcnt lgkmcnt(0)")
    top2_scalar(a, sCAND, sB1, sB2, sT0)
    a(f"s_and_b32 s{sB1}, s{sB1}, 0x7ff")
    a(f"s_and_b32 s{sB2}, s{sB2}, 0x7ff")
    for k, sB in ((0, sB1), (1, sB2)):
        a(f"s_lshl_b32 s{sT0}, s{sB}, 3")
        a(f"s_add_u32 s42, s4, s{sT0}")
        a("s_addc_u32 s43, s5, 0")
        a(f"s_add_u32 s42, s42, {ST_OFF}")
        a("s_addc_u32 s43, s43, 0")
        a(f"s_load_dwordx2 s[{44 + 2 * k}:{45 + 2 * k}], s[42:43], 0")
    a(f"s_cmp_lg_u32 s{sW}, 7")
    a("s_cbranch_scc1 L_moe_norow")
    for k, sB in ((0, sB1), (1, sB2)):
        a(f"s_mul_i32 s{sT0}, s{sB}, 1280")
        a(f"s_mov_b32 m0, {L_X + 1280 * k}")
        a("s_nop 0")
        a(f"buffer_load_dwordx4 v{vL16}, s[{SRD_X}:{SRD_X+3}], s{sT0} offen lds")
        a("s_mov_b64 exec, 0xffff")
        a(f"buffer_load_dwordx4 v{vL16}, s[{SRD_X}:{SRD_X+3}], s{sT0} offen offset:1024 lds")
        a("s_mov_b64 exec, -1")
    a.label("L_moe_norow")
    a(f"s_cmp_lg_u32 s{sW}, 6")
    a("s_cbranch_scc1 L_moe_noone")
    for r in range(4):
        a(f"v_mov_b32 v{8 + r}, 0x3f803f80")
    a(f"v_add_u32 v{vT}, {L_X + 2560}, v{vL16}")
    a(f"ds_write_b128 v{vT}, v[8:11]")
    a("s_mov_b64 exec, 0xffff")
    a(f"ds_write_b128 v{vT}, v[8:11] offset:1024")
    a("s_mov_b64 exec, -1")
    a.label("L_moe_noone")
    if "nomoe" in os.environ.get("K2_EXP", ""):
        a("s_branch L_moe_dma_done")
    vG = 4
    a(f"v_lshrrev_b32 v{vT}, 1, v{vLANE}")
    a(f"v_mul_u32_u24 v{vG}, 3072, v{vT}")
    a(f"v_and_b32 v{vT}, 1, v{vLANE}")
    a(f"v_lshl_add_u32 v{vG}, v{vT}, 4, v{vG}")
    for i in range(3):
        if i == 2:
            a(f"s_cmp_ge_u32 s{sW}, 4")
            a("s_cbranch_scc1 L_moe_dma_done")
        a(f"s_add_u32 s{sT0}, s{sW}, {8 * i}")
        a(f"s_mul_i32 s{sT1}, s{sT0}, {32 * 3072}")
        a(f"s_lshl_b32 s{sT2}, s{sM}, 5")
        a(f"s_add_u32 s{sT1}, s{sT1}, s{sT2}")
        a(f"s_lshl_b32 s{sT0}, s{sT0}, 10")
        if "moelin" in os.environ.get("K2_EXP", ""):
            a(f"s_mul_i32 s{sT1}, s{sM}, 20480")
            a(f"s_add_u32 s{sT1}, s{sT1}, s{sT0}")
            a(f"v_mov_b32 v{vG}, v{vL16}")
        a(f"s_add_u32 m0, s{sT0}, {L_WG}")
        a(f"s_mul_i32 s{sT2}, s{sM}, {16 * 1280}")
        a(f"buffer_load_dwordx4 v{vG}, s[{SRD_G}:{SRD_G+3}], s{sT1} offen lds")
        a(f"s_add_u32 m0, s{sT0}, {L_WU}")
        a(f"s_add_u32 s{sT2}, s{sT2}, s{sT0}")
        a(f"buffer_load_dwordx4 v{vG}, s[{SRD_U}:{SRD_U+3}], s{sT1} offen lds")
        a(f"s_add_u32 m0, s{sT0}, {L_WD}")
        a("s_nop 0")
        a(f"buffer_load_dwordx4 v{vL16}, s[{SRD_D}:{SRD_D+3}], s{sT2} offen lds")
    a.label("L_moe_dma_done")
    a("s_waitcnt vmcnt(0) lgkmcnt(0)")
    a("s_barrier")
    a(f"s_cmp_ge_u32 s{sW}, 4")
    a("s_cbranch_scc1 L_moe_exit")
    a(f"s_cmp_ge_u32 s{sW}, 2")
    a("s_cbranch_scc1 L_moe_down_wait")
    vWA, vXA, vF, vACC = 5, 6, 12, 40
    a(f"v_lshrrev_b32 v{vT}, 4, v{vLANE}")
    a(f"v_bfe_u32 v7, v{vLANE}, 2, 2")
    a(f"v_lshl_add_u32 v{vWA}, v{vT}, 3, v7")
    a(f"v_lshlrev_b32 v{vWA}, 5, v{vWA}")
    a(f"v_and_b32 v7, 3, v{vLANE}")
    a(f"v_lshl_add_u32 v{vWA}, v7, 3, v{vWA}")
    a(f"s_mul_i32 s{sT0}, s{sW}, {L_WU}")
    a(f"v_add_u32 v{vWA}, s{sT0}, v{vWA}")
    a(f"v_min_u32 v{vXA}, 2, v7")
    a(f"v_mul_u32_u24 v{vXA}, 1280, v{vXA}")
    a(f"v_lshl_add_u32 v{vXA}, v{vT}, 4, v{vXA}")
    a(f"v_add_u32 v{vXA}, {L_X}, v{vXA}")
    def rd(s_):
        f = vF + 8 * (s_ % 3)
        a(f"ds_read_b64_tr_b16 {vr(f, 2)}, v{vWA} offset:{s_ * 1024}")
        a(f"ds_read_b64_tr_b16 {vr(f + 2, 2)}, v{vWA} offset:{s_ * 1024 + 128}")
        a(f"ds_read_b128 {vr(f + 4, 4)}, v{vXA} offset:{s_ * 64}")
    rd(0); rd(1)
    for s_ in range(20):
        f = vF + 8 * (s_ % 3)
        if s_ + 2 < 20:
            rd(s_ + 2)
            a("s_waitcnt lgkmcnt(6)")
        else:
            a(f"s_waitcnt lgkmcnt({3 * (19 - s_)})")
        c = "0" if s_ == 0 else vr(vACC, 4)
        a(f"v_mfma_f32_16x16x32_bf16 {vr(vACC, 4)}, {vr(f, 4)}, {vr(f + 4, 4)}, {c}")
    a(f"v_and_b32 v7, 15, v{vLANE}")
    a("v_cmp_eq_u32 vcc, 0, v7")
    a("v_mov_b32 v8, s46")
    a("v_mov_b32 v9, s47")
    a("v_mov_b32 v10, s44")
    a("v_mov_b32 v11, s45")
    a("v_cndmask_b32 v8, v8, v10, vcc")
    a("v_cndmask_b32 v9, v9, v11, vcc")
    a("s_nop 1")
    for r in range(4):
        a(f"v_mov_b32_dpp v{44 + r}, v{vACC + r} quad_perm:[2,2,2,2] row_mask:0xf bank_mask:0xf")
    for r in range(4):
        a(f"v_fma_f32 v{vACC + r}, -v8, v{44 + r}, v{vACC + r}")
    for r in range(4):
        a(f"v_mul_f32 v{vACC + r}, v{vACC + r}, v9")
    a(f"v_add_u32 v{vT}, {L_RED}, v{vL16}")
    a(f"s_cmp_eq_u32 s{sW}, 0")
    a("s_cbranch_scc1 L_moe_gate")
    a(f"ds_write_b128 v{vT}, {vr(vACC, 4)}")
    a("s_waitcnt lgkmcnt(0)")
    a("s_barrier")
    a("s_endpgm")
    a.label("L_moe_gate")
    a("s_barrier")
    a(f"ds_read_b128 v[44:47], v{vT}")
    for r in range(4):
        a(f"v_mul_f32 v{48 + r}, {hex(f2u(-LOG2E))}, v{vACC + r}")
    for r in range(4):
        a(f"v_exp_f32 v{48 + r}, v{48 + r}")
    for r in range(4):
        a(f"v_add_f32 v{48 + r}, 1.0, v{48 + r}")
    for r in range(4):
        a(f"v_rcp_f32 v{48 + r}, v{48 + r}")
    a("s_waitcnt lgkmcnt(0)")
    for r in range(4):
        a(f"v_mul_f32 v{vACC + r}, v{vACC + r}, v{44 + r}")
    for r in range(4):
        a(f"v_mul_f32 v{vACC + r}, v{vACC + r}, v{48 + r}")
    a(f"v_cvt_pk_bf16_f32 v44, v{vACC}, v{vACC+1}")
    a(f"v_cvt_pk_bf16_f32 v45, v{vACC+2}, v{vACC+3}")
    a(f"v_lshlrev_b32 v{vT}, 3, v{vLANE}")
    a(f"v_add_u32 v{vT}, {L_RED + 1024}, v{vT}")
    a(f"ds_write_b64 v{vT}, v[44:45]")
    a("s_waitcnt lgkmcnt(0)")
    a("s_barrier")
    a("s_endpgm")
    a.label("L_moe_down_wait")
    vDA, vYO, vH = 5, 6, 8
    a(f"v_lshrrev_b32 v{vT}, 4, v{vLANE}")
    a(f"v_bfe_u32 v7, v{vLANE}, 2, 2")
    a(f"v_lshl_add_u32 v{vDA}, v{vT}, 2, v7")
    a(f"v_mul_u32_u24 v{vDA}, 1280, v{vDA}")
    a(f"v_and_b32 v7, 3, v{vLANE}")
    a(f"v_lshl_add_u32 v{vDA}, v7, 3, v{vDA}")
    a(f"s_sub_u32 s{sT2}, s{sW}, 2")
    a(f"s_mul_i32 s{sT0}, s{sT2}, 640")
    a(f"s_add_u32 s{sT1}, s{sT0}, {L_WD}")
    a(f"v_add_u32 v{vDA}, s{sT1}, v{vDA}")
    a(f"v_and_b32 v7, 15, v{vLANE}")
    a(f"v_mul_u32_u24 v{vYO}, 2560, v7")
    a(f"v_lshl_add_u32 v{vYO}, v{vT}, 4, v{vYO}")
    a("v_cmp_gt_u32 vcc, 2, v7")
    a(f"s_mul_i32 s{sT0}, s{sM}, 5120")
    a(f"s_mul_i32 s{sT1}, s{sT2}, 1280")
    a(f"s_add_u32 s{sT0}, s{sT0}, s{sT1}")
    a(f"s_add_u32 s{sT0}, s{sT0}, {YP_OFF}")
    a("s_mov_b64 s[48:49], vcc")
    for nt in range(20):
        a(f"ds_read_b64_tr_b16 {vr(12 + 2 * nt, 2)}, v{vDA} offset:{32 * nt}")
        if nt == 14:
            a("s_waitcnt lgkmcnt(8)")
    a(f"v_lshlrev_b32 v{vT}, 3, v{vLANE}")
    a(f"v_add_u32 v{vT}, {L_RED + 1024}, v{vT}")
    a("s_barrier")
    a("s_barrier")
    a(f"ds_read_b64 {vr(vH, 2)}, v{vT}")
    a("s_waitcnt lgkmcnt(0)")
    for half in range(2):
        for k in range(10):
            nt = 10 * half + k
            a(f"v_mfma_f32_16x16x16bf16_1k {vr(52 + 4 * k, 4)}, {vr(12 + 2 * nt, 2)}, {vr(vH, 2)}, 0")
        a("s_nop 7")
        a("s_nop 1")
        a("s_mov_b64 exec, s[48:49]")
        for k in range(10):
            a(f"buffer_store_dwordx4 {vr(52 + 4 * k, 4)}, v{vYO}, s[{SRD_WS}:{SRD_WS+3}], s{sT0} offen offset:{64 * (10 * half + k)}")
        a("s_mov_b64 exec, -1")
        if half == 0:
            a("s_nop 1")
    if ST.on:
        a("s_waitcnt vmcnt(0)")
    ST(a, "end")
    ST.store(a, sW, SRD_WS)
    a.label("L_moe_exit")

REP = dict(SRD_WS=16, SRD_WO=60, sNT=48, sKH=49, vG=2, vWD=140, vWA=117, vWT=118, vL16=145)

def repack_setup(a, sIDX):
    SRD_WO, sNT, sKH, vG, vWD, vL16 = (REP[k_] for k_ in ("SRD_WO", "sNT", "sKH", "vG", "vWD", "vL16"))
    vLANE, vT = 1, 4
    a(f"s_lshr_b32 s{sNT}, s{sIDX}, 1")
    a(f"s_and_b32 s{sKH}, s{sIDX}, 1")
    a(f"v_lshlrev_b32 v{vL16}, 4, v{vLANE}")
    for r5 in range(5):
        a(f"v_add_u32 v{vT}, {r5 * 1024}, v{vL16}")
        a(f"v_mul_u32_u24 v{vT+1}, 52429, v{vT}")
        a(f"v_lshrrev_b32 v{vT+1}, 23, v{vT+1}")
        a(f"v_mul_u32_u24 v{vT+2}, 160, v{vT+1}")
        a(f"v_sub_u32 v{vT+2}, v{vT}, v{vT+2}")
        a(f"v_mul_u32_u24 v{vT+1}, 1280, v{vT+1}")
        a(f"v_add_u32 v{vWD + r5}, v{vT+1}, v{vT+2}")
    srd(a, SRD_WO, 6, WO_BYTES)
    a(f"s_mul_i32 s50, s{sKH}, {320 * 1280}")
    a(f"s_mul_i32 s51, s{sNT}, 160")
    a("s_add_u32 s50, s50, s51")

def repack_request(a, sW, rnd):
    SRD_WO, vWD = REP["SRD_WO"], REP["vWD"]
    a(f"s_add_u32 s51, s{sW}, {2 * rnd}")
    a(f"s_mul_i32 s27, s51, {32 * 1280}")
    a("s_add_u32 s27, s27, s50")
    a("s_mul_i32 s28, s51, 5120")
    for r5 in range(5):
        a(f"s_add_u32 m0, s28, {r5 * 1024}")
        a("s_nop 0")
        a(f"buffer_load_dwordx4 v{vWD + r5}, s[{SRD_WO}:{SRD_WO+3}], s27 offen lds")

def repack_finish(a, sW, exit_label):
    SRD_WS, sNT, sKH, vWA, vWT, vL16 = (REP[k_] for k_ in ("SRD_WS", "sNT", "sKH", "vWA", "vWT", "vL16"))
    vLANE, vG, vT, sT0, sT1 = 1, 2, 4, 24, 25
    a(f"v_lshrrev_b32 v{vG}, 4, v{vLANE}")
    a(f"v_bfe_u32 v{vT}, v{vLANE}, 2, 2")
    a(f"v_and_b32 v{vT+1}, 3, v{vLANE}")
    a(f"v_lshrrev_b32 v{vT+2}, 1, v{vG}")
    a(f"v_mul_u32_u24 v{vT+2}, 20, v{vT+2}")
    a(f"v_and_b32 v{vT+3}, 1, v{vG}")
    a(f"v_lshl_add_u32 v{vT+2}, v{vT+3}, 2, v{vT+2}")
    a(f"v_add_u32 v{vT+2}, v{vT+2}, v{vT}")
    a(f"v_mul_u32_u24 v{vWA}, 160, v{vT+2}")
    a(f"v_lshl_add_u32 v{vWA}, v{vT+1}, 3, v{vWA}")
    a(f"v_mul_u32_u24 v{vT+2}, 20, v{vG}")
    a(f"v_add3_u32 v{vT+2}, v{vT+2}, v{vT}, 16")
    a(f"v_mul_u32_u24 v{vWT}, 160, v{vT+2}")
    a(f"v_lshl_add_u32 v{vWT}, v{vT+1}, 3, v{vWT}")
    a(f"s_lshl_b32 s{sT0}, s{sW}, 5")
    a(f"v_add_u32 v{vWA}, s{sT0}, v{vWA}")
    a(f"v_add_u32 v{vWT}, s{sT0}, v{vWT}")
    a(f"s_mul_i32 s{sT0}, s{sNT}, 20")
    a(f"s_mul_i32 s{sT1}, s{sKH}, 10")
    a(f"s_add_u32 s{sT0}, s{sT0}, s{sT1}")
    a(f"s_mul_i32 s{sT0}, s{sT0}, 5")
    a(f"s_add_u32 s{sT0}, s{sT0}, s{sW}")
    a(f"s_lshl_b32 s{sT0}, s{sT0}, 10")
    a(f"s_add_u32 s29, s{sT0}, {WO2_OFF}")
    a("s_waitcnt vmcnt(0)")
    a("s_barrier")
    a(f"s_cmp_ge_u32 s{sW}, 5")
    a(f"s_cbranch_scc1 {exit_label}")
    for st in range(10):
        G8, s_ = st // 5, st % 5
        f = 16 + 4 * st
        if s_ < 4:
            base = (160 * G8 + 40 * s_) * 160
            a(f"ds_read_b64_tr_b16 {vr(f, 2)}, v{vWA} offset:{base}")
            a(f"ds_read_b64_tr_b16 {vr(f + 2, 2)}, v{vWA} offset:{base + 8 * 160}")
        else:
            base = 160 * G8 * 160
            a(f"ds_read_b64_tr_b16 {vr(f, 2)}, v{vWT} offset:{base}")
            a(f"ds_read_b64_tr_b16 {vr(f + 2, 2)}, v{vWT} offset:{base + 80 * 160}")
    a("s_waitcnt lgkmcnt(0)")
    for st in range(10):
        a(f"s_add_u32 s{sT0}, s29, {st * 5120}")
        a(f"buffer_store_dwordx4 {vr(16 + 4 * st, 4)}, v{vL16}, s[{SRD_WS}:{SRD_WS+3}], s{sT0} offen")
    a("s_endpgm")
```

```python
import itertools

def tile_units(n5):
    pairs, singles = [], []
    s = 0
    while s < 16:
        G = 16 * n5 + s
        if G % 5 in (0, 3) and s + 1 < 16:
            pairs.append((s, s + 1)); s += 2
        else:
            singles.append(s); s += 1
    return pairs, singles

def conflicts(four):
    return 4 - len({x & 3 for x in four})

def table(n5):
    pairs, singles = tile_units(n5)
    assert len(pairs) == 6 and len(singles) == 4, (n5, pairs, singles)
    best = None
    for pp in itertools.permutations(pairs):
        if pp[0] > pp[1] and False:
            continue
        for ss in itertools.permutations(singles):
            t = [[list(pp[0] + pp[1]), list(pp[2]) + [ss[0], ss[1]]], [list(pp[3] + pp[4]), list(pp[5]) + [ss[2], ss[3]]]]
            c = sum(conflicts(t[w][k]) for w in range(2) for k in range(2))
            if best is None or c < best[0]:
                best = (c, t)
                if c == 0:
                    return t
    return best[1]

TABLES = [table(n) for n in range(5)]
def packed(n5, wc):
    v = 0
    for ct in range(2):
        for g in range(4):
            v |= TABLES[n5][wc][ct][g] << (16 * ct + 4 * g)
    return v

if __name__ == "__main__":
    for n in range(5):
        t = TABLES[n]
        print(n, tile_units(n), t, [conflicts(t[w][k]) for w in range(2) for k in range(2)], [hex(packed(n, w)) for w in range(2)])
```

```python
from common import *
import os
import slots

NAME = "qkv_kernel"
LDS = 131072 + 2048
VGPRS = 152 if prof_on("k1") else 144
LOCAL_STATS = os.environ.get("K1_STATS", "local") == "local"
BLOCK = 768 if LOCAL_STATS else 576

SRD_X, SRD_W, SRD_WS = 8, 12, 16
sW, sMT, sNT = 20, 21, 22
sROW0 = 23
sT0, sT1, sT2, sT3 = 24, 25, 26, 27
sSEC, sHS, sTS, sSCALE = 28, 29, 30, 31
sTA, sTB = 32, 33
sWR, sWC = 34, 35
sTBL, sN5 = 44, 45
ST_NM, ST_RS, ST_CS = 131072, 131072 + 512, 131072 + 1024

vLANE, vTOK, vH = 1, 2, 3
vT = 4
vXA = 8
vXB = 12
vWA, vWB = 16, 17
vS1, vS2, vCS, vONE = 28, 29, 30, 31
vSEL = 136
vCSA = 140
vF = (32, 48)
vACC = 64
vOFF = 128
vE = 24

ST = StampsLane("k1", 20, 16, 148)
def X(flag):
    return flag in os.environ.get("K1_EXP", "").split(",")

STF = {"": "", "sc1": " sc1", "nt": " nt", "sc01": " sc0 sc1"}[os.environ.get("K1_ST", "")]

def acc(a_, b_):
    return vACC + 32 * a_ + 16 * b_

def entry(a):
    kernel_header(a, NAME)
    ST(a, "entry")
    a("s_cmp_ge_u32 s2, 256")
    a("s_cbranch_scc1 L_k1_exit")
    a("s_load_dwordx4 s[4:7], s[0:1], 0")
    a("s_load_dwordx2 s[36:37], s[0:1], 80")
    a("s_load_dwordx2 s[38:39], s[0:1], 32")
    a(f"v_lshrrev_b32 v{vT}, 6, v0")
    a(f"v_and_b32 v{vLANE}, 63, v0")
    a(f"v_readfirstlane_b32 s{sW}, v{vT}")
    MAP = os.environ.get("K1_MAP", "4x8")
    if MAP == "4x8":
        a(f"s_and_b32 s{sT0}, s2, 3")
        a(f"s_lshl_b32 s{sT0}, s{sT0}, 2")
        a(f"s_bfe_u32 s{sT1}, s2, 0x20003")
        a(f"s_or_b32 s{sMT}, s{sT0}, s{sT1}")
        a(f"s_bfe_u32 s{sT0}, s2, 0x10002")
        a(f"s_lshl_b32 s{sT0}, s{sT0}, 3")
        a(f"s_lshr_b32 s{sT1}, s2, 5")
        a(f"s_or_b32 s{sNT}, s{sT0}, s{sT1}")
    elif MAP == "8x4":
        a(f"s_and_b32 s{sT0}, s2, 1")
        a(f"s_lshl_b32 s{sT0}, s{sT0}, 3")
        a(f"s_bfe_u32 s{sT1}, s2, 0x30003")
        a(f"s_or_b32 s{sMT}, s{sT0}, s{sT1}")
        a(f"s_bfe_u32 s{sT0}, s2, 0x20001")
        a(f"s_lshl_b32 s{sT0}, s{sT0}, 2")
        a(f"s_lshr_b32 s{sT1}, s2, 6")
        a(f"s_or_b32 s{sNT}, s{sT0}, s{sT1}")
    elif MAP == "2x16":
        a(f"s_and_b32 s{sT0}, s2, 7")
        a(f"s_lshl_b32 s{sT0}, s{sT0}, 1")
        a(f"s_bfe_u32 s{sT1}, s2, 0x10003")
        a(f"s_or_b32 s{sMT}, s{sT0}, s{sT1}")
        a(f"s_lshr_b32 s{sNT}, s2, 4")
    elif MAP == "16x2":
        a(f"s_bfe_u32 s{sMT}, s2, 0x40003")
        a(f"s_and_b32 s{sT0}, s2, 7")
        a(f"s_lshl_b32 s{sT0}, s{sT0}, 1")
        a(f"s_lshr_b32 s{sT1}, s2, 7")
        a(f"s_or_b32 s{sNT}, s{sT0}, s{sT1}")
    a(f"s_lshl_b32 s{sROW0}, s{sMT}, 7")
    a(f"v_and_b32 v{vTOK}, 31, v{vLANE}")
    a(f"v_lshrrev_b32 v{vH}, 5, v{vLANE}")
    a("s_waitcnt lgkmcnt(0)")
    srd(a, SRD_X, 4, X_BYTES)
    srd(a, SRD_W, 6, WQKV_BYTES)
    srd(a, SRD_WS, 36, WS_SRD)
    a(f"s_cmp_eq_u32 s{sNT}, 15")
    a("s_cbranch_scc1 L_k1_aux")
    a(f"s_cmp_ge_u32 s{sW}, 8")
    a("s_cbranch_scc1 L_k1_stat")
    a(f"s_cmp_ge_u32 s{sW}, 4")
    a("s_cbranch_scc1 L_k1_loader")

def loader(a):
    a.label("L_k1_loader")
    a(f"s_setprio {os.environ.get('K1_LPRIO', '0')}")
    vX, vWt = 8, 9
    lw = sT0
    a(f"s_sub_u32 s{lw}, s{sW}, 4")
    a(f"v_lshrrev_b32 v{vT}, 3, v{vLANE}")
    a(f"s_lshl_b32 s{sT1}, s{lw}, 3")
    a(f"s_add_u32 s{sT1}, s{sT1}, s{sROW0}")
    a(f"v_add_u32 v{vT}, s{sT1}, v{vT}")
    a(f"v_mul_u32_u24 v{vT}, 1280, v{vT}")
    a(f"v_lshrrev_b32 v{vT+1}, 4, v{vLANE}")
    a(f"s_and_b32 s{sT1}, s{lw}, 1")
    a(f"s_lshl_b32 s{sT1}, s{sT1}, 2")
    a(f"v_add_u32 v{vT+2}, s{sT1}, v{vT+1}")
    a(f"v_and_b32 v{vT+3}, 7, v{vLANE}")
    a(f"v_xor_b32 v{vT+2}, v{vT+2}, v{vT+3}")
    a(f"v_lshl_add_u32 v{vX}, v{vT+2}, 4, v{vT}")
    a(f"s_lshl_b32 s{sT1}, s{lw}, 2")
    a(f"v_add_u32 v{vT}, s{sT1}, v{vT+1}")
    a(f"v_mul_u32_u24 v{vT}, 3840, v{vT}")
    a(f"v_and_b32 v{vT+2}, 15, v{vLANE}")
    a(f"v_lshlrev_b32 v{vT+3}, 2, v{vT+1}")
    a(f"v_xor_b32 v{vT+2}, v{vT+2}, v{vT+3}")
    a(f"v_lshl_add_u32 v{vT}, v{vT+2}, 4, v{vT}")
    a(f"s_lshl_b32 s{sT1}, s{sNT}, 8")
    a(f"v_add_u32 v{vWt}, s{sT1}, v{vT}")
    a(f"s_lshl_b32 s{sT2}, s{lw}, 10")
    vXs, vWs = 44, 48
    for i in range(4):
        a(f"v_add_u32 v{vXs + i}, {i * 40960}, v{vX}")
        a(f"v_add_u32 v{vWs + i}, {i * 16 * 3840}, v{vWt}")
    sXO, sWO = 40, 41
    a("s_lshr_b32 s42, s2, 5")
    a("s_bfe_u32 s43, s2, 0x20003")
    a("s_mul_i32 s43, s43, 3")
    a("s_add_u32 s42, s42, s43")
    a("s_cmp_ge_u32 s42, 10")
    a("s_cselect_b32 s43, 10, 0")
    a("s_sub_u32 s42, s42, s43")
    if not X("rot"):
        a("s_mov_b32 s42, 0")
    def stage(s):
        base = (s & 3) * 32768
        a(f"s_lshl_b32 s{sXO}, s42, 7")
        a(f"s_mul_i32 s{sWO}, s42, {64 * 3840}")
        a("s_add_u32 s42, s42, 1")
        a("s_cmp_eq_u32 s42, 10")
        a("s_cselect_b32 s42, 0, s42")
        for i in range(4):
            a(f"s_add_u32 m0, s{sT2}, {base + i * 4096}")
            a("s_nop 0")
            a(f"buffer_load_dwordx4 v{vXs + i}, s[{SRD_X}:{SRD_X+3}], s{sXO} offen lds")
            a(f"s_add_u32 m0, s{sT2}, {base + 16384 + i * 4096}")
            a("s_nop 0")
            a(f"buffer_load_dwordx4 v{vWs + i}, s[{SRD_W}:{SRD_W+3}], s{sWO} offen lds")
    ST(a, "setup")
    PRE = int(os.environ.get("K1_PRE", "2"))
    for s in range(PRE):
        stage(s)
    ST(a, "B0")
    issued = PRE - 1
    for s in range(10):
        a(f"s_waitcnt vmcnt({8 * (issued - s)})")
        if s in (0, 1, 2, 5):
            ST(a, {0: "g4", 1: "g8", 2: "g20", 5: "loopend"}[s])
        a("s_barrier")
        while issued < min(9, s + int(os.environ.get('K1_DEPTH', '3'))):
            issued += 1
            if not (X("nodma") and issued > 3):
                stage(issued)
    ST(a, "stores")
    ST(a, "end")
    ST.store(a)
    a("s_endpgm")

def stat_waves(a):
    (stat_local if LOCAL_STATS else stat_fetch)(a)

def stat_local(a):
    a.label("L_k1_stat")
    lw = sT0
    vR, vR2, vD, vP, vA1, vA2 = 8, 12, 48, 32, 36, 38
    a(f"s_sub_u32 s{lw}, s{sW}, 8")
    a(f"v_lshrrev_b32 v{vT}, 1, v{vLANE}")
    a(f"s_lshl_b32 s{sT1}, s{lw}, 5")
    a(f"v_add_u32 v{vT}, s{sT1}, v{vT}")
    a(f"v_lshlrev_b32 v{vT+1}, 7, v{vT}")
    a(f"v_and_b32 v{vT+2}, 1, v{vLANE}")
    a(f"v_lshl_add_u32 v{vT+1}, v{vT+2}, 6, v{vT+1}")
    a(f"v_bfe_u32 v{vT+2}, v{vLANE}, 2, 2")
    for i in range(4):
        a(f"v_xor_b32 v{vT+3}, {i}, v{vT+2}")
        a(f"v_lshl_add_u32 v{vR + i}, v{vT+3}, 4, v{vT+1}")
        a(f"v_add_u32 v{vR2 + i}, 65536, v{vR + i}")
    a(f"v_lshlrev_b32 v40, 2, v{vT}")
    for r in range(4):
        a(f"v_mov_b32 v{vA1 + r}, 0")
    for s in range(10):
        slot = s & 3
        a("s_barrier")
        if s == 9:
            a(f"s_setprio {os.environ.get('K1_LASTPRIO', '0')}")
        for i in range(4):
            a(f"ds_read_b128 {vr(vD + 4 * i, 4)}, v{(vR if slot < 2 else vR2) + i} offset:{(slot & 1) * 32768}")
        for j in range(16):
            if j % 4 == 0:
                a(f"s_waitcnt lgkmcnt({3 - j // 4})")
            p = vP + 2 * (j & 1)
            a(f"v_lshlrev_b32 v{p}, 16, v{vD + j}")
            a(f"v_and_b32 v{p+1}, 0xffff0000, v{vD + j}")
            a(f"v_add_f32 v{vA1}, v{vA1}, v{p}")
            a(f"v_fmac_f32 v{vA2}, v{p}, v{p}")
            a(f"v_add_f32 v{vA1+1}, v{vA1+1}, v{p+1}")
            a(f"v_fmac_f32 v{vA2+1}, v{p+1}, v{p+1}")
    a(f"v_add_f32 v{vA1}, v{vA1}, v{vA1+1}")
    a(f"v_add_f32 v{vA2}, v{vA2}, v{vA2+1}")
    a("s_nop 1")
    a(f"v_add_f32_dpp v{vA1+1}, v{vA1}, v{vA1} quad_perm:[1,0,3,2] row_mask:0xf bank_mask:0xf")
    a(f"v_add_f32_dpp v{vA2+1}, v{vA2}, v{vA2} quad_perm:[1,0,3,2] row_mask:0xf bank_mask:0xf")
    a(f"v_mul_f32 v{vA1}, {hex(f2u(1.0 / D))}, v{vA1+1}")
    a(f"v_mul_f32 v{vA2}, {hex(f2u(1.0 / D))}, v{vA2+1}")
    a(f"v_fma_f32 v{vA2}, -v{vA1}, v{vA1}, v{vA2}")
    a(f"v_max_f32 v{vA2}, 0, v{vA2}")
    a(f"v_add_f32 v{vA2}, {hex(f2u(1e-5))}, v{vA2}")
    a(f"v_rsq_f32 v{vA2}, v{vA2}")
    a(f"v_sub_f32 v{vA1}, 0, v{vA1}")
    a(f"v_add_u32 v40, {ST_NM}, v40")
    a(f"ds_write_b32 v40, v{vA1}")
    a(f"ds_write_b32 v40, v{vA2} offset:512")
    a("s_waitcnt lgkmcnt(0)")
    ST(a, "stores")
    a("s_barrier")
    ST(a, "end")
    ST.store(a)
    a("s_endpgm")

def stat_fetch(a):
    a.label("L_k1_stat")
    vA, vF, vD = 8, 9, 12
    ws = f"s[{SRD_WS}:{SRD_WS+3}]"
    a("s_load_dwordx2 s[46:47], s[0:1], 72")
    a(f"v_lshlrev_b32 v{vA}, 4, v{vLANE}")
    a(f"s_lshl_b32 s{sT0}, s{sMT}, 2")
    a(f"v_mov_b32 v{vF}, s{sT0}")
    a(f"s_lshl_b32 s{sT1}, s{sMT}, 10")
    a(f"s_add_u32 s{sT1}, s{sT1}, {ST_OFF}")
    a(f"v_lshlrev_b32 v10, 3, v{vLANE}")
    a(f"v_add_u32 v10, {ST_NM}, v10")
    a(f"s_mov_b32 s{sT2}, 0")
    a("s_waitcnt lgkmcnt(0)")
    def advance(tag, blocking):
        a(f"s_cmp_eq_u32 s{sT2}, 2")
        a(f"s_cbranch_scc1 L_st_{tag}_end")
        a("s_waitcnt vmcnt(0)")
        a(f"s_cmp_eq_u32 s{sT2}, 1")
        a(f"s_cbranch_scc1 L_st_{tag}_land")
        a(f"v_readfirstlane_b32 s{sT3}, v11")
        a("s_nop 1")
        a(f"s_cmp_eq_u32 s{sT3}, 1")
        a(f"s_cbranch_scc1 L_st_{tag}_go")
        a(f"global_load_dword v11, v{vF}, s[46:47] sc1")
        a(f"s_branch L_st_{tag}_end")
        a.label(f"L_st_{tag}_go")
        a(f"buffer_load_dwordx4 {vr(vD, 4)}, v{vA}, {ws}, s{sT1} offen sc1")
        a(f"s_mov_b32 s{sT2}, 1")
        a(f"s_branch L_st_{tag}_end")
        a.label(f"L_st_{tag}_land")
        a(f"v_sub_f32 v16, 0, v{vD}")
        a(f"v_sub_f32 v17, 0, v{vD+2}")
        a(f"v_mov_b32 v18, v{vD+1}")
        a(f"v_mov_b32 v19, v{vD+3}")
        a("ds_write_b64 v10, v[16:17]")
        a("ds_write_b64 v10, v[18:19] offset:512")
        a(f"s_mov_b32 s{sT2}, 2")
        a.label(f"L_st_{tag}_end")
    a("v_mov_b32 v11, 0")
    if X("touch"):
        a(f"s_mov_b32 s{sT3}, {YP_OFF}")
        a("v_mov_b32 v21, 0")
        a(f"buffer_load_dword v20, v21, {ws}, s{sT3} offen")
        a("global_load_dword v22, v21, s[46:47] offset:192")
    for s in range(10):
        a("s_barrier")
        if s in (1, 3, 5, 7):
            advance(f"b{s}", False)
    a(f"s_mov_b32 s48, {1 << 20}")
    a.label("L_st_fin")
    advance("fin", True)
    a("s_sub_u32 s48, s48, 1")
    a("s_cbranch_scc1 L_st_done")
    a(f"s_cmp_eq_u32 s{sT2}, 2")
    a("s_cbranch_scc0 L_st_fin")
    a.label("L_st_done")
    a("s_waitcnt lgkmcnt(0)")
    ST(a, "stores")
    a("s_barrier")
    ST(a, "end")
    ST.store(a)
    a("s_endpgm")

def read_list(g):
    ks, half = g & 3, (g >> 2) & 1
    base = half * 32768
    f = vF[g & 1]
    w = lambda b, reg, rd: f"ds_read_b64_tr_b16 {vr(f + 8 + 4 * b + 2 * rd, 2)}, v{reg} offset:{base + 16384 + (16 * ks + 4 * rd) * 256}"
    return [f"ds_read_b128 {vr(f, 4)}, v{vXA + ks} offset:{base}", w(0, vWA, 0), w(0, vWA, 1),
            w(1, vWB, 0), w(1, vWB, 1), f"ds_read_b128 {vr(f + 4, 4)}, v{vXB + ks} offset:{base}"]

def step(a, g, vorient, reads, pre=None):
    f = vF[g & 1]
    def mm(a_, b_):
        x, w = vr(f + 4 * a_, 4), vr(f + 8 + 4 * b_, 4)
        A, B = (x, w) if vorient else (w, x)
        a(f"v_mfma_f32_32x32x16_bf16 {vr(acc(a_, b_), 16)}, {A}, {B}, {vr(acc(a_, b_), 16)}")
    if pre is not None:
        a("s_waitcnt lgkmcnt(0)")
        mm(0, 0)
        mm(0, 1)
        pre()
        for r in reads[0:3]: a(r)
        mm(1, 0)
        for r in reads[3:6]: a(r)
        mm(1, 1)
    else:
        a("s_waitcnt lgkmcnt(3)")
        mm(0, 0)
        for r in reads[0:3]: a(r)
        a("s_waitcnt lgkmcnt(4)")
        mm(0, 1)
        for r in reads[3:6]: a(r)
        a("s_waitcnt lgkmcnt(6)")
        mm(1, 0)
        mm(1, 1)
    a(f"v_mfma_f32_16x16x32_bf16 {vr(vCSA, 4)}, {vr(vSEL, 4)}, {vr(f + 8, 4)}, {vr(vCSA, 4)}")

def mainloop(a, vorient):
    tag = "v" if vorient else "qk"
    ST(a, "setup")
    a("s_barrier")
    ST(a, "B0")
    for r in read_list(0):
        a(r)
    a(f"s_mov_b32 s{sT3}, 5")
    a(".p2align 3")
    a.label(f"L_k1_loop_{tag}")
    def pre7():
        a(f"s_sub_u32 s{sT3}, s{sT3}, 1")
        a(f"s_cmp_eq_u32 s{sT3}, 0")
        a(f"s_cbranch_scc1 L_k1_last_{tag}")
        for r in list(range(vXA, vXA + 4)) + list(range(vXB, vXB + 4)) + [vWA, vWB]:
            a(f"v_xor_b32 v{r}, 0x10000, v{r}")
        a("s_barrier")
    for g in range(8):
        pre = (lambda: a("s_barrier")) if g == 3 else (pre7 if g == 7 else None)
        step(a, g, vorient, read_list(g + 1), pre)
    a(f"s_branch L_k1_loop_{tag}")
    a.label(f"L_k1_last_{tag}")
    f = vF[1]
    for b_ in range(2):
        x, w = vr(f + 4, 4), vr(f + 8 + 4 * b_, 4)
        A, B = (x, w) if vorient else (w, x)
        a(f"v_mfma_f32_32x32x16_bf16 {vr(acc(1, b_), 16)}, {A}, {B}, {vr(acc(1, b_), 16)}")
    a(f"v_mfma_f32_16x16x32_bf16 {vr(vCSA, 4)}, {vr(vSEL, 4)}, {vr(f + 8, 4)}, {vr(vCSA, 4)}")

def stats_exchange(a):
    ST(a, "loopend")
    a(f"s_lshl_b32 s{sT0}, s{sWC}, 6")
    a(f"s_lshl_b32 s{sT1}, s{sWR}, 5")
    a(f"s_add_u32 s{sT0}, s{sT0}, s{sT1}")
    a(f"v_add_u32 v{vT+1}, s{sT0}, v{vLANE}")
    a(f"v_lshlrev_b32 v{vT+1}, 2, v{vT+1}")
    a(f"v_add_u32 v{vT+1}, {ST_CS}, v{vT+1}")
    a("s_mov_b64 exec, 0xffff")
    a("s_nop 4")
    a(f"ds_write_b32 v{vT+1}, v{vCSA}")
    a(f"ds_write_b32 v{vT+1}, v{vCSA+1} offset:64")
    a("s_mov_b64 exec, -1")
    a("s_waitcnt lgkmcnt(0)")
    a("s_barrier")
    ST(a, "e_bar")

def consumer_setup(a):
    a(f"s_lshr_b32 s{sWR}, s{sW}, 1")
    a(f"s_and_b32 s{sWC}, s{sW}, 1")
    a(f"v_lshrrev_b32 v{vT}, 1, v{vTOK}")
    a(f"v_and_b32 v{vT}, 7, v{vT}")
    a(f"s_lshl_b32 s{sT0}, s{sWR}, 6")
    a(f"v_add_u32 v{vT+1}, s{sT0}, v{vTOK}")
    a(f"v_lshlrev_b32 v{vT+1}, 7, v{vT+1}")
    a(f"s_lshl_b32 s{sT0}, s{sWC}, 12")
    a(f"s_xor_b32 s{sT1}, s{sT0}, 4096")
    for ks in range(4):
        a(f"v_add_u32 v{vT+2}, {2 * ks}, v{vH}")
        a(f"v_xor_b32 v{vT+2}, v{vT+2}, v{vT}")
        a(f"v_lshl_add_u32 v{vT+2}, v{vT+2}, 4, v{vT+1}")
        a(f"v_add_u32 v{vXA + ks}, s{sT0}, v{vT+2}")
        a(f"v_add_u32 v{vXB + ks}, s{sT1}, v{vT+2}")
    a(f"s_sub_u32 s{sN5}, s{sNT}, 5")
    a(f"s_cmp_lt_u32 s{sNT}, 5")
    a(f"s_cselect_b32 s{sN5}, s{sNT}, s{sN5}")
    for wc in range(2):
        reg = sT0 + wc
        a(f"s_mov_b32 s{reg}, {hex(0x76543210 + wc * 0x88888888)}")
        for n5 in range(5):
            a(f"s_cmp_eq_u32 s{sN5}, {n5}")
            a(f"s_cselect_b32 s{reg}, {hex(slots.packed(n5, wc))}, s{reg}")
    a(f"s_cmp_eq_u32 s{sWC}, 0")
    a(f"s_cselect_b32 s{sTBL}, s{sT0}, s{sT1}")
    a(f"v_bfe_u32 v{vT}, v{vLANE}, 2, 2")
    a(f"v_lshl_add_u32 v{vT+1}, v{vH}, 3, v{vT}")
    a(f"v_lshlrev_b32 v{vT+1}, 8, v{vT+1}")
    a(f"v_and_b32 v{vT+2}, 1, v{vLANE}")
    a(f"v_lshl_add_u32 v{vT+1}, v{vT+2}, 3, v{vT+1}")
    a(f"v_bfe_u32 v{vT+2}, v{vLANE}, 4, 1")
    a(f"v_bfe_u32 v{vT+3}, v{vLANE}, 1, 1")
    a(f"v_lshl_add_u32 v{vT+2}, v{vT+2}, 1, v{vT+3}")
    a(f"v_lshlrev_b32 v{vT+2}, 2, v{vT+2}")
    a(f"v_lshlrev_b32 v{vT}, 2, v{vT}")
    for (dst, own) in ((vWA, True), (vWB, False)):
        if own:
            a(f"s_lshl_b32 s{sT0}, s{sWR}, 4")
        else:
            a(f"s_xor_b32 s{sT0}, s{sWR}, 1")
            a(f"s_lshl_b32 s{sT0}, s{sT0}, 4")
        a(f"s_lshr_b32 s{sT0}, s{sTBL}, s{sT0}")
        a(f"v_lshrrev_b32 v{vT+3}, v{vT+2}, s{sT0}") if False else None
        a(f"v_mov_b32 v{vT+3}, s{sT0}")
        a(f"v_lshrrev_b32 v{vT+3}, v{vT+2}, v{vT+3}")
        a(f"v_and_b32 v{vT+3}, 15, v{vT+3}")
        a(f"v_xor_b32 v{vT+3}, v{vT+3}, v{vT}")
        a(f"v_lshl_add_u32 v{dst}, v{vT+3}, 4, v{vT+1}")
    a(f"v_and_b32 v{vT}, 15, v{vLANE}")
    a(f"v_bfe_u32 v{vT+1}, v{vLANE}, 4, 1")
    a(f"v_cmp_eq_u32 vcc, v{vT}, v{vT+1}")
    a(f"v_mov_b32 v{vT+2}, 0x3f803f80")
    a("s_nop 0")
    a(f"v_cndmask_b32 v{vSEL}, 0, v{vT+2}, vcc")
    for r in range(1, 4):
        a(f"v_mov_b32 v{vSEL + r}, v{vSEL}")
    for r in range(4):
        a(f"v_mov_b32 v{vCSA + r}, 0")
    for r in range(64):
        a(f"v_mov_b32 v{vACC + r}, 0")

def qk_path(a):
    a.label("L_k1_qk")
    a(f"s_mov_b32 s{sSEC}, {KV_OFF}")
    a(f"s_mov_b32 s{sTS}, 2560")
    a(f"s_mov_b32 s{sSCALE}, {hex(f2u(1.0))}")
    a(f"s_sub_u32 s{sT0}, s{sNT}, 5")
    a(f"s_cmp_lt_u32 s{sNT}, 5")
    a(f"s_cselect_b32 s{sSEC}, {QB_OFF}, s{sSEC}")
    a(f"s_cselect_b32 s{sTS}, 1280, s{sTS}")
    a(f"s_cselect_b32 s{sSCALE}, {hex(f2u(QSCALE))}, s{sSCALE}")
    a(f"s_cselect_b32 s{sT0}, s{sNT}, s{sT0}")
    a(f"s_lshl_b32 s{sHS}, s{sTS}, 6")
    a(f"s_lshl_b32 s{sT1}, s{sMT}, 2")
    a(f"s_lshl_b32 s{sT2}, s{sWR}, 1")
    a(f"s_add_u32 s{sT1}, s{sT1}, s{sT2}")
    a(f"s_add_u32 s{sT2}, s{sT1}, s{sWC}")
    a(f"s_mul_i32 s{sTA}, s{sT2}, s{sTS}")
    a(f"s_add_u32 s{sTA}, s{sTA}, s{sSEC}")
    a(f"s_xor_b32 s{sT3}, s{sWC}, 1")
    a(f"s_add_u32 s{sT2}, s{sT1}, s{sT3}")
    a(f"s_mul_i32 s{sTB}, s{sT2}, s{sTS}")
    a(f"s_add_u32 s{sTB}, s{sTB}, s{sSEC}")
    for k_, (ct, g) in enumerate(((0, 0), (0, 2), (1, 0), (1, 2), (1, 3))):
        o = vOFF + k_
        a(f"s_bfe_u32 s{sT1}, s{sTBL}, {hex((4 << 16) | (16 * ct + 4 * g))}")
        a(f"s_lshl_b32 s{sT2}, s{sN5}, 4")
        a(f"s_add_u32 s{sT1}, s{sT1}, s{sT2}")
        a(f"s_lshl_b32 s{sT1}, s{sT1}, 1")
        a(f"v_add_u32 v{vT}, s{sT1}, v{vH}")
        a(f"v_mul_u32_u24 v{vT+1}, 52429, v{vT}")
        a(f"v_lshrrev_b32 v{vT+1}, 18, v{vT+1}")
        a(f"v_mul_u32_u24 v{vT+2}, 5, v{vT+1}")
        a(f"v_sub_u32 v{vT+2}, v{vT}, v{vT+2}")
        a(f"v_and_b32 v{vT+3}, 1, v{vT+1}")
        a(f"v_sub_u32 v{vT+2}, v{vT+2}, v{vT+3}")
        a(f"v_mul_lo_u32 v{o}, v{vT+1}, s{sHS}")
        a(f"v_and_b32 v{vT+1}, 1, v{vT+2}")
        a(f"v_lshlrev_b32 v{vT+1}, 9, v{vT+1}")
        a(f"v_bfe_u32 v{vT+3}, v{vT+2}, 1, 1")
        a(f"v_lshl_add_u32 v{vT+1}, v{vT+3}, 3, v{vT+1}")
        a(f"v_lshl_add_u32 v{vT+1}, v{vTOK}, 4, v{vT+1}")
        a(f"v_cmp_lt_u32 vcc, 3, v{vT+2}")
        a(f"v_lshlrev_b32 v{vT+3}, 3, v{vTOK}")
        a(f"v_add_u32 v{vT+3}, 1024, v{vT+3}")
        a(f"v_cndmask_b32 v{vT+1}, v{vT+1}, v{vT+3}, vcc")
        a(f"v_add_u32 v{o}, v{o}, v{vT+1}")
    mainloop(a, False)
    stats_exchange(a)
    vNM, vRS, vC = vE, vE + 2, vE + 4
    a(f"s_lshl_b32 s{sT0}, s{sWR}, 6")
    a(f"v_add_u32 v{vT}, s{sT0}, v{vTOK}")
    a(f"v_lshlrev_b32 v{vT}, 2, v{vT}")
    a(f"s_lshl_b32 s{sT1}, s{sWC}, 7")
    a(f"v_add_u32 v{vT+1}, s{sT1}, v{vT}")
    a(f"s_xor_b32 s{sT1}, s{sT1}, 128")
    a(f"v_add_u32 v{vT+2}, s{sT1}, v{vT}")
    a(f"v_add_u32 v{vT+1}, {ST_NM}, v{vT+1}")
    a(f"v_add_u32 v{vT+2}, {ST_NM}, v{vT+2}")
    a(f"ds_read_b32 v{vNM}, v{vT+1}")
    a(f"ds_read_b32 v{vRS}, v{vT+1} offset:512")
    a(f"ds_read_b32 v{vNM+1}, v{vT+2}")
    a(f"ds_read_b32 v{vRS+1}, v{vT+2} offset:512")
    a(f"s_lshl_b32 s{sT0}, s{sWC}, 8")
    a(f"v_lshlrev_b32 v{vT}, 4, v{vH}")
    a(f"v_add_u32 v{vT}, s{sT0}, v{vT}")
    a(f"s_lshl_b32 s{sT1}, s{sWR}, 7")
    a(f"v_add_u32 v{vT+1}, s{sT1}, v{vT}")
    a(f"s_xor_b32 s{sT1}, s{sT1}, 128")
    a(f"v_add_u32 v{vT+2}, s{sT1}, v{vT}")
    a(f"v_add_u32 v{vT+1}, {ST_CS}, v{vT+1}")
    a(f"v_add_u32 v{vT+2}, {ST_CS}, v{vT+2}")
    for b_ in range(2):
        for g in range(4):
            a(f"ds_read_b128 {vr(vC + 16 * b_ + 4 * g, 4)}, v{vT + 1 + b_} offset:{32 * g}")
    a("s_waitcnt lgkmcnt(0)")
    ST(a, "e_lds")
    a(f"v_mul_f32 v{vRS}, s{sSCALE}, v{vRS}")
    a(f"v_mul_f32 v{vRS+1}, s{sSCALE}, v{vRS+1}")
    ws = f"s[{SRD_WS}:{SRD_WS+3}]"
    def finish(wr):
        for a_ in range(2):
            a(f"v_mov_b32 v{vT}, v{vNM + a_}")
            a(f"v_mov_b32 v{vT+1}, v{vNM + a_}")
            a(f"v_mov_b32 v{vT+2}, v{vRS + a_}")
            a(f"v_mov_b32 v{vT+3}, v{vRS + a_}")
            so = f"s{sTA if a_ == 0 else sTB}"
            for b_ in range(2):
                A = acc(a_, b_)
                for p in range(8):
                    a(f"v_pk_fma_f32 {vr(A + 2 * p, 2)}, {vr(vC + 16 * b_ + 2 * p, 2)}, {vr(vT, 2)}, {vr(A + 2 * p, 2)}")
                for p in range(8):
                    a(f"v_pk_mul_f32 {vr(A + 2 * p, 2)}, {vr(A + 2 * p, 2)}, {vr(vT + 2, 2)}")
                for p in range(8):
                    a(f"v_cvt_pk_bf16_f32 v{A + p}, v{A + 2 * p}, v{A + 2 * p + 1}")
                if (wr ^ b_) == 0:
                    a(f"buffer_store_dwordx4 {vr(A, 4)}, v{vOFF}, {ws}, {so} offen{STF}")
                    a(f"buffer_store_dwordx4 {vr(A + 4, 4)}, v{vOFF + 1}, {ws}, {so} offen{STF}")
                else:
                    a(f"buffer_store_dwordx4 {vr(A, 4)}, v{vOFF + 2}, {ws}, {so} offen{STF}")
                    a(f"buffer_store_dwordx2 {vr(A + 4, 2)}, v{vOFF + 3}, {ws}, {so} offen{STF}")
                    a(f"buffer_store_dwordx2 {vr(A + 6, 2)}, v{vOFF + 4}, {ws}, {so} offen{STF}")
    a(f"s_cmp_eq_u32 s{sWR}, 0")
    a("s_cbranch_scc0 L_k1_qk_wr1")
    finish(0)
    a("s_branch L_k1_qk_done")
    a.label("L_k1_qk_wr1")
    finish(1)
    a.label("L_k1_qk_done")
    ST(a, "stores")
    if ST.on:
        a("s_waitcnt vmcnt(0)")
    ST(a, "end")
    ST.store(a)
    a("s_endpgm")

def v_path(a):
    a.label("L_k1_v")
    a(f"s_lshl_b32 s{sT1}, s{sMT}, 2")
    a(f"s_lshl_b32 s{sT2}, s{sWR}, 1")
    a(f"s_add_u32 s{sT1}, s{sT1}, s{sT2}")
    a(f"s_add_u32 s{sT2}, s{sT1}, s{sWC}")
    a(f"s_mul_i32 s{sTA}, s{sT2}, 2560")
    a(f"s_add_u32 s{sTA}, s{sTA}, {KV_OFF + 1280}")
    a(f"s_xor_b32 s{sT3}, s{sWC}, 1")
    a(f"s_add_u32 s{sT2}, s{sT1}, s{sT3}")
    a(f"s_mul_i32 s{sTB}, s{sT2}, 2560")
    a(f"s_add_u32 s{sTB}, s{sTB}, {KV_OFF + 1280}")
    a(f"s_sub_u32 s{sT0}, s{sNT}, 10")
    a(f"s_lshl_b32 s{sT0}, s{sT0}, 7")
    a(f"s_lshl_b32 s{sT1}, s{sWC}, 6")
    a(f"s_add_u32 s{sT0}, s{sT0}, s{sT1}")
    for b_ in range(2):
        if b_ == 0:
            a(f"s_lshl_b32 s{sT1}, s{sWR}, 5")
        else:
            a(f"s_xor_b32 s{sT1}, s{sWR}, 1")
            a(f"s_lshl_b32 s{sT1}, s{sT1}, 5")
        a(f"s_add_u32 s{sT1}, s{sT1}, s{sT0}")
        a(f"v_add_u32 v{vT}, s{sT1}, v{vTOK}")
        a(f"v_mul_u32_u24 v{vT+1}, 52429, v{vT}")
        a(f"v_lshrrev_b32 v{vT+1}, 20, v{vT+1}")
        a(f"v_mul_u32_u24 v{vT+2}, 20, v{vT+1}")
        a(f"v_sub_u32 v{vT+2}, v{vT}, v{vT+2}")
        a(f"s_mov_b32 s{sT2}, {64 * 2560}")
        a(f"v_mul_lo_u32 v{vOFF + b_}, v{vT+1}, s{sT2}")
        a(f"v_lshlrev_b32 v{vT+2}, 4, v{vT+2}")
        a(f"v_mul_u32_u24 v{vT+3}, 320, v{vH}")
        a(f"v_add3_u32 v{vOFF + b_}, v{vOFF + b_}, v{vT+2}, v{vT+3}")
    mainloop(a, True)
    stats_exchange(a)
    vCL, vNM, vRS = vE, vE + 4, vE + 20
    a(f"s_lshl_b32 s{sT0}, s{sWC}, 6")
    a(f"v_add_u32 v{vT}, s{sT0}, v{vTOK}")
    a(f"v_lshlrev_b32 v{vT}, 2, v{vT}")
    a(f"s_lshl_b32 s{sT1}, s{sWR}, 7")
    a(f"v_add_u32 v{vT+1}, s{sT1}, v{vT}")
    a(f"s_xor_b32 s{sT1}, s{sT1}, 128")
    a(f"v_add_u32 v{vT+2}, s{sT1}, v{vT}")
    a(f"v_add_u32 v{vT+1}, {ST_CS}, v{vT+1}")
    a(f"v_add_u32 v{vT+2}, {ST_CS}, v{vT+2}")
    a(f"ds_read_b32 v{vCL}, v{vT+1}")
    a(f"ds_read_b32 v{vCL+2}, v{vT+2}")
    a("s_waitcnt lgkmcnt(0)")
    a(f"v_mov_b32 v{vCL+1}, v{vCL}")
    a(f"v_mov_b32 v{vCL+3}, v{vCL+2}")
    ws = f"s[{SRD_WS}:{SRD_WS+3}]"
    for a_ in range(2):
        a(f"s_lshl_b32 s{sT0}, s{sWR}, 8")
        a(f"s_lshl_b32 s{sT1}, s{sWC}, 7")
        if a_ == 1:
            a(f"s_xor_b32 s{sT1}, s{sT1}, 128")
        a(f"s_add_u32 s{sT0}, s{sT0}, s{sT1}")
        a(f"v_lshlrev_b32 v{vT}, 4, v{vH}")
        a(f"v_add_u32 v{vT}, s{sT0}, v{vT}")
        a(f"v_add_u32 v{vT}, {ST_NM}, v{vT}")
        for g in range(4):
            a(f"ds_read_b128 {vr(vNM + 4 * g, 4)}, v{vT} offset:{32 * g}")
            a(f"ds_read_b128 {vr(vRS + 4 * g, 4)}, v{vT} offset:{512 + 32 * g}")
        a("s_waitcnt lgkmcnt(0)")
        for b_ in range(2):
            A = acc(a_, b_)
            for p in range(8):
                a(f"v_pk_fma_f32 {vr(A + 2 * p, 2)}, {vr(vNM + 2 * p, 2)}, {vr(vCL + 2 * b_, 2)}, {vr(A + 2 * p, 2)}")
            for p in range(8):
                a(f"v_pk_mul_f32 {vr(A + 2 * p, 2)}, {vr(A + 2 * p, 2)}, {vr(vRS + 2 * p, 2)}")
            for p in range(8):
                a(f"v_cvt_pk_bf16_f32 v{A + p}, v{A + 2 * p}, v{A + 2 * p + 1}")
            for t in range(2):
                a(f"buffer_store_dwordx4 {vr(A + 4 * t, 4)}, v{vOFF + b_}, {ws}, s{sTA if a_ == 0 else sTB} offen offset:{640 * t}{STF}")
    ST(a, "stores")
    if ST.on:
        a("s_waitcnt vmcnt(0)")
    ST(a, "end")
    ST.store(a)
    a("s_endpgm")

L_KEYS, L_WR = 51200, 52224

def aux(a):
    from k2moe import repack_setup, repack_request, repack_finish
    a.label("L_k1_aux")
    a(f"s_cmp_ge_u32 s{sW}, 8")
    a("s_cbranch_scc1 L_k1_exit")
    vX, vWr = (16, 56), 96
    vA, vAW = 8, 9
    s1, s2, s3, sw = (10, 136), (11, 137), (12, 138), 13
    SRD_R = 40
    a("s_load_dwordx2 s[6:7], s[0:1], 16")
    srd(a, SRD_R, 38, D * 2)
    a(f"v_lshrrev_b32 v{vT}, 3, v{vLANE}")
    a(f"s_lshl_b32 s{sT0}, s{sW}, 4")
    a(f"s_add_u32 s{sT0}, s{sT0}, s{sROW0}")
    a(f"v_add_u32 v14, s{sT0}, v{vT}")
    a(f"v_and_b32 v15, 7, v{vLANE}")
    a(f"v_lshlrev_b32 v{vAW}, 4, v15")
    a(f"v_mul_u32_u24 v{vA}, 1280, v14")
    a(f"v_add_u32 v{vA}, v{vA}, v{vAW}")
    if X("touch"):
        a("s_load_dwordx2 s[46:47], s[0:1], 72")
        a(f"s_mov_b32 s{sT1}, {YP_OFF}")
        a(f"v_mov_b32 v140, 0")
        a(f"buffer_load_dword v141, v140, s[{SRD_WS}:{SRD_WS+3}], s{sT1} offen")
        a("s_waitcnt lgkmcnt(0)")
        a("global_load_dword v142, v140, s[46:47] offset:192")
    a(f"s_mov_b32 s{sT1}, {8 * 1280}")
    for g in range(2):
        for i in range(10):
            a(f"buffer_load_dwordx4 {vr(vX[g] + 4 * i, 4)}, v{vA}, s[{SRD_X}:{SRD_X+3}], {0 if g == 0 else f's{sT1}'} offen offset:{i * 128}")
        if g == 0:
            for i in range(10):
                a(f"buffer_load_dwordx4 {vr(vWr + 4 * i, 4)}, v{vAW}, s[{SRD_R}:{SRD_R+3}], 0 offen offset:{i * 128}")
    for r in s1 + s2 + s3 + (sw,):
        a(f"v_mov_b32 v{r}, 0")
    a(f"v_mov_b32 v139, 0x3f803f80")
    ST(a, "setup")
    for g in range(2):
        a(f"s_waitcnt vmcnt({10 if g == 0 else 0})")
        if g == 0:
            ST(a, "B0")
        for r in range(40):
            a(f"v_dot2c_f32_bf16 v{s1[g]}, v{vX[g] + r}, v139")
            a(f"v_dot2c_f32_bf16 v{s2[g]}, v{vX[g] + r}, v{vX[g] + r}")
            a(f"v_dot2c_f32_bf16 v{s3[g]}, v{vX[g] + r}, v{vWr + r}")
            if g == 0:
                a(f"v_dot2c_f32_bf16 v{sw}, v{vWr + r}, v139")
    ST(a, "loopend")
    a("s_nop 3")
    for ctrl in ("quad_perm:[1,0,3,2]", "quad_perm:[2,3,0,1]", "row_half_mirror"):
        for r in s1 + s2 + s3 + (sw,):
            a(f"v_add_f32_dpp v{vT+2}, v{r}, v{r} {ctrl} row_mask:0xf bank_mask:0xf")
            a("s_nop 0")
            a(f"v_mov_b32 v{r}, v{vT+2}")
        a("s_nop 1")
    a(f"v_cmp_eq_u32 vcc, 1, v15")
    a(f"v_add_u32 v{vT}, 8, v14")
    a("s_nop 0")
    for pair in (s1, s2, s3):
        a(f"v_cndmask_b32 v{pair[0]}, v{pair[0]}, v{pair[1]}, vcc")
    a(f"v_cndmask_b32 v{vT}, v14, v{vT}, vcc")
    a(f"v_mov_b32 v{vT+1}, v15")
    s1, s2, s3 = s1[0], s2[0], s3[0]
    a(f"v_mul_f32 v{s1}, {hex(f2u(1.0 / D))}, v{s1}")
    a(f"v_mul_f32 v{s2}, {hex(f2u(1.0 / D))}, v{s2}")
    a(f"v_fma_f32 v{s2}, -v{s1}, v{s1}, v{s2}")
    a(f"v_max_f32 v{s2}, 0, v{s2}")
    a(f"v_add_f32 v{s2}, {hex(f2u(1e-5))}, v{s2}")
    a(f"v_rsq_f32 v{s2}, v{s2}")
    a(f"v_fma_f32 v{s3}, -v{s1}, v{sw}, v{s3}")
    a(f"v_mul_f32 v{s3}, v{s3}, v{s2}")
    ws = f"s[{SRD_WS}:{SRD_WS+3}]"
    a(f"v_ashrrev_i32 v{vT+2}, 31, v{s3}")
    a(f"v_or_b32 v{vT+2}, 0x80000000, v{vT+2}")
    a(f"v_xor_b32 v{vT+2}, v{vT+2}, v{s3}")
    a(f"v_and_b32 v{vT+2}, 0xfffff800, v{vT+2}")
    a(f"v_or_b32 v{vT+2}, v{vT+2}, v{vT}")
    a(f"v_mov_b32 v14, v{s1}")
    a(f"v_mov_b32 v15, v{s2}")
    a(f"v_lshlrev_b32 v{vA}, 3, v{vT}")
    a(f"v_lshlrev_b32 v{vAW}, 2, v{vT}")
    a(f"v_and_b32 v{vT+3}, 127, v{vT}")
    a(f"v_lshlrev_b32 v{vT+3}, 2, v{vT+3}")
    a(f"v_add_u32 v{vT+3}, {L_KEYS}, v{vT+3}")
    a(f"v_cmp_gt_u32 vcc, 2, v{vT+1}")
    a(f"s_mov_b32 s{sT0}, {ST_OFF}")
    a(f"s_mov_b32 s{sT1}, {R_OFF}")
    a("s_and_saveexec_b64 s[44:45], vcc")
    a(f"buffer_store_dwordx2 v[14:15], v{vA}, {ws}, s{sT0} offen{'' if LOCAL_STATS else ' sc1'}")
    a(f"buffer_store_dword v{s3}, v{vAW}, {ws}, s{sT1} offen")
    a(f"ds_write_b32 v{vT+3}, v{vT+2}")
    if LOCAL_STATS:
        a("s_waitcnt lgkmcnt(0)")
    else:
        a("s_load_dwordx2 s[46:47], s[0:1], 72")
        a("s_waitcnt vmcnt(0) lgkmcnt(0)")
    a("s_mov_b64 exec, s[44:45]")
    a("s_barrier")
    a(f"s_cmp_lg_u32 s{sW}, 0")
    a("s_cbranch_scc1 L_k1_repack")
    if not LOCAL_STATS:
        a(f"s_lshl_b32 s{sT0}, s{sMT}, 2")
        a(f"v_mov_b32 v16, s{sT0}")
        a("v_mov_b32 v17, 1")
        a("s_mov_b64 exec, 1")
        a("global_store_dword v16, v17, s[46:47] sc1")
        a("s_mov_b64 exec, -1")
    ST(a, "e_lds")
    hi, lo, oh, ol, adr = 16, 17, 18, 19, 20
    a(f"v_lshlrev_b32 v{adr}, 2, v{vLANE}")
    a(f"ds_read_b32 v{oh}, v{adr} offset:{L_KEYS}")
    a(f"ds_read_b32 v{ol}, v{adr} offset:{L_KEYS + 256}")
    a("s_waitcnt lgkmcnt(0)")
    a(f"v_max_u32 v{hi}, v{oh}, v{ol}")
    a(f"v_min_u32 v{lo}, v{oh}, v{ol}")
    for x in (1, 2, 4, 8, 16, 32):
        a(f"v_xor_b32 v{adr}, {x}, v{vLANE}")
        a(f"v_lshlrev_b32 v{adr}, 2, v{adr}")
        a(f"ds_bpermute_b32 v{oh}, v{adr}, v{hi}")
        a(f"ds_bpermute_b32 v{ol}, v{adr}, v{lo}")
        a("s_waitcnt lgkmcnt(0)")
        a(f"v_max_u32 v{lo}, v{lo}, v{ol}")
        a(f"v_min_u32 v{ol}, v{hi}, v{oh}")
        a(f"v_max_u32 v{hi}, v{hi}, v{oh}")
        a(f"v_max_u32 v{lo}, v{lo}, v{ol}")
    a(f"v_mov_b32 v{oh}, v{hi}")
    a(f"v_mov_b32 v{ol}, v{lo}")
    a(f"s_lshl_b32 s{sT0}, s{sMT}, 3")
    a(f"s_add_u32 s{sT0}, s{sT0}, {CAND_OFF}")
    a(f"v_mov_b32 v{adr}, 0")
    a(f"v_cmp_eq_u32 vcc, 0, v{vLANE}")
    a("s_nop 1")
    a("s_and_saveexec_b64 s[44:45], vcc")
    a(f"buffer_store_dwordx2 v[{oh}:{ol}], v{adr}, {ws}, s{sT0} offen")
    a("s_mov_b64 exec, -1")
    a(f"s_cmp_lg_u32 s{sMT}, 0")
    a("s_cbranch_scc1 L_k1_repack")
    a(f"v_lshlrev_b32 v{adr}, 8, v{vLANE}")
    a(f"v_mov_b32 v{oh}, 0")
    a(f"s_mov_b32 s{sT0}, {CNT_OFF}")
    a(f"v_cmp_gt_u32 vcc, {NCNT}, v{vLANE}")
    a("s_nop 1")
    a("s_mov_b64 exec, vcc")
    a(f"buffer_store_dword v{oh}, v{adr}, {ws}, s{sT0} offen")
    a("s_mov_b64 exec, -1")
    ST(a, "stores")
    ST.store(a)
    a.label("L_k1_repack")
    repack_setup(a, sMT)
    repack_request(a, sW, 0)
    a(f"s_cmp_ge_u32 s{sW}, 2")
    a("s_cbranch_scc1 L_rep_loaded")
    repack_request(a, sW, 1)
    a.label("L_rep_loaded")
    repack_finish(a, sW, "L_k1_exit")

def emit(a):
    entry(a)
    consumer_setup(a)
    a(f"s_cmp_ge_u32 s{sNT}, 10")
    a("s_cbranch_scc1 L_k1_v")
    qk_path(a)
    v_path(a)
    loader(a)
    stat_waves(a)
    aux(a)
    a.label("L_k1_exit")
    a("s_endpgm")
```

```python
from common import *
import os
import slots

NAME = "qkv_kernel"
LDS = 131072 + 2048
VGPRS = 152 if prof_on("k1") else 144
LOCAL_STATS = os.environ.get("K1_STATS", "local") == "local"
BLOCK = 768 if LOCAL_STATS else 576

SRD_X, SRD_W, SRD_WS = 8, 12, 16
sW, sMT, sNT = 20, 21, 22
sROW0 = 23
sT0, sT1, sT2, sT3 = 24, 25, 26, 27
sSEC, sHS, sTS, sSCALE = 28, 29, 30, 31
sTA, sTB = 32, 33
sWR, sWC = 34, 35
sTBL, sN5 = 44, 45
ST_NM, ST_RS, ST_CS = 131072, 131072 + 512, 131072 + 1024

vLANE, vTOK, vH = 1, 2, 3
vT = 4
vXA = 8
vXB = 12
vWA, vWB = 16, 17
vS1, vS2, vCS, vONE = 28, 29, 30, 31
vSEL = 136
vCSA = 140
vF = (32, 48)
vACC = 64
vOFF = 128
vE = 24

ST = StampsLane("k1", 20, 16, 148)
def X(flag):
    return flag in os.environ.get("K1_EXP", "").split(",")

STF = {"": "", "sc1": " sc1", "nt": " nt", "sc01": " sc0 sc1"}[os.environ.get("K1_ST", "")]

def acc(a_, b_):
    return vACC + 32 * a_ + 16 * b_

def entry(a):
    kernel_header(a, NAME)
    ST(a, "entry")
    a("s_cmp_ge_u32 s2, 256")
    a("s_cbranch_scc1 L_k1_exit")
    a("s_load_dwordx4 s[4:7], s[0:1], 0")
    a("s_load_dwordx2 s[36:37], s[0:1], 80")
    a("s_load_dwordx2 s[38:39], s[0:1], 32")
    a(f"v_lshrrev_b32 v{vT}, 6, v0")
    a(f"v_and_b32 v{vLANE}, 63, v0")
    a(f"v_readfirstlane_b32 s{sW}, v{vT}")
    MAP = os.environ.get("K1_MAP", "4x8")
    if MAP == "4x8":
        a(f"s_and_b32 s{sT0}, s2, 3")
        a(f"s_lshl_b32 s{sT0}, s{sT0}, 2")
        a(f"s_bfe_u32 s{sT1}, s2, 0x20003")
        a(f"s_or_b32 s{sMT}, s{sT0}, s{sT1}")
        a(f"s_bfe_u32 s{sT0}, s2, 0x10002")
        a(f"s_lshl_b32 s{sT0}, s{sT0}, 3")
        a(f"s_lshr_b32 s{sT1}, s2, 5")
        a(f"s_or_b32 s{sNT}, s{sT0}, s{sT1}")
    elif MAP == "8x4":
        a(f"s_and_b32 s{sT0}, s2, 1")
        a(f"s_lshl_b32 s{sT0}, s{sT0}, 3")
        a(f"s_bfe_u32 s{sT1}, s2, 0x30003")
        a(f"s_or_b32 s{sMT}, s{sT0}, s{sT1}")
        a(f"s_bfe_u32 s{sT0}, s2, 0x20001")
        a(f"s_lshl_b32 s{sT0}, s{sT0}, 2")
        a(f"s_lshr_b32 s{sT1}, s2, 6")
        a(f"s_or_b32 s{sNT}, s{sT0}, s{sT1}")
    elif MAP == "2x16":
        a(f"s_and_b32 s{sT0}, s2, 7")
        a(f"s_lshl_b32 s{sT0}, s{sT0}, 1")
        a(f"s_bfe_u32 s{sT1}, s2, 0x10003")
        a(f"s_or_b32 s{sMT}, s{sT0}, s{sT1}")
        a(f"s_lshr_b32 s{sNT}, s2, 4")
    elif MAP == "16x2":
        a(f"s_bfe_u32 s{sMT}, s2, 0x40003")
        a(f"s_and_b32 s{sT0}, s2, 7")
        a(f"s_lshl_b32 s{sT0}, s{sT0}, 1")
        a(f"s_lshr_b32 s{sT1}, s2, 7")
        a(f"s_or_b32 s{sNT}, s{sT0}, s{sT1}")
    a(f"s_lshl_b32 s{sROW0}, s{sMT}, 7")
    a(f"v_and_b32 v{vTOK}, 31, v{vLANE}")
    a(f"v_lshrrev_b32 v{vH}, 5, v{vLANE}")
    a("s_waitcnt lgkmcnt(0)")
    srd(a, SRD_X, 4, X_BYTES)
    srd(a, SRD_W, 6, WQKV_BYTES)
    srd(a, SRD_WS, 36, WS_SRD)
    a(f"s_cmp_eq_u32 s{sNT}, 15")
    a("s_cbranch_scc1 L_k1_aux")
    a(f"s_cmp_ge_u32 s{sW}, 8")
    a("s_cbranch_scc1 L_k1_stat")
    a(f"s_cmp_ge_u32 s{sW}, 4")
    a("s_cbranch_scc1 L_k1_loader")

def loader(a):
    a.label("L_k1_loader")
    a(f"s_setprio {os.environ.get('K1_LPRIO', '0')}")
    vX, vWt = 8, 9
    lw = sT0
    a(f"s_sub_u32 s{lw}, s{sW}, 4")
    a(f"v_lshrrev_b32 v{vT}, 3, v{vLANE}")
    a(f"s_lshl_b32 s{sT1}, s{lw}, 3")
    a(f"s_add_u32 s{sT1}, s{sT1}, s{sROW0}")
    a(f"v_add_u32 v{vT}, s{sT1}, v{vT}")
    a(f"v_mul_u32_u24 v{vT}, 1280, v{vT}")
    a(f"v_lshrrev_b32 v{vT+1}, 4, v{vLANE}")
    a(f"s_and_b32 s{sT1}, s{lw}, 1")
    a(f"s_lshl_b32 s{sT1}, s{sT1}, 2")
    a(f"v_add_u32 v{vT+2}, s{sT1}, v{vT+1}")
    a(f"v_and_b32 v{vT+3}, 7, v{vLANE}")
    a(f"v_xor_b32 v{vT+2}, v{vT+2}, v{vT+3}")
    a(f"v_lshl_add_u32 v{vX}, v{vT+2}, 4, v{vT}")
    a(f"s_lshl_b32 s{sT1}, s{lw}, 2")
    a(f"v_add_u32 v{vT}, s{sT1}, v{vT+1}")
    a(f"v_mul_u32_u24 v{vT}, 3840, v{vT}")
    a(f"v_and_b32 v{vT+2}, 15, v{vLANE}")
    a(f"v_lshlrev_b32 v{vT+3}, 2, v{vT+1}")
    a(f"v_xor_b32 v{vT+2}, v{vT+2}, v{vT+3}")
    a(f"v_lshl_add_u32 v{vT}, v{vT+2}, 4, v{vT}")
    a(f"s_lshl_b32 s{sT1}, s{sNT}, 8")
    a(f"v_add_u32 v{vWt}, s{sT1}, v{vT}")
    a(f"s_lshl_b32 s{sT2}, s{lw}, 10")
    vXs, vWs = 44, 48
    for i in range(4):
        a(f"v_add_u32 v{vXs + i}, {i * 40960}, v{vX}")
        a(f"v_add_u32 v{vWs + i}, {i * 16 * 3840}, v{vWt}")
    sXO, sWO = 40, 41
    a("s_lshr_b32 s42, s2, 5")
    a("s_bfe_u32 s43, s2, 0x20003")
    a("s_mul_i32 s43, s43, 3")
    a("s_add_u32 s42, s42, s43")
    a("s_cmp_ge_u32 s42, 10")
    a("s_cselect_b32 s43, 10, 0")
    a("s_sub_u32 s42, s42, s43")
    if not X("rot"):
        a("s_mov_b32 s42, 0")
    def stage(s):
        base = (s & 3) * 32768
        a(f"s_lshl_b32 s{sXO}, s42, 7")
        a(f"s_mul_i32 s{sWO}, s42, {64 * 3840}")
        a("s_add_u32 s42, s42, 1")
        a("s_cmp_eq_u32 s42, 10")
        a("s_cselect_b32 s42, 0, s42")
        for i in range(4):
            a(f"s_add_u32 m0, s{sT2}, {base + i * 4096}")
            a("s_nop 0")
            a(f"buffer_load_dwordx4 v{vXs + i}, s[{SRD_X}:{SRD_X+3}], s{sXO} offen lds")
            a(f"s_add_u32 m0, s{sT2}, {base + 16384 + i * 4096}")
            a("s_nop 0")
            a(f"buffer_load_dwordx4 v{vWs + i}, s[{SRD_W}:{SRD_W+3}], s{sWO} offen lds")
    ST(a, "setup")
    PRE = int(os.environ.get("K1_PRE", "2"))
    for s in range(PRE):
        stage(s)
    ST(a, "B0")
    issued = PRE - 1
    for s in range(10):
        a(f"s_waitcnt vmcnt({8 * (issued - s)})")
        if s in (0, 1, 2, 5):
            ST(a, {0: "g4", 1: "g8", 2: "g20", 5: "loopend"}[s])
        a("s_barrier")
        while issued < min(9, s + int(os.environ.get('K1_DEPTH', '3'))):
            issued += 1
            if not (X("nodma") and issued > 3):
                stage(issued)
    ST(a, "stores")
    ST(a, "end")
    ST.store(a)
    a("s_endpgm")

def stat_waves(a):
    (stat_local if LOCAL_STATS else stat_fetch)(a)

def stat_local(a):
    a.label("L_k1_stat")
    lw = sT0
    vR, vR2, vD, vP, vA1, vA2 = 8, 12, 48, 32, 36, 38
    a(f"s_sub_u32 s{lw}, s{sW}, 8")
    a(f"v_lshrrev_b32 v{vT}, 1, v{vLANE}")
    a(f"s_lshl_b32 s{sT1}, s{lw}, 5")
    a(f"v_add_u32 v{vT}, s{sT1}, v{vT}")
    a(f"v_lshlrev_b32 v{vT+1}, 7, v{vT}")
    a(f"v_and_b32 v{vT+2}, 1, v{vLANE}")
    a(f"v_lshl_add_u32 v{vT+1}, v{vT+2}, 6, v{vT+1}")
    a(f"v_bfe_u32 v{vT+2}, v{vLANE}, 2, 2")
    for i in range(4):
        a(f"v_xor_b32 v{vT+3}, {i}, v{vT+2}")
        a(f"v_lshl_add_u32 v{vR + i}, v{vT+3}, 4, v{vT+1}")
        a(f"v_add_u32 v{vR2 + i}, 65536, v{vR + i}")
    a(f"v_lshlrev_b32 v40, 2, v{vT}")
    for r in range(4):
        a(f"v_mov_b32 v{vA1 + r}, 0")
    TOUCH = int(os.environ.get("K1_TOUCH", "0"))
    if TOUCH:
        n = (X_BYTES + 64 * TOUCH - 1) // (64 * TOUCH)
        a(f"v_mul_u32_u24 v41, {TOUCH}, v{vLANE}")
        a(f"s_cmp_lg_u32 s{sW}, 8")
        a("s_cbranch_scc1 L_k1_notouch")
        for i in range(n):
            a(f"s_mov_b32 s{sT1}, {i * 64 * TOUCH}")
            a(f"buffer_load_dword v42, v41, s[{SRD_X}:{SRD_X+3}], s{sT1} offen")
            a(f"buffer_load_dword v43, v41, s[{SRD_W}:{SRD_W+3}], s{sT1} offen")
        a.label("L_k1_notouch")
    for s in range(10):
        slot = s & 3
        a("s_barrier")
        if s == 9:
            a(f"s_setprio {os.environ.get('K1_LASTPRIO', '0')}")
        for i in range(4):
            a(f"ds_read_b128 {vr(vD + 4 * i, 4)}, v{(vR if slot < 2 else vR2) + i} offset:{(slot & 1) * 32768}")
        for j in range(16):
            if j % 4 == 0:
                a(f"s_waitcnt lgkmcnt({3 - j // 4})")
            p = vP + 2 * (j & 1)
            a(f"v_lshlrev_b32 v{p}, 16, v{vD + j}")
            a(f"v_and_b32 v{p+1}, 0xffff0000, v{vD + j}")
            a(f"v_add_f32 v{vA1}, v{vA1}, v{p}")
            a(f"v_fmac_f32 v{vA2}, v{p}, v{p}")
            a(f"v_add_f32 v{vA1+1}, v{vA1+1}, v{p+1}")
            a(f"v_fmac_f32 v{vA2+1}, v{p+1}, v{p+1}")
    a(f"v_add_f32 v{vA1}, v{vA1}, v{vA1+1}")
    a(f"v_add_f32 v{vA2}, v{vA2}, v{vA2+1}")
    a("s_nop 1")
    a(f"v_add_f32_dpp v{vA1+1}, v{vA1}, v{vA1} quad_perm:[1,0,3,2] row_mask:0xf bank_mask:0xf")
    a(f"v_add_f32_dpp v{vA2+1}, v{vA2}, v{vA2} quad_perm:[1,0,3,2] row_mask:0xf bank_mask:0xf")
    a(f"v_mul_f32 v{vA1}, {hex(f2u(1.0 / D))}, v{vA1+1}")
    a(f"v_mul_f32 v{vA2}, {hex(f2u(1.0 / D))}, v{vA2+1}")
    a(f"v_fma_f32 v{vA2}, -v{vA1}, v{vA1}, v{vA2}")
    a(f"v_max_f32 v{vA2}, 0, v{vA2}")
    a(f"v_add_f32 v{vA2}, {hex(f2u(1e-5))}, v{vA2}")
    a(f"v_rsq_f32 v{vA2}, v{vA2}")
    a(f"v_sub_f32 v{vA1}, 0, v{vA1}")
    a(f"v_add_u32 v40, {ST_NM}, v40")
    a(f"ds_write_b32 v40, v{vA1}")
    a(f"ds_write_b32 v40, v{vA2} offset:512")
    a("s_waitcnt lgkmcnt(0)")
    ST(a, "stores")
    a("s_barrier")
    ST(a, "end")
    ST.store(a)
    a("s_endpgm")

def stat_fetch(a):
    a.label("L_k1_stat")
    vA, vF, vD = 8, 9, 12
    ws = f"s[{SRD_WS}:{SRD_WS+3}]"
    a("s_load_dwordx2 s[46:47], s[0:1], 72")
    a(f"v_lshlrev_b32 v{vA}, 4, v{vLANE}")
    a(f"s_lshl_b32 s{sT0}, s{sMT}, 2")
    a(f"v_mov_b32 v{vF}, s{sT0}")
    a(f"s_lshl_b32 s{sT1}, s{sMT}, 10")
    a(f"s_add_u32 s{sT1}, s{sT1}, {ST_OFF}")
    a(f"v_lshlrev_b32 v10, 3, v{vLANE}")
    a(f"v_add_u32 v10, {ST_NM}, v10")
    a(f"s_mov_b32 s{sT2}, 0")
    a("s_waitcnt lgkmcnt(0)")
    def advance(tag, blocking):
        a(f"s_cmp_eq_u32 s{sT2}, 2")
        a(f"s_cbranch_scc1 L_st_{tag}_end")
        a("s_waitcnt vmcnt(0)")
        a(f"s_cmp_eq_u32 s{sT2}, 1")
        a(f"s_cbranch_scc1 L_st_{tag}_land")
        a(f"v_readfirstlane_b32 s{sT3}, v11")
        a("s_nop 1")
        a(f"s_cmp_eq_u32 s{sT3}, 1")
        a(f"s_cbranch_scc1 L_st_{tag}_go")
        a(f"global_load_dword v11, v{vF}, s[46:47] sc1")
        a(f"s_branch L_st_{tag}_end")
        a.label(f"L_st_{tag}_go")
        a(f"buffer_load_dwordx4 {vr(vD, 4)}, v{vA}, {ws}, s{sT1} offen sc1")
        a(f"s_mov_b32 s{sT2}, 1")
        a(f"s_branch L_st_{tag}_end")
        a.label(f"L_st_{tag}_land")
        a(f"v_sub_f32 v16, 0, v{vD}")
        a(f"v_sub_f32 v17, 0, v{vD+2}")
        a(f"v_mov_b32 v18, v{vD+1}")
        a(f"v_mov_b32 v19, v{vD+3}")
        a("ds_write_b64 v10, v[16:17]")
        a("ds_write_b64 v10, v[18:19] offset:512")
        a(f"s_mov_b32 s{sT2}, 2")
        a.label(f"L_st_{tag}_end")
    a("v_mov_b32 v11, 0")
    if X("touch"):
        a(f"s_mov_b32 s{sT3}, {YP_OFF}")
        a("v_mov_b32 v21, 0")
        a(f"buffer_load_dword v20, v21, {ws}, s{sT3} offen")
        a("global_load_dword v22, v21, s[46:47] offset:192")
    for s in range(10):
        a("s_barrier")
        if s in (1, 3, 5, 7):
            advance(f"b{s}", False)
    a(f"s_mov_b32 s48, {1 << 20}")
    a.label("L_st_fin")
    advance("fin", True)
    a("s_sub_u32 s48, s48, 1")
    a("s_cbranch_scc1 L_st_done")
    a(f"s_cmp_eq_u32 s{sT2}, 2")
    a("s_cbranch_scc0 L_st_fin")
    a.label("L_st_done")
    a("s_waitcnt lgkmcnt(0)")
    ST(a, "stores")
    a("s_barrier")
    ST(a, "end")
    ST.store(a)
    a("s_endpgm")

def read_list(g):
    ks, half = g & 3, (g >> 2) & 1
    base = half * 32768
    f = vF[g & 1]
    w = lambda b, reg, rd: f"ds_read_b64_tr_b16 {vr(f + 8 + 4 * b + 2 * rd, 2)}, v{reg} offset:{base + 16384 + (16 * ks + 4 * rd) * 256}"
    return [f"ds_read_b128 {vr(f, 4)}, v{vXA + ks} offset:{base}", w(0, vWA, 0), w(0, vWA, 1),
            w(1, vWB, 0), w(1, vWB, 1), f"ds_read_b128 {vr(f + 4, 4)}, v{vXB + ks} offset:{base}"]

def step(a, g, vorient, reads, pre=None):
    f = vF[g & 1]
    def mm(a_, b_):
        x, w = vr(f + 4 * a_, 4), vr(f + 8 + 4 * b_, 4)
        A, B = (x, w) if vorient else (w, x)
        a(f"v_mfma_f32_32x32x16_bf16 {vr(acc(a_, b_), 16)}, {A}, {B}, {vr(acc(a_, b_), 16)}")
    if pre is not None:
        a("s_waitcnt lgkmcnt(0)")
        mm(0, 0)
        mm(0, 1)
        pre()
        for r in reads[0:3]: a(r)
        mm(1, 0)
        for r in reads[3:6]: a(r)
        mm(1, 1)
    else:
        a("s_waitcnt lgkmcnt(3)")
        mm(0, 0)
        for r in reads[0:3]: a(r)
        a("s_waitcnt lgkmcnt(4)")
        mm(0, 1)
        for r in reads[3:6]: a(r)
        a("s_waitcnt lgkmcnt(6)")
        mm(1, 0)
        mm(1, 1)
    a(f"v_mfma_f32_16x16x32_bf16 {vr(vCSA, 4)}, {vr(vSEL, 4)}, {vr(f + 8, 4)}, {vr(vCSA, 4)}")

def mainloop(a, vorient):
    tag = "v" if vorient else "qk"
    ST(a, "setup")
    a("s_barrier")
    ST(a, "B0")
    for r in read_list(0):
        a(r)
    a(f"s_mov_b32 s{sT3}, 5")
    a(".p2align 3")
    a.label(f"L_k1_loop_{tag}")
    def pre7():
        a(f"s_sub_u32 s{sT3}, s{sT3}, 1")
        a(f"s_cmp_eq_u32 s{sT3}, 0")
        a(f"s_cbranch_scc1 L_k1_last_{tag}")
        for r in list(range(vXA, vXA + 4)) + list(range(vXB, vXB + 4)) + [vWA, vWB]:
            a(f"v_xor_b32 v{r}, 0x10000, v{r}")
        a("s_barrier")
    for g in range(8):
        pre = (lambda: a("s_barrier")) if g == 3 else (pre7 if g == 7 else None)
        step(a, g, vorient, read_list(g + 1), pre)
    a(f"s_branch L_k1_loop_{tag}")
    a.label(f"L_k1_last_{tag}")
    f = vF[1]
    for b_ in range(2):
        x, w = vr(f + 4, 4), vr(f + 8 + 4 * b_, 4)
        A, B = (x, w) if vorient else (w, x)
        a(f"v_mfma_f32_32x32x16_bf16 {vr(acc(1, b_), 16)}, {A}, {B}, {vr(acc(1, b_), 16)}")
    a(f"v_mfma_f32_16x16x32_bf16 {vr(vCSA, 4)}, {vr(vSEL, 4)}, {vr(f + 8, 4)}, {vr(vCSA, 4)}")

def stats_exchange(a):
    ST(a, "loopend")
    a(f"s_lshl_b32 s{sT0}, s{sWC}, 6")
    a(f"s_lshl_b32 s{sT1}, s{sWR}, 5")
    a(f"s_add_u32 s{sT0}, s{sT0}, s{sT1}")
    a(f"v_add_u32 v{vT+1}, s{sT0}, v{vLANE}")
    a(f"v_lshlrev_b32 v{vT+1}, 2, v{vT+1}")
    a(f"v_add_u32 v{vT+1}, {ST_CS}, v{vT+1}")
    a("s_mov_b64 exec, 0xffff")
    a("s_nop 4")
    a(f"ds_write_b32 v{vT+1}, v{vCSA}")
    a(f"ds_write_b32 v{vT+1}, v{vCSA+1} offset:64")
    a("s_mov_b64 exec, -1")
    a("s_waitcnt lgkmcnt(0)")
    a("s_barrier")
    ST(a, "e_bar")

def consumer_setup(a):
    a(f"s_lshr_b32 s{sWR}, s{sW}, 1")
    a(f"s_and_b32 s{sWC}, s{sW}, 1")
    a(f"v_lshrrev_b32 v{vT}, 1, v{vTOK}")
    a(f"v_and_b32 v{vT}, 7, v{vT}")
    a(f"s_lshl_b32 s{sT0}, s{sWR}, 6")
    a(f"v_add_u32 v{vT+1}, s{sT0}, v{vTOK}")
    a(f"v_lshlrev_b32 v{vT+1}, 7, v{vT+1}")
    a(f"s_lshl_b32 s{sT0}, s{sWC}, 12")
    a(f"s_xor_b32 s{sT1}, s{sT0}, 4096")
    for ks in range(4):
        a(f"v_add_u32 v{vT+2}, {2 * ks}, v{vH}")
        a(f"v_xor_b32 v{vT+2}, v{vT+2}, v{vT}")
        a(f"v_lshl_add_u32 v{vT+2}, v{vT+2}, 4, v{vT+1}")
        a(f"v_add_u32 v{vXA + ks}, s{sT0}, v{vT+2}")
        a(f"v_add_u32 v{vXB + ks}, s{sT1}, v{vT+2}")
    a(f"s_sub_u32 s{sN5}, s{sNT}, 5")
    a(f"s_cmp_lt_u32 s{sNT}, 5")
    a(f"s_cselect_b32 s{sN5}, s{sNT}, s{sN5}")
    for wc in range(2):
        reg = sT0 + wc
        a(f"s_mov_b32 s{reg}, {hex(0x76543210 + wc * 0x88888888)}")
        for n5 in range(5):
            a(f"s_cmp_eq_u32 s{sN5}, {n5}")
            a(f"s_cselect_b32 s{reg}, {hex(slots.packed(n5, wc))}, s{reg}")
    a(f"s_cmp_eq_u32 s{sWC}, 0")
    a(f"s_cselect_b32 s{sTBL}, s{sT0}, s{sT1}")
    a(f"v_bfe_u32 v{vT}, v{vLANE}, 2, 2")
    a(f"v_lshl_add_u32 v{vT+1}, v{vH}, 3, v{vT}")
    a(f"v_lshlrev_b32 v{vT+1}, 8, v{vT+1}")
    a(f"v_and_b32 v{vT+2}, 1, v{vLANE}")
    a(f"v_lshl_add_u32 v{vT+1}, v{vT+2}, 3, v{vT+1}")
    a(f"v_bfe_u32 v{vT+2}, v{vLANE}, 4, 1")
    a(f"v_bfe_u32 v{vT+3}, v{vLANE}, 1, 1")
    a(f"v_lshl_add_u32 v{vT+2}, v{vT+2}, 1, v{vT+3}")
    a(f"v_lshlrev_b32 v{vT+2}, 2, v{vT+2}")
    a(f"v_lshlrev_b32 v{vT}, 2, v{vT}")
    for (dst, own) in ((vWA, True), (vWB, False)):
        if own:
            a(f"s_lshl_b32 s{sT0}, s{sWR}, 4")
        else:
            a(f"s_xor_b32 s{sT0}, s{sWR}, 1")
            a(f"s_lshl_b32 s{sT0}, s{sT0}, 4")
        a(f"s_lshr_b32 s{sT0}, s{sTBL}, s{sT0}")
        a(f"v_lshrrev_b32 v{vT+3}, v{vT+2}, s{sT0}") if False else None
        a(f"v_mov_b32 v{vT+3}, s{sT0}")
        a(f"v_lshrrev_b32 v{vT+3}, v{vT+2}, v{vT+3}")
        a(f"v_and_b32 v{vT+3}, 15, v{vT+3}")
        a(f"v_xor_b32 v{vT+3}, v{vT+3}, v{vT}")
        a(f"v_lshl_add_u32 v{dst}, v{vT+3}, 4, v{vT+1}")
    a(f"v_and_b32 v{vT}, 15, v{vLANE}")
    a(f"v_bfe_u32 v{vT+1}, v{vLANE}, 4, 1")
    a(f"v_cmp_eq_u32 vcc, v{vT}, v{vT+1}")
    a(f"v_mov_b32 v{vT+2}, 0x3f803f80")
    a("s_nop 0")
    a(f"v_cndmask_b32 v{vSEL}, 0, v{vT+2}, vcc")
    for r in range(1, 4):
        a(f"v_mov_b32 v{vSEL + r}, v{vSEL}")
    for r in range(4):
        a(f"v_mov_b32 v{vCSA + r}, 0")
    for r in range(64):
        a(f"v_mov_b32 v{vACC + r}, 0")

def qk_path(a):
    a.label("L_k1_qk")
    a(f"s_mov_b32 s{sSEC}, {KV_OFF}")
    a(f"s_mov_b32 s{sTS}, 2560")
    a(f"s_mov_b32 s{sSCALE}, {hex(f2u(1.0))}")
    a(f"s_sub_u32 s{sT0}, s{sNT}, 5")
    a(f"s_cmp_lt_u32 s{sNT}, 5")
    a(f"s_cselect_b32 s{sSEC}, {QB_OFF}, s{sSEC}")
    a(f"s_cselect_b32 s{sTS}, 1280, s{sTS}")
    a(f"s_cselect_b32 s{sSCALE}, {hex(f2u(QSCALE))}, s{sSCALE}")
    a(f"s_cselect_b32 s{sT0}, s{sNT}, s{sT0}")
    a(f"s_lshl_b32 s{sHS}, s{sTS}, 6")
    a(f"s_lshl_b32 s{sT1}, s{sMT}, 2")
    a(f"s_lshl_b32 s{sT2}, s{sWR}, 1")
    a(f"s_add_u32 s{sT1}, s{sT1}, s{sT2}")
    a(f"s_add_u32 s{sT2}, s{sT1}, s{sWC}")
    a(f"s_mul_i32 s{sTA}, s{sT2}, s{sTS}")
    a(f"s_add_u32 s{sTA}, s{sTA}, s{sSEC}")
    a(f"s_xor_b32 s{sT3}, s{sWC}, 1")
    a(f"s_add_u32 s{sT2}, s{sT1}, s{sT3}")
    a(f"s_mul_i32 s{sTB}, s{sT2}, s{sTS}")
    a(f"s_add_u32 s{sTB}, s{sTB}, s{sSEC}")
    for k_, (ct, g) in enumerate(((0, 0), (0, 2), (1, 0), (1, 2), (1, 3))):
        o = vOFF + k_
        a(f"s_bfe_u32 s{sT1}, s{sTBL}, {hex((4 << 16) | (16 * ct + 4 * g))}")
        a(f"s_lshl_b32 s{sT2}, s{sN5}, 4")
        a(f"s_add_u32 s{sT1}, s{sT1}, s{sT2}")
        a(f"s_lshl_b32 s{sT1}, s{sT1}, 1")
        a(f"v_add_u32 v{vT}, s{sT1}, v{vH}")
        a(f"v_mul_u32_u24 v{vT+1}, 52429, v{vT}")
        a(f"v_lshrrev_b32 v{vT+1}, 18, v{vT+1}")
        a(f"v_mul_u32_u24 v{vT+2}, 5, v{vT+1}")
        a(f"v_sub_u32 v{vT+2}, v{vT}, v{vT+2}")
        a(f"v_and_b32 v{vT+3}, 1, v{vT+1}")
        a(f"v_sub_u32 v{vT+2}, v{vT+2}, v{vT+3}")
        a(f"v_mul_lo_u32 v{o}, v{vT+1}, s{sHS}")
        a(f"v_and_b32 v{vT+1}, 1, v{vT+2}")
        a(f"v_lshlrev_b32 v{vT+1}, 9, v{vT+1}")
        a(f"v_bfe_u32 v{vT+3}, v{vT+2}, 1, 1")
        a(f"v_lshl_add_u32 v{vT+1}, v{vT+3}, 3, v{vT+1}")
        a(f"v_lshl_add_u32 v{vT+1}, v{vTOK}, 4, v{vT+1}")
        a(f"v_cmp_lt_u32 vcc, 3, v{vT+2}")
        a(f"v_lshlrev_b32 v{vT+3}, 3, v{vTOK}")
        a(f"v_add_u32 v{vT+3}, 1024, v{vT+3}")
        a(f"v_cndmask_b32 v{vT+1}, v{vT+1}, v{vT+3}, vcc")
        a(f"v_add_u32 v{o}, v{o}, v{vT+1}")
    mainloop(a, False)
    stats_exchange(a)
    vNM, vRS, vC = vE, vE + 2, vE + 4
    a(f"s_lshl_b32 s{sT0}, s{sWR}, 6")
    a(f"v_add_u32 v{vT}, s{sT0}, v{vTOK}")
    a(f"v_lshlrev_b32 v{vT}, 2, v{vT}")
    a(f"s_lshl_b32 s{sT1}, s{sWC}, 7")
    a(f"v_add_u32 v{vT+1}, s{sT1}, v{vT}")
    a(f"s_xor_b32 s{sT1}, s{sT1}, 128")
    a(f"v_add_u32 v{vT+2}, s{sT1}, v{vT}")
    a(f"v_add_u32 v{vT+1}, {ST_NM}, v{vT+1}")
    a(f"v_add_u32 v{vT+2}, {ST_NM}, v{vT+2}")
    a(f"ds_read_b32 v{vNM}, v{vT+1}")
    a(f"ds_read_b32 v{vRS}, v{vT+1} offset:512")
    a(f"ds_read_b32 v{vNM+1}, v{vT+2}")
    a(f"ds_read_b32 v{vRS+1}, v{vT+2} offset:512")
    a(f"s_lshl_b32 s{sT0}, s{sWC}, 8")
    a(f"v_lshlrev_b32 v{vT}, 4, v{vH}")
    a(f"v_add_u32 v{vT}, s{sT0}, v{vT}")
    a(f"s_lshl_b32 s{sT1}, s{sWR}, 7")
    a(f"v_add_u32 v{vT+1}, s{sT1}, v{vT}")
    a(f"s_xor_b32 s{sT1}, s{sT1}, 128")
    a(f"v_add_u32 v{vT+2}, s{sT1}, v{vT}")
    a(f"v_add_u32 v{vT+1}, {ST_CS}, v{vT+1}")
    a(f"v_add_u32 v{vT+2}, {ST_CS}, v{vT+2}")
    for b_ in range(2):
        for g in range(4):
            a(f"ds_read_b128 {vr(vC + 16 * b_ + 4 * g, 4)}, v{vT + 1 + b_} offset:{32 * g}")
    a("s_waitcnt lgkmcnt(0)")
    ST(a, "e_lds")
    a(f"v_mul_f32 v{vRS}, s{sSCALE}, v{vRS}")
    a(f"v_mul_f32 v{vRS+1}, s{sSCALE}, v{vRS+1}")
    ws = f"s[{SRD_WS}:{SRD_WS+3}]"
    def finish(wr):
        for a_ in range(2):
            a(f"v_mov_b32 v{vT}, v{vNM + a_}")
            a(f"v_mov_b32 v{vT+1}, v{vNM + a_}")
            a(f"v_mov_b32 v{vT+2}, v{vRS + a_}")
            a(f"v_mov_b32 v{vT+3}, v{vRS + a_}")
            so = f"s{sTA if a_ == 0 else sTB}"
            for b_ in range(2):
                A = acc(a_, b_)
                for p in range(8):
                    a(f"v_pk_fma_f32 {vr(A + 2 * p, 2)}, {vr(vC + 16 * b_ + 2 * p, 2)}, {vr(vT, 2)}, {vr(A + 2 * p, 2)}")
                for p in range(8):
                    a(f"v_pk_mul_f32 {vr(A + 2 * p, 2)}, {vr(A + 2 * p, 2)}, {vr(vT + 2, 2)}")
                for p in range(8):
                    a(f"v_cvt_pk_bf16_f32 v{A + p}, v{A + 2 * p}, v{A + 2 * p + 1}")
                if (wr ^ b_) == 0:
                    a(f"buffer_store_dwordx4 {vr(A, 4)}, v{vOFF}, {ws}, {so} offen{STF}")
                    a(f"buffer_store_dwordx4 {vr(A + 4, 4)}, v{vOFF + 1}, {ws}, {so} offen{STF}")
                else:
                    a(f"buffer_store_dwordx4 {vr(A, 4)}, v{vOFF + 2}, {ws}, {so} offen{STF}")
                    a(f"buffer_store_dwordx2 {vr(A + 4, 2)}, v{vOFF + 3}, {ws}, {so} offen{STF}")
                    a(f"buffer_store_dwordx2 {vr(A + 6, 2)}, v{vOFF + 4}, {ws}, {so} offen{STF}")
    a(f"s_cmp_eq_u32 s{sWR}, 0")
    a("s_cbranch_scc0 L_k1_qk_wr1")
    finish(0)
    a("s_branch L_k1_qk_done")
    a.label("L_k1_qk_wr1")
    finish(1)
    a.label("L_k1_qk_done")
    ST(a, "stores")
    if ST.on:
        a("s_waitcnt vmcnt(0)")
    ST(a, "end")
    ST.store(a)
    a("s_endpgm")

def v_path(a):
    a.label("L_k1_v")
    a(f"s_lshl_b32 s{sT1}, s{sMT}, 2")
    a(f"s_lshl_b32 s{sT2}, s{sWR}, 1")
    a(f"s_add_u32 s{sT1}, s{sT1}, s{sT2}")
    a(f"s_add_u32 s{sT2}, s{sT1}, s{sWC}")
    a(f"s_mul_i32 s{sTA}, s{sT2}, 2560")
    a(f"s_add_u32 s{sTA}, s{sTA}, {KV_OFF + 1280}")
    a(f"s_xor_b32 s{sT3}, s{sWC}, 1")
    a(f"s_add_u32 s{sT2}, s{sT1}, s{sT3}")
    a(f"s_mul_i32 s{sTB}, s{sT2}, 2560")
    a(f"s_add_u32 s{sTB}, s{sTB}, {KV_OFF + 1280}")
    a(f"s_sub_u32 s{sT0}, s{sNT}, 10")
    a(f"s_lshl_b32 s{sT0}, s{sT0}, 7")
    a(f"s_lshl_b32 s{sT1}, s{sWC}, 6")
    a(f"s_add_u32 s{sT0}, s{sT0}, s{sT1}")
    for b_ in range(2):
        if b_ == 0:
            a(f"s_lshl_b32 s{sT1}, s{sWR}, 5")
        else:
            a(f"s_xor_b32 s{sT1}, s{sWR}, 1")
            a(f"s_lshl_b32 s{sT1}, s{sT1}, 5")
        a(f"s_add_u32 s{sT1}, s{sT1}, s{sT0}")
        a(f"v_add_u32 v{vT}, s{sT1}, v{vTOK}")
        a(f"v_mul_u32_u24 v{vT+1}, 52429, v{vT}")
        a(f"v_lshrrev_b32 v{vT+1}, 20, v{vT+1}")
        a(f"v_mul_u32_u24 v{vT+2}, 20, v{vT+1}")
        a(f"v_sub_u32 v{vT+2}, v{vT}, v{vT+2}")
        a(f"s_mov_b32 s{sT2}, {64 * 2560}")
        a(f"v_mul_lo_u32 v{vOFF + b_}, v{vT+1}, s{sT2}")
        a(f"v_lshlrev_b32 v{vT+2}, 4, v{vT+2}")
        a(f"v_mul_u32_u24 v{vT+3}, 320, v{vH}")
        a(f"v_add3_u32 v{vOFF + b_}, v{vOFF + b_}, v{vT+2}, v{vT+3}")
    mainloop(a, True)
    stats_exchange(a)
    vCL, vNM, vRS = vE, vE + 4, vE + 20
    a(f"s_lshl_b32 s{sT0}, s{sWC}, 6")
    a(f"v_add_u32 v{vT}, s{sT0}, v{vTOK}")
    a(f"v_lshlrev_b32 v{vT}, 2, v{vT}")
    a(f"s_lshl_b32 s{sT1}, s{sWR}, 7")
    a(f"v_add_u32 v{vT+1}, s{sT1}, v{vT}")
    a(f"s_xor_b32 s{sT1}, s{sT1}, 128")
    a(f"v_add_u32 v{vT+2}, s{sT1}, v{vT}")
    a(f"v_add_u32 v{vT+1}, {ST_CS}, v{vT+1}")
    a(f"v_add_u32 v{vT+2}, {ST_CS}, v{vT+2}")
    a(f"ds_read_b32 v{vCL}, v{vT+1}")
    a(f"ds_read_b32 v{vCL+2}, v{vT+2}")
    a("s_waitcnt lgkmcnt(0)")
    a(f"v_mov_b32 v{vCL+1}, v{vCL}")
    a(f"v_mov_b32 v{vCL+3}, v{vCL+2}")
    ws = f"s[{SRD_WS}:{SRD_WS+3}]"
    for a_ in range(2):
        a(f"s_lshl_b32 s{sT0}, s{sWR}, 8")
        a(f"s_lshl_b32 s{sT1}, s{sWC}, 7")
        if a_ == 1:
            a(f"s_xor_b32 s{sT1}, s{sT1}, 128")
        a(f"s_add_u32 s{sT0}, s{sT0}, s{sT1}")
        a(f"v_lshlrev_b32 v{vT}, 4, v{vH}")
        a(f"v_add_u32 v{vT}, s{sT0}, v{vT}")
        a(f"v_add_u32 v{vT}, {ST_NM}, v{vT}")
        for g in range(4):
            a(f"ds_read_b128 {vr(vNM + 4 * g, 4)}, v{vT} offset:{32 * g}")
            a(f"ds_read_b128 {vr(vRS + 4 * g, 4)}, v{vT} offset:{512 + 32 * g}")
        a("s_waitcnt lgkmcnt(0)")
        for b_ in range(2):
            A = acc(a_, b_)
            for p in range(8):
                a(f"v_pk_fma_f32 {vr(A + 2 * p, 2)}, {vr(vNM + 2 * p, 2)}, {vr(vCL + 2 * b_, 2)}, {vr(A + 2 * p, 2)}")
            for p in range(8):
                a(f"v_pk_mul_f32 {vr(A + 2 * p, 2)}, {vr(A + 2 * p, 2)}, {vr(vRS + 2 * p, 2)}")
            for p in range(8):
                a(f"v_cvt_pk_bf16_f32 v{A + p}, v{A + 2 * p}, v{A + 2 * p + 1}")
            for t in range(2):
                a(f"buffer_store_dwordx4 {vr(A + 4 * t, 4)}, v{vOFF + b_}, {ws}, s{sTA if a_ == 0 else sTB} offen offset:{640 * t}{STF}")
    ST(a, "stores")
    if ST.on:
        a("s_waitcnt vmcnt(0)")
    ST(a, "end")
    ST.store(a)
    a("s_endpgm")

L_KEYS, L_WR = 51200, 52224

def aux(a):
    from k2moe import repack_setup, repack_request, repack_finish
    a.label("L_k1_aux")
    a(f"s_cmp_ge_u32 s{sW}, 8")
    a("s_cbranch_scc1 L_k1_exit")
    vX, vWr = (16, 56), 96
    vA, vAW = 8, 9
    s1, s2, s3, sw = (10, 136), (11, 137), (12, 138), 13
    SRD_R = 40
    a("s_load_dwordx2 s[6:7], s[0:1], 16")
    srd(a, SRD_R, 38, D * 2)
    a(f"v_lshrrev_b32 v{vT}, 3, v{vLANE}")
    a(f"s_lshl_b32 s{sT0}, s{sW}, 4")
    a(f"s_add_u32 s{sT0}, s{sT0}, s{sROW0}")
    a(f"v_add_u32 v14, s{sT0}, v{vT}")
    a(f"v_and_b32 v15, 7, v{vLANE}")
    a(f"v_lshlrev_b32 v{vAW}, 4, v15")
    a(f"v_mul_u32_u24 v{vA}, 1280, v14")
    a(f"v_add_u32 v{vA}, v{vA}, v{vAW}")
    if X("touch"):
        a("s_load_dwordx2 s[46:47], s[0:1], 72")
        a(f"s_mov_b32 s{sT1}, {YP_OFF}")
        a(f"v_mov_b32 v140, 0")
        a(f"buffer_load_dword v141, v140, s[{SRD_WS}:{SRD_WS+3}], s{sT1} offen")
        a("s_waitcnt lgkmcnt(0)")
        a("global_load_dword v142, v140, s[46:47] offset:192")
    a(f"s_mov_b32 s{sT1}, {8 * 1280}")
    for g in range(2):
        for i in range(10):
            a(f"buffer_load_dwordx4 {vr(vX[g] + 4 * i, 4)}, v{vA}, s[{SRD_X}:{SRD_X+3}], {0 if g == 0 else f's{sT1}'} offen offset:{i * 128}")
        if g == 0:
            for i in range(10):
                a(f"buffer_load_dwordx4 {vr(vWr + 4 * i, 4)}, v{vAW}, s[{SRD_R}:{SRD_R+3}], 0 offen offset:{i * 128}")
    for r in s1 + s2 + s3 + (sw,):
        a(f"v_mov_b32 v{r}, 0")
    a(f"v_mov_b32 v139, 0x3f803f80")
    ST(a, "setup")
    for g in range(2):
        a(f"s_waitcnt vmcnt({10 if g == 0 else 0})")
        if g == 0:
            ST(a, "B0")
        for r in range(40):
            a(f"v_dot2c_f32_bf16 v{s1[g]}, v{vX[g] + r}, v139")
            a(f"v_dot2c_f32_bf16 v{s2[g]}, v{vX[g] + r}, v{vX[g] + r}")
            a(f"v_dot2c_f32_bf16 v{s3[g]}, v{vX[g] + r}, v{vWr + r}")
            if g == 0:
                a(f"v_dot2c_f32_bf16 v{sw}, v{vWr + r}, v139")
    ST(a, "loopend")
    a("s_nop 3")
    for ctrl in ("quad_perm:[1,0,3,2]", "quad_perm:[2,3,0,1]", "row_half_mirror"):
        for r in s1 + s2 + s3 + (sw,):
            a(f"v_add_f32_dpp v{vT+2}, v{r}, v{r} {ctrl} row_mask:0xf bank_mask:0xf")
            a("s_nop 0")
            a(f"v_mov_b32 v{r}, v{vT+2}")
        a("s_nop 1")
    a(f"v_cmp_eq_u32 vcc, 1, v15")
    a(f"v_add_u32 v{vT}, 8, v14")
    a("s_nop 0")
    for pair in (s1, s2, s3):
        a(f"v_cndmask_b32 v{pair[0]}, v{pair[0]}, v{pair[1]}, vcc")
    a(f"v_cndmask_b32 v{vT}, v14, v{vT}, vcc")
    a(f"v_mov_b32 v{vT+1}, v15")
    s1, s2, s3 = s1[0], s2[0], s3[0]
    a(f"v_mul_f32 v{s1}, {hex(f2u(1.0 / D))}, v{s1}")
    a(f"v_mul_f32 v{s2}, {hex(f2u(1.0 / D))}, v{s2}")
    a(f"v_fma_f32 v{s2}, -v{s1}, v{s1}, v{s2}")
    a(f"v_max_f32 v{s2}, 0, v{s2}")
    a(f"v_add_f32 v{s2}, {hex(f2u(1e-5))}, v{s2}")
    a(f"v_rsq_f32 v{s2}, v{s2}")
    a(f"v_fma_f32 v{s3}, -v{s1}, v{sw}, v{s3}")
    a(f"v_mul_f32 v{s3}, v{s3}, v{s2}")
    ws = f"s[{SRD_WS}:{SRD_WS+3}]"
    a(f"v_ashrrev_i32 v{vT+2}, 31, v{s3}")
    a(f"v_or_b32 v{vT+2}, 0x80000000, v{vT+2}")
    a(f"v_xor_b32 v{vT+2}, v{vT+2}, v{s3}")
    a(f"v_and_b32 v{vT+2}, 0xfffff800, v{vT+2}")
    a(f"v_or_b32 v{vT+2}, v{vT+2}, v{vT}")
    a(f"v_mov_b32 v14, v{s1}")
    a(f"v_mov_b32 v15, v{s2}")
    a(f"v_lshlrev_b32 v{vA}, 3, v{vT}")
    a(f"v_lshlrev_b32 v{vAW}, 2, v{vT}")
    a(f"v_and_b32 v{vT+3}, 127, v{vT}")
    a(f"v_lshlrev_b32 v{vT+3}, 2, v{vT+3}")
    a(f"v_add_u32 v{vT+3}, {L_KEYS}, v{vT+3}")
    a(f"v_cmp_gt_u32 vcc, 2, v{vT+1}")
    a(f"s_mov_b32 s{sT0}, {ST_OFF}")
    a(f"s_mov_b32 s{sT1}, {R_OFF}")
    a("s_and_saveexec_b64 s[44:45], vcc")
    a(f"buffer_store_dwordx2 v[14:15], v{vA}, {ws}, s{sT0} offen{'' if LOCAL_STATS else ' sc1'}")
    a(f"buffer_store_dword v{s3}, v{vAW}, {ws}, s{sT1} offen")
    a(f"ds_write_b32 v{vT+3}, v{vT+2}")
    if LOCAL_STATS:
        a("s_waitcnt lgkmcnt(0)")
    else:
        a("s_load_dwordx2 s[46:47], s[0:1], 72")
        a("s_waitcnt vmcnt(0) lgkmcnt(0)")
    a("s_mov_b64 exec, s[44:45]")
    a("s_barrier")
    a(f"s_cmp_lg_u32 s{sW}, 0")
    a("s_cbranch_scc1 L_k1_repack")
    if not LOCAL_STATS:
        a(f"s_lshl_b32 s{sT0}, s{sMT}, 2")
        a(f"v_mov_b32 v16, s{sT0}")
        a("v_mov_b32 v17, 1")
        a("s_mov_b64 exec, 1")
        a("global_store_dword v16, v17, s[46:47] sc1")
        a("s_mov_b64 exec, -1")
    ST(a, "e_lds")
    hi, lo, oh, ol, adr = 16, 17, 18, 19, 20
    a(f"v_lshlrev_b32 v{adr}, 2, v{vLANE}")
    a(f"ds_read_b32 v{oh}, v{adr} offset:{L_KEYS}")
    a(f"ds_read_b32 v{ol}, v{adr} offset:{L_KEYS + 256}")
    a("s_waitcnt lgkmcnt(0)")
    a(f"v_max_u32 v{hi}, v{oh}, v{ol}")
    a(f"v_min_u32 v{lo}, v{oh}, v{ol}")
    for x in (1, 2, 4, 8, 16, 32):
        a(f"v_xor_b32 v{adr}, {x}, v{vLANE}")
        a(f"v_lshlrev_b32 v{adr}, 2, v{adr}")
        a(f"ds_bpermute_b32 v{oh}, v{adr}, v{hi}")
        a(f"ds_bpermute_b32 v{ol}, v{adr}, v{lo}")
        a("s_waitcnt lgkmcnt(0)")
        a(f"v_max_u32 v{lo}, v{lo}, v{ol}")
        a(f"v_min_u32 v{ol}, v{hi}, v{oh}")
        a(f"v_max_u32 v{hi}, v{hi}, v{oh}")
        a(f"v_max_u32 v{lo}, v{lo}, v{ol}")
    a(f"v_mov_b32 v{oh}, v{hi}")
    a(f"v_mov_b32 v{ol}, v{lo}")
    a(f"s_lshl_b32 s{sT0}, s{sMT}, 3")
    a(f"s_add_u32 s{sT0}, s{sT0}, {CAND_OFF}")
    a(f"v_mov_b32 v{adr}, 0")
    a(f"v_cmp_eq_u32 vcc, 0, v{vLANE}")
    a("s_nop 1")
    a("s_and_saveexec_b64 s[44:45], vcc")
    a(f"buffer_store_dwordx2 v[{oh}:{ol}], v{adr}, {ws}, s{sT0} offen")
    a("s_mov_b64 exec, -1")
    a(f"s_cmp_lg_u32 s{sMT}, 0")
    a("s_cbranch_scc1 L_k1_repack")
    a(f"v_lshlrev_b32 v{adr}, 8, v{vLANE}")
    a(f"v_mov_b32 v{oh}, 0")
    a(f"s_mov_b32 s{sT0}, {CNT_OFF}")
    a(f"v_cmp_gt_u32 vcc, {NCNT}, v{vLANE}")
    a("s_nop 1")
    a("s_mov_b64 exec, vcc")
    a(f"buffer_store_dword v{oh}, v{adr}, {ws}, s{sT0} offen")
    a("s_mov_b64 exec, -1")
    ST(a, "stores")
    ST.store(a)
    a.label("L_k1_repack")
    repack_setup(a, sMT)
    repack_request(a, sW, 0)
    a(f"s_cmp_ge_u32 s{sW}, 2")
    a("s_cbranch_scc1 L_rep_loaded")
    repack_request(a, sW, 1)
    a.label("L_rep_loaded")
    repack_finish(a, sW, "L_k1_exit")

def emit(a):
    entry(a)
    consumer_setup(a)
    a(f"s_cmp_ge_u32 s{sNT}, 10")
    a("s_cbranch_scc1 L_k1_v")
    qk_path(a)
    v_path(a)
    loader(a)
    stat_waves(a)
    aux(a)
    a.label("L_k1_exit")
    a("s_endpgm")
```

```python
from common import *
import os
import slots

NAME = "qkv_kernel"
LDS = 131072 + 2048
VGPRS = 152 if prof_on("k1") else 144
LOCAL_STATS = os.environ.get("K1_STATS", "local") == "local"
BLOCK = 768 if LOCAL_STATS else 576

SRD_X, SRD_W, SRD_WS = 8, 12, 16
sW, sMT, sNT = 20, 21, 22
sROW0 = 23
sT0, sT1, sT2, sT3 = 24, 25, 26, 27
sSEC, sHS, sTS, sSCALE = 28, 29, 30, 31
sTA, sTB = 32, 33
sWR, sWC = 34, 35
sTBL, sN5 = 44, 45
ST_NM, ST_RS, ST_CS = 131072, 131072 + 512, 131072 + 1024

vLANE, vTOK, vH = 1, 2, 3
vT = 4
vXA = 8
vXB = 12
vWA, vWB = 16, 17
vS1, vS2, vCS, vONE = 28, 29, 30, 31
vSEL = 136
vCSA = 140
vF = (32, 48)
vACC = 64
vOFF = 128
vE = 24

ST = StampsLane("k1", 20, 16, 148)
def X(flag):
    return flag in os.environ.get("K1_EXP", "").split(",")

STF = {"": "", "sc1": " sc1", "nt": " nt", "sc01": " sc0 sc1"}[os.environ.get("K1_ST", "")]

def acc(a_, b_):
    return vACC + 32 * a_ + 16 * b_

def entry(a):
    kernel_header(a, NAME)
    ST(a, "entry")
    a("s_cmp_ge_u32 s2, 256")
    a("s_cbranch_scc1 L_k1_exit")
    a("s_load_dwordx4 s[4:7], s[0:1], 0")
    a("s_load_dwordx2 s[36:37], s[0:1], 80")
    a("s_load_dwordx2 s[38:39], s[0:1], 32")
    a(f"v_lshrrev_b32 v{vT}, 6, v0")
    a(f"v_and_b32 v{vLANE}, 63, v0")
    a(f"v_readfirstlane_b32 s{sW}, v{vT}")
    MAP = os.environ.get("K1_MAP", "4x8")
    if MAP == "4x8":
        a(f"s_and_b32 s{sT0}, s2, 3")
        a(f"s_lshl_b32 s{sT0}, s{sT0}, 2")
        a(f"s_bfe_u32 s{sT1}, s2, 0x20003")
        a(f"s_or_b32 s{sMT}, s{sT0}, s{sT1}")
        a(f"s_bfe_u32 s{sT0}, s2, 0x10002")
        a(f"s_lshl_b32 s{sT0}, s{sT0}, 3")
        a(f"s_lshr_b32 s{sT1}, s2, 5")
        a(f"s_or_b32 s{sNT}, s{sT0}, s{sT1}")
    elif MAP == "8x4":
        a(f"s_and_b32 s{sT0}, s2, 1")
        a(f"s_lshl_b32 s{sT0}, s{sT0}, 3")
        a(f"s_bfe_u32 s{sT1}, s2, 0x30003")
        a(f"s_or_b32 s{sMT}, s{sT0}, s{sT1}")
        a(f"s_bfe_u32 s{sT0}, s2, 0x20001")
        a(f"s_lshl_b32 s{sT0}, s{sT0}, 2")
        a(f"s_lshr_b32 s{sT1}, s2, 6")
        a(f"s_or_b32 s{sNT}, s{sT0}, s{sT1}")
    elif MAP == "2x16":
        a(f"s_and_b32 s{sT0}, s2, 7")
        a(f"s_lshl_b32 s{sT0}, s{sT0}, 1")
        a(f"s_bfe_u32 s{sT1}, s2, 0x10003")
        a(f"s_or_b32 s{sMT}, s{sT0}, s{sT1}")
        a(f"s_lshr_b32 s{sNT}, s2, 4")
    elif MAP == "16x2":
        a(f"s_bfe_u32 s{sMT}, s2, 0x40003")
        a(f"s_and_b32 s{sT0}, s2, 7")
        a(f"s_lshl_b32 s{sT0}, s{sT0}, 1")
        a(f"s_lshr_b32 s{sT1}, s2, 7")
        a(f"s_or_b32 s{sNT}, s{sT0}, s{sT1}")
    a(f"s_lshl_b32 s{sROW0}, s{sMT}, 7")
    a(f"v_and_b32 v{vTOK}, 31, v{vLANE}")
    a(f"v_lshrrev_b32 v{vH}, 5, v{vLANE}")
    a("s_waitcnt lgkmcnt(0)")
    srd(a, SRD_X, 4, X_BYTES)
    srd(a, SRD_W, 6, WQKV_BYTES)
    srd(a, SRD_WS, 36, WS_SRD)
    a(f"s_cmp_eq_u32 s{sNT}, 15")
    a("s_cbranch_scc1 L_k1_aux")
    a(f"s_cmp_ge_u32 s{sW}, 8")
    a("s_cbranch_scc1 L_k1_stat")
    a(f"s_cmp_ge_u32 s{sW}, 4")
    a("s_cbranch_scc1 L_k1_loader")

def loader(a):
    a.label("L_k1_loader")
    a(f"s_setprio {os.environ.get('K1_LPRIO', '0')}")
    vX, vWt = 8, 9
    lw = sT0
    a(f"s_sub_u32 s{lw}, s{sW}, 4")
    a(f"v_lshrrev_b32 v{vT}, 3, v{vLANE}")
    a(f"s_lshl_b32 s{sT1}, s{lw}, 3")
    a(f"s_add_u32 s{sT1}, s{sT1}, s{sROW0}")
    a(f"v_add_u32 v{vT}, s{sT1}, v{vT}")
    a(f"v_mul_u32_u24 v{vT}, 1280, v{vT}")
    a(f"v_lshrrev_b32 v{vT+1}, 4, v{vLANE}")
    a(f"s_and_b32 s{sT1}, s{lw}, 1")
    a(f"s_lshl_b32 s{sT1}, s{sT1}, 2")
    a(f"v_add_u32 v{vT+2}, s{sT1}, v{vT+1}")
    a(f"v_and_b32 v{vT+3}, 7, v{vLANE}")
    a(f"v_xor_b32 v{vT+2}, v{vT+2}, v{vT+3}")
    a(f"v_lshl_add_u32 v{vX}, v{vT+2}, 4, v{vT}")
    a(f"s_lshl_b32 s{sT1}, s{lw}, 2")
    a(f"v_add_u32 v{vT}, s{sT1}, v{vT+1}")
    a(f"v_mul_u32_u24 v{vT}, 3840, v{vT}")
    a(f"v_and_b32 v{vT+2}, 15, v{vLANE}")
    a(f"v_lshlrev_b32 v{vT+3}, 2, v{vT+1}")
    a(f"v_xor_b32 v{vT+2}, v{vT+2}, v{vT+3}")
    a(f"v_lshl_add_u32 v{vT}, v{vT+2}, 4, v{vT}")
    a(f"s_lshl_b32 s{sT1}, s{sNT}, 8")
    a(f"v_add_u32 v{vWt}, s{sT1}, v{vT}")
    a(f"s_lshl_b32 s{sT2}, s{lw}, 10")
    vXs, vWs = 44, 48
    for i in range(4):
        a(f"v_add_u32 v{vXs + i}, {i * 40960}, v{vX}")
        a(f"v_add_u32 v{vWs + i}, {i * 16 * 3840}, v{vWt}")
    sXO, sWO = 40, 41
    a("s_lshr_b32 s42, s2, 5")
    a("s_bfe_u32 s43, s2, 0x20003")
    a("s_mul_i32 s43, s43, 3")
    a("s_add_u32 s42, s42, s43")
    a("s_cmp_ge_u32 s42, 10")
    a("s_cselect_b32 s43, 10, 0")
    a("s_sub_u32 s42, s42, s43")
    if not X("rot"):
        a("s_mov_b32 s42, 0")
    def stage(s):
        base = (s & 3) * 32768
        a(f"s_lshl_b32 s{sXO}, s42, 7")
        a(f"s_mul_i32 s{sWO}, s42, {64 * 3840}")
        a("s_add_u32 s42, s42, 1")
        a("s_cmp_eq_u32 s42, 10")
        a("s_cselect_b32 s42, 0, s42")
        for i in range(4):
            a(f"s_add_u32 m0, s{sT2}, {base + i * 4096}")
            a("s_nop 0")
            a(f"buffer_load_dwordx4 v{vXs + i}, s[{SRD_X}:{SRD_X+3}], s{sXO} offen lds")
            a(f"s_add_u32 m0, s{sT2}, {base + 16384 + i * 4096}")
            a("s_nop 0")
            a(f"buffer_load_dwordx4 v{vWs + i}, s[{SRD_W}:{SRD_W+3}], s{sWO} offen lds")
    ST(a, "setup")
    PRE = int(os.environ.get("K1_PRE", "2"))
    for s in range(PRE):
        stage(s)
    ST(a, "B0")
    issued = PRE - 1
    for s in range(10):
        a(f"s_waitcnt vmcnt({8 * (issued - s)})")
        if s in (0, 1, 2, 5):
            ST(a, {0: "g4", 1: "g8", 2: "g20", 5: "loopend"}[s])
        a("s_barrier")
        while issued < min(9, s + int(os.environ.get('K1_DEPTH', '3'))):
            issued += 1
            if not (X("nodma") and issued > 3):
                stage(issued)
    ST(a, "stores")
    ST(a, "end")
    ST.store(a)
    a("s_endpgm")

def stat_waves(a):
    (stat_local if LOCAL_STATS else stat_fetch)(a)

def stat_local(a):
    a.label("L_k1_stat")
    lw = sT0
    vR, vR2, vD, vP, vA1, vA2 = 8, 12, 48, 32, 36, 38
    a(f"s_sub_u32 s{lw}, s{sW}, 8")
    a(f"v_lshrrev_b32 v{vT}, 1, v{vLANE}")
    a(f"s_lshl_b32 s{sT1}, s{lw}, 5")
    a(f"v_add_u32 v{vT}, s{sT1}, v{vT}")
    a(f"v_lshlrev_b32 v{vT+1}, 7, v{vT}")
    a(f"v_and_b32 v{vT+2}, 1, v{vLANE}")
    a(f"v_lshl_add_u32 v{vT+1}, v{vT+2}, 6, v{vT+1}")
    a(f"v_bfe_u32 v{vT+2}, v{vLANE}, 2, 2")
    for i in range(4):
        a(f"v_xor_b32 v{vT+3}, {i}, v{vT+2}")
        a(f"v_lshl_add_u32 v{vR + i}, v{vT+3}, 4, v{vT+1}")
        a(f"v_add_u32 v{vR2 + i}, 65536, v{vR + i}")
    a(f"v_lshlrev_b32 v40, 2, v{vT}")
    for r in range(4):
        a(f"v_mov_b32 v{vA1 + r}, 0")
    TOUCH = os.environ.get("K1_TOUCH", "xw,ws,wts").split(",")
    a(f"v_lshlrev_b32 v41, 16, v{vLANE}")
    a(f"s_cmp_lg_u32 s{sW}, 8")
    a("s_cbranch_scc1 L_k1_touch2")
    if "xw" in TOUCH:
        a(f"buffer_load_dword v42, v41, s[{SRD_X}:{SRD_X+3}], 0 offen")
        a(f"buffer_load_dword v43, v41, s[{SRD_W}:{SRD_W+3}], 0 offen")
    if "ws" in TOUCH:
        for i in range((WS_SRD + (64 << 16) - 1) // (64 << 16)):
            a(f"s_mov_b32 s{sT1}, {i * (64 << 16)}")
            a(f"buffer_load_dword v44, v41, s[{SRD_WS}:{SRD_WS+3}], s{sT1} offen")
    a.label("L_k1_touch2")
    if "wts" in TOUCH or "out" in TOUCH:
        a(f"s_cmp_lg_u32 s{sW}, 9")
        a("s_cbranch_scc1 L_k1_touched")
        a("s_load_dwordx2 s[46:47], s[0:1], 16")
        a("s_load_dwordx4 s[48:51], s[0:1], 40")
        a("s_load_dwordx4 s[52:55], s[0:1], 56")
        a("s_waitcnt lgkmcnt(0)")
        bufs = [(46, WO_BYTES), (48, WG_BYTES), (50, WG_BYTES), (52, WD_BYTES)] if "wts" in TOUCH else []
        if "out" in TOUCH:
            bufs.append((54, X_BYTES))
        for lo, nbytes in bufs:
            srd(a, 56, lo, nbytes)
            a("buffer_load_dword v44, v41, s[56:59], 0 offen")
        a.label("L_k1_touched")
    for s in range(10):
        slot = s & 3
        a("s_barrier")
        if s == 9:
            a(f"s_setprio {os.environ.get('K1_LASTPRIO', '0')}")
        for i in range(4):
            a(f"ds_read_b128 {vr(vD + 4 * i, 4)}, v{(vR if slot < 2 else vR2) + i} offset:{(slot & 1) * 32768}")
        for j in range(16):
            if j % 4 == 0:
                a(f"s_waitcnt lgkmcnt({3 - j // 4})")
            p = vP + 2 * (j & 1)
            a(f"v_lshlrev_b32 v{p}, 16, v{vD + j}")
            a(f"v_and_b32 v{p+1}, 0xffff0000, v{vD + j}")
            a(f"v_add_f32 v{vA1}, v{vA1}, v{p}")
            a(f"v_fmac_f32 v{vA2}, v{p}, v{p}")
            a(f"v_add_f32 v{vA1+1}, v{vA1+1}, v{p+1}")
            a(f"v_fmac_f32 v{vA2+1}, v{p+1}, v{p+1}")
    a(f"v_add_f32 v{vA1}, v{vA1}, v{vA1+1}")
    a(f"v_add_f32 v{vA2}, v{vA2}, v{vA2+1}")
    a("s_nop 1")
    a(f"v_add_f32_dpp v{vA1+1}, v{vA1}, v{vA1} quad_perm:[1,0,3,2] row_mask:0xf bank_mask:0xf")
    a(f"v_add_f32_dpp v{vA2+1}, v{vA2}, v{vA2} quad_perm:[1,0,3,2] row_mask:0xf bank_mask:0xf")
    a(f"v_mul_f32 v{vA1}, {hex(f2u(1.0 / D))}, v{vA1+1}")
    a(f"v_mul_f32 v{vA2}, {hex(f2u(1.0 / D))}, v{vA2+1}")
    a(f"v_fma_f32 v{vA2}, -v{vA1}, v{vA1}, v{vA2}")
    a(f"v_max_f32 v{vA2}, 0, v{vA2}")
    a(f"v_add_f32 v{vA2}, {hex(f2u(1e-5))}, v{vA2}")
    a(f"v_rsq_f32 v{vA2}, v{vA2}")
    a(f"v_sub_f32 v{vA1}, 0, v{vA1}")
    a(f"v_add_u32 v40, {ST_NM}, v40")
    a(f"ds_write_b32 v40, v{vA1}")
    a(f"ds_write_b32 v40, v{vA2} offset:512")
    a("s_waitcnt lgkmcnt(0)")
    ST(a, "stores")
    a("s_barrier")
    ST(a, "end")
    ST.store(a)
    a("s_endpgm")

def stat_fetch(a):
    a.label("L_k1_stat")
    vA, vF, vD = 8, 9, 12
    ws = f"s[{SRD_WS}:{SRD_WS+3}]"
    a("s_load_dwordx2 s[46:47], s[0:1], 72")
    a(f"v_lshlrev_b32 v{vA}, 4, v{vLANE}")
    a(f"s_lshl_b32 s{sT0}, s{sMT}, 2")
    a(f"v_mov_b32 v{vF}, s{sT0}")
    a(f"s_lshl_b32 s{sT1}, s{sMT}, 10")
    a(f"s_add_u32 s{sT1}, s{sT1}, {ST_OFF}")
    a(f"v_lshlrev_b32 v10, 3, v{vLANE}")
    a(f"v_add_u32 v10, {ST_NM}, v10")
    a(f"s_mov_b32 s{sT2}, 0")
    a("s_waitcnt lgkmcnt(0)")
    def advance(tag, blocking):
        a(f"s_cmp_eq_u32 s{sT2}, 2")
        a(f"s_cbranch_scc1 L_st_{tag}_end")
        a("s_waitcnt vmcnt(0)")
        a(f"s_cmp_eq_u32 s{sT2}, 1")
        a(f"s_cbranch_scc1 L_st_{tag}_land")
        a(f"v_readfirstlane_b32 s{sT3}, v11")
        a("s_nop 1")
        a(f"s_cmp_eq_u32 s{sT3}, 1")
        a(f"s_cbranch_scc1 L_st_{tag}_go")
        a(f"global_load_dword v11, v{vF}, s[46:47] sc1")
        a(f"s_branch L_st_{tag}_end")
        a.label(f"L_st_{tag}_go")
        a(f"buffer_load_dwordx4 {vr(vD, 4)}, v{vA}, {ws}, s{sT1} offen sc1")
        a(f"s_mov_b32 s{sT2}, 1")
        a(f"s_branch L_st_{tag}_end")
        a.label(f"L_st_{tag}_land")
        a(f"v_sub_f32 v16, 0, v{vD}")
        a(f"v_sub_f32 v17, 0, v{vD+2}")
        a(f"v_mov_b32 v18, v{vD+1}")
        a(f"v_mov_b32 v19, v{vD+3}")
        a("ds_write_b64 v10, v[16:17]")
        a("ds_write_b64 v10, v[18:19] offset:512")
        a(f"s_mov_b32 s{sT2}, 2")
        a.label(f"L_st_{tag}_end")
    a("v_mov_b32 v11, 0")
    if X("touch"):
        a(f"s_mov_b32 s{sT3}, {YP_OFF}")
        a("v_mov_b32 v21, 0")
        a(f"buffer_load_dword v20, v21, {ws}, s{sT3} offen")
        a("global_load_dword v22, v21, s[46:47] offset:192")
    for s in range(10):
        a("s_barrier")
        if s in (1, 3, 5, 7):
            advance(f"b{s}", False)
    a(f"s_mov_b32 s48, {1 << 20}")
    a.label("L_st_fin")
    advance("fin", True)
    a("s_sub_u32 s48, s48, 1")
    a("s_cbranch_scc1 L_st_done")
    a(f"s_cmp_eq_u32 s{sT2}, 2")
    a("s_cbranch_scc0 L_st_fin")
    a.label("L_st_done")
    a("s_waitcnt lgkmcnt(0)")
    ST(a, "stores")
    a("s_barrier")
    ST(a, "end")
    ST.store(a)
    a("s_endpgm")

def read_list(g):
    ks, half = g & 3, (g >> 2) & 1
    base = half * 32768
    f = vF[g & 1]
    w = lambda b, reg, rd: f"ds_read_b64_tr_b16 {vr(f + 8 + 4 * b + 2 * rd, 2)}, v{reg} offset:{base + 16384 + (16 * ks + 4 * rd) * 256}"
    return [f"ds_read_b128 {vr(f, 4)}, v{vXA + ks} offset:{base}", w(0, vWA, 0), w(0, vWA, 1),
            w(1, vWB, 0), w(1, vWB, 1), f"ds_read_b128 {vr(f + 4, 4)}, v{vXB + ks} offset:{base}"]

def step(a, g, vorient, reads, pre=None):
    f = vF[g & 1]
    def mm(a_, b_):
        x, w = vr(f + 4 * a_, 4), vr(f + 8 + 4 * b_, 4)
        A, B = (x, w) if vorient else (w, x)
        a(f"v_mfma_f32_32x32x16_bf16 {vr(acc(a_, b_), 16)}, {A}, {B}, {vr(acc(a_, b_), 16)}")
    if pre is not None:
        a("s_waitcnt lgkmcnt(0)")
        mm(0, 0)
        mm(0, 1)
        pre()
        for r in reads[0:3]: a(r)
        mm(1, 0)
        for r in reads[3:6]: a(r)
        mm(1, 1)
    else:
        a("s_waitcnt lgkmcnt(3)")
        mm(0, 0)
        for r in reads[0:3]: a(r)
        a("s_waitcnt lgkmcnt(4)")
        mm(0, 1)
        for r in reads[3:6]: a(r)
        a("s_waitcnt lgkmcnt(6)")
        mm(1, 0)
        mm(1, 1)
    a(f"v_mfma_f32_16x16x32_bf16 {vr(vCSA, 4)}, {vr(vSEL, 4)}, {vr(f + 8, 4)}, {vr(vCSA, 4)}")

def mainloop(a, vorient):
    tag = "v" if vorient else "qk"
    ST(a, "setup")
    a("s_barrier")
    ST(a, "B0")
    for r in read_list(0):
        a(r)
    a(f"s_mov_b32 s{sT3}, 5")
    a(".p2align 3")
    a.label(f"L_k1_loop_{tag}")
    def pre7():
        a(f"s_sub_u32 s{sT3}, s{sT3}, 1")
        a(f"s_cmp_eq_u32 s{sT3}, 0")
        a(f"s_cbranch_scc1 L_k1_last_{tag}")
        for r in list(range(vXA, vXA + 4)) + list(range(vXB, vXB + 4)) + [vWA, vWB]:
            a(f"v_xor_b32 v{r}, 0x10000, v{r}")
        a("s_barrier")
    for g in range(8):
        pre = (lambda: a("s_barrier")) if g == 3 else (pre7 if g == 7 else None)
        step(a, g, vorient, read_list(g + 1), pre)
    a(f"s_branch L_k1_loop_{tag}")
    a.label(f"L_k1_last_{tag}")
    f = vF[1]
    for b_ in range(2):
        x, w = vr(f + 4, 4), vr(f + 8 + 4 * b_, 4)
        A, B = (x, w) if vorient else (w, x)
        a(f"v_mfma_f32_32x32x16_bf16 {vr(acc(1, b_), 16)}, {A}, {B}, {vr(acc(1, b_), 16)}")
    a(f"v_mfma_f32_16x16x32_bf16 {vr(vCSA, 4)}, {vr(vSEL, 4)}, {vr(f + 8, 4)}, {vr(vCSA, 4)}")

def stats_exchange(a):
    ST(a, "loopend")
    a(f"s_lshl_b32 s{sT0}, s{sWC}, 6")
    a(f"s_lshl_b32 s{sT1}, s{sWR}, 5")
    a(f"s_add_u32 s{sT0}, s{sT0}, s{sT1}")
    a(f"v_add_u32 v{vT+1}, s{sT0}, v{vLANE}")
    a(f"v_lshlrev_b32 v{vT+1}, 2, v{vT+1}")
    a(f"v_add_u32 v{vT+1}, {ST_CS}, v{vT+1}")
    a("s_mov_b64 exec, 0xffff")
    a("s_nop 4")
    a(f"ds_write_b32 v{vT+1}, v{vCSA}")
    a(f"ds_write_b32 v{vT+1}, v{vCSA+1} offset:64")
    a("s_mov_b64 exec, -1")
    a("s_waitcnt lgkmcnt(0)")
    a("s_barrier")
    ST(a, "e_bar")

def consumer_setup(a):
    a(f"s_lshr_b32 s{sWR}, s{sW}, 1")
    a(f"s_and_b32 s{sWC}, s{sW}, 1")
    a(f"v_lshrrev_b32 v{vT}, 1, v{vTOK}")
    a(f"v_and_b32 v{vT}, 7, v{vT}")
    a(f"s_lshl_b32 s{sT0}, s{sWR}, 6")
    a(f"v_add_u32 v{vT+1}, s{sT0}, v{vTOK}")
    a(f"v_lshlrev_b32 v{vT+1}, 7, v{vT+1}")
    a(f"s_lshl_b32 s{sT0}, s{sWC}, 12")
    a(f"s_xor_b32 s{sT1}, s{sT0}, 4096")
    for ks in range(4):
        a(f"v_add_u32 v{vT+2}, {2 * ks}, v{vH}")
        a(f"v_xor_b32 v{vT+2}, v{vT+2}, v{vT}")
        a(f"v_lshl_add_u32 v{vT+2}, v{vT+2}, 4, v{vT+1}")
        a(f"v_add_u32 v{vXA + ks}, s{sT0}, v{vT+2}")
        a(f"v_add_u32 v{vXB + ks}, s{sT1}, v{vT+2}")
    a(f"s_sub_u32 s{sN5}, s{sNT}, 5")
    a(f"s_cmp_lt_u32 s{sNT}, 5")
    a(f"s_cselect_b32 s{sN5}, s{sNT}, s{sN5}")
    for wc in range(2):
        reg = sT0 + wc
        a(f"s_mov_b32 s{reg}, {hex(0x76543210 + wc * 0x88888888)}")
        for n5 in range(5):
            a(f"s_cmp_eq_u32 s{sN5}, {n5}")
            a(f"s_cselect_b32 s{reg}, {hex(slots.packed(n5, wc))}, s{reg}")
    a(f"s_cmp_eq_u32 s{sWC}, 0")
    a(f"s_cselect_b32 s{sTBL}, s{sT0}, s{sT1}")
    a(f"v_bfe_u32 v{vT}, v{vLANE}, 2, 2")
    a(f"v_lshl_add_u32 v{vT+1}, v{vH}, 3, v{vT}")
    a(f"v_lshlrev_b32 v{vT+1}, 8, v{vT+1}")
    a(f"v_and_b32 v{vT+2}, 1, v{vLANE}")
    a(f"v_lshl_add_u32 v{vT+1}, v{vT+2}, 3, v{vT+1}")
    a(f"v_bfe_u32 v{vT+2}, v{vLANE}, 4, 1")
    a(f"v_bfe_u32 v{vT+3}, v{vLANE}, 1, 1")
    a(f"v_lshl_add_u32 v{vT+2}, v{vT+2}, 1, v{vT+3}")
    a(f"v_lshlrev_b32 v{vT+2}, 2, v{vT+2}")
    a(f"v_lshlrev_b32 v{vT}, 2, v{vT}")
    for (dst, own) in ((vWA, True), (vWB, False)):
        if own:
            a(f"s_lshl_b32 s{sT0}, s{sWR}, 4")
        else:
            a(f"s_xor_b32 s{sT0}, s{sWR}, 1")
            a(f"s_lshl_b32 s{sT0}, s{sT0}, 4")
        a(f"s_lshr_b32 s{sT0}, s{sTBL}, s{sT0}")
        a(f"v_lshrrev_b32 v{vT+3}, v{vT+2}, s{sT0}") if False else None
        a(f"v_mov_b32 v{vT+3}, s{sT0}")
        a(f"v_lshrrev_b32 v{vT+3}, v{vT+2}, v{vT+3}")
        a(f"v_and_b32 v{vT+3}, 15, v{vT+3}")
        a(f"v_xor_b32 v{vT+3}, v{vT+3}, v{vT}")
        a(f"v_lshl_add_u32 v{dst}, v{vT+3}, 4, v{vT+1}")
    a(f"v_and_b32 v{vT}, 15, v{vLANE}")
    a(f"v_bfe_u32 v{vT+1}, v{vLANE}, 4, 1")
    a(f"v_cmp_eq_u32 vcc, v{vT}, v{vT+1}")
    a(f"v_mov_b32 v{vT+2}, 0x3f803f80")
    a("s_nop 0")
    a(f"v_cndmask_b32 v{vSEL}, 0, v{vT+2}, vcc")
    for r in range(1, 4):
        a(f"v_mov_b32 v{vSEL + r}, v{vSEL}")
    for r in range(4):
        a(f"v_mov_b32 v{vCSA + r}, 0")
    for r in range(64):
        a(f"v_mov_b32 v{vACC + r}, 0")

def qk_path(a):
    a.label("L_k1_qk")
    a(f"s_mov_b32 s{sSEC}, {KV_OFF}")
    a(f"s_mov_b32 s{sTS}, 2560")
    a(f"s_mov_b32 s{sSCALE}, {hex(f2u(1.0))}")
    a(f"s_sub_u32 s{sT0}, s{sNT}, 5")
    a(f"s_cmp_lt_u32 s{sNT}, 5")
    a(f"s_cselect_b32 s{sSEC}, {QB_OFF}, s{sSEC}")
    a(f"s_cselect_b32 s{sTS}, 1280, s{sTS}")
    a(f"s_cselect_b32 s{sSCALE}, {hex(f2u(QSCALE))}, s{sSCALE}")
    a(f"s_cselect_b32 s{sT0}, s{sNT}, s{sT0}")
    a(f"s_lshl_b32 s{sHS}, s{sTS}, 6")
    a(f"s_lshl_b32 s{sT1}, s{sMT}, 2")
    a(f"s_lshl_b32 s{sT2}, s{sWR}, 1")
    a(f"s_add_u32 s{sT1}, s{sT1}, s{sT2}")
    a(f"s_add_u32 s{sT2}, s{sT1}, s{sWC}")
    a(f"s_mul_i32 s{sTA}, s{sT2}, s{sTS}")
    a(f"s_add_u32 s{sTA}, s{sTA}, s{sSEC}")
    a(f"s_xor_b32 s{sT3}, s{sWC}, 1")
    a(f"s_add_u32 s{sT2}, s{sT1}, s{sT3}")
    a(f"s_mul_i32 s{sTB}, s{sT2}, s{sTS}")
    a(f"s_add_u32 s{sTB}, s{sTB}, s{sSEC}")
    for k_, (ct, g) in enumerate(((0, 0), (0, 2), (1, 0), (1, 2), (1, 3))):
        o = vOFF + k_
        a(f"s_bfe_u32 s{sT1}, s{sTBL}, {hex((4 << 16) | (16 * ct + 4 * g))}")
        a(f"s_lshl_b32 s{sT2}, s{sN5}, 4")
        a(f"s_add_u32 s{sT1}, s{sT1}, s{sT2}")
        a(f"s_lshl_b32 s{sT1}, s{sT1}, 1")
        a(f"v_add_u32 v{vT}, s{sT1}, v{vH}")
        a(f"v_mul_u32_u24 v{vT+1}, 52429, v{vT}")
        a(f"v_lshrrev_b32 v{vT+1}, 18, v{vT+1}")
        a(f"v_mul_u32_u24 v{vT+2}, 5, v{vT+1}")
        a(f"v_sub_u32 v{vT+2}, v{vT}, v{vT+2}")
        a(f"v_and_b32 v{vT+3}, 1, v{vT+1}")
        a(f"v_sub_u32 v{vT+2}, v{vT+2}, v{vT+3}")
        a(f"v_mul_lo_u32 v{o}, v{vT+1}, s{sHS}")
        a(f"v_and_b32 v{vT+1}, 1, v{vT+2}")
        a(f"v_lshlrev_b32 v{vT+1}, 9, v{vT+1}")
        a(f"v_bfe_u32 v{vT+3}, v{vT+2}, 1, 1")
        a(f"v_lshl_add_u32 v{vT+1}, v{vT+3}, 3, v{vT+1}")
        a(f"v_lshl_add_u32 v{vT+1}, v{vTOK}, 4, v{vT+1}")
        a(f"v_cmp_lt_u32 vcc, 3, v{vT+2}")
        a(f"v_lshlrev_b32 v{vT+3}, 3, v{vTOK}")
        a(f"v_add_u32 v{vT+3}, 1024, v{vT+3}")
        a(f"v_cndmask_b32 v{vT+1}, v{vT+1}, v{vT+3}, vcc")
        a(f"v_add_u32 v{o}, v{o}, v{vT+1}")
    mainloop(a, False)
    stats_exchange(a)
    vNM, vRS, vC = vE, vE + 2, vE + 4
    a(f"s_lshl_b32 s{sT0}, s{sWR}, 6")
    a(f"v_add_u32 v{vT}, s{sT0}, v{vTOK}")
    a(f"v_lshlrev_b32 v{vT}, 2, v{vT}")
    a(f"s_lshl_b32 s{sT1}, s{sWC}, 7")
    a(f"v_add_u32 v{vT+1}, s{sT1}, v{vT}")
    a(f"s_xor_b32 s{sT1}, s{sT1}, 128")
    a(f"v_add_u32 v{vT+2}, s{sT1}, v{vT}")
    a(f"v_add_u32 v{vT+1}, {ST_NM}, v{vT+1}")
    a(f"v_add_u32 v{vT+2}, {ST_NM}, v{vT+2}")
    a(f"ds_read_b32 v{vNM}, v{vT+1}")
    a(f"ds_read_b32 v{vRS}, v{vT+1} offset:512")
    a(f"ds_read_b32 v{vNM+1}, v{vT+2}")
    a(f"ds_read_b32 v{vRS+1}, v{vT+2} offset:512")
    a(f"s_lshl_b32 s{sT0}, s{sWC}, 8")
    a(f"v_lshlrev_b32 v{vT}, 4, v{vH}")
    a(f"v_add_u32 v{vT}, s{sT0}, v{vT}")
    a(f"s_lshl_b32 s{sT1}, s{sWR}, 7")
    a(f"v_add_u32 v{vT+1}, s{sT1}, v{vT}")
    a(f"s_xor_b32 s{sT1}, s{sT1}, 128")
    a(f"v_add_u32 v{vT+2}, s{sT1}, v{vT}")
    a(f"v_add_u32 v{vT+1}, {ST_CS}, v{vT+1}")
    a(f"v_add_u32 v{vT+2}, {ST_CS}, v{vT+2}")
    for b_ in range(2):
        for g in range(4):
            a(f"ds_read_b128 {vr(vC + 16 * b_ + 4 * g, 4)}, v{vT + 1 + b_} offset:{32 * g}")
    a("s_waitcnt lgkmcnt(0)")
    ST(a, "e_lds")
    a(f"v_mul_f32 v{vRS}, s{sSCALE}, v{vRS}")
    a(f"v_mul_f32 v{vRS+1}, s{sSCALE}, v{vRS+1}")
    ws = f"s[{SRD_WS}:{SRD_WS+3}]"
    def finish(wr):
        for a_ in range(2):
            a(f"v_mov_b32 v{vT}, v{vNM + a_}")
            a(f"v_mov_b32 v{vT+1}, v{vNM + a_}")
            a(f"v_mov_b32 v{vT+2}, v{vRS + a_}")
            a(f"v_mov_b32 v{vT+3}, v{vRS + a_}")
            so = f"s{sTA if a_ == 0 else sTB}"
            for b_ in range(2):
                A = acc(a_, b_)
                for p in range(8):
                    a(f"v_pk_fma_f32 {vr(A + 2 * p, 2)}, {vr(vC + 16 * b_ + 2 * p, 2)}, {vr(vT, 2)}, {vr(A + 2 * p, 2)}")
                for p in range(8):
                    a(f"v_pk_mul_f32 {vr(A + 2 * p, 2)}, {vr(A + 2 * p, 2)}, {vr(vT + 2, 2)}")
                for p in range(8):
                    a(f"v_cvt_pk_bf16_f32 v{A + p}, v{A + 2 * p}, v{A + 2 * p + 1}")
                if (wr ^ b_) == 0:
                    a(f"buffer_store_dwordx4 {vr(A, 4)}, v{vOFF}, {ws}, {so} offen{STF}")
                    a(f"buffer_store_dwordx4 {vr(A + 4, 4)}, v{vOFF + 1}, {ws}, {so} offen{STF}")
                else:
                    a(f"buffer_store_dwordx4 {vr(A, 4)}, v{vOFF + 2}, {ws}, {so} offen{STF}")
                    a(f"buffer_store_dwordx2 {vr(A + 4, 2)}, v{vOFF + 3}, {ws}, {so} offen{STF}")
                    a(f"buffer_store_dwordx2 {vr(A + 6, 2)}, v{vOFF + 4}, {ws}, {so} offen{STF}")
    a(f"s_cmp_eq_u32 s{sWR}, 0")
    a("s_cbranch_scc0 L_k1_qk_wr1")
    finish(0)
    a("s_branch L_k1_qk_done")
    a.label("L_k1_qk_wr1")
    finish(1)
    a.label("L_k1_qk_done")
    ST(a, "stores")
    if ST.on:
        a("s_waitcnt vmcnt(0)")
    ST(a, "end")
    ST.store(a)
    a("s_endpgm")

def v_path(a):
    a.label("L_k1_v")
    a(f"s_lshl_b32 s{sT1}, s{sMT}, 2")
    a(f"s_lshl_b32 s{sT2}, s{sWR}, 1")
    a(f"s_add_u32 s{sT1}, s{sT1}, s{sT2}")
    a(f"s_add_u32 s{sT2}, s{sT1}, s{sWC}")
    a(f"s_mul_i32 s{sTA}, s{sT2}, 2560")
    a(f"s_add_u32 s{sTA}, s{sTA}, {KV_OFF + 1280}")
    a(f"s_xor_b32 s{sT3}, s{sWC}, 1")
    a(f"s_add_u32 s{sT2}, s{sT1}, s{sT3}")
    a(f"s_mul_i32 s{sTB}, s{sT2}, 2560")
    a(f"s_add_u32 s{sTB}, s{sTB}, {KV_OFF + 1280}")
    a(f"s_sub_u32 s{sT0}, s{sNT}, 10")
    a(f"s_lshl_b32 s{sT0}, s{sT0}, 7")
    a(f"s_lshl_b32 s{sT1}, s{sWC}, 6")
    a(f"s_add_u32 s{sT0}, s{sT0}, s{sT1}")
    for b_ in range(2):
        if b_ == 0:
            a(f"s_lshl_b32 s{sT1}, s{sWR}, 5")
        else:
            a(f"s_xor_b32 s{sT1}, s{sWR}, 1")
            a(f"s_lshl_b32 s{sT1}, s{sT1}, 5")
        a(f"s_add_u32 s{sT1}, s{sT1}, s{sT0}")
        a(f"v_add_u32 v{vT}, s{sT1}, v{vTOK}")
        a(f"v_mul_u32_u24 v{vT+1}, 52429, v{vT}")
        a(f"v_lshrrev_b32 v{vT+1}, 20, v{vT+1}")
        a(f"v_mul_u32_u24 v{vT+2}, 20, v{vT+1}")
        a(f"v_sub_u32 v{vT+2}, v{vT}, v{vT+2}")
        a(f"s_mov_b32 s{sT2}, {64 * 2560}")
        a(f"v_mul_lo_u32 v{vOFF + b_}, v{vT+1}, s{sT2}")
        a(f"v_lshlrev_b32 v{vT+2}, 4, v{vT+2}")
        a(f"v_mul_u32_u24 v{vT+3}, 320, v{vH}")
        a(f"v_add3_u32 v{vOFF + b_}, v{vOFF + b_}, v{vT+2}, v{vT+3}")
    mainloop(a, True)
    stats_exchange(a)
    vCL, vNM, vRS = vE, vE + 4, vE + 20
    a(f"s_lshl_b32 s{sT0}, s{sWC}, 6")
    a(f"v_add_u32 v{vT}, s{sT0}, v{vTOK}")
    a(f"v_lshlrev_b32 v{vT}, 2, v{vT}")
    a(f"s_lshl_b32 s{sT1}, s{sWR}, 7")
    a(f"v_add_u32 v{vT+1}, s{sT1}, v{vT}")
    a(f"s_xor_b32 s{sT1}, s{sT1}, 128")
    a(f"v_add_u32 v{vT+2}, s{sT1}, v{vT}")
    a(f"v_add_u32 v{vT+1}, {ST_CS}, v{vT+1}")
    a(f"v_add_u32 v{vT+2}, {ST_CS}, v{vT+2}")
    a(f"ds_read_b32 v{vCL}, v{vT+1}")
    a(f"ds_read_b32 v{vCL+2}, v{vT+2}")
    a("s_waitcnt lgkmcnt(0)")
    a(f"v_mov_b32 v{vCL+1}, v{vCL}")
    a(f"v_mov_b32 v{vCL+3}, v{vCL+2}")
    ws = f"s[{SRD_WS}:{SRD_WS+3}]"
    for a_ in range(2):
        a(f"s_lshl_b32 s{sT0}, s{sWR}, 8")
        a(f"s_lshl_b32 s{sT1}, s{sWC}, 7")
        if a_ == 1:
            a(f"s_xor_b32 s{sT1}, s{sT1}, 128")
        a(f"s_add_u32 s{sT0}, s{sT0}, s{sT1}")
        a(f"v_lshlrev_b32 v{vT}, 4, v{vH}")
        a(f"v_add_u32 v{vT}, s{sT0}, v{vT}")
        a(f"v_add_u32 v{vT}, {ST_NM}, v{vT}")
        for g in range(4):
            a(f"ds_read_b128 {vr(vNM + 4 * g, 4)}, v{vT} offset:{32 * g}")
            a(f"ds_read_b128 {vr(vRS + 4 * g, 4)}, v{vT} offset:{512 + 32 * g}")
        a("s_waitcnt lgkmcnt(0)")
        for b_ in range(2):
            A = acc(a_, b_)
            for p in range(8):
                a(f"v_pk_fma_f32 {vr(A + 2 * p, 2)}, {vr(vNM + 2 * p, 2)}, {vr(vCL + 2 * b_, 2)}, {vr(A + 2 * p, 2)}")
            for p in range(8):
                a(f"v_pk_mul_f32 {vr(A + 2 * p, 2)}, {vr(A + 2 * p, 2)}, {vr(vRS + 2 * p, 2)}")
            for p in range(8):
                a(f"v_cvt_pk_bf16_f32 v{A + p}, v{A + 2 * p}, v{A + 2 * p + 1}")
            for t in range(2):
                a(f"buffer_store_dwordx4 {vr(A + 4 * t, 4)}, v{vOFF + b_}, {ws}, s{sTA if a_ == 0 else sTB} offen offset:{640 * t}{STF}")
    ST(a, "stores")
    if ST.on:
        a("s_waitcnt vmcnt(0)")
    ST(a, "end")
    ST.store(a)
    a("s_endpgm")

L_KEYS, L_WR = 51200, 52224

def aux(a):
    from k2moe import repack_setup, repack_request, repack_finish
    a.label("L_k1_aux")
    a(f"s_cmp_ge_u32 s{sW}, 8")
    a("s_cbranch_scc1 L_k1_exit")
    vX, vWr = (16, 56), 96
    vA, vAW = 8, 9
    s1, s2, s3, sw = (10, 136), (11, 137), (12, 138), 13
    SRD_R = 40
    a("s_load_dwordx2 s[6:7], s[0:1], 16")
    srd(a, SRD_R, 38, D * 2)
    a(f"v_lshrrev_b32 v{vT}, 3, v{vLANE}")
    a(f"s_lshl_b32 s{sT0}, s{sW}, 4")
    a(f"s_add_u32 s{sT0}, s{sT0}, s{sROW0}")
    a(f"v_add_u32 v14, s{sT0}, v{vT}")
    a(f"v_and_b32 v15, 7, v{vLANE}")
    a(f"v_lshlrev_b32 v{vAW}, 4, v15")
    a(f"v_mul_u32_u24 v{vA}, 1280, v14")
    a(f"v_add_u32 v{vA}, v{vA}, v{vAW}")
    if X("touch"):
        a("s_load_dwordx2 s[46:47], s[0:1], 72")
        a(f"s_mov_b32 s{sT1}, {YP_OFF}")
        a(f"v_mov_b32 v140, 0")
        a(f"buffer_load_dword v141, v140, s[{SRD_WS}:{SRD_WS+3}], s{sT1} offen")
        a("s_waitcnt lgkmcnt(0)")
        a("global_load_dword v142, v140, s[46:47] offset:192")
    a(f"s_mov_b32 s{sT1}, {8 * 1280}")
    for g in range(2):
        for i in range(10):
            a(f"buffer_load_dwordx4 {vr(vX[g] + 4 * i, 4)}, v{vA}, s[{SRD_X}:{SRD_X+3}], {0 if g == 0 else f's{sT1}'} offen offset:{i * 128}")
        if g == 0:
            for i in range(10):
                a(f"buffer_load_dwordx4 {vr(vWr + 4 * i, 4)}, v{vAW}, s[{SRD_R}:{SRD_R+3}], 0 offen offset:{i * 128}")
    for r in s1 + s2 + s3 + (sw,):
        a(f"v_mov_b32 v{r}, 0")
    a(f"v_mov_b32 v139, 0x3f803f80")
    ST(a, "setup")
    for g in range(2):
        a(f"s_waitcnt vmcnt({10 if g == 0 else 0})")
        if g == 0:
            ST(a, "B0")
        for r in range(40):
            a(f"v_dot2c_f32_bf16 v{s1[g]}, v{vX[g] + r}, v139")
            a(f"v_dot2c_f32_bf16 v{s2[g]}, v{vX[g] + r}, v{vX[g] + r}")
            a(f"v_dot2c_f32_bf16 v{s3[g]}, v{vX[g] + r}, v{vWr + r}")
            if g == 0:
                a(f"v_dot2c_f32_bf16 v{sw}, v{vWr + r}, v139")
    ST(a, "loopend")
    a("s_nop 3")
    for ctrl in ("quad_perm:[1,0,3,2]", "quad_perm:[2,3,0,1]", "row_half_mirror"):
        for r in s1 + s2 + s3 + (sw,):
            a(f"v_add_f32_dpp v{vT+2}, v{r}, v{r} {ctrl} row_mask:0xf bank_mask:0xf")
            a("s_nop 0")
            a(f"v_mov_b32 v{r}, v{vT+2}")
        a("s_nop 1")
    a(f"v_cmp_eq_u32 vcc, 1, v15")
    a(f"v_add_u32 v{vT}, 8, v14")
    a("s_nop 0")
    for pair in (s1, s2, s3):
        a(f"v_cndmask_b32 v{pair[0]}, v{pair[0]}, v{pair[1]}, vcc")
    a(f"v_cndmask_b32 v{vT}, v14, v{vT}, vcc")
    a(f"v_mov_b32 v{vT+1}, v15")
    s1, s2, s3 = s1[0], s2[0], s3[0]
    a(f"v_mul_f32 v{s1}, {hex(f2u(1.0 / D))}, v{s1}")
    a(f"v_mul_f32 v{s2}, {hex(f2u(1.0 / D))}, v{s2}")
    a(f"v_fma_f32 v{s2}, -v{s1}, v{s1}, v{s2}")
    a(f"v_max_f32 v{s2}, 0, v{s2}")
    a(f"v_add_f32 v{s2}, {hex(f2u(1e-5))}, v{s2}")
    a(f"v_rsq_f32 v{s2}, v{s2}")
    a(f"v_fma_f32 v{s3}, -v{s1}, v{sw}, v{s3}")
    a(f"v_mul_f32 v{s3}, v{s3}, v{s2}")
    ws = f"s[{SRD_WS}:{SRD_WS+3}]"
    a(f"v_ashrrev_i32 v{vT+2}, 31, v{s3}")
    a(f"v_or_b32 v{vT+2}, 0x80000000, v{vT+2}")
    a(f"v_xor_b32 v{vT+2}, v{vT+2}, v{s3}")
    a(f"v_and_b32 v{vT+2}, 0xfffff800, v{vT+2}")
    a(f"v_or_b32 v{vT+2}, v{vT+2}, v{vT}")
    a(f"v_mov_b32 v14, v{s1}")
    a(f"v_mov_b32 v15, v{s2}")
    a(f"v_lshlrev_b32 v{vA}, 3, v{vT}")
    a(f"v_lshlrev_b32 v{vAW}, 2, v{vT}")
    a(f"v_and_b32 v{vT+3}, 127, v{vT}")
    a(f"v_lshlrev_b32 v{vT+3}, 2, v{vT+3}")
    a(f"v_add_u32 v{vT+3}, {L_KEYS}, v{vT+3}")
    a(f"v_cmp_gt_u32 vcc, 2, v{vT+1}")
    a(f"s_mov_b32 s{sT0}, {ST_OFF}")
    a(f"s_mov_b32 s{sT1}, {R_OFF}")
    a("s_and_saveexec_b64 s[44:45], vcc")
    a(f"buffer_store_dwordx2 v[14:15], v{vA}, {ws}, s{sT0} offen{'' if LOCAL_STATS else ' sc1'}")
    a(f"buffer_store_dword v{s3}, v{vAW}, {ws}, s{sT1} offen")
    a(f"ds_write_b32 v{vT+3}, v{vT+2}")
    if LOCAL_STATS:
        a("s_waitcnt lgkmcnt(0)")
    else:
        a("s_load_dwordx2 s[46:47], s[0:1], 72")
        a("s_waitcnt vmcnt(0) lgkmcnt(0)")
    a("s_mov_b64 exec, s[44:45]")
    a("s_barrier")
    a(f"s_cmp_lg_u32 s{sW}, 0")
    a("s_cbranch_scc1 L_k1_repack")
    if not LOCAL_STATS:
        a(f"s_lshl_b32 s{sT0}, s{sMT}, 2")
        a(f"v_mov_b32 v16, s{sT0}")
        a("v_mov_b32 v17, 1")
        a("s_mov_b64 exec, 1")
        a("global_store_dword v16, v17, s[46:47] sc1")
        a("s_mov_b64 exec, -1")
    ST(a, "e_lds")
    hi, lo, oh, ol, adr = 16, 17, 18, 19, 20
    a(f"v_lshlrev_b32 v{adr}, 2, v{vLANE}")
    a(f"ds_read_b32 v{oh}, v{adr} offset:{L_KEYS}")
    a(f"ds_read_b32 v{ol}, v{adr} offset:{L_KEYS + 256}")
    a("s_waitcnt lgkmcnt(0)")
    a(f"v_max_u32 v{hi}, v{oh}, v{ol}")
    a(f"v_min_u32 v{lo}, v{oh}, v{ol}")
    for x in (1, 2, 4, 8, 16, 32):
        a(f"v_xor_b32 v{adr}, {x}, v{vLANE}")
        a(f"v_lshlrev_b32 v{adr}, 2, v{adr}")
        a(f"ds_bpermute_b32 v{oh}, v{adr}, v{hi}")
        a(f"ds_bpermute_b32 v{ol}, v{adr}, v{lo}")
        a("s_waitcnt lgkmcnt(0)")
        a(f"v_max_u32 v{lo}, v{lo}, v{ol}")
        a(f"v_min_u32 v{ol}, v{hi}, v{oh}")
        a(f"v_max_u32 v{hi}, v{hi}, v{oh}")
        a(f"v_max_u32 v{lo}, v{lo}, v{ol}")
    a(f"v_mov_b32 v{oh}, v{hi}")
    a(f"v_mov_b32 v{ol}, v{lo}")
    a(f"s_lshl_b32 s{sT0}, s{sMT}, 3")
    a(f"s_add_u32 s{sT0}, s{sT0}, {CAND_OFF}")
    a(f"v_mov_b32 v{adr}, 0")
    a(f"v_cmp_eq_u32 vcc, 0, v{vLANE}")
    a("s_nop 1")
    a("s_and_saveexec_b64 s[44:45], vcc")
    a(f"buffer_store_dwordx2 v[{oh}:{ol}], v{adr}, {ws}, s{sT0} offen")
    a("s_mov_b64 exec, -1")
    a(f"s_cmp_lg_u32 s{sMT}, 0")
    a("s_cbranch_scc1 L_k1_repack")
    a(f"v_lshlrev_b32 v{adr}, 8, v{vLANE}")
    a(f"v_mov_b32 v{oh}, 0")
    a(f"s_mov_b32 s{sT0}, {CNT_OFF}")
    a(f"v_cmp_gt_u32 vcc, {NCNT}, v{vLANE}")
    a("s_nop 1")
    a("s_mov_b64 exec, vcc")
    a(f"buffer_store_dword v{oh}, v{adr}, {ws}, s{sT0} offen")
    a("s_mov_b64 exec, -1")
    ST(a, "stores")
    ST.store(a)
    a.label("L_k1_repack")
    repack_setup(a, sMT)
    repack_request(a, sW, 0)
    a(f"s_cmp_ge_u32 s{sW}, 2")
    a("s_cbranch_scc1 L_rep_loaded")
    repack_request(a, sW, 1)
    a.label("L_rep_loaded")
    repack_finish(a, sW, "L_k1_exit")

def emit(a):
    entry(a)
    consumer_setup(a)
    a(f"s_cmp_ge_u32 s{sNT}, 10")
    a("s_cbranch_scc1 L_k1_v")
    qk_path(a)
    v_path(a)
    loader(a)
    stat_waves(a)
    aux(a)
    a.label("L_k1_exit")
    a("s_endpgm")
```

```python
from common import *
import os
import slots

NAME = "qkv_kernel"
LDS = 131072 + 2048
VGPRS = 152 if prof_on("k1") else 144
LOCAL_STATS = os.environ.get("K1_STATS", "local") == "local"
BLOCK = 768 if LOCAL_STATS else 576

SRD_X, SRD_W, SRD_WS = 8, 12, 16
sW, sMT, sNT = 20, 21, 22
sROW0 = 23
sT0, sT1, sT2, sT3 = 24, 25, 26, 27
sSEC, sHS, sTS, sSCALE = 28, 29, 30, 31
sTA, sTB = 32, 33
sWR, sWC = 34, 35
sTBL, sN5 = 44, 45
ST_NM, ST_RS, ST_CS = 131072, 131072 + 512, 131072 + 1024

vLANE, vTOK, vH = 1, 2, 3
vT = 4
vXA = 8
vXB = 12
vWA, vWB = 16, 17
vS1, vS2, vCS, vONE = 28, 29, 30, 31
vSEL = 136
vCSA = 140
vF = (32, 48)
vACC = 64
vOFF = 128
vE = 24

ST = StampsLane("k1", 20, 16, 148)
def X(flag):
    return flag in os.environ.get("K1_EXP", "").split(",")

STF = {"": "", "sc1": " sc1", "nt": " nt", "sc01": " sc0 sc1"}[os.environ.get("K1_ST", "")]

def acc(a_, b_):
    return vACC + 32 * a_ + 16 * b_

def entry(a):
    kernel_header(a, NAME)
    ST(a, "entry")
    a("s_cmp_ge_u32 s2, 256")
    a("s_cbranch_scc1 L_k1_exit")
    a("s_load_dwordx4 s[4:7], s[0:1], 0")
    a("s_load_dwordx2 s[36:37], s[0:1], 80")
    a("s_load_dwordx2 s[38:39], s[0:1], 32")
    a(f"v_lshrrev_b32 v{vT}, 6, v0")
    a(f"v_and_b32 v{vLANE}, 63, v0")
    a(f"v_readfirstlane_b32 s{sW}, v{vT}")
    MAP = os.environ.get("K1_MAP", "4x8")
    if MAP == "4x8":
        a(f"s_and_b32 s{sT0}, s2, 3")
        a(f"s_lshl_b32 s{sT0}, s{sT0}, 2")
        a(f"s_bfe_u32 s{sT1}, s2, 0x20003")
        a(f"s_or_b32 s{sMT}, s{sT0}, s{sT1}")
        a(f"s_bfe_u32 s{sT0}, s2, 0x10002")
        a(f"s_lshl_b32 s{sT0}, s{sT0}, 3")
        a(f"s_lshr_b32 s{sT1}, s2, 5")
        a(f"s_or_b32 s{sNT}, s{sT0}, s{sT1}")
    elif MAP == "8x4":
        a(f"s_and_b32 s{sT0}, s2, 1")
        a(f"s_lshl_b32 s{sT0}, s{sT0}, 3")
        a(f"s_bfe_u32 s{sT1}, s2, 0x30003")
        a(f"s_or_b32 s{sMT}, s{sT0}, s{sT1}")
        a(f"s_bfe_u32 s{sT0}, s2, 0x20001")
        a(f"s_lshl_b32 s{sT0}, s{sT0}, 2")
        a(f"s_lshr_b32 s{sT1}, s2, 6")
        a(f"s_or_b32 s{sNT}, s{sT0}, s{sT1}")
    elif MAP == "2x16":
        a(f"s_and_b32 s{sT0}, s2, 7")
        a(f"s_lshl_b32 s{sT0}, s{sT0}, 1")
        a(f"s_bfe_u32 s{sT1}, s2, 0x10003")
        a(f"s_or_b32 s{sMT}, s{sT0}, s{sT1}")
        a(f"s_lshr_b32 s{sNT}, s2, 4")
    elif MAP == "16x2":
        a(f"s_bfe_u32 s{sMT}, s2, 0x40003")
        a(f"s_and_b32 s{sT0}, s2, 7")
        a(f"s_lshl_b32 s{sT0}, s{sT0}, 1")
        a(f"s_lshr_b32 s{sT1}, s2, 7")
        a(f"s_or_b32 s{sNT}, s{sT0}, s{sT1}")
    a(f"s_lshl_b32 s{sROW0}, s{sMT}, 7")
    a(f"v_and_b32 v{vTOK}, 31, v{vLANE}")
    a(f"v_lshrrev_b32 v{vH}, 5, v{vLANE}")
    a("s_waitcnt lgkmcnt(0)")
    srd(a, SRD_X, 4, X_BYTES)
    srd(a, SRD_W, 6, WQKV_BYTES)
    srd(a, SRD_WS, 36, WS_SRD)
    a(f"s_cmp_eq_u32 s{sNT}, 15")
    a("s_cbranch_scc1 L_k1_aux")
    a(f"s_cmp_ge_u32 s{sW}, 8")
    a("s_cbranch_scc1 L_k1_stat")
    a(f"s_cmp_ge_u32 s{sW}, 4")
    a("s_cbranch_scc1 L_k1_loader")

def loader(a):
    a.label("L_k1_loader")
    a(f"s_setprio {os.environ.get('K1_LPRIO', '0')}")
    vX, vWt = 8, 9
    lw = sT0
    a(f"s_sub_u32 s{lw}, s{sW}, 4")
    a(f"v_lshrrev_b32 v{vT}, 3, v{vLANE}")
    a(f"s_lshl_b32 s{sT1}, s{lw}, 3")
    a(f"s_add_u32 s{sT1}, s{sT1}, s{sROW0}")
    a(f"v_add_u32 v{vT}, s{sT1}, v{vT}")
    a(f"v_mul_u32_u24 v{vT}, 1280, v{vT}")
    a(f"v_lshrrev_b32 v{vT+1}, 4, v{vLANE}")
    a(f"s_and_b32 s{sT1}, s{lw}, 1")
    a(f"s_lshl_b32 s{sT1}, s{sT1}, 2")
    a(f"v_add_u32 v{vT+2}, s{sT1}, v{vT+1}")
    a(f"v_and_b32 v{vT+3}, 7, v{vLANE}")
    a(f"v_xor_b32 v{vT+2}, v{vT+2}, v{vT+3}")
    a(f"v_lshl_add_u32 v{vX}, v{vT+2}, 4, v{vT}")
    a(f"s_lshl_b32 s{sT1}, s{lw}, 2")
    a(f"v_add_u32 v{vT}, s{sT1}, v{vT+1}")
    a(f"v_mul_u32_u24 v{vT}, 3840, v{vT}")
    a(f"v_and_b32 v{vT+2}, 15, v{vLANE}")
    a(f"v_lshlrev_b32 v{vT+3}, 2, v{vT+1}")
    a(f"v_xor_b32 v{vT+2}, v{vT+2}, v{vT+3}")
    a(f"v_lshl_add_u32 v{vT}, v{vT+2}, 4, v{vT}")
    a(f"s_lshl_b32 s{sT1}, s{sNT}, 8")
    a(f"v_add_u32 v{vWt}, s{sT1}, v{vT}")
    a(f"s_lshl_b32 s{sT2}, s{lw}, 10")
    vXs, vWs = 44, 48
    for i in range(4):
        a(f"v_add_u32 v{vXs + i}, {i * 40960}, v{vX}")
        a(f"v_add_u32 v{vWs + i}, {i * 16 * 3840}, v{vWt}")
    sXO, sWO = 40, 41
    a("s_lshr_b32 s42, s2, 5")
    a("s_bfe_u32 s43, s2, 0x20003")
    a("s_mul_i32 s43, s43, 3")
    a("s_add_u32 s42, s42, s43")
    a("s_cmp_ge_u32 s42, 10")
    a("s_cselect_b32 s43, 10, 0")
    a("s_sub_u32 s42, s42, s43")
    if not X("rot"):
        a("s_mov_b32 s42, 0")
    def stage(s):
        base = (s & 3) * 32768
        a(f"s_lshl_b32 s{sXO}, s42, 7")
        a(f"s_mul_i32 s{sWO}, s42, {64 * 3840}")
        a("s_add_u32 s42, s42, 1")
        a("s_cmp_eq_u32 s42, 10")
        a("s_cselect_b32 s42, 0, s42")
        for i in range(4):
            a(f"s_add_u32 m0, s{sT2}, {base + i * 4096}")
            a("s_nop 0")
            a(f"buffer_load_dwordx4 v{vXs + i}, s[{SRD_X}:{SRD_X+3}], s{sXO} offen lds")
            a(f"s_add_u32 m0, s{sT2}, {base + 16384 + i * 4096}")
            a("s_nop 0")
            a(f"buffer_load_dwordx4 v{vWs + i}, s[{SRD_W}:{SRD_W+3}], s{sWO} offen lds")
    ST(a, "setup")
    PRE = int(os.environ.get("K1_PRE", "2"))
    for s in range(PRE):
        stage(s)
    ST(a, "B0")
    issued = PRE - 1
    for s in range(10):
        a(f"s_waitcnt vmcnt({8 * (issued - s)})")
        if s in (0, 1, 2, 5):
            ST(a, {0: "g4", 1: "g8", 2: "g20", 5: "loopend"}[s])
        a("s_barrier")
        while issued < min(9, s + int(os.environ.get('K1_DEPTH', '3'))):
            issued += 1
            if not (X("nodma") and issued > 3):
                stage(issued)
    ST(a, "stores")
    ST(a, "end")
    ST.store(a)
    a("s_endpgm")

def stat_waves(a):
    (stat_local if LOCAL_STATS else stat_fetch)(a)

def stat_local(a):
    a.label("L_k1_stat")
    lw = sT0
    vR, vR2, vD, vP, vA1, vA2 = 8, 12, 48, 32, 36, 38
    a(f"s_sub_u32 s{lw}, s{sW}, 8")
    a(f"v_lshrrev_b32 v{vT}, 1, v{vLANE}")
    a(f"s_lshl_b32 s{sT1}, s{lw}, 5")
    a(f"v_add_u32 v{vT}, s{sT1}, v{vT}")
    a(f"v_lshlrev_b32 v{vT+1}, 7, v{vT}")
    a(f"v_and_b32 v{vT+2}, 1, v{vLANE}")
    a(f"v_lshl_add_u32 v{vT+1}, v{vT+2}, 6, v{vT+1}")
    a(f"v_bfe_u32 v{vT+2}, v{vLANE}, 2, 2")
    for i in range(4):
        a(f"v_xor_b32 v{vT+3}, {i}, v{vT+2}")
        a(f"v_lshl_add_u32 v{vR + i}, v{vT+3}, 4, v{vT+1}")
        a(f"v_add_u32 v{vR2 + i}, 65536, v{vR + i}")
    a(f"v_lshlrev_b32 v40, 2, v{vT}")
    for r in range(4):
        a(f"v_mov_b32 v{vA1 + r}, 0")
    if os.environ.get("K1_PF", "1") == "1":
        a(f"s_sub_u32 s{sT1}, s{sW}, 8")
        a(f"s_mul_i32 s{sT2}, s2, 10240")
        a(f"s_mul_i32 s{sT3}, s2, 9600")
        a(f"v_lshlrev_b32 v41, 4, v{vLANE}")
        a(f"s_lshl_b32 s{sT1}, s{sT1}, 10")
        a(f"v_add_u32 v41, s{sT1}, v41")
        for i in range(3):
            a(f"buffer_load_dwordx4 v[96:99], v41, s[{SRD_X}:{SRD_X+3}], s{sT2} offen" + (f" offset:{4096 * i}" if i * 4096 < 4096 else ""))if i == 0 else None
        for i in range(1, 3):
            a(f"s_add_u32 s{sT2}, s{sT2}, 4096")
            a(f"buffer_load_dwordx4 v[96:99], v41, s[{SRD_X}:{SRD_X+3}], s{sT2} offen")
        for i in range(3):
            a(f"buffer_load_dwordx4 v[100:103], v41, s[{SRD_W}:{SRD_W+3}], s{sT3} offen")
            a(f"s_add_u32 s{sT3}, s{sT3}, 4096")
    TOUCH = os.environ.get("K1_TOUCH", "none").split(",")
    a(f"v_lshlrev_b32 v41, 16, v{vLANE}")
    a(f"s_cmp_lg_u32 s{sW}, 8")
    a("s_cbranch_scc1 L_k1_touch2")
    if "xw" in TOUCH:
        a(f"buffer_load_dword v42, v41, s[{SRD_X}:{SRD_X+3}], 0 offen")
        a(f"buffer_load_dword v43, v41, s[{SRD_W}:{SRD_W+3}], 0 offen")
    if "ws" in TOUCH:
        for i in range((WS_SRD + (64 << 16) - 1) // (64 << 16)):
            a(f"s_mov_b32 s{sT1}, {i * (64 << 16)}")
            a(f"buffer_load_dword v44, v41, s[{SRD_WS}:{SRD_WS+3}], s{sT1} offen")
    a.label("L_k1_touch2")
    if "wts" in TOUCH or "out" in TOUCH:
        a(f"s_cmp_lg_u32 s{sW}, 9")
        a("s_cbranch_scc1 L_k1_touched")
        a("s_load_dwordx2 s[46:47], s[0:1], 16")
        a("s_load_dwordx4 s[48:51], s[0:1], 40")
        a("s_load_dwordx4 s[52:55], s[0:1], 56")
        a("s_waitcnt lgkmcnt(0)")
        bufs = [(46, WO_BYTES), (48, WG_BYTES), (50, WG_BYTES), (52, WD_BYTES)] if "wts" in TOUCH else []
        if "out" in TOUCH:
            bufs.append((54, X_BYTES))
        for lo, nbytes in bufs:
            srd(a, 56, lo, nbytes)
            a("buffer_load_dword v44, v41, s[56:59], 0 offen")
        a.label("L_k1_touched")
    for s in range(10):
        slot = s & 3
        a("s_barrier")
        if s == 9:
            a(f"s_setprio {os.environ.get('K1_LASTPRIO', '0')}")
        for i in range(4):
            a(f"ds_read_b128 {vr(vD + 4 * i, 4)}, v{(vR if slot < 2 else vR2) + i} offset:{(slot & 1) * 32768}")
        for j in range(16):
            if j % 4 == 0:
                a(f"s_waitcnt lgkmcnt({3 - j // 4})")
            p = vP + 2 * (j & 1)
            a(f"v_lshlrev_b32 v{p}, 16, v{vD + j}")
            a(f"v_and_b32 v{p+1}, 0xffff0000, v{vD + j}")
            a(f"v_add_f32 v{vA1}, v{vA1}, v{p}")
            a(f"v_fmac_f32 v{vA2}, v{p}, v{p}")
            a(f"v_add_f32 v{vA1+1}, v{vA1+1}, v{p+1}")
            a(f"v_fmac_f32 v{vA2+1}, v{p+1}, v{p+1}")
    a(f"v_add_f32 v{vA1}, v{vA1}, v{vA1+1}")
    a(f"v_add_f32 v{vA2}, v{vA2}, v{vA2+1}")
    a("s_nop 1")
    a(f"v_add_f32_dpp v{vA1+1}, v{vA1}, v{vA1} quad_perm:[1,0,3,2] row_mask:0xf bank_mask:0xf")
    a(f"v_add_f32_dpp v{vA2+1}, v{vA2}, v{vA2} quad_perm:[1,0,3,2] row_mask:0xf bank_mask:0xf")
    a(f"v_mul_f32 v{vA1}, {hex(f2u(1.0 / D))}, v{vA1+1}")
    a(f"v_mul_f32 v{vA2}, {hex(f2u(1.0 / D))}, v{vA2+1}")
    a(f"v_fma_f32 v{vA2}, -v{vA1}, v{vA1}, v{vA2}")
    a(f"v_max_f32 v{vA2}, 0, v{vA2}")
    a(f"v_add_f32 v{vA2}, {hex(f2u(1e-5))}, v{vA2}")
    a(f"v_rsq_f32 v{vA2}, v{vA2}")
    a(f"v_sub_f32 v{vA1}, 0, v{vA1}")
    a(f"v_add_u32 v40, {ST_NM}, v40")
    a(f"ds_write_b32 v40, v{vA1}")
    a(f"ds_write_b32 v40, v{vA2} offset:512")
    a("s_waitcnt lgkmcnt(0)")
    ST(a, "stores")
    a("s_barrier")
    ST(a, "end")
    ST.store(a)
    a("s_endpgm")

def stat_fetch(a):
    a.label("L_k1_stat")
    vA, vF, vD = 8, 9, 12
    ws = f"s[{SRD_WS}:{SRD_WS+3}]"
    a("s_load_dwordx2 s[46:47], s[0:1], 72")
    a(f"v_lshlrev_b32 v{vA}, 4, v{vLANE}")
    a(f"s_lshl_b32 s{sT0}, s{sMT}, 2")
    a(f"v_mov_b32 v{vF}, s{sT0}")
    a(f"s_lshl_b32 s{sT1}, s{sMT}, 10")
    a(f"s_add_u32 s{sT1}, s{sT1}, {ST_OFF}")
    a(f"v_lshlrev_b32 v10, 3, v{vLANE}")
    a(f"v_add_u32 v10, {ST_NM}, v10")
    a(f"s_mov_b32 s{sT2}, 0")
    a("s_waitcnt lgkmcnt(0)")
    def advance(tag, blocking):
        a(f"s_cmp_eq_u32 s{sT2}, 2")
        a(f"s_cbranch_scc1 L_st_{tag}_end")
        a("s_waitcnt vmcnt(0)")
        a(f"s_cmp_eq_u32 s{sT2}, 1")
        a(f"s_cbranch_scc1 L_st_{tag}_land")
        a(f"v_readfirstlane_b32 s{sT3}, v11")
        a("s_nop 1")
        a(f"s_cmp_eq_u32 s{sT3}, 1")
        a(f"s_cbranch_scc1 L_st_{tag}_go")
        a(f"global_load_dword v11, v{vF}, s[46:47] sc1")
        a(f"s_branch L_st_{tag}_end")
        a.label(f"L_st_{tag}_go")
        a(f"buffer_load_dwordx4 {vr(vD, 4)}, v{vA}, {ws}, s{sT1} offen sc1")
        a(f"s_mov_b32 s{sT2}, 1")
        a(f"s_branch L_st_{tag}_end")
        a.label(f"L_st_{tag}_land")
        a(f"v_sub_f32 v16, 0, v{vD}")
        a(f"v_sub_f32 v17, 0, v{vD+2}")
        a(f"v_mov_b32 v18, v{vD+1}")
        a(f"v_mov_b32 v19, v{vD+3}")
        a("ds_write_b64 v10, v[16:17]")
        a("ds_write_b64 v10, v[18:19] offset:512")
        a(f"s_mov_b32 s{sT2}, 2")
        a.label(f"L_st_{tag}_end")
    a("v_mov_b32 v11, 0")
    if X("touch"):
        a(f"s_mov_b32 s{sT3}, {YP_OFF}")
        a("v_mov_b32 v21, 0")
        a(f"buffer_load_dword v20, v21, {ws}, s{sT3} offen")
        a("global_load_dword v22, v21, s[46:47] offset:192")
    for s in range(10):
        a("s_barrier")
        if s in (1, 3, 5, 7):
            advance(f"b{s}", False)
    a(f"s_mov_b32 s48, {1 << 20}")
    a.label("L_st_fin")
    advance("fin", True)
    a("s_sub_u32 s48, s48, 1")
    a("s_cbranch_scc1 L_st_done")
    a(f"s_cmp_eq_u32 s{sT2}, 2")
    a("s_cbranch_scc0 L_st_fin")
    a.label("L_st_done")
    a("s_waitcnt lgkmcnt(0)")
    ST(a, "stores")
    a("s_barrier")
    ST(a, "end")
    ST.store(a)
    a("s_endpgm")

def read_list(g):
    ks, half = g & 3, (g >> 2) & 1
    base = half * 32768
    f = vF[g & 1]
    w = lambda b, reg, rd: f"ds_read_b64_tr_b16 {vr(f + 8 + 4 * b + 2 * rd, 2)}, v{reg} offset:{base + 16384 + (16 * ks + 4 * rd) * 256}"
    return [f"ds_read_b128 {vr(f, 4)}, v{vXA + ks} offset:{base}", w(0, vWA, 0), w(0, vWA, 1),
            w(1, vWB, 0), w(1, vWB, 1), f"ds_read_b128 {vr(f + 4, 4)}, v{vXB + ks} offset:{base}"]

def step(a, g, vorient, reads, pre=None):
    f = vF[g & 1]
    def mm(a_, b_):
        x, w = vr(f + 4 * a_, 4), vr(f + 8 + 4 * b_, 4)
        A, B = (x, w) if vorient else (w, x)
        a(f"v_mfma_f32_32x32x16_bf16 {vr(acc(a_, b_), 16)}, {A}, {B}, {vr(acc(a_, b_), 16)}")
    if pre is not None:
        a("s_waitcnt lgkmcnt(0)")
        mm(0, 0)
        mm(0, 1)
        pre()
        for r in reads[0:3]: a(r)
        mm(1, 0)
        for r in reads[3:6]: a(r)
        mm(1, 1)
    else:
        a("s_waitcnt lgkmcnt(3)")
        mm(0, 0)
        for r in reads[0:3]: a(r)
        a("s_waitcnt lgkmcnt(4)")
        mm(0, 1)
        for r in reads[3:6]: a(r)
        a("s_waitcnt lgkmcnt(6)")
        mm(1, 0)
        mm(1, 1)
    a(f"v_mfma_f32_16x16x32_bf16 {vr(vCSA, 4)}, {vr(vSEL, 4)}, {vr(f + 8, 4)}, {vr(vCSA, 4)}")

def mainloop(a, vorient):
    tag = "v" if vorient else "qk"
    ST(a, "setup")
    a("s_barrier")
    ST(a, "B0")
    for r in read_list(0):
        a(r)
    a(f"s_mov_b32 s{sT3}, 5")
    a(".p2align 3")
    a.label(f"L_k1_loop_{tag}")
    def pre7():
        a(f"s_sub_u32 s{sT3}, s{sT3}, 1")
        a(f"s_cmp_eq_u32 s{sT3}, 0")
        a(f"s_cbranch_scc1 L_k1_last_{tag}")
        for r in list(range(vXA, vXA + 4)) + list(range(vXB, vXB + 4)) + [vWA, vWB]:
            a(f"v_xor_b32 v{r}, 0x10000, v{r}")
        a("s_barrier")
    for g in range(8):
        pre = (lambda: a("s_barrier")) if g == 3 else (pre7 if g == 7 else None)
        step(a, g, vorient, read_list(g + 1), pre)
    a(f"s_branch L_k1_loop_{tag}")
    a.label(f"L_k1_last_{tag}")
    f = vF[1]
    for b_ in range(2):
        x, w = vr(f + 4, 4), vr(f + 8 + 4 * b_, 4)
        A, B = (x, w) if vorient else (w, x)
        a(f"v_mfma_f32_32x32x16_bf16 {vr(acc(1, b_), 16)}, {A}, {B}, {vr(acc(1, b_), 16)}")
    a(f"v_mfma_f32_16x16x32_bf16 {vr(vCSA, 4)}, {vr(vSEL, 4)}, {vr(f + 8, 4)}, {vr(vCSA, 4)}")

def stats_exchange(a):
    ST(a, "loopend")
    a(f"s_lshl_b32 s{sT0}, s{sWC}, 6")
    a(f"s_lshl_b32 s{sT1}, s{sWR}, 5")
    a(f"s_add_u32 s{sT0}, s{sT0}, s{sT1}")
    a(f"v_add_u32 v{vT+1}, s{sT0}, v{vLANE}")
    a(f"v_lshlrev_b32 v{vT+1}, 2, v{vT+1}")
    a(f"v_add_u32 v{vT+1}, {ST_CS}, v{vT+1}")
    a("s_mov_b64 exec, 0xffff")
    a("s_nop 4")
    a(f"ds_write_b32 v{vT+1}, v{vCSA}")
    a(f"ds_write_b32 v{vT+1}, v{vCSA+1} offset:64")
    a("s_mov_b64 exec, -1")
    a("s_waitcnt lgkmcnt(0)")
    a("s_barrier")
    ST(a, "e_bar")

def consumer_setup(a):
    a(f"s_lshr_b32 s{sWR}, s{sW}, 1")
    a(f"s_and_b32 s{sWC}, s{sW}, 1")
    a(f"v_lshrrev_b32 v{vT}, 1, v{vTOK}")
    a(f"v_and_b32 v{vT}, 7, v{vT}")
    a(f"s_lshl_b32 s{sT0}, s{sWR}, 6")
    a(f"v_add_u32 v{vT+1}, s{sT0}, v{vTOK}")
    a(f"v_lshlrev_b32 v{vT+1}, 7, v{vT+1}")
    a(f"s_lshl_b32 s{sT0}, s{sWC}, 12")
    a(f"s_xor_b32 s{sT1}, s{sT0}, 4096")
    for ks in range(4):
        a(f"v_add_u32 v{vT+2}, {2 * ks}, v{vH}")
        a(f"v_xor_b32 v{vT+2}, v{vT+2}, v{vT}")
        a(f"v_lshl_add_u32 v{vT+2}, v{vT+2}, 4, v{vT+1}")
        a(f"v_add_u32 v{vXA + ks}, s{sT0}, v{vT+2}")
        a(f"v_add_u32 v{vXB + ks}, s{sT1}, v{vT+2}")
    a(f"s_sub_u32 s{sN5}, s{sNT}, 5")
    a(f"s_cmp_lt_u32 s{sNT}, 5")
    a(f"s_cselect_b32 s{sN5}, s{sNT}, s{sN5}")
    for wc in range(2):
        reg = sT0 + wc
        a(f"s_mov_b32 s{reg}, {hex(0x76543210 + wc * 0x88888888)}")
        for n5 in range(5):
            a(f"s_cmp_eq_u32 s{sN5}, {n5}")
            a(f"s_cselect_b32 s{reg}, {hex(slots.packed(n5, wc))}, s{reg}")
    a(f"s_cmp_eq_u32 s{sWC}, 0")
    a(f"s_cselect_b32 s{sTBL}, s{sT0}, s{sT1}")
    a(f"v_bfe_u32 v{vT}, v{vLANE}, 2, 2")
    a(f"v_lshl_add_u32 v{vT+1}, v{vH}, 3, v{vT}")
    a(f"v_lshlrev_b32 v{vT+1}, 8, v{vT+1}")
    a(f"v_and_b32 v{vT+2}, 1, v{vLANE}")
    a(f"v_lshl_add_u32 v{vT+1}, v{vT+2}, 3, v{vT+1}")
    a(f"v_bfe_u32 v{vT+2}, v{vLANE}, 4, 1")
    a(f"v_bfe_u32 v{vT+3}, v{vLANE}, 1, 1")
    a(f"v_lshl_add_u32 v{vT+2}, v{vT+2}, 1, v{vT+3}")
    a(f"v_lshlrev_b32 v{vT+2}, 2, v{vT+2}")
    a(f"v_lshlrev_b32 v{vT}, 2, v{vT}")
    for (dst, own) in ((vWA, True), (vWB, False)):
        if own:
            a(f"s_lshl_b32 s{sT0}, s{sWR}, 4")
        else:
            a(f"s_xor_b32 s{sT0}, s{sWR}, 1")
            a(f"s_lshl_b32 s{sT0}, s{sT0}, 4")
        a(f"s_lshr_b32 s{sT0}, s{sTBL}, s{sT0}")
        a(f"v_lshrrev_b32 v{vT+3}, v{vT+2}, s{sT0}") if False else None
        a(f"v_mov_b32 v{vT+3}, s{sT0}")
        a(f"v_lshrrev_b32 v{vT+3}, v{vT+2}, v{vT+3}")
        a(f"v_and_b32 v{vT+3}, 15, v{vT+3}")
        a(f"v_xor_b32 v{vT+3}, v{vT+3}, v{vT}")
        a(f"v_lshl_add_u32 v{dst}, v{vT+3}, 4, v{vT+1}")
    a(f"v_and_b32 v{vT}, 15, v{vLANE}")
    a(f"v_bfe_u32 v{vT+1}, v{vLANE}, 4, 1")
    a(f"v_cmp_eq_u32 vcc, v{vT}, v{vT+1}")
    a(f"v_mov_b32 v{vT+2}, 0x3f803f80")
    a("s_nop 0")
    a(f"v_cndmask_b32 v{vSEL}, 0, v{vT+2}, vcc")
    for r in range(1, 4):
        a(f"v_mov_b32 v{vSEL + r}, v{vSEL}")
    for r in range(4):
        a(f"v_mov_b32 v{vCSA + r}, 0")
    for r in range(64):
        a(f"v_mov_b32 v{vACC + r}, 0")

def qk_path(a):
    a.label("L_k1_qk")
    a(f"s_mov_b32 s{sSEC}, {KV_OFF}")
    a(f"s_mov_b32 s{sTS}, 2560")
    a(f"s_mov_b32 s{sSCALE}, {hex(f2u(1.0))}")
    a(f"s_sub_u32 s{sT0}, s{sNT}, 5")
    a(f"s_cmp_lt_u32 s{sNT}, 5")
    a(f"s_cselect_b32 s{sSEC}, {QB_OFF}, s{sSEC}")
    a(f"s_cselect_b32 s{sTS}, 1280, s{sTS}")
    a(f"s_cselect_b32 s{sSCALE}, {hex(f2u(QSCALE))}, s{sSCALE}")
    a(f"s_cselect_b32 s{sT0}, s{sNT}, s{sT0}")
    a(f"s_lshl_b32 s{sHS}, s{sTS}, 6")
    a(f"s_lshl_b32 s{sT1}, s{sMT}, 2")
    a(f"s_lshl_b32 s{sT2}, s{sWR}, 1")
    a(f"s_add_u32 s{sT1}, s{sT1}, s{sT2}")
    a(f"s_add_u32 s{sT2}, s{sT1}, s{sWC}")
    a(f"s_mul_i32 s{sTA}, s{sT2}, s{sTS}")
    a(f"s_add_u32 s{sTA}, s{sTA}, s{sSEC}")
    a(f"s_xor_b32 s{sT3}, s{sWC}, 1")
    a(f"s_add_u32 s{sT2}, s{sT1}, s{sT3}")
    a(f"s_mul_i32 s{sTB}, s{sT2}, s{sTS}")
    a(f"s_add_u32 s{sTB}, s{sTB}, s{sSEC}")
    for k_, (ct, g) in enumerate(((0, 0), (0, 2), (1, 0), (1, 2), (1, 3))):
        o = vOFF + k_
        a(f"s_bfe_u32 s{sT1}, s{sTBL}, {hex((4 << 16) | (16 * ct + 4 * g))}")
        a(f"s_lshl_b32 s{sT2}, s{sN5}, 4")
        a(f"s_add_u32 s{sT1}, s{sT1}, s{sT2}")
        a(f"s_lshl_b32 s{sT1}, s{sT1}, 1")
        a(f"v_add_u32 v{vT}, s{sT1}, v{vH}")
        a(f"v_mul_u32_u24 v{vT+1}, 52429, v{vT}")
        a(f"v_lshrrev_b32 v{vT+1}, 18, v{vT+1}")
        a(f"v_mul_u32_u24 v{vT+2}, 5, v{vT+1}")
        a(f"v_sub_u32 v{vT+2}, v{vT}, v{vT+2}")
        a(f"v_and_b32 v{vT+3}, 1, v{vT+1}")
        a(f"v_sub_u32 v{vT+2}, v{vT+2}, v{vT+3}")
        a(f"v_mul_lo_u32 v{o}, v{vT+1}, s{sHS}")
        a(f"v_and_b32 v{vT+1}, 1, v{vT+2}")
        a(f"v_lshlrev_b32 v{vT+1}, 9, v{vT+1}")
        a(f"v_bfe_u32 v{vT+3}, v{vT+2}, 1, 1")
        a(f"v_lshl_add_u32 v{vT+1}, v{vT+3}, 3, v{vT+1}")
        a(f"v_lshl_add_u32 v{vT+1}, v{vTOK}, 4, v{vT+1}")
        a(f"v_cmp_lt_u32 vcc, 3, v{vT+2}")
        a(f"v_lshlrev_b32 v{vT+3}, 3, v{vTOK}")
        a(f"v_add_u32 v{vT+3}, 1024, v{vT+3}")
        a(f"v_cndmask_b32 v{vT+1}, v{vT+1}, v{vT+3}, vcc")
        a(f"v_add_u32 v{o}, v{o}, v{vT+1}")
    mainloop(a, False)
    stats_exchange(a)
    vNM, vRS, vC = vE, vE + 2, vE + 4
    a(f"s_lshl_b32 s{sT0}, s{sWR}, 6")
    a(f"v_add_u32 v{vT}, s{sT0}, v{vTOK}")
    a(f"v_lshlrev_b32 v{vT}, 2, v{vT}")
    a(f"s_lshl_b32 s{sT1}, s{sWC}, 7")
    a(f"v_add_u32 v{vT+1}, s{sT1}, v{vT}")
    a(f"s_xor_b32 s{sT1}, s{sT1}, 128")
    a(f"v_add_u32 v{vT+2}, s{sT1}, v{vT}")
    a(f"v_add_u32 v{vT+1}, {ST_NM}, v{vT+1}")
    a(f"v_add_u32 v{vT+2}, {ST_NM}, v{vT+2}")
    a(f"ds_read_b32 v{vNM}, v{vT+1}")
    a(f"ds_read_b32 v{vRS}, v{vT+1} offset:512")
    a(f"ds_read_b32 v{vNM+1}, v{vT+2}")
    a(f"ds_read_b32 v{vRS+1}, v{vT+2} offset:512")
    a(f"s_lshl_b32 s{sT0}, s{sWC}, 8")
    a(f"v_lshlrev_b32 v{vT}, 4, v{vH}")
    a(f"v_add_u32 v{vT}, s{sT0}, v{vT}")
    a(f"s_lshl_b32 s{sT1}, s{sWR}, 7")
    a(f"v_add_u32 v{vT+1}, s{sT1}, v{vT}")
    a(f"s_xor_b32 s{sT1}, s{sT1}, 128")
    a(f"v_add_u32 v{vT+2}, s{sT1}, v{vT}")
    a(f"v_add_u32 v{vT+1}, {ST_CS}, v{vT+1}")
    a(f"v_add_u32 v{vT+2}, {ST_CS}, v{vT+2}")
    for b_ in range(2):
        for g in range(4):
            a(f"ds_read_b128 {vr(vC + 16 * b_ + 4 * g, 4)}, v{vT + 1 + b_} offset:{32 * g}")
    a("s_waitcnt lgkmcnt(0)")
    ST(a, "e_lds")
    a(f"v_mul_f32 v{vRS}, s{sSCALE}, v{vRS}")
    a(f"v_mul_f32 v{vRS+1}, s{sSCALE}, v{vRS+1}")
    ws = f"s[{SRD_WS}:{SRD_WS+3}]"
    def finish(wr):
        for a_ in range(2):
            a(f"v_mov_b32 v{vT}, v{vNM + a_}")
            a(f"v_mov_b32 v{vT+1}, v{vNM + a_}")
            a(f"v_mov_b32 v{vT+2}, v{vRS + a_}")
            a(f"v_mov_b32 v{vT+3}, v{vRS + a_}")
            so = f"s{sTA if a_ == 0 else sTB}"
            for b_ in range(2):
                A = acc(a_, b_)
                for p in range(8):
                    a(f"v_pk_fma_f32 {vr(A + 2 * p, 2)}, {vr(vC + 16 * b_ + 2 * p, 2)}, {vr(vT, 2)}, {vr(A + 2 * p, 2)}")
                for p in range(8):
                    a(f"v_pk_mul_f32 {vr(A + 2 * p, 2)}, {vr(A + 2 * p, 2)}, {vr(vT + 2, 2)}")
                for p in range(8):
                    a(f"v_cvt_pk_bf16_f32 v{A + p}, v{A + 2 * p}, v{A + 2 * p + 1}")
                if (wr ^ b_) == 0:
                    a(f"buffer_store_dwordx4 {vr(A, 4)}, v{vOFF}, {ws}, {so} offen{STF}")
                    a(f"buffer_store_dwordx4 {vr(A + 4, 4)}, v{vOFF + 1}, {ws}, {so} offen{STF}")
                else:
                    a(f"buffer_store_dwordx4 {vr(A, 4)}, v{vOFF + 2}, {ws}, {so} offen{STF}")
                    a(f"buffer_store_dwordx2 {vr(A + 4, 2)}, v{vOFF + 3}, {ws}, {so} offen{STF}")
                    a(f"buffer_store_dwordx2 {vr(A + 6, 2)}, v{vOFF + 4}, {ws}, {so} offen{STF}")
    a(f"s_cmp_eq_u32 s{sWR}, 0")
    a("s_cbranch_scc0 L_k1_qk_wr1")
    finish(0)
    a("s_branch L_k1_qk_done")
    a.label("L_k1_qk_wr1")
    finish(1)
    a.label("L_k1_qk_done")
    ST(a, "stores")
    if ST.on:
        a("s_waitcnt vmcnt(0)")
    ST(a, "end")
    ST.store(a)
    a("s_endpgm")

def v_path(a):
    a.label("L_k1_v")
    a(f"s_lshl_b32 s{sT1}, s{sMT}, 2")
    a(f"s_lshl_b32 s{sT2}, s{sWR}, 1")
    a(f"s_add_u32 s{sT1}, s{sT1}, s{sT2}")
    a(f"s_add_u32 s{sT2}, s{sT1}, s{sWC}")
    a(f"s_mul_i32 s{sTA}, s{sT2}, 2560")
    a(f"s_add_u32 s{sTA}, s{sTA}, {KV_OFF + 1280}")
    a(f"s_xor_b32 s{sT3}, s{sWC}, 1")
    a(f"s_add_u32 s{sT2}, s{sT1}, s{sT3}")
    a(f"s_mul_i32 s{sTB}, s{sT2}, 2560")
    a(f"s_add_u32 s{sTB}, s{sTB}, {KV_OFF + 1280}")
    a(f"s_sub_u32 s{sT0}, s{sNT}, 10")
    a(f"s_lshl_b32 s{sT0}, s{sT0}, 7")
    a(f"s_lshl_b32 s{sT1}, s{sWC}, 6")
    a(f"s_add_u32 s{sT0}, s{sT0}, s{sT1}")
    for b_ in range(2):
        if b_ == 0:
            a(f"s_lshl_b32 s{sT1}, s{sWR}, 5")
        else:
            a(f"s_xor_b32 s{sT1}, s{sWR}, 1")
            a(f"s_lshl_b32 s{sT1}, s{sT1}, 5")
        a(f"s_add_u32 s{sT1}, s{sT1}, s{sT0}")
        a(f"v_add_u32 v{vT}, s{sT1}, v{vTOK}")
        a(f"v_mul_u32_u24 v{vT+1}, 52429, v{vT}")
        a(f"v_lshrrev_b32 v{vT+1}, 20, v{vT+1}")
        a(f"v_mul_u32_u24 v{vT+2}, 20, v{vT+1}")
        a(f"v_sub_u32 v{vT+2}, v{vT}, v{vT+2}")
        a(f"s_mov_b32 s{sT2}, {64 * 2560}")
        a(f"v_mul_lo_u32 v{vOFF + b_}, v{vT+1}, s{sT2}")
        a(f"v_lshlrev_b32 v{vT+2}, 4, v{vT+2}")
        a(f"v_mul_u32_u24 v{vT+3}, 320, v{vH}")
        a(f"v_add3_u32 v{vOFF + b_}, v{vOFF + b_}, v{vT+2}, v{vT+3}")
    mainloop(a, True)
    stats_exchange(a)
    vCL, vNM, vRS = vE, vE + 4, vE + 20
    a(f"s_lshl_b32 s{sT0}, s{sWC}, 6")
    a(f"v_add_u32 v{vT}, s{sT0}, v{vTOK}")
    a(f"v_lshlrev_b32 v{vT}, 2, v{vT}")
    a(f"s_lshl_b32 s{sT1}, s{sWR}, 7")
    a(f"v_add_u32 v{vT+1}, s{sT1}, v{vT}")
    a(f"s_xor_b32 s{sT1}, s{sT1}, 128")
    a(f"v_add_u32 v{vT+2}, s{sT1}, v{vT}")
    a(f"v_add_u32 v{vT+1}, {ST_CS}, v{vT+1}")
    a(f"v_add_u32 v{vT+2}, {ST_CS}, v{vT+2}")
    a(f"ds_read_b32 v{vCL}, v{vT+1}")
    a(f"ds_read_b32 v{vCL+2}, v{vT+2}")
    a("s_waitcnt lgkmcnt(0)")
    a(f"v_mov_b32 v{vCL+1}, v{vCL}")
    a(f"v_mov_b32 v{vCL+3}, v{vCL+2}")
    ws = f"s[{SRD_WS}:{SRD_WS+3}]"
    for a_ in range(2):
        a(f"s_lshl_b32 s{sT0}, s{sWR}, 8")
        a(f"s_lshl_b32 s{sT1}, s{sWC}, 7")
        if a_ == 1:
            a(f"s_xor_b32 s{sT1}, s{sT1}, 128")
        a(f"s_add_u32 s{sT0}, s{sT0}, s{sT1}")
        a(f"v_lshlrev_b32 v{vT}, 4, v{vH}")
        a(f"v_add_u32 v{vT}, s{sT0}, v{vT}")
        a(f"v_add_u32 v{vT}, {ST_NM}, v{vT}")
        for g in range(4):
            a(f"ds_read_b128 {vr(vNM + 4 * g, 4)}, v{vT} offset:{32 * g}")
            a(f"ds_read_b128 {vr(vRS + 4 * g, 4)}, v{vT} offset:{512 + 32 * g}")
        a("s_waitcnt lgkmcnt(0)")
        for b_ in range(2):
            A = acc(a_, b_)
            for p in range(8):
                a(f"v_pk_fma_f32 {vr(A + 2 * p, 2)}, {vr(vNM + 2 * p, 2)}, {vr(vCL + 2 * b_, 2)}, {vr(A + 2 * p, 2)}")
            for p in range(8):
                a(f"v_pk_mul_f32 {vr(A + 2 * p, 2)}, {vr(A + 2 * p, 2)}, {vr(vRS + 2 * p, 2)}")
            for p in range(8):
                a(f"v_cvt_pk_bf16_f32 v{A + p}, v{A + 2 * p}, v{A + 2 * p + 1}")
            for t in range(2):
                a(f"buffer_store_dwordx4 {vr(A + 4 * t, 4)}, v{vOFF + b_}, {ws}, s{sTA if a_ == 0 else sTB} offen offset:{640 * t}{STF}")
    ST(a, "stores")
    if ST.on:
        a("s_waitcnt vmcnt(0)")
    ST(a, "end")
    ST.store(a)
    a("s_endpgm")

L_KEYS, L_WR = 51200, 52224

def aux(a):
    from k2moe import repack_setup, repack_request, repack_finish
    a.label("L_k1_aux")
    a(f"s_cmp_ge_u32 s{sW}, 8")
    a("s_cbranch_scc1 L_k1_exit")
    vX, vWr = (16, 56), 96
    vA, vAW = 8, 9
    s1, s2, s3, sw = (10, 136), (11, 137), (12, 138), 13
    SRD_R = 40
    a("s_load_dwordx2 s[6:7], s[0:1], 16")
    srd(a, SRD_R, 38, D * 2)
    a(f"v_lshrrev_b32 v{vT}, 3, v{vLANE}")
    a(f"s_lshl_b32 s{sT0}, s{sW}, 4")
    a(f"s_add_u32 s{sT0}, s{sT0}, s{sROW0}")
    a(f"v_add_u32 v14, s{sT0}, v{vT}")
    a(f"v_and_b32 v15, 7, v{vLANE}")
    a(f"v_lshlrev_b32 v{vAW}, 4, v15")
    a(f"v_mul_u32_u24 v{vA}, 1280, v14")
    a(f"v_add_u32 v{vA}, v{vA}, v{vAW}")
    if X("touch"):
        a("s_load_dwordx2 s[46:47], s[0:1], 72")
        a(f"s_mov_b32 s{sT1}, {YP_OFF}")
        a(f"v_mov_b32 v140, 0")
        a(f"buffer_load_dword v141, v140, s[{SRD_WS}:{SRD_WS+3}], s{sT1} offen")
        a("s_waitcnt lgkmcnt(0)")
        a("global_load_dword v142, v140, s[46:47] offset:192")
    a(f"s_mov_b32 s{sT1}, {8 * 1280}")
    for g in range(2):
        for i in range(10):
            a(f"buffer_load_dwordx4 {vr(vX[g] + 4 * i, 4)}, v{vA}, s[{SRD_X}:{SRD_X+3}], {0 if g == 0 else f's{sT1}'} offen offset:{i * 128}")
        if g == 0:
            for i in range(10):
                a(f"buffer_load_dwordx4 {vr(vWr + 4 * i, 4)}, v{vAW}, s[{SRD_R}:{SRD_R+3}], 0 offen offset:{i * 128}")
    for r in s1 + s2 + s3 + (sw,):
        a(f"v_mov_b32 v{r}, 0")
    a(f"v_mov_b32 v139, 0x3f803f80")
    ST(a, "setup")
    for g in range(2):
        a(f"s_waitcnt vmcnt({10 if g == 0 else 0})")
        if g == 0:
            ST(a, "B0")
        for r in range(40):
            a(f"v_dot2c_f32_bf16 v{s1[g]}, v{vX[g] + r}, v139")
            a(f"v_dot2c_f32_bf16 v{s2[g]}, v{vX[g] + r}, v{vX[g] + r}")
            a(f"v_dot2c_f32_bf16 v{s3[g]}, v{vX[g] + r}, v{vWr + r}")
            if g == 0:
                a(f"v_dot2c_f32_bf16 v{sw}, v{vWr + r}, v139")
    ST(a, "loopend")
    a("s_nop 3")
    for ctrl in ("quad_perm:[1,0,3,2]", "quad_perm:[2,3,0,1]", "row_half_mirror"):
        for r in s1 + s2 + s3 + (sw,):
            a(f"v_add_f32_dpp v{vT+2}, v{r}, v{r} {ctrl} row_mask:0xf bank_mask:0xf")
            a("s_nop 0")
            a(f"v_mov_b32 v{r}, v{vT+2}")
        a("s_nop 1")
    a(f"v_cmp_eq_u32 vcc, 1, v15")
    a(f"v_add_u32 v{vT}, 8, v14")
    a("s_nop 0")
    for pair in (s1, s2, s3):
        a(f"v_cndmask_b32 v{pair[0]}, v{pair[0]}, v{pair[1]}, vcc")
    a(f"v_cndmask_b32 v{vT}, v14, v{vT}, vcc")
    a(f"v_mov_b32 v{vT+1}, v15")
    s1, s2, s3 = s1[0], s2[0], s3[0]
    a(f"v_mul_f32 v{s1}, {hex(f2u(1.0 / D))}, v{s1}")
    a(f"v_mul_f32 v{s2}, {hex(f2u(1.0 / D))}, v{s2}")
    a(f"v_fma_f32 v{s2}, -v{s1}, v{s1}, v{s2}")
    a(f"v_max_f32 v{s2}, 0, v{s2}")
    a(f"v_add_f32 v{s2}, {hex(f2u(1e-5))}, v{s2}")
    a(f"v_rsq_f32 v{s2}, v{s2}")
    a(f"v_fma_f32 v{s3}, -v{s1}, v{sw}, v{s3}")
    a(f"v_mul_f32 v{s3}, v{s3}, v{s2}")
    ws = f"s[{SRD_WS}:{SRD_WS+3}]"
    a(f"v_ashrrev_i32 v{vT+2}, 31, v{s3}")
    a(f"v_or_b32 v{vT+2}, 0x80000000, v{vT+2}")
    a(f"v_xor_b32 v{vT+2}, v{vT+2}, v{s3}")
    a(f"v_and_b32 v{vT+2}, 0xfffff800, v{vT+2}")
    a(f"v_or_b32 v{vT+2}, v{vT+2}, v{vT}")
    a(f"v_mov_b32 v14, v{s1}")
    a(f"v_mov_b32 v15, v{s2}")
    a(f"v_lshlrev_b32 v{vA}, 3, v{vT}")
    a(f"v_lshlrev_b32 v{vAW}, 2, v{vT}")
    a(f"v_and_b32 v{vT+3}, 127, v{vT}")
    a(f"v_lshlrev_b32 v{vT+3}, 2, v{vT+3}")
    a(f"v_add_u32 v{vT+3}, {L_KEYS}, v{vT+3}")
    a(f"v_cmp_gt_u32 vcc, 2, v{vT+1}")
    a(f"s_mov_b32 s{sT0}, {ST_OFF}")
    a(f"s_mov_b32 s{sT1}, {R_OFF}")
    a("s_and_saveexec_b64 s[44:45], vcc")
    a(f"buffer_store_dwordx2 v[14:15], v{vA}, {ws}, s{sT0} offen{'' if LOCAL_STATS else ' sc1'}")
    a(f"buffer_store_dword v{s3}, v{vAW}, {ws}, s{sT1} offen")
    a(f"ds_write_b32 v{vT+3}, v{vT+2}")
    if LOCAL_STATS:
        a("s_waitcnt lgkmcnt(0)")
    else:
        a("s_load_dwordx2 s[46:47], s[0:1], 72")
        a("s_waitcnt vmcnt(0) lgkmcnt(0)")
    a("s_mov_b64 exec, s[44:45]")
    a("s_barrier")
    a(f"s_cmp_lg_u32 s{sW}, 0")
    a("s_cbranch_scc1 L_k1_repack")
    if not LOCAL_STATS:
        a(f"s_lshl_b32 s{sT0}, s{sMT}, 2")
        a(f"v_mov_b32 v16, s{sT0}")
        a("v_mov_b32 v17, 1")
        a("s_mov_b64 exec, 1")
        a("global_store_dword v16, v17, s[46:47] sc1")
        a("s_mov_b64 exec, -1")
    ST(a, "e_lds")
    hi, lo, oh, ol, adr = 16, 17, 18, 19, 20
    a(f"v_lshlrev_b32 v{adr}, 2, v{vLANE}")
    a(f"ds_read_b32 v{oh}, v{adr} offset:{L_KEYS}")
    a(f"ds_read_b32 v{ol}, v{adr} offset:{L_KEYS + 256}")
    a("s_waitcnt lgkmcnt(0)")
    a(f"v_max_u32 v{hi}, v{oh}, v{ol}")
    a(f"v_min_u32 v{lo}, v{oh}, v{ol}")
    for x in (1, 2, 4, 8, 16, 32):
        a(f"v_xor_b32 v{adr}, {x}, v{vLANE}")
        a(f"v_lshlrev_b32 v{adr}, 2, v{adr}")
        a(f"ds_bpermute_b32 v{oh}, v{adr}, v{hi}")
        a(f"ds_bpermute_b32 v{ol}, v{adr}, v{lo}")
        a("s_waitcnt lgkmcnt(0)")
        a(f"v_max_u32 v{lo}, v{lo}, v{ol}")
        a(f"v_min_u32 v{ol}, v{hi}, v{oh}")
        a(f"v_max_u32 v{hi}, v{hi}, v{oh}")
        a(f"v_max_u32 v{lo}, v{lo}, v{ol}")
    a(f"v_mov_b32 v{oh}, v{hi}")
    a(f"v_mov_b32 v{ol}, v{lo}")
    a(f"s_lshl_b32 s{sT0}, s{sMT}, 3")
    a(f"s_add_u32 s{sT0}, s{sT0}, {CAND_OFF}")
    a(f"v_mov_b32 v{adr}, 0")
    a(f"v_cmp_eq_u32 vcc, 0, v{vLANE}")
    a("s_nop 1")
    a("s_and_saveexec_b64 s[44:45], vcc")
    a(f"buffer_store_dwordx2 v[{oh}:{ol}], v{adr}, {ws}, s{sT0} offen")
    a("s_mov_b64 exec, -1")
    a(f"s_cmp_lg_u32 s{sMT}, 0")
    a("s_cbranch_scc1 L_k1_repack")
    a(f"v_lshlrev_b32 v{adr}, 8, v{vLANE}")
    a(f"v_mov_b32 v{oh}, 0")
    a(f"s_mov_b32 s{sT0}, {CNT_OFF}")
    a(f"v_cmp_gt_u32 vcc, {NCNT}, v{vLANE}")
    a("s_nop 1")
    a("s_mov_b64 exec, vcc")
    a(f"buffer_store_dword v{oh}, v{adr}, {ws}, s{sT0} offen")
    a("s_mov_b64 exec, -1")
    ST(a, "stores")
    ST.store(a)
    a.label("L_k1_repack")
    repack_setup(a, sMT)
    repack_request(a, sW, 0)
    a(f"s_cmp_ge_u32 s{sW}, 2")
    a("s_cbranch_scc1 L_rep_loaded")
    repack_request(a, sW, 1)
    a.label("L_rep_loaded")
    repack_finish(a, sW, "L_k1_exit")

def emit(a):
    entry(a)
    consumer_setup(a)
    a(f"s_cmp_ge_u32 s{sNT}, 10")
    a("s_cbranch_scc1 L_k1_v")
    qk_path(a)
    v_path(a)
    loader(a)
    stat_waves(a)
    aux(a)
    a.label("L_k1_exit")
    a("s_endpgm")
```

```python
S, D, H, DH, F = 2048, 640, 32, 20, 1536

QB_OFF = 0
KV_OFF = 32 * 64 * 1280
OB_OFF = KV_OFF + 32 * 64 * 2560
ST_OFF = OB_OFF + 32 * 64 * 1280
R_OFF = ST_OFF + 2048 * 8
CAND_OFF = R_OFF + 2048 * 4
YP_OFF = CAND_OFF + 256
WO2_OFF = YP_OFF + 96 * 2 * 640 * 4
CNT_OFF = WO2_OFF + 8 * 20 * 5 * 1024
NCNT = 9 + 24
GP_OFF = CNT_OFF + NCNT * 256
WS_USED = GP_OFF + 96 * 2 * 768
WS_SRD = (WS_USED + 0xFFFF) & ~0xFFFF

X_BYTES = S * D * 2
WQKV_BYTES = D * 3 * D * 2
WO_BYTES = D * D * 2
WG_BYTES = D * F * 2
WD_BYTES = F * D * 2

LOG2E = 1.4426950408889634
QSCALE = LOG2E * DH ** -0.5

import struct
def f2u(x):
    return struct.unpack("<I", struct.pack("<f", x))[0]

class Asm:
    def __init__(self):
        self.lines = []
    def __call__(self, s=""):
        for ln in s.split("\n"):
            self.lines.append(ln if ln.endswith(":") or ln.startswith(".") or not ln.strip() else "    " + ln.strip())
    def label(self, l):
        self.lines.append(l + ":")
    def text(self):
        return "\n".join(self.lines) + "\n"

def vr(a, n=1):
    return f"v{a}" if n == 1 else f"v[{a}:{a+n-1}]"
def sr(a, n=1):
    return f"s{a}" if n == 1 else f"s[{a}:{a+n-1}]"

def srd(a, dst, lo, nbytes):
    a(f"s_mov_b32 s{dst}, s{lo}")
    a(f"s_and_b32 s{dst+1}, s{lo+1}, 0xffff")
    a(f"s_mov_b32 s{dst+2}, {nbytes}")
    a(f"s_mov_b32 s{dst+3}, 0x00020000")

def kernel_header(a, name):
    a(f".globl {name}")
    a(".p2align 8")
    a(f".type {name},@function")
    a.label(name)

def kernel_desc(name, vgpr, sgpr=100):
    acc = (vgpr + 3) // 4 * 4
    return f""".amdhsa_kernel {name}
  .amdhsa_next_free_vgpr {vgpr}
  .amdhsa_next_free_sgpr {sgpr}
  .amdhsa_accum_offset {acc}
  .amdhsa_group_segment_fixed_size 0
  .amdhsa_kernarg_size 88
  .amdhsa_user_sgpr_count 2
  .amdhsa_user_sgpr_kernarg_segment_ptr 1
  .amdhsa_system_sgpr_workgroup_id_x 1
.end_amdhsa_kernel
"""

import os
PROF_OFF = 16 << 20
def prof_on(name):
    return name in os.environ.get("PROF", "").split(",")
class Stamps:
    def __init__(self, name, base=52):
        self.on = prof_on(name)
        self.off = PROF_OFF + {"k1": 0, "k2": 1 << 20, "k3": 2 << 20}[name]
        self.base = base
        self.names = []
    def __call__(self, a, label):
        if not self.on:
            return
        if label not in self.names:
            self.names.append(label)
        i = self.names.index(label)
        assert i < 12
        a(f"s_memtime s[{self.base + 4 * i}:{self.base + 4 * i + 1}]")
        a(f"s_memrealtime s[{self.base + 4 * i + 2}:{self.base + 4 * i + 3}]")
    def store(self, a, swave, srd_ws, vtmp=2):
        if not self.on:
            return
        a("s_mov_b64 exec, -1")
        a("s_waitcnt vmcnt(0) lgkmcnt(0)")
        a("s_lshl_b32 s50, s2, 4")
        a(f"s_add_u32 s50, s50, s{swave}")
        a("s_lshl_b32 s50, s50, 7")
        a(f"s_add_u32 s50, s50, {self.off}")
        a(f"s_mov_b32 s{srd_ws + 2}, 0x2000000")
        a(f"v_mov_b32 v{vtmp}, 0")
        for i in range(12):
            a(f"v_mov_b32 v{vtmp + 1}, s{self.base + 4 * i}")
            a(f"buffer_store_dword v{vtmp + 1}, v{vtmp}, s[{srd_ws}:{srd_ws + 3}], s50 offen offset:{4 * i}")
            a(f"v_mov_b32 v{vtmp + 1}, s{self.base + 4 * i + 2}")
            a(f"buffer_store_dword v{vtmp + 1}, v{vtmp}, s[{srd_ws}:{srd_ws + 3}], s50 offen offset:{64 + 4 * i}")
        a("s_waitcnt vmcnt(0)")


class StampsLane:
    def __init__(self, name, swave, srd_ws, vt):
        self.on = prof_on(name)
        self.off = PROF_OFF + {"k1": 0, "k2": 1 << 20, "k3": 2 << 20}[name]
        self.names, self.swave, self.srd, self.vt = [], swave, srd_ws, vt
    def __call__(self, a, label):
        if not self.on:
            return
        if label not in self.names:
            self.names.append(label)
        i = self.names.index(label)
        assert i < 16
        a("s_memtime s[96:97]")
        a("s_memrealtime s[98:99]")
        a("s_waitcnt lgkmcnt(0)")
        a(f"v_writelane_b32 v{self.vt}, s96, {i}")
        a(f"v_writelane_b32 v{self.vt + 1}, s98, {i}")
    def store(self, a):
        if not self.on:
            return
        v = self.vt
        a("s_mov_b64 exec, -1")
        a("s_lshl_b32 s96, s2, 4")
        a(f"s_add_u32 s96, s96, s{self.swave}")
        a("s_lshl_b32 s96, s96, 7")
        a(f"s_add_u32 s96, s96, {self.off}")
        a(f"s_mov_b32 s{self.srd + 2}, 0x2000000")
        a(f"v_and_b32 v{v+2}, 63, v0")
        a(f"v_lshlrev_b32 v{v+2}, 2, v{v+2}")
        a("s_mov_b64 exec, 0xffff")
        a(f"buffer_store_dword v{v}, v{v+2}, s[{self.srd}:{self.srd + 3}], s96 offen")
        a(f"buffer_store_dword v{v+1}, v{v+2}, s[{self.srd}:{self.srd + 3}], s96 offen offset:64")
        a("s_waitcnt vmcnt(0)")
        a("s_mov_b64 exec, -1")


def code_prefetch(a, tag, first, last, nbytes_max, sb, vlane, vt, backward):
    a(f"s_getpc_b64 s[{sb}:{sb+1}]")
    a.label(f"L_pc_{tag}")
    if backward:
        a(f"s_sub_u32 s{sb}, s{sb}, L_pc_{tag}-{first}")
        a(f"s_subb_u32 s{sb+1}, s{sb+1}, 0")
    else:
        a(f"s_add_u32 s{sb}, s{sb}, {first}-L_pc_{tag}")
        a(f"s_addc_u32 s{sb+1}, s{sb+1}, 0")
    a(f"s_mov_b32 s{sb+2}, {last}-{first}-4")
    a(f"v_lshlrev_b32 v{vt}, 7, v{vlane}")
    for i in range((nbytes_max + 8191) // 8192):
        if i:
            a(f"v_add_u32 v{vt}, 8192, v{vt}")
        a(f"v_min_u32 v{vt+1}, s{sb+2}, v{vt}")
        a(f"global_load_dword v{vt+2}, v{vt+1}, s[{sb}:{sb+1}]")
```

```python
from common import *
import os
import slots

NAME = "qkv_kernel"
LDS = 131072 + 2048
VGPRS = 152 if prof_on("k1") else 144
LOCAL_STATS = os.environ.get("K1_STATS", "local") == "local"
BLOCK = 768 if LOCAL_STATS else 576

SRD_X, SRD_W, SRD_WS = 8, 12, 16
sW, sMT, sNT = 20, 21, 22
sROW0 = 23
sT0, sT1, sT2, sT3 = 24, 25, 26, 27
sSEC, sHS, sTS, sSCALE = 28, 29, 30, 31
sTA, sTB = 32, 33
sWR, sWC = 34, 35
sTBL, sN5 = 44, 45
ST_NM, ST_RS, ST_CS = 131072, 131072 + 512, 131072 + 1024

vLANE, vTOK, vH = 1, 2, 3
vT = 4
vXA = 8
vXB = 12
vWA, vWB = 16, 17
vS1, vS2, vCS, vONE = 28, 29, 30, 31
vSEL = 136
vCSA = 140
vF = (32, 48)
vACC = 64
vOFF = 128
vE = 24

ST = StampsLane("k1", 20, 16, 148)
def X(flag):
    return flag in os.environ.get("K1_EXP", "").split(",")

STF = {"": "", "sc1": " sc1", "nt": " nt", "sc01": " sc0 sc1"}[os.environ.get("K1_ST", "")]

def acc(a_, b_):
    return vACC + 32 * a_ + 16 * b_

def entry(a):
    kernel_header(a, NAME)
    ST(a, "entry")
    a("s_cmp_ge_u32 s2, 256")
    a("s_cbranch_scc1 L_k1_exit")
    a("s_load_dwordx4 s[4:7], s[0:1], 0")
    a("s_load_dwordx2 s[36:37], s[0:1], 80")
    a("s_load_dwordx2 s[38:39], s[0:1], 32")
    a(f"v_lshrrev_b32 v{vT}, 6, v0")
    a(f"v_and_b32 v{vLANE}, 63, v0")
    a(f"v_readfirstlane_b32 s{sW}, v{vT}")
    MAP = os.environ.get("K1_MAP", "4x8")
    if MAP == "4x8":
        a(f"s_and_b32 s{sT0}, s2, 3")
        a(f"s_lshl_b32 s{sT0}, s{sT0}, 2")
        a(f"s_bfe_u32 s{sT1}, s2, 0x20003")
        a(f"s_or_b32 s{sMT}, s{sT0}, s{sT1}")
        a(f"s_bfe_u32 s{sT0}, s2, 0x10002")
        a(f"s_lshl_b32 s{sT0}, s{sT0}, 3")
        a(f"s_lshr_b32 s{sT1}, s2, 5")
        a(f"s_or_b32 s{sNT}, s{sT0}, s{sT1}")
    elif MAP == "8x4":
        a(f"s_and_b32 s{sT0}, s2, 1")
        a(f"s_lshl_b32 s{sT0}, s{sT0}, 3")
        a(f"s_bfe_u32 s{sT1}, s2, 0x30003")
        a(f"s_or_b32 s{sMT}, s{sT0}, s{sT1}")
        a(f"s_bfe_u32 s{sT0}, s2, 0x20001")
        a(f"s_lshl_b32 s{sT0}, s{sT0}, 2")
        a(f"s_lshr_b32 s{sT1}, s2, 6")
        a(f"s_or_b32 s{sNT}, s{sT0}, s{sT1}")
    elif MAP == "2x16":
        a(f"s_and_b32 s{sT0}, s2, 7")
        a(f"s_lshl_b32 s{sT0}, s{sT0}, 1")
        a(f"s_bfe_u32 s{sT1}, s2, 0x10003")
        a(f"s_or_b32 s{sMT}, s{sT0}, s{sT1}")
        a(f"s_lshr_b32 s{sNT}, s2, 4")
    elif MAP == "16x2":
        a(f"s_bfe_u32 s{sMT}, s2, 0x40003")
        a(f"s_and_b32 s{sT0}, s2, 7")
        a(f"s_lshl_b32 s{sT0}, s{sT0}, 1")
        a(f"s_lshr_b32 s{sT1}, s2, 7")
        a(f"s_or_b32 s{sNT}, s{sT0}, s{sT1}")
    a(f"s_lshl_b32 s{sROW0}, s{sMT}, 7")
    a(f"v_and_b32 v{vTOK}, 31, v{vLANE}")
    a(f"v_lshrrev_b32 v{vH}, 5, v{vLANE}")
    a("s_waitcnt lgkmcnt(0)")
    srd(a, SRD_X, 4, X_BYTES)
    srd(a, SRD_W, 6, WQKV_BYTES)
    srd(a, SRD_WS, 36, WS_SRD)
    a(f"s_cmp_eq_u32 s{sNT}, 15")
    a("s_cbranch_scc1 L_k1_aux")
    a(f"s_cmp_ge_u32 s{sW}, 8")
    a("s_cbranch_scc1 L_k1_stat")
    a(f"s_cmp_ge_u32 s{sW}, 4")
    a("s_cbranch_scc1 L_k1_loader")

def loader(a):
    a.label("L_k1_loader")
    a(f"s_setprio {os.environ.get('K1_LPRIO', '0')}")
    vX, vWt = 8, 9
    lw = sT0
    a(f"s_sub_u32 s{lw}, s{sW}, 4")
    a(f"v_lshrrev_b32 v{vT}, 3, v{vLANE}")
    a(f"s_lshl_b32 s{sT1}, s{lw}, 3")
    a(f"s_add_u32 s{sT1}, s{sT1}, s{sROW0}")
    a(f"v_add_u32 v{vT}, s{sT1}, v{vT}")
    a(f"v_mul_u32_u24 v{vT}, 1280, v{vT}")
    a(f"v_lshrrev_b32 v{vT+1}, 4, v{vLANE}")
    a(f"s_and_b32 s{sT1}, s{lw}, 1")
    a(f"s_lshl_b32 s{sT1}, s{sT1}, 2")
    a(f"v_add_u32 v{vT+2}, s{sT1}, v{vT+1}")
    a(f"v_and_b32 v{vT+3}, 7, v{vLANE}")
    a(f"v_xor_b32 v{vT+2}, v{vT+2}, v{vT+3}")
    a(f"v_lshl_add_u32 v{vX}, v{vT+2}, 4, v{vT}")
    a(f"s_lshl_b32 s{sT1}, s{lw}, 2")
    a(f"v_add_u32 v{vT}, s{sT1}, v{vT+1}")
    a(f"v_mul_u32_u24 v{vT}, 3840, v{vT}")
    a(f"v_and_b32 v{vT+2}, 15, v{vLANE}")
    a(f"v_lshlrev_b32 v{vT+3}, 2, v{vT+1}")
    a(f"v_xor_b32 v{vT+2}, v{vT+2}, v{vT+3}")
    a(f"v_lshl_add_u32 v{vT}, v{vT+2}, 4, v{vT}")
    a(f"s_lshl_b32 s{sT1}, s{sNT}, 8")
    a(f"v_add_u32 v{vWt}, s{sT1}, v{vT}")
    a(f"s_lshl_b32 s{sT2}, s{lw}, 10")
    vXs, vWs = 44, 48
    for i in range(4):
        a(f"v_add_u32 v{vXs + i}, {i * 40960}, v{vX}")
        a(f"v_add_u32 v{vWs + i}, {i * 16 * 3840}, v{vWt}")
    sXO, sWO = 40, 41
    a("s_lshr_b32 s42, s2, 5")
    a("s_bfe_u32 s43, s2, 0x20003")
    a("s_mul_i32 s43, s43, 3")
    a("s_add_u32 s42, s42, s43")
    a("s_cmp_ge_u32 s42, 10")
    a("s_cselect_b32 s43, 10, 0")
    a("s_sub_u32 s42, s42, s43")
    if not X("rot"):
        a("s_mov_b32 s42, 0")
    def stage(s):
        base = (s & 3) * 32768
        a(f"s_lshl_b32 s{sXO}, s42, 7")
        a(f"s_mul_i32 s{sWO}, s42, {64 * 3840}")
        a("s_add_u32 s42, s42, 1")
        a("s_cmp_eq_u32 s42, 10")
        a("s_cselect_b32 s42, 0, s42")
        for i in range(4):
            a(f"s_add_u32 m0, s{sT2}, {base + i * 4096}")
            a("s_nop 0")
            a(f"buffer_load_dwordx4 v{vXs + i}, s[{SRD_X}:{SRD_X+3}], s{sXO} offen lds")
            a(f"s_add_u32 m0, s{sT2}, {base + 16384 + i * 4096}")
            a("s_nop 0")
            a(f"buffer_load_dwordx4 v{vWs + i}, s[{SRD_W}:{SRD_W+3}], s{sWO} offen lds")
    ST(a, "setup")
    PRE = int(os.environ.get("K1_PRE", "2"))
    for s in range(PRE):
        stage(s)
    ST(a, "B0")
    issued = PRE - 1
    for s in range(10):
        a(f"s_waitcnt vmcnt({8 * (issued - s)})")
        if s in (0, 1, 2, 5):
            ST(a, {0: "g4", 1: "g8", 2: "g20", 5: "loopend"}[s])
        a("s_barrier")
        while issued < min(9, s + int(os.environ.get('K1_DEPTH', '3'))):
            issued += 1
            if not (X("nodma") and issued > 3):
                stage(issued)
    ST(a, "stores")
    ST(a, "end")
    ST.store(a)
    a("s_endpgm")

def stat_waves(a):
    (stat_local if LOCAL_STATS else stat_fetch)(a)

def stat_local(a):
    a.label("L_k1_stat")
    lw = sT0
    vR, vR2, vD, vP, vA1, vA2 = 8, 12, 48, 32, 36, 38
    a(f"s_sub_u32 s{lw}, s{sW}, 8")
    a(f"v_lshrrev_b32 v{vT}, 1, v{vLANE}")
    a(f"s_lshl_b32 s{sT1}, s{lw}, 5")
    a(f"v_add_u32 v{vT}, s{sT1}, v{vT}")
    a(f"v_lshlrev_b32 v{vT+1}, 7, v{vT}")
    a(f"v_and_b32 v{vT+2}, 1, v{vLANE}")
    a(f"v_lshl_add_u32 v{vT+1}, v{vT+2}, 6, v{vT+1}")
    a(f"v_bfe_u32 v{vT+2}, v{vLANE}, 2, 2")
    for i in range(4):
        a(f"v_xor_b32 v{vT+3}, {i}, v{vT+2}")
        a(f"v_lshl_add_u32 v{vR + i}, v{vT+3}, 4, v{vT+1}")
        a(f"v_add_u32 v{vR2 + i}, 65536, v{vR + i}")
    a(f"v_lshlrev_b32 v40, 2, v{vT}")
    for r in range(4):
        a(f"v_mov_b32 v{vA1 + r}, 0")
    if os.environ.get("K1_PF", "0") == "1":
        a(f"s_sub_u32 s{sT1}, s{sW}, 8")
        a(f"s_mul_i32 s{sT2}, s2, 10240")
        a(f"s_mul_i32 s{sT3}, s2, 9600")
        a(f"v_lshlrev_b32 v41, 4, v{vLANE}")
        a(f"s_lshl_b32 s{sT1}, s{sT1}, 10")
        a(f"v_add_u32 v41, s{sT1}, v41")
        for i in range(3):
            a(f"buffer_load_dwordx4 v[96:99], v41, s[{SRD_X}:{SRD_X+3}], s{sT2} offen" + (f" offset:{4096 * i}" if i * 4096 < 4096 else ""))if i == 0 else None
        for i in range(1, 3):
            a(f"s_add_u32 s{sT2}, s{sT2}, 4096")
            a(f"buffer_load_dwordx4 v[96:99], v41, s[{SRD_X}:{SRD_X+3}], s{sT2} offen")
        for i in range(3):
            a(f"buffer_load_dwordx4 v[100:103], v41, s[{SRD_W}:{SRD_W+3}], s{sT3} offen")
            a(f"s_add_u32 s{sT3}, s{sT3}, 4096")
    CPF = os.environ.get("K1_CPF", "none").split(",")
    if "own" in CPF:
        a(f"s_cmp_lg_u32 s{sW}, 8")
        a("s_cbranch_scc1 L_k1_cpf1")
        code_prefetch(a, "k1own", NAME, "L_k1_end", 24576, 46, vLANE, 44, True)
        a.label("L_k1_cpf1")
    if "next" in CPF:
        a(f"s_cmp_lg_u32 s{sW}, 9")
        a("s_cbranch_scc1 L_k1_cpf2")
        code_prefetch(a, "k1next", "attn_proj_kernel", "L_k2_end", 40960, 46, vLANE, 44, False)
        a.label("L_k1_cpf2")
    TOUCH = os.environ.get("K1_TOUCH", "none").split(",")
    a(f"v_lshlrev_b32 v41, 16, v{vLANE}")
    a(f"s_cmp_lg_u32 s{sW}, 8")
    a("s_cbranch_scc1 L_k1_touch2")
    if "xw" in TOUCH:
        a(f"buffer_load_dword v42, v41, s[{SRD_X}:{SRD_X+3}], 0 offen")
        a(f"buffer_load_dword v43, v41, s[{SRD_W}:{SRD_W+3}], 0 offen")
    if "ws" in TOUCH:
        for i in range((WS_SRD + (64 << 16) - 1) // (64 << 16)):
            a(f"s_mov_b32 s{sT1}, {i * (64 << 16)}")
            a(f"buffer_load_dword v44, v41, s[{SRD_WS}:{SRD_WS+3}], s{sT1} offen")
    a.label("L_k1_touch2")
    if "wts" in TOUCH or "out" in TOUCH:
        a(f"s_cmp_lg_u32 s{sW}, 9")
        a("s_cbranch_scc1 L_k1_touched")
        a("s_load_dwordx2 s[46:47], s[0:1], 16")
        a("s_load_dwordx4 s[48:51], s[0:1], 40")
        a("s_load_dwordx4 s[52:55], s[0:1], 56")
        a("s_waitcnt lgkmcnt(0)")
        bufs = [(46, WO_BYTES), (48, WG_BYTES), (50, WG_BYTES), (52, WD_BYTES)] if "wts" in TOUCH else []
        if "out" in TOUCH:
            bufs.append((54, X_BYTES))
        for lo, nbytes in bufs:
            srd(a, 56, lo, nbytes)
            a("buffer_load_dword v44, v41, s[56:59], 0 offen")
        a.label("L_k1_touched")
    for s in range(10):
        slot = s & 3
        a("s_barrier")
        if s == 9:
            a(f"s_setprio {os.environ.get('K1_LASTPRIO', '0')}")
        for i in range(4):
            a(f"ds_read_b128 {vr(vD + 4 * i, 4)}, v{(vR if slot < 2 else vR2) + i} offset:{(slot & 1) * 32768}")
        for j in range(16):
            if j % 4 == 0:
                a(f"s_waitcnt lgkmcnt({3 - j // 4})")
            p = vP + 2 * (j & 1)
            a(f"v_lshlrev_b32 v{p}, 16, v{vD + j}")
            a(f"v_and_b32 v{p+1}, 0xffff0000, v{vD + j}")
            a(f"v_add_f32 v{vA1}, v{vA1}, v{p}")
            a(f"v_fmac_f32 v{vA2}, v{p}, v{p}")
            a(f"v_add_f32 v{vA1+1}, v{vA1+1}, v{p+1}")
            a(f"v_fmac_f32 v{vA2+1}, v{p+1}, v{p+1}")
    a(f"v_add_f32 v{vA1}, v{vA1}, v{vA1+1}")
    a(f"v_add_f32 v{vA2}, v{vA2}, v{vA2+1}")
    a("s_nop 1")
    a(f"v_add_f32_dpp v{vA1+1}, v{vA1}, v{vA1} quad_perm:[1,0,3,2] row_mask:0xf bank_mask:0xf")
    a(f"v_add_f32_dpp v{vA2+1}, v{vA2}, v{vA2} quad_perm:[1,0,3,2] row_mask:0xf bank_mask:0xf")
    a(f"v_mul_f32 v{vA1}, {hex(f2u(1.0 / D))}, v{vA1+1}")
    a(f"v_mul_f32 v{vA2}, {hex(f2u(1.0 / D))}, v{vA2+1}")
    a(f"v_fma_f32 v{vA2}, -v{vA1}, v{vA1}, v{vA2}")
    a(f"v_max_f32 v{vA2}, 0, v{vA2}")
    a(f"v_add_f32 v{vA2}, {hex(f2u(1e-5))}, v{vA2}")
    a(f"v_rsq_f32 v{vA2}, v{vA2}")
    a(f"v_sub_f32 v{vA1}, 0, v{vA1}")
    a(f"v_add_u32 v40, {ST_NM}, v40")
    a(f"ds_write_b32 v40, v{vA1}")
    a(f"ds_write_b32 v40, v{vA2} offset:512")
    a("s_waitcnt lgkmcnt(0)")
    ST(a, "stores")
    a("s_barrier")
    ST(a, "end")
    ST.store(a)
    a("s_endpgm")

def stat_fetch(a):
    a.label("L_k1_stat")
    vA, vF, vD = 8, 9, 12
    ws = f"s[{SRD_WS}:{SRD_WS+3}]"
    a("s_load_dwordx2 s[46:47], s[0:1], 72")
    a(f"v_lshlrev_b32 v{vA}, 4, v{vLANE}")
    a(f"s_lshl_b32 s{sT0}, s{sMT}, 2")
    a(f"v_mov_b32 v{vF}, s{sT0}")
    a(f"s_lshl_b32 s{sT1}, s{sMT}, 10")
    a(f"s_add_u32 s{sT1}, s{sT1}, {ST_OFF}")
    a(f"v_lshlrev_b32 v10, 3, v{vLANE}")
    a(f"v_add_u32 v10, {ST_NM}, v10")
    a(f"s_mov_b32 s{sT2}, 0")
    a("s_waitcnt lgkmcnt(0)")
    def advance(tag, blocking):
        a(f"s_cmp_eq_u32 s{sT2}, 2")
        a(f"s_cbranch_scc1 L_st_{tag}_end")
        a("s_waitcnt vmcnt(0)")
        a(f"s_cmp_eq_u32 s{sT2}, 1")
        a(f"s_cbranch_scc1 L_st_{tag}_land")
        a(f"v_readfirstlane_b32 s{sT3}, v11")
        a("s_nop 1")
        a(f"s_cmp_eq_u32 s{sT3}, 1")
        a(f"s_cbranch_scc1 L_st_{tag}_go")
        a(f"global_load_dword v11, v{vF}, s[46:47] sc1")
        a(f"s_branch L_st_{tag}_end")
        a.label(f"L_st_{tag}_go")
        a(f"buffer_load_dwordx4 {vr(vD, 4)}, v{vA}, {ws}, s{sT1} offen sc1")
        a(f"s_mov_b32 s{sT2}, 1")
        a(f"s_branch L_st_{tag}_end")
        a.label(f"L_st_{tag}_land")
        a(f"v_sub_f32 v16, 0, v{vD}")
        a(f"v_sub_f32 v17, 0, v{vD+2}")
        a(f"v_mov_b32 v18, v{vD+1}")
        a(f"v_mov_b32 v19, v{vD+3}")
        a("ds_write_b64 v10, v[16:17]")
        a("ds_write_b64 v10, v[18:19] offset:512")
        a(f"s_mov_b32 s{sT2}, 2")
        a.label(f"L_st_{tag}_end")
    a("v_mov_b32 v11, 0")
    if X("touch"):
        a(f"s_mov_b32 s{sT3}, {YP_OFF}")
        a("v_mov_b32 v21, 0")
        a(f"buffer_load_dword v20, v21, {ws}, s{sT3} offen")
        a("global_load_dword v22, v21, s[46:47] offset:192")
    for s in range(10):
        a("s_barrier")
        if s in (1, 3, 5, 7):
            advance(f"b{s}", False)
    a(f"s_mov_b32 s48, {1 << 20}")
    a.label("L_st_fin")
    advance("fin", True)
    a("s_sub_u32 s48, s48, 1")
    a("s_cbranch_scc1 L_st_done")
    a(f"s_cmp_eq_u32 s{sT2}, 2")
    a("s_cbranch_scc0 L_st_fin")
    a.label("L_st_done")
    a("s_waitcnt lgkmcnt(0)")
    ST(a, "stores")
    a("s_barrier")
    ST(a, "end")
    ST.store(a)
    a("s_endpgm")

def read_list(g):
    ks, half = g & 3, (g >> 2) & 1
    base = half * 32768
    f = vF[g & 1]
    w = lambda b, reg, rd: f"ds_read_b64_tr_b16 {vr(f + 8 + 4 * b + 2 * rd, 2)}, v{reg} offset:{base + 16384 + (16 * ks + 4 * rd) * 256}"
    return [f"ds_read_b128 {vr(f, 4)}, v{vXA + ks} offset:{base}", w(0, vWA, 0), w(0, vWA, 1),
            w(1, vWB, 0), w(1, vWB, 1), f"ds_read_b128 {vr(f + 4, 4)}, v{vXB + ks} offset:{base}"]

def step(a, g, vorient, reads, pre=None):
    f = vF[g & 1]
    def mm(a_, b_):
        x, w = vr(f + 4 * a_, 4), vr(f + 8 + 4 * b_, 4)
        A, B = (x, w) if vorient else (w, x)
        a(f"v_mfma_f32_32x32x16_bf16 {vr(acc(a_, b_), 16)}, {A}, {B}, {vr(acc(a_, b_), 16)}")
    if pre is not None:
        a("s_waitcnt lgkmcnt(0)")
        mm(0, 0)
        mm(0, 1)
        pre()
        for r in reads[0:3]: a(r)
        mm(1, 0)
        for r in reads[3:6]: a(r)
        mm(1, 1)
    else:
        a("s_waitcnt lgkmcnt(3)")
        mm(0, 0)
        for r in reads[0:3]: a(r)
        a("s_waitcnt lgkmcnt(4)")
        mm(0, 1)
        for r in reads[3:6]: a(r)
        a("s_waitcnt lgkmcnt(6)")
        mm(1, 0)
        mm(1, 1)
    a(f"v_mfma_f32_16x16x32_bf16 {vr(vCSA, 4)}, {vr(vSEL, 4)}, {vr(f + 8, 4)}, {vr(vCSA, 4)}")

def mainloop(a, vorient):
    tag = "v" if vorient else "qk"
    ST(a, "setup")
    a("s_barrier")
    ST(a, "B0")
    for r in read_list(0):
        a(r)
    a(f"s_mov_b32 s{sT3}, 5")
    a(".p2align 3")
    a.label(f"L_k1_loop_{tag}")
    def pre7():
        a(f"s_sub_u32 s{sT3}, s{sT3}, 1")
        a(f"s_cmp_eq_u32 s{sT3}, 0")
        a(f"s_cbranch_scc1 L_k1_last_{tag}")
        for r in list(range(vXA, vXA + 4)) + list(range(vXB, vXB + 4)) + [vWA, vWB]:
            a(f"v_xor_b32 v{r}, 0x10000, v{r}")
        a("s_barrier")
    for g in range(8):
        pre = (lambda: a("s_barrier")) if g == 3 else (pre7 if g == 7 else None)
        step(a, g, vorient, read_list(g + 1), pre)
    a(f"s_branch L_k1_loop_{tag}")
    a.label(f"L_k1_last_{tag}")
    f = vF[1]
    for b_ in range(2):
        x, w = vr(f + 4, 4), vr(f + 8 + 4 * b_, 4)
        A, B = (x, w) if vorient else (w, x)
        a(f"v_mfma_f32_32x32x16_bf16 {vr(acc(1, b_), 16)}, {A}, {B}, {vr(acc(1, b_), 16)}")
    a(f"v_mfma_f32_16x16x32_bf16 {vr(vCSA, 4)}, {vr(vSEL, 4)}, {vr(f + 8, 4)}, {vr(vCSA, 4)}")

def stats_exchange(a):
    ST(a, "loopend")
    a(f"s_lshl_b32 s{sT0}, s{sWC}, 6")
    a(f"s_lshl_b32 s{sT1}, s{sWR}, 5")
    a(f"s_add_u32 s{sT0}, s{sT0}, s{sT1}")
    a(f"v_add_u32 v{vT+1}, s{sT0}, v{vLANE}")
    a(f"v_lshlrev_b32 v{vT+1}, 2, v{vT+1}")
    a(f"v_add_u32 v{vT+1}, {ST_CS}, v{vT+1}")
    a("s_mov_b64 exec, 0xffff")
    a("s_nop 4")
    a(f"ds_write_b32 v{vT+1}, v{vCSA}")
    a(f"ds_write_b32 v{vT+1}, v{vCSA+1} offset:64")
    a("s_mov_b64 exec, -1")
    a("s_waitcnt lgkmcnt(0)")
    a("s_barrier")
    ST(a, "e_bar")

def consumer_setup(a):
    a(f"s_lshr_b32 s{sWR}, s{sW}, 1")
    a(f"s_and_b32 s{sWC}, s{sW}, 1")
    a(f"v_lshrrev_b32 v{vT}, 1, v{vTOK}")
    a(f"v_and_b32 v{vT}, 7, v{vT}")
    a(f"s_lshl_b32 s{sT0}, s{sWR}, 6")
    a(f"v_add_u32 v{vT+1}, s{sT0}, v{vTOK}")
    a(f"v_lshlrev_b32 v{vT+1}, 7, v{vT+1}")
    a(f"s_lshl_b32 s{sT0}, s{sWC}, 12")
    a(f"s_xor_b32 s{sT1}, s{sT0}, 4096")
    for ks in range(4):
        a(f"v_add_u32 v{vT+2}, {2 * ks}, v{vH}")
        a(f"v_xor_b32 v{vT+2}, v{vT+2}, v{vT}")
        a(f"v_lshl_add_u32 v{vT+2}, v{vT+2}, 4, v{vT+1}")
        a(f"v_add_u32 v{vXA + ks}, s{sT0}, v{vT+2}")
        a(f"v_add_u32 v{vXB + ks}, s{sT1}, v{vT+2}")
    a(f"s_sub_u32 s{sN5}, s{sNT}, 5")
    a(f"s_cmp_lt_u32 s{sNT}, 5")
    a(f"s_cselect_b32 s{sN5}, s{sNT}, s{sN5}")
    for wc in range(2):
        reg = sT0 + wc
        a(f"s_mov_b32 s{reg}, {hex(0x76543210 + wc * 0x88888888)}")
        for n5 in range(5):
            a(f"s_cmp_eq_u32 s{sN5}, {n5}")
            a(f"s_cselect_b32 s{reg}, {hex(slots.packed(n5, wc))}, s{reg}")
    a(f"s_cmp_eq_u32 s{sWC}, 0")
    a(f"s_cselect_b32 s{sTBL}, s{sT0}, s{sT1}")
    a(f"v_bfe_u32 v{vT}, v{vLANE}, 2, 2")
    a(f"v_lshl_add_u32 v{vT+1}, v{vH}, 3, v{vT}")
    a(f"v_lshlrev_b32 v{vT+1}, 8, v{vT+1}")
    a(f"v_and_b32 v{vT+2}, 1, v{vLANE}")
    a(f"v_lshl_add_u32 v{vT+1}, v{vT+2}, 3, v{vT+1}")
    a(f"v_bfe_u32 v{vT+2}, v{vLANE}, 4, 1")
    a(f"v_bfe_u32 v{vT+3}, v{vLANE}, 1, 1")
    a(f"v_lshl_add_u32 v{vT+2}, v{vT+2}, 1, v{vT+3}")
    a(f"v_lshlrev_b32 v{vT+2}, 2, v{vT+2}")
    a(f"v_lshlrev_b32 v{vT}, 2, v{vT}")
    for (dst, own) in ((vWA, True), (vWB, False)):
        if own:
            a(f"s_lshl_b32 s{sT0}, s{sWR}, 4")
        else:
            a(f"s_xor_b32 s{sT0}, s{sWR}, 1")
            a(f"s_lshl_b32 s{sT0}, s{sT0}, 4")
        a(f"s_lshr_b32 s{sT0}, s{sTBL}, s{sT0}")
        a(f"v_lshrrev_b32 v{vT+3}, v{vT+2}, s{sT0}") if False else None
        a(f"v_mov_b32 v{vT+3}, s{sT0}")
        a(f"v_lshrrev_b32 v{vT+3}, v{vT+2}, v{vT+3}")
        a(f"v_and_b32 v{vT+3}, 15, v{vT+3}")
        a(f"v_xor_b32 v{vT+3}, v{vT+3}, v{vT}")
        a(f"v_lshl_add_u32 v{dst}, v{vT+3}, 4, v{vT+1}")
    a(f"v_and_b32 v{vT}, 15, v{vLANE}")
    a(f"v_bfe_u32 v{vT+1}, v{vLANE}, 4, 1")
    a(f"v_cmp_eq_u32 vcc, v{vT}, v{vT+1}")
    a(f"v_mov_b32 v{vT+2}, 0x3f803f80")
    a("s_nop 0")
    a(f"v_cndmask_b32 v{vSEL}, 0, v{vT+2}, vcc")
    for r in range(1, 4):
        a(f"v_mov_b32 v{vSEL + r}, v{vSEL}")
    for r in range(4):
        a(f"v_mov_b32 v{vCSA + r}, 0")
    for r in range(64):
        a(f"v_mov_b32 v{vACC + r}, 0")

def qk_path(a):
    a.label("L_k1_qk")
    a(f"s_mov_b32 s{sSEC}, {KV_OFF}")
    a(f"s_mov_b32 s{sTS}, 2560")
    a(f"s_mov_b32 s{sSCALE}, {hex(f2u(1.0))}")
    a(f"s_sub_u32 s{sT0}, s{sNT}, 5")
    a(f"s_cmp_lt_u32 s{sNT}, 5")
    a(f"s_cselect_b32 s{sSEC}, {QB_OFF}, s{sSEC}")
    a(f"s_cselect_b32 s{sTS}, 1280, s{sTS}")
    a(f"s_cselect_b32 s{sSCALE}, {hex(f2u(QSCALE))}, s{sSCALE}")
    a(f"s_cselect_b32 s{sT0}, s{sNT}, s{sT0}")
    a(f"s_lshl_b32 s{sHS}, s{sTS}, 6")
    a(f"s_lshl_b32 s{sT1}, s{sMT}, 2")
    a(f"s_lshl_b32 s{sT2}, s{sWR}, 1")
    a(f"s_add_u32 s{sT1}, s{sT1}, s{sT2}")
    a(f"s_add_u32 s{sT2}, s{sT1}, s{sWC}")
    a(f"s_mul_i32 s{sTA}, s{sT2}, s{sTS}")
    a(f"s_add_u32 s{sTA}, s{sTA}, s{sSEC}")
    a(f"s_xor_b32 s{sT3}, s{sWC}, 1")
    a(f"s_add_u32 s{sT2}, s{sT1}, s{sT3}")
    a(f"s_mul_i32 s{sTB}, s{sT2}, s{sTS}")
    a(f"s_add_u32 s{sTB}, s{sTB}, s{sSEC}")
    for k_, (ct, g) in enumerate(((0, 0), (0, 2), (1, 0), (1, 2), (1, 3))):
        o = vOFF + k_
        a(f"s_bfe_u32 s{sT1}, s{sTBL}, {hex((4 << 16) | (16 * ct + 4 * g))}")
        a(f"s_lshl_b32 s{sT2}, s{sN5}, 4")
        a(f"s_add_u32 s{sT1}, s{sT1}, s{sT2}")
        a(f"s_lshl_b32 s{sT1}, s{sT1}, 1")
        a(f"v_add_u32 v{vT}, s{sT1}, v{vH}")
        a(f"v_mul_u32_u24 v{vT+1}, 52429, v{vT}")
        a(f"v_lshrrev_b32 v{vT+1}, 18, v{vT+1}")
        a(f"v_mul_u32_u24 v{vT+2}, 5, v{vT+1}")
        a(f"v_sub_u32 v{vT+2}, v{vT}, v{vT+2}")
        a(f"v_and_b32 v{vT+3}, 1, v{vT+1}")
        a(f"v_sub_u32 v{vT+2}, v{vT+2}, v{vT+3}")
        a(f"v_mul_lo_u32 v{o}, v{vT+1}, s{sHS}")
        a(f"v_and_b32 v{vT+1}, 1, v{vT+2}")
        a(f"v_lshlrev_b32 v{vT+1}, 9, v{vT+1}")
        a(f"v_bfe_u32 v{vT+3}, v{vT+2}, 1, 1")
        a(f"v_lshl_add_u32 v{vT+1}, v{vT+3}, 3, v{vT+1}")
        a(f"v_lshl_add_u32 v{vT+1}, v{vTOK}, 4, v{vT+1}")
        a(f"v_cmp_lt_u32 vcc, 3, v{vT+2}")
        a(f"v_lshlrev_b32 v{vT+3}, 3, v{vTOK}")
        a(f"v_add_u32 v{vT+3}, 1024, v{vT+3}")
        a(f"v_cndmask_b32 v{vT+1}, v{vT+1}, v{vT+3}, vcc")
        a(f"v_add_u32 v{o}, v{o}, v{vT+1}")
    mainloop(a, False)
    stats_exchange(a)
    vNM, vRS, vC = vE, vE + 2, vE + 4
    a(f"s_lshl_b32 s{sT0}, s{sWR}, 6")
    a(f"v_add_u32 v{vT}, s{sT0}, v{vTOK}")
    a(f"v_lshlrev_b32 v{vT}, 2, v{vT}")
    a(f"s_lshl_b32 s{sT1}, s{sWC}, 7")
    a(f"v_add_u32 v{vT+1}, s{sT1}, v{vT}")
    a(f"s_xor_b32 s{sT1}, s{sT1}, 128")
    a(f"v_add_u32 v{vT+2}, s{sT1}, v{vT}")
    a(f"v_add_u32 v{vT+1}, {ST_NM}, v{vT+1}")
    a(f"v_add_u32 v{vT+2}, {ST_NM}, v{vT+2}")
    a(f"ds_read_b32 v{vNM}, v{vT+1}")
    a(f"ds_read_b32 v{vRS}, v{vT+1} offset:512")
    a(f"ds_read_b32 v{vNM+1}, v{vT+2}")
    a(f"ds_read_b32 v{vRS+1}, v{vT+2} offset:512")
    a(f"s_lshl_b32 s{sT0}, s{sWC}, 8")
    a(f"v_lshlrev_b32 v{vT}, 4, v{vH}")
    a(f"v_add_u32 v{vT}, s{sT0}, v{vT}")
    a(f"s_lshl_b32 s{sT1}, s{sWR}, 7")
    a(f"v_add_u32 v{vT+1}, s{sT1}, v{vT}")
    a(f"s_xor_b32 s{sT1}, s{sT1}, 128")
    a(f"v_add_u32 v{vT+2}, s{sT1}, v{vT}")
    a(f"v_add_u32 v{vT+1}, {ST_CS}, v{vT+1}")
    a(f"v_add_u32 v{vT+2}, {ST_CS}, v{vT+2}")
    for b_ in range(2):
        for g in range(4):
            a(f"ds_read_b128 {vr(vC + 16 * b_ + 4 * g, 4)}, v{vT + 1 + b_} offset:{32 * g}")
    a("s_waitcnt lgkmcnt(0)")
    ST(a, "e_lds")
    a(f"v_mul_f32 v{vRS}, s{sSCALE}, v{vRS}")
    a(f"v_mul_f32 v{vRS+1}, s{sSCALE}, v{vRS+1}")
    ws = f"s[{SRD_WS}:{SRD_WS+3}]"
    def finish(wr):
        for a_ in range(2):
            a(f"v_mov_b32 v{vT}, v{vNM + a_}")
            a(f"v_mov_b32 v{vT+1}, v{vNM + a_}")
            a(f"v_mov_b32 v{vT+2}, v{vRS + a_}")
            a(f"v_mov_b32 v{vT+3}, v{vRS + a_}")
            so = f"s{sTA if a_ == 0 else sTB}"
            for b_ in range(2):
                A = acc(a_, b_)
                for p in range(8):
                    a(f"v_pk_fma_f32 {vr(A + 2 * p, 2)}, {vr(vC + 16 * b_ + 2 * p, 2)}, {vr(vT, 2)}, {vr(A + 2 * p, 2)}")
                for p in range(8):
                    a(f"v_pk_mul_f32 {vr(A + 2 * p, 2)}, {vr(A + 2 * p, 2)}, {vr(vT + 2, 2)}")
                for p in range(8):
                    a(f"v_cvt_pk_bf16_f32 v{A + p}, v{A + 2 * p}, v{A + 2 * p + 1}")
                if (wr ^ b_) == 0:
                    a(f"buffer_store_dwordx4 {vr(A, 4)}, v{vOFF}, {ws}, {so} offen{STF}")
                    a(f"buffer_store_dwordx4 {vr(A + 4, 4)}, v{vOFF + 1}, {ws}, {so} offen{STF}")
                else:
                    a(f"buffer_store_dwordx4 {vr(A, 4)}, v{vOFF + 2}, {ws}, {so} offen{STF}")
                    a(f"buffer_store_dwordx2 {vr(A + 4, 2)}, v{vOFF + 3}, {ws}, {so} offen{STF}")
                    a(f"buffer_store_dwordx2 {vr(A + 6, 2)}, v{vOFF + 4}, {ws}, {so} offen{STF}")
    a(f"s_cmp_eq_u32 s{sWR}, 0")
    a("s_cbranch_scc0 L_k1_qk_wr1")
    finish(0)
    a("s_branch L_k1_qk_done")
    a.label("L_k1_qk_wr1")
    finish(1)
    a.label("L_k1_qk_done")
    ST(a, "stores")
    if ST.on:
        a("s_waitcnt vmcnt(0)")
    ST(a, "end")
    ST.store(a)
    a("s_endpgm")

def v_path(a):
    a.label("L_k1_v")
    a(f"s_lshl_b32 s{sT1}, s{sMT}, 2")
    a(f"s_lshl_b32 s{sT2}, s{sWR}, 1")
    a(f"s_add_u32 s{sT1}, s{sT1}, s{sT2}")
    a(f"s_add_u32 s{sT2}, s{sT1}, s{sWC}")
    a(f"s_mul_i32 s{sTA}, s{sT2}, 2560")
    a(f"s_add_u32 s{sTA}, s{sTA}, {KV_OFF + 1280}")
    a(f"s_xor_b32 s{sT3}, s{sWC}, 1")
    a(f"s_add_u32 s{sT2}, s{sT1}, s{sT3}")
    a(f"s_mul_i32 s{sTB}, s{sT2}, 2560")
    a(f"s_add_u32 s{sTB}, s{sTB}, {KV_OFF + 1280}")
    a(f"s_sub_u32 s{sT0}, s{sNT}, 10")
    a(f"s_lshl_b32 s{sT0}, s{sT0}, 7")
    a(f"s_lshl_b32 s{sT1}, s{sWC}, 6")
    a(f"s_add_u32 s{sT0}, s{sT0}, s{sT1}")
    for b_ in range(2):
        if b_ == 0:
            a(f"s_lshl_b32 s{sT1}, s{sWR}, 5")
        else:
            a(f"s_xor_b32 s{sT1}, s{sWR}, 1")
            a(f"s_lshl_b32 s{sT1}, s{sT1}, 5")
        a(f"s_add_u32 s{sT1}, s{sT1}, s{sT0}")
        a(f"v_add_u32 v{vT}, s{sT1}, v{vTOK}")
        a(f"v_mul_u32_u24 v{vT+1}, 52429, v{vT}")
        a(f"v_lshrrev_b32 v{vT+1}, 20, v{vT+1}")
        a(f"v_mul_u32_u24 v{vT+2}, 20, v{vT+1}")
        a(f"v_sub_u32 v{vT+2}, v{vT}, v{vT+2}")
        a(f"s_mov_b32 s{sT2}, {64 * 2560}")
        a(f"v_mul_lo_u32 v{vOFF + b_}, v{vT+1}, s{sT2}")
        a(f"v_lshlrev_b32 v{vT+2}, 4, v{vT+2}")
        a(f"v_mul_u32_u24 v{vT+3}, 320, v{vH}")
        a(f"v_add3_u32 v{vOFF + b_}, v{vOFF + b_}, v{vT+2}, v{vT+3}")
    mainloop(a, True)
    stats_exchange(a)
    vCL, vNM, vRS = vE, vE + 4, vE + 20
    a(f"s_lshl_b32 s{sT0}, s{sWC}, 6")
    a(f"v_add_u32 v{vT}, s{sT0}, v{vTOK}")
    a(f"v_lshlrev_b32 v{vT}, 2, v{vT}")
    a(f"s_lshl_b32 s{sT1}, s{sWR}, 7")
    a(f"v_add_u32 v{vT+1}, s{sT1}, v{vT}")
    a(f"s_xor_b32 s{sT1}, s{sT1}, 128")
    a(f"v_add_u32 v{vT+2}, s{sT1}, v{vT}")
    a(f"v_add_u32 v{vT+1}, {ST_CS}, v{vT+1}")
    a(f"v_add_u32 v{vT+2}, {ST_CS}, v{vT+2}")
    a(f"ds_read_b32 v{vCL}, v{vT+1}")
    a(f"ds_read_b32 v{vCL+2}, v{vT+2}")
    a("s_waitcnt lgkmcnt(0)")
    a(f"v_mov_b32 v{vCL+1}, v{vCL}")
    a(f"v_mov_b32 v{vCL+3}, v{vCL+2}")
    ws = f"s[{SRD_WS}:{SRD_WS+3}]"
    for a_ in range(2):
        a(f"s_lshl_b32 s{sT0}, s{sWR}, 8")
        a(f"s_lshl_b32 s{sT1}, s{sWC}, 7")
        if a_ == 1:
            a(f"s_xor_b32 s{sT1}, s{sT1}, 128")
        a(f"s_add_u32 s{sT0}, s{sT0}, s{sT1}")
        a(f"v_lshlrev_b32 v{vT}, 4, v{vH}")
        a(f"v_add_u32 v{vT}, s{sT0}, v{vT}")
        a(f"v_add_u32 v{vT}, {ST_NM}, v{vT}")
        for g in range(4):
            a(f"ds_read_b128 {vr(vNM + 4 * g, 4)}, v{vT} offset:{32 * g}")
            a(f"ds_read_b128 {vr(vRS + 4 * g, 4)}, v{vT} offset:{512 + 32 * g}")
        a("s_waitcnt lgkmcnt(0)")
        for b_ in range(2):
            A = acc(a_, b_)
            for p in range(8):
                a(f"v_pk_fma_f32 {vr(A + 2 * p, 2)}, {vr(vNM + 2 * p, 2)}, {vr(vCL + 2 * b_, 2)}, {vr(A + 2 * p, 2)}")
            for p in range(8):
                a(f"v_pk_mul_f32 {vr(A + 2 * p, 2)}, {vr(A + 2 * p, 2)}, {vr(vRS + 2 * p, 2)}")
            for p in range(8):
                a(f"v_cvt_pk_bf16_f32 v{A + p}, v{A + 2 * p}, v{A + 2 * p + 1}")
            for t in range(2):
                a(f"buffer_store_dwordx4 {vr(A + 4 * t, 4)}, v{vOFF + b_}, {ws}, s{sTA if a_ == 0 else sTB} offen offset:{640 * t}{STF}")
    ST(a, "stores")
    if ST.on:
        a("s_waitcnt vmcnt(0)")
    ST(a, "end")
    ST.store(a)
    a("s_endpgm")

L_KEYS, L_WR = 51200, 52224

def aux(a):
    from k2moe import repack_setup, repack_request, repack_finish
    a.label("L_k1_aux")
    a(f"s_cmp_ge_u32 s{sW}, 8")
    a("s_cbranch_scc1 L_k1_exit")
    vX, vWr = (16, 56), 96
    vA, vAW = 8, 9
    s1, s2, s3, sw = (10, 136), (11, 137), (12, 138), 13
    SRD_R = 40
    a("s_load_dwordx2 s[6:7], s[0:1], 16")
    srd(a, SRD_R, 38, D * 2)
    a(f"v_lshrrev_b32 v{vT}, 3, v{vLANE}")
    a(f"s_lshl_b32 s{sT0}, s{sW}, 4")
    a(f"s_add_u32 s{sT0}, s{sT0}, s{sROW0}")
    a(f"v_add_u32 v14, s{sT0}, v{vT}")
    a(f"v_and_b32 v15, 7, v{vLANE}")
    a(f"v_lshlrev_b32 v{vAW}, 4, v15")
    a(f"v_mul_u32_u24 v{vA}, 1280, v14")
    a(f"v_add_u32 v{vA}, v{vA}, v{vAW}")
    if X("touch"):
        a("s_load_dwordx2 s[46:47], s[0:1], 72")
        a(f"s_mov_b32 s{sT1}, {YP_OFF}")
        a(f"v_mov_b32 v140, 0")
        a(f"buffer_load_dword v141, v140, s[{SRD_WS}:{SRD_WS+3}], s{sT1} offen")
        a("s_waitcnt lgkmcnt(0)")
        a("global_load_dword v142, v140, s[46:47] offset:192")
    a(f"s_mov_b32 s{sT1}, {8 * 1280}")
    for g in range(2):
        for i in range(10):
            a(f"buffer_load_dwordx4 {vr(vX[g] + 4 * i, 4)}, v{vA}, s[{SRD_X}:{SRD_X+3}], {0 if g == 0 else f's{sT1}'} offen offset:{i * 128}")
        if g == 0:
            for i in range(10):
                a(f"buffer_load_dwordx4 {vr(vWr + 4 * i, 4)}, v{vAW}, s[{SRD_R}:{SRD_R+3}], 0 offen offset:{i * 128}")
    for r in s1 + s2 + s3 + (sw,):
        a(f"v_mov_b32 v{r}, 0")
    a(f"v_mov_b32 v139, 0x3f803f80")
    ST(a, "setup")
    for g in range(2):
        a(f"s_waitcnt vmcnt({10 if g == 0 else 0})")
        if g == 0:
            ST(a, "B0")
        for r in range(40):
            a(f"v_dot2c_f32_bf16 v{s1[g]}, v{vX[g] + r}, v139")
            a(f"v_dot2c_f32_bf16 v{s2[g]}, v{vX[g] + r}, v{vX[g] + r}")
            a(f"v_dot2c_f32_bf16 v{s3[g]}, v{vX[g] + r}, v{vWr + r}")
            if g == 0:
                a(f"v_dot2c_f32_bf16 v{sw}, v{vWr + r}, v139")
    ST(a, "loopend")
    a("s_nop 3")
    for ctrl in ("quad_perm:[1,0,3,2]", "quad_perm:[2,3,0,1]", "row_half_mirror"):
        for r in s1 + s2 + s3 + (sw,):
            a(f"v_add_f32_dpp v{vT+2}, v{r}, v{r} {ctrl} row_mask:0xf bank_mask:0xf")
            a("s_nop 0")
            a(f"v_mov_b32 v{r}, v{vT+2}")
        a("s_nop 1")
    a(f"v_cmp_eq_u32 vcc, 1, v15")
    a(f"v_add_u32 v{vT}, 8, v14")
    a("s_nop 0")
    for pair in (s1, s2, s3):
        a(f"v_cndmask_b32 v{pair[0]}, v{pair[0]}, v{pair[1]}, vcc")
    a(f"v_cndmask_b32 v{vT}, v14, v{vT}, vcc")
    a(f"v_mov_b32 v{vT+1}, v15")
    s1, s2, s3 = s1[0], s2[0], s3[0]
    a(f"v_mul_f32 v{s1}, {hex(f2u(1.0 / D))}, v{s1}")
    a(f"v_mul_f32 v{s2}, {hex(f2u(1.0 / D))}, v{s2}")
    a(f"v_fma_f32 v{s2}, -v{s1}, v{s1}, v{s2}")
    a(f"v_max_f32 v{s2}, 0, v{s2}")
    a(f"v_add_f32 v{s2}, {hex(f2u(1e-5))}, v{s2}")
    a(f"v_rsq_f32 v{s2}, v{s2}")
    a(f"v_fma_f32 v{s3}, -v{s1}, v{sw}, v{s3}")
    a(f"v_mul_f32 v{s3}, v{s3}, v{s2}")
    ws = f"s[{SRD_WS}:{SRD_WS+3}]"
    a(f"v_ashrrev_i32 v{vT+2}, 31, v{s3}")
    a(f"v_or_b32 v{vT+2}, 0x80000000, v{vT+2}")
    a(f"v_xor_b32 v{vT+2}, v{vT+2}, v{s3}")
    a(f"v_and_b32 v{vT+2}, 0xfffff800, v{vT+2}")
    a(f"v_or_b32 v{vT+2}, v{vT+2}, v{vT}")
    a(f"v_mov_b32 v14, v{s1}")
    a(f"v_mov_b32 v15, v{s2}")
    a(f"v_lshlrev_b32 v{vA}, 3, v{vT}")
    a(f"v_lshlrev_b32 v{vAW}, 2, v{vT}")
    a(f"v_and_b32 v{vT+3}, 127, v{vT}")
    a(f"v_lshlrev_b32 v{vT+3}, 2, v{vT+3}")
    a(f"v_add_u32 v{vT+3}, {L_KEYS}, v{vT+3}")
    a(f"v_cmp_gt_u32 vcc, 2, v{vT+1}")
    a(f"s_mov_b32 s{sT0}, {ST_OFF}")
    a(f"s_mov_b32 s{sT1}, {R_OFF}")
    a("s_and_saveexec_b64 s[44:45], vcc")
    a(f"buffer_store_dwordx2 v[14:15], v{vA}, {ws}, s{sT0} offen{'' if LOCAL_STATS else ' sc1'}")
    a(f"buffer_store_dword v{s3}, v{vAW}, {ws}, s{sT1} offen")
    a(f"ds_write_b32 v{vT+3}, v{vT+2}")
    if LOCAL_STATS:
        a("s_waitcnt lgkmcnt(0)")
    else:
        a("s_load_dwordx2 s[46:47], s[0:1], 72")
        a("s_waitcnt vmcnt(0) lgkmcnt(0)")
    a("s_mov_b64 exec, s[44:45]")
    a("s_barrier")
    a(f"s_cmp_lg_u32 s{sW}, 0")
    a("s_cbranch_scc1 L_k1_repack")
    if not LOCAL_STATS:
        a(f"s_lshl_b32 s{sT0}, s{sMT}, 2")
        a(f"v_mov_b32 v16, s{sT0}")
        a("v_mov_b32 v17, 1")
        a("s_mov_b64 exec, 1")
        a("global_store_dword v16, v17, s[46:47] sc1")
        a("s_mov_b64 exec, -1")
    ST(a, "e_lds")
    hi, lo, oh, ol, adr = 16, 17, 18, 19, 20
    a(f"v_lshlrev_b32 v{adr}, 2, v{vLANE}")
    a(f"ds_read_b32 v{oh}, v{adr} offset:{L_KEYS}")
    a(f"ds_read_b32 v{ol}, v{adr} offset:{L_KEYS + 256}")
    a("s_waitcnt lgkmcnt(0)")
    a(f"v_max_u32 v{hi}, v{oh}, v{ol}")
    a(f"v_min_u32 v{lo}, v{oh}, v{ol}")
    for x in (1, 2, 4, 8, 16, 32):
        a(f"v_xor_b32 v{adr}, {x}, v{vLANE}")
        a(f"v_lshlrev_b32 v{adr}, 2, v{adr}")
        a(f"ds_bpermute_b32 v{oh}, v{adr}, v{hi}")
        a(f"ds_bpermute_b32 v{ol}, v{adr}, v{lo}")
        a("s_waitcnt lgkmcnt(0)")
        a(f"v_max_u32 v{lo}, v{lo}, v{ol}")
        a(f"v_min_u32 v{ol}, v{hi}, v{oh}")
        a(f"v_max_u32 v{hi}, v{hi}, v{oh}")
        a(f"v_max_u32 v{lo}, v{lo}, v{ol}")
    a(f"v_mov_b32 v{oh}, v{hi}")
    a(f"v_mov_b32 v{ol}, v{lo}")
    a(f"s_lshl_b32 s{sT0}, s{sMT}, 3")
    a(f"s_add_u32 s{sT0}, s{sT0}, {CAND_OFF}")
    a(f"v_mov_b32 v{adr}, 0")
    a(f"v_cmp_eq_u32 vcc, 0, v{vLANE}")
    a("s_nop 1")
    a("s_and_saveexec_b64 s[44:45], vcc")
    a(f"buffer_store_dwordx2 v[{oh}:{ol}], v{adr}, {ws}, s{sT0} offen")
    a("s_mov_b64 exec, -1")
    a(f"s_cmp_lg_u32 s{sMT}, 0")
    a("s_cbranch_scc1 L_k1_repack")
    a(f"v_lshlrev_b32 v{adr}, 8, v{vLANE}")
    a(f"v_mov_b32 v{oh}, 0")
    a(f"s_mov_b32 s{sT0}, {CNT_OFF}")
    a(f"v_cmp_gt_u32 vcc, {NCNT}, v{vLANE}")
    a("s_nop 1")
    a("s_mov_b64 exec, vcc")
    a(f"buffer_store_dword v{oh}, v{adr}, {ws}, s{sT0} offen")
    a("s_mov_b64 exec, -1")
    ST(a, "stores")
    ST.store(a)
    a.label("L_k1_repack")
    repack_setup(a, sMT)
    repack_request(a, sW, 0)
    a(f"s_cmp_ge_u32 s{sW}, 2")
    a("s_cbranch_scc1 L_rep_loaded")
    repack_request(a, sW, 1)
    a.label("L_rep_loaded")
    repack_finish(a, sW, "L_k1_exit")

def emit(a):
    entry(a)
    consumer_setup(a)
    a(f"s_cmp_ge_u32 s{sNT}, 10")
    a("s_cbranch_scc1 L_k1_v")
    qk_path(a)
    v_path(a)
    loader(a)
    stat_waves(a)
    aux(a)
    a.label("L_k1_exit")
    a("s_endpgm")
    a.label("L_k1_end")
```

```python
from common import *
from k2moe import top2_scalar
import os

NAME = "attn_proj_kernel"
LDS = 163840
VGPRS = 168
BLOCK = 768
GRID = 256
NMOE = 96

def X(flag):
    return flag in os.environ.get("K2_EXP", "").split(",")

ST = StampsLane("k2", 20, 8, 164)

L_RING = 0
L_R = 61440
L_WG, L_WU, L_WD = L_R, L_R + 20480, L_R + 40960
L_XG, L_XU = L_R + 61440, L_R + 61440 + 3840
L_U, L_H = L_R + 69120, L_R + 69120 + 1024
L_MISC = 143360
F_LAND, F_FREE, F_U, F_H, F_MOE, F_ALL = L_MISC, L_MISC + 4, L_MISC + 8, L_MISC + 12, L_MISC + 16, L_MISC + 20
F_RT = L_MISC + 24
F_FREEC = L_MISC + 64
L_RED, L_Y = L_MISC + 1024, L_MISC + 1024 + 3840
SPIN_MAX = 1 << 20
SPACE = int(os.environ.get("K2_SPACE", "0"))
HPRIO = int(os.environ.get("K2_HPRIO", "3"))
LOWM = int(os.environ.get("K2_LOWM", "0"))

vLANE16, vT0, vT1 = 1, 2, 3
vKA, vKB, vV, vFL = 4, 5, 6, 7
vQ1, vQ2 = 10, 20
vFLAG, vONE = 16, 17
vS = (32, 48)
vO = 64
vP = 80
vKAf = (88, 92)
vKBf = (24, 28)
vVf = ((100, 104), (108, 112))
vTMP = 116

sW, sHEAD, sKV, sQ, sOB, sOM = 20, 21, 22, 23, 24, 25
sVMASK = 26
sLO = 28
sT, sT2, sQB = 30, 31, 32
SRD_WS = 8
WS = f"s[{SRD_WS}:{SRD_WS+3}]"

def lds_tile(t):
    return ((t >> 3) % 3) * 20480 + (t & 7) * 2560

def spin(a, name, vaddr, vtmp, stmp, target, cnt, sleep=1):
    a(f"s_mov_b32 s{cnt}, {SPIN_MAX}")
    a.label(f"{name}_loop")
    a(f"ds_read_b32 v{vtmp}, v{vaddr}")
    a("s_waitcnt lgkmcnt(0)")
    a(f"v_readfirstlane_b32 s{stmp}, v{vtmp}")
    a(f"s_sub_u32 s{cnt}, s{cnt}, 1")
    a(f"s_cbranch_scc1 {name}_done")
    a(f"s_cmp_ge_u32 s{stmp}, {target}")
    a(f"s_cbranch_scc1 {name}_done")
    a(f"s_sleep {sleep}")
    a(f"s_branch {name}_loop")
    a.label(f"{name}_done")

def mfma_s1(a, dst, buf):
    a(f"v_mfma_f32_32x32x16_bf16 {vr(dst, 16)}, {vr(vKAf[buf], 4)}, {vr(vQ1, 4)}, 0")
def mfma_s2(a, dst, buf):
    if X("nos2"): return
    if not X("s2x16"):
        a(f"v_mfma_f32_32x32x8bf16_1k {vr(dst, 16)}, {vr(vKBf[buf], 2)}, {vr(vQ2, 2)}, {vr(dst, 16)}")
    else:
        a(f"v_mfma_f32_32x32x16_bf16 {vr(dst, 16)}, {vr(vKBf[buf], 4)}, {vr(vQ2, 4)}, {vr(dst, 16)}")
def mfma_pv(a, buf, t):
    a(f"v_mfma_f32_32x32x16_bf16 {vr(vO, 16)}, {vr(vVf[buf][t], 4)}, {vr(vP + 4 * t, 4)}, {vr(vO, 16)}")

def read_ka(a, t, buf):
    a(f"ds_read_b128 {vr(vKAf[buf], 4)}, v{vKA} offset:{lds_tile(t)}")
def read_kb(a, t, buf):
    a(f"ds_read_b64 {vr(vKBf[buf], 2)}, v{vKB} offset:{lds_tile(t)}")
def read_v(a, t, part):
    a(f"ds_read_b128 {vr(vVf[t & 1][part], 4)}, v{vV} offset:{lds_tile(t) + 640 * part}")

def tile_body(a, t):
    sc, sn = vS[t & 1], vS[(t + 1) & 1]
    last = t == 63
    ex = lambda r: a(f"v_exp_f32 v{sc + r}, v{sc + r}")
    cv = lambda i: a(f"v_cvt_pk_bf16_f32 v{vP + i}, v{sc + 2 * i}, v{sc + 2 * i + 1}")
    ex(0)
    a("s_setprio 1")
    ex(1)
    if t > 0:
        mfma_pv(a, (t - 1) & 1, 1)
    for r in range(2, 6):
        ex(r)
    if not last:
        mfma_s1(a, sn, (t + 1) & 1)
    ex(6); ex(7)
    for i in range(4):
        cv(i)
    if not X("neworder"):
        if not last:
            mfma_s2(a, sn, (t + 1) & 1)
        for r in range(8, 12):
            ex(r)
        mfma_pv(a, t & 1, 0)
        for r in range(12, 16):
            ex(r)
    else:
        ex(8); ex(9)
        mfma_pv(a, t & 1, 0)
        for r in range(10, 14):
            ex(r)
        if not last:
            mfma_s2(a, sn, (t + 1) & 1)
        ex(14); ex(15)
    for i in range(4, 8):
        cv(i)
    a("s_setprio 0")
    a("s_waitcnt lgkmcnt(0)")
    if t % 8 == 5 and t < 56:
        c = t // 8 + 1
        a(f"v_readfirstlane_b32 s{sT}, v{vFLAG}")
        a(f"s_cmp_ge_u32 s{sT}, {c}")
        a(f"s_cbranch_scc1 L_land_{c}_skip")
        if ST.on:
            a("s_memtime s[90:91]")
            a("s_waitcnt lgkmcnt(0)")
        spin(a, f"L_land_{c}", vFL, vFLAG, sT, c, sT2)
        if ST.on:
            a("s_memtime s[88:89]")
            a("s_waitcnt lgkmcnt(0)")
            a("s_sub_u32 s88, s88, s90")
            a("s_add_u32 s87, s87, s88")
        a.label(f"L_land_{c}_skip")
    if t % 8 == 7 and t < 40:
        a("s_mov_b64 exec, 1")
        a(f"ds_add_u32 v{vFL}, v{vONE} offset:{F_FREEC - F_LAND + 4 * (t // 8)}")
        a("s_mov_b64 exec, -1")
    if t + 3 <= 63:
        if not X("noka"): read_ka(a, t + 3, (t + 1) & 1)
        a(f"s_mov_b64 exec, s[{sLO}:{sLO+1}]")
        if not X("nokb"): read_kb(a, t + 3, (t + 1) & 1)
    if t + 1 <= 63:
        a(f"s_mov_b64 exec, s[{sVMASK}:{sVMASK+1}]")
        if t + 2 <= 63 and not X("nov0"):
            read_v(a, t + 2, 0)
        if not X("nov1"): read_v(a, t + 1, 1)
        a("s_mov_b64 exec, -1")
    if t % 8 == 4 and t < 56:
        a(f"ds_read_b32 v{vFLAG}, v{vFL}")
    if t == 62:
        a("s_nop 1")
    if last:
        a("s_nop 1")
        mfma_pv(a, t & 1, 1)

def row_max(a, s, dst, tmp):
    a(f"v_max3_f32 v{dst}, v{s}, v{s+1}, v{s+2}")
    for r in range(3, 15, 2):
        a(f"v_max3_f32 v{dst}, v{dst}, v{s+r}, v{s+r+1}")
    a(f"v_max_f32 v{dst}, v{dst}, v{s+15}")
    a(f"v_mov_b32 v{tmp}, v{dst}")
    a("s_nop 1")
    a(f"v_permlane32_swap_b32 v{dst}, v{tmp}")
    a("s_nop 1")
    a(f"v_max_f32 v{dst}, v{dst}, v{tmp}")

def entry(a):
    kernel_header(a, NAME)
    ST(a, "entry")
    a(f"s_cmp_ge_u32 s2, {GRID}")
    a("s_cbranch_scc1 L_k2_exit")
    a("s_load_dwordx2 s[4:5], s[0:1], 80")
    a(f"v_lshrrev_b32 v{vT0}, 6, v0")
    a(f"v_and_b32 v{vT1}, 63, v0")
    a(f"v_readfirstlane_b32 s{sW}, v{vT0}")
    a("s_and_b32 s12, s2, 7")
    a("s_lshl_b32 s12, s12, 2")
    a("s_bfe_u32 s13, s2, 0x20003")
    a(f"s_or_b32 s{sHEAD}, s12, s13")
    a(f"s_lshr_b32 s{sQB}, s2, 5")
    a(f"s_mul_i32 s{sKV}, s{sHEAD}, {64 * 2560}")
    a(f"s_add_u32 s{sKV}, s{sKV}, {KV_OFF}")
    a(f"v_lshlrev_b32 v{vLANE16}, 4, v{vT1}")
    a(f"s_cmp_ge_u32 s{sW}, 8")
    a("s_cbranch_scc1 L_k2_helper")

def attention(a):
    a(f"s_lshl_b32 s14, s{sQB}, 3")
    a(f"s_add_u32 s14, s14, s{sW}")
    a(f"s_lshl_b32 s15, s{sHEAD}, 6")
    a("s_add_u32 s15, s15, s14")
    a(f"s_mul_i32 s{sQ}, s15, 1280")
    if QB_OFF:
        a(f"s_add_u32 s{sQ}, s{sQ}, {QB_OFF}")
    a(f"s_mul_i32 s16, s{sW}, 2560")
    a(f"s_add_u32 s17, s{sKV}, s16")
    a(f"s_mov_b32 s{sLO}, -1")
    a(f"s_mov_b32 s{sLO+1}, 0")
    a(f"v_and_b32 v{vT0}, 31, v{vT1}")
    a(f"v_lshlrev_b32 v{vTMP}, 3, v{vT0}")
    for r in range(4):
        a(f"v_mov_b32 v{vQ2 + r}, 0")
    a("s_waitcnt lgkmcnt(0)")
    srd(a, SRD_WS, 4, WS_SRD)
    a("s_mov_b32 m0, s16")
    a("s_nop 0")
    a(f"buffer_load_dwordx4 v{vLANE16}, {WS}, s17 offen lds")
    a(f"buffer_load_dwordx4 v{vLANE16}, {WS}, s17 offen offset:1024 lds")
    a(f"s_mov_b64 exec, s[{sLO}:{sLO+1}]")
    a(f"buffer_load_dwordx4 v{vLANE16}, {WS}, s17 offen offset:2048 lds")
    a(f"buffer_load_dwordx2 {vr(vQ2, 2)}, v{vTMP}, {WS}, s{sQ} offen offset:1024")
    a("s_mov_b64 exec, -1")
    a(f"buffer_load_dwordx4 {vr(vQ1, 4)}, v{vLANE16}, {WS}, s{sQ} offen")
    a(f"s_mul_i32 s{sOB}, s14, 40960")
    a(f"s_add_u32 s{sOB}, s{sOB}, {OB_OFF}")
    a(f"s_lshr_b32 s15, s{sHEAD}, 3")
    a("s_mul_i32 s15, s15, 5120")
    a(f"s_add_u32 s{sOB}, s{sOB}, s15")
    a(f"s_bfe_u32 s15, s{sHEAD}, 0x20001")
    a("s_lshl_b32 s15, s15, 10")
    a(f"s_and_b32 s16, s{sHEAD}, 1")
    a("s_lshl_b32 s16, s16, 9")
    a("s_add_u32 s15, s15, s16")
    a(f"s_add_u32 s{sOM}, s{sOB}, s15")
    a(f"s_and_b32 s15, s{sHEAD}, 3")
    a("s_lshl_b32 s15, s15, 8")
    a(f"s_bfe_u32 s16, s{sHEAD}, 0x10002")
    a("s_lshl_b32 s16, s16, 3")
    a("s_add_u32 s15, s15, s16")
    a(f"s_add_u32 s{sOB}, s{sOB}, s15")
    a(f"s_add_u32 s{sOB}, s{sOB}, 4096")
    a(f"s_mov_b32 s{sVMASK}, 0x000fffff")
    a(f"s_mov_b32 s{sVMASK+1}, 0x000fffff")
    a(f"v_mov_b32 v{vKA}, v{vLANE16}")
    a(f"v_add_u32 v{vKB}, 1024, v{vTMP}")
    a(f"v_lshrrev_b32 v{vTMP+1}, 5, v{vT1}")
    a(f"v_mul_u32_u24 v{vTMP+1}, 320, v{vTMP+1}")
    a(f"v_lshl_add_u32 v{vTMP+1}, v{vT0}, 4, v{vTMP+1}")
    a(f"v_add_u32 v{vV}, 1280, v{vTMP+1}")
    a(f"v_mov_b32 v{vFL}, {F_LAND}")
    a(f"v_mov_b32 v{vONE}, 1")
    a(f"v_and_b32 v{vTMP+1}, 27, v{vT0}")
    a(f"v_cmp_eq_u32 vcc, 24, v{vTMP+1}")
    a(f"v_mov_b32 v{vTMP+2}, 0x3f803f80")
    a("s_nop 1")
    a(f"v_cndmask_b32 v{vTMP+1}, 0, v{vTMP+2}, vcc")
    for b in range(2):
        for t in range(2):
            for r in range(4):
                a(f"v_mov_b32 v{vVf[b][t] + r}, v{vTMP+1}")
    for r in range(16):
        a(f"v_mov_b32 v{vO + r}, 0")
    a(f"v_cmp_le_u32 vcc, 32, v{vT1}")
    a(f"v_mov_b32 v{vTMP+2}, 0x3f80")
    a("s_nop 1")
    for b in range(2):
        a(f"v_cndmask_b32 v{vKBf[b]}, 0, v{vTMP+2}, vcc")
        for r in range(1, 4):
            a(f"v_mov_b32 v{vKBf[b] + r}, 0")
    a("s_waitcnt vmcnt(0)")
    a("s_barrier")
    ST(a, "B0")
    read_ka(a, 0, 0)
    read_ka(a, 1, 1)
    a(f"s_mov_b64 exec, s[{sLO}:{sLO+1}]")
    read_kb(a, 0, 0)
    read_kb(a, 1, 1)
    a(f"s_mov_b64 exec, s[{sVMASK}:{sVMASK+1}]")
    read_v(a, 0, 0); read_v(a, 0, 1); read_v(a, 1, 0)
    a("s_mov_b64 exec, -1")
    a("s_waitcnt lgkmcnt(3)")
    mfma_s1(a, vS[0], 0)
    a("s_nop 11")
    mfma_s2(a, vS[0], 0)
    a("s_nop 15")
    a("s_nop 3")
    row_max(a, vS[0], vTMP, vTMP + 1)
    a(f"v_sub_f32 v{vTMP}, 0, v{vTMP}")
    a(f"v_cvt_pk_bf16_f32 v{vTMP}, v{vTMP}, 0")
    a(f"v_cmp_le_u32 vcc, 32, v{vT1}")
    a("s_nop 1")
    a(f"v_cndmask_b32 v{vQ2}, v{vQ2}, v{vTMP}, vcc")
    a("s_nop 1")
    mfma_s1(a, vS[0], 0)
    a("s_nop 11")
    mfma_s2(a, vS[0], 0)
    read_ka(a, 2, 0)
    a(f"s_mov_b64 exec, s[{sLO}:{sLO+1}]")
    read_kb(a, 2, 0)
    a("s_mov_b64 exec, -1")
    a("s_waitcnt lgkmcnt(2)")
    a("s_nop 15")
    a("s_nop 3")
    if ST.on:
        a("s_mov_b32 s87, 0")
    for t in range(64):
        if t in (0, 8, 32, 56):
            ST(a, f"t{t}")
        tile_body(a, t)
    ST(a, "loopend")
    if ST.on:
        a(f"v_writelane_b32 v{ST.vt}, s87, 15")
    a("s_nop 15")
    a("s_nop 3")
    a(f"v_mov_b32 v{vTMP}, v{vO + 12}")
    for r in range(12):
        a(f"v_fma_f32 v{vTMP}, v{vO + r}, 0, v{vTMP}")
    a(f"v_mov_b32 v{vTMP+1}, {hex(f2u(2.0 ** 100))}")
    a(f"v_cmp_nlt_f32 vcc, v{vTMP}, v{vTMP+1}")
    a("s_nop 4")
    a("s_cbranch_vccz L_attn_store")
    safe_path(a)
    a.label("L_attn_store")
    a(f"v_rcp_f32 v{vTMP}, v{vO + 12}")
    a("s_nop 1")
    for r in range(12):
        a(f"v_mul_f32 v{vO + r}, v{vO + r}, v{vTMP}")
    for i in range(6):
        a(f"v_cvt_pk_bf16_f32 v{vP + i}, v{vO + 2 * i}, v{vO + 2 * i + 1}")
    a(f"v_and_b32 v{vTMP+1}, 15, v0")
    a(f"v_lshlrev_b32 v{vTMP+1}, 4, v{vTMP+1}")
    a(f"v_bfe_u32 v{vTMP+2}, v0, 4, 1")
    a(f"v_mul_u32_u24 v{vTMP+2}, 20480, v{vTMP+2}")
    a(f"v_add_u32 v{vTMP+1}, v{vTMP+1}, v{vTMP+2}")
    a(f"v_bfe_u32 v{vTMP+2}, v0, 5, 1")
    a(f"v_lshl_add_u32 v{vTMP+2}, v{vTMP+2}, 8, v{vTMP+1}")
    a(f"buffer_store_dwordx4 {vr(vP, 4)}, v{vTMP+2}, {WS}, s{sOM} offen sc1")
    a(f"s_mov_b64 exec, s[{sLO}:{sLO+1}]")
    a(f"buffer_store_dwordx2 {vr(vP + 4, 2)}, v{vTMP+1}, {WS}, s{sOB} offen sc1")
    a("s_mov_b64 exec, -1")
    a("s_branch L_k2_join")

def safe_path(a):
    vM, vMN, vAL = vTMP, vTMP + 1, vTMP + 2
    vA2, vA3 = vTMP + 5, vTMP + 6
    s = vS[0]
    a(f"v_and_b32 v{vA2}, 31, v0")
    a(f"v_lshlrev_b32 v{vA2}, 3, v{vA2}")
    a(f"v_mov_b32 v{vA3}, v{vV}")
    a(f"v_mov_b32 v{vM}, 0xff7fffff")
    a(f"v_and_b32 v{vAL}, 63, v0")
    a(f"v_cmp_gt_u32 vcc, 32, v{vAL}")
    a("s_nop 1")
    a(f"v_cndmask_b32 v{vQ2}, 0, v{vQ2}, vcc")
    for r in range(16):
        a(f"v_mov_b32 v{vO + r}, 0")
    a(f"s_mov_b32 s{sT}, s{sKV}")
    a("s_mov_b32 s15, 64")
    a.label("L_safe_loop")
    a(f"buffer_load_dwordx4 {vr(vKAf[0], 4)}, v{vLANE16}, {WS}, s{sT} offen")
    a(f"s_mov_b64 exec, s[{sLO}:{sLO+1}]")
    a(f"buffer_load_dwordx2 {vr(vKBf[0], 2)}, v{vA2}, {WS}, s{sT} offen offset:1024")
    a(f"s_mov_b64 exec, s[{sVMASK}:{sVMASK+1}]")
    a(f"buffer_load_dwordx4 {vr(vVf[0][0], 4)}, v{vA3}, {WS}, s{sT} offen")
    a(f"buffer_load_dwordx4 {vr(vVf[0][1], 4)}, v{vA3}, {WS}, s{sT} offen offset:640")
    a("s_mov_b64 exec, -1")
    a("s_waitcnt vmcnt(0)")
    mfma_s1(a, s, 0)
    a("s_nop 11")
    mfma_s2(a, s, 0)
    a("s_nop 15")
    a("s_nop 3")
    row_max(a, s, vMN, vAL)
    a(f"v_max_f32 v{vMN}, v{vMN}, v{vM}")
    a(f"v_sub_f32 v{vAL}, v{vM}, v{vMN}")
    a(f"v_exp_f32 v{vAL}, v{vAL}")
    a(f"v_mov_b32 v{vM}, v{vMN}")
    for r in range(16):
        a(f"v_sub_f32 v{s + r}, v{s + r}, v{vMN}")
    for r in range(16):
        a(f"v_exp_f32 v{s + r}, v{s + r}")
    for r in range(16):
        a(f"v_mul_f32 v{vO + r}, v{vO + r}, v{vAL}")
    for i in range(8):
        a(f"v_cvt_pk_bf16_f32 v{vP + i}, v{s + 2 * i}, v{s + 2 * i + 1}")
    a("s_nop 1")
    mfma_pv(a, 0, 0)
    mfma_pv(a, 0, 1)
    a(f"s_add_u32 s{sT}, s{sT}, 2560")
    a("s_sub_u32 s15, s15, 1")
    a("s_nop 15")
    a("s_nop 3")
    a("s_cmp_lg_u32 s15, 0")
    a("s_cbranch_scc1 L_safe_loop")

def helpers(a):
    a.label("L_k2_helper")
    a(f"s_setprio {HPRIO}")
    a("s_load_dwordx2 s[6:7], s[0:1], 0")
    a("s_load_dwordx4 s[36:39], s[0:1], 40")
    a("s_load_dwordx2 s[40:41], s[0:1], 56")
    a("s_waitcnt lgkmcnt(0)")
    srd(a, SRD_WS, 4, WS_SRD)
    a(f"s_cmp_lg_u32 s{sW}, 8")
    a("s_cbranch_scc1 L_k2_ffn")
    ring_loader(a)
    ffn(a)

def ring_loader(a):
    vF, vX = 4, 5
    a(f"v_lshlrev_b32 v{vF}, 2, v{vT1}")
    a(f"v_add_u32 v{vF}, {L_MISC}, v{vF}")
    a(f"v_mov_b32 v{vX}, 0")
    a(f"ds_write_b32 v{vF}, v{vX}")
    a(f"v_mov_b32 v{vF}, {F_LAND}")
    a("s_waitcnt lgkmcnt(0)")
    a("s_barrier")
    def chunk(c):
        for i in range(5):
            a(f"s_mov_b32 m0, {(c % 3) * 20480 + i * 4096}")
            a(f"s_add_u32 s{sT}, s{sKV}, {c * 20480 + i * 4096}")
            for j in range(4):
                a(f"buffer_load_dwordx4 v{vLANE16}, {WS}, s{sT} offen offset:{1024 * j} lds")
    def landed(c):
        a(f"v_mov_b32 v{vX}, {c}")
        a(f"ds_write_b32 v{vF}, v{vX}")
    chunk(1); chunk(2)
    a("s_waitcnt vmcnt(20)")
    landed(1)
    a("s_waitcnt vmcnt(0)")
    landed(2)
    for c in range(3, 8):
        a(f"v_mov_b32 v6, {F_FREEC + 4 * (c - 3)}")
        spin(a, f"L_free_{c}", 6, 7, sT, 8, sT2, sleep=6)
        chunk(c)
        a("s_waitcnt vmcnt(0)")
        landed(c)
    a(f"s_add_u32 s38, s4, {CAND_OFF}")
    a("s_addc_u32 s39, s5, 0")
    a("s_load_dwordx16 s[64:79], s[38:39], 0")
    a("s_load_dwordx16 s[80:95], s[38:39], 64")
    out_tile_ids(a)
    a("s_waitcnt lgkmcnt(0)")
    top2_scalar(a, 64, 42, 43, 12)
    a("s_bfe_u32 s12, s42, 0x50006")
    a("s_bfe_u32 s13, s43, 0x50006")
    a(f"s_cmp_eq_u32 s12, s{sMT}")
    a("s_cbranch_scc1 L_k2_watch")
    a(f"s_cmp_eq_u32 s13, s{sMT}")
    a("s_cbranch_scc0 L_k2_join")
    a.label("L_k2_watch")
    a(f"v_mov_b32 v7, {CNT_OFF + 8 * 256}")
    a(f"s_mov_b32 s13, {SPIN_MAX}")
    a.label("L_k2_poll_moe")
    a("global_load_dword v6, v7, s[4:5] sc1")
    a("s_waitcnt vmcnt(0)")
    a("v_readfirstlane_b32 s14, v6")
    a("s_sub_u32 s13, s13, 1")
    a("s_cbranch_scc1 L_k2_poll_moe_done")
    a(f"s_cmp_ge_u32 s14, {NMOE}")
    a("s_cbranch_scc1 L_k2_poll_moe_done")
    a("s_sleep 8")
    a("s_branch L_k2_poll_moe")
    a.label("L_k2_poll_moe_done")
    a(f"v_mov_b32 v6, {F_ALL}")
    a("v_mov_b32 v7, 1")
    a("ds_write_b32 v6, v7")
    a("s_waitcnt lgkmcnt(0)")
    a("s_branch L_k2_join")

def slice_index(a):
    a("s_and_b32 s33, s2, 7")
    a("s_mul_i32 s33, s33, 12")
    a("s_lshr_b32 s12, s2, 3")
    a("s_add_u32 s33, s33, s12")

def ffn(a):
    SRD_X, SRD_W = 56, 60
    sM, sB1, sB2, sU = 33, 42, 43, 44
    sCAND = 64
    vT, vA, vB = 4, 5, 6
    a.label("L_k2_ffn")
    if os.environ.get("K2_CPF", "1") == "1":
        a(f"s_cmp_lg_u32 s{sW}, 11")
        a("s_cbranch_scc1 L_k2_cpf")
        code_prefetch(a, "k2own", NAME, "L_k2_end", 40960, 46, vT1, 44, True)
        a.label("L_k2_cpf")
    a("s_barrier")
    a(f"s_cmp_ge_u32 s2, {NMOE if not X('nomoe') else 0}")
    a("s_cbranch_scc1 L_k2_wo_prefetch")
    slice_index(a)
    a(f"s_cmp_eq_u32 s{sW}, 11")
    a("s_cbranch_scc1 L_k2_down")
    a(f"s_sub_u32 s{sU}, s{sW}, 9")
    srd(a, SRD_X, 6, X_BYTES)
    a(f"s_add_u32 s46, s4, {CAND_OFF}")
    a("s_addc_u32 s47, s5, 0")
    a(f"s_load_dwordx16 s[{sCAND}:{sCAND+15}], s[46:47], 0")
    a(f"s_load_dwordx16 s[{sCAND+16}:{sCAND+31}], s[46:47], 64")
    a(f"s_cmp_eq_u32 s{sU}, 0")
    a("s_cbranch_scc0 L_k2_up_srd")
    srd(a, SRD_W, 36, WG_BYTES)
    a("s_branch L_k2_srd_done")
    a.label("L_k2_up_srd")
    srd(a, SRD_W, 38, WG_BYTES)
    a.label("L_k2_srd_done")
    a(f"v_lshrrev_b32 v{vT}, 3, v{vT1}")
    a(f"v_mul_u32_u24 v{vA}, 3072, v{vT}")
    a(f"v_and_b32 v7, 7, v{vT1}")
    a(f"v_xor_b32 v7, v7, v{vT}")
    a(f"v_lshl_add_u32 v{vA}, v7, 4, v{vA}")
    a(f"s_and_b32 s17, s{sM}, 3")
    a(f"s_mul_i32 s15, s17, {160 * 3072}")
    a(f"s_lshr_b32 s16, s{sM}, 2")
    a("s_lshl_b32 s16, s16, 7")
    a("s_add_u32 s15, s15, s16")
    a(f"s_mul_i32 s14, s{sU}, 20480")
    a(f"s_add_u32 s14, s14, {L_WG}")
    for q in range(20 if not X("moe_nodma") else 0):
        a(f"s_add_u32 m0, s14, {q * 1024}")
        a(f"s_add_u32 s16, s15, {q * 8 * 3072}")
        a(f"buffer_load_dwordx4 v{vA}, s[{SRD_W}:{SRD_W+3}], s16 offen lds")
    a("s_waitcnt lgkmcnt(0)")
    top2_scalar(a, sCAND, sB1, sB2, 12)
    a(f"s_and_b32 s{sB1}, s{sB1}, 0x7ff")
    a(f"s_and_b32 s{sB2}, s{sB2}, 0x7ff")
    for k, sB in ((0, sB1), (1, sB2)):
        a(f"s_lshl_b32 s12, s{sB}, 3")
        a("s_add_u32 s46, s4, s12")
        a("s_addc_u32 s47, s5, 0")
        a(f"s_add_u32 s46, s46, {ST_OFF}")
        a("s_addc_u32 s47, s47, 0")
        a(f"s_load_dwordx2 s[{48 + 2 * k}:{49 + 2 * k}], s[46:47], 0")
    a(f"s_mul_i32 s14, s{sU}, 1024")
    a(f"s_add_u32 s14, s14, {L_XG}")
    a("s_mul_i32 s16, s17, 320")
    a("s_mov_b64 exec, 0xfffff")
    for k, sB in ((0, sB1), (1, sB2)):
        a(f"s_mul_i32 s12, s{sB}, 1280")
        a("s_add_u32 s12, s12, s16")
        a(f"s_add_u32 m0, s14, {320 * k}")
        a("s_nop 0")
        a(f"buffer_load_dwordx4 v{vLANE16}, s[{SRD_X}:{SRD_X+3}], s12 offen lds")
    for r in range(4):
        a(f"v_mov_b32 v{8 + r}, 0x3f803f80")
    a(f"v_add_u32 v{vT}, s14, v{vLANE16}")
    a(f"ds_write_b128 v{vT}, v[8:11] offset:640")
    a("s_mov_b64 exec, -1")
    vWA, vXA, vF, vACC = 56, 6, 12, 40
    a(f"v_lshrrev_b32 v{vT}, 4, v{vT1}")
    a(f"v_bfe_u32 v7, v{vT1}, 2, 2")
    a(f"v_lshl_add_u32 v8, v{vT}, 3, v7")
    a(f"v_and_b32 v9, 3, v{vT1}")
    a(f"s_mul_i32 s12, s{sU}, 20480")
    a(f"s_add_u32 s12, s12, {L_WG}")
    for ct in range(4):
        for rd_ in range(2):
            a(f"v_add_u32 v10, {4 * rd_}, v8")
            a(f"v_lshrrev_b32 v11, 1, v9")
            a(f"v_add_u32 v11, {2 * ct}, v11")
            a(f"v_and_b32 v60, 7, v10") if False else None
            a(f"v_and_b32 v{vT}, 7, v10")
            a(f"v_xor_b32 v11, v11, v{vT}")
            a(f"v_lshlrev_b32 v11, 4, v11")
            a(f"v_lshl_add_u32 v11, v10, 7, v11")
            a(f"v_and_b32 v{vT}, 1, v9")
            a(f"v_lshl_add_u32 v11, v{vT}, 3, v11")
            a(f"v_add_u32 v{vWA + 2 * ct + rd_}, s12, v11")
    a(f"v_lshrrev_b32 v{vT}, 4, v{vT1}")
    a(f"v_min_u32 v{vXA}, 2, v9")
    a(f"v_mul_u32_u24 v{vXA}, 320, v{vXA}")
    a(f"v_lshl_add_u32 v{vXA}, v{vT}, 4, v{vXA}")
    a(f"v_add_u32 v{vXA}, s14, v{vXA}")
    a("s_waitcnt vmcnt(0) lgkmcnt(0)")
    vACC = 64
    for s_ in range(5 if not X("moe_nocomp") else 0):
        a(f"ds_read_b128 v[12:15], v{vXA} offset:{s_ * 64}")
        for ct in range(4):
            for rd_ in range(2):
                a(f"ds_read_b64_tr_b16 {vr(16 + 4 * ct + 2 * rd_, 2)}, v{vWA + 2 * ct + rd_} offset:{s_ * 4096}")
        if LOWM: a("s_setprio 0")
        for ct in range(4):
            a(f"s_waitcnt lgkmcnt({6 - 2 * ct})")
            c = "0" if s_ == 0 else vr(vACC + 4 * ct, 4)
            a(f"v_mfma_f32_16x16x32_bf16 {vr(vACC + 4 * ct, 4)}, {vr(16 + 4 * ct, 4)}, v[12:15], {c}")
            if SPACE: a(f"s_nop {SPACE - 1}")
    if LOWM:
        a("s_nop 7")
        a(f"s_setprio {HPRIO}")
    a(f"v_and_b32 v7, 15, v{vT1}")
    a(f"v_lshlrev_b32 v8, 8, v7")
    a(f"v_lshl_add_u32 v8, v{vT}, 4, v8")
    a("v_cmp_gt_u32 vcc, 3, v7")
    a(f"s_lshl_b32 s12, s{sM}, 1")
    a(f"s_add_u32 s12, s12, s{sU}")
    a("s_mul_i32 s12, s12, 768")
    a(f"s_add_u32 s12, s12, {GP_OFF}")
    a("s_mov_b64 s[52:53], vcc")
    a("s_nop 3")
    a("s_mov_b64 exec, s[52:53]")
    for ct in range(4):
        a(f"buffer_store_dwordx4 {vr(vACC + 4 * ct, 4)}, v8, {WS}, s12 offen offset:{64 * ct} sc1")
    a("s_mov_b64 exec, -1")
    a("s_waitcnt vmcnt(0)")
    a(f"v_mov_b32 v52, 1")
    a(f"v_mov_b32 v53, {F_U}")
    a(f"s_cmp_eq_u32 s{sU}, 0")
    a("s_cbranch_scc1 L_k2_gate")
    a("ds_write_b32 v53, v52")
    a("s_branch L_k2_ffn_done")
    a.label("L_k2_gate")
    spin(a, "L_wait_u", 53, 54, 12, 1, 13, sleep=2)
    a(f"s_lshr_b32 s12, s{sM}, 2")
    a("s_add_u32 s12, s12, 9")
    a("s_lshl_b32 s12, s12, 8")
    a(f"s_add_u32 s12, s12, {CNT_OFF}")
    a("v_mov_b32 v9, s12")
    a("s_mov_b64 exec, 1")
    a("global_atomic_add v9, v52, s[4:5]")
    a(f"s_mov_b32 s13, {SPIN_MAX}")
    a.label("L_k2_poll_cb")
    a("global_load_dword v10, v9, s[4:5] sc1")
    a("s_waitcnt vmcnt(0)")
    a("v_readfirstlane_b32 s14, v10")
    a("s_sub_u32 s13, s13, 1")
    a("s_cbranch_scc1 L_k2_poll_cb_done")
    a("s_cmp_ge_u32 s14, 4")
    a("s_cbranch_scc1 L_k2_poll_cb_done")
    a("s_sleep 8")
    a("s_branch L_k2_poll_cb")
    a.label("L_k2_poll_cb_done")
    a("s_mov_b64 exec, -1")
    a(f"s_andn2_b32 s12, s{sM}, 3")
    a("s_mul_i32 s12, s12, 1536")
    a(f"s_add_u32 s12, s12, {GP_OFF}")
    a("s_lshl_b32 s16, s17, 6")
    a("s_add_u32 s12, s12, s16")
    a("s_mov_b64 exec, s[52:53]")
    for kq in range(4):
        for mat in range(2):
            a(f"s_add_u32 s16, s12, {kq * 1536 + mat * 768}")
            a(f"buffer_load_dwordx4 {vr(12 + 16 * mat + 4 * kq, 4)}, v8, {WS}, s16 offen sc1")
    a("s_mov_b64 exec, -1")
    a(f"v_and_b32 v7, 15, v{vT1}")
    a("v_cmp_eq_u32 vcc, 0, v7")
    a("v_mov_b32 v8, s50")
    a("v_mov_b32 v9, s51")
    a("v_mov_b32 v10, s48")
    a("v_mov_b32 v11, s49")
    a("v_cndmask_b32 v8, v8, v10, vcc")
    a("v_cndmask_b32 v9, v9, v11, vcc")
    a("s_waitcnt vmcnt(0)")
    for mat in range(2):
        b0 = 12 + 16 * mat
        for r in range(4):
            a(f"v_add_f32 v{b0 + r}, v{b0 + r}, v{b0 + 4 + r}")
            a(f"v_add_f32 v{b0 + 8 + r}, v{b0 + 8 + r}, v{b0 + 12 + r}")
        for r in range(4):
            a(f"v_add_f32 v{b0 + r}, v{b0 + r}, v{b0 + 8 + r}")
        a("s_nop 1")
        for r in range(4):
            a(f"v_mov_b32_dpp v{b0 + 4 + r}, v{b0 + r} quad_perm:[2,2,2,2] row_mask:0xf bank_mask:0xf")
        for r in range(4):
            a(f"v_fma_f32 v{b0 + r}, -v8, v{b0 + 4 + r}, v{b0 + r}")
        for r in range(4):
            a(f"v_mul_f32 v{b0 + r}, v{b0 + r}, v9")
    vACC = 12
    for r in range(4):
        a(f"v_mul_f32 v{48 + r}, {hex(f2u(-LOG2E))}, v{vACC + r}")
    for r in range(4):
        a(f"v_exp_f32 v{48 + r}, v{48 + r}")
    for r in range(4):
        a(f"v_add_f32 v{48 + r}, 1.0, v{48 + r}")
    for r in range(4):
        a(f"v_rcp_f32 v{48 + r}, v{48 + r}")
    for r in range(4):
        a(f"v_mul_f32 v{vACC + r}, v{vACC + r}, v{28 + r}")
    for r in range(4):
        a(f"v_mul_f32 v{vACC + r}, v{vACC + r}, v{48 + r}")
    a(f"v_cvt_pk_bf16_f32 v44, v{vACC}, v{vACC+1}")
    a(f"v_cvt_pk_bf16_f32 v45, v{vACC+2}, v{vACC+3}")
    a(f"v_lshlrev_b32 v{vT}, 3, v{vT1}")
    a(f"v_add_u32 v{vT}, {L_H}, v{vT}")
    a(f"ds_write_b64 v{vT}, v[44:45]")
    a(f"v_mov_b32 v53, {F_H}")
    a("s_waitcnt lgkmcnt(0)")
    a(f"ds_write_b32 v53, v52")
    a("s_branch L_k2_ffn_done")
    a.label("L_k2_down")
    srd(a, SRD_W, 40, WD_BYTES)
    a(f"s_mul_i32 s15, s{sM}, 20480")
    for i in range(5 if not X("moe_nodma") else 0):
        a(f"s_mov_b32 m0, {L_WD + i * 4096}")
        a(f"s_add_u32 s16, s15, {i * 4096}")
        for j in range(4):
            a(f"buffer_load_dwordx4 v{vLANE16}, s[{SRD_W}:{SRD_W+3}], s16 offen offset:{1024 * j} lds")
    vDA, vYO, vH = 5, 6, 8
    a(f"v_lshrrev_b32 v{vT}, 4, v{vT1}")
    a(f"v_bfe_u32 v7, v{vT1}, 2, 2")
    a(f"v_lshl_add_u32 v{vDA}, v{vT}, 2, v7")
    a(f"v_mul_u32_u24 v{vDA}, 1280, v{vDA}")
    a(f"v_and_b32 v7, 3, v{vT1}")
    a(f"v_lshl_add_u32 v{vDA}, v7, 3, v{vDA}")
    a(f"v_add_u32 v{vDA}, {L_WD}, v{vDA}")
    a(f"v_and_b32 v7, 15, v{vT1}")
    a(f"v_mul_u32_u24 v{vYO}, 2560, v7")
    a(f"v_lshl_add_u32 v{vYO}, v{vT}, 4, v{vYO}")
    a(f"v_add_u32 v{vYO}, {L_XG}, v{vYO}")
    a("v_cmp_gt_u32 vcc, 2, v7")
    a(f"s_mul_i32 s15, s{sM}, 5120")
    a(f"s_add_u32 s15, s15, {YP_OFF}")
    a("s_mov_b64 s[48:49], vcc")
    a(f"v_lshlrev_b32 v{vT}, 3, v{vT1}")
    a(f"v_add_u32 v{vT}, {L_H}, v{vT}")
    a(f"v_mov_b32 v53, {F_H}")
    a("s_waitcnt vmcnt(0)")
    spin(a, "L_wait_h", 53, 54, 12, 1, 13, sleep=8)
    a(f"ds_read_b64 {vr(vH, 2)}, v{vT}")
    for grp in range(4 if not X("moe_nocomp") else 0):
        for k in range(10):
            a(f"ds_read_b64_tr_b16 {vr(12 + 2 * k, 2)}, v{vDA} offset:{32 * (10 * grp + k)}")
        a("s_waitcnt lgkmcnt(0)")
        if LOWM: a("s_setprio 0")
        for k in range(10):
            if X("down32"):
                a(f"v_mfma_f32_16x16x32_bf16 {vr(52 + 4 * k, 4)}, v[12:15], v[16:19], 0")
            elif not X("down_nomfma"):
                a(f"v_mfma_f32_16x16x16bf16_1k {vr(52 + 4 * k, 4)}, {vr(12 + 2 * k, 2)}, {vr(vH, 2)}, 0")
            if SPACE: a(f"s_nop {SPACE - 1}")
        a("s_nop 7")
        a("s_nop 1")
        if LOWM: a(f"s_setprio {HPRIO}")
        a("s_mov_b64 exec, s[48:49]")
        for k in range(10):
            a(f"ds_write_b128 v{vYO}, {vr(52 + 4 * k, 4)} offset:{64 * (10 * grp + k)}")
        a("s_mov_b64 exec, -1")
        a("s_waitcnt lgkmcnt(0)")
    a(f"v_add_u32 v{vT}, {L_XG}, v{vLANE16}")
    for i in range(5):
        a(f"ds_read_b128 {vr(12 + 4 * i, 4)}, v{vT} offset:{1024 * i}")
    a("s_waitcnt lgkmcnt(0)")
    for i in range(5):
        a(f"s_add_u32 s16, s15, {1024 * i}")
        a(f"buffer_store_dwordx4 {vr(12 + 4 * i, 4)}, v{vLANE16}, {WS}, s16 offen sc1")
    a("s_waitcnt vmcnt(0)")
    a(f"v_mov_b32 v7, {CNT_OFF + 8 * 256}")
    a("v_mov_b32 v8, 1")
    a("s_mov_b64 exec, 1")
    a("global_atomic_add v7, v8, s[4:5]")
    a("s_mov_b64 exec, -1")
    a.label("L_k2_ffn_done")
    ST(a, "ffn_done")
    a(f"v_mov_b32 v53, {F_MOE}")
    a(f"v_mov_b32 v52, 1")
    a("s_waitcnt lgkmcnt(0)")
    a("s_mov_b64 exec, 1")
    a("ds_add_u32 v53, v52")
    a("s_mov_b64 exec, -1")
    spin(a, "L_wait_moe", 53, 54, 12, 3, 13, sleep=8)
    a.label("L_k2_wo_prefetch")
    out_tile_ids(a)
    a(f"s_mul_i32 s12, s{sNT}, 102400")
    a(f"s_add_u32 s12, s12, {WO2_OFF}")
    a(f"s_sub_u32 s13, s{sW}, 9")
    for g in range(7):
        if g == 6:
            a("s_cmp_eq_u32 s13, 2")
            a("s_cbranch_scc1 L_k2_join")
        a(f"s_add_u32 s14, s13, {3 * g}")
        a("s_lshl_b32 s14, s14, 12")
        a(f"s_add_u32 m0, s14, {L_R}")
        a("s_add_u32 s14, s14, s12")
        for j in range(4):
            a(f"buffer_load_dwordx4 v{vLANE16}, {WS}, s14 offen offset:{1024 * j} lds")
    a("s_branch L_k2_join")

sMT, sNT = 44, 45
def out_tile_ids(a):
    a(f"s_bfe_u32 s{sMT}, s2, 0x20001")
    a(f"s_lshl_b32 s12, s{sQB}, 2")
    a(f"s_add_u32 s{sMT}, s{sMT}, s12")
    a(f"s_and_b32 s{sNT}, s2, 1")
    a(f"s_lshl_b32 s{sNT}, s{sNT}, 2")
    a("s_bfe_u32 s12, s2, 0x20003")
    a(f"s_add_u32 s{sNT}, s{sNT}, s12")

def projection(a):
    SRD_X, SRD_OUT = 56, 60
    sB1, sB2, sOBT = 42, 43, 46
    sCAND = 64
    vL16, vL16H, vL16H2 = vLANE16, 9, 3
    vTOK, vG, vT = 2, 8, 4
    vXO, vTOKG, vSTAT, vX = 10, 11, 12, 14
    vACC = 24
    vWF = (44, 64)
    vOF = 84
    a.label("L_k2_join")
    ST(a, "join")
    a("s_load_dwordx2 s[6:7], s[0:1], 0")
    a("s_load_dwordx2 s[36:37], s[0:1], 64")
    a(f"s_add_u32 s38, s4, {CAND_OFF}")
    a("s_addc_u32 s39, s5, 0")
    a(f"s_load_dwordx16 s[{sCAND}:{sCAND+15}], s[38:39], 0")
    a(f"s_load_dwordx16 s[{sCAND+16}:{sCAND+31}], s[38:39], 64")
    out_tile_ids(a)
    a("v_and_b32 v3, 63, v0")
    a("s_waitcnt vmcnt(0)")
    a("s_barrier")
    ST(a, "E1")
    a("s_waitcnt lgkmcnt(0)")
    srd(a, SRD_X, 6, X_BYTES)
    srd(a, SRD_OUT, 36, X_BYTES)
    a(f"s_cmp_eq_u32 s{sW}, 8")
    a("s_cbranch_scc1 L_k2_sync")
    a(f"s_cmp_ge_u32 s{sW}, 4")
    a("s_cbranch_scc1 L_k2_side")
    a(f"v_and_b32 v{vTOK}, 15, v3")
    a(f"v_lshrrev_b32 v{vG}, 4, v3")
    a(f"s_lshl_b32 s12, s{sMT}, 6")
    a(f"s_lshl_b32 s13, s{sW}, 4")
    a("s_add_u32 s12, s12, s13")
    a(f"v_add_u32 v{vTOKG}, s12, v{vTOK}")
    a(f"v_mul_u32_u24 v{vXO}, 1280, v{vTOKG}")
    a(f"v_lshl_add_u32 v{vXO}, v{vG}, 3, v{vXO}")
    a(f"s_mul_i32 s13, s{sNT}, 160")
    a(f"v_add_u32 v{vXO}, s13, v{vXO}")
    a(f"v_lshlrev_b32 v{vT+1}, 3, v{vTOKG}")
    a(f"s_mov_b32 s12, {ST_OFF}")
    a(f"buffer_load_dwordx2 {vr(vSTAT, 2)}, v{vT+1}, {WS}, s12 offen")
    for j in range(5):
        a(f"buffer_load_dwordx2 {vr(vX + 2 * j, 2)}, v{vXO}, s[{SRD_X}:{SRD_X+3}], 0 offen offset:{32 * j}")
    a(f"s_lshl_b32 s12, s{sMT}, 2")
    a(f"s_add_u32 s12, s12, s{sW}")
    a(f"s_mul_i32 s{sOBT}, s12, 20480")
    a(f"s_add_u32 s{sOBT}, s{sOBT}, {OB_OFF}")
    a(f"v_add_u32 v{vL16H}, {L_R}, v{vL16}")
    a(f"v_add_u32 v{vL16H2}, {L_R + 40960}, v{vL16}")
    for r in range(20):
        a(f"v_mov_b32 v{vACC + r}, 0")
    a("s_barrier")
    ST(a, "E2")
    for B in range(5):
        a(f"s_add_u32 s12, s{sOBT}, {B * 4096}")
        for k in range(4):
            a(f"buffer_load_dwordx4 {vr(vOF + 16 * B + 4 * k, 4)}, v{vL16}, {WS}, s12 offen offset:{1024 * k} sc1")
    def reads(st):
        f = vWF[st & 1]
        reg, off = (vL16H, st * 5120) if st < 8 else ((vL16H2, (st - 8) * 5120) if st < 16 else (vL16, (st - 16) * 5120))
        for j in range(5):
            a(f"ds_read_b128 {vr(f + 4 * j, 4)}, v{reg} offset:{off + 1024 * j}")
    def mfmas(st):
        f = vWF[st & 1]
        for j in range(5):
            a(f"v_mfma_f32_16x16x32_bf16 {vr(vACC + 4 * j, 4)}, {vr(f + 4 * j, 4)}, {vr(vOF + 4 * st, 4)}, {vr(vACC + 4 * j, 4)}")
    reads(0)
    for st in range(20):
        if st == 12:
            pass
        if st < 19:
            if st + 1 == 16:
                a("s_barrier")
            reads(st + 1)
        if st % 4 == 0:
            a(f"s_waitcnt vmcnt({16 - 4 * (st // 4)})")
        a(f"s_waitcnt lgkmcnt({5 if st < 19 else 0})")
        mfmas(st)
    ST(a, "gemm")
    a(f"v_lshlrev_b32 v{vT}, 4, v{vG}")
    a(f"v_add_u32 v{vT}, {L_Y}, v{vT}")
    a("s_waitcnt lgkmcnt(0)")
    top2_scalar(a, sCAND, sB1, sB2, 12)
    a(f"s_and_b32 s{sB1}, s{sB1}, 0x7ff")
    a(f"s_and_b32 s{sB2}, s{sB2}, 0x7ff")
    for sel, sB in ((0, sB1), (1, sB2)):
        lab = f"L_k2_noupd{sel}"
        a(f"s_lshr_b32 s12, s{sB}, 6")
        a(f"s_cmp_lg_u32 s12, s{sMT}")
        a(f"s_cbranch_scc1 {lab}")
        for j in range(5):
            a(f"ds_read_b128 {vr(vWF[0] + 4 * j, 4)}, v{vT} offset:{320 * sel + 64 * j}")
        a(f"v_cmp_eq_u32 vcc, s{sB}, v{vTOKG}")
        a("s_waitcnt lgkmcnt(0)")
        a("s_nop 1")
        for j in range(5):
            for r in range(4):
                a(f"v_cndmask_b32 v{vWF[0] + 4 * j + r}, 0, v{vWF[0] + 4 * j + r}, vcc")
                a(f"v_add_f32 v{vACC + 4 * j + r}, v{vACC + 4 * j + r}, v{vWF[0] + 4 * j + r}")
        a.label(lab)
    a("s_waitcnt vmcnt(0)")
    a("s_nop 7")
    a(f"v_add_f32 v{vT}, 1.0, v{vSTAT+1}")
    a(f"v_mul_f32 v{vT+1}, v{vSTAT}, v{vSTAT+1}")
    for j in range(5):
        for i in range(2):
            a(f"v_lshlrev_b32 v{vT+2}, 16, v{vX + 2 * j + i}")
            a(f"v_and_b32 v{vT+3}, 0xffff0000, v{vX + 2 * j + i}")
            a(f"v_fma_f32 v{vT+2}, v{vT+2}, v{vT}, -v{vT+1}")
            a(f"v_fma_f32 v{vT+3}, v{vT+3}, v{vT}, -v{vT+1}")
            a(f"v_add_f32 v{vT+2}, v{vT+2}, v{vACC + 4 * j + 2 * i}")
            a(f"v_add_f32 v{vT+3}, v{vT+3}, v{vACC + 4 * j + 2 * i + 1}")
            a(f"v_cvt_pk_bf16_f32 v{vX + 2 * j + i}, v{vT+2}, v{vT+3}")
        a(f"buffer_store_dwordx2 {vr(vX + 2 * j, 2)}, v{vXO}, s[{SRD_OUT}:{SRD_OUT+3}], 0 offen offset:{32 * j}")
    ST(a, "stores")
    if ST.on:
        a("s_waitcnt vmcnt(0)")
    ST(a, "end")
    ST.store(a)
    a("s_endpgm")

    a.label("L_k2_sync")
    ST(a, "E1b")
    a(f"s_lshl_b32 s12, s{sQB}, 8")
    a(f"s_add_u32 s12, s12, {CNT_OFF}")
    a("v_mov_b32 v4, s12")
    a("v_mov_b32 v5, 1")
    a("s_mov_b64 exec, 1")
    a("global_atomic_add v4, v5, s[4:5]")
    a(f"s_mov_b32 s13, {SPIN_MAX}")
    a.label("L_k2_poll")
    a("global_load_dword v6, v4, s[4:5] sc1")
    a("s_waitcnt vmcnt(0)")
    a("v_readfirstlane_b32 s14, v6")
    a("s_sub_u32 s13, s13, 1")
    a("s_cbranch_scc1 L_k2_poll_done")
    a("s_cmp_ge_u32 s14, 32")
    a("s_cbranch_scc1 L_k2_poll_done")
    a("s_sleep 2")
    a("s_branch L_k2_poll")
    a.label("L_k2_poll_done")
    a("s_mov_b64 exec, -1")
    ST(a, "polled")
    a("s_barrier")
    a("s_barrier")
    ST.store(a)
    if os.environ.get("DBG_SUMMARY"):
        summary(a)
    a("s_endpgm")

    a.label("L_k2_side")
    a(f"s_cmp_ge_u32 s{sW}, 8")
    a("s_cbranch_scc1 L_k2_side_b")
    a(f"s_sub_u32 s13, s{sW}, 4")
    a(f"s_mul_i32 s12, s{sNT}, 102400")
    a(f"s_add_u32 s12, s12, {WO2_OFF + 16 * 5120}")
    a("s_mul_i32 s14, s13, 5120")
    a("s_add_u32 s12, s12, s14")
    a("s_mov_b32 m0, s14")
    a("s_nop 0")
    for j in range(4):
        a(f"buffer_load_dwordx4 v{vL16}, {WS}, s12 offen offset:{1024 * j} lds")
    a("s_add_u32 m0, s14, 4096")
    a("s_add_u32 s12, s12, 4096")
    a(f"buffer_load_dwordx4 v{vL16}, {WS}, s12 offen lds")
    top2_scalar(a, sCAND, sB1, sB2, 12)
    a(f"s_and_b32 s{sB1}, s{sB1}, 0x7ff")
    a(f"s_and_b32 s{sB2}, s{sB2}, 0x7ff")
    a(f"s_lshr_b32 s12, s{sB1}, 6")
    a(f"s_lshr_b32 s13, s{sB2}, 6")
    a(f"s_cmp_eq_u32 s12, s{sMT}")
    a("s_cbranch_scc1 L_k2_routed")
    a(f"s_cmp_eq_u32 s13, s{sMT}")
    a("s_cbranch_scc1 L_k2_routed")
    a("s_waitcnt vmcnt(0)")
    a("s_barrier")
    a("s_barrier")
    ST.store(a)
    a("s_endpgm")
    a.label("L_k2_routed")
    routed(a, sB1, sB2)
    a.label("L_k2_side_b")
    a("s_barrier")
    a("s_barrier")
    ST.store(a)
    a("s_endpgm")

def routed(a, sB1, sB2):
    vT, vY = 4, 20
    a(f"v_mov_b32 v7, {F_ALL}")
    spin(a, "L_rt_all", 7, 6, 14, 1, 15)
    a(f"v_subrev_u32 v{vT}, 256, v0")
    a(f"v_mul_u32_u24 v{vT+1}, 52429, v{vT}")
    a(f"v_lshrrev_b32 v{vT+1}, 20, v{vT+1}")
    a(f"v_mul_u32_u24 v{vT+2}, 20, v{vT+1}")
    a(f"v_sub_u32 v{vT+2}, v{vT}, v{vT+2}")
    a(f"v_mul_u32_u24 v8, {8 * 5120}, v{vT+1}")
    a(f"v_lshl_add_u32 v8, v{vT+2}, 4, v8")
    a(f"v_mul_u32_u24 v9, 320, v{vT+1}")
    a(f"v_lshl_add_u32 v9, v{vT+2}, 4, v9")
    a(f"v_add_u32 v9, {L_RED}, v9")
    a(f"v_lshlrev_b32 v10, 2, v{vT}")
    a(f"v_mov_b32 v11, {F_RT}")
    a("v_mov_b32 v12, 1")
    for sel, sB in ((0, sB1), (1, sB2)):
        lab = f"L_k2_rt_skip{sel}"
        a(f"s_lshr_b32 s12, s{sB}, 6")
        a(f"s_cmp_lg_u32 s12, s{sMT}")
        a(f"s_cbranch_scc1 {lab}")
        a(f"s_lshl_b32 s12, s{sB}, 2")
        a("s_add_u32 s38, s4, s12")
        a("s_addc_u32 s39, s5, 0")
        a(f"s_add_u32 s38, s38, {R_OFF}")
        a("s_addc_u32 s39, s39, 0")
        a("s_load_dword s40, s[38:39], 0")
        a(f"s_mul_i32 s12, s{sNT}, 320")
        a(f"s_add_u32 s12, s12, {YP_OFF + sel * 2560}")
        a(f"v_cmp_gt_u32 vcc, 240, v{vT}")
        a("s_and_saveexec_b64 s[48:49], vcc")
        for i in range(8):
            a(f"s_add_u32 s13, s12, {i * 5120}")
            a(f"buffer_load_dwordx4 {vr(vY + 4 * i, 4)}, v8, {WS}, s13 offen sc1")
        a("s_waitcnt vmcnt(0)")
        for i in range(1, 8):
            for r in range(4):
                a(f"v_add_f32 v{vY + r}, v{vY + r}, v{vY + 4 * i + r}")
        a(f"ds_write_b128 v9, {vr(vY, 4)}")
        a("s_mov_b64 exec, s[48:49]")
        a("s_waitcnt lgkmcnt(0)")
        a("s_mov_b64 exec, 1")
        a(f"ds_add_u32 v11, v12 offset:{8 * sel}")
        a("s_mov_b64 exec, -1")
        a(f"v_add_u32 v13, {8 * sel}, v11")
        spin(a, f"L_rt_a{sel}", 13, 14, 14, 4, 15)
        a(f"v_add_u32 v13, {L_RED}, v10")
        a(f"v_cmp_gt_u32 vcc, 80, v{vT}")
        a("s_and_saveexec_b64 s[48:49], vcc")
        a(f"s_cbranch_execz L_k2_rt_c{sel}")
        for p in range(12):
            a(f"ds_read_b32 v{vY + p}, v13 offset:{320 * p}")
        a("v_mov_b32 v15, s40")
        a(f"v_mul_f32 v15, {hex(f2u(-LOG2E))}, v15")
        a("v_exp_f32 v15, v15")
        a("s_nop 0")
        a("v_add_f32 v15, 1.0, v15")
        a("v_rcp_f32 v15, v15")
        a("s_waitcnt lgkmcnt(0)")
        for p in range(1, 12):
            a(f"v_add_f32 v{vY}, v{vY}, v{vY + p}")
        a(f"v_mul_f32 v{vY}, v{vY}, v15")
        a(f"v_add_u32 v13, {L_Y + 320 * sel}, v10")
        a(f"ds_write_b32 v13, v{vY}")
        a.label(f"L_k2_rt_c{sel}")
        a("s_mov_b64 exec, s[48:49]")
        a("s_waitcnt lgkmcnt(0)")
        a("s_mov_b64 exec, 1")
        a(f"ds_add_u32 v11, v12 offset:{8 * sel + 4}")
        a("s_mov_b64 exec, -1")
        a(f"v_add_u32 v13, {8 * sel + 4}, v11")
        spin(a, f"L_rt_b{sel}", 13, 14, 14, 4, 15)
        a.label(lab)
    a("s_waitcnt vmcnt(0)")

def emit(a):
    entry(a)
    attention(a)
    helpers(a)
    projection(a)
    a.label("L_k2_exit")
    a("s_endpgm")
    a.label("L_k2_end")


def summary(a):
    import k1
    a("s_mov_b64 exec, -1")
    a("s_cmp_lg_u32 s2, 0")
    a("s_cbranch_scc1 L_sum_end")
    a("s_load_dwordx2 s[34:35], s[0:1], 72")
    a("s_waitcnt lgkmcnt(0)")
    a(f"s_mov_b32 s{SRD_WS + 2}, 0x2000000")
    a("v_and_b32 v3, 63, v0")
    names = ["entry", "B0", "loopend", "e_bar", "stores", "end"]
    a("v_mov_b32 v40, -1")
    for i in range(1, 8):
        a(f"v_mov_b32 v{40 + i}, 0")
    for q in range(4):
        a(f"v_add_u32 v4, {64 * q}, v3")
        a("v_lshlrev_b32 v5, 11, v4")
        a(f"s_mov_b32 s12, {PROF_OFF + 64}")
        for i, nm in enumerate(names):
            a(f"buffer_load_dword v{10 + i}, v5, {WS}, s12 offen offset:{4 * k1.ST.names.index(nm)}")
        a(f"buffer_load_dword v16, v5, {WS}, s12 offen offset:{4 * k1.ST.names.index('e_lds')}")
        a("s_waitcnt vmcnt(0)")
        a("v_and_b32 v6, 0xe4, v4")
        a("v_cmp_eq_u32 vcc, 0xe4, v6")
        a("s_nop 1")
        a("v_min_u32 v40, v40, v10")
        for i in range(1, 6):
            a(f"v_cndmask_b32 v{10 + i}, v{10 + i}, 0, vcc")
            a(f"v_max_u32 v{40 + i}, v{40 + i}, v{10 + i}")
        a("v_cndmask_b32 v16, 0, v16, vcc")
        a("v_max_u32 v46, v46, v16")
    vals = [40, 41, 42, 43, 44, 45, 46]
    for x in (1, 2, 4, 8, 16, 32):
        a(f"v_xor_b32 v6, {x}, v3")
        a("v_lshlrev_b32 v6, 2, v6")
        for r in vals:
            a(f"ds_bpermute_b32 v20, v6, v{r}")
            a("s_waitcnt lgkmcnt(0)")
            a(f"v_{'min' if r == 40 else 'max'}_u32 v{r}, v{r}, v20")
    for k_, nm in enumerate(["entry", "join", "E1", "polled"]):
        a(f"v_readlane_b32 s12, v{ST.vt + 1}, {ST.names.index(nm)}")
        a("s_nop 3")
        a(f"v_mov_b32 v{50 + k_}, s12")
    a("s_memrealtime s[12:13]")
    a("s_waitcnt lgkmcnt(0)")
    a("v_mov_b32 v54, s12")
    a("v_mov_b32 v7, 0")
    a("s_mov_b64 exec, 1")
    for k_, r in enumerate([41, 42, 43, 44, 45, 46, 50, 51, 52, 53, 54]):
        a(f"v_sub_u32 v20, v{r}, v40")
        a(f"global_store_dword v7, v20, s[34:35] offset:{4 * k_}")
    a("s_waitcnt vmcnt(0)")
    a.label("L_sum_end")
```

```python
from common import *
from k2moe import top2_scalar
import os

NAME = "attn_proj_kernel"
LDS = 163840
VGPRS = 168
BLOCK = 768
GRID = 256
NMOE = 96

def X(flag):
    return flag in os.environ.get("K2_EXP", "").split(",")

ST = StampsLane("k2", 20, 8, 164)

L_RING = 0
L_R = 61440
L_WG, L_WU, L_WD = L_R, L_R + 20480, L_R + 40960
L_XG, L_XU = L_R + 61440, L_R + 61440 + 3840
L_U, L_H = L_R + 69120, L_R + 69120 + 1024
L_MISC = 143360
F_LAND, F_FREE, F_U, F_H, F_MOE, F_ALL = L_MISC, L_MISC + 4, L_MISC + 8, L_MISC + 12, L_MISC + 16, L_MISC + 20
F_RT = L_MISC + 24
F_FREEC = L_MISC + 64
L_RED, L_Y = L_MISC + 1024, L_MISC + 1024 + 3840
SPIN_MAX = 1 << 20
SPACE = int(os.environ.get("K2_SPACE", "0"))
HPRIO = int(os.environ.get("K2_HPRIO", "3"))
LOWM = int(os.environ.get("K2_LOWM", "0"))

vLANE16, vT0, vT1 = 1, 2, 3
vKA, vKB, vV, vFL = 4, 5, 6, 7
vQ1, vQ2 = 10, 20
vFLAG, vONE = 16, 17
vS = (32, 48)
vO = 64
vP = 80
vKAf = (88, 92)
vKBf = (24, 28)
vVf = ((100, 104), (108, 112))
vTMP = 116

sW, sHEAD, sKV, sQ, sOB, sOM = 20, 21, 22, 23, 24, 25
sVMASK = 26
sLO = 28
sT, sT2, sQB = 30, 31, 32
SRD_WS = 8
WS = f"s[{SRD_WS}:{SRD_WS+3}]"

def lds_tile(t):
    return ((t >> 3) % 3) * 20480 + (t & 7) * 2560

def spin(a, name, vaddr, vtmp, stmp, target, cnt, sleep=1):
    a(f"s_mov_b32 s{cnt}, {SPIN_MAX}")
    a.label(f"{name}_loop")
    a(f"ds_read_b32 v{vtmp}, v{vaddr}")
    a("s_waitcnt lgkmcnt(0)")
    a(f"v_readfirstlane_b32 s{stmp}, v{vtmp}")
    a(f"s_sub_u32 s{cnt}, s{cnt}, 1")
    a(f"s_cbranch_scc1 {name}_done")
    a(f"s_cmp_ge_u32 s{stmp}, {target}")
    a(f"s_cbranch_scc1 {name}_done")
    a(f"s_sleep {sleep}")
    a(f"s_branch {name}_loop")
    a.label(f"{name}_done")

def mfma_s1(a, dst, buf):
    a(f"v_mfma_f32_32x32x16_bf16 {vr(dst, 16)}, {vr(vKAf[buf], 4)}, {vr(vQ1, 4)}, 0")
def mfma_s2(a, dst, buf):
    if X("nos2"): return
    if not X("s2x16"):
        a(f"v_mfma_f32_32x32x8bf16_1k {vr(dst, 16)}, {vr(vKBf[buf], 2)}, {vr(vQ2, 2)}, {vr(dst, 16)}")
    else:
        a(f"v_mfma_f32_32x32x16_bf16 {vr(dst, 16)}, {vr(vKBf[buf], 4)}, {vr(vQ2, 4)}, {vr(dst, 16)}")
def mfma_pv(a, buf, t):
    a(f"v_mfma_f32_32x32x16_bf16 {vr(vO, 16)}, {vr(vVf[buf][t], 4)}, {vr(vP + 4 * t, 4)}, {vr(vO, 16)}")

def read_ka(a, t, buf):
    a(f"ds_read_b128 {vr(vKAf[buf], 4)}, v{vKA} offset:{lds_tile(t)}")
def read_kb(a, t, buf):
    a(f"ds_read_b64 {vr(vKBf[buf], 2)}, v{vKB} offset:{lds_tile(t)}")
def read_v(a, t, part):
    a(f"ds_read_b128 {vr(vVf[t & 1][part], 4)}, v{vV} offset:{lds_tile(t) + 640 * part}")

def tile_body(a, t):
    sc, sn = vS[t & 1], vS[(t + 1) & 1]
    last = t == 63
    ex = lambda r: a(f"v_exp_f32 v{sc + r}, v{sc + r}")
    cv = lambda i: a(f"v_cvt_pk_bf16_f32 v{vP + i}, v{sc + 2 * i}, v{sc + 2 * i + 1}")
    ex(0)
    a("s_setprio 1")
    ex(1)
    if t > 0:
        mfma_pv(a, (t - 1) & 1, 1)
    for r in range(2, 6):
        ex(r)
    if not last:
        mfma_s1(a, sn, (t + 1) & 1)
    ex(6); ex(7)
    for i in range(4):
        cv(i)
    if not X("neworder"):
        if not last:
            mfma_s2(a, sn, (t + 1) & 1)
        for r in range(8, 12):
            ex(r)
        mfma_pv(a, t & 1, 0)
        for r in range(12, 16):
            ex(r)
    else:
        ex(8); ex(9)
        mfma_pv(a, t & 1, 0)
        for r in range(10, 14):
            ex(r)
        if not last:
            mfma_s2(a, sn, (t + 1) & 1)
        ex(14); ex(15)
    for i in range(4, 8):
        cv(i)
    a("s_setprio 0")
    a("s_waitcnt lgkmcnt(0)")
    if t % 8 == 5 and t < 56:
        c = t // 8 + 1
        a(f"v_readfirstlane_b32 s{sT}, v{vFLAG}")
        a(f"s_cmp_ge_u32 s{sT}, {c}")
        a(f"s_cbranch_scc1 L_land_{c}_skip")
        if ST.on:
            a("s_memtime s[90:91]")
            a("s_waitcnt lgkmcnt(0)")
        spin(a, f"L_land_{c}", vFL, vFLAG, sT, c, sT2)
        if ST.on:
            a("s_memtime s[88:89]")
            a("s_waitcnt lgkmcnt(0)")
            a("s_sub_u32 s88, s88, s90")
            a("s_add_u32 s87, s87, s88")
        a.label(f"L_land_{c}_skip")
    if t % 8 == 7 and t < 40:
        a("s_mov_b64 exec, 1")
        a(f"ds_add_u32 v{vFL}, v{vONE} offset:{F_FREEC - F_LAND + 4 * (t // 8)}")
        a("s_mov_b64 exec, -1")
    if t + 3 <= 63:
        if not X("noka"): read_ka(a, t + 3, (t + 1) & 1)
        a(f"s_mov_b64 exec, s[{sLO}:{sLO+1}]")
        if not X("nokb"): read_kb(a, t + 3, (t + 1) & 1)
    if t + 1 <= 63:
        a(f"s_mov_b64 exec, s[{sVMASK}:{sVMASK+1}]")
        if t + 2 <= 63 and not X("nov0"):
            read_v(a, t + 2, 0)
        if not X("nov1"): read_v(a, t + 1, 1)
        a("s_mov_b64 exec, -1")
    if t % 8 == 4 and t < 56:
        a(f"ds_read_b32 v{vFLAG}, v{vFL}")
    if t == 62:
        a("s_nop 1")
    if last:
        a("s_nop 1")
        mfma_pv(a, t & 1, 1)

def row_max(a, s, dst, tmp):
    a(f"v_max3_f32 v{dst}, v{s}, v{s+1}, v{s+2}")
    for r in range(3, 15, 2):
        a(f"v_max3_f32 v{dst}, v{dst}, v{s+r}, v{s+r+1}")
    a(f"v_max_f32 v{dst}, v{dst}, v{s+15}")
    a(f"v_mov_b32 v{tmp}, v{dst}")
    a("s_nop 1")
    a(f"v_permlane32_swap_b32 v{dst}, v{tmp}")
    a("s_nop 1")
    a(f"v_max_f32 v{dst}, v{dst}, v{tmp}")

def entry(a):
    kernel_header(a, NAME)
    ST(a, "entry")
    a(f"s_cmp_ge_u32 s2, {GRID}")
    a("s_cbranch_scc1 L_k2_exit")
    a("s_load_dwordx2 s[4:5], s[0:1], 80")
    a(f"v_lshrrev_b32 v{vT0}, 6, v0")
    a(f"v_and_b32 v{vT1}, 63, v0")
    a(f"v_readfirstlane_b32 s{sW}, v{vT0}")
    a("s_and_b32 s12, s2, 7")
    a("s_lshl_b32 s12, s12, 2")
    a("s_bfe_u32 s13, s2, 0x20003")
    a(f"s_or_b32 s{sHEAD}, s12, s13")
    a(f"s_lshr_b32 s{sQB}, s2, 5")
    a(f"s_mul_i32 s{sKV}, s{sHEAD}, {64 * 2560}")
    a(f"s_add_u32 s{sKV}, s{sKV}, {KV_OFF}")
    a(f"v_lshlrev_b32 v{vLANE16}, 4, v{vT1}")
    a(f"s_cmp_ge_u32 s{sW}, 8")
    a("s_cbranch_scc1 L_k2_helper")

def attention(a):
    a(f"s_lshl_b32 s14, s{sQB}, 3")
    a(f"s_add_u32 s14, s14, s{sW}")
    a(f"s_lshl_b32 s15, s{sHEAD}, 6")
    a("s_add_u32 s15, s15, s14")
    a(f"s_mul_i32 s{sQ}, s15, 1280")
    if QB_OFF:
        a(f"s_add_u32 s{sQ}, s{sQ}, {QB_OFF}")
    a(f"s_mul_i32 s16, s{sW}, 2560")
    a(f"s_add_u32 s17, s{sKV}, s16")
    a(f"s_mov_b32 s{sLO}, -1")
    a(f"s_mov_b32 s{sLO+1}, 0")
    a(f"v_and_b32 v{vT0}, 31, v{vT1}")
    a(f"v_lshlrev_b32 v{vTMP}, 3, v{vT0}")
    for r in range(4):
        a(f"v_mov_b32 v{vQ2 + r}, 0")
    a("s_waitcnt lgkmcnt(0)")
    srd(a, SRD_WS, 4, WS_SRD)
    a("s_mov_b32 m0, s16")
    a("s_nop 0")
    a(f"buffer_load_dwordx4 v{vLANE16}, {WS}, s17 offen lds")
    a(f"buffer_load_dwordx4 v{vLANE16}, {WS}, s17 offen offset:1024 lds")
    a(f"s_mov_b64 exec, s[{sLO}:{sLO+1}]")
    a(f"buffer_load_dwordx4 v{vLANE16}, {WS}, s17 offen offset:2048 lds")
    a(f"buffer_load_dwordx2 {vr(vQ2, 2)}, v{vTMP}, {WS}, s{sQ} offen offset:1024")
    a("s_mov_b64 exec, -1")
    a(f"buffer_load_dwordx4 {vr(vQ1, 4)}, v{vLANE16}, {WS}, s{sQ} offen")
    a(f"s_mul_i32 s{sOB}, s14, 40960")
    a(f"s_add_u32 s{sOB}, s{sOB}, {OB_OFF}")
    a(f"s_lshr_b32 s15, s{sHEAD}, 3")
    a("s_mul_i32 s15, s15, 5120")
    a(f"s_add_u32 s{sOB}, s{sOB}, s15")
    a(f"s_bfe_u32 s15, s{sHEAD}, 0x20001")
    a("s_lshl_b32 s15, s15, 10")
    a(f"s_and_b32 s16, s{sHEAD}, 1")
    a("s_lshl_b32 s16, s16, 9")
    a("s_add_u32 s15, s15, s16")
    a(f"s_add_u32 s{sOM}, s{sOB}, s15")
    a(f"s_and_b32 s15, s{sHEAD}, 3")
    a("s_lshl_b32 s15, s15, 8")
    a(f"s_bfe_u32 s16, s{sHEAD}, 0x10002")
    a("s_lshl_b32 s16, s16, 3")
    a("s_add_u32 s15, s15, s16")
    a(f"s_add_u32 s{sOB}, s{sOB}, s15")
    a(f"s_add_u32 s{sOB}, s{sOB}, 4096")
    a(f"s_mov_b32 s{sVMASK}, 0x000fffff")
    a(f"s_mov_b32 s{sVMASK+1}, 0x000fffff")
    a(f"v_mov_b32 v{vKA}, v{vLANE16}")
    a(f"v_add_u32 v{vKB}, 1024, v{vTMP}")
    a(f"v_lshrrev_b32 v{vTMP+1}, 5, v{vT1}")
    a(f"v_mul_u32_u24 v{vTMP+1}, 320, v{vTMP+1}")
    a(f"v_lshl_add_u32 v{vTMP+1}, v{vT0}, 4, v{vTMP+1}")
    a(f"v_add_u32 v{vV}, 1280, v{vTMP+1}")
    a(f"v_mov_b32 v{vFL}, {F_LAND}")
    a(f"v_mov_b32 v{vONE}, 1")
    a(f"v_and_b32 v{vTMP+1}, 27, v{vT0}")
    a(f"v_cmp_eq_u32 vcc, 24, v{vTMP+1}")
    a(f"v_mov_b32 v{vTMP+2}, 0x3f803f80")
    a("s_nop 1")
    a(f"v_cndmask_b32 v{vTMP+1}, 0, v{vTMP+2}, vcc")
    for b in range(2):
        for t in range(2):
            for r in range(4):
                a(f"v_mov_b32 v{vVf[b][t] + r}, v{vTMP+1}")
    for r in range(16):
        a(f"v_mov_b32 v{vO + r}, 0")
    a(f"v_cmp_le_u32 vcc, 32, v{vT1}")
    a(f"v_mov_b32 v{vTMP+2}, 0x3f80")
    a("s_nop 1")
    for b in range(2):
        a(f"v_cndmask_b32 v{vKBf[b]}, 0, v{vTMP+2}, vcc")
        for r in range(1, 4):
            a(f"v_mov_b32 v{vKBf[b] + r}, 0")
    a("s_waitcnt vmcnt(0)")
    a("s_barrier")
    ST(a, "B0")
    read_ka(a, 0, 0)
    read_ka(a, 1, 1)
    a(f"s_mov_b64 exec, s[{sLO}:{sLO+1}]")
    read_kb(a, 0, 0)
    read_kb(a, 1, 1)
    a(f"s_mov_b64 exec, s[{sVMASK}:{sVMASK+1}]")
    read_v(a, 0, 0); read_v(a, 0, 1); read_v(a, 1, 0)
    a("s_mov_b64 exec, -1")
    a("s_waitcnt lgkmcnt(3)")
    mfma_s1(a, vS[0], 0)
    a("s_nop 11")
    mfma_s2(a, vS[0], 0)
    a("s_nop 15")
    a("s_nop 3")
    row_max(a, vS[0], vTMP, vTMP + 1)
    a(f"v_sub_f32 v{vTMP}, 0, v{vTMP}")
    a(f"v_cvt_pk_bf16_f32 v{vTMP}, v{vTMP}, 0")
    a(f"v_cmp_le_u32 vcc, 32, v{vT1}")
    a("s_nop 1")
    a(f"v_cndmask_b32 v{vQ2}, v{vQ2}, v{vTMP}, vcc")
    a("s_nop 1")
    mfma_s1(a, vS[0], 0)
    a("s_nop 11")
    mfma_s2(a, vS[0], 0)
    read_ka(a, 2, 0)
    a(f"s_mov_b64 exec, s[{sLO}:{sLO+1}]")
    read_kb(a, 2, 0)
    a("s_mov_b64 exec, -1")
    a("s_waitcnt lgkmcnt(2)")
    a("s_nop 15")
    a("s_nop 3")
    if ST.on:
        a("s_mov_b32 s87, 0")
    for t in range(64):
        if t in (0, 8, 32, 56):
            ST(a, f"t{t}")
        tile_body(a, t)
    ST(a, "loopend")
    if ST.on:
        a(f"v_writelane_b32 v{ST.vt}, s87, 15")
    a("s_nop 15")
    a("s_nop 3")
    a(f"v_mov_b32 v{vTMP}, v{vO + 12}")
    for r in range(12):
        a(f"v_fma_f32 v{vTMP}, v{vO + r}, 0, v{vTMP}")
    a(f"v_mov_b32 v{vTMP+1}, {hex(f2u(2.0 ** 100))}")
    a(f"v_cmp_nlt_f32 vcc, v{vTMP}, v{vTMP+1}")
    a("s_nop 4")
    a("s_cbranch_vccz L_attn_store")
    safe_path(a)
    a.label("L_attn_store")
    a(f"v_rcp_f32 v{vTMP}, v{vO + 12}")
    a("s_nop 1")
    for r in range(12):
        a(f"v_mul_f32 v{vO + r}, v{vO + r}, v{vTMP}")
    for i in range(6):
        a(f"v_cvt_pk_bf16_f32 v{vP + i}, v{vO + 2 * i}, v{vO + 2 * i + 1}")
    a(f"v_and_b32 v{vTMP+1}, 15, v0")
    a(f"v_lshlrev_b32 v{vTMP+1}, 4, v{vTMP+1}")
    a(f"v_bfe_u32 v{vTMP+2}, v0, 4, 1")
    a(f"v_mul_u32_u24 v{vTMP+2}, 20480, v{vTMP+2}")
    a(f"v_add_u32 v{vTMP+1}, v{vTMP+1}, v{vTMP+2}")
    a(f"v_bfe_u32 v{vTMP+2}, v0, 5, 1")
    a(f"v_lshl_add_u32 v{vTMP+2}, v{vTMP+2}, 8, v{vTMP+1}")
    a(f"buffer_store_dwordx4 {vr(vP, 4)}, v{vTMP+2}, {WS}, s{sOM} offen sc1")
    a(f"s_mov_b64 exec, s[{sLO}:{sLO+1}]")
    a(f"buffer_store_dwordx2 {vr(vP + 4, 2)}, v{vTMP+1}, {WS}, s{sOB} offen sc1")
    a("s_mov_b64 exec, -1")
    a("s_branch L_k2_join")

def safe_path(a):
    vM, vMN, vAL = vTMP, vTMP + 1, vTMP + 2
    vA2, vA3 = vTMP + 5, vTMP + 6
    s = vS[0]
    a(f"v_and_b32 v{vA2}, 31, v0")
    a(f"v_lshlrev_b32 v{vA2}, 3, v{vA2}")
    a(f"v_mov_b32 v{vA3}, v{vV}")
    a(f"v_mov_b32 v{vM}, 0xff7fffff")
    a(f"v_and_b32 v{vAL}, 63, v0")
    a(f"v_cmp_gt_u32 vcc, 32, v{vAL}")
    a("s_nop 1")
    a(f"v_cndmask_b32 v{vQ2}, 0, v{vQ2}, vcc")
    for r in range(16):
        a(f"v_mov_b32 v{vO + r}, 0")
    a(f"s_mov_b32 s{sT}, s{sKV}")
    a("s_mov_b32 s15, 64")
    a.label("L_safe_loop")
    a(f"buffer_load_dwordx4 {vr(vKAf[0], 4)}, v{vLANE16}, {WS}, s{sT} offen")
    a(f"s_mov_b64 exec, s[{sLO}:{sLO+1}]")
    a(f"buffer_load_dwordx2 {vr(vKBf[0], 2)}, v{vA2}, {WS}, s{sT} offen offset:1024")
    a(f"s_mov_b64 exec, s[{sVMASK}:{sVMASK+1}]")
    a(f"buffer_load_dwordx4 {vr(vVf[0][0], 4)}, v{vA3}, {WS}, s{sT} offen")
    a(f"buffer_load_dwordx4 {vr(vVf[0][1], 4)}, v{vA3}, {WS}, s{sT} offen offset:640")
    a("s_mov_b64 exec, -1")
    a("s_waitcnt vmcnt(0)")
    mfma_s1(a, s, 0)
    a("s_nop 11")
    mfma_s2(a, s, 0)
    a("s_nop 15")
    a("s_nop 3")
    row_max(a, s, vMN, vAL)
    a(f"v_max_f32 v{vMN}, v{vMN}, v{vM}")
    a(f"v_sub_f32 v{vAL}, v{vM}, v{vMN}")
    a(f"v_exp_f32 v{vAL}, v{vAL}")
    a(f"v_mov_b32 v{vM}, v{vMN}")
    for r in range(16):
        a(f"v_sub_f32 v{s + r}, v{s + r}, v{vMN}")
    for r in range(16):
        a(f"v_exp_f32 v{s + r}, v{s + r}")
    for r in range(16):
        a(f"v_mul_f32 v{vO + r}, v{vO + r}, v{vAL}")
    for i in range(8):
        a(f"v_cvt_pk_bf16_f32 v{vP + i}, v{s + 2 * i}, v{s + 2 * i + 1}")
    a("s_nop 1")
    mfma_pv(a, 0, 0)
    mfma_pv(a, 0, 1)
    a(f"s_add_u32 s{sT}, s{sT}, 2560")
    a("s_sub_u32 s15, s15, 1")
    a("s_nop 15")
    a("s_nop 3")
    a("s_cmp_lg_u32 s15, 0")
    a("s_cbranch_scc1 L_safe_loop")

def helpers(a):
    a.label("L_k2_helper")
    a(f"s_setprio {HPRIO}")
    a("s_load_dwordx2 s[6:7], s[0:1], 0")
    a("s_load_dwordx4 s[36:39], s[0:1], 40")
    a("s_load_dwordx2 s[40:41], s[0:1], 56")
    a("s_waitcnt lgkmcnt(0)")
    srd(a, SRD_WS, 4, WS_SRD)
    a(f"s_cmp_lg_u32 s{sW}, 8")
    a("s_cbranch_scc1 L_k2_ffn")
    ring_loader(a)
    ffn(a)

def ring_loader(a):
    vF, vX = 4, 5
    a(f"v_lshlrev_b32 v{vF}, 2, v{vT1}")
    a(f"v_add_u32 v{vF}, {L_MISC}, v{vF}")
    a(f"v_mov_b32 v{vX}, 0")
    a(f"ds_write_b32 v{vF}, v{vX}")
    a(f"v_mov_b32 v{vF}, {F_LAND}")
    a("s_waitcnt lgkmcnt(0)")
    a("s_barrier")
    def chunk(c):
        for i in range(5):
            a(f"s_mov_b32 m0, {(c % 3) * 20480 + i * 4096}")
            a(f"s_add_u32 s{sT}, s{sKV}, {c * 20480 + i * 4096}")
            for j in range(4):
                a(f"buffer_load_dwordx4 v{vLANE16}, {WS}, s{sT} offen offset:{1024 * j} lds")
    def landed(c):
        a(f"v_mov_b32 v{vX}, {c}")
        a(f"ds_write_b32 v{vF}, v{vX}")
    chunk(1); chunk(2)
    a("s_waitcnt vmcnt(20)")
    landed(1)
    a("s_waitcnt vmcnt(0)")
    landed(2)
    for c in range(3, 8):
        a(f"v_mov_b32 v6, {F_FREEC + 4 * (c - 3)}")
        spin(a, f"L_free_{c}", 6, 7, sT, 8, sT2, sleep=6)
        chunk(c)
        a("s_waitcnt vmcnt(0)")
        landed(c)
    a(f"s_add_u32 s38, s4, {CAND_OFF}")
    a("s_addc_u32 s39, s5, 0")
    a("s_load_dwordx16 s[64:79], s[38:39], 0")
    a("s_load_dwordx16 s[80:95], s[38:39], 64")
    out_tile_ids(a)
    a("s_waitcnt lgkmcnt(0)")
    top2_scalar(a, 64, 42, 43, 12)
    a("s_bfe_u32 s12, s42, 0x50006")
    a("s_bfe_u32 s13, s43, 0x50006")
    a(f"s_cmp_eq_u32 s12, s{sMT}")
    a("s_cbranch_scc1 L_k2_watch")
    a(f"s_cmp_eq_u32 s13, s{sMT}")
    a("s_cbranch_scc0 L_k2_join")
    a.label("L_k2_watch")
    a(f"v_mov_b32 v7, {CNT_OFF + 8 * 256}")
    a(f"s_mov_b32 s13, {SPIN_MAX}")
    a.label("L_k2_poll_moe")
    a("global_load_dword v6, v7, s[4:5] sc1")
    a("s_waitcnt vmcnt(0)")
    a("v_readfirstlane_b32 s14, v6")
    a("s_sub_u32 s13, s13, 1")
    a("s_cbranch_scc1 L_k2_poll_moe_done")
    a(f"s_cmp_ge_u32 s14, {NMOE}")
    a("s_cbranch_scc1 L_k2_poll_moe_done")
    a("s_sleep 8")
    a("s_branch L_k2_poll_moe")
    a.label("L_k2_poll_moe_done")
    a(f"v_mov_b32 v6, {F_ALL}")
    a("v_mov_b32 v7, 1")
    a("ds_write_b32 v6, v7")
    a("s_waitcnt lgkmcnt(0)")
    a("s_branch L_k2_join")

def slice_index(a):
    a("s_and_b32 s33, s2, 7")
    a("s_mul_i32 s33, s33, 12")
    a("s_lshr_b32 s12, s2, 3")
    a("s_add_u32 s33, s33, s12")

def ffn(a):
    SRD_X, SRD_W = 56, 60
    sM, sB1, sB2, sU = 33, 42, 43, 44
    sCAND = 64
    vT, vA, vB = 4, 5, 6
    a.label("L_k2_ffn")
    if os.environ.get("K2_CPF", "0") == "1":
        a(f"s_cmp_lg_u32 s{sW}, 11")
        a("s_cbranch_scc1 L_k2_cpf")
        code_prefetch(a, "k2own", NAME, "L_k2_end", 40960, 46, vT1, 44, True)
        a.label("L_k2_cpf")
    a("s_barrier")
    a(f"s_cmp_ge_u32 s2, {NMOE if not X('nomoe') else 0}")
    a("s_cbranch_scc1 L_k2_wo_prefetch")
    slice_index(a)
    a(f"s_cmp_eq_u32 s{sW}, 11")
    a("s_cbranch_scc1 L_k2_down")
    a(f"s_sub_u32 s{sU}, s{sW}, 9")
    srd(a, SRD_X, 6, X_BYTES)
    a(f"s_add_u32 s46, s4, {CAND_OFF}")
    a("s_addc_u32 s47, s5, 0")
    a(f"s_load_dwordx16 s[{sCAND}:{sCAND+15}], s[46:47], 0")
    a(f"s_load_dwordx16 s[{sCAND+16}:{sCAND+31}], s[46:47], 64")
    a(f"s_cmp_eq_u32 s{sU}, 0")
    a("s_cbranch_scc0 L_k2_up_srd")
    srd(a, SRD_W, 36, WG_BYTES)
    a("s_branch L_k2_srd_done")
    a.label("L_k2_up_srd")
    srd(a, SRD_W, 38, WG_BYTES)
    a.label("L_k2_srd_done")
    a(f"v_lshrrev_b32 v{vT}, 3, v{vT1}")
    a(f"v_mul_u32_u24 v{vA}, 3072, v{vT}")
    a(f"v_and_b32 v7, 7, v{vT1}")
    a(f"v_xor_b32 v7, v7, v{vT}")
    a(f"v_lshl_add_u32 v{vA}, v7, 4, v{vA}")
    a(f"s_and_b32 s17, s{sM}, 3")
    a(f"s_mul_i32 s15, s17, {160 * 3072}")
    a(f"s_lshr_b32 s16, s{sM}, 2")
    a("s_lshl_b32 s16, s16, 7")
    a("s_add_u32 s15, s15, s16")
    a(f"s_mul_i32 s14, s{sU}, 20480")
    a(f"s_add_u32 s14, s14, {L_WG}")
    for q in range(20 if not X("moe_nodma") else 0):
        a(f"s_add_u32 m0, s14, {q * 1024}")
        a(f"s_add_u32 s16, s15, {q * 8 * 3072}")
        a(f"buffer_load_dwordx4 v{vA}, s[{SRD_W}:{SRD_W+3}], s16 offen lds")
    a("s_waitcnt lgkmcnt(0)")
    top2_scalar(a, sCAND, sB1, sB2, 12)
    a(f"s_and_b32 s{sB1}, s{sB1}, 0x7ff")
    a(f"s_and_b32 s{sB2}, s{sB2}, 0x7ff")
    for k, sB in ((0, sB1), (1, sB2)):
        a(f"s_lshl_b32 s12, s{sB}, 3")
        a("s_add_u32 s46, s4, s12")
        a("s_addc_u32 s47, s5, 0")
        a(f"s_add_u32 s46, s46, {ST_OFF}")
        a("s_addc_u32 s47, s47, 0")
        a(f"s_load_dwordx2 s[{48 + 2 * k}:{49 + 2 * k}], s[46:47], 0")
    a(f"s_mul_i32 s14, s{sU}, 1024")
    a(f"s_add_u32 s14, s14, {L_XG}")
    a("s_mul_i32 s16, s17, 320")
    a("s_mov_b64 exec, 0xfffff")
    for k, sB in ((0, sB1), (1, sB2)):
        a(f"s_mul_i32 s12, s{sB}, 1280")
        a("s_add_u32 s12, s12, s16")
        a(f"s_add_u32 m0, s14, {320 * k}")
        a("s_nop 0")
        a(f"buffer_load_dwordx4 v{vLANE16}, s[{SRD_X}:{SRD_X+3}], s12 offen lds")
    for r in range(4):
        a(f"v_mov_b32 v{8 + r}, 0x3f803f80")
    a(f"v_add_u32 v{vT}, s14, v{vLANE16}")
    a(f"ds_write_b128 v{vT}, v[8:11] offset:640")
    a("s_mov_b64 exec, -1")
    vWA, vXA, vF, vACC = 56, 6, 12, 40
    a(f"v_lshrrev_b32 v{vT}, 4, v{vT1}")
    a(f"v_bfe_u32 v7, v{vT1}, 2, 2")
    a(f"v_lshl_add_u32 v8, v{vT}, 3, v7")
    a(f"v_and_b32 v9, 3, v{vT1}")
    a(f"s_mul_i32 s12, s{sU}, 20480")
    a(f"s_add_u32 s12, s12, {L_WG}")
    for ct in range(4):
        for rd_ in range(2):
            a(f"v_add_u32 v10, {4 * rd_}, v8")
            a(f"v_lshrrev_b32 v11, 1, v9")
            a(f"v_add_u32 v11, {2 * ct}, v11")
            a(f"v_and_b32 v60, 7, v10") if False else None
            a(f"v_and_b32 v{vT}, 7, v10")
            a(f"v_xor_b32 v11, v11, v{vT}")
            a(f"v_lshlrev_b32 v11, 4, v11")
            a(f"v_lshl_add_u32 v11, v10, 7, v11")
            a(f"v_and_b32 v{vT}, 1, v9")
            a(f"v_lshl_add_u32 v11, v{vT}, 3, v11")
            a(f"v_add_u32 v{vWA + 2 * ct + rd_}, s12, v11")
    a(f"v_lshrrev_b32 v{vT}, 4, v{vT1}")
    a(f"v_min_u32 v{vXA}, 2, v9")
    a(f"v_mul_u32_u24 v{vXA}, 320, v{vXA}")
    a(f"v_lshl_add_u32 v{vXA}, v{vT}, 4, v{vXA}")
    a(f"v_add_u32 v{vXA}, s14, v{vXA}")
    a("s_waitcnt vmcnt(0) lgkmcnt(0)")
    vACC = 64
    for s_ in range(5 if not X("moe_nocomp") else 0):
        a(f"ds_read_b128 v[12:15], v{vXA} offset:{s_ * 64}")
        for ct in range(4):
            for rd_ in range(2):
                a(f"ds_read_b64_tr_b16 {vr(16 + 4 * ct + 2 * rd_, 2)}, v{vWA + 2 * ct + rd_} offset:{s_ * 4096}")
        if LOWM: a("s_setprio 0")
        for ct in range(4):
            a(f"s_waitcnt lgkmcnt({6 - 2 * ct})")
            c = "0" if s_ == 0 else vr(vACC + 4 * ct, 4)
            a(f"v_mfma_f32_16x16x32_bf16 {vr(vACC + 4 * ct, 4)}, {vr(16 + 4 * ct, 4)}, v[12:15], {c}")
            if SPACE: a(f"s_nop {SPACE - 1}")
    if LOWM:
        a("s_nop 7")
        a(f"s_setprio {HPRIO}")
    a(f"v_and_b32 v7, 15, v{vT1}")
    a(f"v_lshlrev_b32 v8, 8, v7")
    a(f"v_lshl_add_u32 v8, v{vT}, 4, v8")
    a("v_cmp_gt_u32 vcc, 3, v7")
    a(f"s_lshl_b32 s12, s{sM}, 1")
    a(f"s_add_u32 s12, s12, s{sU}")
    a("s_mul_i32 s12, s12, 768")
    a(f"s_add_u32 s12, s12, {GP_OFF}")
    a("s_mov_b64 s[52:53], vcc")
    a("s_nop 3")
    a("s_mov_b64 exec, s[52:53]")
    for ct in range(4):
        a(f"buffer_store_dwordx4 {vr(vACC + 4 * ct, 4)}, v8, {WS}, s12 offen offset:{64 * ct} sc1")
    a("s_mov_b64 exec, -1")
    a("s_waitcnt vmcnt(0)")
    a(f"v_mov_b32 v52, 1")
    a(f"v_mov_b32 v53, {F_U}")
    a(f"s_cmp_eq_u32 s{sU}, 0")
    a("s_cbranch_scc1 L_k2_gate")
    a("ds_write_b32 v53, v52")
    a("s_branch L_k2_ffn_done")
    a.label("L_k2_gate")
    spin(a, "L_wait_u", 53, 54, 12, 1, 13, sleep=2)
    a(f"s_lshr_b32 s12, s{sM}, 2")
    a("s_add_u32 s12, s12, 9")
    a("s_lshl_b32 s12, s12, 8")
    a(f"s_add_u32 s12, s12, {CNT_OFF}")
    a("v_mov_b32 v9, s12")
    a("s_mov_b64 exec, 1")
    a("global_atomic_add v9, v52, s[4:5]")
    a(f"s_mov_b32 s13, {SPIN_MAX}")
    a.label("L_k2_poll_cb")
    a("global_load_dword v10, v9, s[4:5] sc1")
    a("s_waitcnt vmcnt(0)")
    a("v_readfirstlane_b32 s14, v10")
    a("s_sub_u32 s13, s13, 1")
    a("s_cbranch_scc1 L_k2_poll_cb_done")
    a("s_cmp_ge_u32 s14, 4")
    a("s_cbranch_scc1 L_k2_poll_cb_done")
    a("s_sleep 8")
    a("s_branch L_k2_poll_cb")
    a.label("L_k2_poll_cb_done")
    a("s_mov_b64 exec, -1")
    a(f"s_andn2_b32 s12, s{sM}, 3")
    a("s_mul_i32 s12, s12, 1536")
    a(f"s_add_u32 s12, s12, {GP_OFF}")
    a("s_lshl_b32 s16, s17, 6")
    a("s_add_u32 s12, s12, s16")
    a("s_mov_b64 exec, s[52:53]")
    for kq in range(4):
        for mat in range(2):
            a(f"s_add_u32 s16, s12, {kq * 1536 + mat * 768}")
            a(f"buffer_load_dwordx4 {vr(12 + 16 * mat + 4 * kq, 4)}, v8, {WS}, s16 offen sc1")
    a("s_mov_b64 exec, -1")
    a(f"v_and_b32 v7, 15, v{vT1}")
    a("v_cmp_eq_u32 vcc, 0, v7")
    a("v_mov_b32 v8, s50")
    a("v_mov_b32 v9, s51")
    a("v_mov_b32 v10, s48")
    a("v_mov_b32 v11, s49")
    a("v_cndmask_b32 v8, v8, v10, vcc")
    a("v_cndmask_b32 v9, v9, v11, vcc")
    a("s_waitcnt vmcnt(0)")
    for mat in range(2):
        b0 = 12 + 16 * mat
        for r in range(4):
            a(f"v_add_f32 v{b0 + r}, v{b0 + r}, v{b0 + 4 + r}")
            a(f"v_add_f32 v{b0 + 8 + r}, v{b0 + 8 + r}, v{b0 + 12 + r}")
        for r in range(4):
            a(f"v_add_f32 v{b0 + r}, v{b0 + r}, v{b0 + 8 + r}")
        a("s_nop 1")
        for r in range(4):
            a(f"v_mov_b32_dpp v{b0 + 4 + r}, v{b0 + r} quad_perm:[2,2,2,2] row_mask:0xf bank_mask:0xf")
        for r in range(4):
            a(f"v_fma_f32 v{b0 + r}, -v8, v{b0 + 4 + r}, v{b0 + r}")
        for r in range(4):
            a(f"v_mul_f32 v{b0 + r}, v{b0 + r}, v9")
    vACC = 12
    for r in range(4):
        a(f"v_mul_f32 v{48 + r}, {hex(f2u(-LOG2E))}, v{vACC + r}")
    for r in range(4):
        a(f"v_exp_f32 v{48 + r}, v{48 + r}")
    for r in range(4):
        a(f"v_add_f32 v{48 + r}, 1.0, v{48 + r}")
    for r in range(4):
        a(f"v_rcp_f32 v{48 + r}, v{48 + r}")
    for r in range(4):
        a(f"v_mul_f32 v{vACC + r}, v{vACC + r}, v{28 + r}")
    for r in range(4):
        a(f"v_mul_f32 v{vACC + r}, v{vACC + r}, v{48 + r}")
    a(f"v_cvt_pk_bf16_f32 v44, v{vACC}, v{vACC+1}")
    a(f"v_cvt_pk_bf16_f32 v45, v{vACC+2}, v{vACC+3}")
    a(f"v_lshlrev_b32 v{vT}, 3, v{vT1}")
    a(f"v_add_u32 v{vT}, {L_H}, v{vT}")
    a(f"ds_write_b64 v{vT}, v[44:45]")
    a(f"v_mov_b32 v53, {F_H}")
    a("s_waitcnt lgkmcnt(0)")
    a(f"ds_write_b32 v53, v52")
    a("s_branch L_k2_ffn_done")
    a.label("L_k2_down")
    srd(a, SRD_W, 40, WD_BYTES)
    a(f"s_mul_i32 s15, s{sM}, 20480")
    for i in range(5 if not X("moe_nodma") else 0):
        a(f"s_mov_b32 m0, {L_WD + i * 4096}")
        a(f"s_add_u32 s16, s15, {i * 4096}")
        for j in range(4):
            a(f"buffer_load_dwordx4 v{vLANE16}, s[{SRD_W}:{SRD_W+3}], s16 offen offset:{1024 * j} lds")
    vDA, vYO, vH = 5, 6, 8
    a(f"v_lshrrev_b32 v{vT}, 4, v{vT1}")
    a(f"v_bfe_u32 v7, v{vT1}, 2, 2")
    a(f"v_lshl_add_u32 v{vDA}, v{vT}, 2, v7")
    a(f"v_mul_u32_u24 v{vDA}, 1280, v{vDA}")
    a(f"v_and_b32 v7, 3, v{vT1}")
    a(f"v_lshl_add_u32 v{vDA}, v7, 3, v{vDA}")
    a(f"v_add_u32 v{vDA}, {L_WD}, v{vDA}")
    a(f"v_and_b32 v7, 15, v{vT1}")
    a(f"v_mul_u32_u24 v{vYO}, 2560, v7")
    a(f"v_lshl_add_u32 v{vYO}, v{vT}, 4, v{vYO}")
    a(f"v_add_u32 v{vYO}, {L_XG}, v{vYO}")
    a("v_cmp_gt_u32 vcc, 2, v7")
    a(f"s_mul_i32 s15, s{sM}, 5120")
    a(f"s_add_u32 s15, s15, {YP_OFF}")
    a("s_mov_b64 s[48:49], vcc")
    a(f"v_lshlrev_b32 v{vT}, 3, v{vT1}")
    a(f"v_add_u32 v{vT}, {L_H}, v{vT}")
    a(f"v_mov_b32 v53, {F_H}")
    a("s_waitcnt vmcnt(0)")
    spin(a, "L_wait_h", 53, 54, 12, 1, 13, sleep=8)
    a(f"ds_read_b64 {vr(vH, 2)}, v{vT}")
    for grp in range(4 if not X("moe_nocomp") else 0):
        for k in range(10):
            a(f"ds_read_b64_tr_b16 {vr(12 + 2 * k, 2)}, v{vDA} offset:{32 * (10 * grp + k)}")
        a("s_waitcnt lgkmcnt(0)")
        if LOWM: a("s_setprio 0")
        for k in range(10):
            if X("down32"):
                a(f"v_mfma_f32_16x16x32_bf16 {vr(52 + 4 * k, 4)}, v[12:15], v[16:19], 0")
            elif not X("down_nomfma"):
                a(f"v_mfma_f32_16x16x16bf16_1k {vr(52 + 4 * k, 4)}, {vr(12 + 2 * k, 2)}, {vr(vH, 2)}, 0")
            if SPACE: a(f"s_nop {SPACE - 1}")
        a("s_nop 7")
        a("s_nop 1")
        if LOWM: a(f"s_setprio {HPRIO}")
        a("s_mov_b64 exec, s[48:49]")
        for k in range(10):
            a(f"ds_write_b128 v{vYO}, {vr(52 + 4 * k, 4)} offset:{64 * (10 * grp + k)}")
        a("s_mov_b64 exec, -1")
        a("s_waitcnt lgkmcnt(0)")
    a(f"v_add_u32 v{vT}, {L_XG}, v{vLANE16}")
    for i in range(5):
        a(f"ds_read_b128 {vr(12 + 4 * i, 4)}, v{vT} offset:{1024 * i}")
    a("s_waitcnt lgkmcnt(0)")
    for i in range(5):
        a(f"s_add_u32 s16, s15, {1024 * i}")
        a(f"buffer_store_dwordx4 {vr(12 + 4 * i, 4)}, v{vLANE16}, {WS}, s16 offen sc1")
    a("s_waitcnt vmcnt(0)")
    a(f"v_mov_b32 v7, {CNT_OFF + 8 * 256}")
    a("v_mov_b32 v8, 1")
    a("s_mov_b64 exec, 1")
    a("global_atomic_add v7, v8, s[4:5]")
    a("s_mov_b64 exec, -1")
    a.label("L_k2_ffn_done")
    ST(a, "ffn_done")
    a(f"v_mov_b32 v53, {F_MOE}")
    a(f"v_mov_b32 v52, 1")
    a("s_waitcnt lgkmcnt(0)")
    a("s_mov_b64 exec, 1")
    a("ds_add_u32 v53, v52")
    a("s_mov_b64 exec, -1")
    spin(a, "L_wait_moe", 53, 54, 12, 3, 13, sleep=8)
    a.label("L_k2_wo_prefetch")
    out_tile_ids(a)
    a(f"s_mul_i32 s12, s{sNT}, 102400")
    a(f"s_add_u32 s12, s12, {WO2_OFF}")
    a(f"s_sub_u32 s13, s{sW}, 9")
    for g in range(7):
        if g == 6:
            a("s_cmp_eq_u32 s13, 2")
            a("s_cbranch_scc1 L_k2_join")
        a(f"s_add_u32 s14, s13, {3 * g}")
        a("s_lshl_b32 s14, s14, 12")
        a(f"s_add_u32 m0, s14, {L_R}")
        a("s_add_u32 s14, s14, s12")
        for j in range(4):
            a(f"buffer_load_dwordx4 v{vLANE16}, {WS}, s14 offen offset:{1024 * j} lds")
    a("s_branch L_k2_join")

sMT, sNT = 44, 45
def out_tile_ids(a):
    a(f"s_bfe_u32 s{sMT}, s2, 0x20001")
    a(f"s_lshl_b32 s12, s{sQB}, 2")
    a(f"s_add_u32 s{sMT}, s{sMT}, s12")
    a(f"s_and_b32 s{sNT}, s2, 1")
    a(f"s_lshl_b32 s{sNT}, s{sNT}, 2")
    a("s_bfe_u32 s12, s2, 0x20003")
    a(f"s_add_u32 s{sNT}, s{sNT}, s12")

def projection(a):
    SRD_X, SRD_OUT = 56, 60
    sB1, sB2, sOBT = 42, 43, 46
    sCAND = 64
    vL16, vL16H, vL16H2 = vLANE16, 9, 3
    vTOK, vG, vT = 2, 8, 4
    vXO, vTOKG, vSTAT, vX = 10, 11, 12, 14
    vACC = 24
    vWF = (44, 64)
    vOF = 84
    a.label("L_k2_join")
    ST(a, "join")
    a("s_load_dwordx2 s[6:7], s[0:1], 0")
    a("s_load_dwordx2 s[36:37], s[0:1], 64")
    a(f"s_add_u32 s38, s4, {CAND_OFF}")
    a("s_addc_u32 s39, s5, 0")
    a(f"s_load_dwordx16 s[{sCAND}:{sCAND+15}], s[38:39], 0")
    a(f"s_load_dwordx16 s[{sCAND+16}:{sCAND+31}], s[38:39], 64")
    out_tile_ids(a)
    a("v_and_b32 v3, 63, v0")
    a("s_waitcnt vmcnt(0)")
    a("s_barrier")
    ST(a, "E1")
    a("s_waitcnt lgkmcnt(0)")
    srd(a, SRD_X, 6, X_BYTES)
    srd(a, SRD_OUT, 36, X_BYTES)
    a(f"s_cmp_eq_u32 s{sW}, 8")
    a("s_cbranch_scc1 L_k2_sync")
    a(f"s_cmp_ge_u32 s{sW}, 4")
    a("s_cbranch_scc1 L_k2_side")
    a(f"v_and_b32 v{vTOK}, 15, v3")
    a(f"v_lshrrev_b32 v{vG}, 4, v3")
    a(f"s_lshl_b32 s12, s{sMT}, 6")
    a(f"s_lshl_b32 s13, s{sW}, 4")
    a("s_add_u32 s12, s12, s13")
    a(f"v_add_u32 v{vTOKG}, s12, v{vTOK}")
    a(f"v_mul_u32_u24 v{vXO}, 1280, v{vTOKG}")
    a(f"v_lshl_add_u32 v{vXO}, v{vG}, 3, v{vXO}")
    a(f"s_mul_i32 s13, s{sNT}, 160")
    a(f"v_add_u32 v{vXO}, s13, v{vXO}")
    a(f"v_lshlrev_b32 v{vT+1}, 3, v{vTOKG}")
    a(f"s_mov_b32 s12, {ST_OFF}")
    a(f"buffer_load_dwordx2 {vr(vSTAT, 2)}, v{vT+1}, {WS}, s12 offen")
    for j in range(5):
        a(f"buffer_load_dwordx2 {vr(vX + 2 * j, 2)}, v{vXO}, s[{SRD_X}:{SRD_X+3}], 0 offen offset:{32 * j}")
    a(f"s_lshl_b32 s12, s{sMT}, 2")
    a(f"s_add_u32 s12, s12, s{sW}")
    a(f"s_mul_i32 s{sOBT}, s12, 20480")
    a(f"s_add_u32 s{sOBT}, s{sOBT}, {OB_OFF}")
    a(f"v_add_u32 v{vL16H}, {L_R}, v{vL16}")
    a(f"v_add_u32 v{vL16H2}, {L_R + 40960}, v{vL16}")
    top2_scalar(a, sCAND, sB1, sB2, 12)
    a(f"s_and_b32 s{sB1}, s{sB1}, 0x7ff")
    a(f"s_and_b32 s{sB2}, s{sB2}, 0x7ff")
    a("s_waitcnt vmcnt(0)")
    a(f"v_add_f32 v{vT}, 1.0, v{vSTAT+1}")
    a(f"v_mul_f32 v{vT+1}, v{vSTAT}, v{vSTAT+1}")
    for j in range(5):
        for i in range(2):
            a(f"v_lshlrev_b32 v{vT+2}, 16, v{vX + 2 * j + i}")
            a(f"v_and_b32 v{vT+3}, 0xffff0000, v{vX + 2 * j + i}")
            a(f"v_fma_f32 v{vACC + 4 * j + 2 * i}, v{vT+2}, v{vT}, -v{vT+1}")
            a(f"v_fma_f32 v{vACC + 4 * j + 2 * i + 1}, v{vT+3}, v{vT}, -v{vT+1}")
    a("s_barrier")
    ST(a, "E2")
    for B in range(5):
        a(f"s_add_u32 s12, s{sOBT}, {B * 4096}")
        for k in range(4):
            a(f"buffer_load_dwordx4 {vr(vOF + 16 * B + 4 * k, 4)}, v{vL16}, {WS}, s12 offen offset:{1024 * k} sc1")
    def reads(st):
        f = vWF[st & 1]
        reg, off = (vL16H, st * 5120) if st < 8 else ((vL16H2, (st - 8) * 5120) if st < 16 else (vL16, (st - 16) * 5120))
        for j in range(5):
            a(f"ds_read_b128 {vr(f + 4 * j, 4)}, v{reg} offset:{off + 1024 * j}")
    def mfmas(st):
        f = vWF[st & 1]
        for j in range(5):
            a(f"v_mfma_f32_16x16x32_bf16 {vr(vACC + 4 * j, 4)}, {vr(f + 4 * j, 4)}, {vr(vOF + 4 * st, 4)}, {vr(vACC + 4 * j, 4)}")
    reads(0)
    for st in range(20):
        if st == 12:
            pass
        if st < 19:
            if st + 1 == 16:
                a("s_barrier")
            reads(st + 1)
        if st % 4 == 0:
            a(f"s_waitcnt vmcnt({16 - 4 * (st // 4)})")
        a(f"s_waitcnt lgkmcnt({5 if st < 19 else 0})")
        mfmas(st)
    ST(a, "gemm")
    a(f"v_lshlrev_b32 v{vT}, 4, v{vG}")
    a(f"v_add_u32 v{vT}, {L_Y}, v{vT}")
    a("s_nop 7")
    for sel, sB in ((0, sB1), (1, sB2)):
        lab = f"L_k2_noupd{sel}"
        a(f"s_lshr_b32 s12, s{sB}, 6")
        a(f"s_cmp_lg_u32 s12, s{sMT}")
        a(f"s_cbranch_scc1 {lab}")
        for j in range(5):
            a(f"ds_read_b128 {vr(vWF[0] + 4 * j, 4)}, v{vT} offset:{320 * sel + 64 * j}")
        a(f"v_cmp_eq_u32 vcc, s{sB}, v{vTOKG}")
        a("s_waitcnt lgkmcnt(0)")
        a("s_nop 1")
        for j in range(5):
            for r in range(4):
                a(f"v_cndmask_b32 v{vWF[0] + 4 * j + r}, 0, v{vWF[0] + 4 * j + r}, vcc")
                a(f"v_add_f32 v{vACC + 4 * j + r}, v{vACC + 4 * j + r}, v{vWF[0] + 4 * j + r}")
        a.label(lab)
    for j in range(5):
        for i in range(2):
            a(f"v_cvt_pk_bf16_f32 v{vX + 2 * j + i}, v{vACC + 4 * j + 2 * i}, v{vACC + 4 * j + 2 * i + 1}")
        a(f"buffer_store_dwordx2 {vr(vX + 2 * j, 2)}, v{vXO}, s[{SRD_OUT}:{SRD_OUT+3}], 0 offen offset:{32 * j}")
    ST(a, "stores")
    if ST.on:
        a("s_waitcnt vmcnt(0)")
    ST(a, "end")
    ST.store(a)
    a("s_endpgm")

    a.label("L_k2_sync")
    ST(a, "E1b")
    a(f"s_lshl_b32 s12, s{sQB}, 8")
    a(f"s_add_u32 s12, s12, {CNT_OFF}")
    a("v_mov_b32 v4, s12")
    a("v_mov_b32 v5, 1")
    a("s_mov_b64 exec, 1")
    a("global_atomic_add v6, v4, v5, s[4:5] sc0")
    a("s_waitcnt vmcnt(0)")
    a("v_readfirstlane_b32 s14, v6")
    a(f"s_mov_b32 s13, {SPIN_MAX}")
    a("s_cmp_ge_u32 s14, 31")
    a("s_cbranch_scc1 L_k2_poll_done")
    for r in range(3):
        a(f"global_load_dword v{8 + r}, v4, s[4:5] sc1")
        a("s_sleep 2")
    a.label("L_k2_poll")
    for r in range(4):
        a(f"global_load_dword v{8 + (r + 3) % 4}, v4, s[4:5] sc1")
        a("s_waitcnt vmcnt(3)")
        a(f"v_readfirstlane_b32 s14, v{8 + r}")
        a("s_sub_u32 s13, s13, 1")
        a("s_cbranch_scc1 L_k2_poll_done")
        a("s_cmp_ge_u32 s14, 32")
        a("s_cbranch_scc1 L_k2_poll_done")
        a("s_sleep 2")
    a("s_branch L_k2_poll")
    a.label("L_k2_poll_done")
    a("s_mov_b64 exec, -1")
    ST(a, "polled")
    a("s_barrier")
    a("s_barrier")
    ST.store(a)
    if os.environ.get("DBG_SUMMARY"):
        summary(a)
    a("s_endpgm")

    a.label("L_k2_side")
    a(f"s_cmp_ge_u32 s{sW}, 8")
    a("s_cbranch_scc1 L_k2_side_b")
    a(f"s_sub_u32 s13, s{sW}, 4")
    a(f"s_mul_i32 s12, s{sNT}, 102400")
    a(f"s_add_u32 s12, s12, {WO2_OFF + 16 * 5120}")
    a("s_mul_i32 s14, s13, 5120")
    a("s_add_u32 s12, s12, s14")
    a("s_mov_b32 m0, s14")
    a("s_nop 0")
    for j in range(4):
        a(f"buffer_load_dwordx4 v{vL16}, {WS}, s12 offen offset:{1024 * j} lds")
    a("s_add_u32 m0, s14, 4096")
    a("s_add_u32 s12, s12, 4096")
    a(f"buffer_load_dwordx4 v{vL16}, {WS}, s12 offen lds")
    top2_scalar(a, sCAND, sB1, sB2, 12)
    a(f"s_and_b32 s{sB1}, s{sB1}, 0x7ff")
    a(f"s_and_b32 s{sB2}, s{sB2}, 0x7ff")
    a(f"s_lshr_b32 s12, s{sB1}, 6")
    a(f"s_lshr_b32 s13, s{sB2}, 6")
    a(f"s_cmp_eq_u32 s12, s{sMT}")
    a("s_cbranch_scc1 L_k2_routed")
    a(f"s_cmp_eq_u32 s13, s{sMT}")
    a("s_cbranch_scc1 L_k2_routed")
    a("s_waitcnt vmcnt(0)")
    a("s_barrier")
    a("s_barrier")
    ST.store(a)
    a("s_endpgm")
    a.label("L_k2_routed")
    routed(a, sB1, sB2)
    a.label("L_k2_side_b")
    a("s_barrier")
    a("s_barrier")
    ST.store(a)
    a("s_endpgm")

def routed(a, sB1, sB2):
    vT, vY = 4, 20
    a(f"v_mov_b32 v7, {F_ALL}")
    spin(a, "L_rt_all", 7, 6, 14, 1, 15)
    a(f"v_subrev_u32 v{vT}, 256, v0")
    a(f"v_mul_u32_u24 v{vT+1}, 52429, v{vT}")
    a(f"v_lshrrev_b32 v{vT+1}, 20, v{vT+1}")
    a(f"v_mul_u32_u24 v{vT+2}, 20, v{vT+1}")
    a(f"v_sub_u32 v{vT+2}, v{vT}, v{vT+2}")
    a(f"v_mul_u32_u24 v8, {8 * 5120}, v{vT+1}")
    a(f"v_lshl_add_u32 v8, v{vT+2}, 4, v8")
    a(f"v_mul_u32_u24 v9, 320, v{vT+1}")
    a(f"v_lshl_add_u32 v9, v{vT+2}, 4, v9")
    a(f"v_add_u32 v9, {L_RED}, v9")
    a(f"v_lshlrev_b32 v10, 2, v{vT}")
    a(f"v_mov_b32 v11, {F_RT}")
    a("v_mov_b32 v12, 1")
    for sel, sB in ((0, sB1), (1, sB2)):
        lab = f"L_k2_rt_skip{sel}"
        a(f"s_lshr_b32 s12, s{sB}, 6")
        a(f"s_cmp_lg_u32 s12, s{sMT}")
        a(f"s_cbranch_scc1 {lab}")
        a(f"s_lshl_b32 s12, s{sB}, 2")
        a("s_add_u32 s38, s4, s12")
        a("s_addc_u32 s39, s5, 0")
        a(f"s_add_u32 s38, s38, {R_OFF}")
        a("s_addc_u32 s39, s39, 0")
        a("s_load_dword s40, s[38:39], 0")
        a(f"s_mul_i32 s12, s{sNT}, 320")
        a(f"s_add_u32 s12, s12, {YP_OFF + sel * 2560}")
        a(f"v_cmp_gt_u32 vcc, 240, v{vT}")
        a("s_and_saveexec_b64 s[48:49], vcc")
        for i in range(8):
            a(f"s_add_u32 s13, s12, {i * 5120}")
            a(f"buffer_load_dwordx4 {vr(vY + 4 * i, 4)}, v8, {WS}, s13 offen sc1")
        a("s_waitcnt vmcnt(0)")
        for i in range(1, 8):
            for r in range(4):
                a(f"v_add_f32 v{vY + r}, v{vY + r}, v{vY + 4 * i + r}")
        a(f"ds_write_b128 v9, {vr(vY, 4)}")
        a("s_mov_b64 exec, s[48:49]")
        a("s_waitcnt lgkmcnt(0)")
        a("s_mov_b64 exec, 1")
        a(f"ds_add_u32 v11, v12 offset:{8 * sel}")
        a("s_mov_b64 exec, -1")
        a(f"v_add_u32 v13, {8 * sel}, v11")
        spin(a, f"L_rt_a{sel}", 13, 14, 14, 4, 15)
        a(f"v_add_u32 v13, {L_RED}, v10")
        a(f"v_cmp_gt_u32 vcc, 80, v{vT}")
        a("s_and_saveexec_b64 s[48:49], vcc")
        a(f"s_cbranch_execz L_k2_rt_c{sel}")
        for p in range(12):
            a(f"ds_read_b32 v{vY + p}, v13 offset:{320 * p}")
        a("v_mov_b32 v15, s40")
        a(f"v_mul_f32 v15, {hex(f2u(-LOG2E))}, v15")
        a("v_exp_f32 v15, v15")
        a("s_nop 0")
        a("v_add_f32 v15, 1.0, v15")
        a("v_rcp_f32 v15, v15")
        a("s_waitcnt lgkmcnt(0)")
        for p in range(1, 12):
            a(f"v_add_f32 v{vY}, v{vY}, v{vY + p}")
        a(f"v_mul_f32 v{vY}, v{vY}, v15")
        a(f"v_add_u32 v13, {L_Y + 320 * sel}, v10")
        a(f"ds_write_b32 v13, v{vY}")
        a.label(f"L_k2_rt_c{sel}")
        a("s_mov_b64 exec, s[48:49]")
        a("s_waitcnt lgkmcnt(0)")
        a("s_mov_b64 exec, 1")
        a(f"ds_add_u32 v11, v12 offset:{8 * sel + 4}")
        a("s_mov_b64 exec, -1")
        a(f"v_add_u32 v13, {8 * sel + 4}, v11")
        spin(a, f"L_rt_b{sel}", 13, 14, 14, 4, 15)
        a.label(lab)
    a("s_waitcnt vmcnt(0)")

def emit(a):
    entry(a)
    attention(a)
    helpers(a)
    projection(a)
    a.label("L_k2_exit")
    a("s_endpgm")
    a.label("L_k2_end")


def summary(a):
    import k1
    a("s_mov_b64 exec, -1")
    a("s_cmp_lg_u32 s2, 0")
    a("s_cbranch_scc1 L_sum_end")
    a("s_load_dwordx2 s[34:35], s[0:1], 72")
    a("s_waitcnt lgkmcnt(0)")
    a(f"s_mov_b32 s{SRD_WS + 2}, 0x2000000")
    a("v_and_b32 v3, 63, v0")
    names = ["entry", "B0", "loopend", "e_bar", "stores", "end"]
    a("v_mov_b32 v40, -1")
    for i in range(1, 8):
        a(f"v_mov_b32 v{40 + i}, 0")
    for q in range(4):
        a(f"v_add_u32 v4, {64 * q}, v3")
        a("v_lshlrev_b32 v5, 11, v4")
        a(f"s_mov_b32 s12, {PROF_OFF + 64}")
        for i, nm in enumerate(names):
            a(f"buffer_load_dword v{10 + i}, v5, {WS}, s12 offen offset:{4 * k1.ST.names.index(nm)}")
        a(f"buffer_load_dword v16, v5, {WS}, s12 offen offset:{4 * k1.ST.names.index('e_lds')}")
        a("s_waitcnt vmcnt(0)")
        a("v_and_b32 v6, 0xe4, v4")
        a("v_cmp_eq_u32 vcc, 0xe4, v6")
        a("s_nop 1")
        a("v_min_u32 v40, v40, v10")
        for i in range(1, 6):
            a(f"v_cndmask_b32 v{10 + i}, v{10 + i}, 0, vcc")
            a(f"v_max_u32 v{40 + i}, v{40 + i}, v{10 + i}")
        a("v_cndmask_b32 v16, 0, v16, vcc")
        a("v_max_u32 v46, v46, v16")
    vals = [40, 41, 42, 43, 44, 45, 46]
    for x in (1, 2, 4, 8, 16, 32):
        a(f"v_xor_b32 v6, {x}, v3")
        a("v_lshlrev_b32 v6, 2, v6")
        for r in vals:
            a(f"ds_bpermute_b32 v20, v6, v{r}")
            a("s_waitcnt lgkmcnt(0)")
            a(f"v_{'min' if r == 40 else 'max'}_u32 v{r}, v{r}, v20")
    for k_, nm in enumerate(["entry", "join", "E1", "polled"]):
        a(f"v_readlane_b32 s12, v{ST.vt + 1}, {ST.names.index(nm)}")
        a("s_nop 3")
        a(f"v_mov_b32 v{50 + k_}, s12")
    a("s_memrealtime s[12:13]")
    a("s_waitcnt lgkmcnt(0)")
    a("v_mov_b32 v54, s12")
    a("v_mov_b32 v7, 0")
    a("s_mov_b64 exec, 1")
    for k_, r in enumerate([41, 42, 43, 44, 45, 46, 50, 51, 52, 53, 54]):
        a(f"v_sub_u32 v20, v{r}, v40")
        a(f"global_store_dword v7, v20, s[34:35] offset:{4 * k_}")
    a("s_waitcnt vmcnt(0)")
    a.label("L_sum_end")
```

```python
from common import *
from k2moe import top2_scalar
import os

NAME = "attn_proj_kernel"
LDS = 163840
VGPRS = 168
BLOCK = 768
GRID = 256
NMOE = 96

def X(flag):
    return flag in os.environ.get("K2_EXP", "").split(",")

ST = StampsLane("k2", 20, 8, 164)

L_RING = 0
L_R = 61440
L_WG, L_WU, L_WD = L_R, L_R + 20480, L_R + 40960
L_XG, L_XU = L_R + 61440, L_R + 61440 + 3840
L_U, L_H = L_R + 69120, L_R + 69120 + 1024
L_MISC = 143360
F_LAND, F_FREE, F_U, F_H, F_MOE, F_ALL = L_MISC, L_MISC + 4, L_MISC + 8, L_MISC + 12, L_MISC + 16, L_MISC + 20
F_RT = L_MISC + 24
F_FREEC = L_MISC + 64
L_RED, L_Y = L_MISC + 1024, L_MISC + 1024 + 3840
SPIN_MAX = 1 << 20
EARLY_B0 = os.environ.get("K2_EARLYB0", "1") == "1"
SPACE = int(os.environ.get("K2_SPACE", "0"))
HPRIO = int(os.environ.get("K2_HPRIO", "3"))
LOWM = int(os.environ.get("K2_LOWM", "0"))

vLANE16, vT0, vT1 = 1, 2, 3
vKA, vKB, vV, vFL = 4, 5, 6, 7
vQ1, vQ2 = 10, 20
vFLAG, vONE = 16, 17
vS = (32, 48)
vO = 64
vP = 80
vKAf = (88, 92)
vKBf = (24, 28)
vVf = ((100, 104), (108, 112))
vTMP = 116

sW, sHEAD, sKV, sQ, sOB, sOM = 20, 21, 22, 23, 24, 25
sVMASK = 26
sLO = 28
sT, sT2, sQB = 30, 31, 32
SRD_WS = 8
WS = f"s[{SRD_WS}:{SRD_WS+3}]"

def lds_tile(t):
    return ((t >> 3) % 3) * 20480 + (t & 7) * 2560

def spin(a, name, vaddr, vtmp, stmp, target, cnt, sleep=1):
    a(f"s_mov_b32 s{cnt}, {SPIN_MAX}")
    a.label(f"{name}_loop")
    a(f"ds_read_b32 v{vtmp}, v{vaddr}")
    a("s_waitcnt lgkmcnt(0)")
    a(f"v_readfirstlane_b32 s{stmp}, v{vtmp}")
    a(f"s_sub_u32 s{cnt}, s{cnt}, 1")
    a(f"s_cbranch_scc1 {name}_done")
    a(f"s_cmp_ge_u32 s{stmp}, {target}")
    a(f"s_cbranch_scc1 {name}_done")
    a(f"s_sleep {sleep}")
    a(f"s_branch {name}_loop")
    a.label(f"{name}_done")

def mfma_s1(a, dst, buf):
    a(f"v_mfma_f32_32x32x16_bf16 {vr(dst, 16)}, {vr(vKAf[buf], 4)}, {vr(vQ1, 4)}, 0")
def mfma_s2(a, dst, buf):
    if X("nos2"): return
    if not X("s2x16"):
        a(f"v_mfma_f32_32x32x8bf16_1k {vr(dst, 16)}, {vr(vKBf[buf], 2)}, {vr(vQ2, 2)}, {vr(dst, 16)}")
    else:
        a(f"v_mfma_f32_32x32x16_bf16 {vr(dst, 16)}, {vr(vKBf[buf], 4)}, {vr(vQ2, 4)}, {vr(dst, 16)}")
def mfma_pv(a, buf, t):
    a(f"v_mfma_f32_32x32x16_bf16 {vr(vO, 16)}, {vr(vVf[buf][t], 4)}, {vr(vP + 4 * t, 4)}, {vr(vO, 16)}")

def read_ka(a, t, buf):
    a(f"ds_read_b128 {vr(vKAf[buf], 4)}, v{vKA} offset:{lds_tile(t)}")
def read_kb(a, t, buf):
    a(f"ds_read_b64 {vr(vKBf[buf], 2)}, v{vKB} offset:{lds_tile(t)}")
def read_v(a, t, part):
    a(f"ds_read_b128 {vr(vVf[t & 1][part], 4)}, v{vV} offset:{lds_tile(t) + 640 * part}")

def tile_body(a, t):
    sc, sn = vS[t & 1], vS[(t + 1) & 1]
    last = t == 63
    ex = lambda r: a(f"v_exp_f32 v{sc + r}, v{sc + r}")
    cv = lambda i: a(f"v_cvt_pk_bf16_f32 v{vP + i}, v{sc + 2 * i}, v{sc + 2 * i + 1}")
    ex(0)
    a("s_setprio 1")
    ex(1)
    if t > 0:
        mfma_pv(a, (t - 1) & 1, 1)
    for r in range(2, 6):
        ex(r)
    if not last:
        mfma_s1(a, sn, (t + 1) & 1)
    ex(6); ex(7)
    for i in range(4):
        cv(i)
    if not X("neworder"):
        if not last:
            mfma_s2(a, sn, (t + 1) & 1)
        for r in range(8, 12):
            ex(r)
        mfma_pv(a, t & 1, 0)
        for r in range(12, 16):
            ex(r)
    else:
        ex(8); ex(9)
        mfma_pv(a, t & 1, 0)
        for r in range(10, 14):
            ex(r)
        if not last:
            mfma_s2(a, sn, (t + 1) & 1)
        ex(14); ex(15)
    for i in range(4, 8):
        cv(i)
    a("s_setprio 0")
    a("s_waitcnt lgkmcnt(0)")
    if t % 8 == 5 and t < 56:
        c = t // 8 + 1
        a(f"v_readfirstlane_b32 s{sT}, v{vFLAG}")
        a(f"s_cmp_ge_u32 s{sT}, {c}")
        a(f"s_cbranch_scc1 L_land_{c}_skip")
        if ST.on:
            a("s_memtime s[90:91]")
            a("s_waitcnt lgkmcnt(0)")
        spin(a, f"L_land_{c}", vFL, vFLAG, sT, c, sT2)
        if ST.on:
            a("s_memtime s[88:89]")
            a("s_waitcnt lgkmcnt(0)")
            a("s_sub_u32 s88, s88, s90")
            a("s_add_u32 s87, s87, s88")
        a.label(f"L_land_{c}_skip")
    if t % 8 == 7 and t < 40:
        a("s_mov_b64 exec, 1")
        a(f"ds_add_u32 v{vFL}, v{vONE} offset:{F_FREEC - F_LAND + 4 * (t // 8)}")
        a("s_mov_b64 exec, -1")
    if t + 3 <= 63:
        if not X("noka"): read_ka(a, t + 3, (t + 1) & 1)
        a(f"s_mov_b64 exec, s[{sLO}:{sLO+1}]")
        if not X("nokb"): read_kb(a, t + 3, (t + 1) & 1)
    if t + 1 <= 63:
        a(f"s_mov_b64 exec, s[{sVMASK}:{sVMASK+1}]")
        if t + 2 <= 63 and not X("nov0"):
            read_v(a, t + 2, 0)
        if not X("nov1"): read_v(a, t + 1, 1)
        a("s_mov_b64 exec, -1")
    if t % 8 == 4 and t < 56:
        a(f"ds_read_b32 v{vFLAG}, v{vFL}")
    if t == 62:
        a("s_nop 1")
    if last:
        a("s_nop 1")
        mfma_pv(a, t & 1, 1)

def row_max(a, s, dst, tmp):
    a(f"v_max3_f32 v{dst}, v{s}, v{s+1}, v{s+2}")
    for r in range(3, 15, 2):
        a(f"v_max3_f32 v{dst}, v{dst}, v{s+r}, v{s+r+1}")
    a(f"v_max_f32 v{dst}, v{dst}, v{s+15}")
    a(f"v_mov_b32 v{tmp}, v{dst}")
    a("s_nop 1")
    a(f"v_permlane32_swap_b32 v{dst}, v{tmp}")
    a("s_nop 1")
    a(f"v_max_f32 v{dst}, v{dst}, v{tmp}")

def entry(a):
    kernel_header(a, NAME)
    ST(a, "entry")
    a(f"s_cmp_ge_u32 s2, {GRID}")
    a("s_cbranch_scc1 L_k2_exit")
    a("s_load_dwordx2 s[4:5], s[0:1], 80")
    a(f"v_lshrrev_b32 v{vT0}, 6, v0")
    a(f"v_and_b32 v{vT1}, 63, v0")
    a(f"v_readfirstlane_b32 s{sW}, v{vT0}")
    a("s_and_b32 s12, s2, 7")
    a("s_lshl_b32 s12, s12, 2")
    a("s_bfe_u32 s13, s2, 0x20003")
    a(f"s_or_b32 s{sHEAD}, s12, s13")
    a(f"s_lshr_b32 s{sQB}, s2, 5")
    a(f"s_mul_i32 s{sKV}, s{sHEAD}, {64 * 2560}")
    a(f"s_add_u32 s{sKV}, s{sKV}, {KV_OFF}")
    a(f"v_lshlrev_b32 v{vLANE16}, 4, v{vT1}")
    a(f"s_cmp_ge_u32 s{sW}, 8")
    a("s_cbranch_scc1 L_k2_helper")

def attention(a):
    a(f"s_lshl_b32 s14, s{sQB}, 3")
    a(f"s_add_u32 s14, s14, s{sW}")
    a(f"s_lshl_b32 s15, s{sHEAD}, 6")
    a("s_add_u32 s15, s15, s14")
    a(f"s_mul_i32 s{sQ}, s15, 1280")
    if QB_OFF:
        a(f"s_add_u32 s{sQ}, s{sQ}, {QB_OFF}")
    a(f"s_mul_i32 s16, s{sW}, 2560")
    a(f"s_add_u32 s17, s{sKV}, s16")
    a(f"s_mov_b32 s{sLO}, -1")
    a(f"s_mov_b32 s{sLO+1}, 0")
    a(f"v_and_b32 v{vT0}, 31, v{vT1}")
    a(f"v_lshlrev_b32 v{vTMP}, 3, v{vT0}")
    for r in range(4):
        a(f"v_mov_b32 v{vQ2 + r}, 0")
    a("s_waitcnt lgkmcnt(0)")
    srd(a, SRD_WS, 4, WS_SRD)
    a("s_mov_b32 m0, s16")
    a("s_nop 0")
    a(f"buffer_load_dwordx4 v{vLANE16}, {WS}, s17 offen lds")
    a(f"buffer_load_dwordx4 v{vLANE16}, {WS}, s17 offen offset:1024 lds")
    a(f"s_mov_b64 exec, s[{sLO}:{sLO+1}]")
    a(f"buffer_load_dwordx4 v{vLANE16}, {WS}, s17 offen offset:2048 lds")
    a(f"buffer_load_dwordx2 {vr(vQ2, 2)}, v{vTMP}, {WS}, s{sQ} offen offset:1024")
    a("s_mov_b64 exec, -1")
    a(f"buffer_load_dwordx4 {vr(vQ1, 4)}, v{vLANE16}, {WS}, s{sQ} offen")
    a(f"s_mul_i32 s{sOB}, s14, 40960")
    a(f"s_add_u32 s{sOB}, s{sOB}, {OB_OFF}")
    a(f"s_lshr_b32 s15, s{sHEAD}, 3")
    a("s_mul_i32 s15, s15, 5120")
    a(f"s_add_u32 s{sOB}, s{sOB}, s15")
    a(f"s_bfe_u32 s15, s{sHEAD}, 0x20001")
    a("s_lshl_b32 s15, s15, 10")
    a(f"s_and_b32 s16, s{sHEAD}, 1")
    a("s_lshl_b32 s16, s16, 9")
    a("s_add_u32 s15, s15, s16")
    a(f"s_add_u32 s{sOM}, s{sOB}, s15")
    a(f"s_and_b32 s15, s{sHEAD}, 3")
    a("s_lshl_b32 s15, s15, 8")
    a(f"s_bfe_u32 s16, s{sHEAD}, 0x10002")
    a("s_lshl_b32 s16, s16, 3")
    a("s_add_u32 s15, s15, s16")
    a(f"s_add_u32 s{sOB}, s{sOB}, s15")
    a(f"s_add_u32 s{sOB}, s{sOB}, 4096")
    a(f"s_mov_b32 s{sVMASK}, 0x000fffff")
    a(f"s_mov_b32 s{sVMASK+1}, 0x000fffff")
    a(f"v_mov_b32 v{vKA}, v{vLANE16}")
    a(f"v_add_u32 v{vKB}, 1024, v{vTMP}")
    a(f"v_lshrrev_b32 v{vTMP+1}, 5, v{vT1}")
    a(f"v_mul_u32_u24 v{vTMP+1}, 320, v{vTMP+1}")
    a(f"v_lshl_add_u32 v{vTMP+1}, v{vT0}, 4, v{vTMP+1}")
    a(f"v_add_u32 v{vV}, 1280, v{vTMP+1}")
    a(f"v_mov_b32 v{vFL}, {F_LAND}")
    a(f"v_mov_b32 v{vONE}, 1")
    a(f"v_and_b32 v{vTMP+1}, 27, v{vT0}")
    a(f"v_cmp_eq_u32 vcc, 24, v{vTMP+1}")
    a(f"v_mov_b32 v{vTMP+2}, 0x3f803f80")
    a("s_nop 1")
    a(f"v_cndmask_b32 v{vTMP+1}, 0, v{vTMP+2}, vcc")
    for b in range(2):
        for t in range(2):
            for r in range(4):
                a(f"v_mov_b32 v{vVf[b][t] + r}, v{vTMP+1}")
    for r in range(16):
        a(f"v_mov_b32 v{vO + r}, 0")
    a(f"v_cmp_le_u32 vcc, 32, v{vT1}")
    a(f"v_mov_b32 v{vTMP+2}, 0x3f80")
    a("s_nop 1")
    for b in range(2):
        a(f"v_cndmask_b32 v{vKBf[b]}, 0, v{vTMP+2}, vcc")
        for r in range(1, 4):
            a(f"v_mov_b32 v{vKBf[b] + r}, 0")
    a("s_waitcnt vmcnt(0)")
    a("s_barrier")
    ST(a, "B0")
    read_ka(a, 0, 0)
    read_ka(a, 1, 1)
    a(f"s_mov_b64 exec, s[{sLO}:{sLO+1}]")
    read_kb(a, 0, 0)
    read_kb(a, 1, 1)
    a(f"s_mov_b64 exec, s[{sVMASK}:{sVMASK+1}]")
    read_v(a, 0, 0); read_v(a, 0, 1); read_v(a, 1, 0)
    a("s_mov_b64 exec, -1")
    a("s_waitcnt lgkmcnt(3)")
    mfma_s1(a, vS[0], 0)
    a("s_nop 11")
    mfma_s2(a, vS[0], 0)
    a("s_nop 15")
    a("s_nop 3")
    row_max(a, vS[0], vTMP, vTMP + 1)
    a(f"v_sub_f32 v{vTMP}, 0, v{vTMP}")
    a(f"v_cvt_pk_bf16_f32 v{vTMP}, v{vTMP}, 0")
    a(f"v_cmp_le_u32 vcc, 32, v{vT1}")
    a("s_nop 1")
    a(f"v_cndmask_b32 v{vQ2}, v{vQ2}, v{vTMP}, vcc")
    a("s_nop 1")
    mfma_s1(a, vS[0], 0)
    a("s_nop 11")
    mfma_s2(a, vS[0], 0)
    read_ka(a, 2, 0)
    a(f"s_mov_b64 exec, s[{sLO}:{sLO+1}]")
    read_kb(a, 2, 0)
    a("s_mov_b64 exec, -1")
    a("s_waitcnt lgkmcnt(2)")
    a("s_nop 15")
    a("s_nop 3")
    if ST.on:
        a("s_mov_b32 s87, 0")
    for t in range(64):
        if t in (0, 8, 32, 56):
            ST(a, f"t{t}")
        tile_body(a, t)
    ST(a, "loopend")
    if ST.on:
        a(f"v_writelane_b32 v{ST.vt}, s87, 15")
    a("s_nop 15")
    a("s_nop 3")
    a(f"v_mov_b32 v{vTMP}, v{vO + 12}")
    for r in range(12):
        a(f"v_fma_f32 v{vTMP}, v{vO + r}, 0, v{vTMP}")
    a(f"v_mov_b32 v{vTMP+1}, {hex(f2u(2.0 ** 100))}")
    a(f"v_cmp_nlt_f32 vcc, v{vTMP}, v{vTMP+1}")
    a("s_nop 4")
    a("s_cbranch_vccz L_attn_store")
    safe_path(a)
    a.label("L_attn_store")
    a(f"v_rcp_f32 v{vTMP}, v{vO + 12}")
    a("s_nop 1")
    for r in range(12):
        a(f"v_mul_f32 v{vO + r}, v{vO + r}, v{vTMP}")
    for i in range(6):
        a(f"v_cvt_pk_bf16_f32 v{vP + i}, v{vO + 2 * i}, v{vO + 2 * i + 1}")
    a(f"v_and_b32 v{vTMP+1}, 15, v0")
    a(f"v_lshlrev_b32 v{vTMP+1}, 4, v{vTMP+1}")
    a(f"v_bfe_u32 v{vTMP+2}, v0, 4, 1")
    a(f"v_mul_u32_u24 v{vTMP+2}, 20480, v{vTMP+2}")
    a(f"v_add_u32 v{vTMP+1}, v{vTMP+1}, v{vTMP+2}")
    a(f"v_bfe_u32 v{vTMP+2}, v0, 5, 1")
    a(f"v_lshl_add_u32 v{vTMP+2}, v{vTMP+2}, 8, v{vTMP+1}")
    a(f"buffer_store_dwordx4 {vr(vP, 4)}, v{vTMP+2}, {WS}, s{sOM} offen sc1")
    a(f"s_mov_b64 exec, s[{sLO}:{sLO+1}]")
    a(f"buffer_store_dwordx2 {vr(vP + 4, 2)}, v{vTMP+1}, {WS}, s{sOB} offen sc1")
    a("s_mov_b64 exec, -1")
    a("s_branch L_k2_join")

def safe_path(a):
    vM, vMN, vAL = vTMP, vTMP + 1, vTMP + 2
    vA2, vA3 = vTMP + 5, vTMP + 6
    s = vS[0]
    a(f"v_and_b32 v{vA2}, 31, v0")
    a(f"v_lshlrev_b32 v{vA2}, 3, v{vA2}")
    a(f"v_mov_b32 v{vA3}, v{vV}")
    a(f"v_mov_b32 v{vM}, 0xff7fffff")
    a(f"v_and_b32 v{vAL}, 63, v0")
    a(f"v_cmp_gt_u32 vcc, 32, v{vAL}")
    a("s_nop 1")
    a(f"v_cndmask_b32 v{vQ2}, 0, v{vQ2}, vcc")
    for r in range(16):
        a(f"v_mov_b32 v{vO + r}, 0")
    a(f"s_mov_b32 s{sT}, s{sKV}")
    a("s_mov_b32 s15, 64")
    a.label("L_safe_loop")
    a(f"buffer_load_dwordx4 {vr(vKAf[0], 4)}, v{vLANE16}, {WS}, s{sT} offen")
    a(f"s_mov_b64 exec, s[{sLO}:{sLO+1}]")
    a(f"buffer_load_dwordx2 {vr(vKBf[0], 2)}, v{vA2}, {WS}, s{sT} offen offset:1024")
    a(f"s_mov_b64 exec, s[{sVMASK}:{sVMASK+1}]")
    a(f"buffer_load_dwordx4 {vr(vVf[0][0], 4)}, v{vA3}, {WS}, s{sT} offen")
    a(f"buffer_load_dwordx4 {vr(vVf[0][1], 4)}, v{vA3}, {WS}, s{sT} offen offset:640")
    a("s_mov_b64 exec, -1")
    a("s_waitcnt vmcnt(0)")
    mfma_s1(a, s, 0)
    a("s_nop 11")
    mfma_s2(a, s, 0)
    a("s_nop 15")
    a("s_nop 3")
    row_max(a, s, vMN, vAL)
    a(f"v_max_f32 v{vMN}, v{vMN}, v{vM}")
    a(f"v_sub_f32 v{vAL}, v{vM}, v{vMN}")
    a(f"v_exp_f32 v{vAL}, v{vAL}")
    a(f"v_mov_b32 v{vM}, v{vMN}")
    for r in range(16):
        a(f"v_sub_f32 v{s + r}, v{s + r}, v{vMN}")
    for r in range(16):
        a(f"v_exp_f32 v{s + r}, v{s + r}")
    for r in range(16):
        a(f"v_mul_f32 v{vO + r}, v{vO + r}, v{vAL}")
    for i in range(8):
        a(f"v_cvt_pk_bf16_f32 v{vP + i}, v{s + 2 * i}, v{s + 2 * i + 1}")
    a("s_nop 1")
    mfma_pv(a, 0, 0)
    mfma_pv(a, 0, 1)
    a(f"s_add_u32 s{sT}, s{sT}, 2560")
    a("s_sub_u32 s15, s15, 1")
    a("s_nop 15")
    a("s_nop 3")
    a("s_cmp_lg_u32 s15, 0")
    a("s_cbranch_scc1 L_safe_loop")

def helpers(a):
    a.label("L_k2_helper")
    a(f"s_setprio {HPRIO}")
    a("s_load_dwordx2 s[6:7], s[0:1], 0")
    a("s_load_dwordx4 s[36:39], s[0:1], 40")
    a("s_load_dwordx2 s[40:41], s[0:1], 56")
    a("s_waitcnt lgkmcnt(0)")
    srd(a, SRD_WS, 4, WS_SRD)
    a(f"s_cmp_lg_u32 s{sW}, 8")
    a("s_cbranch_scc1 L_k2_ffn")
    ring_loader(a)
    ffn(a)

def ring_loader(a):
    vF, vX = 4, 5
    a(f"v_lshlrev_b32 v{vF}, 2, v{vT1}")
    a(f"v_add_u32 v{vF}, {L_MISC}, v{vF}")
    a(f"v_mov_b32 v{vX}, 0")
    a(f"ds_write_b32 v{vF}, v{vX}")
    a(f"v_mov_b32 v{vF}, {F_LAND}")
    a("s_waitcnt lgkmcnt(0)")
    a("s_barrier")
    def chunk(c):
        for i in range(5):
            a(f"s_mov_b32 m0, {(c % 3) * 20480 + i * 4096}")
            a(f"s_add_u32 s{sT}, s{sKV}, {c * 20480 + i * 4096}")
            for j in range(4):
                a(f"buffer_load_dwordx4 v{vLANE16}, {WS}, s{sT} offen offset:{1024 * j} lds")
    def landed(c):
        a(f"v_mov_b32 v{vX}, {c}")
        a(f"ds_write_b32 v{vF}, v{vX}")
    chunk(1); chunk(2)
    a("s_waitcnt vmcnt(20)")
    landed(1)
    a("s_waitcnt vmcnt(0)")
    landed(2)
    for c in range(3, 8):
        a(f"v_mov_b32 v6, {F_FREEC + 4 * (c - 3)}")
        spin(a, f"L_free_{c}", 6, 7, sT, 8, sT2, sleep=6)
        chunk(c)
        a("s_waitcnt vmcnt(0)")
        landed(c)
    a(f"s_add_u32 s38, s4, {CAND_OFF}")
    a("s_addc_u32 s39, s5, 0")
    a("s_load_dwordx16 s[64:79], s[38:39], 0")
    a("s_load_dwordx16 s[80:95], s[38:39], 64")
    out_tile_ids(a)
    a("s_waitcnt lgkmcnt(0)")
    top2_scalar(a, 64, 42, 43, 12)
    a("s_bfe_u32 s12, s42, 0x50006")
    a("s_bfe_u32 s13, s43, 0x50006")
    a(f"s_cmp_eq_u32 s12, s{sMT}")
    a("s_cbranch_scc1 L_k2_watch")
    a(f"s_cmp_eq_u32 s13, s{sMT}")
    a("s_cbranch_scc0 L_k2_join")
    a.label("L_k2_watch")
    a(f"v_mov_b32 v7, {CNT_OFF + 8 * 256}")
    a(f"s_mov_b32 s13, {SPIN_MAX}")
    a.label("L_k2_poll_moe")
    a("global_load_dword v6, v7, s[4:5] sc1")
    a("s_waitcnt vmcnt(0)")
    a("v_readfirstlane_b32 s14, v6")
    a("s_sub_u32 s13, s13, 1")
    a("s_cbranch_scc1 L_k2_poll_moe_done")
    a(f"s_cmp_ge_u32 s14, {NMOE}")
    a("s_cbranch_scc1 L_k2_poll_moe_done")
    a("s_sleep 8")
    a("s_branch L_k2_poll_moe")
    a.label("L_k2_poll_moe_done")
    a(f"v_mov_b32 v6, {F_ALL}")
    a("v_mov_b32 v7, 1")
    a("ds_write_b32 v6, v7")
    a("s_waitcnt lgkmcnt(0)")
    a("s_branch L_k2_join")

def slice_index(a):
    a("s_and_b32 s33, s2, 7")
    a("s_mul_i32 s33, s33, 12")
    a("s_lshr_b32 s12, s2, 3")
    a("s_add_u32 s33, s33, s12")

def ffn(a):
    SRD_X, SRD_W = 56, 60
    sM, sB1, sB2, sU = 33, 42, 43, 44
    sCAND = 64
    vT, vA, vB = 4, 5, 6
    a.label("L_k2_ffn")
    if EARLY_B0:
        a("s_barrier")
    a(f"s_cmp_ge_u32 s2, {NMOE if not X('nomoe') else 0}")
    a("s_cbranch_scc1 L_k2_no_ffn")
    slice_index(a)
    a(f"s_cmp_eq_u32 s{sW}, 11")
    a("s_cbranch_scc1 L_k2_down")
    a(f"s_sub_u32 s{sU}, s{sW}, 9")
    srd(a, SRD_X, 6, X_BYTES)
    a(f"s_add_u32 s46, s4, {CAND_OFF}")
    a("s_addc_u32 s47, s5, 0")
    a(f"s_load_dwordx16 s[{sCAND}:{sCAND+15}], s[46:47], 0")
    a(f"s_load_dwordx16 s[{sCAND+16}:{sCAND+31}], s[46:47], 64")
    a(f"s_cmp_eq_u32 s{sU}, 0")
    a("s_cbranch_scc0 L_k2_up_srd")
    srd(a, SRD_W, 36, WG_BYTES)
    a("s_branch L_k2_srd_done")
    a.label("L_k2_up_srd")
    srd(a, SRD_W, 38, WG_BYTES)
    a.label("L_k2_srd_done")
    a(f"v_lshrrev_b32 v{vT}, 3, v{vT1}")
    a(f"v_mul_u32_u24 v{vA}, 3072, v{vT}")
    a(f"v_and_b32 v7, 7, v{vT1}")
    a(f"v_xor_b32 v7, v7, v{vT}")
    a(f"v_lshl_add_u32 v{vA}, v7, 4, v{vA}")
    a(f"s_and_b32 s17, s{sM}, 3")
    a(f"s_mul_i32 s15, s17, {160 * 3072}")
    a(f"s_lshr_b32 s16, s{sM}, 2")
    a("s_lshl_b32 s16, s16, 7")
    a("s_add_u32 s15, s15, s16")
    a(f"s_mul_i32 s14, s{sU}, 20480")
    a(f"s_add_u32 s14, s14, {L_WG}")
    vWA, vXA = 56, 6
    a(f"v_lshrrev_b32 v{vT}, 4, v{vT1}")
    a(f"v_bfe_u32 v7, v{vT1}, 2, 2")
    a(f"v_lshl_add_u32 v8, v{vT}, 3, v7")
    a(f"v_lshlrev_b32 v8, 7, v8")
    a(f"v_bfe_u32 v9, v{vT1}, 1, 1")
    a(f"v_xor_b32 v9, v9, v7")
    a(f"v_lshl_add_u32 v8, v9, 4, v8")
    a(f"v_and_b32 v9, 1, v{vT1}")
    a(f"v_lshl_add_u32 v8, v9, 3, v8")
    a(f"v_add_u32 v{vWA}, s14, v8")
    for k in range(1, 4):
        a(f"v_xor_b32 v{vWA + k}, {32 * k}, v{vWA}")
    a(f"s_mul_i32 s18, s{sU}, 1024")
    a(f"s_add_u32 s18, s18, {L_XG}")
    a(f"v_and_b32 v9, 3, v{vT1}")
    a(f"v_min_u32 v{vXA}, 2, v9")
    a(f"v_mul_u32_u24 v{vXA}, 320, v{vXA}")
    a(f"v_lshl_add_u32 v{vXA}, v{vT}, 4, v{vXA}")
    a(f"v_add_u32 v{vXA}, s18, v{vXA}")
    for r in range(4):
        a(f"v_mov_b32 v{8 + r}, 0x3f803f80")
    a(f"v_add_u32 v60, s18, v{vLANE16}")
    a("s_mov_b64 exec, 0xfffff")
    a(f"ds_write_b128 v60, v[8:11] offset:640")
    a("s_mov_b64 exec, -1")
    a(f"v_and_b32 v7, 15, v{vT1}")
    a(f"v_lshlrev_b32 v61, 8, v7")
    a(f"v_lshl_add_u32 v61, v{vT}, 4, v61")
    a("v_cmp_gt_u32 vcc, 3, v7")
    a(f"v_min_u32 v62, 2, v{vT}")
    a(f"v_lshlrev_b32 v62, 8, v62")
    a(f"v_lshl_add_u32 v62, v7, 2, v62")
    a("s_mov_b64 s[52:53], vcc")
    if not EARLY_B0:
        a("s_barrier")
    for q in range(20 if not X("moe_nodma") else 0):
        a(f"s_add_u32 m0, s14, {q * 1024}")
        a(f"s_add_u32 s16, s15, {q * 8 * 3072}")
        a(f"buffer_load_dwordx4 v{vA}, s[{SRD_W}:{SRD_W+3}], s16 offen lds")
    a("s_waitcnt lgkmcnt(0)")
    top2_scalar(a, sCAND, sB1, sB2, 12)
    a(f"s_and_b32 s{sB1}, s{sB1}, 0x7ff")
    a(f"s_and_b32 s{sB2}, s{sB2}, 0x7ff")
    for k, sB in ((0, sB1), (1, sB2)):
        a(f"s_lshl_b32 s12, s{sB}, 3")
        a("s_add_u32 s46, s4, s12")
        a("s_addc_u32 s47, s5, 0")
        a(f"s_add_u32 s46, s46, {ST_OFF}")
        a("s_addc_u32 s47, s47, 0")
        a(f"s_load_dwordx2 s[{48 + 2 * k}:{49 + 2 * k}], s[46:47], 0")
    a("s_mul_i32 s16, s17, 320")
    a("s_mov_b64 exec, 0xfffff")
    for k, sB in ((0, sB1), (1, sB2)):
        a(f"s_mul_i32 s12, s{sB}, 1280")
        a("s_add_u32 s12, s12, s16")
        a(f"s_add_u32 m0, s18, {320 * k}")
        a("s_nop 0")
        a(f"buffer_load_dwordx4 v{vLANE16}, s[{SRD_X}:{SRD_X+3}], s12 offen lds")
    a("s_mov_b64 exec, -1")
    a("s_waitcnt vmcnt(0) lgkmcnt(0)")
    vACC = 64
    for s_ in range(5 if not (X("moe_nocomp") or X("noA")) else 0):
        a(f"ds_read_b128 v[12:15], v{vXA} offset:{s_ * 64}")
        for ct in range(4):
            for rd_ in range(2):
                a(f"ds_read_b64_tr_b16 {vr(16 + 4 * ct + 2 * rd_, 2)}, v{vWA + (ct ^ (2 * rd_))} offset:{s_ * 4096 + 512 * rd_}")
        if LOWM: a("s_setprio 0")
        for ct in range(4):
            a(f"s_waitcnt lgkmcnt({6 - 2 * ct})")
            c = "0" if s_ == 0 else vr(vACC + 4 * ct, 4)
            a(f"v_mfma_f32_16x16x32_bf16 {vr(vACC + 4 * ct, 4)}, {vr(16 + 4 * ct, 4)}, v[12:15], {c}")
            if SPACE: a(f"s_nop {SPACE - 1}")
    if LOWM:
        a("s_nop 7")
        a(f"s_setprio {HPRIO}")
    a(f"s_lshl_b32 s12, s{sM}, 1")
    a(f"s_add_u32 s12, s12, s{sU}")
    a("s_mul_i32 s12, s12, 768")
    a(f"s_add_u32 s12, s12, {GP_OFF}")
    a("s_nop 7")
    a("s_mov_b64 exec, s[52:53]")
    for ct in range(4):
        a(f"buffer_store_dwordx4 {vr(vACC + 4 * ct, 4)}, v61, {WS}, s12 offen offset:{64 * ct} sc1")
    a("s_mov_b64 exec, -1")
    a(f"v_mov_b32 v52, 1")
    a(f"v_mov_b32 v53, {F_U}")
    a("s_waitcnt vmcnt(0)")
    a(f"s_cmp_eq_u32 s{sU}, 0")
    a("s_cbranch_scc1 L_k2_gate")
    a("ds_write_b32 v53, v52")
    a("s_branch L_k2_ffn_done")
    a.label("L_k2_gate")
    spin(a, "L_wait_u", 53, 54, 12, 1, 13, sleep=4)
    a(f"s_lshr_b32 s12, s{sM}, 2")
    a("s_add_u32 s12, s12, 9")
    a("s_lshl_b32 s12, s12, 8")
    a(f"s_add_u32 s12, s12, {CNT_OFF}")
    a("v_mov_b32 v9, s12")
    a("s_mov_b64 exec, 1")
    a("global_atomic_add v9, v52, s[4:5]")
    a(f"s_mov_b32 s13, {SPIN_MAX}")
    a.label("L_k2_poll_cb")
    a("global_load_dword v10, v9, s[4:5] sc1")
    a("s_waitcnt vmcnt(0)")
    a("v_readfirstlane_b32 s14, v10")
    a("s_sub_u32 s13, s13, 1")
    a("s_cbranch_scc1 L_k2_poll_cb_done")
    a("s_cmp_ge_u32 s14, 4")
    a("s_cbranch_scc1 L_k2_poll_cb_done")
    a("s_sleep 8")
    a("s_branch L_k2_poll_cb")
    a.label("L_k2_poll_cb_done")
    a("s_mov_b64 exec, -1")
    a(f"s_andn2_b32 s12, s{sM}, 3")
    a("s_mul_i32 s12, s12, 1536")
    a(f"s_add_u32 s12, s12, {GP_OFF}")
    a("s_lshl_b32 s16, s17, 6")
    a("s_add_u32 s12, s12, s16")
    for kq in range(4):
        for mat in range(2):
            a(f"s_add_u32 s16, s12, {kq * 1536 + mat * 768}")
            a(f"buffer_load_dword v{12 + 4 * mat + kq}, v62, {WS}, s16 offen sc1")
    a(f"v_cmp_gt_u32 vcc, 16, v{vT1}")
    a("v_mov_b32 v8, s50")
    a("v_mov_b32 v9, s51")
    a("v_mov_b32 v10, s48")
    a("v_mov_b32 v11, s49")
    a("v_cndmask_b32 v8, v8, v10, vcc")
    a("v_cndmask_b32 v9, v9, v11, vcc")
    a("s_waitcnt vmcnt(0)")
    for mat in range(2):
        b0 = 12 + 4 * mat
        a(f"v_add_f32 v{b0}, v{b0}, v{b0 + 1}")
        a(f"v_add_f32 v{b0 + 2}, v{b0 + 2}, v{b0 + 3}")
    for mat in range(2):
        b0 = 12 + 4 * mat
        a(f"v_add_f32 v{b0}, v{b0}, v{b0 + 2}")
    for mat in range(2):
        b0 = 12 + 4 * mat
        a(f"v_mov_b32 v{b0 + 1}, v{b0}")
        a(f"v_mov_b32 v{b0 + 2}, v{b0}")
    a("s_nop 1")
    for mat in range(2):
        b0 = 12 + 4 * mat
        a(f"v_permlane32_swap_b32 v{b0 + 1}, v{b0 + 2}")
    a("s_nop 1")
    for mat in range(2):
        b0 = 12 + 4 * mat
        a(f"v_fma_f32 v{b0}, -v8, v{b0 + 2}, v{b0}")
        a(f"v_mul_f32 v{b0}, v{b0}, v9")
    a(f"v_mul_f32 v20, {hex(f2u(-LOG2E))}, v12")
    a("v_exp_f32 v20, v20")
    a("v_mul_f32 v12, v12, v16")
    a("v_add_f32 v20, 1.0, v20")
    a("v_rcp_f32 v20, v20")
    a(f"v_lshlrev_b32 v{vT}, 1, v{vT1}")
    a("v_mul_f32 v12, v12, v20")
    a(f"v_add_u32 v{vT}, {L_H}, v{vT}")
    a("v_cvt_pk_bf16_f32 v12, v12, v12")
    a(f"ds_write_b16 v{vT}, v12")
    a(f"v_mov_b32 v53, {F_H}")
    a("s_waitcnt lgkmcnt(0)")
    a(f"ds_write_b32 v53, v52")
    a("s_branch L_k2_ffn_done")
    a.label("L_k2_down")
    srd(a, SRD_W, 40, WD_BYTES)
    vDA, vHA, vYO = 5, 6, 7
    a(f"v_bfe_u32 v{vT}, v{vT1}, 2, 2")
    a(f"v_mul_u32_u24 v{vDA}, 1280, v{vT}")
    a(f"v_lshrrev_b32 v{vT}, 4, v{vT1}")
    a(f"v_lshl_add_u32 v{vDA}, v{vT}, 5, v{vDA}")
    a(f"v_and_b32 v{vT}, 3, v{vT1}")
    a(f"v_lshl_add_u32 v{vDA}, v{vT}, 3, v{vDA}")
    a(f"v_add_u32 v{vDA}, {L_WD}, v{vDA}")
    a(f"v_and_b32 v{vT}, 1, v{vT1}")
    a(f"v_lshlrev_b32 v{vHA}, 5, v{vT}")
    a(f"v_add_u32 v{vHA}, {L_H}, v{vHA}")
    a(f"v_lshlrev_b32 v{vYO}, 2, v{vT1}")
    a(f"v_mov_b32 v53, {F_H}")
    if not EARLY_B0:
        a("s_barrier")
    a(f"s_mul_i32 s15, s{sM}, 20480")
    for i in range(5 if not X("moe_nodma") else 0):
        a(f"s_mov_b32 m0, {L_WD + i * 4096}")
        a(f"s_add_u32 s16, s15, {i * 4096}")
        for j in range(4):
            a(f"buffer_load_dwordx4 v{vLANE16}, s[{SRD_W}:{SRD_W+3}], s16 offen offset:{1024 * j} lds")
    a(f"s_mul_i32 s15, s{sM}, 5120")
    a(f"s_add_u32 s15, s15, {YP_OFF}")
    a("s_waitcnt vmcnt(0)")
    spin(a, "L_wait_h", 53, 54, 12, 1, 13, sleep=8)
    a(f"ds_read_b128 v[8:11], v{vHA}")
    a(f"ds_read_b128 v[12:15], v{vHA} offset:16")
    for kk in range(4 if not (X("moe_nocomp") or X("noD")) else 0):
        for gq in range(10):
            a(f"ds_read_b64_tr_b16 {vr(16 + 2 * gq, 2)}, v{vDA} offset:{kk * 5120 + gq * 128}")
        if LOWM: a("s_setprio 0")
        for gq in range(10):
            a(f"s_waitcnt lgkmcnt({9 - gq})")
            c = "0" if kk == 0 else vr(56 + 4 * gq, 4)
            a(f"v_mfma_f32_4x4x4bf16_1k {vr(56 + 4 * gq, 4)}, {vr(8 + 2 * kk, 2)}, {vr(16 + 2 * gq, 2)}, {c}")
        if LOWM: a(f"s_setprio {HPRIO}")
    a("s_nop 7")
    for t_ in range(2):
        for gq in range(10):
            a(f"s_add_u32 s16, s15, {t_ * 2560 + gq * 256}")
            a(f"buffer_store_dword v{56 + 4 * gq + t_}, v{vYO}, {WS}, s16 offen sc1")
    a("s_waitcnt vmcnt(0)")
    a(f"v_mov_b32 v7, {CNT_OFF + 8 * 256}")
    a("v_mov_b32 v8, 1")
    a("s_mov_b64 exec, 1")
    a("global_atomic_add v7, v8, s[4:5]")
    a("s_mov_b64 exec, -1")
    a.label("L_k2_ffn_done")
    ST(a, "ffn_done")
    a(f"v_mov_b32 v53, {F_MOE}")
    a(f"v_mov_b32 v52, 1")
    a("s_waitcnt lgkmcnt(0)")
    a("s_mov_b64 exec, 1")
    a("ds_add_u32 v53, v52")
    a("s_mov_b64 exec, -1")
    spin(a, "L_wait_moe", 53, 54, 12, 3, 13, sleep=8)
    a("s_branch L_k2_wo_prefetch")
    a.label("L_k2_no_ffn")
    if not EARLY_B0:
        a("s_barrier")
    a.label("L_k2_wo_prefetch")
    out_tile_ids(a)
    a(f"s_mul_i32 s12, s{sNT}, 102400")
    a(f"s_add_u32 s12, s12, {WO2_OFF}")
    a(f"s_sub_u32 s13, s{sW}, 9")
    for g in range(7):
        if g == 6:
            a("s_cmp_eq_u32 s13, 2")
            a("s_cbranch_scc1 L_k2_join")
        a(f"s_add_u32 s14, s13, {3 * g}")
        a("s_lshl_b32 s14, s14, 12")
        a(f"s_add_u32 m0, s14, {L_R}")
        a("s_add_u32 s14, s14, s12")
        for j in range(4):
            a(f"buffer_load_dwordx4 v{vLANE16}, {WS}, s14 offen offset:{1024 * j} lds")
    a("s_branch L_k2_join")

sMT, sNT = 44, 45
def out_tile_ids(a):
    a(f"s_bfe_u32 s{sMT}, s2, 0x20001")
    a(f"s_lshl_b32 s12, s{sQB}, 2")
    a(f"s_add_u32 s{sMT}, s{sMT}, s12")
    a(f"s_and_b32 s{sNT}, s2, 1")
    a(f"s_lshl_b32 s{sNT}, s{sNT}, 2")
    a("s_bfe_u32 s12, s2, 0x20003")
    a(f"s_add_u32 s{sNT}, s{sNT}, s12")

def projection(a):
    SRD_X, SRD_OUT = 56, 60
    sB1, sB2, sOBT = 42, 43, 46
    sCAND = 64
    vL16, vL16H, vL16H2 = vLANE16, 9, 3
    vTOK, vG, vT = 2, 8, 4
    vXO, vTOKG, vSTAT, vX = 10, 11, 12, 14
    vACC = 24
    vWF = (44, 64)
    vOF = 84
    a.label("L_k2_join")
    ST(a, "join")
    a("s_load_dwordx2 s[6:7], s[0:1], 0")
    a("s_load_dwordx2 s[36:37], s[0:1], 64")
    a(f"s_add_u32 s38, s4, {CAND_OFF}")
    a("s_addc_u32 s39, s5, 0")
    a(f"s_load_dwordx16 s[{sCAND}:{sCAND+15}], s[38:39], 0")
    a(f"s_load_dwordx16 s[{sCAND+16}:{sCAND+31}], s[38:39], 64")
    out_tile_ids(a)
    a("v_and_b32 v3, 63, v0")
    a("s_waitcnt vmcnt(0)")
    a("s_barrier")
    ST(a, "E1")
    a("s_waitcnt lgkmcnt(0)")
    srd(a, SRD_X, 6, X_BYTES)
    srd(a, SRD_OUT, 36, X_BYTES)
    a(f"s_cmp_eq_u32 s{sW}, 8")
    a("s_cbranch_scc1 L_k2_sync")
    a(f"s_cmp_ge_u32 s{sW}, 4")
    a("s_cbranch_scc1 L_k2_side")
    a(f"v_and_b32 v{vTOK}, 15, v3")
    a(f"v_lshrrev_b32 v{vG}, 4, v3")
    a(f"s_lshl_b32 s12, s{sMT}, 6")
    a(f"s_lshl_b32 s13, s{sW}, 4")
    a("s_add_u32 s12, s12, s13")
    a(f"v_add_u32 v{vTOKG}, s12, v{vTOK}")
    a(f"v_mul_u32_u24 v{vXO}, 1280, v{vTOKG}")
    a(f"v_lshl_add_u32 v{vXO}, v{vG}, 3, v{vXO}")
    a(f"s_mul_i32 s13, s{sNT}, 160")
    a(f"v_add_u32 v{vXO}, s13, v{vXO}")
    a(f"v_lshlrev_b32 v{vT+1}, 3, v{vTOKG}")
    a(f"s_mov_b32 s12, {ST_OFF}")
    a(f"buffer_load_dwordx2 {vr(vSTAT, 2)}, v{vT+1}, {WS}, s12 offen")
    for j in range(5):
        a(f"buffer_load_dwordx2 {vr(vX + 2 * j, 2)}, v{vXO}, s[{SRD_X}:{SRD_X+3}], 0 offen offset:{32 * j}")
    a(f"s_lshl_b32 s12, s{sMT}, 2")
    a(f"s_add_u32 s12, s12, s{sW}")
    a(f"s_mul_i32 s{sOBT}, s12, 20480")
    a(f"s_add_u32 s{sOBT}, s{sOBT}, {OB_OFF}")
    a(f"v_add_u32 v{vL16H}, {L_R}, v{vL16}")
    a(f"v_add_u32 v{vL16H2}, {L_R + 40960}, v{vL16}")
    top2_scalar(a, sCAND, sB1, sB2, 12)
    a(f"s_and_b32 s{sB1}, s{sB1}, 0x7ff")
    a(f"s_and_b32 s{sB2}, s{sB2}, 0x7ff")
    a("s_waitcnt vmcnt(0)")
    a(f"v_add_f32 v{vT}, 1.0, v{vSTAT+1}")
    a(f"v_mul_f32 v{vT+1}, v{vSTAT}, v{vSTAT+1}")
    for j in range(5):
        for i in range(2):
            a(f"v_lshlrev_b32 v{vT+2}, 16, v{vX + 2 * j + i}")
            a(f"v_and_b32 v{vT+3}, 0xffff0000, v{vX + 2 * j + i}")
            a(f"v_fma_f32 v{vACC + 4 * j + 2 * i}, v{vT+2}, v{vT}, -v{vT+1}")
            a(f"v_fma_f32 v{vACC + 4 * j + 2 * i + 1}, v{vT+3}, v{vT}, -v{vT+1}")
    a("s_barrier")
    ST(a, "E2")
    for B in range(5):
        a(f"s_add_u32 s12, s{sOBT}, {B * 4096}")
        for k in range(4):
            a(f"buffer_load_dwordx4 {vr(vOF + 16 * B + 4 * k, 4)}, v{vL16}, {WS}, s12 offen offset:{1024 * k} sc1")
    def reads(st):
        f = vWF[st & 1]
        reg, off = (vL16H, st * 5120) if st < 8 else ((vL16H2, (st - 8) * 5120) if st < 16 else (vL16, (st - 16) * 5120))
        for j in range(5):
            a(f"ds_read_b128 {vr(f + 4 * j, 4)}, v{reg} offset:{off + 1024 * j}")
    def mfmas(st):
        f = vWF[st & 1]
        for j in range(5):
            a(f"v_mfma_f32_16x16x32_bf16 {vr(vACC + 4 * j, 4)}, {vr(f + 4 * j, 4)}, {vr(vOF + 4 * st, 4)}, {vr(vACC + 4 * j, 4)}")
    reads(0)
    for st in range(20):
        if st == 12:
            pass
        if st < 19:
            if st + 1 == 16:
                a("s_barrier")
            reads(st + 1)
        a(f"s_waitcnt vmcnt({19 - st}) lgkmcnt({5 if st < 19 else 0})")
        mfmas(st)
    ST(a, "gemm")
    a(f"v_lshlrev_b32 v{vT}, 4, v{vG}")
    a(f"v_add_u32 v{vT}, {L_Y}, v{vT}")
    a("s_nop 7")
    for sel, sB in ((0, sB1), (1, sB2)):
        lab = f"L_k2_noupd{sel}"
        a(f"s_lshr_b32 s12, s{sB}, 6")
        a(f"s_cmp_lg_u32 s12, s{sMT}")
        a(f"s_cbranch_scc1 {lab}")
        for j in range(5):
            a(f"ds_read_b128 {vr(vWF[0] + 4 * j, 4)}, v{vT} offset:{320 * sel + 64 * j}")
        a(f"v_cmp_eq_u32 vcc, s{sB}, v{vTOKG}")
        a("s_waitcnt lgkmcnt(0)")
        a("s_nop 1")
        for j in range(5):
            for r in range(4):
                a(f"v_cndmask_b32 v{vWF[0] + 4 * j + r}, 0, v{vWF[0] + 4 * j + r}, vcc")
                a(f"v_add_f32 v{vACC + 4 * j + r}, v{vACC + 4 * j + r}, v{vWF[0] + 4 * j + r}")
        a.label(lab)
    for j in range(5):
        for i in range(2):
            a(f"v_cvt_pk_bf16_f32 v{vX + 2 * j + i}, v{vACC + 4 * j + 2 * i}, v{vACC + 4 * j + 2 * i + 1}")
        a(f"buffer_store_dwordx2 {vr(vX + 2 * j, 2)}, v{vXO}, s[{SRD_OUT}:{SRD_OUT+3}], 0 offen offset:{32 * j}")
    ST(a, "stores")
    if ST.on:
        a("s_waitcnt vmcnt(0)")
    ST(a, "end")
    ST.store(a)
    a("s_endpgm")

    a.label("L_k2_sync")
    ST(a, "E1b")
    a(f"s_lshl_b32 s12, s{sQB}, 8")
    a(f"s_add_u32 s12, s12, {CNT_OFF}")
    a("v_mov_b32 v4, s12")
    a("v_mov_b32 v5, 1")
    a("s_mov_b64 exec, 1")
    a("global_atomic_add v6, v4, v5, s[4:5] sc0")
    a("s_waitcnt vmcnt(0)")
    a("v_readfirstlane_b32 s14, v6")
    a(f"s_mov_b32 s13, {SPIN_MAX}")
    a("s_cmp_ge_u32 s14, 31")
    a("s_cbranch_scc1 L_k2_poll_done")
    for r in range(3):
        a(f"global_load_dword v{8 + r}, v4, s[4:5] sc1")
        a("s_sleep 2")
    a.label("L_k2_poll")
    for r in range(4):
        a(f"global_load_dword v{8 + (r + 3) % 4}, v4, s[4:5] sc1")
        a("s_waitcnt vmcnt(3)")
        a(f"v_readfirstlane_b32 s14, v{8 + r}")
        a("s_sub_u32 s13, s13, 1")
        a("s_cbranch_scc1 L_k2_poll_done")
        a("s_cmp_ge_u32 s14, 32")
        a("s_cbranch_scc1 L_k2_poll_done")
        a("s_sleep 2")
    a("s_branch L_k2_poll")
    a.label("L_k2_poll_done")
    a("s_mov_b64 exec, -1")
    ST(a, "polled")
    a("s_barrier")
    a("s_barrier")
    ST.store(a)
    if os.environ.get("DBG_SUMMARY"):
        summary(a)
    a("s_endpgm")

    a.label("L_k2_side")
    a(f"s_cmp_ge_u32 s{sW}, 8")
    a("s_cbranch_scc1 L_k2_side_b")
    a(f"s_sub_u32 s13, s{sW}, 4")
    a(f"s_mul_i32 s12, s{sNT}, 102400")
    a(f"s_add_u32 s12, s12, {WO2_OFF + 16 * 5120}")
    a("s_mul_i32 s14, s13, 5120")
    a("s_add_u32 s12, s12, s14")
    a("s_mov_b32 m0, s14")
    a("s_nop 0")
    for j in range(4):
        a(f"buffer_load_dwordx4 v{vL16}, {WS}, s12 offen offset:{1024 * j} lds")
    a("s_add_u32 m0, s14, 4096")
    a("s_add_u32 s12, s12, 4096")
    a(f"buffer_load_dwordx4 v{vL16}, {WS}, s12 offen lds")
    top2_scalar(a, sCAND, sB1, sB2, 12)
    a(f"s_and_b32 s{sB1}, s{sB1}, 0x7ff")
    a(f"s_and_b32 s{sB2}, s{sB2}, 0x7ff")
    a(f"s_lshr_b32 s12, s{sB1}, 6")
    a(f"s_lshr_b32 s13, s{sB2}, 6")
    a(f"s_cmp_eq_u32 s12, s{sMT}")
    a("s_cbranch_scc1 L_k2_routed")
    a(f"s_cmp_eq_u32 s13, s{sMT}")
    a("s_cbranch_scc1 L_k2_routed")
    a("s_waitcnt vmcnt(0)")
    a("s_barrier")
    a("s_barrier")
    ST.store(a)
    a("s_endpgm")
    a.label("L_k2_routed")
    routed(a, sB1, sB2)
    a.label("L_k2_side_b")
    a("s_barrier")
    a("s_barrier")
    ST.store(a)
    a("s_endpgm")

def routed(a, sB1, sB2):
    vT, vY = 4, 20
    a(f"v_mov_b32 v7, {F_ALL}")
    spin(a, "L_rt_all", 7, 6, 14, 1, 15)
    a(f"v_subrev_u32 v{vT}, 256, v0")
    a(f"v_mul_u32_u24 v{vT+1}, 52429, v{vT}")
    a(f"v_lshrrev_b32 v{vT+1}, 20, v{vT+1}")
    a(f"v_mul_u32_u24 v{vT+2}, 20, v{vT+1}")
    a(f"v_sub_u32 v{vT+2}, v{vT}, v{vT+2}")
    a(f"v_mul_u32_u24 v8, {8 * 5120}, v{vT+1}")
    a(f"v_lshl_add_u32 v8, v{vT+2}, 4, v8")
    a(f"v_mul_u32_u24 v9, 320, v{vT+1}")
    a(f"v_lshl_add_u32 v9, v{vT+2}, 4, v9")
    a(f"v_add_u32 v9, {L_RED}, v9")
    a(f"v_lshlrev_b32 v10, 2, v{vT}")
    a(f"v_mov_b32 v11, {F_RT}")
    a("v_mov_b32 v12, 1")
    for sel, sB in ((0, sB1), (1, sB2)):
        lab = f"L_k2_rt_skip{sel}"
        a(f"s_lshr_b32 s12, s{sB}, 6")
        a(f"s_cmp_lg_u32 s12, s{sMT}")
        a(f"s_cbranch_scc1 {lab}")
        a(f"s_lshl_b32 s12, s{sB}, 2")
        a("s_add_u32 s38, s4, s12")
        a("s_addc_u32 s39, s5, 0")
        a(f"s_add_u32 s38, s38, {R_OFF}")
        a("s_addc_u32 s39, s39, 0")
        a("s_load_dword s40, s[38:39], 0")
        a(f"s_mul_i32 s12, s{sNT}, 320")
        a(f"s_add_u32 s12, s12, {YP_OFF + sel * 2560}")
        a(f"v_cmp_gt_u32 vcc, 240, v{vT}")
        a("s_and_saveexec_b64 s[48:49], vcc")
        for i in range(8):
            a(f"s_add_u32 s13, s12, {i * 5120}")
            a(f"buffer_load_dwordx4 {vr(vY + 4 * i, 4)}, v8, {WS}, s13 offen sc1")
        a("s_waitcnt vmcnt(0)")
        for i in range(1, 8):
            for r in range(4):
                a(f"v_add_f32 v{vY + r}, v{vY + r}, v{vY + 4 * i + r}")
        a(f"ds_write_b128 v9, {vr(vY, 4)}")
        a("s_mov_b64 exec, s[48:49]")
        a("s_waitcnt lgkmcnt(0)")
        a("s_mov_b64 exec, 1")
        a(f"ds_add_u32 v11, v12 offset:{8 * sel}")
        a("s_mov_b64 exec, -1")
        a(f"v_add_u32 v13, {8 * sel}, v11")
        spin(a, f"L_rt_a{sel}", 13, 14, 14, 4, 15)
        a(f"v_add_u32 v13, {L_RED}, v10")
        a(f"v_cmp_gt_u32 vcc, 80, v{vT}")
        a("s_and_saveexec_b64 s[48:49], vcc")
        a(f"s_cbranch_execz L_k2_rt_c{sel}")
        for p in range(12):
            a(f"ds_read_b32 v{vY + p}, v13 offset:{320 * p}")
        a("v_mov_b32 v15, s40")
        a(f"v_mul_f32 v15, {hex(f2u(-LOG2E))}, v15")
        a("v_exp_f32 v15, v15")
        a("s_nop 0")
        a("v_add_f32 v15, 1.0, v15")
        a("v_rcp_f32 v15, v15")
        a("s_waitcnt lgkmcnt(0)")
        for p in range(1, 12):
            a(f"v_add_f32 v{vY}, v{vY}, v{vY + p}")
        a(f"v_mul_f32 v{vY}, v{vY}, v15")
        a(f"v_add_u32 v13, {L_Y + 320 * sel}, v10")
        a(f"ds_write_b32 v13, v{vY}")
        a.label(f"L_k2_rt_c{sel}")
        a("s_mov_b64 exec, s[48:49]")
        a("s_waitcnt lgkmcnt(0)")
        a("s_mov_b64 exec, 1")
        a(f"ds_add_u32 v11, v12 offset:{8 * sel + 4}")
        a("s_mov_b64 exec, -1")
        a(f"v_add_u32 v13, {8 * sel + 4}, v11")
        spin(a, f"L_rt_b{sel}", 13, 14, 14, 4, 15)
        a.label(lab)
    a("s_waitcnt vmcnt(0)")

def emit(a):
    entry(a)
    attention(a)
    helpers(a)
    projection(a)
    a.label("L_k2_exit")
    a("s_endpgm")
    a.label("L_k2_end")


def summary(a):
    import k1
    a("s_mov_b64 exec, -1")
    a("s_cmp_lg_u32 s2, 0")
    a("s_cbranch_scc1 L_sum_end")
    a("s_load_dwordx2 s[34:35], s[0:1], 72")
    a("s_waitcnt lgkmcnt(0)")
    a(f"s_mov_b32 s{SRD_WS + 2}, 0x2000000")
    a("v_and_b32 v3, 63, v0")
    names = ["entry", "B0", "loopend", "e_bar", "stores", "end"]
    a("v_mov_b32 v40, -1")
    for i in range(1, 8):
        a(f"v_mov_b32 v{40 + i}, 0")
    for q in range(4):
        a(f"v_add_u32 v4, {64 * q}, v3")
        a("v_lshlrev_b32 v5, 11, v4")
        a(f"s_mov_b32 s12, {PROF_OFF + 64}")
        for i, nm in enumerate(names):
            a(f"buffer_load_dword v{10 + i}, v5, {WS}, s12 offen offset:{4 * k1.ST.names.index(nm)}")
        a(f"buffer_load_dword v16, v5, {WS}, s12 offen offset:{4 * k1.ST.names.index('e_lds')}")
        a("s_waitcnt vmcnt(0)")
        a("v_and_b32 v6, 0xe4, v4")
        a("v_cmp_eq_u32 vcc, 0xe4, v6")
        a("s_nop 1")
        a("v_min_u32 v40, v40, v10")
        for i in range(1, 6):
            a(f"v_cndmask_b32 v{10 + i}, v{10 + i}, 0, vcc")
            a(f"v_max_u32 v{40 + i}, v{40 + i}, v{10 + i}")
        a("v_cndmask_b32 v16, 0, v16, vcc")
        a("v_max_u32 v46, v46, v16")
    vals = [40, 41, 42, 43, 44, 45, 46]
    for x in (1, 2, 4, 8, 16, 32):
        a(f"v_xor_b32 v6, {x}, v3")
        a("v_lshlrev_b32 v6, 2, v6")
        for r in vals:
            a(f"ds_bpermute_b32 v20, v6, v{r}")
            a("s_waitcnt lgkmcnt(0)")
            a(f"v_{'min' if r == 40 else 'max'}_u32 v{r}, v{r}, v20")
    for k_, nm in enumerate(["entry", "join", "E1", "polled"]):
        a(f"v_readlane_b32 s12, v{ST.vt + 1}, {ST.names.index(nm)}")
        a("s_nop 3")
        a(f"v_mov_b32 v{50 + k_}, s12")
    a("s_memrealtime s[12:13]")
    a("s_waitcnt lgkmcnt(0)")
    a("v_mov_b32 v54, s12")
    a("v_mov_b32 v7, 0")
    a("s_mov_b64 exec, 1")
    for k_, r in enumerate([41, 42, 43, 44, 45, 46, 50, 51, 52, 53, 54]):
        a(f"v_sub_u32 v20, v{r}, v40")
        a(f"global_store_dword v7, v20, s[34:35] offset:{4 * k_}")
    a("s_waitcnt vmcnt(0)")
    a.label("L_sum_end")
```

```python
from common import *
from k2moe import top2_scalar
import os

NAME = "attn_proj_kernel"
LDS = 163840
VGPRS = 168
BLOCK = 768
GRID = 256
NMOE = 96

def X(flag):
    return flag in os.environ.get("K2_EXP", "").split(",")

ST = StampsLane("k2", 20, 8, 164)

L_RING = 0
L_R = 61440
L_WG, L_WU, L_WD = L_R, L_R + 20480, L_R + 40960
L_XG, L_XU = L_R + 61440, L_R + 61440 + 3840
L_U, L_H = L_R + 69120, L_R + 69120 + 1024
L_MISC = 143360
F_LAND, F_FREE, F_U, F_H, F_MOE, F_ALL = L_MISC, L_MISC + 4, L_MISC + 8, L_MISC + 12, L_MISC + 16, L_MISC + 20
F_RT = L_MISC + 24
F_FREEC = L_MISC + 64
L_RED, L_Y = L_MISC + 1024, L_MISC + 1024 + 3840
SPIN_MAX = 1 << 20
EARLY_B0 = os.environ.get("K2_EARLYB0", "1") == "1"
SPACE = int(os.environ.get("K2_SPACE", "0"))
HPRIO = int(os.environ.get("K2_HPRIO", "3"))
LOWM = int(os.environ.get("K2_LOWM", "0"))

vLANE16, vT0, vT1 = 1, 2, 3
vKA, vKB, vV, vFL = 4, 5, 6, 7
vQ1, vQ2 = 10, 20
vFLAG, vONE = 16, 17
vS = (32, 48)
vO = 64
vP = 80
vKAf = (88, 92)
vKBf = (24, 28)
vVf = ((100, 104), (108, 112))
vTMP = 116

sW, sHEAD, sKV, sQ, sOB, sOM = 20, 21, 22, 23, 24, 25
sVMASK = 26
sLO = 28
sT, sT2, sQB = 30, 31, 32
SRD_WS = 8
WS = f"s[{SRD_WS}:{SRD_WS+3}]"

def lds_tile(t):
    return ((t >> 3) % 3) * 20480 + (t & 7) * 2560

def spin(a, name, vaddr, vtmp, stmp, target, cnt, sleep=1):
    a(f"s_mov_b32 s{cnt}, {SPIN_MAX}")
    a.label(f"{name}_loop")
    a(f"ds_read_b32 v{vtmp}, v{vaddr}")
    a("s_waitcnt lgkmcnt(0)")
    a(f"v_readfirstlane_b32 s{stmp}, v{vtmp}")
    a(f"s_sub_u32 s{cnt}, s{cnt}, 1")
    a(f"s_cbranch_scc1 {name}_done")
    a(f"s_cmp_ge_u32 s{stmp}, {target}")
    a(f"s_cbranch_scc1 {name}_done")
    a(f"s_sleep {sleep}")
    a(f"s_branch {name}_loop")
    a.label(f"{name}_done")

def mfma_s1(a, dst, buf):
    a(f"v_mfma_f32_32x32x16_bf16 {vr(dst, 16)}, {vr(vKAf[buf], 4)}, {vr(vQ1, 4)}, 0")
def mfma_s2(a, dst, buf):
    if X("nos2"): return
    if not X("s2x16"):
        a(f"v_mfma_f32_32x32x8bf16_1k {vr(dst, 16)}, {vr(vKBf[buf], 2)}, {vr(vQ2, 2)}, {vr(dst, 16)}")
    else:
        a(f"v_mfma_f32_32x32x16_bf16 {vr(dst, 16)}, {vr(vKBf[buf], 4)}, {vr(vQ2, 4)}, {vr(dst, 16)}")
def mfma_pv(a, buf, t):
    a(f"v_mfma_f32_32x32x16_bf16 {vr(vO, 16)}, {vr(vVf[buf][t], 4)}, {vr(vP + 4 * t, 4)}, {vr(vO, 16)}")

def read_ka(a, t, buf):
    a(f"ds_read_b128 {vr(vKAf[buf], 4)}, v{vKA} offset:{lds_tile(t)}")
def read_kb(a, t, buf):
    a(f"ds_read_b64 {vr(vKBf[buf], 2)}, v{vKB} offset:{lds_tile(t)}")
def read_v(a, t, part):
    a(f"ds_read_b128 {vr(vVf[t & 1][part], 4)}, v{vV} offset:{lds_tile(t) + 640 * part}")

def tile_body(a, t):
    sc, sn = vS[t & 1], vS[(t + 1) & 1]
    last = t == 63
    ex = lambda r: a(f"v_exp_f32 v{sc + r}, v{sc + r}")
    cv = lambda i: a(f"v_cvt_pk_bf16_f32 v{vP + i}, v{sc + 2 * i}, v{sc + 2 * i + 1}")
    ex(0)
    a("s_setprio 1")
    ex(1)
    if t > 0:
        mfma_pv(a, (t - 1) & 1, 1)
    for r in range(2, 6):
        ex(r)
    if not last:
        mfma_s1(a, sn, (t + 1) & 1)
    ex(6); ex(7)
    for i in range(4):
        cv(i)
    if not X("neworder"):
        if not last:
            mfma_s2(a, sn, (t + 1) & 1)
        for r in range(8, 12):
            ex(r)
        mfma_pv(a, t & 1, 0)
        for r in range(12, 16):
            ex(r)
    else:
        ex(8); ex(9)
        mfma_pv(a, t & 1, 0)
        for r in range(10, 14):
            ex(r)
        if not last:
            mfma_s2(a, sn, (t + 1) & 1)
        ex(14); ex(15)
    for i in range(4, 8):
        cv(i)
    a("s_setprio 0")
    a("s_waitcnt lgkmcnt(0)")
    if t % 8 == 5 and t < 56:
        c = t // 8 + 1
        a(f"v_readfirstlane_b32 s{sT}, v{vFLAG}")
        a(f"s_cmp_ge_u32 s{sT}, {c}")
        a(f"s_cbranch_scc1 L_land_{c}_skip")
        if ST.on:
            a("s_memtime s[90:91]")
            a("s_waitcnt lgkmcnt(0)")
        spin(a, f"L_land_{c}", vFL, vFLAG, sT, c, sT2)
        if ST.on:
            a("s_memtime s[88:89]")
            a("s_waitcnt lgkmcnt(0)")
            a("s_sub_u32 s88, s88, s90")
            a("s_add_u32 s87, s87, s88")
        a.label(f"L_land_{c}_skip")
    if t % 8 == 7 and t < 40:
        a("s_mov_b64 exec, 1")
        a(f"ds_add_u32 v{vFL}, v{vONE} offset:{F_FREEC - F_LAND + 4 * (t // 8)}")
        a("s_mov_b64 exec, -1")
    if t + 3 <= 63:
        if not X("noka"): read_ka(a, t + 3, (t + 1) & 1)
        a(f"s_mov_b64 exec, s[{sLO}:{sLO+1}]")
        if not X("nokb"): read_kb(a, t + 3, (t + 1) & 1)
    if t + 1 <= 63:
        a(f"s_mov_b64 exec, s[{sVMASK}:{sVMASK+1}]")
        if t + 2 <= 63 and not X("nov0"):
            read_v(a, t + 2, 0)
        if not X("nov1"): read_v(a, t + 1, 1)
        a("s_mov_b64 exec, -1")
    if t % 8 == 4 and t < 56:
        a(f"ds_read_b32 v{vFLAG}, v{vFL}")
    if t == 62:
        a("s_nop 1")
    if last:
        a("s_nop 1")
        mfma_pv(a, t & 1, 1)

def row_max(a, s, dst, tmp):
    a(f"v_max3_f32 v{dst}, v{s}, v{s+1}, v{s+2}")
    for r in range(3, 15, 2):
        a(f"v_max3_f32 v{dst}, v{dst}, v{s+r}, v{s+r+1}")
    a(f"v_max_f32 v{dst}, v{dst}, v{s+15}")
    a(f"v_mov_b32 v{tmp}, v{dst}")
    a("s_nop 1")
    a(f"v_permlane32_swap_b32 v{dst}, v{tmp}")
    a("s_nop 1")
    a(f"v_max_f32 v{dst}, v{dst}, v{tmp}")

def entry(a):
    kernel_header(a, NAME)
    ST(a, "entry")
    a(f"s_cmp_ge_u32 s2, {GRID}")
    a("s_cbranch_scc1 L_k2_exit")
    a("s_load_dwordx2 s[4:5], s[0:1], 80")
    a(f"v_lshrrev_b32 v{vT0}, 6, v0")
    a(f"v_and_b32 v{vT1}, 63, v0")
    a(f"v_readfirstlane_b32 s{sW}, v{vT0}")
    a("s_and_b32 s12, s2, 7")
    a("s_lshl_b32 s12, s12, 2")
    a("s_bfe_u32 s13, s2, 0x20003")
    a(f"s_or_b32 s{sHEAD}, s12, s13")
    a(f"s_lshr_b32 s{sQB}, s2, 5")
    a(f"s_mul_i32 s{sKV}, s{sHEAD}, {64 * 2560}")
    a(f"s_add_u32 s{sKV}, s{sKV}, {KV_OFF}")
    a(f"v_lshlrev_b32 v{vLANE16}, 4, v{vT1}")
    a(f"s_cmp_ge_u32 s{sW}, 8")
    a("s_cbranch_scc1 L_k2_helper")

def attention(a):
    a(f"s_lshl_b32 s14, s{sQB}, 3")
    a(f"s_add_u32 s14, s14, s{sW}")
    a(f"s_lshl_b32 s15, s{sHEAD}, 6")
    a("s_add_u32 s15, s15, s14")
    a(f"s_mul_i32 s{sQ}, s15, 1280")
    if QB_OFF:
        a(f"s_add_u32 s{sQ}, s{sQ}, {QB_OFF}")
    a(f"s_mul_i32 s16, s{sW}, 2560")
    a(f"s_add_u32 s17, s{sKV}, s16")
    a(f"s_mov_b32 s{sLO}, -1")
    a(f"s_mov_b32 s{sLO+1}, 0")
    a(f"v_and_b32 v{vT0}, 31, v{vT1}")
    a(f"v_lshlrev_b32 v{vTMP}, 3, v{vT0}")
    for r in range(4):
        a(f"v_mov_b32 v{vQ2 + r}, 0")
    a("s_waitcnt lgkmcnt(0)")
    srd(a, SRD_WS, 4, WS_SRD)
    a("s_mov_b32 m0, s16")
    a("s_nop 0")
    a(f"buffer_load_dwordx4 v{vLANE16}, {WS}, s17 offen lds")
    a(f"buffer_load_dwordx4 v{vLANE16}, {WS}, s17 offen offset:1024 lds")
    a(f"s_mov_b64 exec, s[{sLO}:{sLO+1}]")
    a(f"buffer_load_dwordx4 v{vLANE16}, {WS}, s17 offen offset:2048 lds")
    a(f"buffer_load_dwordx2 {vr(vQ2, 2)}, v{vTMP}, {WS}, s{sQ} offen offset:1024")
    a("s_mov_b64 exec, -1")
    a(f"buffer_load_dwordx4 {vr(vQ1, 4)}, v{vLANE16}, {WS}, s{sQ} offen")
    a(f"s_mul_i32 s{sOB}, s14, 40960")
    a(f"s_add_u32 s{sOB}, s{sOB}, {OB_OFF}")
    a(f"s_lshr_b32 s15, s{sHEAD}, 3")
    a("s_mul_i32 s15, s15, 5120")
    a(f"s_add_u32 s{sOB}, s{sOB}, s15")
    a(f"s_bfe_u32 s15, s{sHEAD}, 0x20001")
    a("s_lshl_b32 s15, s15, 10")
    a(f"s_and_b32 s16, s{sHEAD}, 1")
    a("s_lshl_b32 s16, s16, 9")
    a("s_add_u32 s15, s15, s16")
    a(f"s_add_u32 s{sOM}, s{sOB}, s15")
    a(f"s_and_b32 s15, s{sHEAD}, 3")
    a("s_lshl_b32 s15, s15, 8")
    a(f"s_bfe_u32 s16, s{sHEAD}, 0x10002")
    a("s_lshl_b32 s16, s16, 3")
    a("s_add_u32 s15, s15, s16")
    a(f"s_add_u32 s{sOB}, s{sOB}, s15")
    a(f"s_add_u32 s{sOB}, s{sOB}, 4096")
    a(f"s_mov_b32 s{sVMASK}, 0x000fffff")
    a(f"s_mov_b32 s{sVMASK+1}, 0x000fffff")
    a(f"v_mov_b32 v{vKA}, v{vLANE16}")
    a(f"v_add_u32 v{vKB}, 1024, v{vTMP}")
    a(f"v_lshrrev_b32 v{vTMP+1}, 5, v{vT1}")
    a(f"v_mul_u32_u24 v{vTMP+1}, 320, v{vTMP+1}")
    a(f"v_lshl_add_u32 v{vTMP+1}, v{vT0}, 4, v{vTMP+1}")
    a(f"v_add_u32 v{vV}, 1280, v{vTMP+1}")
    a(f"v_mov_b32 v{vFL}, {F_LAND}")
    a(f"v_mov_b32 v{vONE}, 1")
    a(f"v_and_b32 v{vTMP+1}, 27, v{vT0}")
    a(f"v_cmp_eq_u32 vcc, 24, v{vTMP+1}")
    a(f"v_mov_b32 v{vTMP+2}, 0x3f803f80")
    a("s_nop 1")
    a(f"v_cndmask_b32 v{vTMP+1}, 0, v{vTMP+2}, vcc")
    for b in range(2):
        for t in range(2):
            for r in range(4):
                a(f"v_mov_b32 v{vVf[b][t] + r}, v{vTMP+1}")
    for r in range(16):
        a(f"v_mov_b32 v{vO + r}, 0")
    a(f"v_cmp_le_u32 vcc, 32, v{vT1}")
    a(f"v_mov_b32 v{vTMP+2}, 0x3f80")
    a("s_nop 1")
    for b in range(2):
        a(f"v_cndmask_b32 v{vKBf[b]}, 0, v{vTMP+2}, vcc")
        for r in range(1, 4):
            a(f"v_mov_b32 v{vKBf[b] + r}, 0")
    a("s_waitcnt vmcnt(0)")
    a("s_barrier")
    ST(a, "B0")
    read_ka(a, 0, 0)
    read_ka(a, 1, 1)
    a(f"s_mov_b64 exec, s[{sLO}:{sLO+1}]")
    read_kb(a, 0, 0)
    read_kb(a, 1, 1)
    a(f"s_mov_b64 exec, s[{sVMASK}:{sVMASK+1}]")
    read_v(a, 0, 0); read_v(a, 0, 1); read_v(a, 1, 0)
    a("s_mov_b64 exec, -1")
    a("s_waitcnt lgkmcnt(3)")
    mfma_s1(a, vS[0], 0)
    a("s_nop 11")
    mfma_s2(a, vS[0], 0)
    a("s_nop 15")
    a("s_nop 3")
    row_max(a, vS[0], vTMP, vTMP + 1)
    a(f"v_sub_f32 v{vTMP}, 0, v{vTMP}")
    a(f"v_cvt_pk_bf16_f32 v{vTMP}, v{vTMP}, 0")
    a(f"v_cmp_le_u32 vcc, 32, v{vT1}")
    a("s_nop 1")
    a(f"v_cndmask_b32 v{vQ2}, v{vQ2}, v{vTMP}, vcc")
    a("s_nop 1")
    mfma_s1(a, vS[0], 0)
    a("s_nop 11")
    mfma_s2(a, vS[0], 0)
    read_ka(a, 2, 0)
    a(f"s_mov_b64 exec, s[{sLO}:{sLO+1}]")
    read_kb(a, 2, 0)
    a("s_mov_b64 exec, -1")
    a("s_waitcnt lgkmcnt(2)")
    a("s_nop 15")
    a("s_nop 3")
    if ST.on:
        a("s_mov_b32 s87, 0")
    for t in range(64):
        if t in (0, 8, 32, 56):
            ST(a, f"t{t}")
        tile_body(a, t)
    ST(a, "loopend")
    if ST.on:
        a(f"v_writelane_b32 v{ST.vt}, s87, 15")
    a("s_nop 15")
    a("s_nop 3")
    a(f"v_mov_b32 v{vTMP}, v{vO + 12}")
    for r in range(12):
        a(f"v_fma_f32 v{vTMP}, v{vO + r}, 0, v{vTMP}")
    a(f"v_mov_b32 v{vTMP+1}, {hex(f2u(2.0 ** 100))}")
    a(f"v_cmp_nlt_f32 vcc, v{vTMP}, v{vTMP+1}")
    a("s_nop 4")
    a("s_cbranch_vccz L_attn_store")
    safe_path(a)
    a.label("L_attn_store")
    a(f"v_rcp_f32 v{vTMP}, v{vO + 12}")
    a("s_nop 1")
    for r in range(12):
        a(f"v_mul_f32 v{vO + r}, v{vO + r}, v{vTMP}")
    for i in range(6):
        a(f"v_cvt_pk_bf16_f32 v{vP + i}, v{vO + 2 * i}, v{vO + 2 * i + 1}")
    a(f"v_and_b32 v{vTMP+1}, 15, v0")
    a(f"v_lshlrev_b32 v{vTMP+1}, 4, v{vTMP+1}")
    a(f"v_bfe_u32 v{vTMP+2}, v0, 4, 1")
    a(f"v_mul_u32_u24 v{vTMP+2}, 20480, v{vTMP+2}")
    a(f"v_add_u32 v{vTMP+1}, v{vTMP+1}, v{vTMP+2}")
    a(f"v_bfe_u32 v{vTMP+2}, v0, 5, 1")
    a(f"v_lshl_add_u32 v{vTMP+2}, v{vTMP+2}, 8, v{vTMP+1}")
    a(f"buffer_store_dwordx4 {vr(vP, 4)}, v{vTMP+2}, {WS}, s{sOM} offen sc1")
    a(f"s_mov_b64 exec, s[{sLO}:{sLO+1}]")
    a(f"buffer_store_dwordx2 {vr(vP + 4, 2)}, v{vTMP+1}, {WS}, s{sOB} offen sc1")
    a("s_mov_b64 exec, -1")
    a("s_branch L_k2_join")

def safe_path(a):
    vM, vMN, vAL = vTMP, vTMP + 1, vTMP + 2
    vA2, vA3 = vTMP + 5, vTMP + 6
    s = vS[0]
    a(f"v_and_b32 v{vA2}, 31, v0")
    a(f"v_lshlrev_b32 v{vA2}, 3, v{vA2}")
    a(f"v_mov_b32 v{vA3}, v{vV}")
    a(f"v_mov_b32 v{vM}, 0xff7fffff")
    a(f"v_and_b32 v{vAL}, 63, v0")
    a(f"v_cmp_gt_u32 vcc, 32, v{vAL}")
    a("s_nop 1")
    a(f"v_cndmask_b32 v{vQ2}, 0, v{vQ2}, vcc")
    for r in range(16):
        a(f"v_mov_b32 v{vO + r}, 0")
    a(f"s_mov_b32 s{sT}, s{sKV}")
    a("s_mov_b32 s15, 64")
    a.label("L_safe_loop")
    a(f"buffer_load_dwordx4 {vr(vKAf[0], 4)}, v{vLANE16}, {WS}, s{sT} offen")
    a(f"s_mov_b64 exec, s[{sLO}:{sLO+1}]")
    a(f"buffer_load_dwordx2 {vr(vKBf[0], 2)}, v{vA2}, {WS}, s{sT} offen offset:1024")
    a(f"s_mov_b64 exec, s[{sVMASK}:{sVMASK+1}]")
    a(f"buffer_load_dwordx4 {vr(vVf[0][0], 4)}, v{vA3}, {WS}, s{sT} offen")
    a(f"buffer_load_dwordx4 {vr(vVf[0][1], 4)}, v{vA3}, {WS}, s{sT} offen offset:640")
    a("s_mov_b64 exec, -1")
    a("s_waitcnt vmcnt(0)")
    mfma_s1(a, s, 0)
    a("s_nop 11")
    mfma_s2(a, s, 0)
    a("s_nop 15")
    a("s_nop 3")
    row_max(a, s, vMN, vAL)
    a(f"v_max_f32 v{vMN}, v{vMN}, v{vM}")
    a(f"v_sub_f32 v{vAL}, v{vM}, v{vMN}")
    a(f"v_exp_f32 v{vAL}, v{vAL}")
    a(f"v_mov_b32 v{vM}, v{vMN}")
    for r in range(16):
        a(f"v_sub_f32 v{s + r}, v{s + r}, v{vMN}")
    for r in range(16):
        a(f"v_exp_f32 v{s + r}, v{s + r}")
    for r in range(16):
        a(f"v_mul_f32 v{vO + r}, v{vO + r}, v{vAL}")
    for i in range(8):
        a(f"v_cvt_pk_bf16_f32 v{vP + i}, v{s + 2 * i}, v{s + 2 * i + 1}")
    a("s_nop 1")
    mfma_pv(a, 0, 0)
    mfma_pv(a, 0, 1)
    a(f"s_add_u32 s{sT}, s{sT}, 2560")
    a("s_sub_u32 s15, s15, 1")
    a("s_nop 15")
    a("s_nop 3")
    a("s_cmp_lg_u32 s15, 0")
    a("s_cbranch_scc1 L_safe_loop")

def helpers(a):
    a.label("L_k2_helper")
    a(f"s_setprio {HPRIO}")
    a(f"s_cmp_lg_u32 s{sW}, 8")
    a("s_cbranch_scc1 L_k2_ffn")
    ring_loader(a)
    ffn(a)

def ring_loader(a):
    vF, vX = 4, 5
    a(f"v_lshlrev_b32 v{vF}, 2, v{vT1}")
    a(f"v_add_u32 v{vF}, {L_MISC}, v{vF}")
    a(f"v_mov_b32 v{vX}, 0")
    a(f"ds_write_b32 v{vF}, v{vX}")
    a(f"v_mov_b32 v{vF}, {F_LAND}")
    a("s_waitcnt lgkmcnt(0)")
    srd(a, SRD_WS, 4, WS_SRD)
    a("s_barrier")
    def chunk(c):
        for i in range(5):
            a(f"s_mov_b32 m0, {(c % 3) * 20480 + i * 4096}")
            a(f"s_add_u32 s{sT}, s{sKV}, {c * 20480 + i * 4096}")
            for j in range(4):
                a(f"buffer_load_dwordx4 v{vLANE16}, {WS}, s{sT} offen offset:{1024 * j} lds")
    def landed(c):
        a(f"v_mov_b32 v{vX}, {c}")
        a(f"ds_write_b32 v{vF}, v{vX}")
    chunk(1); chunk(2)
    a("s_waitcnt vmcnt(20)")
    landed(1)
    a("s_waitcnt vmcnt(0)")
    landed(2)
    for c in range(3, 8):
        a(f"v_mov_b32 v6, {F_FREEC + 4 * (c - 3)}")
        spin(a, f"L_free_{c}", 6, 7, sT, 8, sT2, sleep=6)
        chunk(c)
        a("s_waitcnt vmcnt(0)")
        landed(c)
    a(f"s_add_u32 s38, s4, {CAND_OFF}")
    a("s_addc_u32 s39, s5, 0")
    a("s_load_dwordx16 s[64:79], s[38:39], 0")
    a("s_load_dwordx16 s[80:95], s[38:39], 64")
    out_tile_ids(a)
    a("s_waitcnt lgkmcnt(0)")
    top2_scalar(a, 64, 42, 43, 12)
    a("s_bfe_u32 s12, s42, 0x50006")
    a("s_bfe_u32 s13, s43, 0x50006")
    a(f"s_cmp_eq_u32 s12, s{sMT}")
    a("s_cbranch_scc1 L_k2_watch")
    a(f"s_cmp_eq_u32 s13, s{sMT}")
    a("s_cbranch_scc0 L_k2_join")
    a.label("L_k2_watch")
    a(f"v_mov_b32 v7, {CNT_OFF + 8 * 256}")
    a(f"s_mov_b32 s13, {SPIN_MAX}")
    a.label("L_k2_poll_moe")
    a("global_load_dword v6, v7, s[4:5] sc1")
    a("s_waitcnt vmcnt(0)")
    a("v_readfirstlane_b32 s14, v6")
    a("s_sub_u32 s13, s13, 1")
    a("s_cbranch_scc1 L_k2_poll_moe_done")
    a(f"s_cmp_ge_u32 s14, {NMOE}")
    a("s_cbranch_scc1 L_k2_poll_moe_done")
    a("s_sleep 8")
    a("s_branch L_k2_poll_moe")
    a.label("L_k2_poll_moe_done")
    a(f"v_mov_b32 v6, {F_ALL}")
    a("v_mov_b32 v7, 1")
    a("ds_write_b32 v6, v7")
    a("s_waitcnt lgkmcnt(0)")
    a("s_branch L_k2_join")

def slice_index(a):
    a("s_and_b32 s33, s2, 7")
    a("s_mul_i32 s33, s33, 12")
    a("s_lshr_b32 s12, s2, 3")
    a("s_add_u32 s33, s33, s12")

def ffn(a):
    SRD_X, SRD_W = 56, 60
    sM, sB1, sB2, sU = 33, 42, 43, 44
    sCAND = 64
    vT, vA, vB = 4, 5, 6
    a.label("L_k2_ffn")
    a("s_barrier")
    a("s_load_dwordx2 s[6:7], s[0:1], 0")
    a("s_load_dwordx4 s[36:39], s[0:1], 40")
    a("s_load_dwordx2 s[40:41], s[0:1], 56")
    a("s_waitcnt lgkmcnt(0)")
    srd(a, SRD_WS, 4, WS_SRD)
    a(f"s_cmp_ge_u32 s2, {NMOE if not X('nomoe') else 0}")
    a("s_cbranch_scc1 L_k2_no_ffn")
    slice_index(a)
    a(f"s_cmp_eq_u32 s{sW}, 11")
    a("s_cbranch_scc1 L_k2_down")
    a(f"s_sub_u32 s{sU}, s{sW}, 9")
    srd(a, SRD_X, 6, X_BYTES)
    a(f"s_add_u32 s46, s4, {CAND_OFF}")
    a("s_addc_u32 s47, s5, 0")
    a(f"s_load_dwordx16 s[{sCAND}:{sCAND+15}], s[46:47], 0")
    a(f"s_load_dwordx16 s[{sCAND+16}:{sCAND+31}], s[46:47], 64")
    a(f"s_cmp_eq_u32 s{sU}, 0")
    a("s_cbranch_scc0 L_k2_up_srd")
    srd(a, SRD_W, 36, WG_BYTES)
    a("s_branch L_k2_srd_done")
    a.label("L_k2_up_srd")
    srd(a, SRD_W, 38, WG_BYTES)
    a.label("L_k2_srd_done")
    a(f"v_lshrrev_b32 v{vT}, 3, v{vT1}")
    a(f"v_mul_u32_u24 v{vA}, 3072, v{vT}")
    a(f"v_and_b32 v7, 7, v{vT1}")
    a(f"v_xor_b32 v7, v7, v{vT}")
    a(f"v_lshl_add_u32 v{vA}, v7, 4, v{vA}")
    a(f"s_and_b32 s17, s{sM}, 3")
    a(f"s_mul_i32 s15, s17, {160 * 3072}")
    a(f"s_lshr_b32 s16, s{sM}, 2")
    a("s_lshl_b32 s16, s16, 7")
    a("s_add_u32 s15, s15, s16")
    a(f"s_mul_i32 s14, s{sU}, 20480")
    a(f"s_add_u32 s14, s14, {L_WG}")
    vWA, vXA = 56, 6
    a(f"v_lshrrev_b32 v{vT}, 4, v{vT1}")
    a(f"v_bfe_u32 v7, v{vT1}, 2, 2")
    a(f"v_lshl_add_u32 v8, v{vT}, 3, v7")
    a(f"v_lshlrev_b32 v8, 7, v8")
    a(f"v_bfe_u32 v9, v{vT1}, 1, 1")
    a(f"v_xor_b32 v9, v9, v7")
    a(f"v_lshl_add_u32 v8, v9, 4, v8")
    a(f"v_and_b32 v9, 1, v{vT1}")
    a(f"v_lshl_add_u32 v8, v9, 3, v8")
    a(f"v_add_u32 v{vWA}, s14, v8")
    for k in range(1, 4):
        a(f"v_xor_b32 v{vWA + k}, {32 * k}, v{vWA}")
    a(f"s_mul_i32 s18, s{sU}, 1024")
    a(f"s_add_u32 s18, s18, {L_XG}")
    a(f"v_and_b32 v9, 3, v{vT1}")
    a(f"v_min_u32 v{vXA}, 2, v9")
    a(f"v_mul_u32_u24 v{vXA}, 320, v{vXA}")
    a(f"v_lshl_add_u32 v{vXA}, v{vT}, 4, v{vXA}")
    a(f"v_add_u32 v{vXA}, s18, v{vXA}")
    for r in range(4):
        a(f"v_mov_b32 v{8 + r}, 0x3f803f80")
    a(f"v_add_u32 v60, s18, v{vLANE16}")
    a("s_mov_b64 exec, 0xfffff")
    a(f"ds_write_b128 v60, v[8:11] offset:640")
    a("s_mov_b64 exec, -1")
    a(f"v_and_b32 v7, 15, v{vT1}")
    a(f"v_lshlrev_b32 v61, 8, v7")
    a(f"v_lshl_add_u32 v61, v{vT}, 4, v61")
    a("v_cmp_gt_u32 vcc, 3, v7")
    a(f"v_min_u32 v62, 2, v{vT}")
    a(f"v_lshlrev_b32 v62, 8, v62")
    a(f"v_lshl_add_u32 v62, v7, 2, v62")
    a("s_mov_b64 s[52:53], vcc")
    for q in range(20 if not X("moe_nodma") else 0):
        a(f"s_add_u32 m0, s14, {q * 1024}")
        a(f"s_add_u32 s16, s15, {q * 8 * 3072}")
        a(f"buffer_load_dwordx4 v{vA}, s[{SRD_W}:{SRD_W+3}], s16 offen lds")
    a("s_waitcnt lgkmcnt(0)")
    top2_scalar(a, sCAND, sB1, sB2, 12)
    a(f"s_and_b32 s{sB1}, s{sB1}, 0x7ff")
    a(f"s_and_b32 s{sB2}, s{sB2}, 0x7ff")
    for k, sB in ((0, sB1), (1, sB2)):
        a(f"s_lshl_b32 s12, s{sB}, 3")
        a("s_add_u32 s46, s4, s12")
        a("s_addc_u32 s47, s5, 0")
        a(f"s_add_u32 s46, s46, {ST_OFF}")
        a("s_addc_u32 s47, s47, 0")
        a(f"s_load_dwordx2 s[{48 + 2 * k}:{49 + 2 * k}], s[46:47], 0")
    a("s_mul_i32 s16, s17, 320")
    a("s_mov_b64 exec, 0xfffff")
    for k, sB in ((0, sB1), (1, sB2)):
        a(f"s_mul_i32 s12, s{sB}, 1280")
        a("s_add_u32 s12, s12, s16")
        a(f"s_add_u32 m0, s18, {320 * k}")
        a("s_nop 0")
        a(f"buffer_load_dwordx4 v{vLANE16}, s[{SRD_X}:{SRD_X+3}], s12 offen lds")
    a("s_mov_b64 exec, -1")
    a("s_waitcnt vmcnt(0) lgkmcnt(0)")
    vACC = 64
    for s_ in range(5 if not (X("moe_nocomp") or X("noA")) else 0):
        a(f"ds_read_b128 v[12:15], v{vXA} offset:{s_ * 64}")
        for ct in range(4):
            for rd_ in range(2):
                a(f"ds_read_b64_tr_b16 {vr(16 + 4 * ct + 2 * rd_, 2)}, v{vWA + (ct ^ (2 * rd_))} offset:{s_ * 4096 + 512 * rd_}")
        if LOWM: a("s_setprio 0")
        for ct in range(4):
            a(f"s_waitcnt lgkmcnt({6 - 2 * ct})")
            c = "0" if s_ == 0 else vr(vACC + 4 * ct, 4)
            a(f"v_mfma_f32_16x16x32_bf16 {vr(vACC + 4 * ct, 4)}, {vr(16 + 4 * ct, 4)}, v[12:15], {c}")
            if SPACE: a(f"s_nop {SPACE - 1}")
    if LOWM:
        a("s_nop 7")
        a(f"s_setprio {HPRIO}")
    a(f"s_lshl_b32 s12, s{sM}, 1")
    a(f"s_add_u32 s12, s12, s{sU}")
    a("s_mul_i32 s12, s12, 768")
    a(f"s_add_u32 s12, s12, {GP_OFF}")
    a("s_nop 7")
    a("s_mov_b64 exec, s[52:53]")
    for ct in range(4):
        a(f"buffer_store_dwordx4 {vr(vACC + 4 * ct, 4)}, v61, {WS}, s12 offen offset:{64 * ct} sc1")
    a("s_mov_b64 exec, -1")
    a(f"v_mov_b32 v52, 1")
    a(f"v_mov_b32 v53, {F_U}")
    a("s_waitcnt vmcnt(0)")
    a(f"s_cmp_eq_u32 s{sU}, 0")
    a("s_cbranch_scc1 L_k2_gate")
    a("ds_write_b32 v53, v52")
    a("s_branch L_k2_ffn_done")
    a.label("L_k2_gate")
    spin(a, "L_wait_u", 53, 54, 12, 1, 13, sleep=4)
    a(f"s_lshr_b32 s12, s{sM}, 2")
    a("s_add_u32 s12, s12, 9")
    a("s_lshl_b32 s12, s12, 8")
    a(f"s_add_u32 s12, s12, {CNT_OFF}")
    a("v_mov_b32 v9, s12")
    a("s_mov_b64 exec, 1")
    a("global_atomic_add v9, v52, s[4:5]")
    a(f"s_mov_b32 s13, {SPIN_MAX}")
    a.label("L_k2_poll_cb")
    a("global_load_dword v10, v9, s[4:5] sc1")
    a("s_waitcnt vmcnt(0)")
    a("v_readfirstlane_b32 s14, v10")
    a("s_sub_u32 s13, s13, 1")
    a("s_cbranch_scc1 L_k2_poll_cb_done")
    a("s_cmp_ge_u32 s14, 4")
    a("s_cbranch_scc1 L_k2_poll_cb_done")
    a("s_sleep 8")
    a("s_branch L_k2_poll_cb")
    a.label("L_k2_poll_cb_done")
    a("s_mov_b64 exec, -1")
    a(f"s_andn2_b32 s12, s{sM}, 3")
    a("s_mul_i32 s12, s12, 1536")
    a(f"s_add_u32 s12, s12, {GP_OFF}")
    a("s_lshl_b32 s16, s17, 6")
    a("s_add_u32 s12, s12, s16")
    for kq in range(4):
        for mat in range(2):
            a(f"s_add_u32 s16, s12, {kq * 1536 + mat * 768}")
            a(f"buffer_load_dword v{12 + 4 * mat + kq}, v62, {WS}, s16 offen sc1")
    a(f"v_cmp_gt_u32 vcc, 16, v{vT1}")
    a("v_mov_b32 v8, s50")
    a("v_mov_b32 v9, s51")
    a("v_mov_b32 v10, s48")
    a("v_mov_b32 v11, s49")
    a("v_cndmask_b32 v8, v8, v10, vcc")
    a("v_cndmask_b32 v9, v9, v11, vcc")
    a("s_waitcnt vmcnt(0)")
    for mat in range(2):
        b0 = 12 + 4 * mat
        a(f"v_add_f32 v{b0}, v{b0}, v{b0 + 1}")
        a(f"v_add_f32 v{b0 + 2}, v{b0 + 2}, v{b0 + 3}")
    for mat in range(2):
        b0 = 12 + 4 * mat
        a(f"v_add_f32 v{b0}, v{b0}, v{b0 + 2}")
    for mat in range(2):
        b0 = 12 + 4 * mat
        a(f"v_mov_b32 v{b0 + 1}, v{b0}")
        a(f"v_mov_b32 v{b0 + 2}, v{b0}")
    a("s_nop 1")
    for mat in range(2):
        b0 = 12 + 4 * mat
        a(f"v_permlane32_swap_b32 v{b0 + 1}, v{b0 + 2}")
    a("s_nop 1")
    for mat in range(2):
        b0 = 12 + 4 * mat
        a(f"v_fma_f32 v{b0}, -v8, v{b0 + 2}, v{b0}")
        a(f"v_mul_f32 v{b0}, v{b0}, v9")
    a(f"v_mul_f32 v20, {hex(f2u(-LOG2E))}, v12")
    a("v_exp_f32 v20, v20")
    a("v_mul_f32 v12, v12, v16")
    a("v_add_f32 v20, 1.0, v20")
    a("v_rcp_f32 v20, v20")
    a(f"v_lshlrev_b32 v{vT}, 1, v{vT1}")
    a("v_mul_f32 v12, v12, v20")
    a(f"v_add_u32 v{vT}, {L_H}, v{vT}")
    a("v_cvt_pk_bf16_f32 v12, v12, v12")
    a(f"ds_write_b16 v{vT}, v12")
    a(f"v_mov_b32 v53, {F_H}")
    a("s_waitcnt lgkmcnt(0)")
    a(f"ds_write_b32 v53, v52")
    a("s_branch L_k2_ffn_done")
    a.label("L_k2_down")
    srd(a, SRD_W, 40, WD_BYTES)
    vDA, vHA, vYO = 5, 6, 7
    a(f"v_bfe_u32 v{vT}, v{vT1}, 2, 2")
    a(f"v_mul_u32_u24 v{vDA}, 1280, v{vT}")
    a(f"v_lshrrev_b32 v{vT}, 4, v{vT1}")
    a(f"v_lshl_add_u32 v{vDA}, v{vT}, 5, v{vDA}")
    a(f"v_and_b32 v{vT}, 3, v{vT1}")
    a(f"v_lshl_add_u32 v{vDA}, v{vT}, 3, v{vDA}")
    a(f"v_add_u32 v{vDA}, {L_WD}, v{vDA}")
    a(f"v_and_b32 v{vT}, 1, v{vT1}")
    a(f"v_lshlrev_b32 v{vHA}, 5, v{vT}")
    a(f"v_add_u32 v{vHA}, {L_H}, v{vHA}")
    a(f"v_lshlrev_b32 v{vYO}, 2, v{vT1}")
    a(f"v_mov_b32 v53, {F_H}")
    a(f"s_mul_i32 s15, s{sM}, 20480")
    for i in range(5 if not X("moe_nodma") else 0):
        a(f"s_mov_b32 m0, {L_WD + i * 4096}")
        a(f"s_add_u32 s16, s15, {i * 4096}")
        for j in range(4):
            a(f"buffer_load_dwordx4 v{vLANE16}, s[{SRD_W}:{SRD_W+3}], s16 offen offset:{1024 * j} lds")
    a(f"s_mul_i32 s15, s{sM}, 5120")
    a(f"s_add_u32 s15, s15, {YP_OFF}")
    a("s_waitcnt vmcnt(0)")
    spin(a, "L_wait_h", 53, 54, 12, 1, 13, sleep=8)
    a(f"ds_read_b128 v[8:11], v{vHA}")
    a(f"ds_read_b128 v[12:15], v{vHA} offset:16")
    for kk in range(4 if not (X("moe_nocomp") or X("noD")) else 0):
        for gq in range(10):
            a(f"ds_read_b64_tr_b16 {vr(16 + 2 * gq, 2)}, v{vDA} offset:{kk * 5120 + gq * 128}")
        if LOWM: a("s_setprio 0")
        for gq in range(10):
            a(f"s_waitcnt lgkmcnt({9 - gq})")
            c = "0" if kk == 0 else vr(56 + 4 * gq, 4)
            a(f"v_mfma_f32_4x4x4bf16_1k {vr(56 + 4 * gq, 4)}, {vr(8 + 2 * kk, 2)}, {vr(16 + 2 * gq, 2)}, {c}")
        if LOWM: a(f"s_setprio {HPRIO}")
    a("s_nop 7")
    for t_ in range(2):
        for gq in range(10):
            a(f"s_add_u32 s16, s15, {t_ * 2560 + gq * 256}")
            a(f"buffer_store_dword v{56 + 4 * gq + t_}, v{vYO}, {WS}, s16 offen sc1")
    a("s_waitcnt vmcnt(0)")
    a(f"v_mov_b32 v7, {CNT_OFF + 8 * 256}")
    a("v_mov_b32 v8, 1")
    a("s_mov_b64 exec, 1")
    a("global_atomic_add v7, v8, s[4:5]")
    a("s_mov_b64 exec, -1")
    a.label("L_k2_ffn_done")
    ST(a, "ffn_done")
    a(f"v_mov_b32 v53, {F_MOE}")
    a(f"v_mov_b32 v52, 1")
    a("s_waitcnt lgkmcnt(0)")
    a("s_mov_b64 exec, 1")
    a("ds_add_u32 v53, v52")
    a("s_mov_b64 exec, -1")
    spin(a, "L_wait_moe", 53, 54, 12, 3, 13, sleep=8)
    a("s_branch L_k2_wo_prefetch")
    a.label("L_k2_no_ffn")
    a.label("L_k2_wo_prefetch")
    out_tile_ids(a)
    a(f"s_mul_i32 s12, s{sNT}, 102400")
    a(f"s_add_u32 s12, s12, {WO2_OFF}")
    a(f"s_sub_u32 s13, s{sW}, 9")
    for g in range(7):
        if g == 6:
            a("s_cmp_eq_u32 s13, 2")
            a("s_cbranch_scc1 L_k2_join")
        a(f"s_add_u32 s14, s13, {3 * g}")
        a("s_lshl_b32 s14, s14, 12")
        a(f"s_add_u32 m0, s14, {L_R}")
        a("s_add_u32 s14, s14, s12")
        for j in range(4):
            a(f"buffer_load_dwordx4 v{vLANE16}, {WS}, s14 offen offset:{1024 * j} lds")
    a("s_branch L_k2_join")

sMT, sNT = 44, 45
def out_tile_ids(a):
    a(f"s_bfe_u32 s{sMT}, s2, 0x20001")
    a(f"s_lshl_b32 s12, s{sQB}, 2")
    a(f"s_add_u32 s{sMT}, s{sMT}, s12")
    a(f"s_and_b32 s{sNT}, s2, 1")
    a(f"s_lshl_b32 s{sNT}, s{sNT}, 2")
    a("s_bfe_u32 s12, s2, 0x20003")
    a(f"s_add_u32 s{sNT}, s{sNT}, s12")

def projection(a):
    SRD_X, SRD_OUT = 56, 60
    sB1, sB2, sOBT = 42, 43, 46
    sCAND = 64
    vL16, vL16H, vL16H2 = vLANE16, 9, 3
    vTOK, vG, vT = 2, 8, 4
    vXO, vTOKG, vSTAT, vX = 10, 11, 12, 14
    vACC = 24
    vWF = (44, 64)
    vOF = 84
    a.label("L_k2_join")
    ST(a, "join")
    a("s_load_dwordx2 s[6:7], s[0:1], 0")
    a("s_load_dwordx2 s[36:37], s[0:1], 64")
    a(f"s_add_u32 s38, s4, {CAND_OFF}")
    a("s_addc_u32 s39, s5, 0")
    a(f"s_load_dwordx16 s[{sCAND}:{sCAND+15}], s[38:39], 0")
    a(f"s_load_dwordx16 s[{sCAND+16}:{sCAND+31}], s[38:39], 64")
    out_tile_ids(a)
    a("v_and_b32 v3, 63, v0")
    a("s_waitcnt vmcnt(0)")
    a("s_barrier")
    ST(a, "E1")
    a("s_waitcnt lgkmcnt(0)")
    srd(a, SRD_X, 6, X_BYTES)
    srd(a, SRD_OUT, 36, X_BYTES)
    a(f"s_cmp_eq_u32 s{sW}, 8")
    a("s_cbranch_scc1 L_k2_sync")
    a(f"s_cmp_ge_u32 s{sW}, 4")
    a("s_cbranch_scc1 L_k2_side")
    a(f"v_and_b32 v{vTOK}, 15, v3")
    a(f"v_lshrrev_b32 v{vG}, 4, v3")
    a(f"s_lshl_b32 s12, s{sMT}, 6")
    a(f"s_lshl_b32 s13, s{sW}, 4")
    a("s_add_u32 s12, s12, s13")
    a(f"v_add_u32 v{vTOKG}, s12, v{vTOK}")
    a(f"v_mul_u32_u24 v{vXO}, 1280, v{vTOKG}")
    a(f"v_lshl_add_u32 v{vXO}, v{vG}, 3, v{vXO}")
    a(f"s_mul_i32 s13, s{sNT}, 160")
    a(f"v_add_u32 v{vXO}, s13, v{vXO}")
    a(f"v_lshlrev_b32 v{vT+1}, 3, v{vTOKG}")
    a(f"s_mov_b32 s12, {ST_OFF}")
    a(f"buffer_load_dwordx2 {vr(vSTAT, 2)}, v{vT+1}, {WS}, s12 offen")
    for j in range(5):
        a(f"buffer_load_dwordx2 {vr(vX + 2 * j, 2)}, v{vXO}, s[{SRD_X}:{SRD_X+3}], 0 offen offset:{32 * j}")
    a(f"s_lshl_b32 s12, s{sMT}, 2")
    a(f"s_add_u32 s12, s12, s{sW}")
    a(f"s_mul_i32 s{sOBT}, s12, 20480")
    a(f"s_add_u32 s{sOBT}, s{sOBT}, {OB_OFF}")
    a(f"v_add_u32 v{vL16H}, {L_R}, v{vL16}")
    a(f"v_add_u32 v{vL16H2}, {L_R + 40960}, v{vL16}")
    top2_scalar(a, sCAND, sB1, sB2, 12)
    a(f"s_and_b32 s{sB1}, s{sB1}, 0x7ff")
    a(f"s_and_b32 s{sB2}, s{sB2}, 0x7ff")
    a("s_waitcnt vmcnt(0)")
    a(f"v_add_f32 v{vT}, 1.0, v{vSTAT+1}")
    a(f"v_mul_f32 v{vT+1}, v{vSTAT}, v{vSTAT+1}")
    for j in range(5):
        for i in range(2):
            a(f"v_lshlrev_b32 v{vT+2}, 16, v{vX + 2 * j + i}")
            a(f"v_and_b32 v{vT+3}, 0xffff0000, v{vX + 2 * j + i}")
            a(f"v_fma_f32 v{vACC + 4 * j + 2 * i}, v{vT+2}, v{vT}, -v{vT+1}")
            a(f"v_fma_f32 v{vACC + 4 * j + 2 * i + 1}, v{vT+3}, v{vT}, -v{vT+1}")
    a("s_barrier")
    ST(a, "E2")
    for B in range(5):
        a(f"s_add_u32 s12, s{sOBT}, {B * 4096}")
        for k in range(4):
            a(f"buffer_load_dwordx4 {vr(vOF + 16 * B + 4 * k, 4)}, v{vL16}, {WS}, s12 offen offset:{1024 * k} sc1")
    def reads(st):
        f = vWF[st & 1]
        reg, off = (vL16H, st * 5120) if st < 8 else ((vL16H2, (st - 8) * 5120) if st < 16 else (vL16, (st - 16) * 5120))
        for j in range(5):
            a(f"ds_read_b128 {vr(f + 4 * j, 4)}, v{reg} offset:{off + 1024 * j}")
    def mfmas(st):
        f = vWF[st & 1]
        for j in range(5):
            a(f"v_mfma_f32_16x16x32_bf16 {vr(vACC + 4 * j, 4)}, {vr(f + 4 * j, 4)}, {vr(vOF + 4 * st, 4)}, {vr(vACC + 4 * j, 4)}")
    reads(0)
    for st in range(20):
        if st == 12:
            pass
        if st < 19:
            if st + 1 == 16:
                a("s_barrier")
            reads(st + 1)
        a(f"s_waitcnt vmcnt({19 - st}) lgkmcnt({5 if st < 19 else 0})")
        mfmas(st)
    ST(a, "gemm")
    a(f"v_lshlrev_b32 v{vT}, 4, v{vG}")
    a(f"v_add_u32 v{vT}, {L_Y}, v{vT}")
    a("s_nop 7")
    for sel, sB in ((0, sB1), (1, sB2)):
        lab = f"L_k2_noupd{sel}"
        a(f"s_lshr_b32 s12, s{sB}, 6")
        a(f"s_cmp_lg_u32 s12, s{sMT}")
        a(f"s_cbranch_scc1 {lab}")
        for j in range(5):
            a(f"ds_read_b128 {vr(vWF[0] + 4 * j, 4)}, v{vT} offset:{320 * sel + 64 * j}")
        a(f"v_cmp_eq_u32 vcc, s{sB}, v{vTOKG}")
        a("s_waitcnt lgkmcnt(0)")
        a("s_nop 1")
        for j in range(5):
            for r in range(4):
                a(f"v_cndmask_b32 v{vWF[0] + 4 * j + r}, 0, v{vWF[0] + 4 * j + r}, vcc")
                a(f"v_add_f32 v{vACC + 4 * j + r}, v{vACC + 4 * j + r}, v{vWF[0] + 4 * j + r}")
        a.label(lab)
    for j in range(5):
        for i in range(2):
            a(f"v_cvt_pk_bf16_f32 v{vX + 2 * j + i}, v{vACC + 4 * j + 2 * i}, v{vACC + 4 * j + 2 * i + 1}")
        a(f"buffer_store_dwordx2 {vr(vX + 2 * j, 2)}, v{vXO}, s[{SRD_OUT}:{SRD_OUT+3}], 0 offen offset:{32 * j}")
    ST(a, "stores")
    if ST.on:
        a("s_waitcnt vmcnt(0)")
    ST(a, "end")
    ST.store(a)
    a("s_endpgm")

    a.label("L_k2_sync")
    ST(a, "E1b")
    a(f"s_lshl_b32 s12, s{sQB}, 8")
    a(f"s_add_u32 s12, s12, {CNT_OFF}")
    a("v_mov_b32 v4, s12")
    a("v_mov_b32 v5, 1")
    a("s_mov_b64 exec, 1")
    a("global_atomic_add v6, v4, v5, s[4:5] sc0")
    a("s_waitcnt vmcnt(0)")
    a("v_readfirstlane_b32 s14, v6")
    a(f"s_mov_b32 s13, {SPIN_MAX}")
    a("s_cmp_ge_u32 s14, 31")
    a("s_cbranch_scc1 L_k2_poll_done")
    for r in range(3):
        a(f"global_load_dword v{8 + r}, v4, s[4:5] sc1")
        a("s_sleep 2")
    a.label("L_k2_poll")
    for r in range(4):
        a(f"global_load_dword v{8 + (r + 3) % 4}, v4, s[4:5] sc1")
        a("s_waitcnt vmcnt(3)")
        a(f"v_readfirstlane_b32 s14, v{8 + r}")
        a("s_sub_u32 s13, s13, 1")
        a("s_cbranch_scc1 L_k2_poll_done")
        a("s_cmp_ge_u32 s14, 32")
        a("s_cbranch_scc1 L_k2_poll_done")
        a("s_sleep 2")
    a("s_branch L_k2_poll")
    a.label("L_k2_poll_done")
    a("s_mov_b64 exec, -1")
    ST(a, "polled")
    a("s_barrier")
    a("s_barrier")
    ST.store(a)
    if os.environ.get("DBG_SUMMARY"):
        summary(a)
    a("s_endpgm")

    a.label("L_k2_side")
    a(f"s_cmp_ge_u32 s{sW}, 8")
    a("s_cbranch_scc1 L_k2_side_b")
    a(f"s_sub_u32 s13, s{sW}, 4")
    a(f"s_mul_i32 s12, s{sNT}, 102400")
    a(f"s_add_u32 s12, s12, {WO2_OFF + 16 * 5120}")
    a("s_mul_i32 s14, s13, 5120")
    a("s_add_u32 s12, s12, s14")
    a("s_mov_b32 m0, s14")
    a("s_nop 0")
    for j in range(4):
        a(f"buffer_load_dwordx4 v{vL16}, {WS}, s12 offen offset:{1024 * j} lds")
    a("s_add_u32 m0, s14, 4096")
    a("s_add_u32 s12, s12, 4096")
    a(f"buffer_load_dwordx4 v{vL16}, {WS}, s12 offen lds")
    top2_scalar(a, sCAND, sB1, sB2, 12)
    a(f"s_and_b32 s{sB1}, s{sB1}, 0x7ff")
    a(f"s_and_b32 s{sB2}, s{sB2}, 0x7ff")
    a(f"s_lshr_b32 s12, s{sB1}, 6")
    a(f"s_lshr_b32 s13, s{sB2}, 6")
    a(f"s_cmp_eq_u32 s12, s{sMT}")
    a("s_cbranch_scc1 L_k2_routed")
    a(f"s_cmp_eq_u32 s13, s{sMT}")
    a("s_cbranch_scc1 L_k2_routed")
    a("s_waitcnt vmcnt(0)")
    a("s_barrier")
    a("s_barrier")
    ST.store(a)
    a("s_endpgm")
    a.label("L_k2_routed")
    routed(a, sB1, sB2)
    a.label("L_k2_side_b")
    a("s_barrier")
    a("s_barrier")
    ST.store(a)
    a("s_endpgm")

def routed(a, sB1, sB2):
    vT, vY = 4, 20
    a(f"v_mov_b32 v7, {F_ALL}")
    spin(a, "L_rt_all", 7, 6, 14, 1, 15)
    a(f"v_subrev_u32 v{vT}, 256, v0")
    a(f"v_mul_u32_u24 v{vT+1}, 52429, v{vT}")
    a(f"v_lshrrev_b32 v{vT+1}, 20, v{vT+1}")
    a(f"v_mul_u32_u24 v{vT+2}, 20, v{vT+1}")
    a(f"v_sub_u32 v{vT+2}, v{vT}, v{vT+2}")
    a(f"v_mul_u32_u24 v8, {8 * 5120}, v{vT+1}")
    a(f"v_lshl_add_u32 v8, v{vT+2}, 4, v8")
    a(f"v_mul_u32_u24 v9, 320, v{vT+1}")
    a(f"v_lshl_add_u32 v9, v{vT+2}, 4, v9")
    a(f"v_add_u32 v9, {L_RED}, v9")
    a(f"v_lshlrev_b32 v10, 2, v{vT}")
    a(f"v_mov_b32 v11, {F_RT}")
    a("v_mov_b32 v12, 1")
    for sel, sB in ((0, sB1), (1, sB2)):
        lab = f"L_k2_rt_skip{sel}"
        a(f"s_lshr_b32 s12, s{sB}, 6")
        a(f"s_cmp_lg_u32 s12, s{sMT}")
        a(f"s_cbranch_scc1 {lab}")
        a(f"s_lshl_b32 s12, s{sB}, 2")
        a("s_add_u32 s38, s4, s12")
        a("s_addc_u32 s39, s5, 0")
        a(f"s_add_u32 s38, s38, {R_OFF}")
        a("s_addc_u32 s39, s39, 0")
        a("s_load_dword s40, s[38:39], 0")
        a(f"s_mul_i32 s12, s{sNT}, 320")
        a(f"s_add_u32 s12, s12, {YP_OFF + sel * 2560}")
        a(f"v_cmp_gt_u32 vcc, 240, v{vT}")
        a("s_and_saveexec_b64 s[48:49], vcc")
        for i in range(8):
            a(f"s_add_u32 s13, s12, {i * 5120}")
            a(f"buffer_load_dwordx4 {vr(vY + 4 * i, 4)}, v8, {WS}, s13 offen sc1")
        a("s_waitcnt vmcnt(0)")
        for i in range(1, 8):
            for r in range(4):
                a(f"v_add_f32 v{vY + r}, v{vY + r}, v{vY + 4 * i + r}")
        a(f"ds_write_b128 v9, {vr(vY, 4)}")
        a("s_mov_b64 exec, s[48:49]")
        a("s_waitcnt lgkmcnt(0)")
        a("s_mov_b64 exec, 1")
        a(f"ds_add_u32 v11, v12 offset:{8 * sel}")
        a("s_mov_b64 exec, -1")
        a(f"v_add_u32 v13, {8 * sel}, v11")
        spin(a, f"L_rt_a{sel}", 13, 14, 14, 4, 15)
        a(f"v_add_u32 v13, {L_RED}, v10")
        a(f"v_cmp_gt_u32 vcc, 80, v{vT}")
        a("s_and_saveexec_b64 s[48:49], vcc")
        a(f"s_cbranch_execz L_k2_rt_c{sel}")
        for p in range(12):
            a(f"ds_read_b32 v{vY + p}, v13 offset:{320 * p}")
        a("v_mov_b32 v15, s40")
        a(f"v_mul_f32 v15, {hex(f2u(-LOG2E))}, v15")
        a("v_exp_f32 v15, v15")
        a("s_nop 0")
        a("v_add_f32 v15, 1.0, v15")
        a("v_rcp_f32 v15, v15")
        a("s_waitcnt lgkmcnt(0)")
        for p in range(1, 12):
            a(f"v_add_f32 v{vY}, v{vY}, v{vY + p}")
        a(f"v_mul_f32 v{vY}, v{vY}, v15")
        a(f"v_add_u32 v13, {L_Y + 320 * sel}, v10")
        a(f"ds_write_b32 v13, v{vY}")
        a.label(f"L_k2_rt_c{sel}")
        a("s_mov_b64 exec, s[48:49]")
        a("s_waitcnt lgkmcnt(0)")
        a("s_mov_b64 exec, 1")
        a(f"ds_add_u32 v11, v12 offset:{8 * sel + 4}")
        a("s_mov_b64 exec, -1")
        a(f"v_add_u32 v13, {8 * sel + 4}, v11")
        spin(a, f"L_rt_b{sel}", 13, 14, 14, 4, 15)
        a.label(lab)
    a("s_waitcnt vmcnt(0)")

def emit(a):
    entry(a)
    attention(a)
    helpers(a)
    projection(a)
    a.label("L_k2_exit")
    a("s_endpgm")
    a.label("L_k2_end")


def summary(a):
    import k1
    a("s_mov_b64 exec, -1")
    a("s_cmp_lg_u32 s2, 0")
    a("s_cbranch_scc1 L_sum_end")
    a("s_load_dwordx2 s[34:35], s[0:1], 72")
    a("s_waitcnt lgkmcnt(0)")
    a(f"s_mov_b32 s{SRD_WS + 2}, 0x2000000")
    a("v_and_b32 v3, 63, v0")
    names = ["entry", "B0", "loopend", "e_bar", "stores", "end"]
    a("v_mov_b32 v40, -1")
    for i in range(1, 8):
        a(f"v_mov_b32 v{40 + i}, 0")
    for q in range(4):
        a(f"v_add_u32 v4, {64 * q}, v3")
        a("v_lshlrev_b32 v5, 11, v4")
        a(f"s_mov_b32 s12, {PROF_OFF + 64}")
        for i, nm in enumerate(names):
            a(f"buffer_load_dword v{10 + i}, v5, {WS}, s12 offen offset:{4 * k1.ST.names.index(nm)}")
        a(f"buffer_load_dword v16, v5, {WS}, s12 offen offset:{4 * k1.ST.names.index('e_lds')}")
        a("s_waitcnt vmcnt(0)")
        a("v_and_b32 v6, 0xe4, v4")
        a("v_cmp_eq_u32 vcc, 0xe4, v6")
        a("s_nop 1")
        a("v_min_u32 v40, v40, v10")
        for i in range(1, 6):
            a(f"v_cndmask_b32 v{10 + i}, v{10 + i}, 0, vcc")
            a(f"v_max_u32 v{40 + i}, v{40 + i}, v{10 + i}")
        a("v_cndmask_b32 v16, 0, v16, vcc")
        a("v_max_u32 v46, v46, v16")
    vals = [40, 41, 42, 43, 44, 45, 46]
    for x in (1, 2, 4, 8, 16, 32):
        a(f"v_xor_b32 v6, {x}, v3")
        a("v_lshlrev_b32 v6, 2, v6")
        for r in vals:
            a(f"ds_bpermute_b32 v20, v6, v{r}")
            a("s_waitcnt lgkmcnt(0)")
            a(f"v_{'min' if r == 40 else 'max'}_u32 v{r}, v{r}, v20")
    for k_, nm in enumerate(["entry", "join", "E1", "polled"]):
        a(f"v_readlane_b32 s12, v{ST.vt + 1}, {ST.names.index(nm)}")
        a("s_nop 3")
        a(f"v_mov_b32 v{50 + k_}, s12")
    a("s_memrealtime s[12:13]")
    a("s_waitcnt lgkmcnt(0)")
    a("v_mov_b32 v54, s12")
    a("v_mov_b32 v7, 0")
    a("s_mov_b64 exec, 1")
    for k_, r in enumerate([41, 42, 43, 44, 45, 46, 50, 51, 52, 53, 54]):
        a(f"v_sub_u32 v20, v{r}, v40")
        a(f"global_store_dword v7, v20, s[34:35] offset:{4 * k_}")
    a("s_waitcnt vmcnt(0)")
    a.label("L_sum_end")
```

```python
from common import *
from k2moe import top2_scalar
import os

NAME = "attn_proj_kernel"
LDS = 163840
VGPRS = 168
BLOCK = 768
GRID = 256
NMOE = 96

def X(flag):
    return flag in os.environ.get("K2_EXP", "").split(",")

ST = StampsLane("k2", 20, 8, 164)

L_RING = 0
L_R = 61440
L_WG, L_WU, L_WD = L_R, L_R + 20480, L_R + 40960
L_XG, L_XU = L_R + 61440, L_R + 61440 + 3840
L_U, L_H = L_R + 69120, L_R + 69120 + 1024
L_MISC = 143360
F_LAND, F_FREE, F_U, F_H, F_MOE, F_ALL = L_MISC, L_MISC + 4, L_MISC + 8, L_MISC + 12, L_MISC + 16, L_MISC + 20
F_RT = L_MISC + 24
F_FREEC = L_MISC + 64
L_RED, L_Y = L_MISC + 1024, L_MISC + 1024 + 3840
SPIN_MAX = 1 << 20
EARLY_B0 = os.environ.get("K2_EARLYB0", "1") == "1"
SPACE = int(os.environ.get("K2_SPACE", "0"))
HPRIO = int(os.environ.get("K2_HPRIO", "3"))
LOWM = int(os.environ.get("K2_LOWM", "0"))

vLANE16, vT0, vT1 = 1, 2, 3
vKA, vKB, vV, vFL = 4, 5, 6, 7
vQ1, vQ2 = 10, 20
vFLAG, vONE = 16, 17
vS = (32, 48)
vO = 64
vP = 80
vKAf = (88, 92)
vKBf = (24, 28)
vVf = ((100, 104), (108, 112))
vTMP = 116

sW, sHEAD, sKV, sQ, sOB, sOM = 20, 21, 22, 23, 24, 25
sVMASK = 26
sLO = 28
sT, sT2, sQB = 30, 31, 32
SRD_WS = 8
WS = f"s[{SRD_WS}:{SRD_WS+3}]"

def lds_tile(t):
    return ((t >> 3) % 3) * 20480 + (t & 7) * 2560

def spin(a, name, vaddr, vtmp, stmp, target, cnt, sleep=1):
    a(f"s_mov_b32 s{cnt}, {SPIN_MAX}")
    a.label(f"{name}_loop")
    a(f"ds_read_b32 v{vtmp}, v{vaddr}")
    a("s_waitcnt lgkmcnt(0)")
    a(f"v_readfirstlane_b32 s{stmp}, v{vtmp}")
    a(f"s_sub_u32 s{cnt}, s{cnt}, 1")
    a(f"s_cbranch_scc1 {name}_done")
    a(f"s_cmp_ge_u32 s{stmp}, {target}")
    a(f"s_cbranch_scc1 {name}_done")
    a(f"s_sleep {sleep}")
    a(f"s_branch {name}_loop")
    a.label(f"{name}_done")

def mfma_s1(a, dst, buf):
    a(f"v_mfma_f32_32x32x16_bf16 {vr(dst, 16)}, {vr(vKAf[buf], 4)}, {vr(vQ1, 4)}, 0")
def mfma_s2(a, dst, buf):
    if X("nos2"): return
    if not X("s2x16"):
        a(f"v_mfma_f32_32x32x8bf16_1k {vr(dst, 16)}, {vr(vKBf[buf], 2)}, {vr(vQ2, 2)}, {vr(dst, 16)}")
    else:
        a(f"v_mfma_f32_32x32x16_bf16 {vr(dst, 16)}, {vr(vKBf[buf], 4)}, {vr(vQ2, 4)}, {vr(dst, 16)}")
def mfma_pv(a, buf, t):
    a(f"v_mfma_f32_32x32x16_bf16 {vr(vO, 16)}, {vr(vVf[buf][t], 4)}, {vr(vP + 4 * t, 4)}, {vr(vO, 16)}")

def read_ka(a, t, buf):
    a(f"ds_read_b128 {vr(vKAf[buf], 4)}, v{vKA} offset:{lds_tile(t)}")
def read_kb(a, t, buf):
    a(f"ds_read_b64 {vr(vKBf[buf], 2)}, v{vKB} offset:{lds_tile(t)}")
def read_v(a, t, part):
    a(f"ds_read_b128 {vr(vVf[t & 1][part], 4)}, v{vV} offset:{lds_tile(t) + 640 * part}")

def tile_body(a, t):
    sc, sn = vS[t & 1], vS[(t + 1) & 1]
    last = t == 63
    ex = lambda r: a(f"v_exp_f32 v{sc + r}, v{sc + r}")
    cv = lambda i: a(f"v_cvt_pk_bf16_f32 v{vP + i}, v{sc + 2 * i}, v{sc + 2 * i + 1}")
    ex(0)
    a("s_setprio 1")
    ex(1)
    if t > 0:
        mfma_pv(a, (t - 1) & 1, 1)
    for r in range(2, 6):
        ex(r)
    if not last:
        mfma_s1(a, sn, (t + 1) & 1)
    ex(6); ex(7)
    for i in range(4):
        cv(i)
    if not X("neworder"):
        if not last:
            mfma_s2(a, sn, (t + 1) & 1)
        for r in range(8, 12):
            ex(r)
        mfma_pv(a, t & 1, 0)
        for r in range(12, 16):
            ex(r)
    else:
        ex(8); ex(9)
        mfma_pv(a, t & 1, 0)
        for r in range(10, 14):
            ex(r)
        if not last:
            mfma_s2(a, sn, (t + 1) & 1)
        ex(14); ex(15)
    for i in range(4, 8):
        cv(i)
    a("s_setprio 0")
    a("s_waitcnt lgkmcnt(0)")
    if t % 8 == 5 and t < 56:
        c = t // 8 + 1
        a(f"v_readfirstlane_b32 s{sT}, v{vFLAG}")
        a(f"s_cmp_ge_u32 s{sT}, {c}")
        a(f"s_cbranch_scc1 L_land_{c}_skip")
        if ST.on:
            a("s_memtime s[90:91]")
            a("s_waitcnt lgkmcnt(0)")
        spin(a, f"L_land_{c}", vFL, vFLAG, sT, c, sT2)
        if ST.on:
            a("s_memtime s[88:89]")
            a("s_waitcnt lgkmcnt(0)")
            a("s_sub_u32 s88, s88, s90")
            a("s_add_u32 s87, s87, s88")
        a.label(f"L_land_{c}_skip")
    if t % 8 == 7 and t < 40:
        a("s_mov_b64 exec, 1")
        a(f"ds_add_u32 v{vFL}, v{vONE} offset:{F_FREEC - F_LAND + 4 * (t // 8)}")
        a("s_mov_b64 exec, -1")
    if t + 3 <= 63:
        if not X("noka"): read_ka(a, t + 3, (t + 1) & 1)
        a(f"s_mov_b64 exec, s[{sLO}:{sLO+1}]")
        if not X("nokb"): read_kb(a, t + 3, (t + 1) & 1)
    if t + 1 <= 63:
        a(f"s_mov_b64 exec, s[{sVMASK}:{sVMASK+1}]")
        if t + 2 <= 63 and not X("nov0"):
            read_v(a, t + 2, 0)
        if not X("nov1"): read_v(a, t + 1, 1)
        a("s_mov_b64 exec, -1")
    if t % 8 == 4 and t < 56:
        a(f"ds_read_b32 v{vFLAG}, v{vFL}")
    if t == 62:
        a("s_nop 1")
    if last:
        a("s_nop 1")
        mfma_pv(a, t & 1, 1)

def row_max(a, s, dst, tmp):
    a(f"v_max3_f32 v{dst}, v{s}, v{s+1}, v{s+2}")
    for r in range(3, 15, 2):
        a(f"v_max3_f32 v{dst}, v{dst}, v{s+r}, v{s+r+1}")
    a(f"v_max_f32 v{dst}, v{dst}, v{s+15}")
    a(f"v_mov_b32 v{tmp}, v{dst}")
    a("s_nop 1")
    a(f"v_permlane32_swap_b32 v{dst}, v{tmp}")
    a("s_nop 1")
    a(f"v_max_f32 v{dst}, v{dst}, v{tmp}")

def entry(a):
    kernel_header(a, NAME)
    ST(a, "entry")
    a(f"s_cmp_ge_u32 s2, {GRID}")
    a("s_cbranch_scc1 L_k2_exit")
    a("s_load_dwordx2 s[4:5], s[0:1], 80")
    a(f"v_lshrrev_b32 v{vT0}, 6, v0")
    a(f"v_and_b32 v{vT1}, 63, v0")
    a(f"v_readfirstlane_b32 s{sW}, v{vT0}")
    a("s_and_b32 s12, s2, 7")
    a("s_lshl_b32 s12, s12, 2")
    a("s_bfe_u32 s13, s2, 0x20003")
    a(f"s_or_b32 s{sHEAD}, s12, s13")
    a(f"s_lshr_b32 s{sQB}, s2, 5")
    a(f"s_mul_i32 s{sKV}, s{sHEAD}, {64 * 2560}")
    a(f"s_add_u32 s{sKV}, s{sKV}, {KV_OFF}")
    a(f"v_lshlrev_b32 v{vLANE16}, 4, v{vT1}")
    a(f"s_cmp_ge_u32 s{sW}, 8")
    a("s_cbranch_scc1 L_k2_helper")

def attention(a):
    a(f"s_lshl_b32 s14, s{sQB}, 3")
    a(f"s_add_u32 s14, s14, s{sW}")
    a(f"s_lshl_b32 s15, s{sHEAD}, 6")
    a("s_add_u32 s15, s15, s14")
    a(f"s_mul_i32 s{sQ}, s15, 1280")
    if QB_OFF:
        a(f"s_add_u32 s{sQ}, s{sQ}, {QB_OFF}")
    a(f"s_mul_i32 s16, s{sW}, 2560")
    a(f"s_add_u32 s17, s{sKV}, s16")
    a(f"s_mov_b32 s{sLO}, -1")
    a(f"s_mov_b32 s{sLO+1}, 0")
    a(f"v_and_b32 v{vT0}, 31, v{vT1}")
    a(f"v_lshlrev_b32 v{vTMP}, 3, v{vT0}")
    for r in range(4):
        a(f"v_mov_b32 v{vQ2 + r}, 0")
    a("s_waitcnt lgkmcnt(0)")
    srd(a, SRD_WS, 4, WS_SRD)
    a("s_mov_b32 m0, s16")
    a("s_nop 0")
    a(f"buffer_load_dwordx4 v{vLANE16}, {WS}, s17 offen lds")
    a(f"buffer_load_dwordx4 v{vLANE16}, {WS}, s17 offen offset:1024 lds")
    a(f"s_mov_b64 exec, s[{sLO}:{sLO+1}]")
    a(f"buffer_load_dwordx4 v{vLANE16}, {WS}, s17 offen offset:2048 lds")
    a(f"buffer_load_dwordx2 {vr(vQ2, 2)}, v{vTMP}, {WS}, s{sQ} offen offset:1024")
    a("s_mov_b64 exec, -1")
    a(f"buffer_load_dwordx4 {vr(vQ1, 4)}, v{vLANE16}, {WS}, s{sQ} offen")
    a(f"s_mul_i32 s{sOB}, s14, 40960")
    a(f"s_add_u32 s{sOB}, s{sOB}, {OB_OFF}")
    a(f"s_lshr_b32 s15, s{sHEAD}, 3")
    a("s_mul_i32 s15, s15, 5120")
    a(f"s_add_u32 s{sOB}, s{sOB}, s15")
    a(f"s_bfe_u32 s15, s{sHEAD}, 0x20001")
    a("s_lshl_b32 s15, s15, 10")
    a(f"s_and_b32 s16, s{sHEAD}, 1")
    a("s_lshl_b32 s16, s16, 9")
    a("s_add_u32 s15, s15, s16")
    a(f"s_add_u32 s{sOM}, s{sOB}, s15")
    a(f"s_and_b32 s15, s{sHEAD}, 3")
    a("s_lshl_b32 s15, s15, 8")
    a(f"s_bfe_u32 s16, s{sHEAD}, 0x10002")
    a("s_lshl_b32 s16, s16, 3")
    a("s_add_u32 s15, s15, s16")
    a(f"s_add_u32 s{sOB}, s{sOB}, s15")
    a(f"s_add_u32 s{sOB}, s{sOB}, 4096")
    a(f"s_mov_b32 s{sVMASK}, 0x000fffff")
    a(f"s_mov_b32 s{sVMASK+1}, 0x000fffff")
    a(f"v_mov_b32 v{vKA}, v{vLANE16}")
    a(f"v_add_u32 v{vKB}, 1024, v{vTMP}")
    a(f"v_lshrrev_b32 v{vTMP+1}, 5, v{vT1}")
    a(f"v_mul_u32_u24 v{vTMP+1}, 320, v{vTMP+1}")
    a(f"v_lshl_add_u32 v{vTMP+1}, v{vT0}, 4, v{vTMP+1}")
    a(f"v_add_u32 v{vV}, 1280, v{vTMP+1}")
    a(f"v_mov_b32 v{vFL}, {F_LAND}")
    a(f"v_mov_b32 v{vONE}, 1")
    a(f"v_and_b32 v{vTMP+1}, 27, v{vT0}")
    a(f"v_cmp_eq_u32 vcc, 24, v{vTMP+1}")
    a(f"v_mov_b32 v{vTMP+2}, 0x3f803f80")
    a("s_nop 1")
    a(f"v_cndmask_b32 v{vTMP+1}, 0, v{vTMP+2}, vcc")
    for b in range(2):
        for t in range(2):
            for r in range(4):
                a(f"v_mov_b32 v{vVf[b][t] + r}, v{vTMP+1}")
    for r in range(16):
        a(f"v_mov_b32 v{vO + r}, 0")
    a(f"v_cmp_le_u32 vcc, 32, v{vT1}")
    a(f"v_mov_b32 v{vTMP+2}, 0x3f80")
    a("s_nop 1")
    for b in range(2):
        a(f"v_cndmask_b32 v{vKBf[b]}, 0, v{vTMP+2}, vcc")
        for r in range(1, 4):
            a(f"v_mov_b32 v{vKBf[b] + r}, 0")
    a("s_waitcnt vmcnt(0)")
    a("s_barrier")
    ST(a, "B0")
    read_ka(a, 0, 0)
    read_ka(a, 1, 1)
    a(f"s_mov_b64 exec, s[{sLO}:{sLO+1}]")
    read_kb(a, 0, 0)
    read_kb(a, 1, 1)
    a(f"s_mov_b64 exec, s[{sVMASK}:{sVMASK+1}]")
    read_v(a, 0, 0); read_v(a, 0, 1); read_v(a, 1, 0)
    a("s_mov_b64 exec, -1")
    a("s_waitcnt lgkmcnt(3)")
    mfma_s1(a, vS[0], 0)
    a("s_nop 11")
    mfma_s2(a, vS[0], 0)
    a("s_nop 15")
    a("s_nop 3")
    row_max(a, vS[0], vTMP, vTMP + 1)
    a(f"v_sub_f32 v{vTMP}, 0, v{vTMP}")
    a(f"v_cvt_pk_bf16_f32 v{vTMP}, v{vTMP}, 0")
    a(f"v_cmp_le_u32 vcc, 32, v{vT1}")
    a("s_nop 1")
    a(f"v_cndmask_b32 v{vQ2}, v{vQ2}, v{vTMP}, vcc")
    read_ka(a, 2, 0)
    a(f"s_mov_b64 exec, s[{sLO}:{sLO+1}]")
    read_kb(a, 2, 0)
    a("s_mov_b64 exec, -1")
    a(f"v_lshlrev_b32 v{vTMP}, 16, v{vTMP}")
    for r in range(16):
        a(f"v_add_f32 v{vS[0] + r}, v{vS[0] + r}, v{vTMP}")
    a("s_waitcnt lgkmcnt(2)")
    if ST.on:
        a("s_mov_b32 s87, 0")
    for t in range(64):
        if t in (0, 8, 32, 56):
            ST(a, f"t{t}")
        tile_body(a, t)
    ST(a, "loopend")
    if ST.on:
        a(f"v_writelane_b32 v{ST.vt}, s87, 15")
    a("s_nop 15")
    a("s_nop 3")
    a(f"v_mov_b32 v{vTMP}, v{vO + 12}")
    for r in range(12):
        a(f"v_fma_f32 v{vTMP}, v{vO + r}, 0, v{vTMP}")
    a(f"v_mov_b32 v{vTMP+1}, {hex(f2u(2.0 ** 100))}")
    a(f"v_cmp_nlt_f32 vcc, v{vTMP}, v{vTMP+1}")
    a("s_nop 4")
    a("s_cbranch_vccz L_attn_store")
    safe_path(a)
    a.label("L_attn_store")
    a(f"v_rcp_f32 v{vTMP}, v{vO + 12}")
    a("s_nop 1")
    for r in range(12):
        a(f"v_mul_f32 v{vO + r}, v{vO + r}, v{vTMP}")
    for i in range(6):
        a(f"v_cvt_pk_bf16_f32 v{vP + i}, v{vO + 2 * i}, v{vO + 2 * i + 1}")
    a(f"v_and_b32 v{vTMP+1}, 15, v0")
    a(f"v_lshlrev_b32 v{vTMP+1}, 4, v{vTMP+1}")
    a(f"v_bfe_u32 v{vTMP+2}, v0, 4, 1")
    a(f"v_mul_u32_u24 v{vTMP+2}, 20480, v{vTMP+2}")
    a(f"v_add_u32 v{vTMP+1}, v{vTMP+1}, v{vTMP+2}")
    a(f"v_bfe_u32 v{vTMP+2}, v0, 5, 1")
    a(f"v_lshl_add_u32 v{vTMP+2}, v{vTMP+2}, 8, v{vTMP+1}")
    a(f"buffer_store_dwordx4 {vr(vP, 4)}, v{vTMP+2}, {WS}, s{sOM} offen sc1")
    a(f"s_mov_b64 exec, s[{sLO}:{sLO+1}]")
    a(f"buffer_store_dwordx2 {vr(vP + 4, 2)}, v{vTMP+1}, {WS}, s{sOB} offen sc1")
    a("s_mov_b64 exec, -1")
    a("s_branch L_k2_join")

def safe_path(a):
    vM, vMN, vAL = vTMP, vTMP + 1, vTMP + 2
    vA2, vA3 = vTMP + 5, vTMP + 6
    s = vS[0]
    a(f"v_and_b32 v{vA2}, 31, v0")
    a(f"v_lshlrev_b32 v{vA2}, 3, v{vA2}")
    a(f"v_mov_b32 v{vA3}, v{vV}")
    a(f"v_mov_b32 v{vM}, 0xff7fffff")
    a(f"v_and_b32 v{vAL}, 63, v0")
    a(f"v_cmp_gt_u32 vcc, 32, v{vAL}")
    a("s_nop 1")
    a(f"v_cndmask_b32 v{vQ2}, 0, v{vQ2}, vcc")
    for r in range(16):
        a(f"v_mov_b32 v{vO + r}, 0")
    a(f"s_mov_b32 s{sT}, s{sKV}")
    a("s_mov_b32 s15, 64")
    a.label("L_safe_loop")
    a(f"buffer_load_dwordx4 {vr(vKAf[0], 4)}, v{vLANE16}, {WS}, s{sT} offen")
    a(f"s_mov_b64 exec, s[{sLO}:{sLO+1}]")
    a(f"buffer_load_dwordx2 {vr(vKBf[0], 2)}, v{vA2}, {WS}, s{sT} offen offset:1024")
    a(f"s_mov_b64 exec, s[{sVMASK}:{sVMASK+1}]")
    a(f"buffer_load_dwordx4 {vr(vVf[0][0], 4)}, v{vA3}, {WS}, s{sT} offen")
    a(f"buffer_load_dwordx4 {vr(vVf[0][1], 4)}, v{vA3}, {WS}, s{sT} offen offset:640")
    a("s_mov_b64 exec, -1")
    a("s_waitcnt vmcnt(0)")
    mfma_s1(a, s, 0)
    a("s_nop 11")
    mfma_s2(a, s, 0)
    a("s_nop 15")
    a("s_nop 3")
    row_max(a, s, vMN, vAL)
    a(f"v_max_f32 v{vMN}, v{vMN}, v{vM}")
    a(f"v_sub_f32 v{vAL}, v{vM}, v{vMN}")
    a(f"v_exp_f32 v{vAL}, v{vAL}")
    a(f"v_mov_b32 v{vM}, v{vMN}")
    for r in range(16):
        a(f"v_sub_f32 v{s + r}, v{s + r}, v{vMN}")
    for r in range(16):
        a(f"v_exp_f32 v{s + r}, v{s + r}")
    for r in range(16):
        a(f"v_mul_f32 v{vO + r}, v{vO + r}, v{vAL}")
    for i in range(8):
        a(f"v_cvt_pk_bf16_f32 v{vP + i}, v{s + 2 * i}, v{s + 2 * i + 1}")
    a("s_nop 1")
    mfma_pv(a, 0, 0)
    mfma_pv(a, 0, 1)
    a(f"s_add_u32 s{sT}, s{sT}, 2560")
    a("s_sub_u32 s15, s15, 1")
    a("s_nop 15")
    a("s_nop 3")
    a("s_cmp_lg_u32 s15, 0")
    a("s_cbranch_scc1 L_safe_loop")

def helpers(a):
    a.label("L_k2_helper")
    a(f"s_setprio {HPRIO}")
    a(f"s_cmp_lg_u32 s{sW}, 8")
    a("s_cbranch_scc1 L_k2_ffn")
    ring_loader(a)
    ffn(a)

def ring_loader(a):
    vF, vX = 4, 5
    a(f"v_lshlrev_b32 v{vF}, 2, v{vT1}")
    a(f"v_add_u32 v{vF}, {L_MISC}, v{vF}")
    a(f"v_mov_b32 v{vX}, 0")
    a(f"ds_write_b32 v{vF}, v{vX}")
    a(f"v_mov_b32 v{vF}, {F_LAND}")
    a("s_waitcnt lgkmcnt(0)")
    srd(a, SRD_WS, 4, WS_SRD)
    a("s_barrier")
    def chunk(c):
        for i in range(5):
            a(f"s_mov_b32 m0, {(c % 3) * 20480 + i * 4096}")
            a(f"s_add_u32 s{sT}, s{sKV}, {c * 20480 + i * 4096}")
            for j in range(4):
                a(f"buffer_load_dwordx4 v{vLANE16}, {WS}, s{sT} offen offset:{1024 * j} lds")
    def landed(c):
        a(f"v_mov_b32 v{vX}, {c}")
        a(f"ds_write_b32 v{vF}, v{vX}")
    chunk(1); chunk(2)
    a("s_waitcnt vmcnt(20)")
    landed(1)
    a("s_waitcnt vmcnt(0)")
    landed(2)
    for c in range(3, 8):
        a(f"v_mov_b32 v6, {F_FREEC + 4 * (c - 3)}")
        spin(a, f"L_free_{c}", 6, 7, sT, 8, sT2, sleep=6)
        chunk(c)
        a("s_waitcnt vmcnt(0)")
        landed(c)
    a(f"s_add_u32 s38, s4, {CAND_OFF}")
    a("s_addc_u32 s39, s5, 0")
    a("s_load_dwordx16 s[64:79], s[38:39], 0")
    a("s_load_dwordx16 s[80:95], s[38:39], 64")
    out_tile_ids(a)
    a("s_waitcnt lgkmcnt(0)")
    top2_scalar(a, 64, 42, 43, 12)
    a("s_bfe_u32 s12, s42, 0x50006")
    a("s_bfe_u32 s13, s43, 0x50006")
    a(f"s_cmp_eq_u32 s12, s{sMT}")
    a("s_cbranch_scc1 L_k2_watch")
    a(f"s_cmp_eq_u32 s13, s{sMT}")
    a("s_cbranch_scc0 L_k2_join")
    a.label("L_k2_watch")
    a(f"v_mov_b32 v7, {CNT_OFF + 8 * 256}")
    a(f"s_mov_b32 s13, {SPIN_MAX}")
    a.label("L_k2_poll_moe")
    a("global_load_dword v6, v7, s[4:5] sc1")
    a("s_waitcnt vmcnt(0)")
    a("v_readfirstlane_b32 s14, v6")
    a("s_sub_u32 s13, s13, 1")
    a("s_cbranch_scc1 L_k2_poll_moe_done")
    a(f"s_cmp_ge_u32 s14, {NMOE}")
    a("s_cbranch_scc1 L_k2_poll_moe_done")
    a("s_sleep 8")
    a("s_branch L_k2_poll_moe")
    a.label("L_k2_poll_moe_done")
    a(f"v_mov_b32 v6, {F_ALL}")
    a("v_mov_b32 v7, 1")
    a("ds_write_b32 v6, v7")
    a("s_waitcnt lgkmcnt(0)")
    a("s_branch L_k2_join")

def slice_index(a):
    a("s_and_b32 s33, s2, 7")
    a("s_mul_i32 s33, s33, 12")
    a("s_lshr_b32 s12, s2, 3")
    a("s_add_u32 s33, s33, s12")

def ffn(a):
    SRD_X, SRD_W = 56, 60
    sM, sB1, sB2, sU = 33, 42, 43, 44
    sCAND = 64
    vT, vA, vB = 4, 5, 6
    a.label("L_k2_ffn")
    a("s_barrier")
    a("s_load_dwordx2 s[6:7], s[0:1], 0")
    a("s_load_dwordx4 s[36:39], s[0:1], 40")
    a("s_load_dwordx2 s[40:41], s[0:1], 56")
    a("s_waitcnt lgkmcnt(0)")
    srd(a, SRD_WS, 4, WS_SRD)
    a(f"s_cmp_ge_u32 s2, {NMOE if not X('nomoe') else 0}")
    a("s_cbranch_scc1 L_k2_no_ffn")
    slice_index(a)
    a(f"s_cmp_eq_u32 s{sW}, 11")
    a("s_cbranch_scc1 L_k2_down")
    a(f"s_sub_u32 s{sU}, s{sW}, 9")
    srd(a, SRD_X, 6, X_BYTES)
    a(f"s_add_u32 s46, s4, {CAND_OFF}")
    a("s_addc_u32 s47, s5, 0")
    a(f"s_load_dwordx16 s[{sCAND}:{sCAND+15}], s[46:47], 0")
    a(f"s_load_dwordx16 s[{sCAND+16}:{sCAND+31}], s[46:47], 64")
    a(f"s_cmp_eq_u32 s{sU}, 0")
    a("s_cbranch_scc0 L_k2_up_srd")
    srd(a, SRD_W, 36, WG_BYTES)
    a("s_branch L_k2_srd_done")
    a.label("L_k2_up_srd")
    srd(a, SRD_W, 38, WG_BYTES)
    a.label("L_k2_srd_done")
    a(f"v_lshrrev_b32 v{vT}, 3, v{vT1}")
    a(f"v_mul_u32_u24 v{vA}, 3072, v{vT}")
    a(f"v_and_b32 v7, 7, v{vT1}")
    a(f"v_xor_b32 v7, v7, v{vT}")
    a(f"v_lshl_add_u32 v{vA}, v7, 4, v{vA}")
    a(f"s_and_b32 s17, s{sM}, 3")
    a(f"s_mul_i32 s15, s17, {160 * 3072}")
    a(f"s_lshr_b32 s16, s{sM}, 2")
    a("s_lshl_b32 s16, s16, 7")
    a("s_add_u32 s15, s15, s16")
    a(f"s_mul_i32 s14, s{sU}, 20480")
    a(f"s_add_u32 s14, s14, {L_WG}")
    vWA, vXA = 56, 6
    a(f"v_lshrrev_b32 v{vT}, 4, v{vT1}")
    a(f"v_bfe_u32 v7, v{vT1}, 2, 2")
    a(f"v_lshl_add_u32 v8, v{vT}, 3, v7")
    a(f"v_lshlrev_b32 v8, 7, v8")
    a(f"v_bfe_u32 v9, v{vT1}, 1, 1")
    a(f"v_xor_b32 v9, v9, v7")
    a(f"v_lshl_add_u32 v8, v9, 4, v8")
    a(f"v_and_b32 v9, 1, v{vT1}")
    a(f"v_lshl_add_u32 v8, v9, 3, v8")
    a(f"v_add_u32 v{vWA}, s14, v8")
    for k in range(1, 4):
        a(f"v_xor_b32 v{vWA + k}, {32 * k}, v{vWA}")
    a(f"s_mul_i32 s18, s{sU}, 1024")
    a(f"s_add_u32 s18, s18, {L_XG}")
    a(f"v_and_b32 v9, 3, v{vT1}")
    a(f"v_min_u32 v{vXA}, 2, v9")
    a(f"v_mul_u32_u24 v{vXA}, 320, v{vXA}")
    a(f"v_lshl_add_u32 v{vXA}, v{vT}, 4, v{vXA}")
    a(f"v_add_u32 v{vXA}, s18, v{vXA}")
    for r in range(4):
        a(f"v_mov_b32 v{8 + r}, 0x3f803f80")
    a(f"v_add_u32 v60, s18, v{vLANE16}")
    a("s_mov_b64 exec, 0xfffff")
    a(f"ds_write_b128 v60, v[8:11] offset:640")
    a("s_mov_b64 exec, -1")
    a(f"v_and_b32 v7, 15, v{vT1}")
    a(f"v_lshlrev_b32 v61, 8, v7")
    a(f"v_lshl_add_u32 v61, v{vT}, 4, v61")
    a("v_cmp_gt_u32 vcc, 3, v7")
    a(f"v_min_u32 v62, 2, v{vT}")
    a(f"v_lshlrev_b32 v62, 8, v62")
    a(f"v_lshl_add_u32 v62, v7, 2, v62")
    a("s_mov_b64 s[52:53], vcc")
    for q in range(20 if not X("moe_nodma") else 0):
        a(f"s_add_u32 m0, s14, {q * 1024}")
        a(f"s_add_u32 s16, s15, {q * 8 * 3072}")
        a(f"buffer_load_dwordx4 v{vA}, s[{SRD_W}:{SRD_W+3}], s16 offen lds")
    a("s_waitcnt lgkmcnt(0)")
    top2_scalar(a, sCAND, sB1, sB2, 12)
    a(f"s_and_b32 s{sB1}, s{sB1}, 0x7ff")
    a(f"s_and_b32 s{sB2}, s{sB2}, 0x7ff")
    for k, sB in ((0, sB1), (1, sB2)):
        a(f"s_lshl_b32 s12, s{sB}, 3")
        a("s_add_u32 s46, s4, s12")
        a("s_addc_u32 s47, s5, 0")
        a(f"s_add_u32 s46, s46, {ST_OFF}")
        a("s_addc_u32 s47, s47, 0")
        a(f"s_load_dwordx2 s[{48 + 2 * k}:{49 + 2 * k}], s[46:47], 0")
    a("s_mul_i32 s16, s17, 320")
    a("s_mov_b64 exec, 0xfffff")
    for k, sB in ((0, sB1), (1, sB2)):
        a(f"s_mul_i32 s12, s{sB}, 1280")
        a("s_add_u32 s12, s12, s16")
        a(f"s_add_u32 m0, s18, {320 * k}")
        a("s_nop 0")
        a(f"buffer_load_dwordx4 v{vLANE16}, s[{SRD_X}:{SRD_X+3}], s12 offen lds")
    a("s_mov_b64 exec, -1")
    a("s_waitcnt vmcnt(0) lgkmcnt(0)")
    vACC = 64
    for s_ in range(5 if not (X("moe_nocomp") or X("noA")) else 0):
        a(f"ds_read_b128 v[12:15], v{vXA} offset:{s_ * 64}")
        for ct in range(4):
            for rd_ in range(2):
                a(f"ds_read_b64_tr_b16 {vr(16 + 4 * ct + 2 * rd_, 2)}, v{vWA + (ct ^ (2 * rd_))} offset:{s_ * 4096 + 512 * rd_}")
        if LOWM: a("s_setprio 0")
        for ct in range(4):
            a(f"s_waitcnt lgkmcnt({6 - 2 * ct})")
            c = "0" if s_ == 0 else vr(vACC + 4 * ct, 4)
            a(f"v_mfma_f32_16x16x32_bf16 {vr(vACC + 4 * ct, 4)}, {vr(16 + 4 * ct, 4)}, v[12:15], {c}")
            if SPACE: a(f"s_nop {SPACE - 1}")
    if LOWM:
        a("s_nop 7")
        a(f"s_setprio {HPRIO}")
    a(f"s_lshl_b32 s12, s{sM}, 1")
    a(f"s_add_u32 s12, s12, s{sU}")
    a("s_mul_i32 s12, s12, 768")
    a(f"s_add_u32 s12, s12, {GP_OFF}")
    a("s_nop 7")
    a("s_mov_b64 exec, s[52:53]")
    for ct in range(4):
        a(f"buffer_store_dwordx4 {vr(vACC + 4 * ct, 4)}, v61, {WS}, s12 offen offset:{64 * ct} sc1")
    a("s_mov_b64 exec, -1")
    a(f"v_mov_b32 v52, 1")
    a(f"v_mov_b32 v53, {F_U}")
    a("s_waitcnt vmcnt(0)")
    a(f"s_cmp_eq_u32 s{sU}, 0")
    a("s_cbranch_scc1 L_k2_gate")
    a("ds_write_b32 v53, v52")
    a("s_branch L_k2_ffn_done")
    a.label("L_k2_gate")
    spin(a, "L_wait_u", 53, 54, 12, 1, 13, sleep=4)
    a(f"s_lshr_b32 s12, s{sM}, 2")
    a("s_add_u32 s12, s12, 9")
    a("s_lshl_b32 s12, s12, 8")
    a(f"s_add_u32 s12, s12, {CNT_OFF}")
    a("v_mov_b32 v9, s12")
    a("s_mov_b64 exec, 1")
    a("global_atomic_add v9, v52, s[4:5]")
    a(f"s_mov_b32 s13, {SPIN_MAX}")
    a.label("L_k2_poll_cb")
    a("global_load_dword v10, v9, s[4:5] sc1")
    a("s_waitcnt vmcnt(0)")
    a("v_readfirstlane_b32 s14, v10")
    a("s_sub_u32 s13, s13, 1")
    a("s_cbranch_scc1 L_k2_poll_cb_done")
    a("s_cmp_ge_u32 s14, 4")
    a("s_cbranch_scc1 L_k2_poll_cb_done")
    a("s_sleep 8")
    a("s_branch L_k2_poll_cb")
    a.label("L_k2_poll_cb_done")
    a("s_mov_b64 exec, -1")
    a(f"s_andn2_b32 s12, s{sM}, 3")
    a("s_mul_i32 s12, s12, 1536")
    a(f"s_add_u32 s12, s12, {GP_OFF}")
    a("s_lshl_b32 s16, s17, 6")
    a("s_add_u32 s12, s12, s16")
    for kq in range(4):
        for mat in range(2):
            a(f"s_add_u32 s16, s12, {kq * 1536 + mat * 768}")
            a(f"buffer_load_dword v{12 + 4 * mat + kq}, v62, {WS}, s16 offen sc1")
    a(f"v_cmp_gt_u32 vcc, 16, v{vT1}")
    a("v_mov_b32 v8, s50")
    a("v_mov_b32 v9, s51")
    a("v_mov_b32 v10, s48")
    a("v_mov_b32 v11, s49")
    a("v_cndmask_b32 v8, v8, v10, vcc")
    a("v_cndmask_b32 v9, v9, v11, vcc")
    a("s_waitcnt vmcnt(0)")
    for mat in range(2):
        b0 = 12 + 4 * mat
        a(f"v_add_f32 v{b0}, v{b0}, v{b0 + 1}")
        a(f"v_add_f32 v{b0 + 2}, v{b0 + 2}, v{b0 + 3}")
    for mat in range(2):
        b0 = 12 + 4 * mat
        a(f"v_add_f32 v{b0}, v{b0}, v{b0 + 2}")
    for mat in range(2):
        b0 = 12 + 4 * mat
        a(f"v_mov_b32 v{b0 + 1}, v{b0}")
        a(f"v_mov_b32 v{b0 + 2}, v{b0}")
    a("s_nop 1")
    for mat in range(2):
        b0 = 12 + 4 * mat
        a(f"v_permlane32_swap_b32 v{b0 + 1}, v{b0 + 2}")
    a("s_nop 1")
    for mat in range(2):
        b0 = 12 + 4 * mat
        a(f"v_fma_f32 v{b0}, -v8, v{b0 + 2}, v{b0}")
        a(f"v_mul_f32 v{b0}, v{b0}, v9")
    a(f"v_mul_f32 v20, {hex(f2u(-LOG2E))}, v12")
    a("v_exp_f32 v20, v20")
    a("v_mul_f32 v12, v12, v16")
    a("v_add_f32 v20, 1.0, v20")
    a("v_rcp_f32 v20, v20")
    a(f"v_lshlrev_b32 v{vT}, 1, v{vT1}")
    a("v_mul_f32 v12, v12, v20")
    a(f"v_add_u32 v{vT}, {L_H}, v{vT}")
    a("v_cvt_pk_bf16_f32 v12, v12, v12")
    a(f"ds_write_b16 v{vT}, v12")
    a(f"v_mov_b32 v53, {F_H}")
    a("s_waitcnt lgkmcnt(0)")
    a(f"ds_write_b32 v53, v52")
    a("s_branch L_k2_ffn_done")
    a.label("L_k2_down")
    srd(a, SRD_W, 40, WD_BYTES)
    vDA, vHA, vYO = 5, 6, 7
    a(f"v_bfe_u32 v{vT}, v{vT1}, 2, 2")
    a(f"v_mul_u32_u24 v{vDA}, 1280, v{vT}")
    a(f"v_lshrrev_b32 v{vT}, 4, v{vT1}")
    a(f"v_lshl_add_u32 v{vDA}, v{vT}, 5, v{vDA}")
    a(f"v_and_b32 v{vT}, 3, v{vT1}")
    a(f"v_lshl_add_u32 v{vDA}, v{vT}, 3, v{vDA}")
    a(f"v_add_u32 v{vDA}, {L_WD}, v{vDA}")
    a(f"v_and_b32 v{vT}, 1, v{vT1}")
    a(f"v_lshlrev_b32 v{vHA}, 5, v{vT}")
    a(f"v_add_u32 v{vHA}, {L_H}, v{vHA}")
    a(f"v_lshlrev_b32 v{vYO}, 2, v{vT1}")
    a(f"v_mov_b32 v53, {F_H}")
    a(f"s_mul_i32 s15, s{sM}, 20480")
    for i in range(5 if not X("moe_nodma") else 0):
        a(f"s_mov_b32 m0, {L_WD + i * 4096}")
        a(f"s_add_u32 s16, s15, {i * 4096}")
        for j in range(4):
            a(f"buffer_load_dwordx4 v{vLANE16}, s[{SRD_W}:{SRD_W+3}], s16 offen offset:{1024 * j} lds")
    a(f"s_mul_i32 s15, s{sM}, 5120")
    a(f"s_add_u32 s15, s15, {YP_OFF}")
    a("s_waitcnt vmcnt(0)")
    spin(a, "L_wait_h", 53, 54, 12, 1, 13, sleep=8)
    a(f"ds_read_b128 v[8:11], v{vHA}")
    a(f"ds_read_b128 v[12:15], v{vHA} offset:16")
    for kk in range(4 if not (X("moe_nocomp") or X("noD")) else 0):
        for gq in range(10):
            a(f"ds_read_b64_tr_b16 {vr(16 + 2 * gq, 2)}, v{vDA} offset:{kk * 5120 + gq * 128}")
        if LOWM: a("s_setprio 0")
        for gq in range(10):
            a(f"s_waitcnt lgkmcnt({9 - gq})")
            c = "0" if kk == 0 else vr(56 + 4 * gq, 4)
            a(f"v_mfma_f32_4x4x4bf16_1k {vr(56 + 4 * gq, 4)}, {vr(8 + 2 * kk, 2)}, {vr(16 + 2 * gq, 2)}, {c}")
        if LOWM: a(f"s_setprio {HPRIO}")
    a("s_nop 7")
    for t_ in range(2):
        for gq in range(10):
            a(f"s_add_u32 s16, s15, {t_ * 2560 + gq * 256}")
            a(f"buffer_store_dword v{56 + 4 * gq + t_}, v{vYO}, {WS}, s16 offen sc1")
    a("s_waitcnt vmcnt(0)")
    a(f"v_mov_b32 v7, {CNT_OFF + 8 * 256}")
    a("v_mov_b32 v8, 1")
    a("s_mov_b64 exec, 1")
    a("global_atomic_add v7, v8, s[4:5]")
    a("s_mov_b64 exec, -1")
    a.label("L_k2_ffn_done")
    ST(a, "ffn_done")
    a(f"v_mov_b32 v53, {F_MOE}")
    a(f"v_mov_b32 v52, 1")
    a("s_waitcnt lgkmcnt(0)")
    a("s_mov_b64 exec, 1")
    a("ds_add_u32 v53, v52")
    a("s_mov_b64 exec, -1")
    spin(a, "L_wait_moe", 53, 54, 12, 3, 13, sleep=8)
    a("s_branch L_k2_wo_prefetch")
    a.label("L_k2_no_ffn")
    a.label("L_k2_wo_prefetch")
    out_tile_ids(a)
    a(f"s_mul_i32 s12, s{sNT}, 102400")
    a(f"s_add_u32 s12, s12, {WO2_OFF}")
    a(f"s_sub_u32 s13, s{sW}, 9")
    for g in range(7):
        if g == 6:
            a("s_cmp_eq_u32 s13, 2")
            a("s_cbranch_scc1 L_k2_prefetched")
        a(f"s_add_u32 s14, s13, {3 * g}")
        a("s_lshl_b32 s14, s14, 12")
        a(f"s_add_u32 m0, s14, {L_R}")
        a("s_add_u32 s14, s14, s12")
        for j in range(4):
            a(f"buffer_load_dwordx4 v{vLANE16}, {WS}, s14 offen offset:{1024 * j} lds")
    a.label("L_k2_prefetched")
    a(f"s_add_u32 s38, s4, {CAND_OFF}")
    a("s_addc_u32 s39, s5, 0")
    a("s_load_dwordx16 s[64:79], s[38:39], 0")
    a("s_load_dwordx16 s[80:95], s[38:39], 64")
    a("s_waitcnt lgkmcnt(0)")
    top2_scalar(a, 64, 42, 43, 12)
    a("s_and_b32 s42, s42, 0x7ff")
    a("s_and_b32 s43, s43, 0x7ff")
    a("s_lshr_b32 s12, s42, 6")
    a("s_lshr_b32 s13, s43, 6")
    a(f"s_cmp_eq_u32 s12, s{sMT}")
    a("s_cbranch_scc1 L_k2_routed")
    a(f"s_cmp_eq_u32 s13, s{sMT}")
    a("s_cbranch_scc0 L_k2_join")
    a.label("L_k2_routed")
    routed(a, 42, 43)
    a("s_branch L_k2_join")

sMT, sNT = 44, 45
def out_tile_ids(a):
    a(f"s_bfe_u32 s{sMT}, s2, 0x20001")
    a(f"s_lshl_b32 s12, s{sQB}, 2")
    a(f"s_add_u32 s{sMT}, s{sMT}, s12")
    a(f"s_and_b32 s{sNT}, s2, 1")
    a(f"s_lshl_b32 s{sNT}, s{sNT}, 2")
    a("s_bfe_u32 s12, s2, 0x20003")
    a(f"s_add_u32 s{sNT}, s{sNT}, s12")

def projection(a):
    SRD_X, SRD_OUT = 56, 60
    sB1, sB2, sOBT = 42, 43, 46
    sCAND = 64
    vL16, vL16H, vL16H2 = vLANE16, 9, 3
    vTOK, vG, vT = 2, 8, 4
    vXO, vTOKG, vSTAT, vX = 10, 11, 12, 14
    vACC = 24
    vWF = (44, 64)
    vOF = 84
    a.label("L_k2_join")
    ST(a, "join")
    a("s_load_dwordx2 s[6:7], s[0:1], 0")
    a("s_load_dwordx2 s[36:37], s[0:1], 64")
    a(f"s_add_u32 s38, s4, {CAND_OFF}")
    a("s_addc_u32 s39, s5, 0")
    a(f"s_load_dwordx16 s[{sCAND}:{sCAND+15}], s[38:39], 0")
    a(f"s_load_dwordx16 s[{sCAND+16}:{sCAND+31}], s[38:39], 64")
    out_tile_ids(a)
    a("v_and_b32 v3, 63, v0")
    a("s_waitcnt vmcnt(0)")
    a("s_barrier")
    ST(a, "E1")
    a("s_waitcnt lgkmcnt(0)")
    srd(a, SRD_X, 6, X_BYTES)
    srd(a, SRD_OUT, 36, X_BYTES)
    a(f"s_cmp_eq_u32 s{sW}, 8")
    a("s_cbranch_scc1 L_k2_sync")
    a(f"s_cmp_ge_u32 s{sW}, 4")
    a("s_cbranch_scc1 L_k2_side")
    a(f"v_and_b32 v{vTOK}, 15, v3")
    a(f"v_lshrrev_b32 v{vG}, 4, v3")
    a(f"s_lshl_b32 s12, s{sMT}, 6")
    a(f"s_lshl_b32 s13, s{sW}, 4")
    a("s_add_u32 s12, s12, s13")
    a(f"v_add_u32 v{vTOKG}, s12, v{vTOK}")
    a(f"v_mul_u32_u24 v{vXO}, 1280, v{vTOKG}")
    a(f"v_lshl_add_u32 v{vXO}, v{vG}, 3, v{vXO}")
    a(f"s_mul_i32 s13, s{sNT}, 160")
    a(f"v_add_u32 v{vXO}, s13, v{vXO}")
    a(f"v_lshlrev_b32 v{vT+1}, 3, v{vTOKG}")
    a(f"s_mov_b32 s12, {ST_OFF}")
    a(f"buffer_load_dwordx2 {vr(vSTAT, 2)}, v{vT+1}, {WS}, s12 offen")
    for j in range(5):
        a(f"buffer_load_dwordx2 {vr(vX + 2 * j, 2)}, v{vXO}, s[{SRD_X}:{SRD_X+3}], 0 offen offset:{32 * j}")
    a(f"s_lshl_b32 s12, s{sMT}, 2")
    a(f"s_add_u32 s12, s12, s{sW}")
    a(f"s_mul_i32 s{sOBT}, s12, 20480")
    a(f"s_add_u32 s{sOBT}, s{sOBT}, {OB_OFF}")
    a(f"v_add_u32 v{vL16H}, {L_R}, v{vL16}")
    a(f"v_add_u32 v{vL16H2}, {L_R + 40960}, v{vL16}")
    top2_scalar(a, sCAND, sB1, sB2, 12)
    a(f"s_and_b32 s{sB1}, s{sB1}, 0x7ff")
    a(f"s_and_b32 s{sB2}, s{sB2}, 0x7ff")
    a("s_waitcnt vmcnt(0)")
    a(f"v_add_f32 v{vT}, 1.0, v{vSTAT+1}")
    a(f"v_mul_f32 v{vT+1}, v{vSTAT}, v{vSTAT+1}")
    for j in range(5):
        for i in range(2):
            a(f"v_lshlrev_b32 v{vT+2}, 16, v{vX + 2 * j + i}")
            a(f"v_and_b32 v{vT+3}, 0xffff0000, v{vX + 2 * j + i}")
            a(f"v_fma_f32 v{vACC + 4 * j + 2 * i}, v{vT+2}, v{vT}, -v{vT+1}")
            a(f"v_fma_f32 v{vACC + 4 * j + 2 * i + 1}, v{vT+3}, v{vT}, -v{vT+1}")
    a("s_barrier")
    ST(a, "E2")
    for B in range(5):
        a(f"s_add_u32 s12, s{sOBT}, {B * 4096}")
        for k in range(4):
            a(f"buffer_load_dwordx4 {vr(vOF + 16 * B + 4 * k, 4)}, v{vL16}, {WS}, s12 offen offset:{1024 * k} sc1")
    def reads(st):
        f = vWF[st & 1]
        reg, off = (vL16H, st * 5120) if st < 8 else ((vL16H2, (st - 8) * 5120) if st < 16 else (vL16, (st - 16) * 5120))
        for j in range(5):
            a(f"ds_read_b128 {vr(f + 4 * j, 4)}, v{reg} offset:{off + 1024 * j}")
    def mfmas(st):
        f = vWF[st & 1]
        for j in range(5):
            a(f"v_mfma_f32_16x16x32_bf16 {vr(vACC + 4 * j, 4)}, {vr(f + 4 * j, 4)}, {vr(vOF + 4 * st, 4)}, {vr(vACC + 4 * j, 4)}")
    reads(0)
    for st in range(20):
        if st == 12:
            pass
        if st < 19:
            if st + 1 == 16:
                a("s_barrier")
            reads(st + 1)
        a(f"s_waitcnt vmcnt({19 - st}) lgkmcnt({5 if st < 19 else 0})")
        mfmas(st)
    ST(a, "gemm")
    a(f"v_lshlrev_b32 v{vT}, 4, v{vG}")
    a(f"v_add_u32 v{vT}, {L_Y}, v{vT}")
    a("s_nop 7")
    for sel, sB in ((0, sB1), (1, sB2)):
        lab = f"L_k2_noupd{sel}"
        a(f"s_lshr_b32 s12, s{sB}, 6")
        a(f"s_cmp_lg_u32 s12, s{sMT}")
        a(f"s_cbranch_scc1 {lab}")
        for j in range(5):
            a(f"ds_read_b128 {vr(vWF[0] + 4 * j, 4)}, v{vT} offset:{320 * sel + 64 * j}")
        a(f"v_cmp_eq_u32 vcc, s{sB}, v{vTOKG}")
        a("s_waitcnt lgkmcnt(0)")
        a("s_nop 1")
        for j in range(5):
            for r in range(4):
                a(f"v_cndmask_b32 v{vWF[0] + 4 * j + r}, 0, v{vWF[0] + 4 * j + r}, vcc")
                a(f"v_add_f32 v{vACC + 4 * j + r}, v{vACC + 4 * j + r}, v{vWF[0] + 4 * j + r}")
        a.label(lab)
    for j in range(5):
        for i in range(2):
            a(f"v_cvt_pk_bf16_f32 v{vX + 2 * j + i}, v{vACC + 4 * j + 2 * i}, v{vACC + 4 * j + 2 * i + 1}")
        a(f"buffer_store_dwordx2 {vr(vX + 2 * j, 2)}, v{vXO}, s[{SRD_OUT}:{SRD_OUT+3}], 0 offen offset:{32 * j}")
    ST(a, "stores")
    if ST.on:
        a("s_waitcnt vmcnt(0)")
    ST(a, "end")
    ST.store(a)
    a("s_endpgm")

    a.label("L_k2_sync")
    ST(a, "E1b")
    a(f"s_lshl_b32 s12, s{sQB}, 8")
    a(f"s_add_u32 s12, s12, {CNT_OFF}")
    a("v_mov_b32 v4, s12")
    a("v_mov_b32 v5, 1")
    a("s_mov_b64 exec, 1")
    a("global_atomic_add v6, v4, v5, s[4:5] sc0")
    a("s_waitcnt vmcnt(0)")
    a("v_readfirstlane_b32 s14, v6")
    a(f"s_mov_b32 s13, {SPIN_MAX}")
    a("s_cmp_ge_u32 s14, 31")
    a("s_cbranch_scc1 L_k2_poll_done")
    for r in range(3):
        a(f"global_load_dword v{8 + r}, v4, s[4:5] sc1")
        a("s_sleep 2")
    a.label("L_k2_poll")
    for r in range(4):
        a(f"global_load_dword v{8 + (r + 3) % 4}, v4, s[4:5] sc1")
        a("s_waitcnt vmcnt(3)")
        a(f"v_readfirstlane_b32 s14, v{8 + r}")
        a("s_sub_u32 s13, s13, 1")
        a("s_cbranch_scc1 L_k2_poll_done")
        a("s_cmp_ge_u32 s14, 32")
        a("s_cbranch_scc1 L_k2_poll_done")
        a("s_sleep 2")
    a("s_branch L_k2_poll")
    a.label("L_k2_poll_done")
    a("s_mov_b64 exec, -1")
    ST(a, "polled")
    a("s_barrier")
    a("s_barrier")
    ST.store(a)
    if os.environ.get("DBG_SUMMARY"):
        summary(a)
    a("s_endpgm")

    a.label("L_k2_side")
    a(f"s_cmp_ge_u32 s{sW}, 8")
    a("s_cbranch_scc1 L_k2_side_b")
    a(f"s_sub_u32 s13, s{sW}, 4")
    a(f"s_mul_i32 s12, s{sNT}, 102400")
    a(f"s_add_u32 s12, s12, {WO2_OFF + 16 * 5120}")
    a("s_mul_i32 s14, s13, 5120")
    a("s_add_u32 s12, s12, s14")
    a("s_mov_b32 m0, s14")
    a("s_nop 0")
    for j in range(4):
        a(f"buffer_load_dwordx4 v{vL16}, {WS}, s12 offen offset:{1024 * j} lds")
    a("s_add_u32 m0, s14, 4096")
    a("s_add_u32 s12, s12, 4096")
    a(f"buffer_load_dwordx4 v{vL16}, {WS}, s12 offen lds")
    a("s_waitcnt vmcnt(0)")
    a.label("L_k2_side_b")
    a("s_barrier")
    a("s_barrier")
    ST.store(a)
    a("s_endpgm")

def routed(a, sB1, sB2):
    vT, vY = 4, 20
    a(f"v_mov_b32 v7, {F_ALL}")
    spin(a, "L_rt_all", 7, 6, 14, 1, 15, sleep=8)
    a(f"v_subrev_u32 v{vT}, 576, v0")
    a(f"v_mul_u32_u24 v{vT+1}, 52429, v{vT}")
    a(f"v_lshrrev_b32 v{vT+1}, 20, v{vT+1}")
    a(f"v_mul_u32_u24 v{vT+2}, 20, v{vT+1}")
    a(f"v_sub_u32 v{vT+2}, v{vT}, v{vT+2}")
    a(f"v_mul_u32_u24 v8, {12 * 5120}, v{vT+1}")
    a(f"v_lshl_add_u32 v8, v{vT+2}, 4, v8")
    a(f"v_mul_u32_u24 v9, 320, v{vT+1}")
    a(f"v_lshl_add_u32 v9, v{vT+2}, 4, v9")
    a(f"v_add_u32 v9, {L_RED}, v9")
    a(f"v_lshlrev_b32 v10, 2, v{vT}")
    a(f"v_mov_b32 v11, {F_RT}")
    a("v_mov_b32 v12, 1")
    for sel, sB in ((0, sB1), (1, sB2)):
        lab = f"L_k2_rt_skip{sel}"
        a(f"s_lshr_b32 s12, s{sB}, 6")
        a(f"s_cmp_lg_u32 s12, s{sMT}")
        a(f"s_cbranch_scc1 {lab}")
        a(f"s_lshl_b32 s12, s{sB}, 2")
        a("s_add_u32 s38, s4, s12")
        a("s_addc_u32 s39, s5, 0")
        a(f"s_add_u32 s38, s38, {R_OFF}")
        a("s_addc_u32 s39, s39, 0")
        a("s_load_dword s40, s[38:39], 0")
        a(f"s_mul_i32 s12, s{sNT}, 320")
        a(f"s_add_u32 s12, s12, {YP_OFF + sel * 2560}")
        a(f"v_cmp_gt_u32 vcc, 160, v{vT}")
        a("s_and_saveexec_b64 s[48:49], vcc")
        for i in range(12):
            a(f"s_add_u32 s13, s12, {i * 5120}")
            a(f"buffer_load_dwordx4 {vr(vY + 4 * i, 4)}, v8, {WS}, s13 offen sc1")
        a("s_waitcnt vmcnt(0)")
        for i in range(1, 12):
            for r in range(4):
                a(f"v_add_f32 v{vY + r}, v{vY + r}, v{vY + 4 * i + r}")
        a(f"ds_write_b128 v9, {vr(vY, 4)}")
        a("s_waitcnt lgkmcnt(0)")
        a("s_mov_b64 exec, 1")
        a(f"ds_add_u32 v11, v12 offset:{8 * sel}")
        a("s_mov_b64 exec, -1")
        a(f"v_add_u32 v13, {8 * sel}, v11")
        spin(a, f"L_rt_a{sel}", 13, 14, 14, 3, 15, sleep=2)
        a(f"v_add_u32 v13, {L_RED}, v10")
        a(f"v_cmp_gt_u32 vcc, 80, v{vT}")
        a("s_and_saveexec_b64 s[48:49], vcc")
        a(f"s_cbranch_execz L_k2_rt_c{sel}")
        for p in range(8):
            a(f"ds_read_b32 v{vY + p}, v13 offset:{320 * p}")
        a("v_mov_b32 v15, s40")
        a(f"v_mul_f32 v15, {hex(f2u(-LOG2E))}, v15")
        a("v_exp_f32 v15, v15")
        a("s_nop 0")
        a("v_add_f32 v15, 1.0, v15")
        a("v_rcp_f32 v15, v15")
        a("s_waitcnt lgkmcnt(0)")
        for p in range(1, 8):
            a(f"v_add_f32 v{vY}, v{vY}, v{vY + p}")
        a(f"v_mul_f32 v{vY}, v{vY}, v15")
        a(f"v_add_u32 v13, {L_Y + 320 * sel}, v10")
        a(f"ds_write_b32 v13, v{vY}")
        a.label(f"L_k2_rt_c{sel}")
        a("s_mov_b64 exec, -1")
        a("s_waitcnt lgkmcnt(0)")
        a("s_mov_b64 exec, 1")
        a(f"ds_add_u32 v11, v12 offset:{8 * sel + 4}")
        a("s_mov_b64 exec, -1")
        a(f"v_add_u32 v13, {8 * sel + 4}, v11")
        spin(a, f"L_rt_b{sel}", 13, 14, 14, 3, 15, sleep=2)
        a.label(lab)

def emit(a):
    entry(a)
    attention(a)
    helpers(a)
    projection(a)
    a.label("L_k2_exit")
    a("s_endpgm")
    a.label("L_k2_end")


def summary(a):
    import k1
    a("s_mov_b64 exec, -1")
    a("s_cmp_lg_u32 s2, 0")
    a("s_cbranch_scc1 L_sum_end")
    a("s_load_dwordx2 s[34:35], s[0:1], 72")
    a("s_waitcnt lgkmcnt(0)")
    a(f"s_mov_b32 s{SRD_WS + 2}, 0x2000000")
    a("v_and_b32 v3, 63, v0")
    names = ["entry", "B0", "loopend", "e_bar", "stores", "end"]
    a("v_mov_b32 v40, -1")
    for i in range(1, 8):
        a(f"v_mov_b32 v{40 + i}, 0")
    for q in range(4):
        a(f"v_add_u32 v4, {64 * q}, v3")
        a("v_lshlrev_b32 v5, 11, v4")
        a(f"s_mov_b32 s12, {PROF_OFF + 64}")
        for i, nm in enumerate(names):
            a(f"buffer_load_dword v{10 + i}, v5, {WS}, s12 offen offset:{4 * k1.ST.names.index(nm)}")
        a(f"buffer_load_dword v16, v5, {WS}, s12 offen offset:{4 * k1.ST.names.index('e_lds')}")
        a("s_waitcnt vmcnt(0)")
        a("v_and_b32 v6, 0xe4, v4")
        a("v_cmp_eq_u32 vcc, 0xe4, v6")
        a("s_nop 1")
        a("v_min_u32 v40, v40, v10")
        for i in range(1, 6):
            a(f"v_cndmask_b32 v{10 + i}, v{10 + i}, 0, vcc")
            a(f"v_max_u32 v{40 + i}, v{40 + i}, v{10 + i}")
        a("v_cndmask_b32 v16, 0, v16, vcc")
        a("v_max_u32 v46, v46, v16")
    vals = [40, 41, 42, 43, 44, 45, 46]
    for x in (1, 2, 4, 8, 16, 32):
        a(f"v_xor_b32 v6, {x}, v3")
        a("v_lshlrev_b32 v6, 2, v6")
        for r in vals:
            a(f"ds_bpermute_b32 v20, v6, v{r}")
            a("s_waitcnt lgkmcnt(0)")
            a(f"v_{'min' if r == 40 else 'max'}_u32 v{r}, v{r}, v20")
    for k_, nm in enumerate(["entry", "join", "E1", "polled"]):
        a(f"v_readlane_b32 s12, v{ST.vt + 1}, {ST.names.index(nm)}")
        a("s_nop 3")
        a(f"v_mov_b32 v{50 + k_}, s12")
    a("s_memrealtime s[12:13]")
    a("s_waitcnt lgkmcnt(0)")
    a("v_mov_b32 v54, s12")
    a("v_mov_b32 v7, 0")
    a("s_mov_b64 exec, 1")
    for k_, r in enumerate([41, 42, 43, 44, 45, 46, 50, 51, 52, 53, 54]):
        a(f"v_sub_u32 v20, v{r}, v40")
        a(f"global_store_dword v7, v20, s[34:35] offset:{4 * k_}")
    a("s_waitcnt vmcnt(0)")
    a.label("L_sum_end")
```

```python
from common import *
import os
import slots

NAME = "qkv_kernel"
LDS = 131072 + 2048
VGPRS = 168 if prof_on("k1") else 152
LOCAL_STATS = os.environ.get("K1_STATS", "local") == "local"
BLOCK = 768 if LOCAL_STATS else 576

SRD_X, SRD_W, SRD_WS = 8, 12, 16
sW, sMT, sNT = 20, 21, 22
sROW0 = 23
sT0, sT1, sT2, sT3 = 24, 25, 26, 27
sSEC, sHS, sTS, sSCALE = 28, 29, 30, 31
sTA, sTB = 32, 33
sWR, sWC = 34, 35
sTBL, sN5 = 44, 45
ST_NM, ST_RS, ST_CS = 131072, 131072 + 512, 131072 + 1024

vLANE, vTOK, vH = 1, 2, 3
vT = 4
vXA = 8
vXB = 12
vWA, vWB = 16, 17
vS1, vS2, vCS, vONE = 28, 29, 30, 31
vSEL = 136
vCSA = 140
vF = (32, 48)
vACC = 64
vOFF = 128
vE = 24

ST = StampsLane("k1", 20, 16, 160)
def X(flag):
    return flag in os.environ.get("K1_EXP", "").split(",")

STF = {"": "", "sc1": " sc1", "nt": " nt", "sc01": " sc0 sc1"}[os.environ.get("K1_ST", "")]

def acc(a_, b_):
    return vACC + 32 * a_ + 16 * b_

def entry(a):
    kernel_header(a, NAME)
    ST(a, "entry")
    a("s_cmp_ge_u32 s2, 256")
    a("s_cbranch_scc1 L_k1_exit")
    a("s_load_dwordx4 s[4:7], s[0:1], 0")
    a("s_load_dwordx2 s[36:37], s[0:1], 80")
    a("s_load_dwordx2 s[38:39], s[0:1], 32")
    a(f"v_lshrrev_b32 v{vT}, 6, v0")
    a(f"v_and_b32 v{vLANE}, 63, v0")
    a(f"v_readfirstlane_b32 s{sW}, v{vT}")
    MAP = os.environ.get("K1_MAP", "4x8")
    if MAP == "4x8":
        a(f"s_and_b32 s{sT0}, s2, 3")
        a(f"s_lshl_b32 s{sT0}, s{sT0}, 2")
        a(f"s_bfe_u32 s{sT1}, s2, 0x20003")
        a(f"s_or_b32 s{sMT}, s{sT0}, s{sT1}")
        a(f"s_bfe_u32 s{sT0}, s2, 0x10002")
        a(f"s_lshl_b32 s{sT0}, s{sT0}, 3")
        a(f"s_lshr_b32 s{sT1}, s2, 5")
        a(f"s_or_b32 s{sNT}, s{sT0}, s{sT1}")
    elif MAP == "8x4":
        a(f"s_and_b32 s{sT0}, s2, 1")
        a(f"s_lshl_b32 s{sT0}, s{sT0}, 3")
        a(f"s_bfe_u32 s{sT1}, s2, 0x30003")
        a(f"s_or_b32 s{sMT}, s{sT0}, s{sT1}")
        a(f"s_bfe_u32 s{sT0}, s2, 0x20001")
        a(f"s_lshl_b32 s{sT0}, s{sT0}, 2")
        a(f"s_lshr_b32 s{sT1}, s2, 6")
        a(f"s_or_b32 s{sNT}, s{sT0}, s{sT1}")
    elif MAP == "2x16":
        a(f"s_and_b32 s{sT0}, s2, 7")
        a(f"s_lshl_b32 s{sT0}, s{sT0}, 1")
        a(f"s_bfe_u32 s{sT1}, s2, 0x10003")
        a(f"s_or_b32 s{sMT}, s{sT0}, s{sT1}")
        a(f"s_lshr_b32 s{sNT}, s2, 4")
    elif MAP == "16x2":
        a(f"s_bfe_u32 s{sMT}, s2, 0x40003")
        a(f"s_and_b32 s{sT0}, s2, 7")
        a(f"s_lshl_b32 s{sT0}, s{sT0}, 1")
        a(f"s_lshr_b32 s{sT1}, s2, 7")
        a(f"s_or_b32 s{sNT}, s{sT0}, s{sT1}")
    a(f"s_lshl_b32 s{sROW0}, s{sMT}, 7")
    a(f"v_and_b32 v{vTOK}, 31, v{vLANE}")
    a(f"v_lshrrev_b32 v{vH}, 5, v{vLANE}")
    a("s_waitcnt lgkmcnt(0)")
    srd(a, SRD_X, 4, X_BYTES)
    srd(a, SRD_W, 6, WQKV_BYTES)
    srd(a, SRD_WS, 36, WS_SRD)
    a(f"s_cmp_eq_u32 s{sNT}, 15")
    a("s_cbranch_scc1 L_k1_aux")
    a(f"s_cmp_ge_u32 s{sW}, 8")
    a("s_cbranch_scc1 L_k1_stat")
    a(f"s_cmp_ge_u32 s{sW}, 4")
    a("s_cbranch_scc1 L_k1_loader")

def loader(a):
    a.label("L_k1_loader")
    a(f"s_setprio {os.environ.get('K1_LPRIO', '0')}")
    vX, vWt = 8, 9
    lw = sT0
    a(f"s_sub_u32 s{lw}, s{sW}, 4")
    a(f"v_lshrrev_b32 v{vT}, 3, v{vLANE}")
    a(f"s_lshl_b32 s{sT1}, s{lw}, 3")
    a(f"s_add_u32 s{sT1}, s{sT1}, s{sROW0}")
    a(f"v_add_u32 v{vT}, s{sT1}, v{vT}")
    a(f"v_mul_u32_u24 v{vT}, 1280, v{vT}")
    a(f"v_lshrrev_b32 v{vT+1}, 4, v{vLANE}")
    a(f"s_and_b32 s{sT1}, s{lw}, 1")
    a(f"s_lshl_b32 s{sT1}, s{sT1}, 2")
    a(f"v_add_u32 v{vT+2}, s{sT1}, v{vT+1}")
    a(f"v_and_b32 v{vT+3}, 7, v{vLANE}")
    a(f"v_xor_b32 v{vT+2}, v{vT+2}, v{vT+3}")
    a(f"v_lshl_add_u32 v{vX}, v{vT+2}, 4, v{vT}")
    a(f"s_lshl_b32 s{sT1}, s{lw}, 2")
    a(f"v_add_u32 v{vT}, s{sT1}, v{vT+1}")
    a(f"v_mul_u32_u24 v{vT}, 3840, v{vT}")
    a(f"v_and_b32 v{vT+2}, 15, v{vLANE}")
    a(f"v_lshlrev_b32 v{vT+3}, 2, v{vT+1}")
    a(f"v_xor_b32 v{vT+2}, v{vT+2}, v{vT+3}")
    a(f"v_lshl_add_u32 v{vT}, v{vT+2}, 4, v{vT}")
    a(f"s_lshl_b32 s{sT1}, s{sNT}, 8")
    a(f"v_add_u32 v{vWt}, s{sT1}, v{vT}")
    a(f"s_lshl_b32 s{sT2}, s{lw}, 10")
    vXs, vWs = 44, 48
    for i in range(4):
        a(f"v_add_u32 v{vXs + i}, {i * 40960}, v{vX}")
        a(f"v_add_u32 v{vWs + i}, {i * 16 * 3840}, v{vWt}")
    sXO, sWO = 40, 41
    a("s_lshr_b32 s42, s2, 5")
    a("s_bfe_u32 s43, s2, 0x20003")
    a("s_mul_i32 s43, s43, 3")
    a("s_add_u32 s42, s42, s43")
    a("s_cmp_ge_u32 s42, 10")
    a("s_cselect_b32 s43, 10, 0")
    a("s_sub_u32 s42, s42, s43")
    if not X("rot"):
        a("s_mov_b32 s42, 0")
    def stage(s):
        base = (s & 3) * 32768
        a(f"s_lshl_b32 s{sXO}, s42, 7")
        a(f"s_mul_i32 s{sWO}, s42, {64 * 3840}")
        a("s_add_u32 s42, s42, 1")
        a("s_cmp_eq_u32 s42, 10")
        a("s_cselect_b32 s42, 0, s42")
        for i in range(4):
            a(f"s_add_u32 m0, s{sT2}, {base + i * 4096}")
            a("s_nop 0")
            a(f"buffer_load_dwordx4 v{vXs + i}, s[{SRD_X}:{SRD_X+3}], s{sXO} offen lds")
            a(f"s_add_u32 m0, s{sT2}, {base + 16384 + i * 4096}")
            a("s_nop 0")
            a(f"buffer_load_dwordx4 v{vWs + i}, s[{SRD_W}:{SRD_W+3}], s{sWO} offen lds")
    ST(a, "setup")
    PRE = int(os.environ.get("K1_PRE", "2"))
    for s in range(PRE):
        stage(s)
    issued = PRE - 1
    for s in range(10):
        a(f"s_waitcnt vmcnt({8 * (issued - s)})")
        if os.environ.get("K1_LSTAMP"):
            ST(a, ["B0", "loopend", "e_bar", "e_lds", "g4", "g8", "g20", "x7", "x8", "x9"][s])
        a("s_barrier")
        while issued < min(9, s + int(os.environ.get('K1_DEPTH', '3'))):
            issued += 1
            if not (X("nodma") and issued > 3):
                stage(issued)
    ST(a, "stores")
    ST(a, "end")
    ST.store(a)
    a("s_endpgm")

def stat_waves(a):
    (stat_local if LOCAL_STATS else stat_fetch)(a)

def stat_local(a):
    a.label("L_k1_stat")
    lw = sT0
    vR, vR2, vD, vP, vA1, vA2 = 8, 12, 48, 32, 36, 38
    a(f"s_sub_u32 s{lw}, s{sW}, 8")
    a(f"v_lshrrev_b32 v{vT}, 1, v{vLANE}")
    a(f"s_lshl_b32 s{sT1}, s{lw}, 5")
    a(f"v_add_u32 v{vT}, s{sT1}, v{vT}")
    a(f"v_lshlrev_b32 v{vT+1}, 7, v{vT}")
    a(f"v_and_b32 v{vT+2}, 1, v{vLANE}")
    a(f"v_lshl_add_u32 v{vT+1}, v{vT+2}, 6, v{vT+1}")
    a(f"v_bfe_u32 v{vT+2}, v{vLANE}, 2, 2")
    for i in range(4):
        a(f"v_xor_b32 v{vT+3}, {i}, v{vT+2}")
        a(f"v_lshl_add_u32 v{vR + i}, v{vT+3}, 4, v{vT+1}")
        a(f"v_add_u32 v{vR2 + i}, 65536, v{vR + i}")
    a(f"v_lshlrev_b32 v40, 2, v{vT}")
    for r in range(4):
        a(f"v_mov_b32 v{vA1 + r}, 0")
    if os.environ.get("K1_PF", "0") == "1":
        a(f"s_sub_u32 s{sT1}, s{sW}, 8")
        a(f"s_mul_i32 s{sT2}, s2, 10240")
        a(f"s_mul_i32 s{sT3}, s2, 9600")
        a(f"v_lshlrev_b32 v41, 4, v{vLANE}")
        a(f"s_lshl_b32 s{sT1}, s{sT1}, 10")
        a(f"v_add_u32 v41, s{sT1}, v41")
        for i in range(3):
            a(f"buffer_load_dwordx4 v[96:99], v41, s[{SRD_X}:{SRD_X+3}], s{sT2} offen" + (f" offset:{4096 * i}" if i * 4096 < 4096 else ""))if i == 0 else None
        for i in range(1, 3):
            a(f"s_add_u32 s{sT2}, s{sT2}, 4096")
            a(f"buffer_load_dwordx4 v[96:99], v41, s[{SRD_X}:{SRD_X+3}], s{sT2} offen")
        for i in range(3):
            a(f"buffer_load_dwordx4 v[100:103], v41, s[{SRD_W}:{SRD_W+3}], s{sT3} offen")
            a(f"s_add_u32 s{sT3}, s{sT3}, 4096")
    CPF = os.environ.get("K1_CPF", "none").split(",")
    if "own" in CPF:
        a(f"s_cmp_lg_u32 s{sW}, 8")
        a("s_cbranch_scc1 L_k1_cpf1")
        code_prefetch(a, "k1own", NAME, "L_k1_end", 24576, 46, vLANE, 44, True)
        a.label("L_k1_cpf1")
    if "next" in CPF:
        a(f"s_cmp_lg_u32 s{sW}, 9")
        a("s_cbranch_scc1 L_k1_cpf2")
        code_prefetch(a, "k1next", "attn_proj_kernel", "L_k2_end", 40960, 46, vLANE, 44, False)
        a.label("L_k1_cpf2")
    TOUCH = os.environ.get("K1_TOUCH", "none").split(",")
    a(f"v_lshlrev_b32 v41, 16, v{vLANE}")
    a(f"s_cmp_lg_u32 s{sW}, 8")
    a("s_cbranch_scc1 L_k1_touch2")
    if "xw" in TOUCH:
        a(f"buffer_load_dword v42, v41, s[{SRD_X}:{SRD_X+3}], 0 offen")
        a(f"buffer_load_dword v43, v41, s[{SRD_W}:{SRD_W+3}], 0 offen")
    if "ws" in TOUCH:
        for i in range((WS_SRD + (64 << 16) - 1) // (64 << 16)):
            a(f"s_mov_b32 s{sT1}, {i * (64 << 16)}")
            a(f"buffer_load_dword v44, v41, s[{SRD_WS}:{SRD_WS+3}], s{sT1} offen")
    a.label("L_k1_touch2")
    if "wts" in TOUCH or "out" in TOUCH:
        a(f"s_cmp_lg_u32 s{sW}, 9")
        a("s_cbranch_scc1 L_k1_touched")
        a("s_load_dwordx2 s[46:47], s[0:1], 16")
        a("s_load_dwordx4 s[48:51], s[0:1], 40")
        a("s_load_dwordx4 s[52:55], s[0:1], 56")
        a("s_waitcnt lgkmcnt(0)")
        bufs = [(46, WO_BYTES), (48, WG_BYTES), (50, WG_BYTES), (52, WD_BYTES)] if "wts" in TOUCH else []
        if "out" in TOUCH:
            bufs.append((54, X_BYTES))
        for lo, nbytes in bufs:
            srd(a, 56, lo, nbytes)
            a("buffer_load_dword v44, v41, s[56:59], 0 offen")
        a.label("L_k1_touched")
    for s in range(10):
        slot = s & 3
        a("s_barrier")
        if s == 9:
            a(f"s_setprio {os.environ.get('K1_LASTPRIO', '0')}")
        for i in range(4):
            a(f"ds_read_b128 {vr(vD + 4 * i, 4)}, v{(vR if slot < 2 else vR2) + i} offset:{(slot & 1) * 32768}")
        for j in range(16):
            if j % 4 == 0:
                a(f"s_waitcnt lgkmcnt({3 - j // 4})")
            p = vP + 2 * (j & 1)
            a(f"v_lshlrev_b32 v{p}, 16, v{vD + j}")
            a(f"v_and_b32 v{p+1}, 0xffff0000, v{vD + j}")
            a(f"v_add_f32 v{vA1}, v{vA1}, v{p}")
            a(f"v_fmac_f32 v{vA2}, v{p}, v{p}")
            a(f"v_add_f32 v{vA1+1}, v{vA1+1}, v{p+1}")
            a(f"v_fmac_f32 v{vA2+1}, v{p+1}, v{p+1}")
    a(f"v_add_f32 v{vA1}, v{vA1}, v{vA1+1}")
    a(f"v_add_f32 v{vA2}, v{vA2}, v{vA2+1}")
    a("s_nop 1")
    a(f"v_add_f32_dpp v{vA1+1}, v{vA1}, v{vA1} quad_perm:[1,0,3,2] row_mask:0xf bank_mask:0xf")
    a(f"v_add_f32_dpp v{vA2+1}, v{vA2}, v{vA2} quad_perm:[1,0,3,2] row_mask:0xf bank_mask:0xf")
    a(f"v_mul_f32 v{vA1}, {hex(f2u(1.0 / D))}, v{vA1+1}")
    a(f"v_mul_f32 v{vA2}, {hex(f2u(1.0 / D))}, v{vA2+1}")
    a(f"v_fma_f32 v{vA2}, -v{vA1}, v{vA1}, v{vA2}")
    a(f"v_max_f32 v{vA2}, 0, v{vA2}")
    a(f"v_add_f32 v{vA2}, {hex(f2u(1e-5))}, v{vA2}")
    a(f"v_rsq_f32 v{vA2}, v{vA2}")
    a(f"v_sub_f32 v{vA1}, 0, v{vA1}")
    a(f"v_add_u32 v40, {ST_NM}, v40")
    a(f"ds_write_b32 v40, v{vA1}")
    a(f"ds_write_b32 v40, v{vA2} offset:512")
    a("s_waitcnt lgkmcnt(0)")
    ST(a, "stores")
    a("s_barrier")
    ST(a, "end")
    ST.store(a)
    a("s_endpgm")

def stat_fetch(a):
    a.label("L_k1_stat")
    vA, vF, vD = 8, 9, 12
    ws = f"s[{SRD_WS}:{SRD_WS+3}]"
    a("s_load_dwordx2 s[46:47], s[0:1], 72")
    a(f"v_lshlrev_b32 v{vA}, 4, v{vLANE}")
    a(f"s_lshl_b32 s{sT0}, s{sMT}, 2")
    a(f"v_mov_b32 v{vF}, s{sT0}")
    a(f"s_lshl_b32 s{sT1}, s{sMT}, 10")
    a(f"s_add_u32 s{sT1}, s{sT1}, {ST_OFF}")
    a(f"v_lshlrev_b32 v10, 3, v{vLANE}")
    a(f"v_add_u32 v10, {ST_NM}, v10")
    a(f"s_mov_b32 s{sT2}, 0")
    a("s_waitcnt lgkmcnt(0)")
    def advance(tag, blocking):
        a(f"s_cmp_eq_u32 s{sT2}, 2")
        a(f"s_cbranch_scc1 L_st_{tag}_end")
        a("s_waitcnt vmcnt(0)")
        a(f"s_cmp_eq_u32 s{sT2}, 1")
        a(f"s_cbranch_scc1 L_st_{tag}_land")
        a(f"v_readfirstlane_b32 s{sT3}, v11")
        a("s_nop 1")
        a(f"s_cmp_eq_u32 s{sT3}, 1")
        a(f"s_cbranch_scc1 L_st_{tag}_go")
        a(f"global_load_dword v11, v{vF}, s[46:47] sc1")
        a(f"s_branch L_st_{tag}_end")
        a.label(f"L_st_{tag}_go")
        a(f"buffer_load_dwordx4 {vr(vD, 4)}, v{vA}, {ws}, s{sT1} offen sc1")
        a(f"s_mov_b32 s{sT2}, 1")
        a(f"s_branch L_st_{tag}_end")
        a.label(f"L_st_{tag}_land")
        a(f"v_sub_f32 v16, 0, v{vD}")
        a(f"v_sub_f32 v17, 0, v{vD+2}")
        a(f"v_mov_b32 v18, v{vD+1}")
        a(f"v_mov_b32 v19, v{vD+3}")
        a("ds_write_b64 v10, v[16:17]")
        a("ds_write_b64 v10, v[18:19] offset:512")
        a(f"s_mov_b32 s{sT2}, 2")
        a.label(f"L_st_{tag}_end")
    a("v_mov_b32 v11, 0")
    if X("touch"):
        a(f"s_mov_b32 s{sT3}, {YP_OFF}")
        a("v_mov_b32 v21, 0")
        a(f"buffer_load_dword v20, v21, {ws}, s{sT3} offen")
        a("global_load_dword v22, v21, s[46:47] offset:192")
    for s in range(10):
        a("s_barrier")
        if s in (1, 3, 5, 7):
            advance(f"b{s}", False)
    a(f"s_mov_b32 s48, {1 << 20}")
    a.label("L_st_fin")
    advance("fin", True)
    a("s_sub_u32 s48, s48, 1")
    a("s_cbranch_scc1 L_st_done")
    a(f"s_cmp_eq_u32 s{sT2}, 2")
    a("s_cbranch_scc0 L_st_fin")
    a.label("L_st_done")
    a("s_waitcnt lgkmcnt(0)")
    ST(a, "stores")
    a("s_barrier")
    ST(a, "end")
    ST.store(a)
    a("s_endpgm")

def read_list(g):
    ks, half = g & 3, (g >> 2) & 1
    base = half * 32768
    f = vF[g & 1]
    w = lambda b, reg, rd: f"ds_read_b64_tr_b16 {vr(f + 8 + 4 * b + 2 * rd, 2)}, v{reg} offset:{base + 16384 + (16 * ks + 4 * rd) * 256}"
    return [f"ds_read_b128 {vr(f, 4)}, v{vXA + ks} offset:{base}", w(0, vWA, 0), w(0, vWA, 1),
            w(1, vWB, 0), w(1, vWB, 1), f"ds_read_b128 {vr(f + 4, 4)}, v{vXB + ks} offset:{base}"]

def step(a, g, vorient, reads, pre=None):
    f = vF[g & 1]
    def mm(a_, b_):
        x, w = vr(f + 4 * a_, 4), vr(f + 8 + 4 * b_, 4)
        A, B = (x, w) if vorient else (w, x)
        a(f"v_mfma_f32_32x32x16_bf16 {vr(acc(a_, b_), 16)}, {A}, {B}, {vr(acc(a_, b_), 16)}")
    if pre is not None:
        a("s_waitcnt lgkmcnt(0)")
        mm(0, 0)
        mm(0, 1)
        pre()
        for r in reads[0:3]: a(r)
        mm(1, 0)
        for r in reads[3:6]: a(r)
        mm(1, 1)
    else:
        a("s_waitcnt lgkmcnt(3)")
        mm(0, 0)
        for r in reads[0:3]: a(r)
        a("s_waitcnt lgkmcnt(4)")
        mm(0, 1)
        for r in reads[3:6]: a(r)
        a("s_waitcnt lgkmcnt(6)")
        mm(1, 0)
        mm(1, 1)
    a(f"v_mfma_f32_16x16x32_bf16 {vr(vCSA, 4)}, {vr(vSEL, 4)}, {vr(f + 8, 4)}, {vr(vCSA, 4)}")

def mainloop(a, vorient):
    tag = "v" if vorient else "qk"
    ST(a, "setup")
    a("s_barrier")
    ST(a, "B0")
    for r in read_list(0):
        a(r)
    a(f"s_mov_b32 s{sT3}, 5")
    a(".p2align 3")
    a.label(f"L_k1_loop_{tag}")
    def pre7():
        a(f"s_sub_u32 s{sT3}, s{sT3}, 1")
        a(f"s_cmp_eq_u32 s{sT3}, 0")
        a(f"s_cbranch_scc1 L_k1_last_{tag}")
        for r in list(range(vXA, vXA + 4)) + list(range(vXB, vXB + 4)) + [vWA, vWB]:
            a(f"v_xor_b32 v{r}, 0x10000, v{r}")
        a("s_barrier")
    for g in range(8):
        pre = (lambda: a("s_barrier")) if g == 3 else (pre7 if g == 7 else None)
        step(a, g, vorient, read_list(g + 1), pre)
    a(f"s_branch L_k1_loop_{tag}")
    a.label(f"L_k1_last_{tag}")
    f = vF[1]
    for b_ in range(2):
        x, w = vr(f + 4, 4), vr(f + 8 + 4 * b_, 4)
        A, B = (x, w) if vorient else (w, x)
        a(f"v_mfma_f32_32x32x16_bf16 {vr(acc(1, b_), 16)}, {A}, {B}, {vr(acc(1, b_), 16)}")
    a(f"v_mfma_f32_16x16x32_bf16 {vr(vCSA, 4)}, {vr(vSEL, 4)}, {vr(f + 8, 4)}, {vr(vCSA, 4)}")

def stats_exchange(a):
    ST(a, "loopend")
    a(f"s_lshl_b32 s{sT0}, s{sWC}, 6")
    a(f"s_lshl_b32 s{sT1}, s{sWR}, 5")
    a(f"s_add_u32 s{sT0}, s{sT0}, s{sT1}")
    a(f"v_add_u32 v{vT+1}, s{sT0}, v{vLANE}")
    a(f"v_lshlrev_b32 v{vT+1}, 2, v{vT+1}")
    a(f"v_add_u32 v{vT+1}, {ST_CS}, v{vT+1}")
    a("s_mov_b64 exec, 0xffff")
    a("s_nop 4")
    a(f"ds_write_b32 v{vT+1}, v{vCSA}")
    a(f"ds_write_b32 v{vT+1}, v{vCSA+1} offset:64")
    a("s_mov_b64 exec, -1")
    a("s_waitcnt lgkmcnt(0)")
    a("s_barrier")
    ST(a, "e_bar")

def consumer_setup(a):
    a(f"s_lshr_b32 s{sWR}, s{sW}, 1")
    a(f"s_and_b32 s{sWC}, s{sW}, 1")
    a(f"v_lshrrev_b32 v{vT}, 1, v{vTOK}")
    a(f"v_and_b32 v{vT}, 7, v{vT}")
    a(f"s_lshl_b32 s{sT0}, s{sWR}, 6")
    a(f"v_add_u32 v{vT+1}, s{sT0}, v{vTOK}")
    a(f"v_lshlrev_b32 v{vT+1}, 7, v{vT+1}")
    a(f"s_lshl_b32 s{sT0}, s{sWC}, 12")
    a(f"s_xor_b32 s{sT1}, s{sT0}, 4096")
    for ks in range(4):
        a(f"v_add_u32 v{vT+2}, {2 * ks}, v{vH}")
        a(f"v_xor_b32 v{vT+2}, v{vT+2}, v{vT}")
        a(f"v_lshl_add_u32 v{vT+2}, v{vT+2}, 4, v{vT+1}")
        a(f"v_add_u32 v{vXA + ks}, s{sT0}, v{vT+2}")
        a(f"v_add_u32 v{vXB + ks}, s{sT1}, v{vT+2}")
    a(f"s_sub_u32 s{sN5}, s{sNT}, 5")
    a(f"s_cmp_lt_u32 s{sNT}, 5")
    a(f"s_cselect_b32 s{sN5}, s{sNT}, s{sN5}")
    for wc in range(2):
        reg = sT0 + wc
        a(f"s_mov_b32 s{reg}, {hex(0x76543210 + wc * 0x88888888)}")
        for n5 in range(5):
            a(f"s_cmp_eq_u32 s{sN5}, {n5}")
            a(f"s_cselect_b32 s{reg}, {hex(slots.packed(n5, wc))}, s{reg}")
    a(f"s_cmp_eq_u32 s{sWC}, 0")
    a(f"s_cselect_b32 s{sTBL}, s{sT0}, s{sT1}")
    a(f"v_bfe_u32 v{vT}, v{vLANE}, 2, 2")
    a(f"v_lshl_add_u32 v{vT+1}, v{vH}, 3, v{vT}")
    a(f"v_lshlrev_b32 v{vT+1}, 8, v{vT+1}")
    a(f"v_and_b32 v{vT+2}, 1, v{vLANE}")
    a(f"v_lshl_add_u32 v{vT+1}, v{vT+2}, 3, v{vT+1}")
    a(f"v_bfe_u32 v{vT+2}, v{vLANE}, 4, 1")
    a(f"v_bfe_u32 v{vT+3}, v{vLANE}, 1, 1")
    a(f"v_lshl_add_u32 v{vT+2}, v{vT+2}, 1, v{vT+3}")
    a(f"v_lshlrev_b32 v{vT+2}, 2, v{vT+2}")
    a(f"v_lshlrev_b32 v{vT}, 2, v{vT}")
    for (dst, own) in ((vWA, True), (vWB, False)):
        if own:
            a(f"s_lshl_b32 s{sT0}, s{sWR}, 4")
        else:
            a(f"s_xor_b32 s{sT0}, s{sWR}, 1")
            a(f"s_lshl_b32 s{sT0}, s{sT0}, 4")
        a(f"s_lshr_b32 s{sT0}, s{sTBL}, s{sT0}")
        a(f"v_lshrrev_b32 v{vT+3}, v{vT+2}, s{sT0}") if False else None
        a(f"v_mov_b32 v{vT+3}, s{sT0}")
        a(f"v_lshrrev_b32 v{vT+3}, v{vT+2}, v{vT+3}")
        a(f"v_and_b32 v{vT+3}, 15, v{vT+3}")
        a(f"v_xor_b32 v{vT+3}, v{vT+3}, v{vT}")
        a(f"v_lshl_add_u32 v{dst}, v{vT+3}, 4, v{vT+1}")
    a(f"v_and_b32 v{vT}, 15, v{vLANE}")
    a(f"v_bfe_u32 v{vT+1}, v{vLANE}, 4, 1")
    a(f"v_cmp_eq_u32 vcc, v{vT}, v{vT+1}")
    a(f"v_mov_b32 v{vT+2}, 0x3f803f80")
    a("s_nop 0")
    a(f"v_cndmask_b32 v{vSEL}, 0, v{vT+2}, vcc")
    for r in range(1, 4):
        a(f"v_mov_b32 v{vSEL + r}, v{vSEL}")
    for r in range(4):
        a(f"v_mov_b32 v{vCSA + r}, 0")
    for r in range(64):
        a(f"v_mov_b32 v{vACC + r}, 0")

def qk_path(a):
    a.label("L_k1_qk")
    a(f"s_mov_b32 s{sSEC}, {KV_OFF}")
    a(f"s_mov_b32 s{sTS}, 2560")
    a(f"s_mov_b32 s{sSCALE}, {hex(f2u(1.0))}")
    a(f"s_sub_u32 s{sT0}, s{sNT}, 5")
    a(f"s_cmp_lt_u32 s{sNT}, 5")
    a(f"s_cselect_b32 s{sSEC}, {QB_OFF}, s{sSEC}")
    a(f"s_cselect_b32 s{sTS}, 1280, s{sTS}")
    a(f"s_cselect_b32 s{sSCALE}, {hex(f2u(QSCALE))}, s{sSCALE}")
    a(f"s_cselect_b32 s{sT0}, s{sNT}, s{sT0}")
    a(f"s_lshl_b32 s{sHS}, s{sTS}, 6")
    a(f"s_lshl_b32 s{sT1}, s{sMT}, 2")
    a(f"s_lshl_b32 s{sT2}, s{sWR}, 1")
    a(f"s_add_u32 s{sT1}, s{sT1}, s{sT2}")
    a(f"s_add_u32 s{sT2}, s{sT1}, s{sWC}")
    a(f"s_mul_i32 s{sTA}, s{sT2}, s{sTS}")
    a(f"s_add_u32 s{sTA}, s{sTA}, s{sSEC}")
    a(f"s_xor_b32 s{sT3}, s{sWC}, 1")
    a(f"s_add_u32 s{sT2}, s{sT1}, s{sT3}")
    a(f"s_mul_i32 s{sTB}, s{sT2}, s{sTS}")
    a(f"s_add_u32 s{sTB}, s{sTB}, s{sSEC}")
    for k_, (ct, g) in enumerate(((0, 0), (0, 2), (1, 0), (1, 2), (1, 3))):
        o = vOFF + k_
        a(f"s_bfe_u32 s{sT1}, s{sTBL}, {hex((4 << 16) | (16 * ct + 4 * g))}")
        a(f"s_lshl_b32 s{sT2}, s{sN5}, 4")
        a(f"s_add_u32 s{sT1}, s{sT1}, s{sT2}")
        a(f"s_lshl_b32 s{sT1}, s{sT1}, 1")
        a(f"v_add_u32 v{vT}, s{sT1}, v{vH}")
        a(f"v_mul_u32_u24 v{vT+1}, 52429, v{vT}")
        a(f"v_lshrrev_b32 v{vT+1}, 18, v{vT+1}")
        a(f"v_mul_u32_u24 v{vT+2}, 5, v{vT+1}")
        a(f"v_sub_u32 v{vT+2}, v{vT}, v{vT+2}")
        a(f"v_and_b32 v{vT+3}, 1, v{vT+1}")
        a(f"v_sub_u32 v{vT+2}, v{vT+2}, v{vT+3}")
        a(f"v_mul_lo_u32 v{o}, v{vT+1}, s{sHS}")
        a(f"v_and_b32 v{vT+1}, 1, v{vT+2}")
        a(f"v_lshlrev_b32 v{vT+1}, 9, v{vT+1}")
        a(f"v_bfe_u32 v{vT+3}, v{vT+2}, 1, 1")
        a(f"v_lshl_add_u32 v{vT+1}, v{vT+3}, 3, v{vT+1}")
        a(f"v_lshl_add_u32 v{vT+1}, v{vTOK}, 4, v{vT+1}")
        a(f"v_cmp_lt_u32 vcc, 3, v{vT+2}")
        a(f"v_lshlrev_b32 v{vT+3}, 3, v{vTOK}")
        a(f"v_add_u32 v{vT+3}, 1024, v{vT+3}")
        a(f"v_cndmask_b32 v{vT+1}, v{vT+1}, v{vT+3}, vcc")
        a(f"v_add_u32 v{o}, v{o}, v{vT+1}")
    mainloop(a, False)
    stats_exchange(a)
    vNM, vRS, vC = vE, vE + 2, vE + 4
    a(f"s_lshl_b32 s{sT0}, s{sWR}, 6")
    a(f"v_add_u32 v{vT}, s{sT0}, v{vTOK}")
    a(f"v_lshlrev_b32 v{vT}, 2, v{vT}")
    a(f"s_lshl_b32 s{sT1}, s{sWC}, 7")
    a(f"v_add_u32 v{vT+1}, s{sT1}, v{vT}")
    a(f"s_xor_b32 s{sT1}, s{sT1}, 128")
    a(f"v_add_u32 v{vT+2}, s{sT1}, v{vT}")
    a(f"v_add_u32 v{vT+1}, {ST_NM}, v{vT+1}")
    a(f"v_add_u32 v{vT+2}, {ST_NM}, v{vT+2}")
    a(f"ds_read_b32 v{vNM}, v{vT+1}")
    a(f"ds_read_b32 v{vRS}, v{vT+1} offset:512")
    a(f"ds_read_b32 v{vNM+1}, v{vT+2}")
    a(f"ds_read_b32 v{vRS+1}, v{vT+2} offset:512")
    a(f"s_lshl_b32 s{sT0}, s{sWC}, 8")
    a(f"v_lshlrev_b32 v{vT}, 4, v{vH}")
    a(f"v_add_u32 v{vT}, s{sT0}, v{vT}")
    a(f"s_lshl_b32 s{sT1}, s{sWR}, 7")
    a(f"v_add_u32 v{vT+1}, s{sT1}, v{vT}")
    a(f"s_xor_b32 s{sT1}, s{sT1}, 128")
    a(f"v_add_u32 v{vT+2}, s{sT1}, v{vT}")
    a(f"v_add_u32 v{vT+1}, {ST_CS}, v{vT+1}")
    a(f"v_add_u32 v{vT+2}, {ST_CS}, v{vT+2}")
    for b_ in range(2):
        for g in range(4):
            a(f"ds_read_b128 {vr(vC + 16 * b_ + 4 * g, 4)}, v{vT + 1 + b_} offset:{32 * g}")
    a("s_waitcnt lgkmcnt(0)")
    ST(a, "e_lds")
    a(f"v_mul_f32 v{vRS}, s{sSCALE}, v{vRS}")
    a(f"v_mul_f32 v{vRS+1}, s{sSCALE}, v{vRS+1}")
    ws = f"s[{SRD_WS}:{SRD_WS+3}]"
    def finish(wr):
        for a_ in range(2):
            a(f"v_mov_b32 v{vT}, v{vNM + a_}")
            a(f"v_mov_b32 v{vT+1}, v{vNM + a_}")
            a(f"v_mov_b32 v{vT+2}, v{vRS + a_}")
            a(f"v_mov_b32 v{vT+3}, v{vRS + a_}")
            so = f"s{sTA if a_ == 0 else sTB}"
            for b_ in range(2):
                A = acc(a_, b_)
                for p in range(8):
                    a(f"v_pk_fma_f32 {vr(A + 2 * p, 2)}, {vr(vC + 16 * b_ + 2 * p, 2)}, {vr(vT, 2)}, {vr(A + 2 * p, 2)}")
                for p in range(8):
                    a(f"v_pk_mul_f32 {vr(A + 2 * p, 2)}, {vr(A + 2 * p, 2)}, {vr(vT + 2, 2)}")
                for p in range(8):
                    a(f"v_cvt_pk_bf16_f32 v{A + p}, v{A + 2 * p}, v{A + 2 * p + 1}")
                if (wr ^ b_) == 0:
                    a(f"buffer_store_dwordx4 {vr(A, 4)}, v{vOFF}, {ws}, {so} offen{STF}")
                    a(f"buffer_store_dwordx4 {vr(A + 4, 4)}, v{vOFF + 1}, {ws}, {so} offen{STF}")
                else:
                    a(f"buffer_store_dwordx4 {vr(A, 4)}, v{vOFF + 2}, {ws}, {so} offen{STF}")
                    a(f"buffer_store_dwordx2 {vr(A + 4, 2)}, v{vOFF + 3}, {ws}, {so} offen{STF}")
                    a(f"buffer_store_dwordx2 {vr(A + 6, 2)}, v{vOFF + 4}, {ws}, {so} offen{STF}")
    a(f"s_cmp_eq_u32 s{sWR}, 0")
    a("s_cbranch_scc0 L_k1_qk_wr1")
    finish(0)
    a("s_branch L_k1_qk_done")
    a.label("L_k1_qk_wr1")
    finish(1)
    a.label("L_k1_qk_done")
    ST(a, "stores")
    if ST.on:
        a("s_waitcnt vmcnt(0)")
    ST(a, "end")
    ST.store(a)
    a("s_endpgm")

def v_path(a):
    a.label("L_k1_v")
    a(f"s_lshl_b32 s{sT1}, s{sMT}, 2")
    a(f"s_lshl_b32 s{sT2}, s{sWR}, 1")
    a(f"s_add_u32 s{sT1}, s{sT1}, s{sT2}")
    a(f"s_add_u32 s{sT2}, s{sT1}, s{sWC}")
    a(f"s_mul_i32 s{sTA}, s{sT2}, 2560")
    a(f"s_add_u32 s{sTA}, s{sTA}, {KV_OFF + 1280}")
    a(f"s_xor_b32 s{sT3}, s{sWC}, 1")
    a(f"s_add_u32 s{sT2}, s{sT1}, s{sT3}")
    a(f"s_mul_i32 s{sTB}, s{sT2}, 2560")
    a(f"s_add_u32 s{sTB}, s{sTB}, {KV_OFF + 1280}")
    a(f"s_sub_u32 s{sT0}, s{sNT}, 10")
    a(f"s_lshl_b32 s{sT0}, s{sT0}, 7")
    a(f"s_lshl_b32 s{sT1}, s{sWC}, 6")
    a(f"s_add_u32 s{sT0}, s{sT0}, s{sT1}")
    for b_ in range(2):
        if b_ == 0:
            a(f"s_lshl_b32 s{sT1}, s{sWR}, 5")
        else:
            a(f"s_xor_b32 s{sT1}, s{sWR}, 1")
            a(f"s_lshl_b32 s{sT1}, s{sT1}, 5")
        a(f"s_add_u32 s{sT1}, s{sT1}, s{sT0}")
        a(f"v_add_u32 v{vT}, s{sT1}, v{vTOK}")
        a(f"v_mul_u32_u24 v{vT+1}, 52429, v{vT}")
        a(f"v_lshrrev_b32 v{vT+1}, 20, v{vT+1}")
        a(f"v_mul_u32_u24 v{vT+2}, 20, v{vT+1}")
        a(f"v_sub_u32 v{vT+2}, v{vT}, v{vT+2}")
        a(f"s_mov_b32 s{sT2}, {64 * 2560}")
        a(f"v_mul_lo_u32 v{vOFF + b_}, v{vT+1}, s{sT2}")
        a(f"v_lshlrev_b32 v{vT+2}, 4, v{vT+2}")
        a(f"v_mul_u32_u24 v{vT+3}, 320, v{vH}")
        a(f"v_add3_u32 v{vOFF + b_}, v{vOFF + b_}, v{vT+2}, v{vT+3}")
    mainloop(a, True)
    stats_exchange(a)
    vCL, vNM, vRS = vE, vE + 4, vE + 20
    a(f"s_lshl_b32 s{sT0}, s{sWC}, 6")
    a(f"v_add_u32 v{vT}, s{sT0}, v{vTOK}")
    a(f"v_lshlrev_b32 v{vT}, 2, v{vT}")
    a(f"s_lshl_b32 s{sT1}, s{sWR}, 7")
    a(f"v_add_u32 v{vT+1}, s{sT1}, v{vT}")
    a(f"s_xor_b32 s{sT1}, s{sT1}, 128")
    a(f"v_add_u32 v{vT+2}, s{sT1}, v{vT}")
    a(f"v_add_u32 v{vT+1}, {ST_CS}, v{vT+1}")
    a(f"v_add_u32 v{vT+2}, {ST_CS}, v{vT+2}")
    a(f"ds_read_b32 v{vCL}, v{vT+1}")
    a(f"ds_read_b32 v{vCL+2}, v{vT+2}")
    a("s_waitcnt lgkmcnt(0)")
    a(f"v_mov_b32 v{vCL+1}, v{vCL}")
    a(f"v_mov_b32 v{vCL+3}, v{vCL+2}")
    ws = f"s[{SRD_WS}:{SRD_WS+3}]"
    for a_ in range(2):
        a(f"s_lshl_b32 s{sT0}, s{sWR}, 8")
        a(f"s_lshl_b32 s{sT1}, s{sWC}, 7")
        if a_ == 1:
            a(f"s_xor_b32 s{sT1}, s{sT1}, 128")
        a(f"s_add_u32 s{sT0}, s{sT0}, s{sT1}")
        a(f"v_lshlrev_b32 v{vT}, 4, v{vH}")
        a(f"v_add_u32 v{vT}, s{sT0}, v{vT}")
        a(f"v_add_u32 v{vT}, {ST_NM}, v{vT}")
        for g in range(4):
            a(f"ds_read_b128 {vr(vNM + 4 * g, 4)}, v{vT} offset:{32 * g}")
            a(f"ds_read_b128 {vr(vRS + 4 * g, 4)}, v{vT} offset:{512 + 32 * g}")
        a("s_waitcnt lgkmcnt(0)")
        for b_ in range(2):
            A = acc(a_, b_)
            for p in range(8):
                a(f"v_pk_fma_f32 {vr(A + 2 * p, 2)}, {vr(vNM + 2 * p, 2)}, {vr(vCL + 2 * b_, 2)}, {vr(A + 2 * p, 2)}")
            for p in range(8):
                a(f"v_pk_mul_f32 {vr(A + 2 * p, 2)}, {vr(A + 2 * p, 2)}, {vr(vRS + 2 * p, 2)}")
            for p in range(8):
                a(f"v_cvt_pk_bf16_f32 v{A + p}, v{A + 2 * p}, v{A + 2 * p + 1}")
            for t in range(2):
                a(f"buffer_store_dwordx4 {vr(A + 4 * t, 4)}, v{vOFF + b_}, {ws}, s{sTA if a_ == 0 else sTB} offen offset:{640 * t}{STF}")
    ST(a, "stores")
    if ST.on:
        a("s_waitcnt vmcnt(0)")
    ST(a, "end")
    ST.store(a)
    a("s_endpgm")

L_KEYS, L_WR = 51200, 52224

def aux(a):
    from k2moe import repack_setup, repack_request, repack_finish
    a.label("L_k1_aux")
    a(f"s_cmp_ge_u32 s{sW}, 8")
    a("s_cbranch_scc1 L_k1_exit")
    vX, vWr = (16, 56), 96
    vA, vAW = 8, 9
    s1, s2, s3, sw = (10, 136), (11, 137), (12, 138), 13
    SRD_R = 40
    a("s_load_dwordx2 s[6:7], s[0:1], 16")
    srd(a, SRD_R, 38, D * 2)
    a(f"v_lshrrev_b32 v{vT}, 3, v{vLANE}")
    a(f"s_lshl_b32 s{sT0}, s{sW}, 4")
    a(f"s_add_u32 s{sT0}, s{sT0}, s{sROW0}")
    a(f"v_add_u32 v14, s{sT0}, v{vT}")
    a(f"v_and_b32 v15, 7, v{vLANE}")
    a(f"v_lshlrev_b32 v{vAW}, 4, v15")
    a(f"v_mul_u32_u24 v{vA}, 1280, v14")
    a(f"v_add_u32 v{vA}, v{vA}, v{vAW}")
    if X("touch"):
        a("s_load_dwordx2 s[46:47], s[0:1], 72")
        a(f"s_mov_b32 s{sT1}, {YP_OFF}")
        a(f"v_mov_b32 v140, 0")
        a(f"buffer_load_dword v141, v140, s[{SRD_WS}:{SRD_WS+3}], s{sT1} offen")
        a("s_waitcnt lgkmcnt(0)")
        a("global_load_dword v142, v140, s[46:47] offset:192")
    a(f"s_mov_b32 s{sT1}, {8 * 1280}")
    for g in range(2):
        for i in range(10):
            a(f"buffer_load_dwordx4 {vr(vX[g] + 4 * i, 4)}, v{vA}, s[{SRD_X}:{SRD_X+3}], {0 if g == 0 else f's{sT1}'} offen offset:{i * 128}")
        if g == 0:
            for i in range(10):
                a(f"buffer_load_dwordx4 {vr(vWr + 4 * i, 4)}, v{vAW}, s[{SRD_R}:{SRD_R+3}], 0 offen offset:{i * 128}")
    EARLY_REP = LOCAL_STATS and os.environ.get("K1_EARLYREP", "0") == "1"
    if EARLY_REP:
        a("s_waitcnt lgkmcnt(0)")
        repack_setup(a, sMT)
        repack_request(a, sW, 0)
    for r in s1 + s2 + s3 + (sw,):
        a(f"v_mov_b32 v{r}, 0")
    a(f"v_mov_b32 v139, 0x3f803f80")
    ST(a, "setup")
    extra = 5 if EARLY_REP else 0
    for g in range(2):
        a(f"s_waitcnt vmcnt({(10 if g == 0 else 0) + extra})")
        if g == 0:
            ST(a, "B0")
        for r in range(40):
            a(f"v_dot2c_f32_bf16 v{s1[g]}, v{vX[g] + r}, v139")
            a(f"v_dot2c_f32_bf16 v{s2[g]}, v{vX[g] + r}, v{vX[g] + r}")
            a(f"v_dot2c_f32_bf16 v{s3[g]}, v{vX[g] + r}, v{vWr + r}")
            if g == 0:
                a(f"v_dot2c_f32_bf16 v{sw}, v{vWr + r}, v139")
    ST(a, "loopend")
    a("s_nop 3")
    for ctrl in ("quad_perm:[1,0,3,2]", "quad_perm:[2,3,0,1]", "row_half_mirror"):
        for r in s1 + s2 + s3 + (sw,):
            a(f"v_add_f32_dpp v{vT+2}, v{r}, v{r} {ctrl} row_mask:0xf bank_mask:0xf")
            a("s_nop 0")
            a(f"v_mov_b32 v{r}, v{vT+2}")
        a("s_nop 1")
    a(f"v_cmp_eq_u32 vcc, 1, v15")
    a(f"v_add_u32 v{vT}, 8, v14")
    a("s_nop 0")
    for pair in (s1, s2, s3):
        a(f"v_cndmask_b32 v{pair[0]}, v{pair[0]}, v{pair[1]}, vcc")
    a(f"v_cndmask_b32 v{vT}, v14, v{vT}, vcc")
    a(f"v_mov_b32 v{vT+1}, v15")
    s1, s2, s3 = s1[0], s2[0], s3[0]
    a(f"v_mul_f32 v{s1}, {hex(f2u(1.0 / D))}, v{s1}")
    a(f"v_mul_f32 v{s2}, {hex(f2u(1.0 / D))}, v{s2}")
    a(f"v_fma_f32 v{s2}, -v{s1}, v{s1}, v{s2}")
    a(f"v_max_f32 v{s2}, 0, v{s2}")
    a(f"v_add_f32 v{s2}, {hex(f2u(1e-5))}, v{s2}")
    a(f"v_rsq_f32 v{s2}, v{s2}")
    a(f"v_fma_f32 v{s3}, -v{s1}, v{sw}, v{s3}")
    a(f"v_mul_f32 v{s3}, v{s3}, v{s2}")
    ws = f"s[{SRD_WS}:{SRD_WS+3}]"
    a(f"v_ashrrev_i32 v{vT+2}, 31, v{s3}")
    a(f"v_or_b32 v{vT+2}, 0x80000000, v{vT+2}")
    a(f"v_xor_b32 v{vT+2}, v{vT+2}, v{s3}")
    a(f"v_and_b32 v{vT+2}, 0xfffff800, v{vT+2}")
    a(f"v_or_b32 v{vT+2}, v{vT+2}, v{vT}")
    a(f"v_mov_b32 v14, v{s1}")
    a(f"v_mov_b32 v15, v{s2}")
    a(f"v_lshlrev_b32 v{vA}, 3, v{vT}")
    a(f"v_lshlrev_b32 v{vAW}, 2, v{vT}")
    a(f"v_and_b32 v{vT+3}, 127, v{vT}")
    a(f"v_lshlrev_b32 v{vT+3}, 2, v{vT+3}")
    a(f"v_add_u32 v{vT+3}, {L_KEYS}, v{vT+3}")
    a(f"v_cmp_gt_u32 vcc, 2, v{vT+1}")
    a(f"s_mov_b32 s{sT0}, {ST_OFF}")
    a(f"s_mov_b32 s{sT1}, {R_OFF}")
    a("s_and_saveexec_b64 s[44:45], vcc")
    a(f"buffer_store_dwordx2 v[14:15], v{vA}, {ws}, s{sT0} offen{'' if LOCAL_STATS else ' sc1'}")
    a(f"buffer_store_dword v{s3}, v{vAW}, {ws}, s{sT1} offen")
    a(f"ds_write_b32 v{vT+3}, v{vT+2}")
    if LOCAL_STATS:
        a("s_waitcnt lgkmcnt(0)")
    else:
        a("s_load_dwordx2 s[46:47], s[0:1], 72")
        a("s_waitcnt vmcnt(0) lgkmcnt(0)")
    a("s_mov_b64 exec, s[44:45]")
    a("s_barrier")
    a(f"s_cmp_lg_u32 s{sW}, 0")
    a("s_cbranch_scc1 L_k1_repack")
    if not LOCAL_STATS:
        a(f"s_lshl_b32 s{sT0}, s{sMT}, 2")
        a(f"v_mov_b32 v16, s{sT0}")
        a("v_mov_b32 v17, 1")
        a("s_mov_b64 exec, 1")
        a("global_store_dword v16, v17, s[46:47] sc1")
        a("s_mov_b64 exec, -1")
    ST(a, "e_lds")
    hi, lo, oh, ol, adr = 16, 17, 18, 19, 20
    a(f"v_lshlrev_b32 v{adr}, 2, v{vLANE}")
    a(f"ds_read_b32 v{oh}, v{adr} offset:{L_KEYS}")
    a(f"ds_read_b32 v{ol}, v{adr} offset:{L_KEYS + 256}")
    a("s_waitcnt lgkmcnt(0)")
    a(f"v_max_u32 v{hi}, v{oh}, v{ol}")
    a(f"v_min_u32 v{lo}, v{oh}, v{ol}")
    for x in (1, 2, 4, 8, 16, 32):
        a(f"v_xor_b32 v{adr}, {x}, v{vLANE}")
        a(f"v_lshlrev_b32 v{adr}, 2, v{adr}")
        a(f"ds_bpermute_b32 v{oh}, v{adr}, v{hi}")
        a(f"ds_bpermute_b32 v{ol}, v{adr}, v{lo}")
        a("s_waitcnt lgkmcnt(0)")
        a(f"v_max_u32 v{lo}, v{lo}, v{ol}")
        a(f"v_min_u32 v{ol}, v{hi}, v{oh}")
        a(f"v_max_u32 v{hi}, v{hi}, v{oh}")
        a(f"v_max_u32 v{lo}, v{lo}, v{ol}")
    a(f"v_mov_b32 v{oh}, v{hi}")
    a(f"v_mov_b32 v{ol}, v{lo}")
    a(f"s_lshl_b32 s{sT0}, s{sMT}, 3")
    a(f"s_add_u32 s{sT0}, s{sT0}, {CAND_OFF}")
    a(f"v_mov_b32 v{adr}, 0")
    a(f"v_cmp_eq_u32 vcc, 0, v{vLANE}")
    a("s_nop 1")
    a("s_and_saveexec_b64 s[44:45], vcc")
    a(f"buffer_store_dwordx2 v[{oh}:{ol}], v{adr}, {ws}, s{sT0} offen")
    a("s_mov_b64 exec, -1")
    a(f"s_cmp_lg_u32 s{sMT}, 0")
    a("s_cbranch_scc1 L_k1_repack")
    a(f"v_lshlrev_b32 v{adr}, 8, v{vLANE}")
    a(f"v_mov_b32 v{oh}, 0")
    a(f"s_mov_b32 s{sT0}, {CNT_OFF}")
    a(f"v_cmp_gt_u32 vcc, {NCNT}, v{vLANE}")
    a("s_nop 1")
    a("s_mov_b64 exec, vcc")
    a(f"buffer_store_dword v{oh}, v{adr}, {ws}, s{sT0} offen")
    a("s_mov_b64 exec, -1")
    ST(a, "stores")
    ST.store(a)
    a.label("L_k1_repack")
    if not EARLY_REP:
        repack_setup(a, sMT)
        repack_request(a, sW, 0)
    a(f"s_cmp_lt_u32 s{sW}, 6")
    a("s_cbranch_scc1 L_rep_loaded")
    repack_request(a, sW, 1)
    a.label("L_rep_loaded")
    repack_finish(a, sW, "L_k1_exit")

def emit(a):
    entry(a)
    consumer_setup(a)
    a(f"s_cmp_ge_u32 s{sNT}, 10")
    a("s_cbranch_scc1 L_k1_v")
    qk_path(a)
    v_path(a)
    loader(a)
    stat_waves(a)
    aux(a)
    a.label("L_k1_exit")
    a("s_endpgm")
    a.label("L_k1_end")
```

```python
from common import *
from k2moe import top2_scalar
import os

NAME = "attn_proj_kernel"
LDS = 163840
VGPRS = 168
BLOCK = 768
GRID = 256
NMOE = 96

def X(flag):
    return flag in os.environ.get("K2_EXP", "").split(",")

ST = StampsLane("k2", 20, 8, 164)

L_RING = 0
L_R = 61440
L_WG, L_WU, L_WD = L_R, L_R + 20480, L_R + 40960
L_XG, L_XU = L_R + 61440, L_R + 61440 + 3840
L_U, L_H = L_R + 69120, L_R + 69120 + 1024
L_MISC = 143360
F_LAND, F_FREE, F_U, F_H, F_MOE, F_ALL = L_MISC, L_MISC + 4, L_MISC + 8, L_MISC + 12, L_MISC + 16, L_MISC + 20
F_RT = L_MISC + 24
F_FREEC = L_MISC + 64
L_RED, L_Y = L_MISC + 1024, L_MISC + 1024 + 3840
SPIN_MAX = 1 << 20
EARLY_B0 = os.environ.get("K2_EARLYB0", "1") == "1"
SPACE = int(os.environ.get("K2_SPACE", "0"))
HPRIO = int(os.environ.get("K2_HPRIO", "3"))
LOWM = int(os.environ.get("K2_LOWM", "0"))

vLANE16, vT0, vT1 = 1, 2, 3
vKA, vKB, vV, vFL = 4, 5, 6, 7
vQ1, vQ2 = 10, 20
vFLAG, vONE = 16, 17
vS = (32, 48)
vO = 64
vP = 80
vKAf = (88, 92)
vKBf = (24, 28)
vVf = ((100, 104), (108, 112))
vTMP = 116

sW, sHEAD, sKV, sQ, sOB, sOM = 20, 21, 22, 23, 24, 25
sVMASK = 26
sLO = 28
sT, sT2, sQB = 30, 31, 32
SRD_WS = 8
WS = f"s[{SRD_WS}:{SRD_WS+3}]"

def lds_tile(t):
    return ((t >> 3) % 3) * 20480 + (t & 7) * 2560

def spin(a, name, vaddr, vtmp, stmp, target, cnt, sleep=1):
    a(f"s_mov_b32 s{cnt}, {SPIN_MAX}")
    a.label(f"{name}_loop")
    a(f"ds_read_b32 v{vtmp}, v{vaddr}")
    a("s_waitcnt lgkmcnt(0)")
    a(f"v_readfirstlane_b32 s{stmp}, v{vtmp}")
    a(f"s_sub_u32 s{cnt}, s{cnt}, 1")
    a(f"s_cbranch_scc1 {name}_done")
    a(f"s_cmp_ge_u32 s{stmp}, {target}")
    a(f"s_cbranch_scc1 {name}_done")
    a(f"s_sleep {sleep}")
    a(f"s_branch {name}_loop")
    a.label(f"{name}_done")

def mfma_s1(a, dst, buf):
    a(f"v_mfma_f32_32x32x16_bf16 {vr(dst, 16)}, {vr(vKAf[buf], 4)}, {vr(vQ1, 4)}, 0")
def mfma_s2(a, dst, buf):
    if X("nos2"): return
    if not X("s2x16"):
        a(f"v_mfma_f32_32x32x8bf16_1k {vr(dst, 16)}, {vr(vKBf[buf], 2)}, {vr(vQ2, 2)}, {vr(dst, 16)}")
    else:
        a(f"v_mfma_f32_32x32x16_bf16 {vr(dst, 16)}, {vr(vKBf[buf], 4)}, {vr(vQ2, 4)}, {vr(dst, 16)}")
def mfma_pv(a, buf, t):
    a(f"v_mfma_f32_32x32x16_bf16 {vr(vO, 16)}, {vr(vVf[buf][t], 4)}, {vr(vP + 4 * t, 4)}, {vr(vO, 16)}")

def read_ka(a, t, buf):
    a(f"ds_read_b128 {vr(vKAf[buf], 4)}, v{vKA} offset:{lds_tile(t)}")
def read_kb(a, t, buf):
    a(f"ds_read_b64 {vr(vKBf[buf], 2)}, v{vKB} offset:{lds_tile(t)}")
def read_v(a, t, part):
    a(f"ds_read_b128 {vr(vVf[t & 1][part], 4)}, v{vV} offset:{lds_tile(t) + 640 * part}")

def tile_body(a, t):
    sc, sn = vS[t & 1], vS[(t + 1) & 1]
    last = t == 63
    ex = lambda r: a(f"v_exp_f32 v{sc + r}, v{sc + r}")
    cv = lambda i: a(f"v_cvt_pk_bf16_f32 v{vP + i}, v{sc + 2 * i}, v{sc + 2 * i + 1}")
    ex(0)
    a("s_setprio 1")
    ex(1)
    if t > 0:
        mfma_pv(a, (t - 1) & 1, 1)
    for r in range(2, 6):
        ex(r)
    if not last:
        mfma_s1(a, sn, (t + 1) & 1)
    ex(6); ex(7)
    for i in range(4):
        cv(i)
    if not X("neworder"):
        if not last:
            mfma_s2(a, sn, (t + 1) & 1)
        for r in range(8, 12):
            ex(r)
        mfma_pv(a, t & 1, 0)
        for r in range(12, 16):
            ex(r)
    else:
        ex(8); ex(9)
        mfma_pv(a, t & 1, 0)
        for r in range(10, 14):
            ex(r)
        if not last:
            mfma_s2(a, sn, (t + 1) & 1)
        ex(14); ex(15)
    for i in range(4, 8):
        cv(i)
    check = t % 8 == 5 and t < 56
    if check:
        a("s_waitcnt lgkmcnt(0)")
        a(f"v_readfirstlane_b32 s{sT}, v{vFLAG}")
        a("s_setprio 0")
    else:
        a("s_setprio 0")
        a("s_waitcnt lgkmcnt(0)")
    if check:
        c = t // 8 + 1
        a("s_nop 0")
        a(f"s_cmp_ge_u32 s{sT}, {c}")
        a(f"s_cbranch_scc1 L_land_{c}_skip")
        if ST.on:
            a("s_memtime s[90:91]")
            a("s_waitcnt lgkmcnt(0)")
        spin(a, f"L_land_{c}", vFL, vFLAG, sT, c, sT2)
        if ST.on:
            a("s_memtime s[88:89]")
            a("s_waitcnt lgkmcnt(0)")
            a("s_sub_u32 s88, s88, s90")
            a("s_add_u32 s87, s87, s88")
        a.label(f"L_land_{c}_skip")
    if t % 8 == 7 and t < 40:
        a("s_mov_b64 exec, 1")
        a(f"ds_add_u32 v{vFL}, v{vONE} offset:{F_FREEC - F_LAND + 4 * (t // 8)}")
        a("s_mov_b64 exec, -1")
    if t + 3 <= 63:
        if not X("noka"): read_ka(a, t + 3, (t + 1) & 1)
        a(f"s_mov_b64 exec, s[{sLO}:{sLO+1}]")
        if not X("nokb"): read_kb(a, t + 3, (t + 1) & 1)
    if t + 1 <= 63:
        a(f"s_mov_b64 exec, s[{sVMASK}:{sVMASK+1}]")
        if t + 2 <= 63 and not X("nov0"):
            read_v(a, t + 2, 0)
        if not X("nov1"): read_v(a, t + 1, 1)
        a("s_mov_b64 exec, -1")
    if t % 8 == 4 and t < 56:
        a(f"ds_read_b32 v{vFLAG}, v{vFL}")
    if t == 62:
        a("s_nop 1")
    if last:
        a("s_nop 1")
        mfma_pv(a, t & 1, 1)

def row_max(a, s, dst, tmp):
    a(f"v_max3_f32 v{dst}, v{s}, v{s+1}, v{s+2}")
    for r in range(3, 15, 2):
        a(f"v_max3_f32 v{dst}, v{dst}, v{s+r}, v{s+r+1}")
    a(f"v_max_f32 v{dst}, v{dst}, v{s+15}")
    a(f"v_mov_b32 v{tmp}, v{dst}")
    a("s_nop 1")
    a(f"v_permlane32_swap_b32 v{dst}, v{tmp}")
    a("s_nop 1")
    a(f"v_max_f32 v{dst}, v{dst}, v{tmp}")

def entry(a):
    kernel_header(a, NAME)
    ST(a, "entry")
    a(f"s_cmp_ge_u32 s2, {GRID}")
    a("s_cbranch_scc1 L_k2_exit")
    a("s_load_dwordx2 s[4:5], s[0:1], 80")
    a(f"v_lshrrev_b32 v{vT0}, 6, v0")
    a(f"v_and_b32 v{vT1}, 63, v0")
    a(f"v_readfirstlane_b32 s{sW}, v{vT0}")
    a("s_and_b32 s12, s2, 7")
    a("s_lshl_b32 s12, s12, 2")
    a("s_bfe_u32 s13, s2, 0x20003")
    a(f"s_or_b32 s{sHEAD}, s12, s13")
    a(f"s_lshr_b32 s{sQB}, s2, 5")
    a(f"s_mul_i32 s{sKV}, s{sHEAD}, {64 * 2560}")
    a(f"s_add_u32 s{sKV}, s{sKV}, {KV_OFF}")
    a(f"v_lshlrev_b32 v{vLANE16}, 4, v{vT1}")
    a(f"s_cmp_ge_u32 s{sW}, 8")
    a("s_cbranch_scc1 L_k2_helper")

def attention(a):
    a(f"s_lshl_b32 s14, s{sQB}, 3")
    a(f"s_add_u32 s14, s14, s{sW}")
    a(f"s_lshl_b32 s15, s{sHEAD}, 6")
    a("s_add_u32 s15, s15, s14")
    a(f"s_mul_i32 s{sQ}, s15, 1280")
    if QB_OFF:
        a(f"s_add_u32 s{sQ}, s{sQ}, {QB_OFF}")
    a(f"s_mul_i32 s16, s{sW}, 2560")
    a(f"s_add_u32 s17, s{sKV}, s16")
    a(f"s_mov_b32 s{sLO}, -1")
    a(f"s_mov_b32 s{sLO+1}, 0")
    a(f"v_and_b32 v{vT0}, 31, v{vT1}")
    a(f"v_lshlrev_b32 v{vTMP}, 3, v{vT0}")
    for r in range(4):
        a(f"v_mov_b32 v{vQ2 + r}, 0")
    a("s_waitcnt lgkmcnt(0)")
    srd(a, SRD_WS, 4, WS_SRD)
    a("s_mov_b32 m0, s16")
    a("s_nop 0")
    a(f"buffer_load_dwordx4 v{vLANE16}, {WS}, s17 offen lds")
    a(f"buffer_load_dwordx4 v{vLANE16}, {WS}, s17 offen offset:1024 lds")
    a(f"s_mov_b64 exec, s[{sLO}:{sLO+1}]")
    a(f"buffer_load_dwordx4 v{vLANE16}, {WS}, s17 offen offset:2048 lds")
    a(f"buffer_load_dwordx2 {vr(vQ2, 2)}, v{vTMP}, {WS}, s{sQ} offen offset:1024")
    a("s_mov_b64 exec, -1")
    a(f"buffer_load_dwordx4 {vr(vQ1, 4)}, v{vLANE16}, {WS}, s{sQ} offen")
    a(f"s_mul_i32 s{sOB}, s14, 40960")
    a(f"s_add_u32 s{sOB}, s{sOB}, {OB_OFF}")
    a(f"s_lshr_b32 s15, s{sHEAD}, 3")
    a("s_mul_i32 s15, s15, 5120")
    a(f"s_add_u32 s{sOB}, s{sOB}, s15")
    a(f"s_bfe_u32 s15, s{sHEAD}, 0x20001")
    a("s_lshl_b32 s15, s15, 10")
    a(f"s_and_b32 s16, s{sHEAD}, 1")
    a("s_lshl_b32 s16, s16, 9")
    a("s_add_u32 s15, s15, s16")
    a(f"s_add_u32 s{sOM}, s{sOB}, s15")
    a(f"s_and_b32 s15, s{sHEAD}, 3")
    a("s_lshl_b32 s15, s15, 8")
    a(f"s_bfe_u32 s16, s{sHEAD}, 0x10002")
    a("s_lshl_b32 s16, s16, 3")
    a("s_add_u32 s15, s15, s16")
    a(f"s_add_u32 s{sOB}, s{sOB}, s15")
    a(f"s_add_u32 s{sOB}, s{sOB}, 4096")
    a(f"s_mov_b32 s{sVMASK}, 0x000fffff")
    a(f"s_mov_b32 s{sVMASK+1}, 0x000fffff")
    a(f"v_mov_b32 v{vKA}, v{vLANE16}")
    a(f"v_add_u32 v{vKB}, 1024, v{vTMP}")
    a(f"v_lshrrev_b32 v{vTMP+1}, 5, v{vT1}")
    a(f"v_mul_u32_u24 v{vTMP+1}, 320, v{vTMP+1}")
    a(f"v_lshl_add_u32 v{vTMP+1}, v{vT0}, 4, v{vTMP+1}")
    a(f"v_add_u32 v{vV}, 1280, v{vTMP+1}")
    a(f"v_mov_b32 v{vFL}, {F_LAND}")
    a(f"v_mov_b32 v{vONE}, 1")
    a(f"v_and_b32 v{vTMP+1}, 27, v{vT0}")
    a(f"v_cmp_eq_u32 vcc, 24, v{vTMP+1}")
    a(f"v_mov_b32 v{vTMP+2}, 0x3f803f80")
    a("s_nop 1")
    a(f"v_cndmask_b32 v{vTMP+1}, 0, v{vTMP+2}, vcc")
    for b in range(2):
        for t in range(2):
            for r in range(4):
                a(f"v_mov_b32 v{vVf[b][t] + r}, v{vTMP+1}")
    for r in range(16):
        a(f"v_mov_b32 v{vO + r}, 0")
    a(f"v_cmp_le_u32 vcc, 32, v{vT1}")
    a(f"v_mov_b32 v{vTMP+2}, 0x3f80")
    a("s_nop 1")
    for b in range(2):
        a(f"v_cndmask_b32 v{vKBf[b]}, 0, v{vTMP+2}, vcc")
        for r in range(1, 4):
            a(f"v_mov_b32 v{vKBf[b] + r}, 0")
    a("s_waitcnt vmcnt(0)")
    a("s_barrier")
    ST(a, "B0")
    read_ka(a, 0, 0)
    read_ka(a, 1, 1)
    a(f"s_mov_b64 exec, s[{sLO}:{sLO+1}]")
    read_kb(a, 0, 0)
    read_kb(a, 1, 1)
    a(f"s_mov_b64 exec, s[{sVMASK}:{sVMASK+1}]")
    read_v(a, 0, 0); read_v(a, 0, 1); read_v(a, 1, 0)
    a("s_mov_b64 exec, -1")
    a("s_waitcnt lgkmcnt(3)")
    mfma_s1(a, vS[0], 0)
    a("s_nop 11")
    mfma_s2(a, vS[0], 0)
    a("s_nop 15")
    a("s_nop 3")
    row_max(a, vS[0], vTMP, vTMP + 1)
    a(f"v_sub_f32 v{vTMP}, 0, v{vTMP}")
    a(f"v_cvt_pk_bf16_f32 v{vTMP}, v{vTMP}, 0")
    a(f"v_cmp_le_u32 vcc, 32, v{vT1}")
    a("s_nop 1")
    a(f"v_cndmask_b32 v{vQ2}, v{vQ2}, v{vTMP}, vcc")
    read_ka(a, 2, 0)
    a(f"s_mov_b64 exec, s[{sLO}:{sLO+1}]")
    read_kb(a, 2, 0)
    a("s_mov_b64 exec, -1")
    a(f"v_lshlrev_b32 v{vTMP}, 16, v{vTMP}")
    for r in range(16):
        a(f"v_add_f32 v{vS[0] + r}, v{vS[0] + r}, v{vTMP}")
    a("s_waitcnt lgkmcnt(2)")
    if ST.on:
        a("s_mov_b32 s87, 0")
    for t in range(64):
        if t in (0, 8, 32, 56):
            ST(a, f"t{t}")
        tile_body(a, t)
    ST(a, "loopend")
    if ST.on:
        a(f"v_writelane_b32 v{ST.vt}, s87, 15")
    a("s_nop 15")
    a("s_nop 3")
    a(f"v_mov_b32 v{vTMP}, v{vO + 12}")
    for r in range(12):
        a(f"v_fma_f32 v{vTMP}, v{vO + r}, 0, v{vTMP}")
    a(f"v_mov_b32 v{vTMP+1}, {hex(f2u(2.0 ** 100))}")
    a(f"v_cmp_nlt_f32 vcc, v{vTMP}, v{vTMP+1}")
    a("s_nop 4")
    a("s_cbranch_vccz L_attn_store")
    safe_path(a)
    a.label("L_attn_store")
    a(f"v_rcp_f32 v{vTMP}, v{vO + 12}")
    a("s_nop 1")
    for r in range(12):
        a(f"v_mul_f32 v{vO + r}, v{vO + r}, v{vTMP}")
    for i in range(6):
        a(f"v_cvt_pk_bf16_f32 v{vP + i}, v{vO + 2 * i}, v{vO + 2 * i + 1}")
    a(f"v_and_b32 v{vTMP+1}, 15, v0")
    a(f"v_lshlrev_b32 v{vTMP+1}, 4, v{vTMP+1}")
    a(f"v_bfe_u32 v{vTMP+2}, v0, 4, 1")
    a(f"v_mul_u32_u24 v{vTMP+2}, 20480, v{vTMP+2}")
    a(f"v_add_u32 v{vTMP+1}, v{vTMP+1}, v{vTMP+2}")
    a(f"v_bfe_u32 v{vTMP+2}, v0, 5, 1")
    a(f"v_lshl_add_u32 v{vTMP+2}, v{vTMP+2}, 8, v{vTMP+1}")
    a(f"buffer_store_dwordx4 {vr(vP, 4)}, v{vTMP+2}, {WS}, s{sOM} offen sc1")
    a(f"s_mov_b64 exec, s[{sLO}:{sLO+1}]")
    a(f"buffer_store_dwordx2 {vr(vP + 4, 2)}, v{vTMP+1}, {WS}, s{sOB} offen sc1")
    a("s_mov_b64 exec, -1")
    a("s_branch L_k2_join")

def safe_path(a):
    vM, vMN, vAL = vTMP, vTMP + 1, vTMP + 2
    vA2, vA3 = vTMP + 5, vTMP + 6
    s = vS[0]
    a(f"v_and_b32 v{vA2}, 31, v0")
    a(f"v_lshlrev_b32 v{vA2}, 3, v{vA2}")
    a(f"v_mov_b32 v{vA3}, v{vV}")
    a(f"v_mov_b32 v{vM}, 0xff7fffff")
    a(f"v_and_b32 v{vAL}, 63, v0")
    a(f"v_cmp_gt_u32 vcc, 32, v{vAL}")
    a("s_nop 1")
    a(f"v_cndmask_b32 v{vQ2}, 0, v{vQ2}, vcc")
    for r in range(16):
        a(f"v_mov_b32 v{vO + r}, 0")
    a(f"s_mov_b32 s{sT}, s{sKV}")
    a("s_mov_b32 s15, 64")
    a.label("L_safe_loop")
    a(f"buffer_load_dwordx4 {vr(vKAf[0], 4)}, v{vLANE16}, {WS}, s{sT} offen")
    a(f"s_mov_b64 exec, s[{sLO}:{sLO+1}]")
    a(f"buffer_load_dwordx2 {vr(vKBf[0], 2)}, v{vA2}, {WS}, s{sT} offen offset:1024")
    a(f"s_mov_b64 exec, s[{sVMASK}:{sVMASK+1}]")
    a(f"buffer_load_dwordx4 {vr(vVf[0][0], 4)}, v{vA3}, {WS}, s{sT} offen")
    a(f"buffer_load_dwordx4 {vr(vVf[0][1], 4)}, v{vA3}, {WS}, s{sT} offen offset:640")
    a("s_mov_b64 exec, -1")
    a("s_waitcnt vmcnt(0)")
    mfma_s1(a, s, 0)
    a("s_nop 11")
    mfma_s2(a, s, 0)
    a("s_nop 15")
    a("s_nop 3")
    row_max(a, s, vMN, vAL)
    a(f"v_max_f32 v{vMN}, v{vMN}, v{vM}")
    a(f"v_sub_f32 v{vAL}, v{vM}, v{vMN}")
    a(f"v_exp_f32 v{vAL}, v{vAL}")
    a(f"v_mov_b32 v{vM}, v{vMN}")
    for r in range(16):
        a(f"v_sub_f32 v{s + r}, v{s + r}, v{vMN}")
    for r in range(16):
        a(f"v_exp_f32 v{s + r}, v{s + r}")
    for r in range(16):
        a(f"v_mul_f32 v{vO + r}, v{vO + r}, v{vAL}")
    for i in range(8):
        a(f"v_cvt_pk_bf16_f32 v{vP + i}, v{s + 2 * i}, v{s + 2 * i + 1}")
    a("s_nop 1")
    mfma_pv(a, 0, 0)
    mfma_pv(a, 0, 1)
    a(f"s_add_u32 s{sT}, s{sT}, 2560")
    a("s_sub_u32 s15, s15, 1")
    a("s_nop 15")
    a("s_nop 3")
    a("s_cmp_lg_u32 s15, 0")
    a("s_cbranch_scc1 L_safe_loop")

def helpers(a):
    a.label("L_k2_helper")
    a(f"s_setprio {HPRIO}")
    a(f"s_cmp_lg_u32 s{sW}, 8")
    a("s_cbranch_scc1 L_k2_ffn")
    ring_loader(a)
    ffn(a)

def ring_loader(a):
    vF, vX = 4, 5
    a(f"v_lshlrev_b32 v{vF}, 2, v{vT1}")
    a(f"v_add_u32 v{vF}, {L_MISC}, v{vF}")
    a(f"v_mov_b32 v{vX}, 0")
    a(f"ds_write_b32 v{vF}, v{vX}")
    a(f"v_mov_b32 v{vF}, {F_LAND}")
    a("s_waitcnt lgkmcnt(0)")
    srd(a, SRD_WS, 4, WS_SRD)
    a("s_barrier")
    def chunk(c):
        for i in range(5):
            a(f"s_mov_b32 m0, {(c % 3) * 20480 + i * 4096}")
            a(f"s_add_u32 s{sT}, s{sKV}, {c * 20480 + i * 4096}")
            for j in range(4):
                a(f"buffer_load_dwordx4 v{vLANE16}, {WS}, s{sT} offen offset:{1024 * j} lds")
    def landed(c):
        a(f"v_mov_b32 v{vX}, {c}")
        a(f"ds_write_b32 v{vF}, v{vX}")
    chunk(1); chunk(2)
    a("s_waitcnt vmcnt(20)")
    landed(1)
    a("s_waitcnt vmcnt(0)")
    landed(2)
    for c in range(3, 8):
        a(f"v_mov_b32 v6, {F_FREEC + 4 * (c - 3)}")
        spin(a, f"L_free_{c}", 6, 7, sT, 8, sT2, sleep=6)
        chunk(c)
        a("s_waitcnt vmcnt(0)")
        landed(c)
    a(f"s_add_u32 s38, s4, {CAND_OFF}")
    a("s_addc_u32 s39, s5, 0")
    a("s_load_dwordx16 s[64:79], s[38:39], 0")
    a("s_load_dwordx16 s[80:95], s[38:39], 64")
    out_tile_ids(a)
    a("s_waitcnt lgkmcnt(0)")
    top2_scalar(a, 64, 42, 43, 12)
    a("s_bfe_u32 s12, s42, 0x50006")
    a("s_bfe_u32 s13, s43, 0x50006")
    a(f"s_cmp_eq_u32 s12, s{sMT}")
    a("s_cbranch_scc1 L_k2_watch")
    a(f"s_cmp_eq_u32 s13, s{sMT}")
    a("s_cbranch_scc0 L_k2_join")
    a.label("L_k2_watch")
    a(f"v_mov_b32 v7, {CNT_OFF + 8 * 256}")
    a(f"s_mov_b32 s13, {SPIN_MAX}")
    a.label("L_k2_poll_moe")
    a("global_load_dword v6, v7, s[4:5] sc1")
    a("s_waitcnt vmcnt(0)")
    a("v_readfirstlane_b32 s14, v6")
    a("s_sub_u32 s13, s13, 1")
    a("s_cbranch_scc1 L_k2_poll_moe_done")
    a(f"s_cmp_ge_u32 s14, {NMOE}")
    a("s_cbranch_scc1 L_k2_poll_moe_done")
    a("s_sleep 8")
    a("s_branch L_k2_poll_moe")
    a.label("L_k2_poll_moe_done")
    a(f"v_mov_b32 v6, {F_ALL}")
    a("v_mov_b32 v7, 1")
    a("ds_write_b32 v6, v7")
    a("s_waitcnt lgkmcnt(0)")
    a("s_branch L_k2_join")

def slice_index(a):
    a("s_and_b32 s33, s2, 7")
    a("s_mul_i32 s33, s33, 12")
    a("s_lshr_b32 s12, s2, 3")
    a("s_add_u32 s33, s33, s12")

def ffn(a):
    SRD_X, SRD_W = 56, 60
    sM, sB1, sB2, sU = 33, 42, 43, 44
    sCAND = 64
    vT, vA, vB = 4, 5, 6
    a.label("L_k2_ffn")
    a("s_barrier")
    a("s_load_dwordx2 s[6:7], s[0:1], 0")
    a("s_load_dwordx4 s[36:39], s[0:1], 40")
    a("s_load_dwordx2 s[40:41], s[0:1], 56")
    a("s_waitcnt lgkmcnt(0)")
    srd(a, SRD_WS, 4, WS_SRD)
    a(f"s_cmp_ge_u32 s2, {NMOE if not X('nomoe') else 0}")
    a("s_cbranch_scc1 L_k2_no_ffn")
    slice_index(a)
    a(f"s_cmp_eq_u32 s{sW}, 11")
    a("s_cbranch_scc1 L_k2_down")
    a(f"s_sub_u32 s{sU}, s{sW}, 9")
    srd(a, SRD_X, 6, X_BYTES)
    a(f"s_add_u32 s46, s4, {CAND_OFF}")
    a("s_addc_u32 s47, s5, 0")
    a(f"s_load_dwordx16 s[{sCAND}:{sCAND+15}], s[46:47], 0")
    a(f"s_load_dwordx16 s[{sCAND+16}:{sCAND+31}], s[46:47], 64")
    a(f"s_cmp_eq_u32 s{sU}, 0")
    a("s_cbranch_scc0 L_k2_up_srd")
    srd(a, SRD_W, 36, WG_BYTES)
    a("s_branch L_k2_srd_done")
    a.label("L_k2_up_srd")
    srd(a, SRD_W, 38, WG_BYTES)
    a.label("L_k2_srd_done")
    a(f"v_lshrrev_b32 v{vT}, 3, v{vT1}")
    a(f"v_mul_u32_u24 v{vA}, 3072, v{vT}")
    a(f"v_and_b32 v7, 7, v{vT1}")
    a(f"v_xor_b32 v7, v7, v{vT}")
    a(f"v_lshl_add_u32 v{vA}, v7, 4, v{vA}")
    a(f"s_and_b32 s17, s{sM}, 3")
    a(f"s_mul_i32 s15, s17, {160 * 3072}")
    a(f"s_lshr_b32 s16, s{sM}, 2")
    a("s_lshl_b32 s16, s16, 7")
    a("s_add_u32 s15, s15, s16")
    a(f"s_mul_i32 s14, s{sU}, 20480")
    a(f"s_add_u32 s14, s14, {L_WG}")
    vWA, vXA = 56, 6
    a(f"v_lshrrev_b32 v{vT}, 4, v{vT1}")
    a(f"v_bfe_u32 v7, v{vT1}, 2, 2")
    a(f"v_lshl_add_u32 v8, v{vT}, 3, v7")
    a(f"v_lshlrev_b32 v8, 7, v8")
    a(f"v_bfe_u32 v9, v{vT1}, 1, 1")
    a(f"v_xor_b32 v9, v9, v7")
    a(f"v_lshl_add_u32 v8, v9, 4, v8")
    a(f"v_and_b32 v9, 1, v{vT1}")
    a(f"v_lshl_add_u32 v8, v9, 3, v8")
    a(f"v_add_u32 v{vWA}, s14, v8")
    for k in range(1, 4):
        a(f"v_xor_b32 v{vWA + k}, {32 * k}, v{vWA}")
    a(f"s_mul_i32 s18, s{sU}, 1024")
    a(f"s_add_u32 s18, s18, {L_XG}")
    a(f"v_and_b32 v9, 3, v{vT1}")
    a(f"v_min_u32 v{vXA}, 2, v9")
    a(f"v_mul_u32_u24 v{vXA}, 320, v{vXA}")
    a(f"v_lshl_add_u32 v{vXA}, v{vT}, 4, v{vXA}")
    a(f"v_add_u32 v{vXA}, s18, v{vXA}")
    for r in range(4):
        a(f"v_mov_b32 v{8 + r}, 0x3f803f80")
    a(f"v_add_u32 v60, s18, v{vLANE16}")
    a("s_mov_b64 exec, 0xfffff")
    a(f"ds_write_b128 v60, v[8:11] offset:640")
    a("s_mov_b64 exec, -1")
    a(f"v_and_b32 v7, 15, v{vT1}")
    a(f"v_lshlrev_b32 v61, 8, v7")
    a(f"v_lshl_add_u32 v61, v{vT}, 4, v61")
    a("v_cmp_gt_u32 vcc, 3, v7")
    a(f"v_min_u32 v62, 2, v{vT}")
    a(f"v_lshlrev_b32 v62, 8, v62")
    a(f"v_lshl_add_u32 v62, v7, 2, v62")
    a("s_mov_b64 s[52:53], vcc")
    for q in range(20 if not X("moe_nodma") else 0):
        a(f"s_add_u32 m0, s14, {q * 1024}")
        a(f"s_add_u32 s16, s15, {q * 8 * 3072}")
        a(f"buffer_load_dwordx4 v{vA}, s[{SRD_W}:{SRD_W+3}], s16 offen lds")
    a("s_waitcnt lgkmcnt(0)")
    top2_scalar(a, sCAND, sB1, sB2, 12)
    a(f"s_and_b32 s{sB1}, s{sB1}, 0x7ff")
    a(f"s_and_b32 s{sB2}, s{sB2}, 0x7ff")
    for k, sB in ((0, sB1), (1, sB2)):
        a(f"s_lshl_b32 s12, s{sB}, 3")
        a("s_add_u32 s46, s4, s12")
        a("s_addc_u32 s47, s5, 0")
        a(f"s_add_u32 s46, s46, {ST_OFF}")
        a("s_addc_u32 s47, s47, 0")
        a(f"s_load_dwordx2 s[{48 + 2 * k}:{49 + 2 * k}], s[46:47], 0")
    a("s_mul_i32 s16, s17, 320")
    a("s_mov_b64 exec, 0xfffff")
    for k, sB in ((0, sB1), (1, sB2)):
        a(f"s_mul_i32 s12, s{sB}, 1280")
        a("s_add_u32 s12, s12, s16")
        a(f"s_add_u32 m0, s18, {320 * k}")
        a("s_nop 0")
        a(f"buffer_load_dwordx4 v{vLANE16}, s[{SRD_X}:{SRD_X+3}], s12 offen lds")
    a("s_mov_b64 exec, -1")
    a("s_waitcnt vmcnt(0) lgkmcnt(0)")
    vACC = 64
    for s_ in range(5 if not (X("moe_nocomp") or X("noA")) else 0):
        a(f"ds_read_b128 v[12:15], v{vXA} offset:{s_ * 64}")
        for ct in range(4):
            for rd_ in range(2):
                a(f"ds_read_b64_tr_b16 {vr(16 + 4 * ct + 2 * rd_, 2)}, v{vWA + (ct ^ (2 * rd_))} offset:{s_ * 4096 + 512 * rd_}")
        if LOWM: a("s_setprio 0")
        for ct in range(4):
            a(f"s_waitcnt lgkmcnt({6 - 2 * ct})")
            c = "0" if s_ == 0 else vr(vACC + 4 * ct, 4)
            a(f"v_mfma_f32_16x16x32_bf16 {vr(vACC + 4 * ct, 4)}, {vr(16 + 4 * ct, 4)}, v[12:15], {c}")
            if SPACE: a(f"s_nop {SPACE - 1}")
    if LOWM:
        a("s_nop 7")
        a(f"s_setprio {HPRIO}")
    a(f"s_lshl_b32 s12, s{sM}, 1")
    a(f"s_add_u32 s12, s12, s{sU}")
    a("s_mul_i32 s12, s12, 768")
    a(f"s_add_u32 s12, s12, {GP_OFF}")
    a("s_nop 7")
    a("s_mov_b64 exec, s[52:53]")
    for ct in range(4):
        a(f"buffer_store_dwordx4 {vr(vACC + 4 * ct, 4)}, v61, {WS}, s12 offen offset:{64 * ct} sc1")
    a("s_mov_b64 exec, -1")
    a(f"v_mov_b32 v52, 1")
    a(f"v_mov_b32 v53, {F_U}")
    a("s_waitcnt vmcnt(0)")
    a(f"s_cmp_eq_u32 s{sU}, 0")
    a("s_cbranch_scc1 L_k2_gate")
    a("ds_write_b32 v53, v52")
    a("s_branch L_k2_ffn_done")
    a.label("L_k2_gate")
    spin(a, "L_wait_u", 53, 54, 12, 1, 13, sleep=4)
    a(f"s_lshr_b32 s12, s{sM}, 2")
    a("s_add_u32 s12, s12, 9")
    a("s_lshl_b32 s12, s12, 8")
    a(f"s_add_u32 s12, s12, {CNT_OFF}")
    a("v_mov_b32 v9, s12")
    a("s_mov_b64 exec, 1")
    a("global_atomic_add v9, v52, s[4:5]")
    a(f"s_mov_b32 s13, {SPIN_MAX}")
    a.label("L_k2_poll_cb")
    a("global_load_dword v10, v9, s[4:5] sc1")
    a("s_waitcnt vmcnt(0)")
    a("v_readfirstlane_b32 s14, v10")
    a("s_sub_u32 s13, s13, 1")
    a("s_cbranch_scc1 L_k2_poll_cb_done")
    a("s_cmp_ge_u32 s14, 4")
    a("s_cbranch_scc1 L_k2_poll_cb_done")
    a("s_sleep 8")
    a("s_branch L_k2_poll_cb")
    a.label("L_k2_poll_cb_done")
    a("s_mov_b64 exec, -1")
    a(f"s_andn2_b32 s12, s{sM}, 3")
    a("s_mul_i32 s12, s12, 1536")
    a(f"s_add_u32 s12, s12, {GP_OFF}")
    a("s_lshl_b32 s16, s17, 6")
    a("s_add_u32 s12, s12, s16")
    for kq in range(4):
        for mat in range(2):
            a(f"s_add_u32 s16, s12, {kq * 1536 + mat * 768}")
            a(f"buffer_load_dword v{12 + 4 * mat + kq}, v62, {WS}, s16 offen sc1")
    a(f"v_cmp_gt_u32 vcc, 16, v{vT1}")
    a("v_mov_b32 v8, s50")
    a("v_mov_b32 v9, s51")
    a("v_mov_b32 v10, s48")
    a("v_mov_b32 v11, s49")
    a("v_cndmask_b32 v8, v8, v10, vcc")
    a("v_cndmask_b32 v9, v9, v11, vcc")
    a("s_waitcnt vmcnt(0)")
    for mat in range(2):
        b0 = 12 + 4 * mat
        a(f"v_add_f32 v{b0}, v{b0}, v{b0 + 1}")
        a(f"v_add_f32 v{b0 + 2}, v{b0 + 2}, v{b0 + 3}")
    for mat in range(2):
        b0 = 12 + 4 * mat
        a(f"v_add_f32 v{b0}, v{b0}, v{b0 + 2}")
    for mat in range(2):
        b0 = 12 + 4 * mat
        a(f"v_mov_b32 v{b0 + 1}, v{b0}")
        a(f"v_mov_b32 v{b0 + 2}, v{b0}")
    a("s_nop 1")
    for mat in range(2):
        b0 = 12 + 4 * mat
        a(f"v_permlane32_swap_b32 v{b0 + 1}, v{b0 + 2}")
    a("s_nop 1")
    for mat in range(2):
        b0 = 12 + 4 * mat
        a(f"v_fma_f32 v{b0}, -v8, v{b0 + 2}, v{b0}")
        a(f"v_mul_f32 v{b0}, v{b0}, v9")
    a(f"v_mul_f32 v20, {hex(f2u(-LOG2E))}, v12")
    a("v_exp_f32 v20, v20")
    a("v_mul_f32 v12, v12, v16")
    a("v_add_f32 v20, 1.0, v20")
    a("v_rcp_f32 v20, v20")
    a(f"v_lshlrev_b32 v{vT}, 1, v{vT1}")
    a("v_mul_f32 v12, v12, v20")
    a(f"v_add_u32 v{vT}, {L_H}, v{vT}")
    a("v_cvt_pk_bf16_f32 v12, v12, v12")
    a(f"ds_write_b16 v{vT}, v12")
    a(f"v_mov_b32 v53, {F_H}")
    a("s_waitcnt lgkmcnt(0)")
    a(f"ds_write_b32 v53, v52")
    a("s_branch L_k2_ffn_done")
    a.label("L_k2_down")
    srd(a, SRD_W, 40, WD_BYTES)
    vDA, vHA, vYO = 5, 6, 7
    a(f"v_bfe_u32 v{vT}, v{vT1}, 2, 2")
    a(f"v_mul_u32_u24 v{vDA}, 1280, v{vT}")
    a(f"v_lshrrev_b32 v{vT}, 4, v{vT1}")
    a(f"v_lshl_add_u32 v{vDA}, v{vT}, 5, v{vDA}")
    a(f"v_and_b32 v{vT}, 3, v{vT1}")
    a(f"v_lshl_add_u32 v{vDA}, v{vT}, 3, v{vDA}")
    a(f"v_add_u32 v{vDA}, {L_WD}, v{vDA}")
    a(f"v_and_b32 v{vT}, 1, v{vT1}")
    a(f"v_lshlrev_b32 v{vHA}, 5, v{vT}")
    a(f"v_add_u32 v{vHA}, {L_H}, v{vHA}")
    a(f"v_lshlrev_b32 v{vYO}, 2, v{vT1}")
    a(f"v_mov_b32 v53, {F_H}")
    a(f"s_mul_i32 s15, s{sM}, 20480")
    for i in range(5 if not X("moe_nodma") else 0):
        a(f"s_mov_b32 m0, {L_WD + i * 4096}")
        a(f"s_add_u32 s16, s15, {i * 4096}")
        for j in range(4):
            a(f"buffer_load_dwordx4 v{vLANE16}, s[{SRD_W}:{SRD_W+3}], s16 offen offset:{1024 * j} lds")
    a(f"s_mul_i32 s15, s{sM}, 5120")
    a(f"s_add_u32 s15, s15, {YP_OFF}")
    a("s_waitcnt vmcnt(0)")
    spin(a, "L_wait_h", 53, 54, 12, 1, 13, sleep=8)
    a(f"ds_read_b128 v[8:11], v{vHA}")
    a(f"ds_read_b128 v[12:15], v{vHA} offset:16")
    for kk in range(4 if not (X("moe_nocomp") or X("noD")) else 0):
        for gq in range(10):
            a(f"ds_read_b64_tr_b16 {vr(16 + 2 * gq, 2)}, v{vDA} offset:{kk * 5120 + gq * 128}")
        if LOWM: a("s_setprio 0")
        for gq in range(10):
            a(f"s_waitcnt lgkmcnt({9 - gq})")
            c = "0" if kk == 0 else vr(56 + 4 * gq, 4)
            a(f"v_mfma_f32_4x4x4bf16_1k {vr(56 + 4 * gq, 4)}, {vr(8 + 2 * kk, 2)}, {vr(16 + 2 * gq, 2)}, {c}")
        if LOWM: a(f"s_setprio {HPRIO}")
    a("s_nop 7")
    for t_ in range(2):
        for gq in range(10):
            a(f"s_add_u32 s16, s15, {t_ * 2560 + gq * 256}")
            a(f"buffer_store_dword v{56 + 4 * gq + t_}, v{vYO}, {WS}, s16 offen sc1")
    a("s_waitcnt vmcnt(0)")
    a(f"v_mov_b32 v7, {CNT_OFF + 8 * 256}")
    a("v_mov_b32 v8, 1")
    a("s_mov_b64 exec, 1")
    a("global_atomic_add v7, v8, s[4:5]")
    a("s_mov_b64 exec, -1")
    a.label("L_k2_ffn_done")
    ST(a, "ffn_done")
    a(f"v_mov_b32 v53, {F_MOE}")
    a(f"v_mov_b32 v52, 1")
    a("s_waitcnt lgkmcnt(0)")
    a("s_mov_b64 exec, 1")
    a("ds_add_u32 v53, v52")
    a("s_mov_b64 exec, -1")
    spin(a, "L_wait_moe", 53, 54, 12, 3, 13, sleep=8)
    a("s_branch L_k2_wo_prefetch")
    a.label("L_k2_no_ffn")
    a.label("L_k2_wo_prefetch")
    out_tile_ids(a)
    a(f"s_mul_i32 s12, s{sNT}, 102400")
    a(f"s_add_u32 s12, s12, {WO2_OFF}")
    a(f"s_sub_u32 s13, s{sW}, 9")
    for g in range(7):
        if g == 6:
            a("s_cmp_eq_u32 s13, 2")
            a("s_cbranch_scc1 L_k2_prefetched")
        a(f"s_add_u32 s14, s13, {3 * g}")
        a("s_lshl_b32 s14, s14, 12")
        a(f"s_add_u32 m0, s14, {L_R}")
        a("s_add_u32 s14, s14, s12")
        for j in range(4):
            a(f"buffer_load_dwordx4 v{vLANE16}, {WS}, s14 offen offset:{1024 * j} lds")
    a.label("L_k2_prefetched")
    a(f"s_add_u32 s38, s4, {CAND_OFF}")
    a("s_addc_u32 s39, s5, 0")
    a("s_load_dwordx16 s[64:79], s[38:39], 0")
    a("s_load_dwordx16 s[80:95], s[38:39], 64")
    a("s_waitcnt lgkmcnt(0)")
    top2_scalar(a, 64, 42, 43, 12)
    a("s_and_b32 s42, s42, 0x7ff")
    a("s_and_b32 s43, s43, 0x7ff")
    a("s_lshr_b32 s12, s42, 6")
    a("s_lshr_b32 s13, s43, 6")
    a(f"s_cmp_eq_u32 s12, s{sMT}")
    a("s_cbranch_scc1 L_k2_routed")
    a(f"s_cmp_eq_u32 s13, s{sMT}")
    a("s_cbranch_scc0 L_k2_join")
    a.label("L_k2_routed")
    routed(a, 42, 43)
    a("s_branch L_k2_join")

sMT, sNT = 44, 45
def out_tile_ids(a):
    a(f"s_bfe_u32 s{sMT}, s2, 0x20001")
    a(f"s_lshl_b32 s12, s{sQB}, 2")
    a(f"s_add_u32 s{sMT}, s{sMT}, s12")
    a(f"s_and_b32 s{sNT}, s2, 1")
    a(f"s_lshl_b32 s{sNT}, s{sNT}, 2")
    a("s_bfe_u32 s12, s2, 0x20003")
    a(f"s_add_u32 s{sNT}, s{sNT}, s12")

def projection(a):
    SRD_X, SRD_OUT = 56, 60
    sB1, sB2, sOBT = 42, 43, 46
    sCAND = 64
    vL16, vL16H, vL16H2 = vLANE16, 9, 3
    vTOK, vG, vT = 2, 8, 4
    vXO, vTOKG, vSTAT, vX = 10, 11, 12, 14
    vACC = 24
    vWF = (44, 64)
    vOF = 84
    a.label("L_k2_join")
    ST(a, "join")
    a("s_load_dwordx2 s[6:7], s[0:1], 0")
    a("s_load_dwordx2 s[36:37], s[0:1], 64")
    a(f"s_add_u32 s38, s4, {CAND_OFF}")
    a("s_addc_u32 s39, s5, 0")
    a(f"s_load_dwordx16 s[{sCAND}:{sCAND+15}], s[38:39], 0")
    a(f"s_load_dwordx16 s[{sCAND+16}:{sCAND+31}], s[38:39], 64")
    out_tile_ids(a)
    a("v_and_b32 v3, 63, v0")
    a("s_waitcnt vmcnt(0)")
    a("s_barrier")
    ST(a, "E1")
    a("s_waitcnt lgkmcnt(0)")
    srd(a, SRD_X, 6, X_BYTES)
    srd(a, SRD_OUT, 36, X_BYTES)
    a(f"s_cmp_eq_u32 s{sW}, 8")
    a("s_cbranch_scc1 L_k2_sync")
    a(f"s_cmp_ge_u32 s{sW}, 4")
    a("s_cbranch_scc1 L_k2_side")
    a(f"v_and_b32 v{vTOK}, 15, v3")
    a(f"v_lshrrev_b32 v{vG}, 4, v3")
    a(f"s_lshl_b32 s12, s{sMT}, 6")
    a(f"s_lshl_b32 s13, s{sW}, 4")
    a("s_add_u32 s12, s12, s13")
    a(f"v_add_u32 v{vTOKG}, s12, v{vTOK}")
    a(f"v_mul_u32_u24 v{vXO}, 1280, v{vTOKG}")
    a(f"v_lshl_add_u32 v{vXO}, v{vG}, 3, v{vXO}")
    a(f"s_mul_i32 s13, s{sNT}, 160")
    a(f"v_add_u32 v{vXO}, s13, v{vXO}")
    a(f"v_lshlrev_b32 v{vT+1}, 3, v{vTOKG}")
    a(f"s_mov_b32 s12, {ST_OFF}")
    a(f"buffer_load_dwordx2 {vr(vSTAT, 2)}, v{vT+1}, {WS}, s12 offen")
    for j in range(5):
        a(f"buffer_load_dwordx2 {vr(vX + 2 * j, 2)}, v{vXO}, s[{SRD_X}:{SRD_X+3}], 0 offen offset:{32 * j}")
    a(f"s_lshl_b32 s12, s{sMT}, 2")
    a(f"s_add_u32 s12, s12, s{sW}")
    a(f"s_mul_i32 s{sOBT}, s12, 20480")
    a(f"s_add_u32 s{sOBT}, s{sOBT}, {OB_OFF}")
    a(f"v_add_u32 v{vL16H}, {L_R}, v{vL16}")
    a(f"v_add_u32 v{vL16H2}, {L_R + 40960}, v{vL16}")
    top2_scalar(a, sCAND, sB1, sB2, 12)
    a(f"s_and_b32 s{sB1}, s{sB1}, 0x7ff")
    a(f"s_and_b32 s{sB2}, s{sB2}, 0x7ff")
    a("s_waitcnt vmcnt(0)")
    a(f"v_add_f32 v{vT}, 1.0, v{vSTAT+1}")
    a(f"v_mul_f32 v{vT+1}, v{vSTAT}, v{vSTAT+1}")
    for j in range(5):
        for i in range(2):
            a(f"v_lshlrev_b32 v{vT+2}, 16, v{vX + 2 * j + i}")
            a(f"v_and_b32 v{vT+3}, 0xffff0000, v{vX + 2 * j + i}")
            a(f"v_fma_f32 v{vACC + 4 * j + 2 * i}, v{vT+2}, v{vT}, -v{vT+1}")
            a(f"v_fma_f32 v{vACC + 4 * j + 2 * i + 1}, v{vT+3}, v{vT}, -v{vT+1}")
    a("s_barrier")
    ST(a, "E2")
    for B in range(5):
        a(f"s_add_u32 s12, s{sOBT}, {B * 4096}")
        for k in range(4):
            a(f"buffer_load_dwordx4 {vr(vOF + 16 * B + 4 * k, 4)}, v{vL16}, {WS}, s12 offen offset:{1024 * k} sc1")
    def reads(st):
        f = vWF[st & 1]
        reg, off = (vL16H, st * 5120) if st < 8 else ((vL16H2, (st - 8) * 5120) if st < 16 else (vL16, (st - 16) * 5120))
        for j in range(5):
            a(f"ds_read_b128 {vr(f + 4 * j, 4)}, v{reg} offset:{off + 1024 * j}")
    def mfmas(st):
        f = vWF[st & 1]
        for j in range(5):
            a(f"v_mfma_f32_16x16x32_bf16 {vr(vACC + 4 * j, 4)}, {vr(f + 4 * j, 4)}, {vr(vOF + 4 * st, 4)}, {vr(vACC + 4 * j, 4)}")
    reads(0)
    for st in range(20):
        if st == 12:
            pass
        if st < 19:
            if st + 1 == 16:
                a("s_barrier")
            reads(st + 1)
        a(f"s_waitcnt vmcnt({19 - st}) lgkmcnt({5 if st < 19 else 0})")
        mfmas(st)
    ST(a, "gemm")
    a(f"v_lshlrev_b32 v{vT}, 4, v{vG}")
    a(f"v_add_u32 v{vT}, {L_Y}, v{vT}")
    a("s_nop 7")
    for sel, sB in ((0, sB1), (1, sB2)):
        lab = f"L_k2_noupd{sel}"
        a(f"s_lshr_b32 s12, s{sB}, 6")
        a(f"s_cmp_lg_u32 s12, s{sMT}")
        a(f"s_cbranch_scc1 {lab}")
        for j in range(5):
            a(f"ds_read_b128 {vr(vWF[0] + 4 * j, 4)}, v{vT} offset:{320 * sel + 64 * j}")
        a(f"v_cmp_eq_u32 vcc, s{sB}, v{vTOKG}")
        a("s_waitcnt lgkmcnt(0)")
        a("s_nop 1")
        for j in range(5):
            for r in range(4):
                a(f"v_cndmask_b32 v{vWF[0] + 4 * j + r}, 0, v{vWF[0] + 4 * j + r}, vcc")
                a(f"v_add_f32 v{vACC + 4 * j + r}, v{vACC + 4 * j + r}, v{vWF[0] + 4 * j + r}")
        a.label(lab)
    for j in range(5):
        for i in range(2):
            a(f"v_cvt_pk_bf16_f32 v{vX + 2 * j + i}, v{vACC + 4 * j + 2 * i}, v{vACC + 4 * j + 2 * i + 1}")
        a(f"buffer_store_dwordx2 {vr(vX + 2 * j, 2)}, v{vXO}, s[{SRD_OUT}:{SRD_OUT+3}], 0 offen offset:{32 * j}")
    ST(a, "stores")
    if ST.on:
        a("s_waitcnt vmcnt(0)")
    ST(a, "end")
    ST.store(a)
    a("s_endpgm")

    a.label("L_k2_sync")
    ST(a, "E1b")
    a(f"s_lshl_b32 s12, s{sQB}, 8")
    a(f"s_add_u32 s12, s12, {CNT_OFF}")
    a("v_mov_b32 v4, s12")
    a("v_mov_b32 v5, 1")
    a("s_mov_b64 exec, 1")
    a("global_atomic_add v6, v4, v5, s[4:5] sc0")
    a("s_waitcnt vmcnt(0)")
    a("v_readfirstlane_b32 s14, v6")
    a(f"s_mov_b32 s13, {SPIN_MAX}")
    a("s_cmp_ge_u32 s14, 31")
    a("s_cbranch_scc1 L_k2_poll_done")
    for r in range(3):
        a(f"global_load_dword v{8 + r}, v4, s[4:5] sc1")
        a("s_sleep 2")
    a.label("L_k2_poll")
    for r in range(4):
        a(f"global_load_dword v{8 + (r + 3) % 4}, v4, s[4:5] sc1")
        a("s_waitcnt vmcnt(3)")
        a(f"v_readfirstlane_b32 s14, v{8 + r}")
        a("s_sub_u32 s13, s13, 1")
        a("s_cbranch_scc1 L_k2_poll_done")
        a("s_cmp_ge_u32 s14, 32")
        a("s_cbranch_scc1 L_k2_poll_done")
        a("s_sleep 2")
    a("s_branch L_k2_poll")
    a.label("L_k2_poll_done")
    a("s_mov_b64 exec, -1")
    ST(a, "polled")
    a("s_barrier")
    a("s_barrier")
    ST.store(a)
    if os.environ.get("DBG_SUMMARY"):
        summary(a)
    a("s_endpgm")

    a.label("L_k2_side")
    a(f"s_cmp_ge_u32 s{sW}, 8")
    a("s_cbranch_scc1 L_k2_side_b")
    a(f"s_sub_u32 s13, s{sW}, 4")
    a(f"s_mul_i32 s12, s{sNT}, 102400")
    a(f"s_add_u32 s12, s12, {WO2_OFF + 16 * 5120}")
    a("s_mul_i32 s14, s13, 5120")
    a("s_add_u32 s12, s12, s14")
    a("s_mov_b32 m0, s14")
    a("s_nop 0")
    for j in range(4):
        a(f"buffer_load_dwordx4 v{vL16}, {WS}, s12 offen offset:{1024 * j} lds")
    a("s_add_u32 m0, s14, 4096")
    a("s_add_u32 s12, s12, 4096")
    a(f"buffer_load_dwordx4 v{vL16}, {WS}, s12 offen lds")
    a("s_waitcnt vmcnt(0)")
    a.label("L_k2_side_b")
    a("s_barrier")
    a("s_barrier")
    ST.store(a)
    a("s_endpgm")

def routed(a, sB1, sB2):
    vT, vY = 4, 20
    a(f"v_mov_b32 v7, {F_ALL}")
    spin(a, "L_rt_all", 7, 6, 14, 1, 15, sleep=8)
    a(f"v_subrev_u32 v{vT}, 576, v0")
    a(f"v_mul_u32_u24 v{vT+1}, 52429, v{vT}")
    a(f"v_lshrrev_b32 v{vT+1}, 20, v{vT+1}")
    a(f"v_mul_u32_u24 v{vT+2}, 20, v{vT+1}")
    a(f"v_sub_u32 v{vT+2}, v{vT}, v{vT+2}")
    a(f"v_mul_u32_u24 v8, {12 * 5120}, v{vT+1}")
    a(f"v_lshl_add_u32 v8, v{vT+2}, 4, v8")
    a(f"v_mul_u32_u24 v9, 320, v{vT+1}")
    a(f"v_lshl_add_u32 v9, v{vT+2}, 4, v9")
    a(f"v_add_u32 v9, {L_RED}, v9")
    a(f"v_lshlrev_b32 v10, 2, v{vT}")
    a(f"v_mov_b32 v11, {F_RT}")
    a("v_mov_b32 v12, 1")
    for sel, sB in ((0, sB1), (1, sB2)):
        lab = f"L_k2_rt_skip{sel}"
        a(f"s_lshr_b32 s12, s{sB}, 6")
        a(f"s_cmp_lg_u32 s12, s{sMT}")
        a(f"s_cbranch_scc1 {lab}")
        a(f"s_lshl_b32 s12, s{sB}, 2")
        a("s_add_u32 s38, s4, s12")
        a("s_addc_u32 s39, s5, 0")
        a(f"s_add_u32 s38, s38, {R_OFF}")
        a("s_addc_u32 s39, s39, 0")
        a("s_load_dword s40, s[38:39], 0")
        a(f"s_mul_i32 s12, s{sNT}, 320")
        a(f"s_add_u32 s12, s12, {YP_OFF + sel * 2560}")
        a(f"v_cmp_gt_u32 vcc, 160, v{vT}")
        a("s_and_saveexec_b64 s[48:49], vcc")
        for i in range(12):
            a(f"s_add_u32 s13, s12, {i * 5120}")
            a(f"buffer_load_dwordx4 {vr(vY + 4 * i, 4)}, v8, {WS}, s13 offen sc1")
        a("s_waitcnt vmcnt(0)")
        for i in range(1, 12):
            for r in range(4):
                a(f"v_add_f32 v{vY + r}, v{vY + r}, v{vY + 4 * i + r}")
        a(f"ds_write_b128 v9, {vr(vY, 4)}")
        a("s_waitcnt lgkmcnt(0)")
        a("s_mov_b64 exec, 1")
        a(f"ds_add_u32 v11, v12 offset:{8 * sel}")
        a("s_mov_b64 exec, -1")
        a(f"v_add_u32 v13, {8 * sel}, v11")
        spin(a, f"L_rt_a{sel}", 13, 14, 14, 3, 15, sleep=2)
        a(f"v_add_u32 v13, {L_RED}, v10")
        a(f"v_cmp_gt_u32 vcc, 80, v{vT}")
        a("s_and_saveexec_b64 s[48:49], vcc")
        a(f"s_cbranch_execz L_k2_rt_c{sel}")
        for p in range(8):
            a(f"ds_read_b32 v{vY + p}, v13 offset:{320 * p}")
        a("v_mov_b32 v15, s40")
        a(f"v_mul_f32 v15, {hex(f2u(-LOG2E))}, v15")
        a("v_exp_f32 v15, v15")
        a("s_nop 0")
        a("v_add_f32 v15, 1.0, v15")
        a("v_rcp_f32 v15, v15")
        a("s_waitcnt lgkmcnt(0)")
        for p in range(1, 8):
            a(f"v_add_f32 v{vY}, v{vY}, v{vY + p}")
        a(f"v_mul_f32 v{vY}, v{vY}, v15")
        a(f"v_add_u32 v13, {L_Y + 320 * sel}, v10")
        a(f"ds_write_b32 v13, v{vY}")
        a.label(f"L_k2_rt_c{sel}")
        a("s_mov_b64 exec, -1")
        a("s_waitcnt lgkmcnt(0)")
        a("s_mov_b64 exec, 1")
        a(f"ds_add_u32 v11, v12 offset:{8 * sel + 4}")
        a("s_mov_b64 exec, -1")
        a(f"v_add_u32 v13, {8 * sel + 4}, v11")
        spin(a, f"L_rt_b{sel}", 13, 14, 14, 3, 15, sleep=2)
        a.label(lab)

def emit(a):
    entry(a)
    attention(a)
    helpers(a)
    projection(a)
    a.label("L_k2_exit")
    a("s_endpgm")
    a.label("L_k2_end")


def summary(a):
    import k1
    a("s_mov_b64 exec, -1")
    a("s_cmp_lg_u32 s2, 0")
    a("s_cbranch_scc1 L_sum_end")
    a("s_load_dwordx2 s[34:35], s[0:1], 72")
    a("s_waitcnt lgkmcnt(0)")
    a(f"s_mov_b32 s{SRD_WS + 2}, 0x2000000")
    a("v_and_b32 v3, 63, v0")
    names = ["entry", "B0", "loopend", "e_bar", "stores", "end"]
    a("v_mov_b32 v40, -1")
    for i in range(1, 8):
        a(f"v_mov_b32 v{40 + i}, 0")
    for q in range(4):
        a(f"v_add_u32 v4, {64 * q}, v3")
        a("v_lshlrev_b32 v5, 11, v4")
        a(f"s_mov_b32 s12, {PROF_OFF + 64}")
        for i, nm in enumerate(names):
            a(f"buffer_load_dword v{10 + i}, v5, {WS}, s12 offen offset:{4 * k1.ST.names.index(nm)}")
        a(f"buffer_load_dword v16, v5, {WS}, s12 offen offset:{4 * k1.ST.names.index('e_lds')}")
        a("s_waitcnt vmcnt(0)")
        a("v_and_b32 v6, 0xe4, v4")
        a("v_cmp_eq_u32 vcc, 0xe4, v6")
        a("s_nop 1")
        a("v_min_u32 v40, v40, v10")
        for i in range(1, 6):
            a(f"v_cndmask_b32 v{10 + i}, v{10 + i}, 0, vcc")
            a(f"v_max_u32 v{40 + i}, v{40 + i}, v{10 + i}")
        a("v_cndmask_b32 v16, 0, v16, vcc")
        a("v_max_u32 v46, v46, v16")
    vals = [40, 41, 42, 43, 44, 45, 46]
    for x in (1, 2, 4, 8, 16, 32):
        a(f"v_xor_b32 v6, {x}, v3")
        a("v_lshlrev_b32 v6, 2, v6")
        for r in vals:
            a(f"ds_bpermute_b32 v20, v6, v{r}")
            a("s_waitcnt lgkmcnt(0)")
            a(f"v_{'min' if r == 40 else 'max'}_u32 v{r}, v{r}, v20")
    for k_, nm in enumerate(["entry", "join", "E1", "polled"]):
        a(f"v_readlane_b32 s12, v{ST.vt + 1}, {ST.names.index(nm)}")
        a("s_nop 3")
        a(f"v_mov_b32 v{50 + k_}, s12")
    a("s_memrealtime s[12:13]")
    a("s_waitcnt lgkmcnt(0)")
    a("v_mov_b32 v54, s12")
    a("v_mov_b32 v7, 0")
    a("s_mov_b64 exec, 1")
    for k_, r in enumerate([41, 42, 43, 44, 45, 46, 50, 51, 52, 53, 54]):
        a(f"v_sub_u32 v20, v{r}, v40")
        a(f"global_store_dword v7, v20, s[34:35] offset:{4 * k_}")
    a("s_waitcnt vmcnt(0)")
    a.label("L_sum_end")
```

```python
from common import *
import os
import slots

NAME = "qkv_kernel"
LDS = 131072 + 2048
VGPRS = 168 if prof_on("k1") else 152
LOCAL_STATS = os.environ.get("K1_STATS", "local") == "local"
BLOCK = 768 if LOCAL_STATS else 576

SRD_X, SRD_W, SRD_WS = 8, 12, 16
sW, sMT, sNT = 20, 21, 22
sROW0 = 23
sT0, sT1, sT2, sT3 = 24, 25, 26, 27
sSEC, sHS, sTS, sSCALE = 28, 29, 30, 31
sTA, sTB = 32, 33
sWR, sWC = 34, 35
sTBL, sN5 = 44, 45
ST_NM, ST_RS, ST_CS = 131072, 131072 + 512, 131072 + 1024

vLANE, vTOK, vH = 1, 2, 3
vT = 4
vXA = 8
vXB = 12
vWA, vWB = 16, 17
vS1, vS2, vCS, vONE = 28, 29, 30, 31
vSEL = 136
vCSA = 140
vF = (32, 48)
vACC = 64
vOFF = 128
vE = 24

ST = StampsLane("k1", 20, 16, 160)
def X(flag):
    return flag in os.environ.get("K1_EXP", "").split(",")

STF = {"": "", "sc1": " sc1", "nt": " nt", "sc01": " sc0 sc1"}[os.environ.get("K1_ST", "")]

def acc(a_, b_):
    return vACC + 32 * a_ + 16 * b_

def entry(a):
    kernel_header(a, NAME)
    ST(a, "entry")
    a("s_cmp_ge_u32 s2, 256")
    a("s_cbranch_scc1 L_k1_exit")
    a("s_load_dwordx4 s[4:7], s[0:1], 0")
    a("s_load_dwordx2 s[36:37], s[0:1], 80")
    a("s_load_dwordx2 s[38:39], s[0:1], 32")
    a(f"v_lshrrev_b32 v{vT}, 6, v0")
    a(f"v_and_b32 v{vLANE}, 63, v0")
    a(f"v_readfirstlane_b32 s{sW}, v{vT}")
    MAP = os.environ.get("K1_MAP", "4x8")
    if MAP == "4x8":
        a(f"s_and_b32 s{sT0}, s2, 3")
        a(f"s_lshl_b32 s{sT0}, s{sT0}, 2")
        a(f"s_bfe_u32 s{sT1}, s2, 0x20003")
        a(f"s_or_b32 s{sMT}, s{sT0}, s{sT1}")
        a(f"s_bfe_u32 s{sT0}, s2, 0x10002")
        a(f"s_lshl_b32 s{sT0}, s{sT0}, 3")
        a(f"s_lshr_b32 s{sT1}, s2, 5")
        a(f"s_or_b32 s{sNT}, s{sT0}, s{sT1}")
    elif MAP == "8x4":
        a(f"s_and_b32 s{sT0}, s2, 1")
        a(f"s_lshl_b32 s{sT0}, s{sT0}, 3")
        a(f"s_bfe_u32 s{sT1}, s2, 0x30003")
        a(f"s_or_b32 s{sMT}, s{sT0}, s{sT1}")
        a(f"s_bfe_u32 s{sT0}, s2, 0x20001")
        a(f"s_lshl_b32 s{sT0}, s{sT0}, 2")
        a(f"s_lshr_b32 s{sT1}, s2, 6")
        a(f"s_or_b32 s{sNT}, s{sT0}, s{sT1}")
    elif MAP == "2x16":
        a(f"s_and_b32 s{sT0}, s2, 7")
        a(f"s_lshl_b32 s{sT0}, s{sT0}, 1")
        a(f"s_bfe_u32 s{sT1}, s2, 0x10003")
        a(f"s_or_b32 s{sMT}, s{sT0}, s{sT1}")
        a(f"s_lshr_b32 s{sNT}, s2, 4")
    elif MAP == "16x2":
        a(f"s_bfe_u32 s{sMT}, s2, 0x40003")
        a(f"s_and_b32 s{sT0}, s2, 7")
        a(f"s_lshl_b32 s{sT0}, s{sT0}, 1")
        a(f"s_lshr_b32 s{sT1}, s2, 7")
        a(f"s_or_b32 s{sNT}, s{sT0}, s{sT1}")
    a(f"s_lshl_b32 s{sROW0}, s{sMT}, 7")
    a(f"v_and_b32 v{vTOK}, 31, v{vLANE}")
    a(f"v_lshrrev_b32 v{vH}, 5, v{vLANE}")
    a("s_waitcnt lgkmcnt(0)")
    srd(a, SRD_X, 4, X_BYTES)
    srd(a, SRD_W, 6, WQKV_BYTES)
    srd(a, SRD_WS, 36, WS_SRD)
    a(f"s_cmp_eq_u32 s{sNT}, 15")
    a("s_cbranch_scc1 L_k1_aux")
    a(f"s_cmp_ge_u32 s{sW}, 8")
    a("s_cbranch_scc1 L_k1_stat")
    a(f"s_cmp_ge_u32 s{sW}, 4")
    a("s_cbranch_scc1 L_k1_loader")

def loader(a):
    a.label("L_k1_loader")
    a(f"s_setprio {os.environ.get('K1_LPRIO', '0')}")
    vX, vWt = 8, 9
    lw = sT0
    a(f"s_sub_u32 s{lw}, s{sW}, 4")
    a(f"v_lshrrev_b32 v{vT}, 3, v{vLANE}")
    a(f"s_lshl_b32 s{sT1}, s{lw}, 3")
    a(f"s_add_u32 s{sT1}, s{sT1}, s{sROW0}")
    a(f"v_add_u32 v{vT}, s{sT1}, v{vT}")
    a(f"v_mul_u32_u24 v{vT}, 1280, v{vT}")
    a(f"v_lshrrev_b32 v{vT+1}, 4, v{vLANE}")
    a(f"s_and_b32 s{sT1}, s{lw}, 1")
    a(f"s_lshl_b32 s{sT1}, s{sT1}, 2")
    a(f"v_add_u32 v{vT+2}, s{sT1}, v{vT+1}")
    a(f"v_and_b32 v{vT+3}, 7, v{vLANE}")
    a(f"v_xor_b32 v{vT+2}, v{vT+2}, v{vT+3}")
    a(f"v_lshl_add_u32 v{vX}, v{vT+2}, 4, v{vT}")
    a(f"s_lshl_b32 s{sT1}, s{lw}, 2")
    a(f"v_add_u32 v{vT}, s{sT1}, v{vT+1}")
    a(f"v_mul_u32_u24 v{vT}, 3840, v{vT}")
    a(f"v_and_b32 v{vT+2}, 15, v{vLANE}")
    a(f"v_lshlrev_b32 v{vT+3}, 2, v{vT+1}")
    a(f"v_xor_b32 v{vT+2}, v{vT+2}, v{vT+3}")
    a(f"v_lshl_add_u32 v{vT}, v{vT+2}, 4, v{vT}")
    a(f"s_lshl_b32 s{sT1}, s{sNT}, 8")
    a(f"v_add_u32 v{vWt}, s{sT1}, v{vT}")
    a(f"s_lshl_b32 s{sT2}, s{lw}, 10")
    vXs, vWs = 44, 48
    for i in range(4):
        a(f"v_add_u32 v{vXs + i}, {i * 40960}, v{vX}")
        a(f"v_add_u32 v{vWs + i}, {i * 16 * 3840}, v{vWt}")
    sXO, sWO = 40, 41
    a("s_lshr_b32 s42, s2, 5")
    a("s_bfe_u32 s43, s2, 0x20003")
    a("s_mul_i32 s43, s43, 3")
    a("s_add_u32 s42, s42, s43")
    a("s_cmp_ge_u32 s42, 10")
    a("s_cselect_b32 s43, 10, 0")
    a("s_sub_u32 s42, s42, s43")
    if not X("rot"):
        a("s_mov_b32 s42, 0")
    def stage(s):
        base = (s & 3) * 32768
        a(f"s_lshl_b32 s{sXO}, s42, 7")
        a(f"s_mul_i32 s{sWO}, s42, {64 * 3840}")
        a("s_add_u32 s42, s42, 1")
        a("s_cmp_eq_u32 s42, 10")
        a("s_cselect_b32 s42, 0, s42")
        for i in range(4):
            a(f"s_add_u32 m0, s{sT2}, {base + i * 4096}")
            a("s_nop 0")
            a(f"buffer_load_dwordx4 v{vXs + i}, s[{SRD_X}:{SRD_X+3}], s{sXO} offen lds")
            a(f"s_add_u32 m0, s{sT2}, {base + 16384 + i * 4096}")
            a("s_nop 0")
            a(f"buffer_load_dwordx4 v{vWs + i}, s[{SRD_W}:{SRD_W+3}], s{sWO} offen lds")
    ST(a, "setup")
    PRE = int(os.environ.get("K1_PRE", "2"))
    for s in range(PRE):
        stage(s)
    issued = PRE - 1
    for s in range(10):
        a(f"s_waitcnt vmcnt({8 * (issued - s)})")
        if os.environ.get("K1_LSTAMP"):
            ST(a, ["B0", "loopend", "e_bar", "e_lds", "g4", "g8", "g20", "x7", "x8", "x9"][s])
        a("s_barrier")
        while issued < min(9, s + int(os.environ.get('K1_DEPTH', '3'))):
            issued += 1
            if not (X("nodma") and issued > 3):
                stage(issued)
    ST(a, "stores")
    ST(a, "end")
    ST.store(a)
    a("s_endpgm")

def stat_waves(a):
    (stat_local if LOCAL_STATS else stat_fetch)(a)

def stat_local(a):
    a.label("L_k1_stat")
    lw = sT0
    vR, vR2, vD, vP, vA1, vA2 = 8, 12, 48, 32, 36, 38
    a(f"s_sub_u32 s{lw}, s{sW}, 8")
    a(f"v_lshrrev_b32 v{vT}, 1, v{vLANE}")
    a(f"s_lshl_b32 s{sT1}, s{lw}, 5")
    a(f"v_add_u32 v{vT}, s{sT1}, v{vT}")
    a(f"v_lshlrev_b32 v{vT+1}, 7, v{vT}")
    a(f"v_and_b32 v{vT+2}, 1, v{vLANE}")
    a(f"v_lshl_add_u32 v{vT+1}, v{vT+2}, 6, v{vT+1}")
    a(f"v_bfe_u32 v{vT+2}, v{vLANE}, 2, 2")
    for i in range(4):
        a(f"v_xor_b32 v{vT+3}, {i}, v{vT+2}")
        a(f"v_lshl_add_u32 v{vR + i}, v{vT+3}, 4, v{vT+1}")
        a(f"v_add_u32 v{vR2 + i}, 65536, v{vR + i}")
    a(f"v_lshlrev_b32 v40, 2, v{vT}")
    for r in range(4):
        a(f"v_mov_b32 v{vA1 + r}, 0")
    if os.environ.get("K1_PF", "0") == "1":
        a(f"s_sub_u32 s{sT1}, s{sW}, 8")
        a(f"s_mul_i32 s{sT2}, s2, 10240")
        a(f"s_mul_i32 s{sT3}, s2, 9600")
        a(f"v_lshlrev_b32 v41, 4, v{vLANE}")
        a(f"s_lshl_b32 s{sT1}, s{sT1}, 10")
        a(f"v_add_u32 v41, s{sT1}, v41")
        for i in range(3):
            a(f"buffer_load_dwordx4 v[96:99], v41, s[{SRD_X}:{SRD_X+3}], s{sT2} offen" + (f" offset:{4096 * i}" if i * 4096 < 4096 else ""))if i == 0 else None
        for i in range(1, 3):
            a(f"s_add_u32 s{sT2}, s{sT2}, 4096")
            a(f"buffer_load_dwordx4 v[96:99], v41, s[{SRD_X}:{SRD_X+3}], s{sT2} offen")
        for i in range(3):
            a(f"buffer_load_dwordx4 v[100:103], v41, s[{SRD_W}:{SRD_W+3}], s{sT3} offen")
            a(f"s_add_u32 s{sT3}, s{sT3}, 4096")
    CPF = os.environ.get("K1_CPF", "none").split(",")
    if "own" in CPF:
        a(f"s_cmp_lg_u32 s{sW}, 8")
        a("s_cbranch_scc1 L_k1_cpf1")
        code_prefetch(a, "k1own", NAME, "L_k1_end", 24576, 46, vLANE, 44, True)
        a.label("L_k1_cpf1")
    if "next" in CPF:
        a(f"s_cmp_lg_u32 s{sW}, 9")
        a("s_cbranch_scc1 L_k1_cpf2")
        code_prefetch(a, "k1next", "attn_proj_kernel", "L_k2_end", 40960, 46, vLANE, 44, False)
        a.label("L_k1_cpf2")
    TOUCH = os.environ.get("K1_TOUCH", "none").split(",")
    a(f"v_lshlrev_b32 v41, 16, v{vLANE}")
    a(f"s_cmp_lg_u32 s{sW}, 8")
    a("s_cbranch_scc1 L_k1_touch2")
    if "xw" in TOUCH:
        a(f"buffer_load_dword v42, v41, s[{SRD_X}:{SRD_X+3}], 0 offen")
        a(f"buffer_load_dword v43, v41, s[{SRD_W}:{SRD_W+3}], 0 offen")
    if "ws" in TOUCH:
        for i in range((WS_SRD + (64 << 16) - 1) // (64 << 16)):
            a(f"s_mov_b32 s{sT1}, {i * (64 << 16)}")
            a(f"buffer_load_dword v44, v41, s[{SRD_WS}:{SRD_WS+3}], s{sT1} offen")
    a.label("L_k1_touch2")
    if "wts" in TOUCH or "out" in TOUCH:
        a(f"s_cmp_lg_u32 s{sW}, 9")
        a("s_cbranch_scc1 L_k1_touched")
        a("s_load_dwordx2 s[46:47], s[0:1], 16")
        a("s_load_dwordx4 s[48:51], s[0:1], 40")
        a("s_load_dwordx4 s[52:55], s[0:1], 56")
        a("s_waitcnt lgkmcnt(0)")
        bufs = [(46, WO_BYTES), (48, WG_BYTES), (50, WG_BYTES), (52, WD_BYTES)] if "wts" in TOUCH else []
        if "out" in TOUCH:
            bufs.append((54, X_BYTES))
        for lo, nbytes in bufs:
            srd(a, 56, lo, nbytes)
            a("buffer_load_dword v44, v41, s[56:59], 0 offen")
        a.label("L_k1_touched")
    for s in range(10):
        slot = s & 3
        a("s_barrier")
        if s == 9:
            a(f"s_setprio {os.environ.get('K1_LASTPRIO', '0')}")
        for i in range(4):
            a(f"ds_read_b128 {vr(vD + 4 * i, 4)}, v{(vR if slot < 2 else vR2) + i} offset:{(slot & 1) * 32768}")
        for j in range(16):
            if j % 4 == 0:
                a(f"s_waitcnt lgkmcnt({3 - j // 4})")
            p = vP + 2 * (j & 1)
            a(f"v_lshlrev_b32 v{p}, 16, v{vD + j}")
            a(f"v_and_b32 v{p+1}, 0xffff0000, v{vD + j}")
            a(f"v_add_f32 v{vA1}, v{vA1}, v{p}")
            a(f"v_fmac_f32 v{vA2}, v{p}, v{p}")
            a(f"v_add_f32 v{vA1+1}, v{vA1+1}, v{p+1}")
            a(f"v_fmac_f32 v{vA2+1}, v{p+1}, v{p+1}")
    a(f"v_add_f32 v{vA1}, v{vA1}, v{vA1+1}")
    a(f"v_add_f32 v{vA2}, v{vA2}, v{vA2+1}")
    a("s_nop 1")
    a(f"v_add_f32_dpp v{vA1+1}, v{vA1}, v{vA1} quad_perm:[1,0,3,2] row_mask:0xf bank_mask:0xf")
    a(f"v_add_f32_dpp v{vA2+1}, v{vA2}, v{vA2} quad_perm:[1,0,3,2] row_mask:0xf bank_mask:0xf")
    a(f"v_mul_f32 v{vA1}, {hex(f2u(1.0 / D))}, v{vA1+1}")
    a(f"v_mul_f32 v{vA2}, {hex(f2u(1.0 / D))}, v{vA2+1}")
    a(f"v_fma_f32 v{vA2}, -v{vA1}, v{vA1}, v{vA2}")
    a(f"v_max_f32 v{vA2}, 0, v{vA2}")
    a(f"v_add_f32 v{vA2}, {hex(f2u(1e-5))}, v{vA2}")
    a(f"v_rsq_f32 v{vA2}, v{vA2}")
    a(f"v_sub_f32 v{vA1}, 0, v{vA1}")
    a(f"v_add_u32 v40, {ST_NM}, v40")
    a(f"ds_write_b32 v40, v{vA1}")
    a(f"ds_write_b32 v40, v{vA2} offset:512")
    a("s_waitcnt lgkmcnt(0)")
    ST(a, "stores")
    a("s_barrier")
    ST(a, "end")
    ST.store(a)
    a("s_endpgm")

def stat_fetch(a):
    a.label("L_k1_stat")
    vA, vF, vD = 8, 9, 12
    ws = f"s[{SRD_WS}:{SRD_WS+3}]"
    a("s_load_dwordx2 s[46:47], s[0:1], 72")
    a(f"v_lshlrev_b32 v{vA}, 4, v{vLANE}")
    a(f"s_lshl_b32 s{sT0}, s{sMT}, 2")
    a(f"v_mov_b32 v{vF}, s{sT0}")
    a(f"s_lshl_b32 s{sT1}, s{sMT}, 10")
    a(f"s_add_u32 s{sT1}, s{sT1}, {ST_OFF}")
    a(f"v_lshlrev_b32 v10, 3, v{vLANE}")
    a(f"v_add_u32 v10, {ST_NM}, v10")
    a(f"s_mov_b32 s{sT2}, 0")
    a("s_waitcnt lgkmcnt(0)")
    def advance(tag, blocking):
        a(f"s_cmp_eq_u32 s{sT2}, 2")
        a(f"s_cbranch_scc1 L_st_{tag}_end")
        a("s_waitcnt vmcnt(0)")
        a(f"s_cmp_eq_u32 s{sT2}, 1")
        a(f"s_cbranch_scc1 L_st_{tag}_land")
        a(f"v_readfirstlane_b32 s{sT3}, v11")
        a("s_nop 1")
        a(f"s_cmp_eq_u32 s{sT3}, 1")
        a(f"s_cbranch_scc1 L_st_{tag}_go")
        a(f"global_load_dword v11, v{vF}, s[46:47] sc1")
        a(f"s_branch L_st_{tag}_end")
        a.label(f"L_st_{tag}_go")
        a(f"buffer_load_dwordx4 {vr(vD, 4)}, v{vA}, {ws}, s{sT1} offen sc1")
        a(f"s_mov_b32 s{sT2}, 1")
        a(f"s_branch L_st_{tag}_end")
        a.label(f"L_st_{tag}_land")
        a(f"v_sub_f32 v16, 0, v{vD}")
        a(f"v_sub_f32 v17, 0, v{vD+2}")
        a(f"v_mov_b32 v18, v{vD+1}")
        a(f"v_mov_b32 v19, v{vD+3}")
        a("ds_write_b64 v10, v[16:17]")
        a("ds_write_b64 v10, v[18:19] offset:512")
        a(f"s_mov_b32 s{sT2}, 2")
        a.label(f"L_st_{tag}_end")
    a("v_mov_b32 v11, 0")
    if X("touch"):
        a(f"s_mov_b32 s{sT3}, {YP_OFF}")
        a("v_mov_b32 v21, 0")
        a(f"buffer_load_dword v20, v21, {ws}, s{sT3} offen")
        a("global_load_dword v22, v21, s[46:47] offset:192")
    for s in range(10):
        a("s_barrier")
        if s in (1, 3, 5, 7):
            advance(f"b{s}", False)
    a(f"s_mov_b32 s48, {1 << 20}")
    a.label("L_st_fin")
    advance("fin", True)
    a("s_sub_u32 s48, s48, 1")
    a("s_cbranch_scc1 L_st_done")
    a(f"s_cmp_eq_u32 s{sT2}, 2")
    a("s_cbranch_scc0 L_st_fin")
    a.label("L_st_done")
    a("s_waitcnt lgkmcnt(0)")
    ST(a, "stores")
    a("s_barrier")
    ST(a, "end")
    ST.store(a)
    a("s_endpgm")

def read_list(g):
    ks, half = g & 3, (g >> 2) & 1
    base = half * 32768
    f = vF[g & 1]
    w = lambda b, reg, rd: f"ds_read_b64_tr_b16 {vr(f + 8 + 4 * b + 2 * rd, 2)}, v{reg} offset:{base + 16384 + (16 * ks + 4 * rd) * 256}"
    return [f"ds_read_b128 {vr(f, 4)}, v{vXA + ks} offset:{base}", w(0, vWA, 0), w(0, vWA, 1),
            w(1, vWB, 0), w(1, vWB, 1), f"ds_read_b128 {vr(f + 4, 4)}, v{vXB + ks} offset:{base}"]

def step(a, g, vorient, reads, pre=None):
    f = vF[g & 1]
    def mm(a_, b_):
        x, w = vr(f + 4 * a_, 4), vr(f + 8 + 4 * b_, 4)
        A, B = (x, w) if vorient else (w, x)
        a(f"v_mfma_f32_32x32x16_bf16 {vr(acc(a_, b_), 16)}, {A}, {B}, {vr(acc(a_, b_), 16)}")
    if pre is not None:
        a("s_waitcnt lgkmcnt(0)")
        mm(0, 0)
        mm(0, 1)
        pre()
        for r in reads[0:3]: a(r)
        mm(1, 0)
        for r in reads[3:6]: a(r)
        mm(1, 1)
    else:
        a("s_waitcnt lgkmcnt(3)")
        mm(0, 0)
        for r in reads[0:3]: a(r)
        a("s_waitcnt lgkmcnt(4)")
        mm(0, 1)
        for r in reads[3:6]: a(r)
        a("s_waitcnt lgkmcnt(6)")
        mm(1, 0)
        mm(1, 1)
    a(f"v_mfma_f32_16x16x32_bf16 {vr(vCSA, 4)}, {vr(vSEL, 4)}, {vr(f + 8, 4)}, {vr(vCSA, 4)}")

def mainloop(a, vorient):
    tag = "v" if vorient else "qk"
    ST(a, "setup")
    a("s_barrier")
    ST(a, "B0")
    for r in read_list(0):
        a(r)
    a(f"s_mov_b32 s{sT3}, 5")
    a(".p2align 3")
    a.label(f"L_k1_loop_{tag}")
    def pre7():
        a(f"s_sub_u32 s{sT3}, s{sT3}, 1")
        a(f"s_cmp_eq_u32 s{sT3}, 0")
        a(f"s_cbranch_scc1 L_k1_last_{tag}")
        for r in list(range(vXA, vXA + 4)) + list(range(vXB, vXB + 4)) + [vWA, vWB]:
            a(f"v_xor_b32 v{r}, 0x10000, v{r}")
        a("s_barrier")
    for g in range(8):
        pre = (lambda: a("s_barrier")) if g == 3 else (pre7 if g == 7 else None)
        step(a, g, vorient, read_list(g + 1), pre)
    a(f"s_branch L_k1_loop_{tag}")
    a.label(f"L_k1_last_{tag}")
    f = vF[1]
    for b_ in range(2):
        x, w = vr(f + 4, 4), vr(f + 8 + 4 * b_, 4)
        A, B = (x, w) if vorient else (w, x)
        a(f"v_mfma_f32_32x32x16_bf16 {vr(acc(1, b_), 16)}, {A}, {B}, {vr(acc(1, b_), 16)}")
    a(f"v_mfma_f32_16x16x32_bf16 {vr(vCSA, 4)}, {vr(vSEL, 4)}, {vr(f + 8, 4)}, {vr(vCSA, 4)}")

def stats_exchange(a):
    ST(a, "loopend")
    a(f"s_lshl_b32 s{sT0}, s{sWC}, 6")
    a(f"s_lshl_b32 s{sT1}, s{sWR}, 5")
    a(f"s_add_u32 s{sT0}, s{sT0}, s{sT1}")
    a(f"v_add_u32 v{vT+1}, s{sT0}, v{vLANE}")
    a(f"v_lshlrev_b32 v{vT+1}, 2, v{vT+1}")
    a(f"v_add_u32 v{vT+1}, {ST_CS}, v{vT+1}")
    a("s_mov_b64 exec, 0xffff")
    a("s_nop 4")
    a(f"ds_write_b32 v{vT+1}, v{vCSA}")
    a(f"ds_write_b32 v{vT+1}, v{vCSA+1} offset:64")
    a("s_mov_b64 exec, -1")
    a("s_waitcnt lgkmcnt(0)")
    a("s_barrier")
    ST(a, "e_bar")

def consumer_setup(a):
    a(f"s_lshr_b32 s{sWR}, s{sW}, 1")
    a(f"s_and_b32 s{sWC}, s{sW}, 1")
    a(f"v_lshrrev_b32 v{vT}, 1, v{vTOK}")
    a(f"v_and_b32 v{vT}, 7, v{vT}")
    a(f"s_lshl_b32 s{sT0}, s{sWR}, 6")
    a(f"v_add_u32 v{vT+1}, s{sT0}, v{vTOK}")
    a(f"v_lshlrev_b32 v{vT+1}, 7, v{vT+1}")
    a(f"s_lshl_b32 s{sT0}, s{sWC}, 12")
    a(f"s_xor_b32 s{sT1}, s{sT0}, 4096")
    for ks in range(4):
        a(f"v_add_u32 v{vT+2}, {2 * ks}, v{vH}")
        a(f"v_xor_b32 v{vT+2}, v{vT+2}, v{vT}")
        a(f"v_lshl_add_u32 v{vT+2}, v{vT+2}, 4, v{vT+1}")
        a(f"v_add_u32 v{vXA + ks}, s{sT0}, v{vT+2}")
        a(f"v_add_u32 v{vXB + ks}, s{sT1}, v{vT+2}")
    a(f"s_sub_u32 s{sN5}, s{sNT}, 5")
    a(f"s_cmp_lt_u32 s{sNT}, 5")
    a(f"s_cselect_b32 s{sN5}, s{sNT}, s{sN5}")
    for wc in range(2):
        reg = sT0 + wc
        a(f"s_mov_b32 s{reg}, {hex(0x76543210 + wc * 0x88888888)}")
        for n5 in range(5):
            a(f"s_cmp_eq_u32 s{sN5}, {n5}")
            a(f"s_cselect_b32 s{reg}, {hex(slots.packed(n5, wc))}, s{reg}")
    a(f"s_cmp_eq_u32 s{sWC}, 0")
    a(f"s_cselect_b32 s{sTBL}, s{sT0}, s{sT1}")
    a(f"v_bfe_u32 v{vT}, v{vLANE}, 2, 2")
    a(f"v_lshl_add_u32 v{vT+1}, v{vH}, 3, v{vT}")
    a(f"v_lshlrev_b32 v{vT+1}, 8, v{vT+1}")
    a(f"v_and_b32 v{vT+2}, 1, v{vLANE}")
    a(f"v_lshl_add_u32 v{vT+1}, v{vT+2}, 3, v{vT+1}")
    a(f"v_bfe_u32 v{vT+2}, v{vLANE}, 4, 1")
    a(f"v_bfe_u32 v{vT+3}, v{vLANE}, 1, 1")
    a(f"v_lshl_add_u32 v{vT+2}, v{vT+2}, 1, v{vT+3}")
    a(f"v_lshlrev_b32 v{vT+2}, 2, v{vT+2}")
    a(f"v_lshlrev_b32 v{vT}, 2, v{vT}")
    for (dst, own) in ((vWA, True), (vWB, False)):
        if own:
            a(f"s_lshl_b32 s{sT0}, s{sWR}, 4")
        else:
            a(f"s_xor_b32 s{sT0}, s{sWR}, 1")
            a(f"s_lshl_b32 s{sT0}, s{sT0}, 4")
        a(f"s_lshr_b32 s{sT0}, s{sTBL}, s{sT0}")
        a(f"v_lshrrev_b32 v{vT+3}, v{vT+2}, s{sT0}") if False else None
        a(f"v_mov_b32 v{vT+3}, s{sT0}")
        a(f"v_lshrrev_b32 v{vT+3}, v{vT+2}, v{vT+3}")
        a(f"v_and_b32 v{vT+3}, 15, v{vT+3}")
        a(f"v_xor_b32 v{vT+3}, v{vT+3}, v{vT}")
        a(f"v_lshl_add_u32 v{dst}, v{vT+3}, 4, v{vT+1}")
    a(f"v_and_b32 v{vT}, 15, v{vLANE}")
    a(f"v_bfe_u32 v{vT+1}, v{vLANE}, 4, 1")
    a(f"v_cmp_eq_u32 vcc, v{vT}, v{vT+1}")
    a(f"v_mov_b32 v{vT+2}, 0x3f803f80")
    a("s_nop 0")
    a(f"v_cndmask_b32 v{vSEL}, 0, v{vT+2}, vcc")
    for r in range(1, 4):
        a(f"v_mov_b32 v{vSEL + r}, v{vSEL}")
    for r in range(4):
        a(f"v_mov_b32 v{vCSA + r}, 0")
    for r in range(64):
        a(f"v_mov_b32 v{vACC + r}, 0")

def qk_path(a):
    a.label("L_k1_qk")
    a(f"s_mov_b32 s{sSEC}, {KV_OFF}")
    a(f"s_mov_b32 s{sTS}, 2560")
    a(f"s_mov_b32 s{sSCALE}, {hex(f2u(1.0))}")
    a(f"s_sub_u32 s{sT0}, s{sNT}, 5")
    a(f"s_cmp_lt_u32 s{sNT}, 5")
    a(f"s_cselect_b32 s{sSEC}, {QB_OFF}, s{sSEC}")
    a(f"s_cselect_b32 s{sTS}, 1280, s{sTS}")
    a(f"s_cselect_b32 s{sSCALE}, {hex(f2u(QSCALE))}, s{sSCALE}")
    a(f"s_cselect_b32 s{sT0}, s{sNT}, s{sT0}")
    a(f"s_lshl_b32 s{sHS}, s{sTS}, 6")
    a(f"s_lshl_b32 s{sT1}, s{sMT}, 2")
    a(f"s_lshl_b32 s{sT2}, s{sWR}, 1")
    a(f"s_add_u32 s{sT1}, s{sT1}, s{sT2}")
    a(f"s_add_u32 s{sT2}, s{sT1}, s{sWC}")
    a(f"s_mul_i32 s{sTA}, s{sT2}, s{sTS}")
    a(f"s_add_u32 s{sTA}, s{sTA}, s{sSEC}")
    a(f"s_xor_b32 s{sT3}, s{sWC}, 1")
    a(f"s_add_u32 s{sT2}, s{sT1}, s{sT3}")
    a(f"s_mul_i32 s{sTB}, s{sT2}, s{sTS}")
    a(f"s_add_u32 s{sTB}, s{sTB}, s{sSEC}")
    for k_, (ct, g) in enumerate(((0, 0), (0, 2), (1, 0), (1, 2), (1, 3))):
        o = vOFF + k_
        a(f"s_bfe_u32 s{sT1}, s{sTBL}, {hex((4 << 16) | (16 * ct + 4 * g))}")
        a(f"s_lshl_b32 s{sT2}, s{sN5}, 4")
        a(f"s_add_u32 s{sT1}, s{sT1}, s{sT2}")
        a(f"s_lshl_b32 s{sT1}, s{sT1}, 1")
        a(f"v_add_u32 v{vT}, s{sT1}, v{vH}")
        a(f"v_mul_u32_u24 v{vT+1}, 52429, v{vT}")
        a(f"v_lshrrev_b32 v{vT+1}, 18, v{vT+1}")
        a(f"v_mul_u32_u24 v{vT+2}, 5, v{vT+1}")
        a(f"v_sub_u32 v{vT+2}, v{vT}, v{vT+2}")
        a(f"v_and_b32 v{vT+3}, 1, v{vT+1}")
        a(f"v_sub_u32 v{vT+2}, v{vT+2}, v{vT+3}")
        a(f"v_mul_lo_u32 v{o}, v{vT+1}, s{sHS}")
        a(f"v_and_b32 v{vT+1}, 1, v{vT+2}")
        a(f"v_lshlrev_b32 v{vT+1}, 9, v{vT+1}")
        a(f"v_bfe_u32 v{vT+3}, v{vT+2}, 1, 1")
        a(f"v_lshl_add_u32 v{vT+1}, v{vT+3}, 3, v{vT+1}")
        a(f"v_lshl_add_u32 v{vT+1}, v{vTOK}, 4, v{vT+1}")
        a(f"v_cmp_lt_u32 vcc, 3, v{vT+2}")
        a(f"v_lshlrev_b32 v{vT+3}, 3, v{vTOK}")
        a(f"v_add_u32 v{vT+3}, 1024, v{vT+3}")
        a(f"v_cndmask_b32 v{vT+1}, v{vT+1}, v{vT+3}, vcc")
        a(f"v_add_u32 v{o}, v{o}, v{vT+1}")
    mainloop(a, False)
    stats_exchange(a)
    vNM, vRS, vC = vE, vE + 2, vE + 4
    a(f"s_lshl_b32 s{sT0}, s{sWR}, 6")
    a(f"v_add_u32 v{vT}, s{sT0}, v{vTOK}")
    a(f"v_lshlrev_b32 v{vT}, 2, v{vT}")
    a(f"s_lshl_b32 s{sT1}, s{sWC}, 7")
    a(f"v_add_u32 v{vT+1}, s{sT1}, v{vT}")
    a(f"s_xor_b32 s{sT1}, s{sT1}, 128")
    a(f"v_add_u32 v{vT+2}, s{sT1}, v{vT}")
    a(f"v_add_u32 v{vT+1}, {ST_NM}, v{vT+1}")
    a(f"v_add_u32 v{vT+2}, {ST_NM}, v{vT+2}")
    a(f"ds_read_b32 v{vNM}, v{vT+1}")
    a(f"ds_read_b32 v{vRS}, v{vT+1} offset:512")
    a(f"ds_read_b32 v{vNM+1}, v{vT+2}")
    a(f"ds_read_b32 v{vRS+1}, v{vT+2} offset:512")
    a(f"s_lshl_b32 s{sT0}, s{sWC}, 8")
    a(f"v_lshlrev_b32 v{vT}, 4, v{vH}")
    a(f"v_add_u32 v{vT}, s{sT0}, v{vT}")
    a(f"s_lshl_b32 s{sT1}, s{sWR}, 7")
    a(f"v_add_u32 v{vT+1}, s{sT1}, v{vT}")
    a(f"s_xor_b32 s{sT1}, s{sT1}, 128")
    a(f"v_add_u32 v{vT+2}, s{sT1}, v{vT}")
    a(f"v_add_u32 v{vT+1}, {ST_CS}, v{vT+1}")
    a(f"v_add_u32 v{vT+2}, {ST_CS}, v{vT+2}")
    for b_ in range(2):
        for g in range(4):
            a(f"ds_read_b128 {vr(vC + 16 * b_ + 4 * g, 4)}, v{vT + 1 + b_} offset:{32 * g}")
    a("s_waitcnt lgkmcnt(0)")
    ST(a, "e_lds")
    a(f"v_mul_f32 v{vRS}, s{sSCALE}, v{vRS}")
    a(f"v_mul_f32 v{vRS+1}, s{sSCALE}, v{vRS+1}")
    ws = f"s[{SRD_WS}:{SRD_WS+3}]"
    def finish(wr):
        for a_ in range(2):
            a(f"v_mov_b32 v{vT}, v{vNM + a_}")
            a(f"v_mov_b32 v{vT+1}, v{vNM + a_}")
            a(f"v_mov_b32 v{vT+2}, v{vRS + a_}")
            a(f"v_mov_b32 v{vT+3}, v{vRS + a_}")
            so = f"s{sTA if a_ == 0 else sTB}"
            for b_ in range(2):
                A = acc(a_, b_)
                for p in range(8):
                    a(f"v_pk_fma_f32 {vr(A + 2 * p, 2)}, {vr(vC + 16 * b_ + 2 * p, 2)}, {vr(vT, 2)}, {vr(A + 2 * p, 2)}")
                for p in range(8):
                    a(f"v_pk_mul_f32 {vr(A + 2 * p, 2)}, {vr(A + 2 * p, 2)}, {vr(vT + 2, 2)}")
                for p in range(8):
                    a(f"v_cvt_pk_bf16_f32 v{A + p}, v{A + 2 * p}, v{A + 2 * p + 1}")
                if (wr ^ b_) == 0:
                    a(f"buffer_store_dwordx4 {vr(A, 4)}, v{vOFF}, {ws}, {so} offen{STF}")
                    a(f"buffer_store_dwordx4 {vr(A + 4, 4)}, v{vOFF + 1}, {ws}, {so} offen{STF}")
                else:
                    a(f"buffer_store_dwordx4 {vr(A, 4)}, v{vOFF + 2}, {ws}, {so} offen{STF}")
                    a(f"buffer_store_dwordx2 {vr(A + 4, 2)}, v{vOFF + 3}, {ws}, {so} offen{STF}")
                    a(f"buffer_store_dwordx2 {vr(A + 6, 2)}, v{vOFF + 4}, {ws}, {so} offen{STF}")
    a(f"s_cmp_eq_u32 s{sWR}, 0")
    a("s_cbranch_scc0 L_k1_qk_wr1")
    finish(0)
    a("s_branch L_k1_qk_done")
    a.label("L_k1_qk_wr1")
    finish(1)
    a.label("L_k1_qk_done")
    ST(a, "stores")
    if ST.on:
        a("s_waitcnt vmcnt(0)")
    ST(a, "end")
    ST.store(a)
    a("s_endpgm")

def v_path(a):
    a.label("L_k1_v")
    a(f"s_lshl_b32 s{sT1}, s{sMT}, 2")
    a(f"s_lshl_b32 s{sT2}, s{sWR}, 1")
    a(f"s_add_u32 s{sT1}, s{sT1}, s{sT2}")
    a(f"s_add_u32 s{sT2}, s{sT1}, s{sWC}")
    a(f"s_mul_i32 s{sTA}, s{sT2}, 2560")
    a(f"s_add_u32 s{sTA}, s{sTA}, {KV_OFF + 1280}")
    a(f"s_xor_b32 s{sT3}, s{sWC}, 1")
    a(f"s_add_u32 s{sT2}, s{sT1}, s{sT3}")
    a(f"s_mul_i32 s{sTB}, s{sT2}, 2560")
    a(f"s_add_u32 s{sTB}, s{sTB}, {KV_OFF + 1280}")
    a(f"s_sub_u32 s{sT0}, s{sNT}, 10")
    a(f"s_lshl_b32 s{sT0}, s{sT0}, 7")
    a(f"s_lshl_b32 s{sT1}, s{sWC}, 6")
    a(f"s_add_u32 s{sT0}, s{sT0}, s{sT1}")
    for b_ in range(2):
        if b_ == 0:
            a(f"s_lshl_b32 s{sT1}, s{sWR}, 5")
        else:
            a(f"s_xor_b32 s{sT1}, s{sWR}, 1")
            a(f"s_lshl_b32 s{sT1}, s{sT1}, 5")
        a(f"s_add_u32 s{sT1}, s{sT1}, s{sT0}")
        a(f"v_add_u32 v{vT}, s{sT1}, v{vTOK}")
        a(f"v_mul_u32_u24 v{vT+1}, 52429, v{vT}")
        a(f"v_lshrrev_b32 v{vT+1}, 20, v{vT+1}")
        a(f"v_mul_u32_u24 v{vT+2}, 20, v{vT+1}")
        a(f"v_sub_u32 v{vT+2}, v{vT}, v{vT+2}")
        a(f"s_mov_b32 s{sT2}, {64 * 2560}")
        a(f"v_mul_lo_u32 v{vOFF + b_}, v{vT+1}, s{sT2}")
        a(f"v_lshlrev_b32 v{vT+2}, 4, v{vT+2}")
        a(f"v_mul_u32_u24 v{vT+3}, 320, v{vH}")
        a(f"v_add3_u32 v{vOFF + b_}, v{vOFF + b_}, v{vT+2}, v{vT+3}")
    mainloop(a, True)
    stats_exchange(a)
    vCL, vNM, vRS = vE, vE + 4, vE + 20
    a(f"s_lshl_b32 s{sT0}, s{sWC}, 6")
    a(f"v_add_u32 v{vT}, s{sT0}, v{vTOK}")
    a(f"v_lshlrev_b32 v{vT}, 2, v{vT}")
    a(f"s_lshl_b32 s{sT1}, s{sWR}, 7")
    a(f"v_add_u32 v{vT+1}, s{sT1}, v{vT}")
    a(f"s_xor_b32 s{sT1}, s{sT1}, 128")
    a(f"v_add_u32 v{vT+2}, s{sT1}, v{vT}")
    a(f"v_add_u32 v{vT+1}, {ST_CS}, v{vT+1}")
    a(f"v_add_u32 v{vT+2}, {ST_CS}, v{vT+2}")
    a(f"ds_read_b32 v{vCL}, v{vT+1}")
    a(f"ds_read_b32 v{vCL+2}, v{vT+2}")
    a("s_waitcnt lgkmcnt(0)")
    a(f"v_mov_b32 v{vCL+1}, v{vCL}")
    a(f"v_mov_b32 v{vCL+3}, v{vCL+2}")
    ws = f"s[{SRD_WS}:{SRD_WS+3}]"
    for a_ in range(2):
        a(f"s_lshl_b32 s{sT0}, s{sWR}, 8")
        a(f"s_lshl_b32 s{sT1}, s{sWC}, 7")
        if a_ == 1:
            a(f"s_xor_b32 s{sT1}, s{sT1}, 128")
        a(f"s_add_u32 s{sT0}, s{sT0}, s{sT1}")
        a(f"v_lshlrev_b32 v{vT}, 4, v{vH}")
        a(f"v_add_u32 v{vT}, s{sT0}, v{vT}")
        a(f"v_add_u32 v{vT}, {ST_NM}, v{vT}")
        for g in range(4):
            a(f"ds_read_b128 {vr(vNM + 4 * g, 4)}, v{vT} offset:{32 * g}")
            a(f"ds_read_b128 {vr(vRS + 4 * g, 4)}, v{vT} offset:{512 + 32 * g}")
        a("s_waitcnt lgkmcnt(0)")
        for b_ in range(2):
            A = acc(a_, b_)
            for p in range(8):
                a(f"v_pk_fma_f32 {vr(A + 2 * p, 2)}, {vr(vNM + 2 * p, 2)}, {vr(vCL + 2 * b_, 2)}, {vr(A + 2 * p, 2)}")
            for p in range(8):
                a(f"v_pk_mul_f32 {vr(A + 2 * p, 2)}, {vr(A + 2 * p, 2)}, {vr(vRS + 2 * p, 2)}")
            for p in range(8):
                a(f"v_cvt_pk_bf16_f32 v{A + p}, v{A + 2 * p}, v{A + 2 * p + 1}")
            for t in range(2):
                a(f"buffer_store_dwordx4 {vr(A + 4 * t, 4)}, v{vOFF + b_}, {ws}, s{sTA if a_ == 0 else sTB} offen offset:{640 * t}{STF}")
    ST(a, "stores")
    if ST.on:
        a("s_waitcnt vmcnt(0)")
    ST(a, "end")
    ST.store(a)
    a("s_endpgm")

L_KEYS, L_WR = 51200, 52224

def aux(a):
    from k2moe import repack_setup, repack_request, repack_finish
    a.label("L_k1_aux")
    a(f"s_cmp_ge_u32 s{sW}, 8")
    a("s_cbranch_scc1 L_k1_exit")
    vX, vWr = (16, 56), 96
    vA, vAW = 8, 9
    s1, s2, s3, sw = (10, 136), (11, 137), (12, 138), 13
    SRD_R = 40
    a("s_load_dwordx2 s[6:7], s[0:1], 16")
    srd(a, SRD_R, 38, D * 2)
    a(f"v_lshrrev_b32 v{vT}, 3, v{vLANE}")
    a(f"s_lshl_b32 s{sT0}, s{sW}, 4")
    a(f"s_add_u32 s{sT0}, s{sT0}, s{sROW0}")
    a(f"v_add_u32 v14, s{sT0}, v{vT}")
    a(f"v_and_b32 v15, 7, v{vLANE}")
    a(f"v_lshlrev_b32 v{vAW}, 4, v15")
    a(f"v_mul_u32_u24 v{vA}, 1280, v14")
    a(f"v_add_u32 v{vA}, v{vA}, v{vAW}")
    if X("touch"):
        a("s_load_dwordx2 s[46:47], s[0:1], 72")
        a(f"s_mov_b32 s{sT1}, {YP_OFF}")
        a(f"v_mov_b32 v140, 0")
        a(f"buffer_load_dword v141, v140, s[{SRD_WS}:{SRD_WS+3}], s{sT1} offen")
        a("s_waitcnt lgkmcnt(0)")
        a("global_load_dword v142, v140, s[46:47] offset:192")
    a(f"s_mov_b32 s{sT1}, {8 * 1280}")
    a(f"s_lshl_b32 s{sT2}, s{sW}, 11")
    a(f"s_add_u32 s{sT2}, s{sT2}, {L_WR}")
    a(f"s_mov_b32 m0, s{sT2}")
    a(f"v_lshlrev_b32 v146, 4, v{vLANE}")
    a(f"buffer_load_dwordx4 v146, s[{SRD_R}:{SRD_R+3}], 0 offen lds")
    a(f"buffer_load_dwordx4 v146, s[{SRD_R}:{SRD_R+3}], 0 offen offset:1024 lds")
    a(f"v_add_u32 v{vAW}, s{sT2}, v{vAW}")
    for g in range(2):
        for i in range(10):
            a(f"buffer_load_dwordx4 {vr(vX[g] + 4 * i, 4)}, v{vA}, s[{SRD_X}:{SRD_X+3}], {0 if g == 0 else f's{sT1}'} offen offset:{i * 128}")
    a("s_waitcnt vmcnt(20)")
    for i in range(10):
        a(f"ds_read_b128 {vr(vWr + 4 * i, 4)}, v{vAW} offset:{i * 128}")
    EARLY_REP = LOCAL_STATS and os.environ.get("K1_EARLYREP", "0") == "1"
    if EARLY_REP:
        a("s_waitcnt lgkmcnt(0)")
        repack_setup(a, sMT)
        repack_request(a, sW, 0)
    for r in s1 + s2 + s3 + (sw,):
        a(f"v_mov_b32 v{r}, 0")
    a(f"v_mov_b32 v139, 0x3f803f80")
    ST(a, "setup")
    extra = 5 if EARLY_REP else 0
    for g in range(2):
        a(f"s_waitcnt vmcnt({(10 if g == 0 else 0) + extra})" + (" lgkmcnt(0)" if g == 0 else ""))
        if g == 0:
            ST(a, "B0")
        for r in range(40):
            a(f"v_dot2c_f32_bf16 v{s1[g]}, v{vX[g] + r}, v139")
            a(f"v_dot2c_f32_bf16 v{s2[g]}, v{vX[g] + r}, v{vX[g] + r}")
            a(f"v_dot2c_f32_bf16 v{s3[g]}, v{vX[g] + r}, v{vWr + r}")
            if g == 0:
                a(f"v_dot2c_f32_bf16 v{sw}, v{vWr + r}, v139")
    ST(a, "loopend")
    a("s_nop 3")
    for ctrl in ("quad_perm:[1,0,3,2]", "quad_perm:[2,3,0,1]", "row_half_mirror"):
        for r in s1 + s2 + s3 + (sw,):
            a(f"v_add_f32_dpp v{vT+2}, v{r}, v{r} {ctrl} row_mask:0xf bank_mask:0xf")
            a("s_nop 0")
            a(f"v_mov_b32 v{r}, v{vT+2}")
        a("s_nop 1")
    a(f"v_cmp_eq_u32 vcc, 1, v15")
    a(f"v_add_u32 v{vT}, 8, v14")
    a("s_nop 0")
    for pair in (s1, s2, s3):
        a(f"v_cndmask_b32 v{pair[0]}, v{pair[0]}, v{pair[1]}, vcc")
    a(f"v_cndmask_b32 v{vT}, v14, v{vT}, vcc")
    a(f"v_mov_b32 v{vT+1}, v15")
    s1, s2, s3 = s1[0], s2[0], s3[0]
    a(f"v_mul_f32 v{s1}, {hex(f2u(1.0 / D))}, v{s1}")
    a(f"v_mul_f32 v{s2}, {hex(f2u(1.0 / D))}, v{s2}")
    a(f"v_fma_f32 v{s2}, -v{s1}, v{s1}, v{s2}")
    a(f"v_max_f32 v{s2}, 0, v{s2}")
    a(f"v_add_f32 v{s2}, {hex(f2u(1e-5))}, v{s2}")
    a(f"v_rsq_f32 v{s2}, v{s2}")
    a(f"v_fma_f32 v{s3}, -v{s1}, v{sw}, v{s3}")
    a(f"v_mul_f32 v{s3}, v{s3}, v{s2}")
    ws = f"s[{SRD_WS}:{SRD_WS+3}]"
    a(f"v_ashrrev_i32 v{vT+2}, 31, v{s3}")
    a(f"v_or_b32 v{vT+2}, 0x80000000, v{vT+2}")
    a(f"v_xor_b32 v{vT+2}, v{vT+2}, v{s3}")
    a(f"v_and_b32 v{vT+2}, 0xfffff800, v{vT+2}")
    a(f"v_or_b32 v{vT+2}, v{vT+2}, v{vT}")
    a(f"v_mov_b32 v14, v{s1}")
    a(f"v_mov_b32 v15, v{s2}")
    a(f"v_lshlrev_b32 v{vA}, 3, v{vT}")
    a(f"v_lshlrev_b32 v{vAW}, 2, v{vT}")
    a(f"v_and_b32 v{vT+3}, 127, v{vT}")
    a(f"v_lshlrev_b32 v{vT+3}, 2, v{vT+3}")
    a(f"v_add_u32 v{vT+3}, {L_KEYS}, v{vT+3}")
    a(f"v_cmp_gt_u32 vcc, 2, v{vT+1}")
    a(f"s_mov_b32 s{sT0}, {ST_OFF}")
    a(f"s_mov_b32 s{sT1}, {R_OFF}")
    a("s_and_saveexec_b64 s[44:45], vcc")
    a(f"buffer_store_dwordx2 v[14:15], v{vA}, {ws}, s{sT0} offen{'' if LOCAL_STATS else ' sc1'}")
    a(f"buffer_store_dword v{s3}, v{vAW}, {ws}, s{sT1} offen")
    a(f"ds_write_b32 v{vT+3}, v{vT+2}")
    if LOCAL_STATS:
        a("s_waitcnt lgkmcnt(0)")
    else:
        a("s_load_dwordx2 s[46:47], s[0:1], 72")
        a("s_waitcnt vmcnt(0) lgkmcnt(0)")
    a("s_mov_b64 exec, s[44:45]")
    a("s_barrier")
    a(f"s_cmp_lg_u32 s{sW}, 0")
    a("s_cbranch_scc1 L_k1_repack")
    if not LOCAL_STATS:
        a(f"s_lshl_b32 s{sT0}, s{sMT}, 2")
        a(f"v_mov_b32 v16, s{sT0}")
        a("v_mov_b32 v17, 1")
        a("s_mov_b64 exec, 1")
        a("global_store_dword v16, v17, s[46:47] sc1")
        a("s_mov_b64 exec, -1")
    ST(a, "e_lds")
    hi, lo, oh, ol, adr = 16, 17, 18, 19, 20
    a(f"v_lshlrev_b32 v{adr}, 2, v{vLANE}")
    a(f"ds_read_b32 v{oh}, v{adr} offset:{L_KEYS}")
    a(f"ds_read_b32 v{ol}, v{adr} offset:{L_KEYS + 256}")
    a("s_waitcnt lgkmcnt(0)")
    a(f"v_max_u32 v{hi}, v{oh}, v{ol}")
    a(f"v_min_u32 v{lo}, v{oh}, v{ol}")
    for x in (1, 2, 4, 8, 16, 32):
        a(f"v_xor_b32 v{adr}, {x}, v{vLANE}")
        a(f"v_lshlrev_b32 v{adr}, 2, v{adr}")
        a(f"ds_bpermute_b32 v{oh}, v{adr}, v{hi}")
        a(f"ds_bpermute_b32 v{ol}, v{adr}, v{lo}")
        a("s_waitcnt lgkmcnt(0)")
        a(f"v_max_u32 v{lo}, v{lo}, v{ol}")
        a(f"v_min_u32 v{ol}, v{hi}, v{oh}")
        a(f"v_max_u32 v{hi}, v{hi}, v{oh}")
        a(f"v_max_u32 v{lo}, v{lo}, v{ol}")
    a(f"v_mov_b32 v{oh}, v{hi}")
    a(f"v_mov_b32 v{ol}, v{lo}")
    a(f"s_lshl_b32 s{sT0}, s{sMT}, 3")
    a(f"s_add_u32 s{sT0}, s{sT0}, {CAND_OFF}")
    a(f"v_mov_b32 v{adr}, 0")
    a(f"v_cmp_eq_u32 vcc, 0, v{vLANE}")
    a("s_nop 1")
    a("s_and_saveexec_b64 s[44:45], vcc")
    a(f"buffer_store_dwordx2 v[{oh}:{ol}], v{adr}, {ws}, s{sT0} offen")
    a("s_mov_b64 exec, -1")
    a(f"s_cmp_lg_u32 s{sMT}, 0")
    a("s_cbranch_scc1 L_k1_repack")
    a(f"v_lshlrev_b32 v{adr}, 8, v{vLANE}")
    a(f"v_mov_b32 v{oh}, 0")
    a(f"s_mov_b32 s{sT0}, {CNT_OFF}")
    a(f"v_cmp_gt_u32 vcc, {NCNT}, v{vLANE}")
    a("s_nop 1")
    a("s_mov_b64 exec, vcc")
    a(f"buffer_store_dword v{oh}, v{adr}, {ws}, s{sT0} offen")
    a("s_mov_b64 exec, -1")
    ST(a, "stores")
    ST.store(a)
    a.label("L_k1_repack")
    if not EARLY_REP:
        repack_setup(a, sMT)
        repack_request(a, sW, 0)
    a(f"s_cmp_lt_u32 s{sW}, 6")
    a("s_cbranch_scc1 L_rep_loaded")
    repack_request(a, sW, 1)
    a.label("L_rep_loaded")
    repack_finish(a, sW, "L_k1_exit")

def emit(a):
    entry(a)
    consumer_setup(a)
    a(f"s_cmp_ge_u32 s{sNT}, 10")
    a("s_cbranch_scc1 L_k1_v")
    qk_path(a)
    v_path(a)
    loader(a)
    stat_waves(a)
    aux(a)
    a.label("L_k1_exit")
    a("s_endpgm")
    a.label("L_k1_end")
```

```python
from common import *
import os
import slots

NAME = "qkv_kernel"
LDS = 131072 + 2048
VGPRS = 168 if prof_on("k1") else 152
LOCAL_STATS = os.environ.get("K1_STATS", "local") == "local"
BLOCK = 768 if LOCAL_STATS else 576

SRD_X, SRD_W, SRD_WS = 8, 12, 16
sW, sMT, sNT = 20, 21, 22
sROW0 = 23
sT0, sT1, sT2, sT3 = 24, 25, 26, 27
sSEC, sHS, sTS, sSCALE = 28, 29, 30, 31
sTA, sTB = 32, 33
sWR, sWC = 34, 35
sTBL, sN5 = 44, 45
ST_NM, ST_RS, ST_CS = 131072, 131072 + 512, 131072 + 1024

vLANE, vTOK, vH = 1, 2, 3
vT = 4
vXA = 8
vXB = 12
vWA, vWB = 16, 17
vS1, vS2, vCS, vONE = 28, 29, 30, 31
vSEL = 136
vCSA = 140
vF = (32, 48)
vACC = 64
vOFF = 128
vE = 24

ST = StampsLane("k1", 20, 16, 160)
def X(flag):
    return flag in os.environ.get("K1_EXP", "").split(",")

STF = {"": "", "sc1": " sc1", "nt": " nt", "sc01": " sc0 sc1"}[os.environ.get("K1_ST", "")]

def acc(a_, b_):
    return vACC + 32 * a_ + 16 * b_

def entry(a):
    kernel_header(a, NAME)
    ST(a, "entry")
    a("s_cmp_ge_u32 s2, 256")
    a("s_cbranch_scc1 L_k1_exit")
    a("s_load_dwordx4 s[4:7], s[0:1], 0")
    a("s_load_dwordx2 s[36:37], s[0:1], 80")
    a("s_load_dwordx2 s[38:39], s[0:1], 32")
    a(f"v_lshrrev_b32 v{vT}, 6, v0")
    a(f"v_and_b32 v{vLANE}, 63, v0")
    a(f"v_readfirstlane_b32 s{sW}, v{vT}")
    MAP = os.environ.get("K1_MAP", "4x8")
    if MAP == "4x8":
        a(f"s_and_b32 s{sT0}, s2, 3")
        a(f"s_lshl_b32 s{sT0}, s{sT0}, 2")
        a(f"s_bfe_u32 s{sT1}, s2, 0x20003")
        a(f"s_or_b32 s{sMT}, s{sT0}, s{sT1}")
        a(f"s_bfe_u32 s{sT0}, s2, 0x10002")
        a(f"s_lshl_b32 s{sT0}, s{sT0}, 3")
        a(f"s_lshr_b32 s{sT1}, s2, 5")
        a(f"s_or_b32 s{sNT}, s{sT0}, s{sT1}")
    elif MAP == "8x4":
        a(f"s_and_b32 s{sT0}, s2, 1")
        a(f"s_lshl_b32 s{sT0}, s{sT0}, 3")
        a(f"s_bfe_u32 s{sT1}, s2, 0x30003")
        a(f"s_or_b32 s{sMT}, s{sT0}, s{sT1}")
        a(f"s_bfe_u32 s{sT0}, s2, 0x20001")
        a(f"s_lshl_b32 s{sT0}, s{sT0}, 2")
        a(f"s_lshr_b32 s{sT1}, s2, 6")
        a(f"s_or_b32 s{sNT}, s{sT0}, s{sT1}")
    elif MAP == "2x16":
        a(f"s_and_b32 s{sT0}, s2, 7")
        a(f"s_lshl_b32 s{sT0}, s{sT0}, 1")
        a(f"s_bfe_u32 s{sT1}, s2, 0x10003")
        a(f"s_or_b32 s{sMT}, s{sT0}, s{sT1}")
        a(f"s_lshr_b32 s{sNT}, s2, 4")
    elif MAP == "16x2":
        a(f"s_bfe_u32 s{sMT}, s2, 0x40003")
        a(f"s_and_b32 s{sT0}, s2, 7")
        a(f"s_lshl_b32 s{sT0}, s{sT0}, 1")
        a(f"s_lshr_b32 s{sT1}, s2, 7")
        a(f"s_or_b32 s{sNT}, s{sT0}, s{sT1}")
    a(f"s_lshl_b32 s{sROW0}, s{sMT}, 7")
    a(f"v_and_b32 v{vTOK}, 31, v{vLANE}")
    a(f"v_lshrrev_b32 v{vH}, 5, v{vLANE}")
    a("s_waitcnt lgkmcnt(0)")
    srd(a, SRD_X, 4, X_BYTES)
    srd(a, SRD_W, 6, WQKV_BYTES)
    srd(a, SRD_WS, 36, WS_SRD)
    a(f"s_cmp_eq_u32 s{sNT}, 15")
    a("s_cbranch_scc1 L_k1_aux")
    a(f"s_cmp_ge_u32 s{sW}, 8")
    a("s_cbranch_scc1 L_k1_stat")
    a(f"s_cmp_ge_u32 s{sW}, 4")
    a("s_cbranch_scc1 L_k1_loader")

def loader(a):
    a.label("L_k1_loader")
    a(f"s_setprio {os.environ.get('K1_LPRIO', '0')}")
    vX, vWt = 8, 9
    lw = sT0
    a(f"s_sub_u32 s{lw}, s{sW}, 4")
    a(f"v_lshrrev_b32 v{vT}, 3, v{vLANE}")
    a(f"s_lshl_b32 s{sT1}, s{lw}, 3")
    a(f"s_add_u32 s{sT1}, s{sT1}, s{sROW0}")
    a(f"v_add_u32 v{vT}, s{sT1}, v{vT}")
    a(f"v_mul_u32_u24 v{vT}, 1280, v{vT}")
    a(f"v_lshrrev_b32 v{vT+1}, 4, v{vLANE}")
    a(f"s_and_b32 s{sT1}, s{lw}, 1")
    a(f"s_lshl_b32 s{sT1}, s{sT1}, 2")
    a(f"v_add_u32 v{vT+2}, s{sT1}, v{vT+1}")
    a(f"v_and_b32 v{vT+3}, 7, v{vLANE}")
    a(f"v_xor_b32 v{vT+2}, v{vT+2}, v{vT+3}")
    a(f"v_lshl_add_u32 v{vX}, v{vT+2}, 4, v{vT}")
    a(f"s_lshl_b32 s{sT1}, s{lw}, 2")
    a(f"v_add_u32 v{vT}, s{sT1}, v{vT+1}")
    a(f"v_mul_u32_u24 v{vT}, 3840, v{vT}")
    a(f"v_and_b32 v{vT+2}, 15, v{vLANE}")
    a(f"v_lshlrev_b32 v{vT+3}, 2, v{vT+1}")
    a(f"v_xor_b32 v{vT+2}, v{vT+2}, v{vT+3}")
    a(f"v_lshl_add_u32 v{vT}, v{vT+2}, 4, v{vT}")
    a(f"s_lshl_b32 s{sT1}, s{sNT}, 8")
    a(f"v_add_u32 v{vWt}, s{sT1}, v{vT}")
    a(f"s_lshl_b32 s{sT2}, s{lw}, 10")
    vXs, vWs = 44, 48
    for i in range(4):
        a(f"v_add_u32 v{vXs + i}, {i * 40960}, v{vX}")
        a(f"v_add_u32 v{vWs + i}, {i * 16 * 3840}, v{vWt}")
    sXO, sWO = 40, 41
    a("s_lshr_b32 s42, s2, 5")
    a("s_bfe_u32 s43, s2, 0x20003")
    a("s_mul_i32 s43, s43, 3")
    a("s_add_u32 s42, s42, s43")
    a("s_cmp_ge_u32 s42, 10")
    a("s_cselect_b32 s43, 10, 0")
    a("s_sub_u32 s42, s42, s43")
    if not X("rot"):
        a("s_mov_b32 s42, 0")
    def stage(s):
        base = (s & 3) * 32768
        a(f"s_lshl_b32 s{sXO}, s42, 7")
        a(f"s_mul_i32 s{sWO}, s42, {64 * 3840}")
        a("s_add_u32 s42, s42, 1")
        a("s_cmp_eq_u32 s42, 10")
        a("s_cselect_b32 s42, 0, s42")
        for i in range(4):
            a(f"s_add_u32 m0, s{sT2}, {base + i * 4096}")
            a("s_nop 0")
            a(f"buffer_load_dwordx4 v{vXs + i}, s[{SRD_X}:{SRD_X+3}], s{sXO} offen lds")
            a(f"s_add_u32 m0, s{sT2}, {base + 16384 + i * 4096}")
            a("s_nop 0")
            a(f"buffer_load_dwordx4 v{vWs + i}, s[{SRD_W}:{SRD_W+3}], s{sWO} offen lds")
    ST(a, "setup")
    PRE = int(os.environ.get("K1_PRE", "2"))
    for s in range(PRE):
        stage(s)
    issued = PRE - 1
    for s in range(10):
        a(f"s_waitcnt vmcnt({8 * (issued - s)})")
        if os.environ.get("K1_LSTAMP"):
            ST(a, ["B0", "loopend", "e_bar", "e_lds", "g4", "g8", "g20", "x7", "x8", "x9"][s])
        a("s_barrier")
        while issued < min(9, s + int(os.environ.get('K1_DEPTH', '3'))):
            issued += 1
            if not (X("nodma") and issued > 3):
                stage(issued)
    ST(a, "stores")
    ST(a, "end")
    ST.store(a)
    a("s_endpgm")

def stat_waves(a):
    (stat_local if LOCAL_STATS else stat_fetch)(a)

def stat_local(a):
    a.label("L_k1_stat")
    lw = sT0
    vR, vR2, vD, vP, vA1, vA2 = 8, 12, 48, 32, 36, 38
    a(f"s_sub_u32 s{lw}, s{sW}, 8")
    a(f"v_lshrrev_b32 v{vT}, 1, v{vLANE}")
    a(f"s_lshl_b32 s{sT1}, s{lw}, 5")
    a(f"v_add_u32 v{vT}, s{sT1}, v{vT}")
    a(f"v_lshlrev_b32 v{vT+1}, 7, v{vT}")
    a(f"v_and_b32 v{vT+2}, 1, v{vLANE}")
    a(f"v_lshl_add_u32 v{vT+1}, v{vT+2}, 6, v{vT+1}")
    a(f"v_bfe_u32 v{vT+2}, v{vLANE}, 2, 2")
    for i in range(4):
        a(f"v_xor_b32 v{vT+3}, {i}, v{vT+2}")
        a(f"v_lshl_add_u32 v{vR + i}, v{vT+3}, 4, v{vT+1}")
        a(f"v_add_u32 v{vR2 + i}, 65536, v{vR + i}")
    a(f"v_lshlrev_b32 v40, 2, v{vT}")
    for r in range(4):
        a(f"v_mov_b32 v{vA1 + r}, 0")
    if os.environ.get("K1_PF", "0") == "1":
        a(f"s_sub_u32 s{sT1}, s{sW}, 8")
        a(f"s_mul_i32 s{sT2}, s2, 10240")
        a(f"s_mul_i32 s{sT3}, s2, 9600")
        a(f"v_lshlrev_b32 v41, 4, v{vLANE}")
        a(f"s_lshl_b32 s{sT1}, s{sT1}, 10")
        a(f"v_add_u32 v41, s{sT1}, v41")
        for i in range(3):
            a(f"buffer_load_dwordx4 v[96:99], v41, s[{SRD_X}:{SRD_X+3}], s{sT2} offen" + (f" offset:{4096 * i}" if i * 4096 < 4096 else ""))if i == 0 else None
        for i in range(1, 3):
            a(f"s_add_u32 s{sT2}, s{sT2}, 4096")
            a(f"buffer_load_dwordx4 v[96:99], v41, s[{SRD_X}:{SRD_X+3}], s{sT2} offen")
        for i in range(3):
            a(f"buffer_load_dwordx4 v[100:103], v41, s[{SRD_W}:{SRD_W+3}], s{sT3} offen")
            a(f"s_add_u32 s{sT3}, s{sT3}, 4096")
    CPF = os.environ.get("K1_CPF", "none").split(",")
    if "own" in CPF:
        a(f"s_cmp_lg_u32 s{sW}, 8")
        a("s_cbranch_scc1 L_k1_cpf1")
        code_prefetch(a, "k1own", NAME, "L_k1_end", 24576, 46, vLANE, 44, True)
        a.label("L_k1_cpf1")
    if "next" in CPF:
        a(f"s_cmp_lg_u32 s{sW}, 9")
        a("s_cbranch_scc1 L_k1_cpf2")
        code_prefetch(a, "k1next", "attn_proj_kernel", "L_k2_end", 40960, 46, vLANE, 44, False)
        a.label("L_k1_cpf2")
    TOUCH = os.environ.get("K1_TOUCH", "none").split(",")
    a(f"v_lshlrev_b32 v41, 16, v{vLANE}")
    a(f"s_cmp_lg_u32 s{sW}, 8")
    a("s_cbranch_scc1 L_k1_touch2")
    if "xw" in TOUCH:
        a(f"buffer_load_dword v42, v41, s[{SRD_X}:{SRD_X+3}], 0 offen")
        a(f"buffer_load_dword v43, v41, s[{SRD_W}:{SRD_W+3}], 0 offen")
    if "ws" in TOUCH:
        for i in range((WS_SRD + (64 << 16) - 1) // (64 << 16)):
            a(f"s_mov_b32 s{sT1}, {i * (64 << 16)}")
            a(f"buffer_load_dword v44, v41, s[{SRD_WS}:{SRD_WS+3}], s{sT1} offen")
    a.label("L_k1_touch2")
    if "wts" in TOUCH or "out" in TOUCH:
        a(f"s_cmp_lg_u32 s{sW}, 9")
        a("s_cbranch_scc1 L_k1_touched")
        a("s_load_dwordx2 s[46:47], s[0:1], 16")
        a("s_load_dwordx4 s[48:51], s[0:1], 40")
        a("s_load_dwordx4 s[52:55], s[0:1], 56")
        a("s_waitcnt lgkmcnt(0)")
        bufs = [(46, WO_BYTES), (48, WG_BYTES), (50, WG_BYTES), (52, WD_BYTES)] if "wts" in TOUCH else []
        if "out" in TOUCH:
            bufs.append((54, X_BYTES))
        for lo, nbytes in bufs:
            srd(a, 56, lo, nbytes)
            a("buffer_load_dword v44, v41, s[56:59], 0 offen")
        a.label("L_k1_touched")
    for s in range(10):
        slot = s & 3
        a("s_barrier")
        if s == 9:
            a(f"s_setprio {os.environ.get('K1_LASTPRIO', '0')}")
        for i in range(4):
            a(f"ds_read_b128 {vr(vD + 4 * i, 4)}, v{(vR if slot < 2 else vR2) + i} offset:{(slot & 1) * 32768}")
        for j in range(16):
            if j % 4 == 0:
                a(f"s_waitcnt lgkmcnt({3 - j // 4})")
            p = vP + 2 * (j & 1)
            a(f"v_lshlrev_b32 v{p}, 16, v{vD + j}")
            a(f"v_and_b32 v{p+1}, 0xffff0000, v{vD + j}")
            if os.environ.get("K1_PK") == "1":
                a(f"v_pk_add_f32 {vr(vA1, 2)}, {vr(vA1, 2)}, {vr(p, 2)}")
                a(f"v_pk_fma_f32 {vr(vA2, 2)}, {vr(p, 2)}, {vr(p, 2)}, {vr(vA2, 2)}")
            else:
                a(f"v_add_f32 v{vA1}, v{vA1}, v{p}")
                a(f"v_fmac_f32 v{vA2}, v{p}, v{p}")
                a(f"v_add_f32 v{vA1+1}, v{vA1+1}, v{p+1}")
                a(f"v_fmac_f32 v{vA2+1}, v{p+1}, v{p+1}")
    a(f"v_add_f32 v{vA1}, v{vA1}, v{vA1+1}")
    a(f"v_add_f32 v{vA2}, v{vA2}, v{vA2+1}")
    a("s_nop 1")
    a(f"v_add_f32_dpp v{vA1+1}, v{vA1}, v{vA1} quad_perm:[1,0,3,2] row_mask:0xf bank_mask:0xf")
    a(f"v_add_f32_dpp v{vA2+1}, v{vA2}, v{vA2} quad_perm:[1,0,3,2] row_mask:0xf bank_mask:0xf")
    a(f"v_mul_f32 v{vA1}, {hex(f2u(1.0 / D))}, v{vA1+1}")
    a(f"v_mul_f32 v{vA2}, {hex(f2u(1.0 / D))}, v{vA2+1}")
    a(f"v_fma_f32 v{vA2}, -v{vA1}, v{vA1}, v{vA2}")
    a(f"v_max_f32 v{vA2}, 0, v{vA2}")
    a(f"v_add_f32 v{vA2}, {hex(f2u(1e-5))}, v{vA2}")
    a(f"v_rsq_f32 v{vA2}, v{vA2}")
    a(f"v_sub_f32 v{vA1}, 0, v{vA1}")
    a(f"v_add_u32 v40, {ST_NM}, v40")
    a(f"ds_write_b32 v40, v{vA1}")
    a(f"ds_write_b32 v40, v{vA2} offset:512")
    a("s_waitcnt lgkmcnt(0)")
    ST(a, "stores")
    a("s_barrier")
    ST(a, "end")
    ST.store(a)
    a("s_endpgm")

def stat_fetch(a):
    a.label("L_k1_stat")
    vA, vF, vD = 8, 9, 12
    ws = f"s[{SRD_WS}:{SRD_WS+3}]"
    a("s_load_dwordx2 s[46:47], s[0:1], 72")
    a(f"v_lshlrev_b32 v{vA}, 4, v{vLANE}")
    a(f"s_lshl_b32 s{sT0}, s{sMT}, 2")
    a(f"v_mov_b32 v{vF}, s{sT0}")
    a(f"s_lshl_b32 s{sT1}, s{sMT}, 10")
    a(f"s_add_u32 s{sT1}, s{sT1}, {ST_OFF}")
    a(f"v_lshlrev_b32 v10, 3, v{vLANE}")
    a(f"v_add_u32 v10, {ST_NM}, v10")
    a(f"s_mov_b32 s{sT2}, 0")
    a("s_waitcnt lgkmcnt(0)")
    def advance(tag, blocking):
        a(f"s_cmp_eq_u32 s{sT2}, 2")
        a(f"s_cbranch_scc1 L_st_{tag}_end")
        a("s_waitcnt vmcnt(0)")
        a(f"s_cmp_eq_u32 s{sT2}, 1")
        a(f"s_cbranch_scc1 L_st_{tag}_land")
        a(f"v_readfirstlane_b32 s{sT3}, v11")
        a("s_nop 1")
        a(f"s_cmp_eq_u32 s{sT3}, 1")
        a(f"s_cbranch_scc1 L_st_{tag}_go")
        a(f"global_load_dword v11, v{vF}, s[46:47] sc1")
        a(f"s_branch L_st_{tag}_end")
        a.label(f"L_st_{tag}_go")
        a(f"buffer_load_dwordx4 {vr(vD, 4)}, v{vA}, {ws}, s{sT1} offen sc1")
        a(f"s_mov_b32 s{sT2}, 1")
        a(f"s_branch L_st_{tag}_end")
        a.label(f"L_st_{tag}_land")
        a(f"v_sub_f32 v16, 0, v{vD}")
        a(f"v_sub_f32 v17, 0, v{vD+2}")
        a(f"v_mov_b32 v18, v{vD+1}")
        a(f"v_mov_b32 v19, v{vD+3}")
        a("ds_write_b64 v10, v[16:17]")
        a("ds_write_b64 v10, v[18:19] offset:512")
        a(f"s_mov_b32 s{sT2}, 2")
        a.label(f"L_st_{tag}_end")
    a("v_mov_b32 v11, 0")
    if X("touch"):
        a(f"s_mov_b32 s{sT3}, {YP_OFF}")
        a("v_mov_b32 v21, 0")
        a(f"buffer_load_dword v20, v21, {ws}, s{sT3} offen")
        a("global_load_dword v22, v21, s[46:47] offset:192")
    for s in range(10):
        a("s_barrier")
        if s in (1, 3, 5, 7):
            advance(f"b{s}", False)
    a(f"s_mov_b32 s48, {1 << 20}")
    a.label("L_st_fin")
    advance("fin", True)
    a("s_sub_u32 s48, s48, 1")
    a("s_cbranch_scc1 L_st_done")
    a(f"s_cmp_eq_u32 s{sT2}, 2")
    a("s_cbranch_scc0 L_st_fin")
    a.label("L_st_done")
    a("s_waitcnt lgkmcnt(0)")
    ST(a, "stores")
    a("s_barrier")
    ST(a, "end")
    ST.store(a)
    a("s_endpgm")

def read_list(g):
    ks, half = g & 3, (g >> 2) & 1
    base = half * 32768
    f = vF[g & 1]
    w = lambda b, reg, rd: f"ds_read_b64_tr_b16 {vr(f + 8 + 4 * b + 2 * rd, 2)}, v{reg} offset:{base + 16384 + (16 * ks + 4 * rd) * 256}"
    return [f"ds_read_b128 {vr(f, 4)}, v{vXA + ks} offset:{base}", w(0, vWA, 0), w(0, vWA, 1),
            w(1, vWB, 0), w(1, vWB, 1), f"ds_read_b128 {vr(f + 4, 4)}, v{vXB + ks} offset:{base}"]

def step(a, g, vorient, reads, pre=None):
    f = vF[g & 1]
    def mm(a_, b_):
        x, w = vr(f + 4 * a_, 4), vr(f + 8 + 4 * b_, 4)
        A, B = (x, w) if vorient else (w, x)
        a(f"v_mfma_f32_32x32x16_bf16 {vr(acc(a_, b_), 16)}, {A}, {B}, {vr(acc(a_, b_), 16)}")
    if pre is not None:
        a("s_waitcnt lgkmcnt(0)")
        mm(0, 0)
        mm(0, 1)
        pre()
        for r in reads[0:3]: a(r)
        mm(1, 0)
        for r in reads[3:6]: a(r)
        mm(1, 1)
    else:
        a("s_waitcnt lgkmcnt(3)")
        mm(0, 0)
        for r in reads[0:3]: a(r)
        a("s_waitcnt lgkmcnt(4)")
        mm(0, 1)
        for r in reads[3:6]: a(r)
        a("s_waitcnt lgkmcnt(6)")
        mm(1, 0)
        mm(1, 1)
    a(f"v_mfma_f32_16x16x32_bf16 {vr(vCSA, 4)}, {vr(vSEL, 4)}, {vr(f + 8, 4)}, {vr(vCSA, 4)}")

def mainloop(a, vorient):
    tag = "v" if vorient else "qk"
    ST(a, "setup")
    a("s_barrier")
    ST(a, "B0")
    for r in read_list(0):
        a(r)
    a(f"s_mov_b32 s{sT3}, 5")
    a(".p2align 3")
    a.label(f"L_k1_loop_{tag}")
    def pre7():
        a(f"s_sub_u32 s{sT3}, s{sT3}, 1")
        a(f"s_cmp_eq_u32 s{sT3}, 0")
        a(f"s_cbranch_scc1 L_k1_last_{tag}")
        for r in list(range(vXA, vXA + 4)) + list(range(vXB, vXB + 4)) + [vWA, vWB]:
            a(f"v_xor_b32 v{r}, 0x10000, v{r}")
        a("s_barrier")
    for g in range(8):
        pre = (lambda: a("s_barrier")) if g == 3 else (pre7 if g == 7 else None)
        step(a, g, vorient, read_list(g + 1), pre)
    a(f"s_branch L_k1_loop_{tag}")
    a.label(f"L_k1_last_{tag}")
    f = vF[1]
    for b_ in range(2):
        x, w = vr(f + 4, 4), vr(f + 8 + 4 * b_, 4)
        A, B = (x, w) if vorient else (w, x)
        a(f"v_mfma_f32_32x32x16_bf16 {vr(acc(1, b_), 16)}, {A}, {B}, {vr(acc(1, b_), 16)}")
    a(f"v_mfma_f32_16x16x32_bf16 {vr(vCSA, 4)}, {vr(vSEL, 4)}, {vr(f + 8, 4)}, {vr(vCSA, 4)}")

def stats_exchange(a):
    ST(a, "loopend")
    a(f"s_lshl_b32 s{sT0}, s{sWC}, 6")
    a(f"s_lshl_b32 s{sT1}, s{sWR}, 5")
    a(f"s_add_u32 s{sT0}, s{sT0}, s{sT1}")
    a(f"v_add_u32 v{vT+1}, s{sT0}, v{vLANE}")
    a(f"v_lshlrev_b32 v{vT+1}, 2, v{vT+1}")
    a(f"v_add_u32 v{vT+1}, {ST_CS}, v{vT+1}")
    a("s_mov_b64 exec, 0xffff")
    a("s_nop 4")
    a(f"ds_write_b32 v{vT+1}, v{vCSA}")
    a(f"ds_write_b32 v{vT+1}, v{vCSA+1} offset:64")
    a("s_mov_b64 exec, -1")
    a("s_waitcnt lgkmcnt(0)")
    a("s_barrier")
    ST(a, "e_bar")

def consumer_setup(a):
    a(f"s_lshr_b32 s{sWR}, s{sW}, 1")
    a(f"s_and_b32 s{sWC}, s{sW}, 1")
    a(f"v_lshrrev_b32 v{vT}, 1, v{vTOK}")
    a(f"v_and_b32 v{vT}, 7, v{vT}")
    a(f"s_lshl_b32 s{sT0}, s{sWR}, 6")
    a(f"v_add_u32 v{vT+1}, s{sT0}, v{vTOK}")
    a(f"v_lshlrev_b32 v{vT+1}, 7, v{vT+1}")
    a(f"s_lshl_b32 s{sT0}, s{sWC}, 12")
    a(f"s_xor_b32 s{sT1}, s{sT0}, 4096")
    for ks in range(4):
        a(f"v_add_u32 v{vT+2}, {2 * ks}, v{vH}")
        a(f"v_xor_b32 v{vT+2}, v{vT+2}, v{vT}")
        a(f"v_lshl_add_u32 v{vT+2}, v{vT+2}, 4, v{vT+1}")
        a(f"v_add_u32 v{vXA + ks}, s{sT0}, v{vT+2}")
        a(f"v_add_u32 v{vXB + ks}, s{sT1}, v{vT+2}")
    a(f"s_sub_u32 s{sN5}, s{sNT}, 5")
    a(f"s_cmp_lt_u32 s{sNT}, 5")
    a(f"s_cselect_b32 s{sN5}, s{sNT}, s{sN5}")
    for wc in range(2):
        reg = sT0 + wc
        a(f"s_mov_b32 s{reg}, {hex(0x76543210 + wc * 0x88888888)}")
        for n5 in range(5):
            a(f"s_cmp_eq_u32 s{sN5}, {n5}")
            a(f"s_cselect_b32 s{reg}, {hex(slots.packed(n5, wc))}, s{reg}")
    a(f"s_cmp_eq_u32 s{sWC}, 0")
    a(f"s_cselect_b32 s{sTBL}, s{sT0}, s{sT1}")
    a(f"v_bfe_u32 v{vT}, v{vLANE}, 2, 2")
    a(f"v_lshl_add_u32 v{vT+1}, v{vH}, 3, v{vT}")
    a(f"v_lshlrev_b32 v{vT+1}, 8, v{vT+1}")
    a(f"v_and_b32 v{vT+2}, 1, v{vLANE}")
    a(f"v_lshl_add_u32 v{vT+1}, v{vT+2}, 3, v{vT+1}")
    a(f"v_bfe_u32 v{vT+2}, v{vLANE}, 4, 1")
    a(f"v_bfe_u32 v{vT+3}, v{vLANE}, 1, 1")
    a(f"v_lshl_add_u32 v{vT+2}, v{vT+2}, 1, v{vT+3}")
    a(f"v_lshlrev_b32 v{vT+2}, 2, v{vT+2}")
    a(f"v_lshlrev_b32 v{vT}, 2, v{vT}")
    for (dst, own) in ((vWA, True), (vWB, False)):
        if own:
            a(f"s_lshl_b32 s{sT0}, s{sWR}, 4")
        else:
            a(f"s_xor_b32 s{sT0}, s{sWR}, 1")
            a(f"s_lshl_b32 s{sT0}, s{sT0}, 4")
        a(f"s_lshr_b32 s{sT0}, s{sTBL}, s{sT0}")
        a(f"v_lshrrev_b32 v{vT+3}, v{vT+2}, s{sT0}") if False else None
        a(f"v_mov_b32 v{vT+3}, s{sT0}")
        a(f"v_lshrrev_b32 v{vT+3}, v{vT+2}, v{vT+3}")
        a(f"v_and_b32 v{vT+3}, 15, v{vT+3}")
        a(f"v_xor_b32 v{vT+3}, v{vT+3}, v{vT}")
        a(f"v_lshl_add_u32 v{dst}, v{vT+3}, 4, v{vT+1}")
    a(f"v_and_b32 v{vT}, 15, v{vLANE}")
    a(f"v_bfe_u32 v{vT+1}, v{vLANE}, 4, 1")
    a(f"v_cmp_eq_u32 vcc, v{vT}, v{vT+1}")
    a(f"v_mov_b32 v{vT+2}, 0x3f803f80")
    a("s_nop 0")
    a(f"v_cndmask_b32 v{vSEL}, 0, v{vT+2}, vcc")
    for r in range(1, 4):
        a(f"v_mov_b32 v{vSEL + r}, v{vSEL}")
    for r in range(4):
        a(f"v_mov_b32 v{vCSA + r}, 0")
    for r in range(64):
        a(f"v_mov_b32 v{vACC + r}, 0")

def qk_path(a):
    a.label("L_k1_qk")
    a(f"s_mov_b32 s{sSEC}, {KV_OFF}")
    a(f"s_mov_b32 s{sTS}, 2560")
    a(f"s_mov_b32 s{sSCALE}, {hex(f2u(1.0))}")
    a(f"s_sub_u32 s{sT0}, s{sNT}, 5")
    a(f"s_cmp_lt_u32 s{sNT}, 5")
    a(f"s_cselect_b32 s{sSEC}, {QB_OFF}, s{sSEC}")
    a(f"s_cselect_b32 s{sTS}, 1280, s{sTS}")
    a(f"s_cselect_b32 s{sSCALE}, {hex(f2u(QSCALE))}, s{sSCALE}")
    a(f"s_cselect_b32 s{sT0}, s{sNT}, s{sT0}")
    a(f"s_lshl_b32 s{sHS}, s{sTS}, 6")
    a(f"s_lshl_b32 s{sT1}, s{sMT}, 2")
    a(f"s_lshl_b32 s{sT2}, s{sWR}, 1")
    a(f"s_add_u32 s{sT1}, s{sT1}, s{sT2}")
    a(f"s_add_u32 s{sT2}, s{sT1}, s{sWC}")
    a(f"s_mul_i32 s{sTA}, s{sT2}, s{sTS}")
    a(f"s_add_u32 s{sTA}, s{sTA}, s{sSEC}")
    a(f"s_xor_b32 s{sT3}, s{sWC}, 1")
    a(f"s_add_u32 s{sT2}, s{sT1}, s{sT3}")
    a(f"s_mul_i32 s{sTB}, s{sT2}, s{sTS}")
    a(f"s_add_u32 s{sTB}, s{sTB}, s{sSEC}")
    for k_, (ct, g) in enumerate(((0, 0), (0, 2), (1, 0), (1, 2), (1, 3))):
        o = vOFF + k_
        a(f"s_bfe_u32 s{sT1}, s{sTBL}, {hex((4 << 16) | (16 * ct + 4 * g))}")
        a(f"s_lshl_b32 s{sT2}, s{sN5}, 4")
        a(f"s_add_u32 s{sT1}, s{sT1}, s{sT2}")
        a(f"s_lshl_b32 s{sT1}, s{sT1}, 1")
        a(f"v_add_u32 v{vT}, s{sT1}, v{vH}")
        a(f"v_mul_u32_u24 v{vT+1}, 52429, v{vT}")
        a(f"v_lshrrev_b32 v{vT+1}, 18, v{vT+1}")
        a(f"v_mul_u32_u24 v{vT+2}, 5, v{vT+1}")
        a(f"v_sub_u32 v{vT+2}, v{vT}, v{vT+2}")
        a(f"v_and_b32 v{vT+3}, 1, v{vT+1}")
        a(f"v_sub_u32 v{vT+2}, v{vT+2}, v{vT+3}")
        a(f"v_mul_lo_u32 v{o}, v{vT+1}, s{sHS}")
        a(f"v_and_b32 v{vT+1}, 1, v{vT+2}")
        a(f"v_lshlrev_b32 v{vT+1}, 9, v{vT+1}")
        a(f"v_bfe_u32 v{vT+3}, v{vT+2}, 1, 1")
        a(f"v_lshl_add_u32 v{vT+1}, v{vT+3}, 3, v{vT+1}")
        a(f"v_lshl_add_u32 v{vT+1}, v{vTOK}, 4, v{vT+1}")
        a(f"v_cmp_lt_u32 vcc, 3, v{vT+2}")
        a(f"v_lshlrev_b32 v{vT+3}, 3, v{vTOK}")
        a(f"v_add_u32 v{vT+3}, 1024, v{vT+3}")
        a(f"v_cndmask_b32 v{vT+1}, v{vT+1}, v{vT+3}, vcc")
        a(f"v_add_u32 v{o}, v{o}, v{vT+1}")
    mainloop(a, False)
    stats_exchange(a)
    vNM, vRS, vC = vE, vE + 2, vE + 4
    a(f"s_lshl_b32 s{sT0}, s{sWR}, 6")
    a(f"v_add_u32 v{vT}, s{sT0}, v{vTOK}")
    a(f"v_lshlrev_b32 v{vT}, 2, v{vT}")
    a(f"s_lshl_b32 s{sT1}, s{sWC}, 7")
    a(f"v_add_u32 v{vT+1}, s{sT1}, v{vT}")
    a(f"s_xor_b32 s{sT1}, s{sT1}, 128")
    a(f"v_add_u32 v{vT+2}, s{sT1}, v{vT}")
    a(f"v_add_u32 v{vT+1}, {ST_NM}, v{vT+1}")
    a(f"v_add_u32 v{vT+2}, {ST_NM}, v{vT+2}")
    a(f"ds_read_b32 v{vNM}, v{vT+1}")
    a(f"ds_read_b32 v{vRS}, v{vT+1} offset:512")
    a(f"ds_read_b32 v{vNM+1}, v{vT+2}")
    a(f"ds_read_b32 v{vRS+1}, v{vT+2} offset:512")
    a(f"s_lshl_b32 s{sT0}, s{sWC}, 8")
    a(f"v_lshlrev_b32 v{vT}, 4, v{vH}")
    a(f"v_add_u32 v{vT}, s{sT0}, v{vT}")
    a(f"s_lshl_b32 s{sT1}, s{sWR}, 7")
    a(f"v_add_u32 v{vT+1}, s{sT1}, v{vT}")
    a(f"s_xor_b32 s{sT1}, s{sT1}, 128")
    a(f"v_add_u32 v{vT+2}, s{sT1}, v{vT}")
    a(f"v_add_u32 v{vT+1}, {ST_CS}, v{vT+1}")
    a(f"v_add_u32 v{vT+2}, {ST_CS}, v{vT+2}")
    for b_ in range(2):
        for g in range(4):
            a(f"ds_read_b128 {vr(vC + 16 * b_ + 4 * g, 4)}, v{vT + 1 + b_} offset:{32 * g}")
    a("s_waitcnt lgkmcnt(0)")
    ST(a, "e_lds")
    a(f"v_mul_f32 v{vRS}, s{sSCALE}, v{vRS}")
    a(f"v_mul_f32 v{vRS+1}, s{sSCALE}, v{vRS+1}")
    ws = f"s[{SRD_WS}:{SRD_WS+3}]"
    def finish(wr):
        for a_ in range(2):
            a(f"v_mov_b32 v{vT}, v{vNM + a_}")
            a(f"v_mov_b32 v{vT+1}, v{vNM + a_}")
            a(f"v_mov_b32 v{vT+2}, v{vRS + a_}")
            a(f"v_mov_b32 v{vT+3}, v{vRS + a_}")
            so = f"s{sTA if a_ == 0 else sTB}"
            for b_ in range(2):
                A = acc(a_, b_)
                for p in range(8):
                    a(f"v_pk_fma_f32 {vr(A + 2 * p, 2)}, {vr(vC + 16 * b_ + 2 * p, 2)}, {vr(vT, 2)}, {vr(A + 2 * p, 2)}")
                for p in range(8):
                    a(f"v_pk_mul_f32 {vr(A + 2 * p, 2)}, {vr(A + 2 * p, 2)}, {vr(vT + 2, 2)}")
                for p in range(8):
                    a(f"v_cvt_pk_bf16_f32 v{A + p}, v{A + 2 * p}, v{A + 2 * p + 1}")
                if (wr ^ b_) == 0:
                    a(f"buffer_store_dwordx4 {vr(A, 4)}, v{vOFF}, {ws}, {so} offen{STF}")
                    a(f"buffer_store_dwordx4 {vr(A + 4, 4)}, v{vOFF + 1}, {ws}, {so} offen{STF}")
                else:
                    a(f"buffer_store_dwordx4 {vr(A, 4)}, v{vOFF + 2}, {ws}, {so} offen{STF}")
                    a(f"buffer_store_dwordx2 {vr(A + 4, 2)}, v{vOFF + 3}, {ws}, {so} offen{STF}")
                    a(f"buffer_store_dwordx2 {vr(A + 6, 2)}, v{vOFF + 4}, {ws}, {so} offen{STF}")
    a(f"s_cmp_eq_u32 s{sWR}, 0")
    a("s_cbranch_scc0 L_k1_qk_wr1")
    finish(0)
    a("s_branch L_k1_qk_done")
    a.label("L_k1_qk_wr1")
    finish(1)
    a.label("L_k1_qk_done")
    ST(a, "stores")
    if ST.on:
        a("s_waitcnt vmcnt(0)")
    ST(a, "end")
    ST.store(a)
    a("s_endpgm")

def v_path(a):
    a.label("L_k1_v")
    a(f"s_lshl_b32 s{sT1}, s{sMT}, 2")
    a(f"s_lshl_b32 s{sT2}, s{sWR}, 1")
    a(f"s_add_u32 s{sT1}, s{sT1}, s{sT2}")
    a(f"s_add_u32 s{sT2}, s{sT1}, s{sWC}")
    a(f"s_mul_i32 s{sTA}, s{sT2}, 2560")
    a(f"s_add_u32 s{sTA}, s{sTA}, {KV_OFF + 1280}")
    a(f"s_xor_b32 s{sT3}, s{sWC}, 1")
    a(f"s_add_u32 s{sT2}, s{sT1}, s{sT3}")
    a(f"s_mul_i32 s{sTB}, s{sT2}, 2560")
    a(f"s_add_u32 s{sTB}, s{sTB}, {KV_OFF + 1280}")
    a(f"s_sub_u32 s{sT0}, s{sNT}, 10")
    a(f"s_lshl_b32 s{sT0}, s{sT0}, 7")
    a(f"s_lshl_b32 s{sT1}, s{sWC}, 6")
    a(f"s_add_u32 s{sT0}, s{sT0}, s{sT1}")
    for b_ in range(2):
        if b_ == 0:
            a(f"s_lshl_b32 s{sT1}, s{sWR}, 5")
        else:
            a(f"s_xor_b32 s{sT1}, s{sWR}, 1")
            a(f"s_lshl_b32 s{sT1}, s{sT1}, 5")
        a(f"s_add_u32 s{sT1}, s{sT1}, s{sT0}")
        a(f"v_add_u32 v{vT}, s{sT1}, v{vTOK}")
        a(f"v_mul_u32_u24 v{vT+1}, 52429, v{vT}")
        a(f"v_lshrrev_b32 v{vT+1}, 20, v{vT+1}")
        a(f"v_mul_u32_u24 v{vT+2}, 20, v{vT+1}")
        a(f"v_sub_u32 v{vT+2}, v{vT}, v{vT+2}")
        a(f"s_mov_b32 s{sT2}, {64 * 2560}")
        a(f"v_mul_lo_u32 v{vOFF + b_}, v{vT+1}, s{sT2}")
        a(f"v_lshlrev_b32 v{vT+2}, 4, v{vT+2}")
        a(f"v_mul_u32_u24 v{vT+3}, 320, v{vH}")
        a(f"v_add3_u32 v{vOFF + b_}, v{vOFF + b_}, v{vT+2}, v{vT+3}")
    mainloop(a, True)
    stats_exchange(a)
    vCL, vNM, vRS = vE, vE + 4, vE + 20
    a(f"s_lshl_b32 s{sT0}, s{sWC}, 6")
    a(f"v_add_u32 v{vT}, s{sT0}, v{vTOK}")
    a(f"v_lshlrev_b32 v{vT}, 2, v{vT}")
    a(f"s_lshl_b32 s{sT1}, s{sWR}, 7")
    a(f"v_add_u32 v{vT+1}, s{sT1}, v{vT}")
    a(f"s_xor_b32 s{sT1}, s{sT1}, 128")
    a(f"v_add_u32 v{vT+2}, s{sT1}, v{vT}")
    a(f"v_add_u32 v{vT+1}, {ST_CS}, v{vT+1}")
    a(f"v_add_u32 v{vT+2}, {ST_CS}, v{vT+2}")
    a(f"ds_read_b32 v{vCL}, v{vT+1}")
    a(f"ds_read_b32 v{vCL+2}, v{vT+2}")
    a("s_waitcnt lgkmcnt(0)")
    a(f"v_mov_b32 v{vCL+1}, v{vCL}")
    a(f"v_mov_b32 v{vCL+3}, v{vCL+2}")
    ws = f"s[{SRD_WS}:{SRD_WS+3}]"
    for a_ in range(2):
        a(f"s_lshl_b32 s{sT0}, s{sWR}, 8")
        a(f"s_lshl_b32 s{sT1}, s{sWC}, 7")
        if a_ == 1:
            a(f"s_xor_b32 s{sT1}, s{sT1}, 128")
        a(f"s_add_u32 s{sT0}, s{sT0}, s{sT1}")
        a(f"v_lshlrev_b32 v{vT}, 4, v{vH}")
        a(f"v_add_u32 v{vT}, s{sT0}, v{vT}")
        a(f"v_add_u32 v{vT}, {ST_NM}, v{vT}")
        for g in range(4):
            a(f"ds_read_b128 {vr(vNM + 4 * g, 4)}, v{vT} offset:{32 * g}")
            a(f"ds_read_b128 {vr(vRS + 4 * g, 4)}, v{vT} offset:{512 + 32 * g}")
        a("s_waitcnt lgkmcnt(0)")
        for b_ in range(2):
            A = acc(a_, b_)
            for p in range(8):
                a(f"v_pk_fma_f32 {vr(A + 2 * p, 2)}, {vr(vNM + 2 * p, 2)}, {vr(vCL + 2 * b_, 2)}, {vr(A + 2 * p, 2)}")
            for p in range(8):
                a(f"v_pk_mul_f32 {vr(A + 2 * p, 2)}, {vr(A + 2 * p, 2)}, {vr(vRS + 2 * p, 2)}")
            for p in range(8):
                a(f"v_cvt_pk_bf16_f32 v{A + p}, v{A + 2 * p}, v{A + 2 * p + 1}")
            for t in range(2):
                a(f"buffer_store_dwordx4 {vr(A + 4 * t, 4)}, v{vOFF + b_}, {ws}, s{sTA if a_ == 0 else sTB} offen offset:{640 * t}{STF}")
    ST(a, "stores")
    if ST.on:
        a("s_waitcnt vmcnt(0)")
    ST(a, "end")
    ST.store(a)
    a("s_endpgm")

L_KEYS, L_WR = 51200, 52224

def aux(a):
    from k2moe import repack_setup, repack_request, repack_finish
    a.label("L_k1_aux")
    a(f"s_cmp_ge_u32 s{sW}, 8")
    a("s_cbranch_scc1 L_k1_exit")
    vX, vWr = (16, 56), 96
    vA, vAW = 8, 9
    s1, s2, s3, sw = (10, 136), (11, 137), (12, 138), 13
    SRD_R = 40
    a("s_load_dwordx2 s[6:7], s[0:1], 16")
    srd(a, SRD_R, 38, D * 2)
    a(f"v_lshrrev_b32 v{vT}, 3, v{vLANE}")
    a(f"s_lshl_b32 s{sT0}, s{sW}, 4")
    a(f"s_add_u32 s{sT0}, s{sT0}, s{sROW0}")
    a(f"v_add_u32 v14, s{sT0}, v{vT}")
    a(f"v_and_b32 v15, 7, v{vLANE}")
    a(f"v_lshlrev_b32 v{vAW}, 4, v15")
    a(f"v_mul_u32_u24 v{vA}, 1280, v14")
    a(f"v_add_u32 v{vA}, v{vA}, v{vAW}")
    if X("touch"):
        a("s_load_dwordx2 s[46:47], s[0:1], 72")
        a(f"s_mov_b32 s{sT1}, {YP_OFF}")
        a(f"v_mov_b32 v140, 0")
        a(f"buffer_load_dword v141, v140, s[{SRD_WS}:{SRD_WS+3}], s{sT1} offen")
        a("s_waitcnt lgkmcnt(0)")
        a("global_load_dword v142, v140, s[46:47] offset:192")
    a(f"s_mov_b32 s{sT1}, {8 * 1280}")
    a(f"s_lshl_b32 s{sT2}, s{sW}, 11")
    a(f"s_add_u32 s{sT2}, s{sT2}, {L_WR}")
    a(f"s_mov_b32 m0, s{sT2}")
    a(f"v_lshlrev_b32 v146, 4, v{vLANE}")
    a(f"buffer_load_dwordx4 v146, s[{SRD_R}:{SRD_R+3}], 0 offen lds")
    a(f"buffer_load_dwordx4 v146, s[{SRD_R}:{SRD_R+3}], 0 offen offset:1024 lds")
    a(f"v_add_u32 v{vAW}, s{sT2}, v{vAW}")
    for g in range(2):
        for i in range(10):
            a(f"buffer_load_dwordx4 {vr(vX[g] + 4 * i, 4)}, v{vA}, s[{SRD_X}:{SRD_X+3}], {0 if g == 0 else f's{sT1}'} offen offset:{i * 128}")
    a("s_waitcnt vmcnt(20)")
    for i in range(10):
        a(f"ds_read_b128 {vr(vWr + 4 * i, 4)}, v{vAW} offset:{i * 128}")
    EARLY_REP = LOCAL_STATS and os.environ.get("K1_EARLYREP", "0") == "1"
    if EARLY_REP:
        a("s_waitcnt lgkmcnt(0)")
        repack_setup(a, sMT)
        repack_request(a, sW, 0)
    for r in s1 + s2 + s3 + (sw,):
        a(f"v_mov_b32 v{r}, 0")
    a(f"v_mov_b32 v139, 0x3f803f80")
    ST(a, "setup")
    extra = 5 if EARLY_REP else 0
    for g in range(2):
        a(f"s_waitcnt vmcnt({(10 if g == 0 else 0) + extra})" + (" lgkmcnt(0)" if g == 0 else ""))
        if g == 0:
            ST(a, "B0")
        for r in range(40):
            a(f"v_dot2c_f32_bf16 v{s1[g]}, v{vX[g] + r}, v139")
            a(f"v_dot2c_f32_bf16 v{s2[g]}, v{vX[g] + r}, v{vX[g] + r}")
            a(f"v_dot2c_f32_bf16 v{s3[g]}, v{vX[g] + r}, v{vWr + r}")
            if g == 0:
                a(f"v_dot2c_f32_bf16 v{sw}, v{vWr + r}, v139")
    ST(a, "loopend")
    a("s_nop 3")
    for ctrl in ("quad_perm:[1,0,3,2]", "quad_perm:[2,3,0,1]", "row_half_mirror"):
        for r in s1 + s2 + s3 + (sw,):
            a(f"v_add_f32_dpp v{vT+2}, v{r}, v{r} {ctrl} row_mask:0xf bank_mask:0xf")
            a("s_nop 0")
            a(f"v_mov_b32 v{r}, v{vT+2}")
        a("s_nop 1")
    a(f"v_cmp_eq_u32 vcc, 1, v15")
    a(f"v_add_u32 v{vT}, 8, v14")
    a("s_nop 0")
    for pair in (s1, s2, s3):
        a(f"v_cndmask_b32 v{pair[0]}, v{pair[0]}, v{pair[1]}, vcc")
    a(f"v_cndmask_b32 v{vT}, v14, v{vT}, vcc")
    a(f"v_mov_b32 v{vT+1}, v15")
    s1, s2, s3 = s1[0], s2[0], s3[0]
    a(f"v_mul_f32 v{s1}, {hex(f2u(1.0 / D))}, v{s1}")
    a(f"v_mul_f32 v{s2}, {hex(f2u(1.0 / D))}, v{s2}")
    a(f"v_fma_f32 v{s2}, -v{s1}, v{s1}, v{s2}")
    a(f"v_max_f32 v{s2}, 0, v{s2}")
    a(f"v_add_f32 v{s2}, {hex(f2u(1e-5))}, v{s2}")
    a(f"v_rsq_f32 v{s2}, v{s2}")
    a(f"v_fma_f32 v{s3}, -v{s1}, v{sw}, v{s3}")
    a(f"v_mul_f32 v{s3}, v{s3}, v{s2}")
    ws = f"s[{SRD_WS}:{SRD_WS+3}]"
    a(f"v_ashrrev_i32 v{vT+2}, 31, v{s3}")
    a(f"v_or_b32 v{vT+2}, 0x80000000, v{vT+2}")
    a(f"v_xor_b32 v{vT+2}, v{vT+2}, v{s3}")
    a(f"v_and_b32 v{vT+2}, 0xfffff800, v{vT+2}")
    a(f"v_or_b32 v{vT+2}, v{vT+2}, v{vT}")
    a(f"v_mov_b32 v14, v{s1}")
    a(f"v_mov_b32 v15, v{s2}")
    a(f"v_lshlrev_b32 v{vA}, 3, v{vT}")
    a(f"v_lshlrev_b32 v{vAW}, 2, v{vT}")
    a(f"v_and_b32 v{vT+3}, 127, v{vT}")
    a(f"v_lshlrev_b32 v{vT+3}, 2, v{vT+3}")
    a(f"v_add_u32 v{vT+3}, {L_KEYS}, v{vT+3}")
    a(f"v_cmp_gt_u32 vcc, 2, v{vT+1}")
    a(f"s_mov_b32 s{sT0}, {ST_OFF}")
    a(f"s_mov_b32 s{sT1}, {R_OFF}")
    a("s_and_saveexec_b64 s[44:45], vcc")
    a(f"buffer_store_dwordx2 v[14:15], v{vA}, {ws}, s{sT0} offen{'' if LOCAL_STATS else ' sc1'}")
    a(f"buffer_store_dword v{s3}, v{vAW}, {ws}, s{sT1} offen")
    a(f"ds_write_b32 v{vT+3}, v{vT+2}")
    if LOCAL_STATS:
        a("s_waitcnt lgkmcnt(0)")
    else:
        a("s_load_dwordx2 s[46:47], s[0:1], 72")
        a("s_waitcnt vmcnt(0) lgkmcnt(0)")
    a("s_mov_b64 exec, s[44:45]")
    a("s_barrier")
    a(f"s_cmp_lg_u32 s{sW}, 0")
    a("s_cbranch_scc1 L_k1_repack")
    if not LOCAL_STATS:
        a(f"s_lshl_b32 s{sT0}, s{sMT}, 2")
        a(f"v_mov_b32 v16, s{sT0}")
        a("v_mov_b32 v17, 1")
        a("s_mov_b64 exec, 1")
        a("global_store_dword v16, v17, s[46:47] sc1")
        a("s_mov_b64 exec, -1")
    ST(a, "e_lds")
    hi, lo, oh, ol, adr = 16, 17, 18, 19, 20
    a(f"v_lshlrev_b32 v{adr}, 2, v{vLANE}")
    a(f"ds_read_b32 v{oh}, v{adr} offset:{L_KEYS}")
    a(f"ds_read_b32 v{ol}, v{adr} offset:{L_KEYS + 256}")
    a("s_waitcnt lgkmcnt(0)")
    a(f"v_max_u32 v{hi}, v{oh}, v{ol}")
    a(f"v_min_u32 v{lo}, v{oh}, v{ol}")
    for x in (1, 2, 4, 8, 16, 32):
        a(f"v_xor_b32 v{adr}, {x}, v{vLANE}")
        a(f"v_lshlrev_b32 v{adr}, 2, v{adr}")
        a(f"ds_bpermute_b32 v{oh}, v{adr}, v{hi}")
        a(f"ds_bpermute_b32 v{ol}, v{adr}, v{lo}")
        a("s_waitcnt lgkmcnt(0)")
        a(f"v_max_u32 v{lo}, v{lo}, v{ol}")
        a(f"v_min_u32 v{ol}, v{hi}, v{oh}")
        a(f"v_max_u32 v{hi}, v{hi}, v{oh}")
        a(f"v_max_u32 v{lo}, v{lo}, v{ol}")
    a(f"v_mov_b32 v{oh}, v{hi}")
    a(f"v_mov_b32 v{ol}, v{lo}")
    a(f"s_lshl_b32 s{sT0}, s{sMT}, 3")
    a(f"s_add_u32 s{sT0}, s{sT0}, {CAND_OFF}")
    a(f"v_mov_b32 v{adr}, 0")
    a(f"v_cmp_eq_u32 vcc, 0, v{vLANE}")
    a("s_nop 1")
    a("s_and_saveexec_b64 s[44:45], vcc")
    a(f"buffer_store_dwordx2 v[{oh}:{ol}], v{adr}, {ws}, s{sT0} offen")
    a("s_mov_b64 exec, -1")
    a(f"s_cmp_lg_u32 s{sMT}, 0")
    a("s_cbranch_scc1 L_k1_repack")
    a(f"v_lshlrev_b32 v{adr}, 8, v{vLANE}")
    a(f"v_mov_b32 v{oh}, 0")
    a(f"s_mov_b32 s{sT0}, {CNT_OFF}")
    a(f"v_cmp_gt_u32 vcc, {NCNT}, v{vLANE}")
    a("s_nop 1")
    a("s_mov_b64 exec, vcc")
    a(f"buffer_store_dword v{oh}, v{adr}, {ws}, s{sT0} offen")
    a("s_mov_b64 exec, -1")
    ST(a, "stores")
    ST.store(a)
    a.label("L_k1_repack")
    if not EARLY_REP:
        repack_setup(a, sMT)
        repack_request(a, sW, 0)
    a(f"s_cmp_lt_u32 s{sW}, 6")
    a("s_cbranch_scc1 L_rep_loaded")
    repack_request(a, sW, 1)
    a.label("L_rep_loaded")
    repack_finish(a, sW, "L_k1_exit")

def emit(a):
    entry(a)
    consumer_setup(a)
    a(f"s_cmp_ge_u32 s{sNT}, 10")
    a("s_cbranch_scc1 L_k1_v")
    qk_path(a)
    v_path(a)
    loader(a)
    stat_waves(a)
    aux(a)
    a.label("L_k1_exit")
    a("s_endpgm")
    a.label("L_k1_end")
```

```python
from common import *
from k2moe import top2_scalar
import os

NAME = "attn_proj_kernel"
LDS = 163840
VGPRS = 168
BLOCK = 768
GRID = 256
NMOE = 96

def X(flag):
    return flag in os.environ.get("K2_EXP", "").split(",")

ST = StampsLane("k2", 20, 8, 164)

L_RING = 0
L_R = 61440
L_WG, L_WU, L_WD = L_R, L_R + 20480, L_R + 40960
L_XG, L_XU = L_R + 61440, L_R + 61440 + 3840
L_U, L_H = L_R + 69120, L_R + 69120 + 1024
L_MISC = 143360
F_LAND, F_FREE, F_U, F_H, F_MOE, F_ALL = L_MISC, L_MISC + 4, L_MISC + 8, L_MISC + 12, L_MISC + 16, L_MISC + 20
F_RT = L_MISC + 24
F_FREEC = L_MISC + 64
L_RED, L_Y = L_MISC + 1024, L_MISC + 1024 + 3840
SPIN_MAX = 1 << 20
EARLY_B0 = os.environ.get("K2_EARLYB0", "1") == "1"
SPACE = int(os.environ.get("K2_SPACE", "0"))
HPRIO = int(os.environ.get("K2_HPRIO", "3"))
LOWM = int(os.environ.get("K2_LOWM", "0"))

vLANE16, vT0, vT1 = 1, 2, 3
vKA, vKB, vV, vFL = 4, 5, 6, 7
vQ1, vQ2 = 10, 20
vFLAG, vONE = 16, 17
vS = (32, 48)
vO = 64
vP = 80
vKAf = (88, 92)
vKBf = (24, 28)
vVf = ((100, 104), (108, 112))
vTMP = 116

sW, sHEAD, sKV, sQ, sOB, sOM = 20, 21, 22, 23, 24, 25
sVMASK = 26
sLO = 28
sT, sT2, sQB = 30, 31, 32
SRD_WS = 8
WS = f"s[{SRD_WS}:{SRD_WS+3}]"

def lds_tile(t):
    return ((t >> 3) % 3) * 20480 + (t & 7) * 2560

def spin(a, name, vaddr, vtmp, stmp, target, cnt, sleep=1):
    a(f"s_mov_b32 s{cnt}, {SPIN_MAX}")
    a.label(f"{name}_loop")
    a(f"ds_read_b32 v{vtmp}, v{vaddr}")
    a("s_waitcnt lgkmcnt(0)")
    a(f"v_readfirstlane_b32 s{stmp}, v{vtmp}")
    a(f"s_sub_u32 s{cnt}, s{cnt}, 1")
    a(f"s_cbranch_scc1 {name}_done")
    a(f"s_cmp_ge_u32 s{stmp}, {target}")
    a(f"s_cbranch_scc1 {name}_done")
    a(f"s_sleep {sleep}")
    a(f"s_branch {name}_loop")
    a.label(f"{name}_done")

def mfma_s1(a, dst, buf):
    a(f"v_mfma_f32_32x32x16_bf16 {vr(dst, 16)}, {vr(vKAf[buf], 4)}, {vr(vQ1, 4)}, 0")
def mfma_s2(a, dst, buf):
    if X("nos2"): return
    if not X("s2x16"):
        a(f"v_mfma_f32_32x32x8bf16_1k {vr(dst, 16)}, {vr(vKBf[buf], 2)}, {vr(vQ2, 2)}, {vr(dst, 16)}")
    else:
        a(f"v_mfma_f32_32x32x16_bf16 {vr(dst, 16)}, {vr(vKBf[buf], 4)}, {vr(vQ2, 4)}, {vr(dst, 16)}")
def mfma_pv(a, buf, t):
    a(f"v_mfma_f32_32x32x16_bf16 {vr(vO, 16)}, {vr(vVf[buf][t], 4)}, {vr(vP + 4 * t, 4)}, {vr(vO, 16)}")

def read_ka(a, t, buf):
    a(f"ds_read_b128 {vr(vKAf[buf], 4)}, v{vKA} offset:{lds_tile(t)}")
def read_kb(a, t, buf):
    a(f"ds_read_b64 {vr(vKBf[buf], 2)}, v{vKB} offset:{lds_tile(t)}")
def read_v(a, t, part):
    a(f"ds_read_b128 {vr(vVf[t & 1][part], 4)}, v{vV} offset:{lds_tile(t) + 640 * part}")

def tile_body(a, t):
    sc, sn = vS[t & 1], vS[(t + 1) & 1]
    last = t == 63
    ex = lambda r: a(f"v_exp_f32 v{sc + r}, v{sc + r}")
    cv = lambda i: a(f"v_cvt_pk_bf16_f32 v{vP + i}, v{sc + 2 * i}, v{sc + 2 * i + 1}")
    ex(0)
    a("s_setprio 1")
    ex(1)
    if t > 0:
        mfma_pv(a, (t - 1) & 1, 1)
    for r in range(2, 6):
        ex(r)
    if not last:
        mfma_s1(a, sn, (t + 1) & 1)
    ex(6); ex(7)
    for i in range(4):
        cv(i)
    if not X("neworder"):
        if not last:
            mfma_s2(a, sn, (t + 1) & 1)
        for r in range(8, 12):
            ex(r)
        mfma_pv(a, t & 1, 0)
        for r in range(12, 16):
            ex(r)
    else:
        ex(8); ex(9)
        mfma_pv(a, t & 1, 0)
        for r in range(10, 14):
            ex(r)
        if not last:
            mfma_s2(a, sn, (t + 1) & 1)
        ex(14); ex(15)
    for i in range(4, 8):
        cv(i)
    check = t % 8 == 5 and t < 56
    if check:
        a("s_waitcnt lgkmcnt(0)")
        a(f"v_readfirstlane_b32 s{sT}, v{vFLAG}")
        a("s_setprio 0")
    else:
        a("s_setprio 0")
        a("s_waitcnt lgkmcnt(0)")
    if check:
        c = t // 8 + 1
        a("s_nop 0")
        a(f"s_cmp_ge_u32 s{sT}, {c}")
        a(f"s_cbranch_scc1 L_land_{c}_skip")
        if ST.on:
            a("s_memtime s[90:91]")
            a("s_waitcnt lgkmcnt(0)")
        spin(a, f"L_land_{c}", vFL, vFLAG, sT, c, sT2)
        if ST.on:
            a("s_memtime s[88:89]")
            a("s_waitcnt lgkmcnt(0)")
            a("s_sub_u32 s88, s88, s90")
            a("s_add_u32 s87, s87, s88")
        a.label(f"L_land_{c}_skip")
    if t % 8 == 7 and t < 40:
        a("s_mov_b64 exec, 1")
        a(f"ds_add_u32 v{vFL}, v{vONE} offset:{F_FREEC - F_LAND + 4 * (t // 8)}")
        a("s_mov_b64 exec, -1")
    if t + 3 <= 63:
        if not X("noka"): read_ka(a, t + 3, (t + 1) & 1)
        a(f"s_mov_b64 exec, s[{sLO}:{sLO+1}]")
        if not X("nokb"): read_kb(a, t + 3, (t + 1) & 1)
    if t + 1 <= 63:
        a(f"s_mov_b64 exec, s[{sVMASK}:{sVMASK+1}]")
        if t + 2 <= 63 and not X("nov0"):
            read_v(a, t + 2, 0)
        if not X("nov1"): read_v(a, t + 1, 1)
        a("s_mov_b64 exec, -1")
    if t % 8 == 4 and t < 56:
        a(f"ds_read_b32 v{vFLAG}, v{vFL}")
    if t == 62:
        a("s_nop 1")
    if last:
        a("s_nop 1")
        mfma_pv(a, t & 1, 1)

def row_max(a, s, dst, tmp):
    a(f"v_max3_f32 v{dst}, v{s}, v{s+1}, v{s+2}")
    for r in range(3, 15, 2):
        a(f"v_max3_f32 v{dst}, v{dst}, v{s+r}, v{s+r+1}")
    a(f"v_max_f32 v{dst}, v{dst}, v{s+15}")
    a(f"v_mov_b32 v{tmp}, v{dst}")
    a("s_nop 1")
    a(f"v_permlane32_swap_b32 v{dst}, v{tmp}")
    a("s_nop 1")
    a(f"v_max_f32 v{dst}, v{dst}, v{tmp}")

def entry(a):
    kernel_header(a, NAME)
    ST(a, "entry")
    a(f"s_cmp_ge_u32 s2, {GRID}")
    a("s_cbranch_scc1 L_k2_exit")
    a("s_load_dwordx2 s[4:5], s[0:1], 80")
    a(f"v_lshrrev_b32 v{vT0}, 6, v0")
    a(f"v_and_b32 v{vT1}, 63, v0")
    a(f"v_readfirstlane_b32 s{sW}, v{vT0}")
    a("s_and_b32 s12, s2, 7")
    a("s_lshl_b32 s12, s12, 2")
    a("s_bfe_u32 s13, s2, 0x20003")
    a(f"s_or_b32 s{sHEAD}, s12, s13")
    a(f"s_lshr_b32 s{sQB}, s2, 5")
    a(f"s_mul_i32 s{sKV}, s{sHEAD}, {64 * 2560}")
    a(f"s_add_u32 s{sKV}, s{sKV}, {KV_OFF}")
    a(f"v_lshlrev_b32 v{vLANE16}, 4, v{vT1}")
    a(f"s_cmp_ge_u32 s{sW}, 8")
    a("s_cbranch_scc1 L_k2_helper")

def attention(a):
    a(f"s_lshl_b32 s14, s{sQB}, 3")
    a(f"s_add_u32 s14, s14, s{sW}")
    a(f"s_lshl_b32 s15, s{sHEAD}, 6")
    a("s_add_u32 s15, s15, s14")
    a(f"s_mul_i32 s{sQ}, s15, 1280")
    if QB_OFF:
        a(f"s_add_u32 s{sQ}, s{sQ}, {QB_OFF}")
    a(f"s_mul_i32 s16, s{sW}, 2560")
    a(f"s_add_u32 s17, s{sKV}, s16")
    a(f"s_mov_b32 s{sLO}, -1")
    a(f"s_mov_b32 s{sLO+1}, 0")
    a(f"v_and_b32 v{vT0}, 31, v{vT1}")
    a(f"v_lshlrev_b32 v{vTMP}, 3, v{vT0}")
    for r in range(4):
        a(f"v_mov_b32 v{vQ2 + r}, 0")
    a("s_waitcnt lgkmcnt(0)")
    srd(a, SRD_WS, 4, WS_SRD)
    a("s_mov_b32 m0, s16")
    a("s_nop 0")
    a(f"buffer_load_dwordx4 v{vLANE16}, {WS}, s17 offen lds")
    a(f"buffer_load_dwordx4 v{vLANE16}, {WS}, s17 offen offset:1024 lds")
    a(f"s_mov_b64 exec, s[{sLO}:{sLO+1}]")
    a(f"buffer_load_dwordx4 v{vLANE16}, {WS}, s17 offen offset:2048 lds")
    a(f"buffer_load_dwordx2 {vr(vQ2, 2)}, v{vTMP}, {WS}, s{sQ} offen offset:1024")
    a("s_mov_b64 exec, -1")
    a(f"buffer_load_dwordx4 {vr(vQ1, 4)}, v{vLANE16}, {WS}, s{sQ} offen")
    a(f"s_mul_i32 s{sOB}, s14, 40960")
    a(f"s_add_u32 s{sOB}, s{sOB}, {OB_OFF}")
    a(f"s_lshr_b32 s15, s{sHEAD}, 3")
    a("s_mul_i32 s15, s15, 5120")
    a(f"s_add_u32 s{sOB}, s{sOB}, s15")
    a(f"s_bfe_u32 s15, s{sHEAD}, 0x20001")
    a("s_lshl_b32 s15, s15, 10")
    a(f"s_and_b32 s16, s{sHEAD}, 1")
    a("s_lshl_b32 s16, s16, 9")
    a("s_add_u32 s15, s15, s16")
    a(f"s_add_u32 s{sOM}, s{sOB}, s15")
    a(f"s_and_b32 s15, s{sHEAD}, 3")
    a("s_lshl_b32 s15, s15, 8")
    a(f"s_bfe_u32 s16, s{sHEAD}, 0x10002")
    a("s_lshl_b32 s16, s16, 3")
    a("s_add_u32 s15, s15, s16")
    a(f"s_add_u32 s{sOB}, s{sOB}, s15")
    a(f"s_add_u32 s{sOB}, s{sOB}, 4096")
    a(f"s_mov_b32 s{sVMASK}, 0x000fffff")
    a(f"s_mov_b32 s{sVMASK+1}, 0x000fffff")
    a(f"v_mov_b32 v{vKA}, v{vLANE16}")
    a(f"v_add_u32 v{vKB}, 1024, v{vTMP}")
    a(f"v_lshrrev_b32 v{vTMP+1}, 5, v{vT1}")
    a(f"v_mul_u32_u24 v{vTMP+1}, 320, v{vTMP+1}")
    a(f"v_lshl_add_u32 v{vTMP+1}, v{vT0}, 4, v{vTMP+1}")
    a(f"v_add_u32 v{vV}, 1280, v{vTMP+1}")
    a(f"v_mov_b32 v{vFL}, {F_LAND}")
    a(f"v_mov_b32 v{vONE}, 1")
    a(f"v_and_b32 v{vTMP+1}, 27, v{vT0}")
    a(f"v_cmp_eq_u32 vcc, 24, v{vTMP+1}")
    a(f"v_mov_b32 v{vTMP+2}, 0x3f803f80")
    a("s_nop 1")
    a(f"v_cndmask_b32 v{vTMP+1}, 0, v{vTMP+2}, vcc")
    for b in range(2):
        for t in range(2):
            for r in range(4):
                a(f"v_mov_b32 v{vVf[b][t] + r}, v{vTMP+1}")
    for r in range(16):
        a(f"v_mov_b32 v{vO + r}, 0")
    a(f"v_cmp_le_u32 vcc, 32, v{vT1}")
    a(f"v_mov_b32 v{vTMP+2}, 0x3f80")
    a("s_nop 1")
    for b in range(2):
        a(f"v_cndmask_b32 v{vKBf[b]}, 0, v{vTMP+2}, vcc")
        for r in range(1, 4):
            a(f"v_mov_b32 v{vKBf[b] + r}, 0")
    a("s_waitcnt vmcnt(0)")
    a("s_barrier")
    ST(a, "B0")
    read_ka(a, 0, 0)
    read_ka(a, 1, 1)
    a(f"s_mov_b64 exec, s[{sLO}:{sLO+1}]")
    read_kb(a, 0, 0)
    read_kb(a, 1, 1)
    a(f"s_mov_b64 exec, s[{sVMASK}:{sVMASK+1}]")
    read_v(a, 0, 0); read_v(a, 0, 1); read_v(a, 1, 0)
    a("s_mov_b64 exec, -1")
    a("s_waitcnt lgkmcnt(3)")
    mfma_s1(a, vS[0], 0)
    a("s_nop 11")
    mfma_s2(a, vS[0], 0)
    a("s_nop 15")
    a("s_nop 3")
    row_max(a, vS[0], vTMP, vTMP + 1)
    a(f"v_sub_f32 v{vTMP}, 0, v{vTMP}")
    a(f"v_cvt_pk_bf16_f32 v{vTMP}, v{vTMP}, 0")
    a(f"v_cmp_le_u32 vcc, 32, v{vT1}")
    a("s_nop 1")
    a(f"v_cndmask_b32 v{vQ2}, v{vQ2}, v{vTMP}, vcc")
    read_ka(a, 2, 0)
    a(f"s_mov_b64 exec, s[{sLO}:{sLO+1}]")
    read_kb(a, 2, 0)
    a("s_mov_b64 exec, -1")
    a(f"v_lshlrev_b32 v{vTMP}, 16, v{vTMP}")
    for r in range(16):
        a(f"v_add_f32 v{vS[0] + r}, v{vS[0] + r}, v{vTMP}")
    a("s_waitcnt lgkmcnt(2)")
    if ST.on:
        a("s_mov_b32 s87, 0")
    for t in range(64):
        if t in (0, 8, 32, 56):
            ST(a, f"t{t}")
        tile_body(a, t)
    ST(a, "loopend")
    if ST.on:
        a(f"v_writelane_b32 v{ST.vt}, s87, 15")
    a("s_nop 15")
    a("s_nop 3")
    a(f"v_mov_b32 v{vTMP}, v{vO + 12}")
    for r in range(12):
        a(f"v_fma_f32 v{vTMP}, v{vO + r}, 0, v{vTMP}")
    a(f"v_mov_b32 v{vTMP+1}, {hex(f2u(2.0 ** 100))}")
    a(f"v_mov_b32 v{vTMP+2}, {hex(f2u(2.0 ** -60))}")
    a(f"v_cmp_nlt_f32 vcc, v{vTMP}, v{vTMP+1}")
    a(f"v_cmp_nge_f32 s[12:13], v{vTMP}, v{vTMP+2}")
    a("s_nop 1")
    a("s_or_b64 vcc, vcc, s[12:13]")
    a("s_nop 4")
    a("s_cbranch_vccz L_attn_store")
    safe_path(a)
    a.label("L_attn_store")
    a(f"v_rcp_f32 v{vTMP}, v{vO + 12}")
    a("s_nop 1")
    for r in range(12):
        a(f"v_mul_f32 v{vO + r}, v{vO + r}, v{vTMP}")
    for i in range(6):
        a(f"v_cvt_pk_bf16_f32 v{vP + i}, v{vO + 2 * i}, v{vO + 2 * i + 1}")
    a(f"v_and_b32 v{vTMP+1}, 15, v0")
    a(f"v_lshlrev_b32 v{vTMP+1}, 4, v{vTMP+1}")
    a(f"v_bfe_u32 v{vTMP+2}, v0, 4, 1")
    a(f"v_mul_u32_u24 v{vTMP+2}, 20480, v{vTMP+2}")
    a(f"v_add_u32 v{vTMP+1}, v{vTMP+1}, v{vTMP+2}")
    a(f"v_bfe_u32 v{vTMP+2}, v0, 5, 1")
    a(f"v_lshl_add_u32 v{vTMP+2}, v{vTMP+2}, 8, v{vTMP+1}")
    a(f"buffer_store_dwordx4 {vr(vP, 4)}, v{vTMP+2}, {WS}, s{sOM} offen sc1")
    a(f"s_mov_b64 exec, s[{sLO}:{sLO+1}]")
    a(f"buffer_store_dwordx2 {vr(vP + 4, 2)}, v{vTMP+1}, {WS}, s{sOB} offen sc1")
    a("s_mov_b64 exec, -1")
    a("s_branch L_k2_join")

def safe_path(a):
    vM, vMN, vAL = vTMP, vTMP + 1, vTMP + 2
    vA2, vA3 = vTMP + 5, vTMP + 6
    s = vS[0]
    a(f"v_and_b32 v{vA2}, 31, v0")
    a(f"v_lshlrev_b32 v{vA2}, 3, v{vA2}")
    a(f"v_mov_b32 v{vA3}, v{vV}")
    a(f"v_mov_b32 v{vM}, 0xff7fffff")
    a(f"v_and_b32 v{vAL}, 63, v0")
    a(f"v_cmp_gt_u32 vcc, 32, v{vAL}")
    a("s_nop 1")
    a(f"v_cndmask_b32 v{vQ2}, 0, v{vQ2}, vcc")
    for r in range(16):
        a(f"v_mov_b32 v{vO + r}, 0")
    a(f"s_mov_b32 s{sT}, s{sKV}")
    a("s_mov_b32 s15, 64")
    a.label("L_safe_loop")
    a(f"buffer_load_dwordx4 {vr(vKAf[0], 4)}, v{vLANE16}, {WS}, s{sT} offen")
    a(f"s_mov_b64 exec, s[{sLO}:{sLO+1}]")
    a(f"buffer_load_dwordx2 {vr(vKBf[0], 2)}, v{vA2}, {WS}, s{sT} offen offset:1024")
    a(f"s_mov_b64 exec, s[{sVMASK}:{sVMASK+1}]")
    a(f"buffer_load_dwordx4 {vr(vVf[0][0], 4)}, v{vA3}, {WS}, s{sT} offen")
    a(f"buffer_load_dwordx4 {vr(vVf[0][1], 4)}, v{vA3}, {WS}, s{sT} offen offset:640")
    a("s_mov_b64 exec, -1")
    a("s_waitcnt vmcnt(0)")
    mfma_s1(a, s, 0)
    a("s_nop 11")
    mfma_s2(a, s, 0)
    a("s_nop 15")
    a("s_nop 3")
    row_max(a, s, vMN, vAL)
    a(f"v_max_f32 v{vMN}, v{vMN}, v{vM}")
    a(f"v_sub_f32 v{vAL}, v{vM}, v{vMN}")
    a(f"v_exp_f32 v{vAL}, v{vAL}")
    a(f"v_mov_b32 v{vM}, v{vMN}")
    for r in range(16):
        a(f"v_sub_f32 v{s + r}, v{s + r}, v{vMN}")
    for r in range(16):
        a(f"v_exp_f32 v{s + r}, v{s + r}")
    for r in range(16):
        a(f"v_mul_f32 v{vO + r}, v{vO + r}, v{vAL}")
    for i in range(8):
        a(f"v_cvt_pk_bf16_f32 v{vP + i}, v{s + 2 * i}, v{s + 2 * i + 1}")
    a("s_nop 1")
    mfma_pv(a, 0, 0)
    mfma_pv(a, 0, 1)
    a(f"s_add_u32 s{sT}, s{sT}, 2560")
    a("s_sub_u32 s15, s15, 1")
    a("s_nop 15")
    a("s_nop 3")
    a("s_cmp_lg_u32 s15, 0")
    a("s_cbranch_scc1 L_safe_loop")

def helpers(a):
    a.label("L_k2_helper")
    a(f"s_setprio {HPRIO}")
    a(f"s_cmp_lg_u32 s{sW}, 8")
    a("s_cbranch_scc1 L_k2_ffn")
    ring_loader(a)
    ffn(a)

def ring_loader(a):
    vF, vX = 4, 5
    a(f"v_lshlrev_b32 v{vF}, 2, v{vT1}")
    a(f"v_add_u32 v{vF}, {L_MISC}, v{vF}")
    a(f"v_mov_b32 v{vX}, 0")
    a(f"ds_write_b32 v{vF}, v{vX}")
    a(f"v_mov_b32 v{vF}, {F_LAND}")
    a("s_waitcnt lgkmcnt(0)")
    srd(a, SRD_WS, 4, WS_SRD)
    a("s_barrier")
    def chunk(c):
        for i in range(5):
            a(f"s_mov_b32 m0, {(c % 3) * 20480 + i * 4096}")
            a(f"s_add_u32 s{sT}, s{sKV}, {c * 20480 + i * 4096}")
            for j in range(4):
                a(f"buffer_load_dwordx4 v{vLANE16}, {WS}, s{sT} offen offset:{1024 * j} lds")
    def landed(c):
        a(f"v_mov_b32 v{vX}, {c}")
        a(f"ds_write_b32 v{vF}, v{vX}")
    chunk(1); chunk(2)
    a("s_waitcnt vmcnt(20)")
    landed(1)
    a("s_waitcnt vmcnt(0)")
    landed(2)
    for c in range(3, 8):
        a(f"v_mov_b32 v6, {F_FREEC + 4 * (c - 3)}")
        spin(a, f"L_free_{c}", 6, 7, sT, 8, sT2, sleep=6)
        chunk(c)
        a("s_waitcnt vmcnt(0)")
        landed(c)
    a(f"s_add_u32 s38, s4, {CAND_OFF}")
    a("s_addc_u32 s39, s5, 0")
    a("s_load_dwordx16 s[64:79], s[38:39], 0")
    a("s_load_dwordx16 s[80:95], s[38:39], 64")
    out_tile_ids(a)
    a("s_waitcnt lgkmcnt(0)")
    top2_scalar(a, 64, 42, 43, 12)
    a("s_bfe_u32 s12, s42, 0x50006")
    a("s_bfe_u32 s13, s43, 0x50006")
    a(f"s_cmp_eq_u32 s12, s{sMT}")
    a("s_cbranch_scc1 L_k2_watch")
    a(f"s_cmp_eq_u32 s13, s{sMT}")
    a("s_cbranch_scc0 L_k2_join")
    a.label("L_k2_watch")
    a(f"v_mov_b32 v7, {CNT_OFF + 8 * 256}")
    a(f"s_mov_b32 s13, {SPIN_MAX}")
    a.label("L_k2_poll_moe")
    a("global_load_dword v6, v7, s[4:5] sc1")
    a("s_waitcnt vmcnt(0)")
    a("v_readfirstlane_b32 s14, v6")
    a("s_sub_u32 s13, s13, 1")
    a("s_cbranch_scc1 L_k2_poll_moe_done")
    a(f"s_cmp_ge_u32 s14, {NMOE}")
    a("s_cbranch_scc1 L_k2_poll_moe_done")
    a("s_sleep 8")
    a("s_branch L_k2_poll_moe")
    a.label("L_k2_poll_moe_done")
    a(f"v_mov_b32 v6, {F_ALL}")
    a("v_mov_b32 v7, 1")
    a("ds_write_b32 v6, v7")
    a("s_waitcnt lgkmcnt(0)")
    a("s_branch L_k2_join")

def slice_index(a):
    a("s_and_b32 s33, s2, 7")
    a("s_mul_i32 s33, s33, 12")
    a("s_lshr_b32 s12, s2, 3")
    a("s_add_u32 s33, s33, s12")

def ffn(a):
    SRD_X, SRD_W = 56, 60
    sM, sB1, sB2, sU = 33, 42, 43, 44
    sCAND = 64
    vT, vA, vB = 4, 5, 6
    a.label("L_k2_ffn")
    a("s_barrier")
    a("s_load_dwordx2 s[6:7], s[0:1], 0")
    a("s_load_dwordx4 s[36:39], s[0:1], 40")
    a("s_load_dwordx2 s[40:41], s[0:1], 56")
    a("s_waitcnt lgkmcnt(0)")
    srd(a, SRD_WS, 4, WS_SRD)
    a(f"s_cmp_ge_u32 s2, {NMOE if not X('nomoe') else 0}")
    a("s_cbranch_scc1 L_k2_no_ffn")
    slice_index(a)
    a(f"s_cmp_eq_u32 s{sW}, 11")
    a("s_cbranch_scc1 L_k2_down")
    a(f"s_sub_u32 s{sU}, s{sW}, 9")
    srd(a, SRD_X, 6, X_BYTES)
    a(f"s_add_u32 s46, s4, {CAND_OFF}")
    a("s_addc_u32 s47, s5, 0")
    a(f"s_load_dwordx16 s[{sCAND}:{sCAND+15}], s[46:47], 0")
    a(f"s_load_dwordx16 s[{sCAND+16}:{sCAND+31}], s[46:47], 64")
    a(f"s_cmp_eq_u32 s{sU}, 0")
    a("s_cbranch_scc0 L_k2_up_srd")
    srd(a, SRD_W, 36, WG_BYTES)
    a("s_branch L_k2_srd_done")
    a.label("L_k2_up_srd")
    srd(a, SRD_W, 38, WG_BYTES)
    a.label("L_k2_srd_done")
    a(f"v_lshrrev_b32 v{vT}, 3, v{vT1}")
    a(f"v_mul_u32_u24 v{vA}, 3072, v{vT}")
    a(f"v_and_b32 v7, 7, v{vT1}")
    a(f"v_xor_b32 v7, v7, v{vT}")
    a(f"v_lshl_add_u32 v{vA}, v7, 4, v{vA}")
    a(f"s_and_b32 s17, s{sM}, 3")
    a(f"s_mul_i32 s15, s17, {160 * 3072}")
    a(f"s_lshr_b32 s16, s{sM}, 2")
    a("s_lshl_b32 s16, s16, 7")
    a("s_add_u32 s15, s15, s16")
    a(f"s_mul_i32 s14, s{sU}, 20480")
    a(f"s_add_u32 s14, s14, {L_WG}")
    vWA, vXA = 56, 6
    a(f"v_lshrrev_b32 v{vT}, 4, v{vT1}")
    a(f"v_bfe_u32 v7, v{vT1}, 2, 2")
    a(f"v_lshl_add_u32 v8, v{vT}, 3, v7")
    a(f"v_lshlrev_b32 v8, 7, v8")
    a(f"v_bfe_u32 v9, v{vT1}, 1, 1")
    a(f"v_xor_b32 v9, v9, v7")
    a(f"v_lshl_add_u32 v8, v9, 4, v8")
    a(f"v_and_b32 v9, 1, v{vT1}")
    a(f"v_lshl_add_u32 v8, v9, 3, v8")
    a(f"v_add_u32 v{vWA}, s14, v8")
    for k in range(1, 4):
        a(f"v_xor_b32 v{vWA + k}, {32 * k}, v{vWA}")
    a(f"s_mul_i32 s18, s{sU}, 1024")
    a(f"s_add_u32 s18, s18, {L_XG}")
    a(f"v_and_b32 v9, 3, v{vT1}")
    a(f"v_min_u32 v{vXA}, 2, v9")
    a(f"v_mul_u32_u24 v{vXA}, 320, v{vXA}")
    a(f"v_lshl_add_u32 v{vXA}, v{vT}, 4, v{vXA}")
    a(f"v_add_u32 v{vXA}, s18, v{vXA}")
    for r in range(4):
        a(f"v_mov_b32 v{8 + r}, 0x3f803f80")
    a(f"v_add_u32 v60, s18, v{vLANE16}")
    a("s_mov_b64 exec, 0xfffff")
    a(f"ds_write_b128 v60, v[8:11] offset:640")
    a("s_mov_b64 exec, -1")
    a(f"v_and_b32 v7, 15, v{vT1}")
    a(f"v_lshlrev_b32 v61, 8, v7")
    a(f"v_lshl_add_u32 v61, v{vT}, 4, v61")
    a("v_cmp_gt_u32 vcc, 3, v7")
    a(f"v_min_u32 v62, 2, v{vT}")
    a(f"v_lshlrev_b32 v62, 8, v62")
    a(f"v_lshl_add_u32 v62, v7, 2, v62")
    a("s_mov_b64 s[52:53], vcc")
    for q in range(20 if not X("moe_nodma") else 0):
        a(f"s_add_u32 m0, s14, {q * 1024}")
        a(f"s_add_u32 s16, s15, {q * 8 * 3072}")
        a(f"buffer_load_dwordx4 v{vA}, s[{SRD_W}:{SRD_W+3}], s16 offen lds")
    a("s_waitcnt lgkmcnt(0)")
    top2_scalar(a, sCAND, sB1, sB2, 12)
    a(f"s_and_b32 s{sB1}, s{sB1}, 0x7ff")
    a(f"s_and_b32 s{sB2}, s{sB2}, 0x7ff")
    for k, sB in ((0, sB1), (1, sB2)):
        a(f"s_lshl_b32 s12, s{sB}, 3")
        a("s_add_u32 s46, s4, s12")
        a("s_addc_u32 s47, s5, 0")
        a(f"s_add_u32 s46, s46, {ST_OFF}")
        a("s_addc_u32 s47, s47, 0")
        a(f"s_load_dwordx2 s[{48 + 2 * k}:{49 + 2 * k}], s[46:47], 0")
    a("s_mul_i32 s16, s17, 320")
    a("s_mov_b64 exec, 0xfffff")
    for k, sB in ((0, sB1), (1, sB2)):
        a(f"s_mul_i32 s12, s{sB}, 1280")
        a("s_add_u32 s12, s12, s16")
        a(f"s_add_u32 m0, s18, {320 * k}")
        a("s_nop 0")
        a(f"buffer_load_dwordx4 v{vLANE16}, s[{SRD_X}:{SRD_X+3}], s12 offen lds")
    a("s_mov_b64 exec, -1")
    a("s_waitcnt vmcnt(0) lgkmcnt(0)")
    vACC = 64
    for s_ in range(5 if not (X("moe_nocomp") or X("noA")) else 0):
        a(f"ds_read_b128 v[12:15], v{vXA} offset:{s_ * 64}")
        for ct in range(4):
            for rd_ in range(2):
                a(f"ds_read_b64_tr_b16 {vr(16 + 4 * ct + 2 * rd_, 2)}, v{vWA + (ct ^ (2 * rd_))} offset:{s_ * 4096 + 512 * rd_}")
        if LOWM: a("s_setprio 0")
        for ct in range(4):
            a(f"s_waitcnt lgkmcnt({6 - 2 * ct})")
            c = "0" if s_ == 0 else vr(vACC + 4 * ct, 4)
            a(f"v_mfma_f32_16x16x32_bf16 {vr(vACC + 4 * ct, 4)}, {vr(16 + 4 * ct, 4)}, v[12:15], {c}")
            if SPACE: a(f"s_nop {SPACE - 1}")
    if LOWM:
        a("s_nop 7")
        a(f"s_setprio {HPRIO}")
    a(f"s_lshl_b32 s12, s{sM}, 1")
    a(f"s_add_u32 s12, s12, s{sU}")
    a("s_mul_i32 s12, s12, 768")
    a(f"s_add_u32 s12, s12, {GP_OFF}")
    a("s_nop 7")
    a("s_mov_b64 exec, s[52:53]")
    for ct in range(4):
        a(f"buffer_store_dwordx4 {vr(vACC + 4 * ct, 4)}, v61, {WS}, s12 offen offset:{64 * ct} sc1")
    a("s_mov_b64 exec, -1")
    a(f"v_mov_b32 v52, 1")
    a(f"v_mov_b32 v53, {F_U}")
    a("s_waitcnt vmcnt(0)")
    a(f"s_cmp_eq_u32 s{sU}, 0")
    a("s_cbranch_scc1 L_k2_gate")
    a("ds_write_b32 v53, v52")
    a("s_branch L_k2_ffn_done")
    a.label("L_k2_gate")
    spin(a, "L_wait_u", 53, 54, 12, 1, 13, sleep=4)
    a(f"s_lshr_b32 s12, s{sM}, 2")
    a("s_add_u32 s12, s12, 9")
    a("s_lshl_b32 s12, s12, 8")
    a(f"s_add_u32 s12, s12, {CNT_OFF}")
    a("v_mov_b32 v9, s12")
    a("s_mov_b64 exec, 1")
    a("global_atomic_add v9, v52, s[4:5]")
    a(f"s_mov_b32 s13, {SPIN_MAX}")
    a.label("L_k2_poll_cb")
    a("global_load_dword v10, v9, s[4:5] sc1")
    a("s_waitcnt vmcnt(0)")
    a("v_readfirstlane_b32 s14, v10")
    a("s_sub_u32 s13, s13, 1")
    a("s_cbranch_scc1 L_k2_poll_cb_done")
    a("s_cmp_ge_u32 s14, 4")
    a("s_cbranch_scc1 L_k2_poll_cb_done")
    a("s_sleep 8")
    a("s_branch L_k2_poll_cb")
    a.label("L_k2_poll_cb_done")
    a("s_mov_b64 exec, -1")
    a(f"s_andn2_b32 s12, s{sM}, 3")
    a("s_mul_i32 s12, s12, 1536")
    a(f"s_add_u32 s12, s12, {GP_OFF}")
    a("s_lshl_b32 s16, s17, 6")
    a("s_add_u32 s12, s12, s16")
    for kq in range(4):
        for mat in range(2):
            a(f"s_add_u32 s16, s12, {kq * 1536 + mat * 768}")
            a(f"buffer_load_dword v{12 + 4 * mat + kq}, v62, {WS}, s16 offen sc1")
    a(f"v_cmp_gt_u32 vcc, 16, v{vT1}")
    a("v_mov_b32 v8, s50")
    a("v_mov_b32 v9, s51")
    a("v_mov_b32 v10, s48")
    a("v_mov_b32 v11, s49")
    a("v_cndmask_b32 v8, v8, v10, vcc")
    a("v_cndmask_b32 v9, v9, v11, vcc")
    a("s_waitcnt vmcnt(0)")
    for mat in range(2):
        b0 = 12 + 4 * mat
        a(f"v_add_f32 v{b0}, v{b0}, v{b0 + 1}")
        a(f"v_add_f32 v{b0 + 2}, v{b0 + 2}, v{b0 + 3}")
    for mat in range(2):
        b0 = 12 + 4 * mat
        a(f"v_add_f32 v{b0}, v{b0}, v{b0 + 2}")
    for mat in range(2):
        b0 = 12 + 4 * mat
        a(f"v_mov_b32 v{b0 + 1}, v{b0}")
        a(f"v_mov_b32 v{b0 + 2}, v{b0}")
    a("s_nop 1")
    for mat in range(2):
        b0 = 12 + 4 * mat
        a(f"v_permlane32_swap_b32 v{b0 + 1}, v{b0 + 2}")
    a("s_nop 1")
    for mat in range(2):
        b0 = 12 + 4 * mat
        a(f"v_fma_f32 v{b0}, -v8, v{b0 + 2}, v{b0}")
        a(f"v_mul_f32 v{b0}, v{b0}, v9")
    a(f"v_mul_f32 v20, {hex(f2u(-LOG2E))}, v12")
    a("v_exp_f32 v20, v20")
    a("v_mul_f32 v12, v12, v16")
    a("v_add_f32 v20, 1.0, v20")
    a("v_rcp_f32 v20, v20")
    a(f"v_lshlrev_b32 v{vT}, 1, v{vT1}")
    a("v_mul_f32 v12, v12, v20")
    a(f"v_add_u32 v{vT}, {L_H}, v{vT}")
    a("v_cvt_pk_bf16_f32 v12, v12, v12")
    a(f"ds_write_b16 v{vT}, v12")
    a(f"v_mov_b32 v53, {F_H}")
    a("s_waitcnt lgkmcnt(0)")
    a(f"ds_write_b32 v53, v52")
    a("s_branch L_k2_ffn_done")
    a.label("L_k2_down")
    srd(a, SRD_W, 40, WD_BYTES)
    vDA, vHA, vYO = 5, 6, 7
    a(f"v_bfe_u32 v{vT}, v{vT1}, 2, 2")
    a(f"v_mul_u32_u24 v{vDA}, 1280, v{vT}")
    a(f"v_lshrrev_b32 v{vT}, 4, v{vT1}")
    a(f"v_lshl_add_u32 v{vDA}, v{vT}, 5, v{vDA}")
    a(f"v_and_b32 v{vT}, 3, v{vT1}")
    a(f"v_lshl_add_u32 v{vDA}, v{vT}, 3, v{vDA}")
    a(f"v_add_u32 v{vDA}, {L_WD}, v{vDA}")
    a(f"v_and_b32 v{vT}, 1, v{vT1}")
    a(f"v_lshlrev_b32 v{vHA}, 5, v{vT}")
    a(f"v_add_u32 v{vHA}, {L_H}, v{vHA}")
    a(f"v_lshlrev_b32 v{vYO}, 2, v{vT1}")
    a(f"v_mov_b32 v53, {F_H}")
    a(f"s_mul_i32 s15, s{sM}, 20480")
    for i in range(5 if not X("moe_nodma") else 0):
        a(f"s_mov_b32 m0, {L_WD + i * 4096}")
        a(f"s_add_u32 s16, s15, {i * 4096}")
        for j in range(4):
            a(f"buffer_load_dwordx4 v{vLANE16}, s[{SRD_W}:{SRD_W+3}], s16 offen offset:{1024 * j} lds")
    a(f"s_mul_i32 s15, s{sM}, 5120")
    a(f"s_add_u32 s15, s15, {YP_OFF}")
    a("s_waitcnt vmcnt(0)")
    spin(a, "L_wait_h", 53, 54, 12, 1, 13, sleep=8)
    a(f"ds_read_b128 v[8:11], v{vHA}")
    a(f"ds_read_b128 v[12:15], v{vHA} offset:16")
    for kk in range(4 if not (X("moe_nocomp") or X("noD")) else 0):
        for gq in range(10):
            a(f"ds_read_b64_tr_b16 {vr(16 + 2 * gq, 2)}, v{vDA} offset:{kk * 5120 + gq * 128}")
        if LOWM: a("s_setprio 0")
        for gq in range(10):
            a(f"s_waitcnt lgkmcnt({9 - gq})")
            c = "0" if kk == 0 else vr(56 + 4 * gq, 4)
            a(f"v_mfma_f32_4x4x4bf16_1k {vr(56 + 4 * gq, 4)}, {vr(8 + 2 * kk, 2)}, {vr(16 + 2 * gq, 2)}, {c}")
        if LOWM: a(f"s_setprio {HPRIO}")
    a("s_nop 7")
    for t_ in range(2):
        for gq in range(10):
            a(f"s_add_u32 s16, s15, {t_ * 2560 + gq * 256}")
            a(f"buffer_store_dword v{56 + 4 * gq + t_}, v{vYO}, {WS}, s16 offen sc1")
    a("s_waitcnt vmcnt(0)")
    a(f"v_mov_b32 v7, {CNT_OFF + 8 * 256}")
    a("v_mov_b32 v8, 1")
    a("s_mov_b64 exec, 1")
    a("global_atomic_add v7, v8, s[4:5]")
    a("s_mov_b64 exec, -1")
    a.label("L_k2_ffn_done")
    ST(a, "ffn_done")
    a(f"v_mov_b32 v53, {F_MOE}")
    a(f"v_mov_b32 v52, 1")
    a("s_waitcnt lgkmcnt(0)")
    a("s_mov_b64 exec, 1")
    a("ds_add_u32 v53, v52")
    a("s_mov_b64 exec, -1")
    spin(a, "L_wait_moe", 53, 54, 12, 3, 13, sleep=8)
    a("s_branch L_k2_wo_prefetch")
    a.label("L_k2_no_ffn")
    a.label("L_k2_wo_prefetch")
    out_tile_ids(a)
    a(f"s_mul_i32 s12, s{sNT}, 102400")
    a(f"s_add_u32 s12, s12, {WO2_OFF}")
    a(f"s_sub_u32 s13, s{sW}, 9")
    for g in range(7):
        if g == 6:
            a("s_cmp_eq_u32 s13, 2")
            a("s_cbranch_scc1 L_k2_prefetched")
        a(f"s_add_u32 s14, s13, {3 * g}")
        a("s_lshl_b32 s14, s14, 12")
        a(f"s_add_u32 m0, s14, {L_R}")
        a("s_add_u32 s14, s14, s12")
        for j in range(4):
            a(f"buffer_load_dwordx4 v{vLANE16}, {WS}, s14 offen offset:{1024 * j} lds")
    a.label("L_k2_prefetched")
    a(f"s_add_u32 s38, s4, {CAND_OFF}")
    a("s_addc_u32 s39, s5, 0")
    a("s_load_dwordx16 s[64:79], s[38:39], 0")
    a("s_load_dwordx16 s[80:95], s[38:39], 64")
    a("s_waitcnt lgkmcnt(0)")
    top2_scalar(a, 64, 42, 43, 12)
    a("s_and_b32 s42, s42, 0x7ff")
    a("s_and_b32 s43, s43, 0x7ff")
    a("s_lshr_b32 s12, s42, 6")
    a("s_lshr_b32 s13, s43, 6")
    a(f"s_cmp_eq_u32 s12, s{sMT}")
    a("s_cbranch_scc1 L_k2_routed")
    a(f"s_cmp_eq_u32 s13, s{sMT}")
    a("s_cbranch_scc0 L_k2_join")
    a.label("L_k2_routed")
    routed(a, 42, 43)
    a("s_branch L_k2_join")

sMT, sNT = 44, 45
def out_tile_ids(a):
    a(f"s_bfe_u32 s{sMT}, s2, 0x20001")
    a(f"s_lshl_b32 s12, s{sQB}, 2")
    a(f"s_add_u32 s{sMT}, s{sMT}, s12")
    a(f"s_and_b32 s{sNT}, s2, 1")
    a(f"s_lshl_b32 s{sNT}, s{sNT}, 2")
    a("s_bfe_u32 s12, s2, 0x20003")
    a(f"s_add_u32 s{sNT}, s{sNT}, s12")

def projection(a):
    SRD_X, SRD_OUT = 56, 60
    sB1, sB2, sOBT = 42, 43, 46
    sCAND = 64
    vL16, vL16H, vL16H2 = vLANE16, 9, 3
    vTOK, vG, vT = 2, 8, 4
    vXO, vTOKG, vSTAT, vX = 10, 11, 12, 14
    vACC = 24
    vWF = (44, 64)
    vOF = 84
    a.label("L_k2_join")
    ST(a, "join")
    a("s_load_dwordx2 s[6:7], s[0:1], 0")
    a("s_load_dwordx2 s[36:37], s[0:1], 64")
    a(f"s_add_u32 s38, s4, {CAND_OFF}")
    a("s_addc_u32 s39, s5, 0")
    a(f"s_load_dwordx16 s[{sCAND}:{sCAND+15}], s[38:39], 0")
    a(f"s_load_dwordx16 s[{sCAND+16}:{sCAND+31}], s[38:39], 64")
    out_tile_ids(a)
    a("v_and_b32 v3, 63, v0")
    a("s_waitcnt vmcnt(0)")
    a("s_barrier")
    ST(a, "E1")
    a("s_waitcnt lgkmcnt(0)")
    srd(a, SRD_X, 6, X_BYTES)
    srd(a, SRD_OUT, 36, X_BYTES)
    a(f"s_cmp_eq_u32 s{sW}, 8")
    a("s_cbranch_scc1 L_k2_sync")
    a(f"s_cmp_ge_u32 s{sW}, 4")
    a("s_cbranch_scc1 L_k2_side")
    a(f"v_and_b32 v{vTOK}, 15, v3")
    a(f"v_lshrrev_b32 v{vG}, 4, v3")
    a(f"s_lshl_b32 s12, s{sMT}, 6")
    a(f"s_lshl_b32 s13, s{sW}, 4")
    a("s_add_u32 s12, s12, s13")
    a(f"v_add_u32 v{vTOKG}, s12, v{vTOK}")
    a(f"v_mul_u32_u24 v{vXO}, 1280, v{vTOKG}")
    a(f"v_lshl_add_u32 v{vXO}, v{vG}, 3, v{vXO}")
    a(f"s_mul_i32 s13, s{sNT}, 160")
    a(f"v_add_u32 v{vXO}, s13, v{vXO}")
    a(f"v_lshlrev_b32 v{vT+1}, 3, v{vTOKG}")
    a(f"s_mov_b32 s12, {ST_OFF}")
    a(f"buffer_load_dwordx2 {vr(vSTAT, 2)}, v{vT+1}, {WS}, s12 offen")
    for j in range(5):
        a(f"buffer_load_dwordx2 {vr(vX + 2 * j, 2)}, v{vXO}, s[{SRD_X}:{SRD_X+3}], 0 offen offset:{32 * j}")
    a(f"s_lshl_b32 s12, s{sMT}, 2")
    a(f"s_add_u32 s12, s12, s{sW}")
    a(f"s_mul_i32 s{sOBT}, s12, 20480")
    a(f"s_add_u32 s{sOBT}, s{sOBT}, {OB_OFF}")
    a(f"v_add_u32 v{vL16H}, {L_R}, v{vL16}")
    a(f"v_add_u32 v{vL16H2}, {L_R + 40960}, v{vL16}")
    top2_scalar(a, sCAND, sB1, sB2, 12)
    a(f"s_and_b32 s{sB1}, s{sB1}, 0x7ff")
    a(f"s_and_b32 s{sB2}, s{sB2}, 0x7ff")
    a("s_waitcnt vmcnt(0)")
    a(f"v_add_f32 v{vT}, 1.0, v{vSTAT+1}")
    a(f"v_mul_f32 v{vT+1}, v{vSTAT}, v{vSTAT+1}")
    for j in range(5):
        for i in range(2):
            a(f"v_lshlrev_b32 v{vT+2}, 16, v{vX + 2 * j + i}")
            a(f"v_and_b32 v{vT+3}, 0xffff0000, v{vX + 2 * j + i}")
            a(f"v_fma_f32 v{vACC + 4 * j + 2 * i}, v{vT+2}, v{vT}, -v{vT+1}")
            a(f"v_fma_f32 v{vACC + 4 * j + 2 * i + 1}, v{vT+3}, v{vT}, -v{vT+1}")
    a("s_barrier")
    ST(a, "E2")
    for B in range(5):
        a(f"s_add_u32 s12, s{sOBT}, {B * 4096}")
        for k in range(4):
            a(f"buffer_load_dwordx4 {vr(vOF + 16 * B + 4 * k, 4)}, v{vL16}, {WS}, s12 offen offset:{1024 * k} sc1")
    def reads(st):
        f = vWF[st & 1]
        reg, off = (vL16H, st * 5120) if st < 8 else ((vL16H2, (st - 8) * 5120) if st < 16 else (vL16, (st - 16) * 5120))
        for j in range(5):
            a(f"ds_read_b128 {vr(f + 4 * j, 4)}, v{reg} offset:{off + 1024 * j}")
    def mfmas(st):
        f = vWF[st & 1]
        for j in range(5):
            a(f"v_mfma_f32_16x16x32_bf16 {vr(vACC + 4 * j, 4)}, {vr(f + 4 * j, 4)}, {vr(vOF + 4 * st, 4)}, {vr(vACC + 4 * j, 4)}")
    reads(0)
    for st in range(20):
        if st == 12:
            pass
        if st < 19:
            if st + 1 == 16:
                a("s_barrier")
            reads(st + 1)
        a(f"s_waitcnt vmcnt({19 - st}) lgkmcnt({5 if st < 19 else 0})")
        mfmas(st)
    ST(a, "gemm")
    a(f"v_lshlrev_b32 v{vT}, 4, v{vG}")
    a(f"v_add_u32 v{vT}, {L_Y}, v{vT}")
    a("s_nop 7")
    for sel, sB in ((0, sB1), (1, sB2)):
        lab = f"L_k2_noupd{sel}"
        a(f"s_lshr_b32 s12, s{sB}, 6")
        a(f"s_cmp_lg_u32 s12, s{sMT}")
        a(f"s_cbranch_scc1 {lab}")
        for j in range(5):
            a(f"ds_read_b128 {vr(vWF[0] + 4 * j, 4)}, v{vT} offset:{320 * sel + 64 * j}")
        a(f"v_cmp_eq_u32 vcc, s{sB}, v{vTOKG}")
        a("s_waitcnt lgkmcnt(0)")
        a("s_nop 1")
        for j in range(5):
            for r in range(4):
                a(f"v_cndmask_b32 v{vWF[0] + 4 * j + r}, 0, v{vWF[0] + 4 * j + r}, vcc")
                a(f"v_add_f32 v{vACC + 4 * j + r}, v{vACC + 4 * j + r}, v{vWF[0] + 4 * j + r}")
        a.label(lab)
    for j in range(5):
        for i in range(2):
            a(f"v_cvt_pk_bf16_f32 v{vX + 2 * j + i}, v{vACC + 4 * j + 2 * i}, v{vACC + 4 * j + 2 * i + 1}")
        a(f"buffer_store_dwordx2 {vr(vX + 2 * j, 2)}, v{vXO}, s[{SRD_OUT}:{SRD_OUT+3}], 0 offen offset:{32 * j}")
    ST(a, "stores")
    if ST.on:
        a("s_waitcnt vmcnt(0)")
    ST(a, "end")
    ST.store(a)
    a("s_endpgm")

    a.label("L_k2_sync")
    ST(a, "E1b")
    a(f"s_lshl_b32 s12, s{sQB}, 8")
    a(f"s_add_u32 s12, s12, {CNT_OFF}")
    a("v_mov_b32 v4, s12")
    a("v_mov_b32 v5, 1")
    a("s_mov_b64 exec, 1")
    a("global_atomic_add v6, v4, v5, s[4:5] sc0")
    a("s_waitcnt vmcnt(0)")
    a("v_readfirstlane_b32 s14, v6")
    a(f"s_mov_b32 s13, {SPIN_MAX}")
    a("s_cmp_ge_u32 s14, 31")
    a("s_cbranch_scc1 L_k2_poll_done")
    for r in range(3):
        a(f"global_load_dword v{8 + r}, v4, s[4:5] sc1")
        a("s_sleep 2")
    a.label("L_k2_poll")
    for r in range(4):
        a(f"global_load_dword v{8 + (r + 3) % 4}, v4, s[4:5] sc1")
        a("s_waitcnt vmcnt(3)")
        a(f"v_readfirstlane_b32 s14, v{8 + r}")
        a("s_sub_u32 s13, s13, 1")
        a("s_cbranch_scc1 L_k2_poll_done")
        a("s_cmp_ge_u32 s14, 32")
        a("s_cbranch_scc1 L_k2_poll_done")
        a("s_sleep 2")
    a("s_branch L_k2_poll")
    a.label("L_k2_poll_done")
    a("s_mov_b64 exec, -1")
    ST(a, "polled")
    a("s_barrier")
    a("s_barrier")
    ST.store(a)
    if os.environ.get("DBG_SUMMARY"):
        summary(a)
    a("s_endpgm")

    a.label("L_k2_side")
    a(f"s_cmp_ge_u32 s{sW}, 8")
    a("s_cbranch_scc1 L_k2_side_b")
    a(f"s_sub_u32 s13, s{sW}, 4")
    a(f"s_mul_i32 s12, s{sNT}, 102400")
    a(f"s_add_u32 s12, s12, {WO2_OFF + 16 * 5120}")
    a("s_mul_i32 s14, s13, 5120")
    a("s_add_u32 s12, s12, s14")
    a("s_mov_b32 m0, s14")
    a("s_nop 0")
    for j in range(4):
        a(f"buffer_load_dwordx4 v{vL16}, {WS}, s12 offen offset:{1024 * j} lds")
    a("s_add_u32 m0, s14, 4096")
    a("s_add_u32 s12, s12, 4096")
    a(f"buffer_load_dwordx4 v{vL16}, {WS}, s12 offen lds")
    a("s_waitcnt vmcnt(0)")
    a.label("L_k2_side_b")
    a("s_barrier")
    a("s_barrier")
    ST.store(a)
    a("s_endpgm")

def routed(a, sB1, sB2):
    vT, vY = 4, 20
    a(f"v_mov_b32 v7, {F_ALL}")
    spin(a, "L_rt_all", 7, 6, 14, 1, 15, sleep=8)
    a(f"v_subrev_u32 v{vT}, 576, v0")
    a(f"v_mul_u32_u24 v{vT+1}, 52429, v{vT}")
    a(f"v_lshrrev_b32 v{vT+1}, 20, v{vT+1}")
    a(f"v_mul_u32_u24 v{vT+2}, 20, v{vT+1}")
    a(f"v_sub_u32 v{vT+2}, v{vT}, v{vT+2}")
    a(f"v_mul_u32_u24 v8, {12 * 5120}, v{vT+1}")
    a(f"v_lshl_add_u32 v8, v{vT+2}, 4, v8")
    a(f"v_mul_u32_u24 v9, 320, v{vT+1}")
    a(f"v_lshl_add_u32 v9, v{vT+2}, 4, v9")
    a(f"v_add_u32 v9, {L_RED}, v9")
    a(f"v_lshlrev_b32 v10, 2, v{vT}")
    a(f"v_mov_b32 v11, {F_RT}")
    a("v_mov_b32 v12, 1")
    for sel, sB in ((0, sB1), (1, sB2)):
        lab = f"L_k2_rt_skip{sel}"
        a(f"s_lshr_b32 s12, s{sB}, 6")
        a(f"s_cmp_lg_u32 s12, s{sMT}")
        a(f"s_cbranch_scc1 {lab}")
        a(f"s_lshl_b32 s12, s{sB}, 2")
        a("s_add_u32 s38, s4, s12")
        a("s_addc_u32 s39, s5, 0")
        a(f"s_add_u32 s38, s38, {R_OFF}")
        a("s_addc_u32 s39, s39, 0")
        a("s_load_dword s40, s[38:39], 0")
        a(f"s_mul_i32 s12, s{sNT}, 320")
        a(f"s_add_u32 s12, s12, {YP_OFF + sel * 2560}")
        a(f"v_cmp_gt_u32 vcc, 160, v{vT}")
        a("s_and_saveexec_b64 s[48:49], vcc")
        for i in range(12):
            a(f"s_add_u32 s13, s12, {i * 5120}")
            a(f"buffer_load_dwordx4 {vr(vY + 4 * i, 4)}, v8, {WS}, s13 offen sc1")
        a("s_waitcnt vmcnt(0)")
        for i in range(1, 12):
            for r in range(4):
                a(f"v_add_f32 v{vY + r}, v{vY + r}, v{vY + 4 * i + r}")
        a(f"ds_write_b128 v9, {vr(vY, 4)}")
        a("s_waitcnt lgkmcnt(0)")
        a("s_mov_b64 exec, 1")
        a(f"ds_add_u32 v11, v12 offset:{8 * sel}")
        a("s_mov_b64 exec, -1")
        a(f"v_add_u32 v13, {8 * sel}, v11")
        spin(a, f"L_rt_a{sel}", 13, 14, 14, 3, 15, sleep=2)
        a(f"v_add_u32 v13, {L_RED}, v10")
        a(f"v_cmp_gt_u32 vcc, 80, v{vT}")
        a("s_and_saveexec_b64 s[48:49], vcc")
        a(f"s_cbranch_execz L_k2_rt_c{sel}")
        for p in range(8):
            a(f"ds_read_b32 v{vY + p}, v13 offset:{320 * p}")
        a("v_mov_b32 v15, s40")
        a(f"v_mul_f32 v15, {hex(f2u(-LOG2E))}, v15")
        a("v_exp_f32 v15, v15")
        a("s_nop 0")
        a("v_add_f32 v15, 1.0, v15")
        a("v_rcp_f32 v15, v15")
        a("s_waitcnt lgkmcnt(0)")
        for p in range(1, 8):
            a(f"v_add_f32 v{vY}, v{vY}, v{vY + p}")
        a(f"v_mul_f32 v{vY}, v{vY}, v15")
        a(f"v_add_u32 v13, {L_Y + 320 * sel}, v10")
        a(f"ds_write_b32 v13, v{vY}")
        a.label(f"L_k2_rt_c{sel}")
        a("s_mov_b64 exec, -1")
        a("s_waitcnt lgkmcnt(0)")
        a("s_mov_b64 exec, 1")
        a(f"ds_add_u32 v11, v12 offset:{8 * sel + 4}")
        a("s_mov_b64 exec, -1")
        a(f"v_add_u32 v13, {8 * sel + 4}, v11")
        spin(a, f"L_rt_b{sel}", 13, 14, 14, 3, 15, sleep=2)
        a.label(lab)

def emit(a):
    entry(a)
    attention(a)
    helpers(a)
    projection(a)
    a.label("L_k2_exit")
    a("s_endpgm")
    a.label("L_k2_end")


def summary(a):
    import k1
    a("s_mov_b64 exec, -1")
    a("s_cmp_lg_u32 s2, 0")
    a("s_cbranch_scc1 L_sum_end")
    a("s_load_dwordx2 s[34:35], s[0:1], 72")
    a("s_waitcnt lgkmcnt(0)")
    a(f"s_mov_b32 s{SRD_WS + 2}, 0x2000000")
    a("v_and_b32 v3, 63, v0")
    names = ["entry", "B0", "loopend", "e_bar", "stores", "end"]
    a("v_mov_b32 v40, -1")
    for i in range(1, 8):
        a(f"v_mov_b32 v{40 + i}, 0")
    for q in range(4):
        a(f"v_add_u32 v4, {64 * q}, v3")
        a("v_lshlrev_b32 v5, 11, v4")
        a(f"s_mov_b32 s12, {PROF_OFF + 64}")
        for i, nm in enumerate(names):
            a(f"buffer_load_dword v{10 + i}, v5, {WS}, s12 offen offset:{4 * k1.ST.names.index(nm)}")
        a(f"buffer_load_dword v16, v5, {WS}, s12 offen offset:{4 * k1.ST.names.index('e_lds')}")
        a("s_waitcnt vmcnt(0)")
        a("v_and_b32 v6, 0xe4, v4")
        a("v_cmp_eq_u32 vcc, 0xe4, v6")
        a("s_nop 1")
        a("v_min_u32 v40, v40, v10")
        for i in range(1, 6):
            a(f"v_cndmask_b32 v{10 + i}, v{10 + i}, 0, vcc")
            a(f"v_max_u32 v{40 + i}, v{40 + i}, v{10 + i}")
        a("v_cndmask_b32 v16, 0, v16, vcc")
        a("v_max_u32 v46, v46, v16")
    vals = [40, 41, 42, 43, 44, 45, 46]
    for x in (1, 2, 4, 8, 16, 32):
        a(f"v_xor_b32 v6, {x}, v3")
        a("v_lshlrev_b32 v6, 2, v6")
        for r in vals:
            a(f"ds_bpermute_b32 v20, v6, v{r}")
            a("s_waitcnt lgkmcnt(0)")
            a(f"v_{'min' if r == 40 else 'max'}_u32 v{r}, v{r}, v20")
    for k_, nm in enumerate(["entry", "join", "E1", "polled"]):
        a(f"v_readlane_b32 s12, v{ST.vt + 1}, {ST.names.index(nm)}")
        a("s_nop 3")
        a(f"v_mov_b32 v{50 + k_}, s12")
    a("s_memrealtime s[12:13]")
    a("s_waitcnt lgkmcnt(0)")
    a("v_mov_b32 v54, s12")
    a("v_mov_b32 v7, 0")
    a("s_mov_b64 exec, 1")
    for k_, r in enumerate([41, 42, 43, 44, 45, 46, 50, 51, 52, 53, 54]):
        a(f"v_sub_u32 v20, v{r}, v40")
        a(f"global_store_dword v7, v20, s[34:35] offset:{4 * k_}")
    a("s_waitcnt vmcnt(0)")
    a.label("L_sum_end")
```
